```python
import torch

def _softmax(x, axis=-1):
    return torch.softmax(x, dim=axis)
def _gelu(x):
    return torch.nn.functional.gelu(x, approximate="tanh")
def _silu(x):
    return torch.nn.functional.silu(x)
def _sigmoid(x):
    return torch.sigmoid(x)
def _layernorm(x, axis=-1, eps=1e-5):
    m = x.mean(dim=axis, keepdim=True)
    v = x.var(dim=axis, keepdim=True, unbiased=False)
    return (x - m) / torch.sqrt(v + eps)
def _scatter_add(tgt, idx, src, axis=0):
    return tgt.clone().index_add_(axis, idx, src)
def _segment_sum(src, seg, n):
    out = torch.zeros((n,) + src.shape[1:], dtype=src.dtype)
    return out.index_add_(0, seg, src)
def _pad(x, pw):
    flat = tuple(v for pair in reversed(pw) for v in pair)
    return torch.nn.functional.pad(x, flat)

kernel_name = 'sequential_preLN__mha_block__glu_gated_swiglu__prompt'

def setup_inputs():

    _w = (lambda a: (lambda t: t.to(torch.bfloat16) if t.is_floating_point() else t)(torch.as_tensor(a)))
    def _A_setup():
        B, S, D, H = 1, 2048, 448, 16
        return {
            "x": _w((lambda *s: torch.randn(*s, dtype=torch.bfloat16) * 0.05)(B, S, D)),
            "wqkv": _w((lambda *s: torch.randn(*s, dtype=torch.bfloat16) * 0.05)(D, 3 * D)),
            "wo": _w((lambda *s: torch.randn(*s, dtype=torch.bfloat16) * 0.05)(D, D)),
        }
    _A_in = _A_setup()

    def _B_setup():
        B, S, D, F = 1, 2048, 448, 1792
        return {
            "x": _w((lambda *s: torch.randn(*s, dtype=torch.bfloat16) * 0.05)(B, S, D)),
            "w1": _w((lambda *s: torch.randn(*s, dtype=torch.bfloat16) * 0.4)(D, F) * (2.0 / D) ** 0.5),
            "w3": _w((lambda *s: torch.randn(*s, dtype=torch.bfloat16) * 0.4)(D, F) * (2.0 / D) ** 0.5),
            "w2": _w((lambda *s: torch.randn(*s, dtype=torch.bfloat16) * 0.4)(F, D) * (2.0 / F) ** 0.5),
        }
    _B_in = _B_setup()

    return {
        "A_x": _A_in["x"],
        "A_wqkv": _A_in["wqkv"],
        "A_wo": _A_in["wo"],
        "B_x": _B_in["x"],
        "B_w1": _B_in["w1"],
        "B_w3": _B_in["w3"],
        "B_w2": _B_in["w2"],
    }

def reference(A_x, A_wqkv, A_wo, B_x, B_w1, B_w3, B_w2):
    def _A_ref(x, wqkv, wo):
        B, S, D = x.shape
        H = 16
        Dh = D // H
        qkv = (lambda x, *d: x.permute(*d))((x @ wqkv).reshape(B, S, 3, H, Dh), 2, 0, 3, 1, 4)
        q, k, v = qkv[0], qkv[1], qkv[2]
        scores = torch.einsum("bhqd,bhkd->bhqk", q, k) * (Dh ** -0.5)
        p = _softmax(scores, axis=-1)
        o = torch.einsum("bhqk,bhkd->bhqd", p, v)
        return (lambda x, *d: x.permute(*d))(o, 0, 2, 1, 3).reshape(B, S, D) @ wo

    def _B_ref(x, w1, w3, w2):
        gate = torch.einsum("bsd,df->bsf", x, w1)
        up = torch.einsum("bsd,df->bsf", x, w3)
        h = _silu(gate) * up
        out = torch.einsum("bsf,fd->bsd", h, w2)
        return out

    x = A_x
    h = x + _A_ref(_layernorm(x, axis=-1), A_wqkv, A_wo)
    h2 = h + _B_ref(_layernorm(h, axis=-1), B_w1, B_w3, B_w2)
    return h2
```

```python
import re

TRANS = ('v_exp_f32', 'v_log_f32', 'v_rcp_f32', 'v_rsq_f32', 'v_sqrt_f32', 'v_sin_f32', 'v_cos_f32', 'v_exp_f16', 'v_rcp_iflag_f32')

def regs_of(tok):
    tok = tok.strip()
    neg = False
    tok = re.sub(r'^-', '', tok)
    m = re.match(r'^abs\((.*)\)$', tok)
    if m: tok = m.group(1)
    tok = tok.strip('|')
    m = re.match(r'^([vas])\[(\d+):(\d+)\]$', tok)
    if m:
        return [(m.group(1), i) for i in range(int(m.group(2)), int(m.group(3)) + 1)]
    m = re.match(r'^([vas])(\d+)$', tok)
    if m:
        return [(m.group(1), int(m.group(2)))]
    if tok in ('vcc', 'vcc_lo', 'vcc_hi'): return [('vcc', 0)]
    if tok in ('exec', 'exec_lo', 'exec_hi'): return [('exec', 0)]
    if tok == 'm0': return [('m0', 0)]
    return []

class Ins:
    __slots__ = ('text', 'op', 'kind', 'rd', 'wr', 'srcc', 'srcab', 'passes', 'states', 'label', 'target', 'stdata', 'isdot', 'lanesel')
    def __init__(self, text):
        self.text = text
        t = text.split(';')[0].strip()
        self.label = None; self.target = None
        self.rd = set(); self.wr = set(); self.srcc = set(); self.srcab = set(); self.stdata = set(); self.lanesel = set()
        self.passes = 0; self.states = 1; self.isdot = False
        if t.endswith(':'):
            self.label = t[:-1]; self.op = None; self.kind = 'label'; self.states = 0; return
        if t.startswith('.') or not t:
            self.op = None; self.kind = 'dir'; self.states = 0; return
        parts = t.split(None, 1)
        op = parts[0]; self.op = op
        rest = parts[1] if len(parts) > 1 else ''
        ops = [o.strip() for o in re.split(r',(?![^\[]*\])', rest)] if rest else []
        mods = ''
        if ops:
            sp = ops[-1].split(None, 1)
            if len(sp) > 1:
                ops[-1] = sp[0]; mods = sp[1]
        R = [regs_of(o) for o in ops]
        base = re.sub(r'_(e32|e64|dpp|sdwa)$', '', op)
        if op == 's_nop':
            self.kind = 'nop'; self.states = int(ops[0], 0) + 1
        elif op.startswith('v_mfma'):
            self.kind = 'mfma'
            self.wr = set(R[0]); self.srcab = set(R[1]) | set(R[2]); self.srcc = set(R[3]); self.rd = self.srcab | self.srcc
            self.passes = 8 if '32x32' in op else 4
        elif op.startswith('v_'):
            self.kind = 'trans' if base in TRANS else 'valu'
            if base.startswith('v_cmp'):
                self.wr = set(R[0]);
                for r in R[1:]: self.rd |= set(r)
            elif base in ('v_readfirstlane_b32',):
                self.wr = set(R[0]); self.rd = set(R[1]); self.kind = 'readlane'
            elif base == 'v_readlane_b32':
                self.wr = set(R[0]); self.rd = set(R[1]) | set(R[2]); self.lanesel = set(R[2]); self.kind = 'readlane'
            elif base.startswith('v_permlane'):
                self.wr = set(R[0]) | set(R[1]); self.rd = set(R[0]) | set(R[1]); self.kind = 'permlane'
            elif base in ('v_add_co_u32', 'v_sub_co_u32', 'v_addc_co_u32', 'v_subb_co_u32'):
                self.wr = set(R[0]) | set(R[1])
                for r in R[2:]: self.rd |= set(r)
            else:
                self.wr = set(R[0])
                for r in R[1:]: self.rd |= set(r)
                if base in ('v_fmac_f32', 'v_dot2c_f32_bf16', 'v_pk_fmac_f16', 'v_writelane_b32'): self.rd |= set(R[0])
                if base.startswith('v_dot'): self.isdot = True
                if base == 'v_cndmask_b32' and len(ops) == 3: self.rd.add(('vcc', 0))
            if 'row_' in mods or 'quad_perm' in mods or op.endswith('_dpp'):
                self.kind = 'dpp'
        elif op.startswith('buffer_') or op.startswith('global_'):
            self.kind = 'vmem'
            islds = 'lds' in mods.split() or '_lds_' in op or (ops and ops[-1] == 'lds')
            if op.startswith('buffer_wbl2') or op.startswith('buffer_inv'):
                pass
            elif op.startswith('buffer_load') and islds:
                for r in R: self.rd |= set(r)
                self.rd.add(('m0', 0)); self.kind = 'ldsdma'
            elif op.startswith('global_load_lds'):
                for r in R: self.rd |= set(r)
                self.rd.add(('m0', 0)); self.kind = 'ldsdma'
            elif '_load' in op:
                self.wr = set(R[0])
                for r in R[1:]: self.rd |= set(r)
                if 'd16' in op: self.rd |= set(R[0])
            elif op.startswith('buffer_store') or op.startswith('buffer_atomic'):
                for r in R: self.rd |= set(r)
                if 'x3' in op or 'x4' in op: self.stdata = set(R[0])
                if op.startswith('buffer_atomic') and 'sc0' in mods.split(): self.wr = set(R[0])
            elif op.startswith('global_store') or op.startswith('global_atomic'):
                for r in R: self.rd |= set(r)
                if ('x3' in op or 'x4' in op) and op.startswith('global_store'): self.stdata = set(R[1])
            else:
                raise ValueError('unknown vmem ' + t)
        elif op.startswith('ds_'):
            self.kind = 'ds'
            if op.startswith('ds_read') or op.startswith('ds_bpermute') or op.startswith('ds_permute') or op.startswith('ds_swizzle') or '_rtn' in op:
                self.wr = set(R[0])
                for r in R[1:]: self.rd |= set(r)
            else:
                for r in R: self.rd |= set(r)
        elif op.startswith('s_'):
            self.kind = 'salu'
            if op.startswith('s_cbranch') or op == 's_branch':
                self.target = ops[0]; self.kind = 'branch'
            elif op == 's_getpc_b64':
                self.wr = set(R[0])
            elif op.startswith('s_cmp') or op in ('s_waitcnt', 's_barrier', 's_endpgm', 's_setprio', 's_sleep'):
                for r in R: self.rd |= set(r)
            elif op.startswith('s_load') or op.startswith('s_buffer_load') or op.startswith('s_memtime') or op.startswith('s_memrealtime'):
                self.wr = set(R[0])
                for r in R[1:]: self.rd |= set(r)
            else:
                self.wr = set(R[0])
                for r in R[1:]: self.rd |= set(r)
                if 'saveexec' in op: self.wr.add(('exec', 0))
        else:
            raise ValueError('unknown op ' + t)

VALUISH = ('valu', 'trans', 'readlane', 'permlane', 'dpp')
def isv(r): return r[0] in ('v', 'a')
def iss(r): return r[0] in ('s', 'vcc')

def need(p, c):
    n = 0
    pv = p.kind in VALUISH
    cv = c.kind in VALUISH
    if pv:
        wv = {r for r in p.wr if isv(r)}
        ws = {r for r in p.wr if iss(r)}
        if c.kind == 'mfma' and wv & c.rd: n = max(n, 2)
        if p.kind == 'trans' and cv and c.kind != 'trans' and wv & c.rd: n = max(n, 1)
        if p.kind == 'trans' and c.kind in ('vmem', 'ds') and wv & c.rd: n = max(n, 1)
        if c.kind == 'readlane' and wv & c.rd: n = max(n, 1)
        if c.kind in ('permlane', 'dpp') and wv & c.rd: n = max(n, 2)
        if ws:
            if cv and ws & c.rd: n = max(n, 2)
            if c.kind == 'readlane' and ws & c.lanesel: n = max(n, 4)
            if c.kind in ('vmem', 'ldsdma') and ws & c.rd: n = max(n, 5)
            if c.kind in ('salu', 'branch') and (ws & c.rd or (c.kind == 'branch' and 'vcc' in c.op and ('vcc', 0) in ws)): n = max(n, 2)
        if p.isdot and (wv & (c.rd | c.wr)) and c.kind not in ('salu', 'branch', 'nop'):
            if not (c.op == p.op and not (wv & (c.rd - c.wr))): n = max(n, 3)
    if p.kind == 'mfma':
        tab = {8: 12, 4: 8}[p.passes]
        if (cv or c.kind in ('vmem', 'ds', 'ldsdma')) and p.wr & (c.rd | c.wr): n = max(n, tab)
        if c.kind == 'mfma':
            if p.wr & c.srcab: n = max(n, tab)
            if p.wr & c.srcc and not (p.wr == c.srcc and p.passes == c.passes): n = max(n, {8: 10, 4: 6}[p.passes])
            if p.wr & c.wr and not (p.wr == c.srcc): n = max(n, {8: 10, 4: 6}[p.passes])
        if cv and p.srcc & c.wr: n = max(n, {8: 7, 4: 3}[p.passes])
    if p.kind == 'salu' and ('m0', 0) in p.wr and c.kind == 'ldsdma': n = max(n, 1)
    if p.stdata:
        if cv and p.stdata & c.wr: n = max(n, 2)
        elif p.stdata & c.wr: n = max(n, 1)
    return n

MAXD = 14

class Asm:
    def __init__(self):
        self.ins = []
    def __call__(self, text):
        for line in text.split('\n'):
            line = line.strip()
            if not line or line.startswith(';'): continue
            self.ins.append(Ins(line))
    def label(self, l): self.ins.append(Ins(l + ':'))
    def note(self, text):
        for line in text.strip().split('\n'):
            x = Ins('.'); x.text = '; ' + line.strip(); self.ins.append(x)
    def finalize(self):
        ins = self.ins
        def build():
            labels = {x.label: k for k, x in enumerate(ins) if x.label}
            jumps = {}
            for k, x in enumerate(ins):
                if x.kind == 'branch' and x.target in labels:
                    jumps.setdefault(labels[x.target], []).append(k)
            return jumps
        jumps = build()
        def walk_back(j, d, c, seen, via_jump):
            worst = 0
            first = True
            while j >= 0 and d < MAXD:
                x = ins[j]
                if x.label is not None:
                    for src in jumps.get(j, []):
                        if (src, d) not in seen:
                            seen.add((src, d))
                            worst = max(worst, walk_back(src, d, c, seen, True))
                    j -= 1; continue
                if x.kind == 'dir':
                    j -= 1; continue
                if x.op in ('s_branch', 's_endpgm') and not (first and via_jump):
                    break
                first = False
                n = need(x, c)
                if n > d: worst = max(worst, n - d)
                d += x.states
                j -= 1
            return worst
        self.nops = 0
        for rounds in range(3):
            i = 0
            ch = False
            while i < len(ins):
                c = ins[i]
                if c.kind not in ('label', 'dir', 'nop'):
                    w = walk_back(i - 1, 0, c, set(), False)
                    if w > 0:
                        ins.insert(i, Ins(f's_nop {w-1}'))
                        self.nops += w
                        jumps = build()
                        i += 1
                        ch = True
                i += 1
            if not ch: break
        self.ins = ins
    def text(self):
        s = []
        for x in self.ins:
            s.append(x.text if x.kind in ('label',) else '    ' + x.text)
        return '\n'.join(s) + '\n'
```

```python
import sys, struct, math
from asmgen import Asm

MB = 1 << 20
WS_Q   = 0
WS_KV  = 2 * MB
WS_O   = 6 * MB
WS_H   = 8 * MB
WS_ST  = 10 * MB
WS_HH  = 11 * MB
WS_WO  = 18 * MB
WS_W13 = 19 * MB
WS_W2  = 23 * MB
WS_FLG = 25 * MB
WS_SIZE = 26 * MB

X_BYTES = 2048 * 448 * 2
WQKV_BYTES = 448 * 1344 * 2
WO_BYTES = 448 * 448 * 2
W1_BYTES = 448 * 1792 * 2
W2_BYTES = 1792 * 448 * 2

def f2u(x): return struct.unpack('<I', struct.pack('<f', x))[0]

class VA:
    def __init__(self, start, limit, p='v'):
        self.n = start; self.limit = limit; self.p = p
    def __call__(self, cnt=1, align=None):
        if align is None: align = 1 if cnt == 1 else (2 if cnt == 2 else 4)
        self.n = (self.n + align - 1) // align * align
        b = self.n; self.n += cnt
        assert self.n <= self.limit, 'out of registers'
        return b
def vr(b, n, p='v'): return f'{p}[{b}:{b+n-1}]' if n > 1 else f'{p}{b}'

def prologue(a, nwg, L):
    a(f'''
    s_cmp_ge_u32 s2, {nwg}
    s_cbranch_scc1 {L}_end
    s_load_dwordx16 s[32:47], s[0:1], 0
    s_load_dwordx4 s[48:51], s[0:1], 64
    v_lshrrev_b32 v2, 6, v0
    v_and_b32 v1, 63, v0
    v_readfirstlane_b32 s3, v2
    ''')
def srd(a, d, p, nbytes):
    a(f'''
    s_mov_b32 s{d}, s{p}
    s_mov_b32 s{d+1}, s{p+1}
    s_mov_b32 s{d+2}, {nbytes}
    s_mov_b32 s{d+3}, 0x20000
    ''')

MFMA = 'v_mfma_f32_32x32x16_bf16'

def halfsum(a, x, t):
    a(f'''
    v_mov_b32 v{t}, v{x}
    v_permlane32_swap_b32 v{x}, v{t}
    v_add_f32 v{x}, v{x}, v{t}
    ''')

def gen_k1():
    a = Asm(); L = 'K1'
    SLOT = 28672; NSLOT = 5
    CSP = NSLOT * SLOT
    PRV = CSP + 1536
    lds = PRV + 4 * 512
    prologue(a, 256, L)
    va = VA(4, 256)
    accQ = va(16); accK = va(16); accV = va(16)
    XF = [va(4), va(4)]
    WF = [[va(4) for j in range(3)] for b in range(2)]
    vx = [va(), va()]; vw = [va(), va(), va()]
    ax = [va() for _ in range(4)]; aw = [va() for _ in range(4)]
    cx = [va() for _ in range(4)]; cw = [va() for _ in range(4)]
    sm = [va(), va()]; sq = [va(), va()]; cs = [va(), va(), va()]
    t = [va() for _ in range(8)]
    RL = [va(8) for _ in range(6)]
    vsG = va(); vsL = va(); vdG = va(); vdL = va(); vd3 = va()
    hf = va(); n31 = va()
    T16 = va(16); U16 = va(16)
    a(f'''
    s_and_b32 s22, s2, 7
    s_lshr_b32 s23, s2, 3
    s_and_b32 s20, s22, 1
    s_lshl_b32 s20, s20, 3
    s_and_b32 s24, s23, 7
    s_add_u32 s20, s20, s24          ; h
    s_lshr_b32 s21, s22, 1
    s_lshl_b32 s21, s21, 2
    s_lshr_b32 s24, s23, 3
    s_add_u32 s21, s21, s24          ; tb
    v_lshrrev_b32 v{hf}, 5, v1
    v_and_b32 v{n31}, 31, v1
    ''')
    for i in range(2):
        a(f'''
        v_lshrrev_b32 v{t[0]}, 3, v1
        v_add_u32 v{t[0]}, {8*i}, v{t[0]}       ; row
        v_lshrrev_b32 v{t[1]}, 1, v{t[0]}
        v_and_b32 v{t[1]}, 7, v{t[1]}
        v_and_b32 v{t[2]}, 7, v1
        v_xor_b32 v{t[1]}, v{t[1]}, v{t[2]}
        v_lshlrev_b32 v{t[1]}, 4, v{t[1]}
        v_mul_u32_u24 v{t[0]}, 896, v{t[0]}
        v_add_u32 v{vx[i]}, v{t[0]}, v{t[1]}
        ''')
    for i in range(3):
        a(f'''
        v_add_u32 v{t[0]}, {64*i}, v1
        v_mul_u32_u24 v{t[1]}, 43691, v{t[0]}
        v_lshrrev_b32 v{t[1]}, 19, v{t[1]}      ; rr = g/12
        v_mul_u32_u24 v{t[2]}, 12, v{t[1]}
        v_sub_u32 v{t[2]}, v{t[0]}, v{t[2]}     ; p
        v_lshrrev_b32 v{t[3]}, 2, v{t[2]}
        v_mul_u32_u24 v{t[3]}, 896, v{t[3]}
        v_and_b32 v{t[2]}, 3, v{t[2]}
        v_lshlrev_b32 v{t[2]}, 4, v{t[2]}
        v_mul_u32_u24 v{t[1]}, 2688, v{t[1]}
        v_add3_u32 v{vw[i]}, v{t[1]}, v{t[2]}, v{t[3]}
        ''')
    a('s_waitcnt lgkmcnt(0)')
    srd(a, 4, 32, X_BYTES); srd(a, 8, 34, WQKV_BYTES); srd(a, 12, 50, WS_SIZE)
    a(f'''
    s_lshl_b32 s25, s21, 2
    s_add_u32 s25, s25, s3
    s_mul_i32 s25, s25, {32*896}
    s_mul_i32 s26, s3, {16*2688}
    s_mul_i32 s24, s20, 56
    s_add_u32 s26, s26, s24
    s_lshl_b32 s27, s3, 12
    s_mul_i32 s28, s3, 3072
    s_add_u32 s28, s28, 16384
    s_mov_b32 s29, 0x3f803f80
    ''')
    def dma(c):
        sl = (c % NSLOT) * SLOT
        for i in range(3):
            a(f'''
            s_add_u32 m0, s28, {sl + i*1024}
            s_add_u32 s30, s26, {c*64*2688}
            buffer_load_dwordx4 v{vw[i]}, s[8:11], s30 offen lds
            ''')
        for i in range(4):
            a(f'''
            s_add_u32 m0, s27, {sl + i*1024}
            s_add_u32 s30, s25, {c*128 + (i>>1)*16*896}
            buffer_load_dwordx4 v{vx[i&1]}, s[4:7], s30 offen lds
            ''')
    for c in range(5): dma(c)
    a(f'''
    v_lshrrev_b32 v{t[0]}, 1, v{n31}
    v_and_b32 v{t[0]}, 7, v{t[0]}              ; f(row)
    v_lshlrev_b32 v{t[1]}, 7, v{n31}
    v_add_u32 v{t[1]}, s27, v{t[1]}            ; w*4096 + row*128
    v_lshrrev_b32 v{t[2]}, 4, v1
    v_and_b32 v{t[2]}, 1, v{t[2]}
    v_lshlrev_b32 v{t[2]}, 5, v{t[2]}          ; cg*32
    v_and_b32 v{t[3]}, 3, v1
    v_lshl_add_u32 v{t[2]}, v{t[3]}, 3, v{t[2]} ; + c4*8
    v_bfe_u32 v{t[3]}, v1, 2, 2                ; r
    v_lshl_add_u32 v{t[3]}, v{hf}, 3, v{t[3]}  ; 8hf + r
    v_mul_u32_u24 v{t[3]}, 192, v{t[3]}
    v_add_u32 v{t[2]}, v{t[2]}, v{t[3]}
    v_add_u32 v{t[2]}, 16384, v{t[2]}
    ''')
    for n in range(4):
        a(f'''
        s_add_u32 s30, s3, {n}
        s_and_b32 s30, s30, 3
        s_lshl_b32 s31, s30, 1
        v_add_u32 v{t[4]}, s31, v{hf}
        v_xor_b32 v{t[4]}, v{t[4]}, v{t[0]}
        v_lshl_add_u32 v{ax[n]}, v{t[4]}, 4, v{t[1]}
        s_mul_i32 s31, s30, {16*192}
        v_add_u32 v{aw[n]}, s31, v{t[2]}
        ''')
    for r in list(range(accQ, accQ+48)) + sm + sq + cs:
        a(f'v_mov_b32 v{r}, 0')
    a(f'''
    v_mul_u32_u24 v{t[0]}, {4*3584}, v{hf}
    v_lshl_add_u32 v{vsG}, v{n31}, 1, v{t[0]}
    v_mul_u32_u24 v{t[0]}, {4*896}, v{hf}
    v_lshl_add_u32 v{vsL}, v{n31}, 1, v{t[0]}
    v_lshlrev_b32 v{vdL}, 4, v1
    v_lshrrev_b32 v{t[0]}, 4, v{n31}
    v_mul_u32_u24 v{t[0]}, 28672, v{t[0]}
    v_and_b32 v{t[1]}, 15, v1
    v_lshl_add_u32 v{t[1]}, v{hf}, 5, v{t[1]}
    v_lshl_add_u32 v{vdG}, v{t[1]}, 4, v{t[0]}
    s_lshr_b32 s52, s3, 1                 ; w>>1
    s_and_b32 s53, s3, 1                  ; w&1
    ''')
    def rl_loads(rnd, vs, stride):
        for j in range(8):
            ro = ((j & 3) + 8 * (j >> 2)) * stride
            a(f's_add_u32 s30, s31, {ro}')
            a(f'buffer_load_ushort v{RL[rnd] + j}, v{vs}, s[16:19], s30 offen')
    def unitG(rnd):
        a(f'''
        s_mul_i32 s55, s54, 2341
        s_lshr_b32 s55, s55, 16           ; s = U/28
        s_mul_i32 s56, s55, 28
        s_sub_u32 s56, s54, s56           ; u
        s_lshl_b32 s56, s56, 1
        s_add_u32 s56, s56, s53           ; cg
        s_cmp_eq_u32 s52, 0
        s_cselect_b32 s16, s40, s42
        s_cselect_b32 s17, s41, s43
        s_mov_b32 s18, {W1_BYTES}
        s_mov_b32 s19, 0x20000
        s_mul_i32 s31, s55, {16*3584}
        s_lshl_b32 s57, s56, 6
        s_add_u32 s31, s31, s57
        s_mul_i32 s57, s56, 56
        s_add_u32 s57, s57, s55
        s_lshl_b32 s57, s57, 10
        s_lshl_b32 s58, s52, 8
        s_add_u32 s57, s57, s58
        s_add_u32 s{60+rnd}, s57, {WS_W13}
        ''')
        rl_loads(rnd, vsG, 3584)
    def unitL(rnd, iswo):
        a(f'''
        s_mul_i32 s55, s54, 9363
        s_lshr_b32 s55, s55, 16           ; s' = U/7
        s_mul_i32 s56, s55, 7
        s_sub_u32 s56, s54, s56
        s_lshl_b32 s56, s56, 1
        s_add_u32 s56, s56, s53           ; ct
        s_mov_b32 s16, s{36 if iswo else 44}
        s_mov_b32 s17, s{37 if iswo else 45}
        s_mov_b32 s18, {WO_BYTES if iswo else W2_BYTES}
        s_mov_b32 s19, 0x20000
        s_mul_i32 s31, s55, {(28 if iswo else 32)*896}
        s_mul_i32 s57, s52, {16*896}
        s_add_u32 s31, s31, s57
        s_lshl_b32 s57, s56, 6
        s_add_u32 s31, s31, s57
        s_lshl_b32 s55, s55, 1
        s_add_u32 s55, s55, s52           ; ks
        s_mul_i32 s57, s56, {32 if iswo else 112}
        s_add_u32 s57, s57, s55
        s_lshl_b32 s57, s57, 10
        s_add_u32 s{60+rnd}, s57, {WS_WO if iswo else WS_W2}
        ''')
        rl_loads(rnd, vsL, 896)
    def relayout_round(rnd):
        if rnd < 3:
            a(f's_add_u32 s54, s2, {256*rnd}'); unitG(rnd)
        elif rnd == 3:
            a(f'''
            s_cmp_lt_u32 s2, 16
            s_cbranch_scc0 {L}_r3b
            s_add_u32 s54, s2, 768
            v_mov_b32 v{vd3}, v{vdG}
            '''); unitG(rnd)
            a(f's_branch {L}_r3e'); a.label(f'{L}_r3b')
            a(f's_sub_u32 s54, s2, 16\nv_mov_b32 v{vd3}, v{vdL}'); unitL(rnd, False)
            a.label(f'{L}_r3e')
        elif rnd == 4:
            a(f'''
            s_cmp_lt_u32 s2, 152
            s_cbranch_scc0 {L}_r4b
            s_add_u32 s54, s2, 240
            '''); unitL(rnd, False)
            a(f's_branch {L}_r4e'); a.label(f'{L}_r4b')
            a(f's_sub_u32 s54, s2, 152'); unitL(rnd, True)
            a.label(f'{L}_r4e')
        else:
            a(f'''
            s_min_u32 s54, s2, 7
            s_add_u32 s54, s54, 104
            '''); unitL(rnd, True)

    def reads(c, n, b):
        a(f'ds_read_b128 {vr(XF[b],4)}, v{cx[n]}')
        for j in range(3):
            for u in range(2):
                a(f'ds_read_b64_tr_b16 {vr(WF[b][j]+2*u,2)}, v{cw[n]} offset:{4*u*192 + 64*j}')
    def setaddr(c):
        sl = (c % NSLOT) * SLOT
        for n in range(4):
            a(f'v_add_u32 v{cx[n]}, {sl}, v{ax[n]}' if sl else f'v_mov_b32 v{cx[n]}, v{ax[n]}')
            a(f'v_add_u32 v{cw[n]}, {sl}, v{aw[n]}' if sl else f'v_mov_b32 v{cw[n]}, v{aw[n]}')
    def compute(n, b):
        a(f'{MFMA} {vr(accQ,16)}, {vr(WF[b][0],4)}, {vr(XF[b],4)}, {vr(accQ,16)}')
        for i in range(4):
            a(f'v_dot2c_f32_bf16 v{sm[i&1]}, s29, v{XF[b]+i}')
        a(f'{MFMA} {vr(accK,16)}, {vr(WF[b][1],4)}, {vr(XF[b],4)}, {vr(accK,16)}')
        for i in range(4):
            a(f'v_dot2c_f32_bf16 v{sq[i&1]}, v{XF[b]+i}, v{XF[b]+i}')
        a(f'{MFMA} {vr(accV,16)}, {vr(XF[b],4)}, {vr(WF[b][2],4)}, {vr(accV,16)}')
        if n == 0:
            for i in range(4):
                for j in range(3):
                    a(f'v_dot2c_f32_bf16 v{cs[j]}, s29, v{WF[b][j]+i}')
    issued = [7*5]
    def wait_chunk(c):
        pos = {0: 7, 1: 14, 2: 21, 3: 28, 4: 35, 5: 42, 6: 49}[c]
        n = issued[0] - pos
        a(f's_waitcnt vmcnt({min(n,63)}) lgkmcnt(0)')
        a('s_barrier')
    wait_chunk(0); setaddr(0); reads(0, 0, 0)
    step = 0
    for c in range(7):
        for n in range(4):
            b = step & 1
            if n < 3:
                reads(c, n + 1, b ^ 1)
                a('s_waitcnt lgkmcnt(7)')
            elif c < 6:
                wait_chunk(c + 1)
                if c + 5 <= 6:
                    dma(c + 5); issued[0] += 7
                elif c >= 2:
                    for rnd in ((0, 1), (2, 3), (4,), (5,))[c - 2]:
                        relayout_round(rnd); issued[0] += 8
                setaddr(c + 1); reads(c + 1, 0, b ^ 1)
            else:
                a('s_waitcnt lgkmcnt(0)')
            compute(n, b)
            step += 1
    mu = t[0]; rs = t[1]; rq = t[2]
    a(f'''
    v_add_f32 v{sm[0]}, v{sm[0]}, v{sm[1]}
    v_add_f32 v{sq[0]}, v{sq[0]}, v{sq[1]}
    ''')
    halfsum(a, sm[0], t[3]); halfsum(a, sq[0], t[4])
    for j in range(3): halfsum(a, cs[j], t[5])
    a(f'''
    s_mul_i32 s30, s3, 384
    v_lshlrev_b32 v{t[6]}, 2, v{n31}
    v_add_u32 v{t[7]}, s30, v{t[6]}
    ''')
    a(f'v_add_u32 v{t[7]}, {CSP}, v{t[7]}')
    for j in range(3):
        a(f'ds_write_b32 v{t[7]}, v{cs[j]} offset:{j*128}')
    a(f'''
    v_mul_f32 v{mu}, {hex(f2u(1.0/448))}, v{sm[0]}
    v_mul_f32 v{t[3]}, {hex(f2u(1.0/448))}, v{sq[0]}
    v_fma_f32 v{t[3]}, -v{mu}, v{mu}, v{t[3]}
    v_max_f32 v{t[3]}, 0, v{t[3]}
    v_add_f32 v{t[3]}, {hex(f2u(1e-5))}, v{t[3]}
    v_rsq_f32 v{rs}, v{t[3]}
    s_lshl_b32 s30, s3, 9
    s_add_u32 s30, s30, {PRV}
    v_add_u32 v{t[4]}, s30, v{t[6]}          ; private + n*4
    v_mul_f32 v{rq}, {hex(f2u(28**-0.5 * math.log2(math.e)))}, v{rs}
    ds_write_b32 v{t[4]}, v{mu} offset:256
    ds_write_b32 v{t[4]}, v{rs} offset:384
    s_waitcnt lgkmcnt(0)
    s_barrier
    v_mul_u32_u24 v{t[5]}, 768, v{hf}
    v_add_u32 v{t[5]}, v{t[5]}, v{t[6]}
    v_add_u32 v{t[5]}, {CSP}, v{t[5]}
    ''')
    for j in range(3):
        a(f'ds_read_b32 v{cs[j]}, v{t[5]} offset:{j*128}')
        a(f'ds_read_b32 v{XF[0]+j}, v{t[5]} offset:{384 + j*128}')
    a(f'''
    v_lshlrev_b32 v{t[7]}, 4, v{hf}
    v_add_u32 v{t[7]}, s30, v{t[7]}
    ''')
    for q in range(4):
        a(f'ds_read_b128 {vr(T16+4*q,4)}, v{t[7]} offset:{256 + 32*q}')
        a(f'ds_read_b128 {vr(U16+4*q,4)}, v{t[7]} offset:{384 + 32*q}')
    a('s_waitcnt lgkmcnt(8)')
    for j in range(3):
        a(f'v_add_f32 v{cs[j]}, v{cs[j]}, v{XF[0]+j}')
    for j in range(3): halfsum(a, cs[j], t[3])
    a(f'''
    ds_write_b32 v{t[4]}, v{cs[0]}
    ds_write_b32 v{t[4]}, v{cs[1]} offset:128
    s_waitcnt lgkmcnt(0)
    ''')
    for r in range(16):
        a(f'v_fma_f32 v{accV+r}, -v{T16+r}, v{cs[2]}, v{accV+r}')
    for r in range(16):
        a(f'v_mul_f32 v{accV+r}, v{accV+r}, v{U16+r}')
    for q in range(4):
        a(f'ds_read_b128 {vr(T16+4*q,4)}, v{t[7]} offset:{32*q}')
        a(f'ds_read_b128 {vr(U16+4*q,4)}, v{t[7]} offset:{128 + 32*q}')
    PV = WF[0][0]
    assert WF[0][1] == WF[0][0] + 4
    for i in range(8):
        a(f'v_cvt_pk_bf16_f32 v{PV+i}, v{accV+2*i}, v{accV+2*i+1}')
    a(f'''
    v_cmp_eq_u32 vcc, 28, v{n31}
    v_mov_b32 v{t[3]}, 0x3f803f80
    v_cndmask_b32 v{t[3]}, 0, v{t[3]}, vcc
    v_cmp_lt_u32 vcc, 27, v{n31}
    ''')
    for i in range(8):
        a(f'v_cndmask_b32 v{PV+i}, v{PV+i}, v{t[3]}, vcc')
    a(f'''
    s_lshl_b32 s30, s21, 2
    s_add_u32 s30, s30, s3
    s_lshl_b32 s31, s20, 6
    s_add_u32 s30, s30, s31             ; h*64 + tile
    s_lshl_b32 s31, s30, 11
    s_add_u32 s31, s31, {WS_Q}
    s_lshl_b32 s30, s30, 12
    s_add_u32 s30, s30, {WS_KV}
    buffer_store_dwordx4 {vr(PV,4)}, v{vdL}, s[12:15], s30 offen offset:2048
    buffer_store_dwordx4 {vr(PV+4,4)}, v{vdL}, s[12:15], s30 offen offset:3072
    s_waitcnt lgkmcnt(0)
    ''')
    for r in range(16):
        a(f'v_fma_f32 v{accQ+r}, -v{mu}, v{T16+r}, v{accQ+r}')
        a(f'v_fma_f32 v{accK+r}, -v{mu}, v{U16+r}, v{accK+r}')
    for r in range(16):
        a(f'v_mul_f32 v{accQ+r}, v{accQ+r}, v{rq}')
        a(f'v_mul_f32 v{accK+r}, v{accK+r}, v{rs}')
    a(f'v_cmp_lt_u32 vcc, 31, v1')
    for r in range(12, 16):
        a(f'v_cndmask_b32_e64 v{accQ+r}, v{accQ+r}, 0, vcc')
        a(f'v_cndmask_b32_e64 v{accK+r}, v{accK+r}, {"1.0" if r < 15 else "0"}, vcc')
    a(f'v_mul_f32 v{t[3]}, v{accQ}, v{accK}')
    a(f'v_mul_f32 v{t[4]}, v{accQ+1}, v{accK+1}')
    for r in range(2, 16):
        a(f'v_fmac_f32 v{t[3 + (r&1)]}, v{accQ+r}, v{accK+r}')
    a(f'v_add_f32 v{t[3]}, v{t[3]}, v{t[4]}')
    halfsum(a, t[3], t[4])
    a(f'v_sub_f32 v{t[3]}, 0, v{t[3]}')
    a(f'v_cndmask_b32 v{accQ+12}, v{accQ+12}, v{t[3]}, vcc')
    PQ = T16; PK = T16 + 8
    for i in range(8):
        a(f'v_cvt_pk_bf16_f32 v{PK+i}, v{accK+2*i}, v{accK+2*i+1}')
    for i in range(8):
        a(f'v_cvt_pk_bf16_f32 v{PQ+i}, v{accQ+2*i}, v{accQ+2*i+1}')
    a(f'''
    buffer_store_dwordx4 {vr(PK,4)}, v{vdL}, s[12:15], s30 offen
    buffer_store_dwordx4 {vr(PK+4,4)}, v{vdL}, s[12:15], s30 offen offset:1024
    buffer_store_dwordx4 {vr(PQ,4)}, v{vdL}, s[12:15], s31 offen
    buffer_store_dwordx4 {vr(PQ+4,4)}, v{vdL}, s[12:15], s31 offen offset:1024
    s_waitcnt vmcnt(6)
    ''')
    for rnd in range(6):
        for i in range(4):
            a(f'v_lshl_or_b32 v{RL[rnd]+i}, v{RL[rnd]+2*i+1}, 16, v{RL[rnd]+2*i}')
    for rnd in range(5):
        vd = vdG if rnd < 3 else (vd3 if rnd == 3 else vdL)
        a(f'buffer_store_dwordx4 {vr(RL[rnd],4)}, v{vd}, s[12:15], s{60+rnd} offen')
    a(f'''
    s_cmp_lt_u32 s2, 8
    s_cbranch_scc0 {L}_end
    buffer_store_dwordx4 {vr(RL[5],4)}, v{vdL}, s[12:15], s65 offen
    ''')
    a.label(f'{L}_end')
    a('s_endpgm')
    return a, va.n, lds

def gen_k2():
    a = Asm(); L = 'K2'
    lds = 49152 + 64
    prologue(a, 256, L)
    va = VA(4, 256)
    Q = [va(8) for _ in range(4)]
    O = [va(16) for _ in range(4)]
    S = [va(16), va(16)]
    P = [va(8), va(8)]
    KV = [va(16) for _ in range(4)]
    voff = va(); t = [va() for _ in range(6)]
    a(f"""
    s_and_b32 s22, s2, 7
    s_lshr_b32 s23, s2, 3
    s_lshr_b32 s20, s23, 4
    s_lshl_b32 s22, s22, 1
    s_add_u32 s20, s20, s22            ; h
    s_and_b32 s21, s23, 15             ; qb
    v_lshlrev_b32 v{voff}, 4, v1
    s_lshl_b32 s24, s20, 6             ; h*64
    s_lshl_b32 s25, s3, 4
    s_add_u32 s25, s25, s24
    s_lshl_b32 s25, s25, 12
    s_add_u32 s25, s25, {WS_KV}
    s_lshl_b32 s26, s21, 2
    s_add_u32 s24, s24, s26            ; h*64+qb*4
    s_waitcnt lgkmcnt(0)
    """)
    srd(a, 12, 50, WS_SIZE)
    def ldkv(b, sreg):
        for j in range(4):
            a(f'buffer_load_dwordx4 {vr(KV[b]+4*j,4)}, v{voff}, s[12:15], s{sreg} offen offset:{1024*j}')
    def ldq(lq):
        a(f"""
        s_add_u32 s26, s3, {lq}
        s_and_b32 s26, s26, 3
        s_add_u32 s26, s26, s24
        s_lshl_b32 s26, s26, 11
        s_add_u32 s26, s26, {WS_Q}
        buffer_load_dwordx4 {vr(Q[lq],4)}, v{voff}, s[12:15], s26 offen
        buffer_load_dwordx4 {vr(Q[lq]+4,4)}, v{voff}, s[12:15], s26 offen offset:1024
        """)
    ldq(0); ldkv(0, 25)
    for lq in range(1, 4): ldq(lq)
    a('s_add_u32 s27, s25, 4096'); ldkv(1, 27)
    a('s_add_u32 s27, s25, 8192'); ldkv(2, 27)
    a('s_add_u32 s27, s25, 12288')
    a('s_mov_b32 s28, 3')
    for q in range(4):
        for r in range(16): a(f'v_mov_b32 v{O[q]+r}, 0')
    for r in range(8):
        a(f'v_mov_b32 v{P[1]+r}, 0'); a(f'v_mov_b32 v{KV[3]+8+r}, 0')
    a('s_waitcnt vmcnt(14)')
    a(f'{MFMA} {vr(S[0],16)}, {vr(KV[0],4)}, {vr(Q[0],4)}, 0')
    a(f'{MFMA} {vr(S[0],16)}, {vr(KV[0]+4,4)}, {vr(Q[0]+4,4)}, {vr(S[0],16)}')
    a('s_waitcnt vmcnt(8)')
    a('s_mov_b32 s29, 4')
    a('s_nop 7')
    a('.p2align 6')
    a.label(f'{L}_loop')
    for i in range(4):
        for q in range(4):
            cb = q & 1; nb = cb ^ 1
            ni, nq = (i, q + 1) if q < 3 else ((i + 1) & 3, 0)
            pi, pq = (i, q - 1) if q > 0 else ((i - 1) & 3, 3)
            M = [f'{MFMA} {vr(S[nb],16)}, {vr(KV[ni],4)}, {vr(Q[nq],4)}, 0',
                 f'{MFMA} {vr(S[nb],16)}, {vr(KV[ni]+4,4)}, {vr(Q[nq]+4,4)}, {vr(S[nb],16)}',
                 f'{MFMA} {vr(O[pq],16)}, {vr(KV[pi]+8,4)}, {vr(P[nb],4)}, {vr(O[pq],16)}',
                 f'{MFMA} {vr(O[pq],16)}, {vr(KV[pi]+12,4)}, {vr(P[nb]+4,4)}, {vr(O[pq],16)}']
            e = lambda r: f'v_exp_f32 v{S[cb]+r}, v{S[cb]+r}'
            c = lambda j: f'v_cvt_pk_bf16_f32 v{P[cb]+j}, v{S[cb]+2*j}, v{S[cb]+2*j+1}'
            if q == 3: a('s_waitcnt vmcnt(8)')
            seq = [M[0], e(0), e(1), e(2), c(0), e(3), e(4),
                   M[1], c(1), e(5), e(6), c(2), e(7), e(8),
                   M[2], c(3), e(9), e(10), c(4), e(11), e(12),
                   M[3], c(5), e(13), e(14), e(15), c(6), c(7)]
            extra = []
            if q == 1:
                b = (i + 3) & 3
                extra = ['s_cmp_lt_u32 s28, 16', 's_cselect_b32 s30, s27, 0x40000000'] + \
                        [f'buffer_load_dwordx4 {vr(KV[b]+4*j,4)}, v{voff}, s[12:15], s30 offen offset:{1024*j}' for j in range(4)] + \
                        ['s_add_u32 s27, s27, 4096', 's_add_u32 s28, s28, 1']
            if i == 3 and q == 3:
                extra = ['s_sub_u32 s29, s29, 1', 's_cmp_lg_u32 s29, 0']
            pos = 2
            for x in extra:
                seq.insert(pos, x); pos += 3
            for x in seq: a(x)
    a(f's_cbranch_scc1 {L}_loop')
    a(f'{MFMA} {vr(O[3],16)}, {vr(KV[3]+8,4)}, {vr(P[1],4)}, {vr(O[3],16)}')
    a(f'{MFMA} {vr(O[3],16)}, {vr(KV[3]+12,4)}, {vr(P[1]+4,4)}, {vr(O[3],16)}')
    for lq in range(1, 4):
        a(f"""
        s_add_u32 s26, s3, {lq}
        s_and_b32 s26, s26, 3
        s_mul_i32 s26, s26, 12288
        v_add_u32 v{t[lq]}, s26, v{voff}
        """)
        for j in range(4):
            a(f'ds_write_b128 v{t[lq]}, {vr(O[lq]+4*j,4)} offset:{(lq-1)*4096 + j*1024}')
    a(f"""
    s_mul_i32 s26, s3, 12288
    v_add_u32 v{t[0]}, s26, v{voff}
    s_waitcnt lgkmcnt(0)
    s_barrier
    """)
    for lq in range(1, 4):
        for j in range(4):
            a(f'ds_read_b128 {vr(O[lq]+4*j,4)}, v{t[0]} offset:{(lq-1)*4096 + j*1024}')
    a(f"""
    s_lshl_b32 s26, s21, 2
    s_add_u32 s26, s26, s3
    s_lshl_b32 s26, s26, 4
    s_add_u32 s26, s26, s20
    s_lshl_b32 s26, s26, 11
    s_add_u32 s26, s26, {WS_O}
    v_cmp_lt_u32 vcc, 31, v1
    """)
    for lq in range(1, 4):
        a(f's_waitcnt lgkmcnt({4*(3-lq)})')
        for r in range(16):
            a(f'v_add_f32 v{O[0]+r}, v{O[0]+r}, v{O[lq]+r}')
    a(f"""
    v_mov_b32 v{t[0]}, v{O[0]+12}
    v_mov_b32 v{t[1]}, v{O[0]+12}
    v_permlane32_swap_b32 v{t[0]}, v{t[1]}
    v_rcp_f32 v{t[1]}, v{t[1]}
    """)
    for r in range(16):
        a(f'v_mul_f32 v{O[0]+r}, v{O[0]+r}, v{t[1]}')
    for r in range(12, 16):
        a(f'v_cndmask_b32_e64 v{O[0]+r}, v{O[0]+r}, 0, vcc')
    for j in range(8):
        a(f'v_cvt_pk_bf16_f32 v{P[0]+j}, v{O[0]+2*j}, v{O[0]+2*j+1}')
    a(f'buffer_store_dwordx4 {vr(P[0],4)}, v{voff}, s[12:15], s26 offen')
    a(f'buffer_store_dwordx4 {vr(P[0]+4,4)}, v{voff}, s[12:15], s26 offen offset:1024')
    a.label(f'{L}_end')
    a('s_endpgm')
    return a, va.n, lds

def tile64_ids(a):
    a(f"""
    s_and_b32 s22, s2, 7
    s_lshr_b32 s23, s2, 3
    s_mul_i32 s24, s23, 9363
    s_lshr_b32 s24, s24, 16          ; j/7
    s_mul_i32 s25, s24, 7
    s_sub_u32 s21, s23, s25          ; cb
    s_lshl_b32 s20, s22, 2
    s_add_u32 s20, s20, s24          ; rb
    """)

def reduce4(a, ACC, voff, t):
    for l in range(1, 4):
        a(f"""
        s_xor_b32 s26, s3, {l}
        s_mul_i32 s26, s26, 12288
        v_add_u32 v{t[l]}, s26, v{voff}
        """)
        for j in range(4):
            a(f'ds_write_b128 v{t[l]}, {vr(ACC[l]+4*j,4)} offset:{(l-1)*4096 + j*1024}')
    a(f"""
    s_mul_i32 s26, s3, 12288
    v_add_u32 v{t[0]}, s26, v{voff}
    s_waitcnt lgkmcnt(0)
    s_barrier
    """)
    for l in range(1, 4):
        for j in range(4):
            a(f'ds_read_b128 {vr(ACC[l]+4*j,4)}, v{t[0]} offset:{(l-1)*4096 + j*1024}')
    for l in range(1, 4):
        a(f's_waitcnt lgkmcnt({4*(3-l)})')
        for r in range(16):
            a(f'v_add_f32 v{ACC[0]+r}, v{ACC[0]+r}, v{ACC[l]+r}')

def gen_k3():
    a = Asm(); L = 'K3'
    lds = 49152
    prologue(a, 224, L)
    va = VA(4, 256)
    ACC = [va(16) for _ in range(4)]
    OF = [[va(4) for k in range(8)] for lt in range(2)]
    WFr = [[va(4) for k in range(8)] for lc in range(2)]
    XR = va(8); voff = va(); vx = va(); t = [va() for _ in range(6)]
    tile64_ids(a)
    a(f"""
    v_lshlrev_b32 v{voff}, 4, v1
    s_and_b32 s27, s3, 1
    s_lshr_b32 s28, s3, 1
    s_lshl_b32 s22, s20, 1
    s_lshl_b32 s23, s21, 1
    v_and_b32 v{t[0]}, 31, v1
    v_lshrrev_b32 v{t[1]}, 5, v1
    v_mul_u32_u24 v{t[0]}, 896, v{t[0]}
    v_lshl_add_u32 v{vx}, v{t[1]}, 3, v{t[0]}
    s_waitcnt lgkmcnt(0)
    """)
    srd(a, 12, 50, WS_SIZE); srd(a, 4, 32, X_BYTES)
    for l in range(2):
        a(f"""
        s_xor_b32 s24, s27, {l}
        s_add_u32 s24, s24, s22
        s_lshl_b32 s24, s24, 2
        s_add_u32 s24, s24, s3
        s_lshl_b32 s24, s24, 13
        s_add_u32 s{52+l}, s24, {WS_O}
        s_xor_b32 s24, s28, {l}
        s_add_u32 s24, s24, s23
        s_lshl_b32 s24, s24, 2
        s_add_u32 s24, s24, s3
        s_lshl_b32 s24, s24, 13
        s_add_u32 s{54+l}, s24, {WS_WO}
        s_add_u32 s{56+l}, s{52+l}, 4096
        s_add_u32 s{58+l}, s{54+l}, 4096
        """)
    for k in range(8):
        for l in range(2):
            a(f'buffer_load_dwordx4 {vr(WFr[l][k],4)}, v{voff}, s[12:15], s{(54 if k < 4 else 58)+l} offen offset:{1024*(k&3)}')
            a(f'buffer_load_dwordx4 {vr(OF[l][k],4)}, v{voff}, s[12:15], s{(52 if k < 4 else 56)+l} offen offset:{1024*(k&3)}')
    a(f"""
    s_add_u32 s30, s22, s27          ; tt
    s_add_u32 s31, s23, s28          ; ct
    s_mul_i32 s24, s30, {32*896}
    s_lshl_b32 s25, s31, 6
    s_add_u32 s24, s24, s25
    """)
    for q in range(4):
        a(f'buffer_load_dwordx2 {vr(XR+2*q,2)}, v{vx}, s[4:7], s24 offen offset:{16*q}')
    for k in range(8):
        a(f's_waitcnt vmcnt({4*(7-k)+4})')
        for l in range(4):
            lt = l & 1; lc = l >> 1
            a(f'{MFMA} {vr(ACC[l],16)}, {vr(WFr[lc][k],4)}, {vr(OF[lt][k],4)}, {vr(ACC[l],16) if k else 0}')
    reduce4(a, ACC, voff, t)
    A0 = ACC[0]; B = ACC[1]; PK = ACC[2]
    a('s_waitcnt vmcnt(0)')
    for j in range(8):
        a(f'v_cvt_pk_bf16_f32 v{PK+j}, v{A0+2*j}, v{A0+2*j+1}')
    for j in range(8):
        a(f'v_lshlrev_b32 v{A0+2*j}, 16, v{PK+j}')
        a(f'v_and_b32 v{A0+2*j+1}, 0xffff0000, v{PK+j}')
        a(f'v_lshlrev_b32 v{B+2*j}, 16, v{XR+j}')
        a(f'v_and_b32 v{B+2*j+1}, 0xffff0000, v{XR+j}')
    for r in range(16):
        a(f'v_add_f32 v{A0+r}, v{A0+r}, v{B+r}')
    for j in range(8):
        a(f'v_cvt_pk_bf16_f32 v{PK+j}, v{A0+2*j}, v{A0+2*j+1}')
    a(f"""
    s_mul_i32 s24, s30, 14
    s_add_u32 s24, s24, s31
    s_lshl_b32 s25, s24, 11
    s_add_u32 s25, s25, {WS_H}
    s_lshl_b32 s24, s24, 8
    s_add_u32 s24, s24, {WS_ST}
    buffer_store_dwordx4 {vr(PK,4)}, v{voff}, s[12:15], s25 offen
    buffer_store_dwordx4 {vr(PK+4,4)}, v{voff}, s[12:15], s25 offen offset:1024
    """)
    for j in range(8):
        a(f'v_lshlrev_b32 v{A0+2*j}, 16, v{PK+j}')
        a(f'v_and_b32 v{A0+2*j+1}, 0xffff0000, v{PK+j}')
    a(f'v_add_f32 v{t[0]}, v{A0}, v{A0+1}')
    a(f'v_add_f32 v{t[1]}, v{A0+2}, v{A0+3}')
    for r in range(4, 16):
        a(f'v_add_f32 v{t[r&1]}, v{t[r&1]}, v{A0+r}')
    a(f'v_add_f32 v{t[0]}, v{t[0]}, v{t[1]}')
    halfsum(a, t[0], t[1])
    a(f'v_mul_f32 v{t[2]}, {hex(f2u(1/32))}, v{t[0]}')
    for r in range(16):
        a(f'v_sub_f32 v{A0+r}, v{A0+r}, v{t[2]}')
    a(f'v_mul_f32 v{t[1]}, v{A0}, v{A0}')
    a(f'v_mul_f32 v{t[3]}, v{A0+1}, v{A0+1}')
    for r in range(2, 16):
        a(f'v_fmac_f32 v{t[1 + 2*(r&1)]}, v{A0+r}, v{A0+r}')
    a(f'v_add_f32 v{t[1]}, v{t[1]}, v{t[3]}')
    halfsum(a, t[1], t[3])
    a(f"""
    v_cmp_lt_u32 vcc, 31, v1
    v_lshlrev_b32 v{t[2]}, 2, v1
    v_cndmask_b32 v{t[0]}, v{t[0]}, v{t[1]}, vcc
    buffer_store_dword v{t[0]}, v{t[2]}, s[12:15], s24 offen
    """)
    a.label(f'{L}_end')
    a('s_endpgm')
    return a, va.n, lds

def gen_k4():
    a = Asm(); L = 'K4'
    SLOT = 28672; NSLOT = 5
    lds = SLOT * NSLOT
    prologue(a, 256, L)
    va = VA(4, 256)
    X = [va(4) for _ in range(28)]
    ACC = [va(16), va(16)]
    NW = 4
    W = [va(4) for _ in range(NW)]
    ST = va(16, 2)
    HP = va(4)
    voff = va(); vl = [va() for _ in range(3)]
    t = [va(2) for _ in range(4)]
    mu = va(2);
    E = [va() for _ in range(8)]
    a(f"""
    s_and_b32 s22, s2, 7
    s_lshr_b32 s23, s2, 3
    s_and_b32 s20, s22, 1
    s_lshl_b32 s20, s20, 3
    s_and_b32 s24, s23, 7
    s_add_u32 s20, s20, s24          ; tb
    s_lshr_b32 s21, s22, 1
    s_lshl_b32 s21, s21, 2
    s_lshr_b32 s24, s23, 3
    s_add_u32 s21, s21, s24          ; fs
    v_lshlrev_b32 v{voff}, 4, v1
    s_lshl_b32 s22, s20, 2
    s_add_u32 s22, s22, s3
    s_mul_i32 s23, s22, {28*1024}
    s_add_u32 s23, s23, {WS_H}
    s_mul_i32 s24, s22, {14*256}
    s_add_u32 s24, s24, {WS_ST}
    s_mul_i32 s25, s21, {7*28*1024}
    s_mul_i32 s26, s3, {7*1024}
    s_add_u32 s25, s25, s26
    s_add_u32 s25, s25, {WS_W13}
    v_and_b32 v{t[0]}, 31, v1
    v_lshrrev_b32 v{t[1]}, 5, v1
    v_mul_u32_u24 v{t[1]}, {7*256}, v{t[1]}
    v_lshl_add_u32 v{t[0]}, v{t[0]}, 2, v{t[1]}
    s_waitcnt lgkmcnt(0)
    """)
    srd(a, 12, 50, WS_SIZE)
    cnt = [0]
    for c in range(7):
        a(f'buffer_load_dword v{ST+2*c}, v{t[0]}, s[12:15], s24 offen offset:{256*c}')
        a(f'buffer_load_dword v{ST+2*c+1}, v{t[0]}, s[12:15], s24 offen offset:{256*c+128}')
    def dmaW(j):
        sl = (j % NSLOT) * SLOT
        for i in range(7):
            if i % 4 == 0:
                a(f's_add_u32 m0, s26, {sl + i*1024}')
                a(f's_add_u32 s30, s25, {j*SLOT + i*1024}')
            a(f'buffer_load_dwordx4 v{voff}, s[12:15], s30 offen offset:{1024*(i&3)} lds')
    dmaW(0)
    for k in range(28):
        if k % 4 == 0: a(f's_add_u32 s30, s23, {k*1024}')
        a(f'buffer_load_dwordx4 {vr(X[k],4)}, v{voff}, s[12:15], s30 offen offset:{1024*(k&3)}')
    dmaW(1); dmaW(2)
    a(f"""
    v_add_u32 v{vl[1]}, {2*SLOT}, v{voff}
    v_add_u32 v{vl[2]}, {4*SLOT}, v{voff}
    s_waitcnt vmcnt(49)
    """)
    a(f'v_add_f32 v{t[0]}, v{ST}, v{ST+2}')
    for c in range(2, 7): a(f'v_add_f32 v{t[0]}, v{t[0]}, v{ST+2*c}')
    halfsum(a, t[0], t[1])
    a(f'v_mul_f32 v{t[0]}, {hex(f2u(1/448))}, v{t[0]}')
    a(f'v_add_f32 v{t[1]}, v{ST+1}, v{ST+3}')
    for c in range(2, 7): a(f'v_add_f32 v{t[1]}, v{t[1]}, v{ST+2*c+1}')
    a(f's_mov_b32 s31, {hex(f2u(1/32))}')
    for c in range(7): a(f'v_fma_f32 v{ST+2*c}, v{ST+2*c}, s31, -v{t[0]}')
    a(f'v_mul_f32 v{t[2]}, v{ST}, v{ST}')
    for c in range(1, 7): a(f'v_fmac_f32 v{t[2]}, v{ST+2*c}, v{ST+2*c}')
    a(f'v_fmac_f32 v{t[1]}, {hex(f2u(32.0))}, v{t[2]}')
    halfsum(a, t[1], t[2])
    a(f"""
    v_mov_b32 v{t[2]}, {hex(f2u(1e-5))}
    v_fmac_f32 v{t[2]}, {hex(f2u(1/448))}, v{t[1]}
    v_rsq_f32 v{mu}, v{t[2]}
    v_mul_f32 v{mu+1}, v{t[0]}, v{mu}
    v_sub_f32 v{mu+1}, 0, v{mu+1}
    """)
    def norm(k):
        out = []
        for i in range(4):
            tt = t[i]
            out += [f'v_lshlrev_b32 v{tt}, 16, v{X[k]+i}', f'v_and_b32 v{tt+1}, 0xffff0000, v{X[k]+i}']
        for i in range(4):
            tt = t[i]
            out += [f'v_pk_fma_f32 {vr(tt,2)}, {vr(tt,2)}, {vr(mu,2)}, {vr(mu,2)} op_sel:[0,0,1] op_sel_hi:[1,0,1]']
        for i in range(4):
            tt = t[i]
            out += [f'v_cvt_pk_bf16_f32 v{X[k]+i}, v{tt}, v{tt+1}']
        return out
    def rdW(j, k):
        sl = (j % NSLOT)
        base = voff if sl < 2 else vl[sl // 2]
        return f'ds_read_b128 {vr(W[(j*28+k) % NW],4)}, v{base} offset:{(sl & 1)*SLOT + k*1024}'
    def epi(j):
        A = ACC[j & 1]
        out = []
        for r in range(8): out.append(f'v_mul_f32 v{E[r]}, {hex(f2u(-math.log2(math.e)))}, v{A+r}')
        for r in range(8): out.append(f'v_exp_f32 v{E[r]}, v{E[r]}')
        for r in range(8): out.append(f'v_mul_f32 v{A+r}, v{A+r}, v{A+8+r}')
        for r in range(8): out.append(f'v_add_f32 v{E[r]}, 1.0, v{E[r]}')
        for r in range(8): out.append(f'v_rcp_f32 v{E[r]}, v{E[r]}')
        for r in range(8): out.append(f'v_mul_f32 v{A+r}, v{A+r}, v{E[r]}')
        for i in range(4): out.append(f'v_cvt_pk_bf16_f32 v{HP+i}, v{A+2*i}, v{A+2*i+1}')
        out.append(f'buffer_store_dwordx4 {vr(HP,4)}, v{voff}, s[12:15], s27 offen offset:{1024*(j&3)}')
        if j == 3: out.append(f's_add_u32 s27, s27, 4096')
        return out
    a(f"""
    s_mul_i32 s27, s22, 112
    s_mul_i32 s28, s21, 7
    s_add_u32 s27, s27, s28
    s_lshl_b32 s27, s27, 10
    s_add_u32 s27, s27, {WS_HH}
    """)
    order = ['ST']*14 + ['W0']*7 + [f'X{k}' for k in range(28)] + ['W1']*7 + ['W2']*7
    def waitfor(tag):
        last = max(i for i, x in enumerate(order) if x == tag)
        return min(63, len(order) - 1 - last)
    AH = NW - 1
    a(f's_waitcnt vmcnt({waitfor("W0")})')
    a('s_barrier')
    seqW = [(j, k) for j in range(7) for k in range(28)]
    for n in range(AH): a(rdW(*seqW[n]))
    a(f's_waitcnt vmcnt({waitfor("X0")})')
    for x in norm(0): a(x)
    pend = []
    for n, (j, k) in enumerate(seqW):
        fill = []
        if j == 0 and k + 1 < 28:
            fill = [f's_waitcnt vmcnt({waitfor(f"X{k+1}")})'] + norm(k + 1)
        nn = n + AH
        if nn < len(seqW):
            j2, k2 = seqW[nn]
            if k2 == 0:
                a(f's_waitcnt vmcnt({waitfor(f"W{j2}")})')
                a('s_barrier')
                if j2 + 2 <= 6:
                    dmaW(j2 + 2); order.extend([f'W{j2+2}'] * 7)
            a(rdW(j2, k2))
            a(f's_waitcnt lgkmcnt({AH})')
        else:
            a(f's_waitcnt lgkmcnt({len(seqW) - 1 - n})')
        A = ACC[j & 1]
        a(f'{MFMA} {vr(A,16)}, {vr(W[n % NW],4)}, {vr(X[k],4)}, {vr(A,16) if k else 0}')
        if j > 0:
            if k == 1: pend = epi(j - 1)
            take = 3 if k >= 1 else 0
            fill = pend[:take]; pend = pend[take:]
            for x in fill:
                if x.startswith('buffer_store'): order.append('S')
        for x in fill: a(x)
        if k == 27: assert not pend
    for x in epi(6): a(x)
    a.label(f'{L}_end')
    a('s_endpgm')
    return a, va.n, lds

def gen_k5():
    a = Asm(); L = 'K5'
    lds = 49152
    prologue(a, 224, L)
    va = VA(4, 256)
    ACC = [va(16) for _ in range(4)]
    D = 9
    BUF = [[va(4) for i in range(4)] for d in range(D)]
    HR = va(8); voff = va(); vo = va(); t = [va() for _ in range(6)]
    tile64_ids(a)
    a(f"""
    v_lshlrev_b32 v{voff}, 4, v1
    s_and_b32 s27, s3, 1
    s_lshr_b32 s28, s3, 1
    s_lshl_b32 s22, s20, 1
    s_lshl_b32 s23, s21, 1
    v_and_b32 v{t[0]}, 31, v1
    v_lshrrev_b32 v{t[1]}, 5, v1
    v_mul_u32_u24 v{t[0]}, 896, v{t[0]}
    v_lshl_add_u32 v{vo}, v{t[1]}, 4, v{t[0]}
    s_mul_i32 s29, s3, {28*1024}
    s_waitcnt lgkmcnt(0)
    """)
    srd(a, 12, 50, WS_SIZE); srd(a, 4, 46, X_BYTES)
    for l in range(2):
        a(f"""
        s_xor_b32 s24, s28, {l}
        s_add_u32 s24, s24, s23
        s_mul_i32 s24, s24, {112*1024}
        s_add_u32 s24, s24, s29
        s_add_u32 s{52+l}, s24, {WS_W2}
        s_xor_b32 s24, s27, {l}
        s_add_u32 s24, s24, s22
        s_mul_i32 s24, s24, {112*1024}
        s_add_u32 s24, s24, s29
        s_add_u32 s{54+l}, s24, {WS_HH}
        """)
    a(f"""
    s_add_u32 s30, s22, s27          ; tt
    s_add_u32 s31, s23, s28          ; ct
    s_mul_i32 s24, s30, 14
    s_add_u32 s24, s24, s31
    s_lshl_b32 s24, s24, 11
    s_add_u32 s24, s24, {WS_H}
    buffer_load_dwordx4 {vr(HR,4)}, v{voff}, s[12:15], s24 offen
    buffer_load_dwordx4 {vr(HR+4,4)}, v{voff}, s[12:15], s24 offen offset:1024
    """)
    def ld(k):
        for i in range(4):
            a(f'buffer_load_dwordx4 {vr(BUF[k % D][i],4)}, v{voff}, s[12:15], s{52+i} offen offset:{1024*(k&3)}')
        if k & 3 == 3:
            for i in range(4): a(f's_add_u32 s{52+i}, s{52+i}, 4096')
    for k in range(D): ld(k)
    for k in range(28):
        inflight = min(27, k + D - 1) - k
        a(f's_waitcnt vmcnt({4*inflight})')
        b = BUF[k % D]
        for l in range(4):
            lt = l & 1; lc = l >> 1
            a(f'{MFMA} {vr(ACC[l],16)}, {vr(b[lc],4)}, {vr(b[2+lt],4)}, {vr(ACC[l],16) if k else 0}')
        if k + D < 28: ld(k + D)
    reduce4(a, ACC, voff, t)
    A0 = ACC[0]; B = ACC[1]; PK = ACC[2]
    for j in range(8):
        a(f'v_cvt_pk_bf16_f32 v{PK+j}, v{A0+2*j}, v{A0+2*j+1}')
    for j in range(8):
        a(f'v_lshlrev_b32 v{A0+2*j}, 16, v{PK+j}')
        a(f'v_and_b32 v{A0+2*j+1}, 0xffff0000, v{PK+j}')
        a(f'v_lshlrev_b32 v{B+2*j}, 16, v{HR+j}')
        a(f'v_and_b32 v{B+2*j+1}, 0xffff0000, v{HR+j}')
    for r in range(16):
        a(f'v_add_f32 v{A0+r}, v{A0+r}, v{B+r}')
    for j in range(8):
        a(f'v_cvt_pk_bf16_f32 v{PK+j}, v{A0+2*j}, v{A0+2*j+1}')
    for g in (0, 4):
        a(f'v_permlane32_swap_b32 v{PK+g}, v{PK+g+2}')
        a(f'v_permlane32_swap_b32 v{PK+g+1}, v{PK+g+3}')
    a(f"""
    s_mul_i32 s24, s30, {32*896}
    s_lshl_b32 s25, s31, 6
    s_add_u32 s24, s24, s25
    buffer_store_dwordx4 {vr(PK,4)}, v{vo}, s[4:7], s24 offen
    buffer_store_dwordx4 {vr(PK+4,4)}, v{vo}, s[4:7], s24 offen offset:32
    """)
    a.label(f'{L}_end')
    a('s_endpgm')
    return a, va.n, lds

def kernel_text(name, a, nv, acc=0):
    a.finalize()
    accum = (nv + 3) // 4 * 4
    tot = accum + acc if acc else nv
    s = f'.globl {name}\n.p2align 8\n.type {name},@function\n{name}:\n' + a.text()
    kd = f'''.p2align 6
.amdhsa_kernel {name}
  .amdhsa_next_free_vgpr {tot}
  .amdhsa_next_free_sgpr 96
  .amdhsa_accum_offset {accum}
  .amdhsa_group_segment_fixed_size 0
  .amdhsa_kernarg_size 80
  .amdhsa_user_sgpr_count 2
  .amdhsa_user_sgpr_kernarg_segment_ptr 1
  .amdhsa_system_sgpr_workgroup_id_x 1
.end_amdhsa_kernel
'''
    return s, kd

HEAD = open('sequential_preLN__mha_block__glu_gated_swiglu__prompt.s.ref').read().split('; Override')[0]

def build(kernels):
    launch = ''; text = ''; kds = ''
    seen = set()
    for name, grid, g in kernels:
        r = g()
        a, nv, lds = r[:3]
        acc = r[3] if len(r) > 3 else 0
        launch += f'; @launch kernel={name} grid=({grid},1,1) block=(256,1,1) lds={lds}\n'
        if name in seen: continue
        seen.add(name)
        s, kd = kernel_text(name, a, nv, acc)
        text += s; kds += kd
        print(f'{name}: vgpr={nv} acc={acc} lds={lds} instrs={len(a.ins)} nop_states={a.nops}', file=sys.stderr)
    return HEAD + launch + '.amdgcn_target "amdgcn-amd-amdhsa--gfx950"\n.text\n' + text + '.section .rodata,"a"\n' + kds

if __name__ == '__main__':
    ks = [('k1_qkv_kernel', 256, gen_k1), ('k2_attn_kernel', 256, gen_k2), ('k3_wo_kernel', 224, gen_k3), ('k4_gu_kernel', 256, gen_k4), ('k5_down_kernel', 224, gen_k5)]
    open(sys.argv[1], 'w').write(build(ks))
```

```python
import gen as G
from asmgen import Asm
def gen_empty():
    a = Asm(); a('s_endpgm'); return a, 8, 0
base = [('k1_qkv_kernel', 256, G.gen_k1), ('k2_attn_kernel', 256, G.gen_k2), ('k3_wo_kernel', 224, G.gen_k3), ('k4_gu_kernel', 256, G.gen_k4), ('k5_down_kernel', 224, G.gen_k5)]
E = ('empty_kernel', 256, gen_empty)
V = {
 'vA': base,
 'vB': base + [E],
 'vC': base + [E]*5,
 'vD': [base[0], base[0]] + base[1:],
 'vE': base[:2] + [base[1]] + base[2:],
 'vF': base[:4] + [base[3]] + base[4:],
}
for k, v in V.items():
    open(f'dev/{k}.s', 'w').write(G.build(v))
```

```python
import sys, struct, math, os
from asmgen import Asm

NAME = 'sequential_preLN__mha_block__glu_gated_swiglu__prompt_kernel'
MB = 1 << 20
WS_KV  = 0
WS_O   = 4 * MB
WS_H   = 6 * MB
WS_ST  = 8 * MB
WS_HH  = 9 * MB
WS_FLG = 16 * MB
FL_A = WS_FLG + 0x10000
FL_B = FL_A + 1024 * 128
FL_C = FL_B + 1024 * 128
FL_D1 = FL_C + 1024 * 128
FL_D2 = FL_D1 + 1024 * 128
WS_DBG = 17 * MB
WS_SIZE = 18 * MB

X_BYTES = 2048 * 448 * 2
WQKV_BYTES = 448 * 1344 * 2
WO_BYTES = 448 * 448 * 2
W1_BYTES = 448 * 1792 * 2
W2_BYTES = 1792 * 448 * 2
LDS_BYTES = 163840
MFMA = 'v_mfma_f32_32x32x16_bf16'
STAMP = int(os.environ.get('STAMP', '0'))
OPT = dict(kv.split('=') for kv in os.environ.get('OPT', '').split(',') if kv)
def opt(k, d): return int(OPT.get(k, d))

def f2u(x): return struct.unpack('<I', struct.pack('<f', x))[0]
def fx(x): return hex(f2u(x))
def vr(b, n=1, p='v'): return f'{p}[{b}:{b+n-1}]' if n > 1 else f'{p}{b}'
def sr4(b): return f's[{b}:{b+3}]'

class VA:
    def __init__(self, start, limit): self.n = start; self.limit = limit
    def __call__(self, cnt=1, align=None):
        if align is None: align = 1 if cnt == 1 else (2 if cnt == 2 else 4)
        self.n = (self.n + align - 1) // align * align
        b = self.n; self.n += cnt
        assert self.n <= self.limit, f'out of registers {self.n} > {self.limit}'
        return b

class K(Asm):
    def __init__(self):
        super().__init__(); self.vm = []; self.nst = 0; self.nlab = 0; self.names = []
    def vmem(self, text, tag):
        self(text); self.vm.append(tag)
    def vmwait(self, *tags, lgkm=None):
        idx = [i for i, t in enumerate(self.vm) if t in tags]
        s = ''
        if idx:
            n = len(self.vm) - 1 - max(idx)
            s += f' vmcnt({min(n, 63)})'
            self.vm = self.vm[len(self.vm) - n:] if n else []
        if lgkm is not None: s += f' lgkmcnt({lgkm})'
        if s: self('s_waitcnt' + s)
    def vmall(self):
        self('s_waitcnt vmcnt(0)'); self.vm = []
    def emit(self, x):
        if isinstance(x, tuple):
            if x[0] == 'vm': self.vmem(x[1], x[2])
            elif x[0] == 'wait': self.vmwait(*x[1:])
            elif x[0] == 'call': x[1]()
        else: self(x)
    def stamp(self, name='', real=False):
        if not STAMP: return
        if name and name[0] in 'ABCDEFG' and name[0] not in os.environ.get('STAMPSET', 'AB'): return
        if name in self.names:
            i = self.names.index(name)
        else:
            i = self.nst; self.nst += 1; self.names.append(name)
        assert i < 19
        self(f's_mem{"real" if real else ""}time s[{60+2*i}:{61+2*i}]')
    def newlabel(self, p):
        self.nlab += 1; return f'L{p}{self.nlab}'

S_W = 3
SRD_X = 4; SRD_WQKV = 8; SRD_WS = 12; SRD_A = 16; SRD_B = 20
P_X, P_WQKV, P_WO, P_W1, P_W3, P_W2, P_OUT, P_WS = 32, 34, 36, 40, 42, 44, 46, 50
S_TAG = 24; S_H = 25; S_TB = 26; S_RB = 27; S_CB = 28; S_TD = 29; S_FS = 30; S_J = 31
S_E0 = 38; S_L0 = 39
S_U0 = 48; S_U1 = 49
S_ONES = 52
T0, T1, T2, T3, T4, T5, T6 = 53, 54, 55, 56, 57, 58, 59
S_SPIN = 98
S_ROT = 39
S_DUM = 100
V_LANE = 1; V_OFF = 2; V_FL = 3
V_SRC = 212; V_P13 = 213; V_RD = 214
HKEEP = 216
WOV = 224
PAIR = 57344; SCR = 2 * PAIR; SINGLE = SCR + 16384
RAW5 = 196

def xm(n):
    if n >= 64: return 's_mov_b64 exec, -1'
    if n < 31: return f's_mov_b64 exec, {hex((1 << n) - 1)}'
    lo = '-1' if n >= 32 else hex((1 << n) - 1)
    return f's_mov_b32 exec_lo, {lo}\ns_mov_b32 exec_hi, {hex((1 << max(0, n - 32)) - 1)}'

def srd(a, d, p, nbytes):
    a(f's_mov_b32 s{d}, s{p}\ns_mov_b32 s{d+1}, s{p+1}\ns_mov_b32 s{d+2}, {nbytes}\ns_mov_b32 s{d+3}, 0x20000')

def halfsum(a, x, t):
    a(f'v_mov_b32 v{t}, v{x}\nv_permlane32_swap_b32 v{x}, v{t}\nv_add_f32 v{x}, v{x}, v{t}')

def flag_store(a, sreg, vt):
    a(f'v_mov_b32 v{vt}, s{S_TAG}\ns_mov_b64 exec, 1')
    a.vmem(f'buffer_store_dword v{vt}, v{V_OFF}, {sr4(SRD_WS)}, s{sreg} offen sc1', 'flag')
    a('s_mov_b64 exec, -1')

def poll_issue(a, sreg, vaddr, nl, vt):
    a(xm(nl))
    a.vmem(f'buffer_load_dword v{vt}, v{vaddr}, {sr4(SRD_WS)}, s{sreg} offen sc1', 'poll')
    a('s_mov_b64 exec, -1')

def poll_check(a, sreg, vaddr, nl, vt):
    L = a.newlabel('poll'); D = L + 'd'
    a(xm(nl) + f'\ns_mov_b32 s{S_SPIN}, 0x40000')
    a.vmwait('poll')
    a(f'v_cmp_ne_u32 vcc, s{S_TAG}, v{vt}\ns_cbranch_vccz {D}')
    a.label(L)
    a(f'''
    s_sleep {opt('sleep', 2)}
    buffer_load_dword v{vt}, v{vaddr}, {sr4(SRD_WS)}, s{sreg} offen sc1
    s_sub_u32 s{S_SPIN}, s{S_SPIN}, 1
    s_waitcnt vmcnt(0)
    s_cbranch_scc1 {D}
    v_cmp_ne_u32 vcc, s{S_TAG}, v{vt}
    s_cbranch_vccnz {L}
    ''')
    a.label(D)
    a('s_mov_b64 exec, -1')

def phase_a(a, R):
    NSLOT = 5
    WR = 81920
    WQ = WR + NSLOT * 8192
    CSP = WQ + 28672
    PRV = CSP + 1536
    QX = 155648
    assert PRV + 2048 <= QX
    R['QX'] = QX
    Q0 = R['Q'][0]
    va = VA(4, 256)
    ACC = [va(16), va(16)]; accQ = va(16)
    PK = va(8); assert PK == Q0, (PK, Q0)
    X = [va(4) for _ in range(28)]
    NWF = 4
    WF = [[va(4) for j in range(2)] for b in range(NWF)]
    vx = [va(), va()]; vw = [va(), va()]; vq = va()
    ax = [va() for _ in range(4)]; aw = [va() for _ in range(4)]; ab = [va() for _ in range(4)]
    sm = [va(), va()]; sq = [va(), va()]; cs = [va(), va(), va()]
    t = [va() for _ in range(8)]
    hf = va(); n31 = va(); dB = va()
    assert va.n <= 240, va.n
    T16 = 240; U16 = accQ
    a(f'v_lshrrev_b32 v{hf}, 5, v{V_LANE}\nv_and_b32 v{n31}, 31, v{V_LANE}')
    for i in range(2):
        a(f'''
        v_lshrrev_b32 v{t[0]}, 3, v{V_LANE}
        v_add_u32 v{t[0]}, {8*i}, v{t[0]}
        v_lshrrev_b32 v{t[1]}, 1, v{t[0]}
        v_and_b32 v{t[1]}, 7, v{t[1]}
        v_and_b32 v{t[2]}, 7, v{V_LANE}
        v_xor_b32 v{t[1]}, v{t[1]}, v{t[2]}
        v_lshlrev_b32 v{t[1]}, 4, v{t[1]}
        v_mul_u32_u24 v{t[0]}, 896, v{t[0]}
        v_add_u32 v{vx[i]}, v{t[0]}, v{t[1]}
        ''')
    a(f'''
    v_subrev_u32 v{vx[1]}, 1024, v{vx[1]}
    v_lshrrev_b32 v{t[0]}, 3, v{V_LANE}
    v_lshrrev_b32 v{t[1]}, 2, v{V_LANE}
    v_and_b32 v{t[1]}, 4, v{t[1]}
    v_xor_b32 v{t[1]}, v{t[1]}, v{t[2]}
    v_min_u32 v{t[1]}, 6, v{t[1]}
    v_mul_u32_u24 v{t[0]}, 2688, v{t[0]}
    v_lshl_add_u32 v{vw[0]}, v{t[1]}, 4, v{t[0]}
    v_add_u32 v{vw[1]}, {8*2688 - 1024}, v{vw[0]}
    s_waitcnt lgkmcnt(0)
    ''')
    srd(a, SRD_X, P_X, X_BYTES); srd(a, SRD_WQKV, P_WQKV, WQKV_BYTES)
    SX, SW, LX, LW = T3, T4, T5, T6
    a(f'''
    s_lshl_b32 s{SX}, s{S_TB}, 2
    s_add_u32 s{SX}, s{SX}, s{S_W}
    s_mul_i32 s{SX}, s{SX}, {32*896}
    s_mul_i32 s{SW}, s{S_W}, {16*2688}
    s_lshr_b32 s{T0}, s{S_H}, 1
    s_mul_i32 s{T0}, s{T0}, 112
    s_add_u32 s{SW}, s{SW}, s{T0}
    s_and_b32 s{T0}, s{S_H}, 1
    s_mul_i32 s{T0}, s{T0}, 896
    s_add_u32 s{SW}, s{SW}, s{T0}
    s_add_u32 s{SW}, s{SW}, 896
    s_mul_i32 s{LX}, s{S_W}, 20480
    s_lshl_b32 s{LW}, s{S_W}, 11
    s_add_u32 s{LW}, s{LW}, {WR}
    ''')
    def dma_items(c):
        sl = c % NSLOT
        out = []
        for i in range(2):
            out.append(([f's_add_u32 m0, s{LW}, {sl*8192}', f's_mul_i32 s{T0}, s{S_ROT}, {64*2688}', f's_add_u32 s{T0}, s{T0}, s{SW}'] if i == 0 else []) +
                       [('vm', f'buffer_load_dwordx4 v{vw[i]}, {sr4(SRD_WQKV)}, s{T0} offen offset:{1024*i} lds', f'c{c}')])
        for i in range(4):
            out.append(([f's_add_u32 m0, s{LX}, {sl*4096}'] if i == 0 else []) +
                       ([f's_lshl_b32 s{T0}, s{S_ROT}, 7', f's_add_u32 s{T0}, s{T0}, s{SX}'] if i == 0 else []) +
                       ([f's_add_u32 s{T0}, s{T0}, 12288'] if i == 2 else []) +
                       [('vm', f'buffer_load_dwordx4 v{vx[i&1]}, {sr4(SRD_X)}, s{T0} offen offset:{1024*i} lds', f'c{c}')] +
                       ([f's_add_u32 s{S_ROT}, s{S_ROT}, 1', f's_cmp_eq_u32 s{S_ROT}, 7', f's_cselect_b32 s{S_ROT}, 0, s{S_ROT}'] if i == 3 else []))
        return out
    def dma(c):
        for it in dma_items(c):
            for x in it: a.emit(x)
    a.stamp('G_karg')
    NPRE = opt('npre', 2)
    a(f's_mov_b32 s{S_ROT}, ' + (f's{S_CB}' if opt('rot', 1) else '0'))
    for c in range(NPRE): dma(c)
    if opt('touchA', 0):
        HBv = opt('hb', 3); nl = {1: 2, 2: 3, 3: 4, 4: 7}[HBv]; ntok = 4096 >> HBv >> 0
        ntok = (32 >> HBv) * 128
        rows_x = ntok // 128
        a(f'''
        s_lshl_b32 s{T1}, s{S_J}, 2
        s_add_u32 s{T1}, s{T1}, s{S_W}
        s_lshr_b32 s{T2}, s{S_TB}, {5 - HBv}
        s_mul_i32 s{T2}, s{T2}, {ntok * 896}
        s_mul_i32 s{T0}, s{T1}, {rows_x * 896}
        s_add_u32 s{T0}, s{T0}, s{T2}
        ''')
        nx = rows_x * 7
        for i in range(0, nx, 64):
            a(xm(nx - i))
            a.vmem(f'buffer_load_dword a{1 + i // 64}, v{V_FL}, {sr4(SRD_X)}, s{T0} offen', 'touch')
            a(f's_add_u32 s{T0}, s{T0}, 8192')
        per = 4 * 3 * nl
        a(f'''
        s_mov_b64 exec, -1
        v_mul_u32_u24 v{t[3]}, {(65536 + nl - 1) // nl}, v{V_LANE}
        v_lshrrev_b32 v{t[3]}, 16, v{t[3]}
        v_mul_u32_u24 v{t[4]}, {nl}, v{t[3]}
        v_sub_u32 v{t[4]}, v{V_LANE}, v{t[4]}
        v_mul_u32_u24 v{t[3]}, 896, v{t[3]}
        v_lshl_add_u32 v{t[3]}, v{t[4]}, 7, v{t[3]}
        s_mul_i32 s{T0}, s{T1}, {4 * 2688}
        s_lshr_b32 s{T2}, s{S_H}, {HBv}
        s_mul_i32 s{T2}, s{T2}, {56 << HBv}
        s_and_b32 s{T2}, s{T2}, 0xffffff80
        s_add_u32 s{T0}, s{T0}, s{T2}
        {xm(per)}
        ''')
        a.vmem(f'buffer_load_dword a3, v{t[3]}, {sr4(SRD_WQKV)}, s{T0} offen', 'touch')
        a('s_mov_b64 exec, -1')
    a.stamp('G_dma0')
    assert T1 % 2 == 0 and T2 == T1 + 1
    a(f's_add_u32 s{T1}, s{P_WS}, {WS_FLG}\ns_addc_u32 s{T2}, s{P_WS+1}, 0\ns_load_dword s{S_TAG}, s[{T1}:{T2}], 0')
    srd(a, SRD_WS, P_WS, WS_SIZE)
    def touch_item():
        TA, TB, TC = T1, T2, T0
        return [f's_lshl_b32 s{TA}, s2, 2', f's_add_u32 s{TA}, s{TA}, s{S_W}', f's_mul_i32 s{TB}, s{TA}, 1338', f's_lshr_b32 s{TB}, s{TB}, 18',
                f's_mul_i32 s{TC}, s{TB}, 196', f's_sub_u32 s{TA}, s{TA}, s{TC}', f's_lshl_b32 s{TA}, s{TA}, 13',
                f's_cmp_eq_u32 s{TB}, 1', f's_cselect_b32 s{SRD_A}, s{P_W3}, s{P_W1}', f's_cselect_b32 s{SRD_A+1}, s{P_W3+1}, s{P_W1+1}',
                f's_cmp_eq_u32 s{TB}, 2', f's_cselect_b32 s{SRD_A}, s{P_W2}, s{SRD_A}', f's_cselect_b32 s{SRD_A+1}, s{P_W2+1}, s{SRD_A+1}',
                f's_mov_b32 s{SRD_A+2}, {W1_BYTES}',
                f's_cmp_eq_u32 s{TB}, 3', f's_cselect_b32 s{SRD_A}, s{P_WO}, s{SRD_A}', f's_cselect_b32 s{SRD_A+1}, s{P_WO+1}, s{SRD_A+1}',
                f's_cselect_b32 s{SRD_A+2}, {WO_BYTES}, s{SRD_A+2}',
                f's_cmp_gt_u32 s{TB}, 3', f's_cselect_b32 s{SRD_A+2}, 0, s{SRD_A+2}', f's_mov_b32 s{SRD_A+3}, 0x20000',
                ('vm', f'buffer_load_dword a0, v{V_FL}, {sr4(SRD_A)}, s{TA} offen', 'touch')]
    def dmaq_items():
        out = []
        for i in range(7):
            out.append([] +
                       [f's_add_u32 m0, s{S_U0}, {i*1024}', f's_mul_i32 s{T0}, s{S_U1}, {16*2688}', f's_add_u32 s{T0}, s{T0}, s{S_E0}',
                        ('vm', f'buffer_load_dwordx4 v{vq}, {sr4(SRD_WQKV)}, s{T0} offen lds', 'wq'),
                        f's_add_u32 s{S_U1}, s{S_U1}, 1', f's_cmp_eq_u32 s{S_U1}, 28', f's_cselect_b32 s{S_U1}, 0, s{S_U1}'])
        return out
    a(f'''
    s_mul_i32 s{S_U0}, s{S_W}, {7*1024}
    s_add_u32 s{S_U0}, s{S_U0}, {WQ}
    s_mul_i32 s{S_U1}, s{S_W}, 7
    s_lshl_b32 s{T0}, s{S_CB}, 2
    {'' if opt('rot', 1) else f's_mov_b32 s{T0}, 0'}
    s_add_u32 s{S_U1}, s{S_U1}, s{T0}
    s_cmp_ge_u32 s{S_U1}, 28
    s_cselect_b32 s{T0}, 28, 0
    s_sub_u32 s{S_U1}, s{S_U1}, s{T0}
    s_mul_i32 s{S_E0}, s{S_H}, 56
    ''')
    a(f'''
    v_lshrrev_b32 v{t[0]}, 2, v{V_LANE}
    v_mul_u32_u24 v{t[0]}, 2688, v{t[0]}
    v_and_b32 v{t[3]}, 3, v{V_LANE}
    v_lshl_add_u32 v{vq}, v{t[3]}, 4, v{t[0]}
    v_lshrrev_b32 v{t[0]}, 1, v{n31}
    v_and_b32 v{t[0]}, 7, v{t[0]}
    v_lshlrev_b32 v{t[1]}, 7, v{n31}
    v_add_u32 v{t[1]}, s{LX}, v{t[1]}
    v_bfe_u32 v{t[2]}, v{V_LANE}, 4, 1
    v_lshlrev_b32 v{t[2]}, 5, v{t[2]}
    v_lshl_add_u32 v{t[2]}, v{t[3]}, 3, v{t[2]}       ; cg*32 + c4*8
    v_bfe_u32 v{t[3]}, v{V_LANE}, 2, 2                ; r
    v_lshl_add_u32 v{t[5]}, v{hf}, 3, v{t[3]}         ; 8hf + r
    v_lshl_add_u32 v{t[6]}, v{t[5]}, 6, v{t[2]}
    v_bfe_u32 v{t[3]}, v{V_LANE}, 3, 1
    v_lshlrev_b32 v{t[3]}, 6, v{t[3]}                 ; 64*bit
    v_add_u32 v{t[4]}, 56, v{t[2]}
    v_xor_b32 v{t[4]}, v{t[4]}, v{t[3]}
    v_xor_b32 v{t[2]}, v{t[2]}, v{t[3]}
    v_sub_u32 v{dB}, v{t[4]}, v{t[2]}
    v_lshl_add_u32 v{t[2]}, v{t[5]}, 7, v{t[2]}
    v_add_u32 v{t[2]}, {WR}, v{t[2]}
    ''')
    AQ = t[6]
    for n in range(4):
        a(f'''
        s_add_u32 s{T0}, s{S_W}, {n}
        s_and_b32 s{T0}, s{T0}, 3
        s_lshl_b32 s{T1}, s{T0}, 1
        v_add_u32 v{t[4]}, s{T1}, v{hf}
        v_xor_b32 v{t[4]}, v{t[4]}, v{t[0]}
        v_lshl_add_u32 v{ax[n]}, v{t[4]}, 4, v{t[1]}
        s_lshl_b32 s{T1}, s{T0}, 11
        v_add_u32 v{aw[n]}, s{T1}, v{t[2]}
        v_add_u32 v{ab[n]}, v{dB}, v{aw[n]}
        ''')
    for r in sm + sq + cs: a(f'v_mov_b32 v{r}, 0')
    a(f's_mov_b32 s{S_ONES}, 0x3f803f80')
    mu = t[0]; rs = t[1]; rq = t[2]
    PA = ax[0]; CA = ax[1]; CR = ax[2]; PB = ax[3]
    def reads(s_):
        c, n = divmod(s_, 4); sl = c % NSLOT; b = s_ % NWF
        return [f'ds_read_b128 {vr(X[s_],4)}, v{ax[n]} offset:{sl*4096}'] + \
               [f'ds_read_b64_tr_b16 {vr(WF[b][0]+2*u,2)}, v{aw[n]} offset:{sl*8192 + u*512}' for u in range(2)] + \
               [f'ds_read_b64_tr_b16 {vr(WF[b][1]+2*u,2)}, v{ab[n]} offset:{sl*8192 + u*512}' for u in range(2)]
    a.stamp('A_issued')
    a.vmwait('c0', lgkm=0); a('s_barrier'); a.stamp('A_c0')
    a(f's_add_u32 s{S_TAG}, s{S_TAG}, 1')
    for x in reads(0) + reads(1): a(x)
    a(f's_bitcmp1_b32 s{S_H}, 0\ns_cbranch_scc1 LAV')
    vm0 = list(a.vm)
    for typ in range(2):
        if typ == 1:
            a.label('LAV'); a.vm = list(vm0)
        step = 0
        q_dma = []
        for c in range(NPRE, 7): q_dma += [(max(0, c - NSLOT + 1), it) for it in dma_items(c)]
        q_dma += [(0, it) for it in dmaq_items()]
        if opt('touch', 0): q_dma.insert(len(q_dma) - 7 + opt('touchpos', 0), (0, touch_item()))
        PER = opt('dmaper', 1)
        def side(c):
            for _ in range(PER):
                if q_dma and q_dma[0][0] <= c:
                    for x in q_dma.pop(0)[1]: a.emit(x)
        def dots(c):
            for n in range(4):
                x = X[4*c+n]
                for i in range(4):
                    a(f'v_dot2c_f32_bf16 v{sm[i&1]}, s{S_ONES}, v{x+i}')
                    a(f'v_dot2c_f32_bf16 v{sq[i&1]}, v{x+i}, v{x+i}')
                side(c + 1)
        for c in range(7):
            for n in range(4):
                b = step % NWF
                rd = []
                if step + 2 < 28:
                    if n == 2:
                        while q_dma and any(isinstance(x, tuple) and x[2] == f'c{c+1}' for _, it in q_dma for x in it):
                            assert q_dma[0][0] <= c
                            for x in q_dma.pop(0)[1]: a.emit(x)
                        a.stamp(f'G_pre{c+1}')
                        a.vmwait(f'c{c+1}', lgkm=0); a('s_barrier')
                        a.stamp(f'G_c{c+1}')
                    else:
                        a('s_waitcnt lgkmcnt(5)')
                    rd = reads(step + 2)
                else:
                    a(f's_waitcnt lgkmcnt({5*(27 - step)})')
                x = X[step]
                if n == 0:
                    for i in range(4):
                        for j in range(2): a(f'v_dot2c_f32_bf16 v{cs[1+j]}, s{S_ONES}, v{WF[b][j]+i}')
                for j in range(2):
                    A_, B_ = (WF[b][j], x) if typ == 0 else (x, WF[b][j])
                    a(f'{MFMA} {vr(ACC[j],16)}, {vr(A_,4)}, {vr(B_,4)}, {vr(ACC[j],16) if step else 0}')
                    for y in (rd[:3] if j == 0 else rd[3:]): a(y)
                    side(c + (1 if n >= 2 else 0))
                step += 1
            dots(c)
        while q_dma:
            for x in q_dma.pop(0)[1]: a.emit(x)
        a.stamp('A_kvloop')
        a(f'v_add_f32 v{sm[0]}, v{sm[0]}, v{sm[1]}\nv_add_f32 v{sq[0]}, v{sq[0]}, v{sq[1]}')
        halfsum(a, cs[1], t[3]); halfsum(a, cs[2], t[4])
        halfsum(a, sm[0], t[3]); halfsum(a, sq[0], t[4])
        a(f'''
        s_mul_i32 s{T0}, s{S_W}, 384
        s_add_u32 s{T0}, s{T0}, {CSP}
        v_lshlrev_b32 v{t[7]}, 2, v{n31}
        v_add_u32 v{CA}, s{T0}, v{t[7]}
        ds_write_b32 v{CA}, v{cs[1]} offset:128
        ds_write_b32 v{CA}, v{cs[2]} offset:256
        v_mul_f32 v{mu}, {fx(1.0/448)}, v{sm[0]}
        v_mul_f32 v{t[3]}, {fx(1.0/448)}, v{sq[0]}
        v_fma_f32 v{t[3]}, -v{mu}, v{mu}, v{t[3]}
        v_max_f32 v{t[3]}, 0, v{t[3]}
        v_add_f32 v{t[3]}, {fx(1e-5)}, v{t[3]}
        v_rsq_f32 v{rs}, v{t[3]}
        s_lshl_b32 s{T0}, s{S_W}, 9
        s_add_u32 s{T0}, s{T0}, {PRV}
        v_add_u32 v{PA}, s{T0}, v{t[7]}
        v_lshlrev_b32 v{PB}, 4, v{hf}
        v_add_u32 v{PB}, s{T0}, v{PB}
        ''')
        if typ == 1: a(f'ds_write_b32 v{PA}, v{mu} offset:256\nds_write_b32 v{PA}, v{rs} offset:384')
        a(f'''
        v_mul_u32_u24 v{CR}, 768, v{hf}
        v_add_u32 v{CR}, v{CR}, v{t[7]}
        v_add_u32 v{CR}, {CSP}, v{CR}
        v_mul_f32 v{rq}, {fx(28**-0.5 * math.log2(math.e))}, v{rs}
        s_lshl_b32 s{T0}, s{S_TB}, 2
        s_add_u32 s{T0}, s{T0}, s{S_W}
        s_and_b32 s{T1}, s{S_H}, 14
        s_lshl_b32 s{T1}, s{T1}, 6
        s_add_u32 s{T0}, s{T0}, s{T1}
        s_lshl_b32 s{T0}, s{T0}, 12
        s_add_u32 s{T1}, s{T0}, {64*4096}
        s_waitcnt lgkmcnt(0)
        s_barrier
        ''')
        for j in (1, 2):
            a(f'ds_read_b32 v{cs[j]}, v{CR} offset:{j*128}\nds_read_b32 v{t[3+j]}, v{CR} offset:{384 + j*128}')
        if typ == 1:
            for q in range(4):
                a(f'ds_read_b128 {vr(T16+4*q,4)}, v{PB} offset:{256 + 32*q}')
                a(f'ds_read_b128 {vr(U16+4*q,4)}, v{PB} offset:{384 + 32*q}')
            a(f'''
            v_cmp_eq_u32 vcc, 28, v{n31}
            v_mov_b32 v{t[7]}, s{S_ONES}
            v_cndmask_b32 v{t[7]}, 0, v{t[7]}, vcc
            v_cmp_lt_u32 vcc, 27, v{n31}
            s_waitcnt lgkmcnt(8)
            ''')
        else:
            a(f'v_cmp_lt_u32 vcc, 31, v{V_LANE}\ns_waitcnt lgkmcnt(0)')
        for j in (1, 2): a(f'v_add_f32 v{cs[j]}, v{cs[j]}, v{t[3+j]}')
        halfsum(a, cs[1], t[3]); halfsum(a, cs[2], t[4])
        if typ == 0:
            a(f'ds_write_b32 v{PA}, v{cs[1]}\nds_write_b32 v{PA}, v{cs[2]} offset:128\ns_waitcnt lgkmcnt(0)')
            for q in range(4): a(f'ds_read_b128 {vr(T16+4*q,4)}, v{PB} offset:{32*q}')
            for q in range(4): a(f'ds_read_b128 {vr(U16+4*q,4)}, v{PB} offset:{128 + 32*q}')
        for j in range(2):
            A_ = ACC[j]; P_ = WF[j][0]
            if typ == 0:
                a(f's_waitcnt lgkmcnt({4*(1-j)})')
                C_ = (T16, U16)[j]
                for r in range(16): a(f'v_fma_f32 v{A_+r}, -v{mu}, v{C_+r}, v{A_+r}')
                for r in range(16): a(f'v_mul_f32 v{A_+r}, v{A_+r}, v{rs}')
                for r in range(12, 16): a(f'v_cndmask_b32_e64 v{A_+r}, v{A_+r}, {"1.0" if r < 15 else "0"}, vcc')
                for i in range(8): a(f'v_cvt_pk_bf16_f32 v{P_+i}, v{A_+2*i}, v{A_+2*i+1}')
            else:
                if j == 0: a('s_waitcnt lgkmcnt(0)')
                for r in range(16): a(f'v_fma_f32 v{A_+r}, -v{T16+r}, v{cs[1+j]}, v{A_+r}')
                for r in range(0, 16, 2): a(f'v_pk_mul_f32 {vr(A_+r,2)}, {vr(A_+r,2)}, {vr(U16+r,2)}')
                for i in range(8): a(f'v_cvt_pk_bf16_f32 v{P_+i}, v{A_+2*i}, v{A_+2*i+1}')
                for i in range(8): a(f'v_cndmask_b32 v{P_+i}, v{P_+i}, v{t[7]}, vcc')
            for u in range(2):
                a.vmem(f'buffer_store_dwordx4 {vr(P_+4*u,4)}, v{V_OFF}, {sr4(SRD_WS)}, s{(T0, T1)[j]} offen offset:{2048*typ + 1024*u} sc1', 'stA')
        if typ == 0: a('s_branch LAQ')
    a.label('LAQ')
    a.stamp('A_kvst')
    aq = aw
    for n in range(4):
        a(f'''
        s_add_u32 s{T0}, s{S_W}, {n}
        s_and_b32 s{T0}, s{T0}, 3
        s_lshl_b32 s{T0}, s{T0}, 10
        s_add_u32 s{T0}, s{T0}, {WQ}
        v_add_u32 v{aq[n]}, s{T0}, v{AQ}
        ''')
    a.vmwait('wq'); a('s_barrier')
    QB = [ACC[0] + 4*i for i in range(8)]
    NQ = 8
    def rdq(s_):
        c, n = divmod(s_, 4)
        for u in range(2): a(f'ds_read_b64_tr_b16 {vr(QB[s_ % NQ]+2*u,2)}, v{aq[n]} offset:{c*4096 + u*256}')
    AH = 5
    for s_ in range(AH): rdq(s_)
    for s_ in range(28):
        if s_ + AH < 28:
            rdq(s_ + AH); a(f's_waitcnt lgkmcnt({2*AH})')
        else:
            a(f's_waitcnt lgkmcnt({2*(27 - s_)})')
        if s_ % 4 == 0:
            for i in range(4): a(f'v_dot2c_f32_bf16 v{cs[0]}, s{S_ONES}, v{QB[s_ % NQ]+i}')
        a(f'{MFMA} {vr(accQ,16)}, {vr(QB[s_ % NQ],4)}, {vr(X[s_],4)}, {vr(accQ,16) if s_ else 0}')
    halfsum(a, cs[0], t[4])
    a(f'ds_write_b32 v{CA}, v{cs[0]}')
    a(f'''
    s_lshr_b32 s{T0}, s{S_H}, 1
    s_lshl_b32 s{T0}, s{T0}, 2
    s_add_u32 s{T0}, s{T0}, s{S_W}
    s_lshl_b32 s{T0}, s{T0}, 12
    s_add_u32 s{T5}, s{T0}, {FL_A}
    s_and_b32 s{T1}, s{S_H}, 1
    s_lshl_b32 s{T1}, s{T1}, 4
    s_add_u32 s{T1}, s{T1}, s{S_TB}
    s_lshl_b32 s{T1}, s{T1}, 7
    s_add_u32 s{T0}, s{T5}, s{T1}
    ''')
    a.vmwait('stA')
    flag_store(a, T0, t[4])
    a.stamp('A_flag')
    a('s_waitcnt lgkmcnt(0)\ns_barrier')
    a(f'ds_read_b32 v{cs[0]}, v{CR}\nds_read_b32 v{t[4]}, v{CR} offset:384\ns_waitcnt lgkmcnt(0)')
    a(f'v_add_f32 v{cs[0]}, v{cs[0]}, v{t[4]}')
    halfsum(a, cs[0], t[4])
    a(f'ds_write_b32 v{PA}, v{cs[0]}\ns_waitcnt lgkmcnt(0)')
    for q in range(4): a(f'ds_read_b128 {vr(T16+4*q,4)}, v{PB} offset:{32*q}')
    a(f'v_cmp_lt_u32 vcc, 31, v{V_LANE}\ns_waitcnt lgkmcnt(0)')
    for r in range(16): a(f'v_fma_f32 v{accQ+r}, -v{mu}, v{T16+r}, v{accQ+r}')
    for r in range(16): a(f'v_mul_f32 v{accQ+r}, v{accQ+r}, v{rq}')
    for r in range(12, 16): a(f'v_cndmask_b32_e64 v{accQ+r}, v{accQ+r}, 0, vcc')
    for i in range(8): a(f'v_cvt_pk_bf16_f32 v{Q0+i}, v{accQ+2*i}, v{accQ+2*i+1}')

def w13_setup(a, S13, L13):
    a(f'''
    s_cmp_lt_u32 s{S_W}, 2
    s_cselect_b32 s{SRD_B}, s{P_W1}, s{P_W3}
    s_cselect_b32 s{SRD_B+1}, s{P_W1+1}, s{P_W3+1}
    s_mov_b32 s{SRD_B+2}, {W1_BYTES}
    s_mov_b32 s{SRD_B+3}, 0x20000
    s_and_b32 s{T0}, s{S_W}, 1
    s_mul_i32 s{S13}, s{T0}, {224*3584}
    s_mul_i32 s{T0}, s{S_FS}, 224
    s_add_u32 s{S13}, s{S13}, s{T0}
    s_mul_i32 s{L13}, s{S_W}, 14336
    ''')

def pair_dma(S13, L13, slot, col, i, tag):
    return [f's_add_u32 m0, s{L13}, {slot*PAIR + i*1024}',
            f's_add_u32 s{T0}, s{S13}, {col + i*16*3584}',
            ('vm', f'buffer_load_dwordx4 v{V_P13}, {sr4(SRD_B)}, s{T0} offen lds', tag)]

def alloc_b():
    va = VA(4, 212)
    KV = [va(16) for _ in range(3)]
    Q = [va(8) for _ in range(4)]
    O = [va(16) for _ in range(4)]
    S = [va(16), va(16)]
    P = [va(8), va(8)]
    t = [va() for _ in range(8)]
    v5 = va()
    return dict(KV=KV, Q=Q, O=O, S=S, P=P, t=t, v5=v5)

def phase_b(a, R):
    KV, Q, O, S, P, t, v5 = (R[k] for k in ('KV', 'Q', 'O', 'S', 'P', 't', 'v5'))
    QX = R['QX']
    S13, L13, SKV, SB = T3, T4, T6, T2
    qa = t[4:8]
    for lq in range(4):
        a(f'''
        s_add_u32 s{T0}, s{S_W}, {lq}
        s_and_b32 s{T0}, s{T0}, 3
        s_lshl_b32 s{T0}, s{T0}, 11
        s_add_u32 s{T0}, s{T0}, {QX}
        v_add_u32 v{qa[lq]}, s{T0}, v{V_OFF}
        ''')
    a(f'ds_write_b128 v{qa[0]}, {vr(Q[0],4)}')
    poll_issue(a, T5, V_FL, 32, t[0])
    w13_setup(a, S13, L13)
    a(f'''
    s_lshl_b32 s{T0}, s{S_E0}, 5
    s_add_u32 s{S13}, s{S13}, s{T0}
    s_and_b32 s{T0}, s{S_W}, 2
    v_and_b32 v{t[1]}, 3, v{V_LANE}
    v_xor_b32 v{t[1]}, s{T0}, v{t[1]}
    v_lshrrev_b32 v{t[2]}, 2, v{V_LANE}
    v_mul_u32_u24 v{t[2]}, 3584, v{t[2]}
    v_lshl_add_u32 v{V_P13}, v{t[1]}, 4, v{t[2]}
    s_lshl_b32 s{T0}, s{T0}, 1
    v_lshrrev_b32 v{t[1]}, 1, v{V_LANE}
    v_xor_b32 v{t[1]}, s{T0}, v{t[1]}
    v_mul_u32_u24 v{t[1]}, 3584, v{t[1]}
    v_and_b32 v{t[2]}, 1, v{V_LANE}
    v_lshl_add_u32 v{v5}, v{t[2]}, 4, v{t[1]}
    s_lshl_b32 s{SKV}, s{S_H}, 6
    s_add_u32 s{SKV}, s{SKV}, s{S_W}
    s_lshl_b32 s{SKV}, s{SKV}, 12
    s_sub_u32 s{SB}, s{S_TB}, 1
    s_waitcnt lgkmcnt(0)
    s_barrier
    ''')
    for lq in range(1, 4): a(f'ds_read_b128 {vr(Q[lq],4)}, v{qa[lq]}')
    spre = []; spre2 = []
    if opt('spre', 1):
        def ssrd(lim, pa, pb, na, nb, per):
            return [f's_lshl_b32 s{S_U0}, s2, 2', f's_add_u32 s{S_U0}, s{S_U0}, s{S_W}', f's_cmp_ge_u32 s{S_U0}, {lim}',
                    f's_cselect_b32 s{SRD_A}, s{pb}, s{pa}', f's_cselect_b32 s{SRD_A+1}, s{pb+1}, s{pa+1}',
                    f's_cselect_b32 s{S_U1}, {lim}, 0', f's_sub_u32 s{S_U0}, s{S_U0}, s{S_U1}', f's_cmp_lg_u32 s{S_U1}, 0',
                    f's_mov_b32 s{SRD_A+2}, {na}', f's_cselect_b32 s{SRD_A+2}, {nb}, s{SRD_A+2}', f's_mul_i32 s{S_U0}, s{S_U0}, {per}',
                    f's_sub_u32 s{SRD_A+2}, s{SRD_A+2}, s{S_U0}', f's_cselect_b32 s{SRD_A+2}, 0, s{SRD_A+2}',
                    f's_add_u32 s{SRD_A}, s{SRD_A}, s{S_U0}', f's_addc_u32 s{SRD_A+1}, s{SRD_A+1}, 0', f's_mov_b32 s{SRD_A+3}, 0x20000']
        ld = lambda o: f's_buffer_load_dwordx2 s[{S_DUM}:{S_DUM+1}], {sr4(SRD_A)}, {o + 60}'
        for x in ssrd(512, P_W1, P_W3, W1_BYTES, W1_BYTES, 3200): a(x)
        spre = [[ld(128*i)] for i in range(25)]
        x2 = ssrd(784, P_W2, P_WO, W2_BYTES, WO_BYTES, 2048)
        spre2 = [x2[4*i:4*i+4] for i in range(4)] + [[ld(128*i)] for i in range(16)]
        a('s_waitcnt lgkmcnt(0)')
        for _ in range(opt('spre0', 7)): a(spre.pop(0)[0])
    a.stamp('B_pre')
    poll_check(a, T5, V_FL, 32, t[0])
    a.stamp('B_poll')
    def kvload(buf):
        return [f's_add_u32 s{SB}, s{SB}, 1', f's_and_b32 s{SB}, s{SB}, 15', f's_lshl_b32 s{T1}, s{SB}, 14', f's_add_u32 s{T1}, s{T1}, s{SKV}'] + \
               [('vm', f'buffer_load_dwordx4 {vr(KV[buf]+4*j,4)}, v{V_OFF}, {sr4(SRD_WS)}, s{T1} offen offset:{1024*j} sc1', f'k{buf}' if j < 2 else f'kv{buf}') for j in range(4)]
    for b in range(3):
        for x in kvload(b): a.emit(x)
    pre = []
    for g in range(7):
        for i in (2*g, 2*g + 1):
            pre.append(pair_dma(S13, L13, 0, 0, i, 'w13'))
            pre.append(pair_dma(S13, L13, 1, 64, i, 'w13'))
        pre.append([f's_add_u32 s{T0}, s{S13}, {128 + g*32*3584}',
                    ('vm', f'buffer_load_dwordx4 {vr(RAW5+4*g,4,"a")}, v{v5}, {sr4(SRD_B)}, s{T0} offen', 'w13')])
    if opt('touchB', 0):
        tb_ = [[f's_lshl_b32 s{S_U0}, s{S_J}, 2', f's_add_u32 s{S_U0}, s{S_U0}, s{S_W}', f's_lshl_b32 s{S_U0}, s{S_U0}, 13',
                f's_mov_b32 s{SRD_A}, s{P_W2}'],
               [f's_mov_b32 s{SRD_A+1}, s{P_W2+1}', f's_mov_b32 s{SRD_A+2}, {W2_BYTES}', f's_mov_b32 s{SRD_A+3}, 0x20000',
                ('vm', f'buffer_load_dword a0, v{V_FL}, {sr4(SRD_A)}, s{S_U0} offen', 'touch')],
               [f's_add_u32 s{S_U1}, s{S_U0}, {128*8192}', ('vm', f'buffer_load_dword a1, v{V_FL}, {sr4(SRD_A)}, s{S_U1} offen', 'touch'),
                f's_mov_b32 s{SRD_A}, s{P_WO}', f's_mov_b32 s{SRD_A+1}, s{P_WO+1}'],
               [f's_mov_b32 s{SRD_A+2}, {WO_BYTES}', f's_xor_b32 s{S_U0}, s{S_U0}, {127*8192}',
                ('vm', f'buffer_load_dword a2, v{V_FL}, {sr4(SRD_A)}, s{S_U0} offen', 'touch')]]
        pos = opt('touchBpos', 20)
        pre[pos:pos] = tb_
    a.vmwait('k0')
    a(f'{MFMA} {vr(S[0],16)}, {vr(KV[0],4)}, {vr(Q[0],4)}, 0')
    a(f'{MFMA} {vr(S[0],16)}, {vr(KV[0]+4,4)}, {vr(Q[0]+4,4)}, {vr(S[0],16)}')
    a(f'v_cmp_lt_u32 vcc, 31, v{V_LANE}')
    a(f'v_max3_f32 v{t[0]}, v{S[0]}, v{S[0]+1}, v{S[0]+2}\nv_max3_f32 v{t[1]}, v{S[0]+3}, v{S[0]+4}, v{S[0]+5}')
    for r in range(6, 14, 4):
        a(f'v_max3_f32 v{t[0]}, v{t[0]}, v{S[0]+r}, v{S[0]+r+1}\nv_max3_f32 v{t[1]}, v{t[1]}, v{S[0]+r+2}, v{S[0]+r+3}')
    a(f'''
    v_max3_f32 v{t[0]}, v{t[0]}, v{S[0]+14}, v{S[0]+15}
    v_max_f32 v{t[0]}, v{t[0]}, v{t[1]}
    v_mov_b32 v{t[1]}, v{t[0]}
    v_permlane32_swap_b32 v{t[0]}, v{t[1]}
    v_max_f32 v{t[0]}, v{t[0]}, v{t[1]}
    v_cvt_pk_bf16_f32 v{t[0]}, -v{t[0]}, 0
    v_cndmask_b32 v{Q[0]+6}, v{Q[0]+6}, v{t[0]}, vcc
    ds_write_b128 v{qa[0]}, {vr(Q[0]+4,4)} offset:1024
    v_lshlrev_b32 v{t[2]}, 16, v{t[0]}
    ''')
    assert t[2] % 2 == 0
    for r in range(0, 16, 2): a(f'v_pk_add_f32 {vr(S[0]+r,2)}, {vr(S[0]+r,2)}, {vr(t[2],2)} op_sel_hi:[1,0]')
    a('s_waitcnt lgkmcnt(0)\ns_barrier')
    for lq in range(1, 4): a(f'ds_read_b128 {vr(Q[lq]+4,4)}, v{qa[lq]} offset:1024')
    a.stamp('B_first')
    def slot(T, q, side):
        cb = q & 1; nb = cb ^ 1
        kvn, nq = (T % 3, q + 1) if q < 3 else ((T + 1) % 3, 0)
        kvp, pq = (T % 3, q - 1) if q else ((T - 1) % 3, 3)
        no_qk = (T == 15 and q == 3); no_pv = (T == 0 and q == 0); first = (T == 0 or (T == 1 and q == 0))
        M = [None if no_qk else f'{MFMA} {vr(S[nb],16)}, {vr(KV[kvn],4)}, {vr(Q[nq],4)}, 0',
             None if no_qk else f'{MFMA} {vr(S[nb],16)}, {vr(KV[kvn]+4,4)}, {vr(Q[nq]+4,4)}, {vr(S[nb],16)}',
             None if no_pv else f'{MFMA} {vr(O[pq],16)}, {vr(KV[kvp]+8,4)}, {vr(P[nb],4)}, {0 if first else vr(O[pq],16)}',
             None if no_pv else f'{MFMA} {vr(O[pq],16)}, {vr(KV[kvp]+12,4)}, {vr(P[nb]+4,4)}, {vr(O[pq],16)}']
        e = lambda r: f'v_exp_f32 v{S[cb]+r}, v{S[cb]+r}'
        c = lambda j: f'v_cvt_pk_bf16_f32 v{P[cb]+j}, v{S[cb]+2*j}, v{S[cb]+2*j+1}'
        seq = [M[0], e(0), e(1), e(2), c(0), e(3), e(4), M[1], c(1), e(5), e(6), c(2), e(7), e(8),
               M[2], c(3), e(9), e(10), c(4), e(11), e(12), M[3], c(5), e(13), e(14), e(15), c(6), c(7)]
        if T == 0 and q == 0: seq.insert(7, 's_waitcnt lgkmcnt(0)')
        side = list(side)
        per = (len(side) + 3) // 4
        for x in seq:
            if x is None: continue
            a(x)
            if x.startswith('v_mfma'):
                for y in side[:per]: a.emit(y)
                side = side[per:]
        for y in side: a.emit(y)
    for T in range(16):
        for q in range(4):
            side = []
            if q == 1 and T >= 1 and T + 2 <= 15: side = kvload((T + 2) % 3)
            elif pre and T >= opt('preT', 5): side = pre.pop(0)
            if (T, q) != (0, 0):
                for _ in range(opt('sper', 1)):
                    if spre: side = side + spre.pop(0)
                    elif spre2 and T >= opt('spre2T', 5): side = side + spre2.pop(0)
            if T == 0 and q == 1: a.vmwait('kv0')
            if q == 3 and T < 15: a.vmwait(f'kv{(T+1)%3}')
            slot(T, q, side)
    assert not pre and not spre and not spre2
    for lq in range(4):
        a(f'''
        s_add_u32 s{T0}, s{S_W}, {lq}
        s_and_b32 s{T0}, s{T0}, 3
        s_mul_i32 s{T0}, s{T0}, 12288
        s_add_u32 s{T0}, s{T0}, {SCR}
        v_add_u32 v{t[lq]}, s{T0}, v{V_OFF}
        ''')
    a(f'{MFMA} {vr(O[3],16)}, {vr(KV[0]+8,4)}, {vr(P[1],4)}, {vr(O[3],16)}')
    a(f'{MFMA} {vr(O[3],16)}, {vr(KV[0]+12,4)}, {vr(P[1]+4,4)}, {vr(O[3],16)}')
    a.stamp('B_loop')
    for lq in range(1, 4):
        for j in range(4): a(f'ds_write_b128 v{t[lq]}, {vr(O[lq]+4*j,4)} offset:{(lq-1)*4096 + j*1024}')
    a(f'''
    s_lshl_b32 s{T0}, s{S_TB}, 2
    s_add_u32 s{T0}, s{T0}, s{S_W}
    s_lshl_b32 s{T0}, s{T0}, 4
    s_add_u32 s{T0}, s{T0}, s{S_H}
    s_lshl_b32 s{T5}, s{T0}, 7
    s_add_u32 s{T5}, s{T5}, {FL_B}
    s_lshl_b32 s{T0}, s{T0}, 11
    s_add_u32 s{T0}, s{T0}, {WS_O}
    v_cmp_lt_u32 vcc, 31, v{V_LANE}
    s_waitcnt lgkmcnt(0)
    s_barrier
    ''')
    for lq in range(1, 4):
        for j in range(4): a(f'ds_read_b128 {vr(O[lq]+4*j,4)}, v{t[0]} offset:{(lq-1)*4096 + j*1024}')
    for lq in range(1, 4):
        a(f's_waitcnt lgkmcnt({4*(3-lq)})')
        for r in range(0, 16, 2): a(f'v_pk_add_f32 {vr(O[0]+r,2)}, {vr(O[0]+r,2)}, {vr(O[lq]+r,2)}')
    a(f'''
    v_mov_b32 v{t[0]}, v{O[0]+12}
    v_mov_b32 v{t[1]}, v{O[0]+12}
    v_permlane32_swap_b32 v{t[0]}, v{t[1]}
    v_rcp_f32 v{t[2]}, v{t[1]}
    ''')
    for r in range(0, 16, 2): a(f'v_pk_mul_f32 {vr(O[0]+r,2)}, {vr(O[0]+r,2)}, {vr(t[2],2)} op_sel_hi:[1,0]')
    for j in range(8): a(f'v_cvt_pk_bf16_f32 v{P[0]+j}, v{O[0]+2*j}, v{O[0]+2*j+1}')
    for j in (6, 7): a(f'v_cndmask_b32_e64 v{P[0]+j}, v{P[0]+j}, 0, vcc')
    for j in range(2):
        a.vmem(f'buffer_store_dwordx4 {vr(P[0]+4*j,4)}, v{V_OFF}, {sr4(SRD_WS)}, s{T0} offen offset:{1024*j} sc1', 'stB')
    a.stamp('B_st')

class Stager:
    def __init__(self, a): self.a = a; self.nl = 0; self.nt = 0; self.open = False
    def setup(self, t0, t1, t2, vw):
        a = self.a; self.vw = vw
        a(f'''
        v_lshrrev_b32 v{t0}, 3, v{V_LANE}
        v_lshrrev_b32 v{t1}, 2, v{V_LANE}
        v_and_b32 v{t1}, 4, v{t1}
        v_and_b32 v{t2}, 7, v{V_LANE}
        v_xor_b32 v{t1}, v{t1}, v{t2}
        v_mul_u32_u24 v{t0}, 896, v{t0}
        v_lshl_add_u32 v{V_SRC}, v{t1}, 4, v{t0}
        v_lshrrev_b32 v{t0}, 5, v{V_LANE}
        v_bfe_u32 v{t1}, v{V_LANE}, 2, 2
        v_lshl_add_u32 v{t0}, v{t0}, 2, v{t1}
        v_lshlrev_b32 v{t0}, 7, v{t0}
        v_bfe_u32 v{t1}, v{V_LANE}, 4, 1
        v_lshl_add_u32 v{t0}, v{t1}, 5, v{t0}
        v_and_b32 v{t1}, 3, v{V_LANE}
        v_lshl_add_u32 v{t0}, v{t1}, 3, v{t0}
        v_bfe_u32 v{t1}, v{V_LANE}, 3, 1
        s_lshr_b32 s{T0}, s{S_W}, 1
        v_xor_b32 v{t1}, s{T0}, v{t1}
        v_lshl_add_u32 v{t0}, v{t1}, 6, v{t0}
        s_lshl_b32 s{T0}, s{S_W}, 12
        s_add_u32 s{T0}, s{T0}, {SCR}
        v_add_u32 v{V_RD}, s{T0}, v{t0}
        v_xor_b32 v{V_RD+1}, 64, v{V_RD}
        v_add_u32 v{vw}, s{T0}, v{V_OFF}
        ''')
    def target(self, which):
        a = self.a
        srd(a, SRD_A, P_WO if which == 'wo' else P_W2, WO_BYTES if which == 'wo' else W2_BYTES)
        a(f's_mul_i32 s{S_U0}, s{S_W}, {(112 if which == "wo" else 448)*896}\ns_lshl_b32 s{T0}, s{S_CB}, 7\ns_add_u32 s{S_U0}, s{S_U0}, s{T0}')
    @staticmethod
    def base(g):
        if g < 2: return ('a', 224 + 16 * g)
        if g < 4: return ('v', WOV + 16 * (g - 2))
        return ('a', 16 * (g - 4))
    @staticmethod
    def dest(g, s_, lc):
        p, b = Stager.base(g); return p, b + (s_ * 2 + lc) * 4
    def load(self):
        a = self.a; g = self.nl; self.nl += 1
        if g == 0: self.target('wo')
        if g == 4: self.target('w2')
        row0 = 28 * g if g < 4 else 32 * (g - 4)
        p, b = self.base(g)
        for i in range(4):
            a(f's_add_u32 s{T0}, s{S_U0}, {(row0 + 8*i)*896}')
            a.vmem(f'buffer_load_dwordx4 {vr(b+4*i,4,p)}, v{V_SRC}, {sr4(SRD_A)}, s{T0} offen', f'hg{g}')
    def wr(self, u):
        a = self.a; g, s_ = divmod(u, 2); p, b = self.base(g)
        for i in range(2): a(f'ds_write_b128 v{self.vw}, {vr(b+8*s_+4*i,4,p)} offset:{2048*s_ + 1024*i}')
    def rd(self, u):
        a = self.a; g, s_ = divmod(u, 2); p, b = self.base(g)
        for lc in range(2):
            for uu in range(2):
                a(f'ds_read_b64_tr_b16 {vr(b+(s_*2+lc)*4+2*uu,2,p)}, v{V_RD+lc} offset:{s_*2048 + uu*1024}')
    def trans(self, last=False):
        a = self.a; g = self.nt; self.nt += 1
        a.vmwait(f'hg{g}', lgkm=0)
        self.wr(2*g)
        if self.open: self.rd(2*g - 1)
        a('s_waitcnt lgkmcnt(0)')
        self.wr(2*g + 1)
        self.rd(2*g)
        self.open = True
        if last: self.close()
    def close(self):
        if self.open:
            self.a('s_waitcnt lgkmcnt(0)'); self.rd(2*self.nt - 1); self.open = False

def red_addr(a, t):
    for l in range(4):
        a(f's_xor_b32 s{T0}, s{S_W}, {l}\ns_mul_i32 s{T0}, s{T0}, 12288\ns_add_u32 s{T0}, s{T0}, {SCR}\nv_add_u32 v{t[l]}, s{T0}, v{V_OFF}')
def red_write(a, ACC, t, l):
    for j in range(4): a(f'ds_write_b128 v{t[l]}, {vr(ACC[l]+4*j,4)} offset:{(l-1)*4096 + j*1024}')
def red_read(a, ACC, t):
    a('s_waitcnt lgkmcnt(0)\ns_barrier')
    for l in range(1, 4):
        for j in range(4): a(f'ds_read_b128 {vr(ACC[l]+4*j,4)}, v{t[0]} offset:{(l-1)*4096 + j*1024}')
    for l in range(1, 4):
        a(f's_waitcnt lgkmcnt({4*(3-l)})')
        for r in range(0, 16, 2): a(f'v_pk_add_f32 {vr(ACC[0]+r,2)}, {vr(ACC[0]+r,2)}, {vr(ACC[l]+r,2)}')

def put5(a, vt):
    a(f's_mul_i32 s{T0}, s{S_W}, 7168\ns_add_u32 s{T0}, s{T0}, {SINGLE}\nv_add_u32 v{vt}, s{T0}, v{V_OFF}')
    for g in range(7): a(f'ds_write_b128 v{vt}, {vr(RAW5+4*g,4,"a")} offset:{1024*g}')

def tile_ids(a, STT, SCT):
    a(f'''
    s_and_b32 s{STT}, s{S_W}, 1
    s_lshl_b32 s{T0}, s{S_RB}, 1
    s_add_u32 s{STT}, s{STT}, s{T0}
    s_lshr_b32 s{SCT}, s{S_W}, 1
    s_lshl_b32 s{T0}, s{S_CB}, 1
    s_add_u32 s{SCT}, s{SCT}, s{T0}
    ''')
def flag8_addr(a, vf, t0, t1, sdst, base):
    a(f'''
    v_lshrrev_b32 v{t0}, 2, v{V_LANE}
    v_lshlrev_b32 v{t0}, 11, v{t0}
    v_and_b32 v{t1}, 3, v{V_LANE}
    v_lshl_add_u32 v{vf}, v{t1}, 7, v{t0}
    s_lshl_b32 s{T0}, s{S_RB}, 3
    s_add_u32 s{T0}, s{T0}, s{S_W}
    s_lshl_b32 s{sdst}, s{T0}, 9
    s_add_u32 s{sdst}, s{sdst}, {base}
    ''')

def phase_c(a, R, stg):
    va = VA(4, 200)
    ACC = [va(16) for _ in range(4)]
    OF = [[va(4) for k in range(8)] for lt in range(2)]
    XR = va(8); t = [va() for _ in range(8)]; vx = va(); vf = va(); vw = va(); vp = va()
    STT, SCT = T1, T2
    stg.setup(t[0], t[1], t[2], vw)
    NB1 = opt('hgB', 9); NF = opt('hgBf', 4)
    for g in range(NF): stg.load()
    tile_ids(a, STT, SCT)
    a(f'''
    v_and_b32 v{t[0]}, 31, v{V_LANE}
    v_lshrrev_b32 v{t[1]}, 5, v{V_LANE}
    v_mul_u32_u24 v{t[0]}, 896, v{t[0]}
    v_lshl_add_u32 v{vx}, v{t[1]}, 3, v{t[0]}
    s_mul_i32 s{T6}, s{STT}, {32*896}
    s_lshl_b32 s{T0}, s{SCT}, 6
    s_add_u32 s{T6}, s{T6}, s{T0}
    ''')
    a.vmwait('stB')
    flag_store(a, T5, t[3])
    a.stamp('C_flag')
    for q in range(4):
        a.vmem(f'buffer_load_dwordx2 {vr(XR+2*q,2)}, v{vx}, {sr4(SRD_X)}, s{T6} offen offset:{16*q}', 'xr')
    flag8_addr(a, vf, t[0], t[1], T5, FL_B)
    for l in range(2):
        a(f'''
        s_xor_b32 s{T0}, s{STT}, {l}
        s_lshl_b32 s{T0}, s{T0}, 2
        s_add_u32 s{T0}, s{T0}, s{S_W}
        s_lshl_b32 s{T0}, s{T0}, 13
        s_add_u32 s{T3+l}, s{T0}, {WS_O}
        ''')
    a('s_barrier')
    NT1 = NB1 - opt('trB', 2)
    for g in range(NT1):
        if stg.nl < NB1: stg.load()
        if g == NT1 - opt('pollB', 2): poll_issue(a, T5, vf, 8, vp)
        stg.trans()
    a.vmwait('xr')
    for j in range(8):
        a(f'v_lshlrev_b32 v{ACC[0]+2*j}, 16, v{XR+j}\nv_and_b32 v{ACC[0]+2*j+1}, 0xffff0000, v{XR+j}')
    a.stamp('C_pre')
    poll_check(a, T5, vf, 8, vp)
    a.stamp('C_poll')
    for k in range(8):
        if k == 4: a(f's_add_u32 s{T3}, s{T3}, 4096\ns_add_u32 s{T4}, s{T4}, 4096')
        for l in range(2):
            a.vmem(f'buffer_load_dwordx4 {vr(OF[l][k],4)}, v{V_OFF}, {sr4(SRD_WS)}, s{T3+l} offen offset:{1024*(k&3)} sc1', f'o{k}')
    while stg.nt < NB1: stg.trans()
    stg.close()
    red_addr(a, t)
    a(f'''
    s_mul_i32 s{T6}, s{STT}, 14
    s_add_u32 s{T6}, s{T6}, s{SCT}
    s_lshl_b32 s{T5}, s{STT}, 4
    s_add_u32 s{T5}, s{T5}, s{SCT}
    s_lshl_b32 s{T5}, s{T5}, 7
    s_add_u32 s{T5}, s{T5}, {FL_C}
    s_waitcnt lgkmcnt(0)
    s_barrier
    ''')
    def mm(k, l):
        p, b = stg.dest(k >> 1, k & 1, l >> 1)
        a(f'{MFMA} {vr(ACC[l],16)}, {vr(b,4,p)}, {vr(OF[l & 1][k],4)}, {vr(ACC[l],16) if (k or l == 0) else 0}')
    KT = 5
    for k in range(KT):
        a.vmwait(f'o{k}')
        for l in range(4): mm(k, l)
    for l in (1, 2, 3, 0):
        for k in range(KT, 8):
            if l == 1: a.vmwait(f'o{k}')
            mm(k, l)
        if l in (2, 3): red_write(a, ACC, t, l - 1)
    a.stamp('C_mfma')
    red_write(a, ACC, t, 3)
    red_read(a, ACC, t)
    for j in range(8): a(f'v_cvt_pk_bf16_f32 v{HKEEP+j}, v{ACC[0]+2*j}, v{ACC[0]+2*j+1}')
    a(f's_lshl_b32 s{T0}, s{T6}, 11\ns_add_u32 s{T0}, s{T0}, {WS_H}')
    for j in range(2):
        a.vmem(f'buffer_store_dwordx4 {vr(HKEEP+4*j,4)}, v{V_OFF}, {sr4(SRD_WS)}, s{T0} offen offset:{1024*j} sc1', 'stC')
    for i in range(4): a(f'v_mov_b32 v{t[4+i]}, 0')
    for j in range(8):
        a(f'v_dot2c_f32_bf16 v{t[4+(j&1)]}, s{S_ONES}, v{HKEEP+j}')
        a(f'v_dot2c_f32_bf16 v{t[6+(j&1)]}, v{HKEEP+j}, v{HKEEP+j}')
    a(f'''
    v_add_f32 v{t[4]}, v{t[4]}, v{t[5]}
    v_add_f32 v{t[6]}, v{t[6]}, v{t[7]}
    v_permlane32_swap_b32 v{t[4]}, v{t[6]}
    v_add_f32 v{t[4]}, v{t[4]}, v{t[6]}
    v_lshlrev_b32 v{t[5]}, 2, v{V_LANE}
    s_lshl_b32 s{T0}, s{T6}, 8
    s_add_u32 s{T0}, s{T0}, {WS_ST}
    ''')
    a.vmem(f'buffer_store_dword v{t[4]}, v{t[5]}, {sr4(SRD_WS)}, s{T0} offen sc1', 'stC')
    a.stamp('C_st')
    nfree = 4 + RAW5 // 16
    NF2 = min(nfree, NB1 + opt('hgCf', 4))
    while stg.nl < NF2: stg.load()
    a('s_barrier')
    put5(a, t[0])
    a.vmwait('stC')
    flag_store(a, T5, t[3])
    a.stamp('C_flag2')
    a('s_waitcnt lgkmcnt(0)')
    NTP = 18 - opt('trC', 1) - opt('pollC', 2)
    while stg.nt < NTP:
        if stg.nl < 18: stg.load()
        stg.trans()
    while stg.nl < 18: stg.load()

def phase_d(a, R, stg):
    va = VA(4, 212)
    X = [va(4) for _ in range(28)]
    ACC = [va(16) for _ in range(4)]
    HP = va(4)
    t = [va(2) for _ in range(4)]
    mu = va(2)
    vl = [va() for _ in range(5)]
    vp = va(); vs = va()
    W = [va(4) for _ in range(2)] + [WOV + 4*i for i in range(8)]
    NW = len(W)
    ST = ACC[3]
    E = [t[0], t[0]+1, t[1], t[1]+1, t[2], t[2]+1, t[3], t[3]+1]
    STT = T6; SH = T5; S13, L13 = T3, T4
    w13_setup(a, S13, L13)
    a(f'''
    s_lshl_b32 s{T0}, s{S_L0}, 5
    s_add_u32 s{S13}, s{S13}, s{T0}
    s_lshl_b32 s{STT}, s{S_TD}, 2
    s_add_u32 s{STT}, s{STT}, s{S_W}
    s_lshl_b32 s{T2}, s{STT}, 11
    s_add_u32 s{T2}, s{T2}, {FL_C}
    v_bfe_u32 v{t[0]}, v{V_LANE}, 4, 1                 ; cg
    v_lshrrev_b32 v{t[1]}, 5, v{V_LANE}                ; hf
    v_bfe_u32 v{t[3]}, v{V_LANE}, 2, 2                 ; r
    v_and_b32 v{mu}, 3, v{V_LANE}
    v_lshlrev_b32 v{mu}, 3, v{mu}                      ; c4*8
    v_xor_b32 v{t[2]}, v{t[0]}, v{t[1]}
    v_lshl_add_u32 v{t[2]}, v{t[2]}, 2, v{t[3]}
    v_lshl_add_u32 v{t[2]}, v{t[2]}, 5, v{mu}
    v_mul_u32_u24 v{vl[4]}, 14336, v{t[0]}
    v_add_u32 v{vl[4]}, v{vl[4]}, v{t[2]}
    v_add_u32 v{vl[4]}, {SINGLE}, v{vl[4]}
    v_lshl_add_u32 v{t[2]}, v{t[1]}, 2, v{t[3]}
    v_lshl_add_u32 v{t[2]}, v{t[2]}, 6, v{mu}
    v_mul_u32_u24 v{t[0]}, {28672 + 32}, v{t[0]}
    v_add_u32 v{vl[0]}, v{t[0]}, v{t[2]}
    v_xor_b32 v{vl[1]}, 32, v{vl[0]}
    v_add_u32 v{vl[2]}, {PAIR}, v{vl[0]}
    v_add_u32 v{vl[3]}, {PAIR}, v{vl[1]}
    v_and_b32 v{t[0]}, 31, v{V_LANE}
    v_mul_u32_u24 v{t[1]}, {7*256}, v{t[1]}
    v_lshl_add_u32 v{vs}, v{t[0]}, 2, v{t[1]}
    s_mul_i32 s{T1}, s{STT}, {14*256}
    s_add_u32 s{T1}, s{T1}, {WS_ST}
    s_mul_i32 s{SH}, s{STT}, {28*1024}
    s_add_u32 s{SH}, s{SH}, {WS_H}
    ''')
    NTP = 18 - opt('trC', 1)
    poll_issue(a, T2, V_FL, 14, vp)
    Ls = a.newlabel('skip')
    a(f's_cmp_ge_u32 s{S_J}, 28\ns_cbranch_scc1 {Ls}')
    while stg.nt < NTP: stg.trans()
    a.label(Ls)
    a.stamp('D_pre')
    rest = [x for x in a.vm if x.startswith('hg')]
    poll_check(a, T2, V_FL, 14, vp)
    a.stamp('D_poll')
    for c in range(7):
        a.vmem(f'buffer_load_dword v{ST+2*c}, v{vs}, {sr4(SRD_WS)}, s{T1} offen offset:{256*c} sc1', 'st')
        a.vmem(f'buffer_load_dword v{ST+2*c+1}, v{vs}, {sr4(SRD_WS)}, s{T1} offen offset:{256*c+128} sc1', 'st')
    SX_ = S_SPIN + 1
    a(f's_mov_b32 s{SX_}, s{SH}')
    def ldx(k):
        if k and k % 4 == 0: a(f's_add_u32 s{SX_}, s{SX_}, 4096')
        a.vmem(f'buffer_load_dwordx4 {vr(X[k],4)}, v{V_OFF}, {sr4(SRD_WS)}, s{SX_} offen offset:{1024*(k&3)} sc1', f'x{k}')
    XLA = opt('xla', 10)
    for k in range(XLA): ldx(k)
    a(f's_or_b32 s{T0}, s2, s{S_W}\ns_cmp_lg_u32 s{T0}, 0\ns_cselect_b32 s{T0}, 0x40000000, {WS_FLG}')
    flag_store(a, T0, t[0])
    a.stamp('F_issued')
    Ls = a.newlabel('skip')
    a(f's_cmp_ge_u32 s{S_J}, 28\ns_cbranch_scc1 {Ls}')
    while stg.nt < 18: stg.trans()
    stg.close()
    a.label(Ls)
    SE = T5; SL = T1; SF = T2
    a(f'''
    s_mul_i32 s{SE}, s{STT}, 112
    s_mul_i32 s{T0}, s{S_FS}, 7
    s_add_u32 s{SE}, s{SE}, s{T0}
    s_add_u32 s{SL}, s{SE}, s{S_L0}
    s_add_u32 s{SE}, s{SE}, s{S_E0}
    s_lshl_b32 s{SE}, s{SE}, 10
    s_add_u32 s{SE}, s{SE}, {WS_HH}
    s_lshl_b32 s{SL}, s{SL}, 10
    s_add_u32 s{SL}, s{SL}, {WS_HH}
    s_add_u32 s{S_U1}, s{SE}, 4096
    s_lshl_b32 s{SF}, s{STT}, 4
    s_add_u32 s{SF}, s{SF}, s{S_FS}
    s_lshl_b32 s{SF}, s{SF}, 7
    s_add_u32 s{SF}, s{SF}, {FL_D1}
    s_waitcnt lgkmcnt(0)
    s_barrier
    ''')
    seq = [(j, k) for k in range(28) for j in (0, 1, 4)] + [(j, k) for j in (2, 3, 5, 6) for k in range(28)]
    def rdW(n):
        j, k = seq[n]
        if j == 4: return [f'ds_read_b64_tr_b16 {vr(W[n % NW]+2*u,2)}, v{vl[4]} offset:{k*512 + u*256}' for u in range(2)]
        return [f'ds_read_b64_tr_b16 {vr(W[n % NW]+2*u,2)}, v{vl[{0:0,1:1,2:2,3:3,5:0,6:1}[j]]} offset:{k*1024 + u*512}' for u in range(2)]
    AH = opt('ah', 6); assert AH + 2 <= NW and 2 * AH <= 15
    a.stamp('F_bar')
    for n in range(AH):
        for x in rdW(n): a(x)
    a.vmwait('st')
    a(f'v_add_f32 v{t[0]}, v{ST}, v{ST+2}\nv_add_f32 v{t[1]}, v{ST+1}, v{ST+3}')
    for c in range(2, 7):
        a(f'v_add_f32 v{t[0]}, v{t[0]}, v{ST+2*c}\nv_add_f32 v{t[1]}, v{t[1]}, v{ST+2*c+1}')
    halfsum(a, t[0], t[2]); halfsum(a, t[1], t[3])
    a(f'''
    v_mul_f32 v{t[0]}, {fx(1/448)}, v{t[0]}
    v_mul_f32 v{t[1]}, {fx(1/448)}, v{t[1]}
    v_fma_f32 v{t[1]}, -v{t[0]}, v{t[0]}, v{t[1]}
    v_max_f32 v{t[1]}, 0, v{t[1]}
    v_add_f32 v{t[1]}, {fx(1e-5)}, v{t[1]}
    v_rsq_f32 v{mu}, v{t[1]}
    s_mov_b32 s{S_U0}, 0xffff0000
    v_mul_f32 v{mu+1}, v{t[0]}, v{mu}
    v_sub_f32 v{mu+1}, 0, v{mu+1}
    ''')
    def norm(k):
        out = []
        for i in range(4): out += [f'v_lshlrev_b32 v{t[i]}, 16, v{X[k]+i}', f'v_and_b32 v{t[i]+1}, s{S_U0}, v{X[k]+i}']
        for i in range(4): out += [f'v_pk_fma_f32 {vr(t[i],2)}, {vr(t[i],2)}, {vr(mu,2)}, {vr(mu,2)} op_sel:[0,0,1] op_sel_hi:[1,0,1]']
        for i in range(4): out += [f'v_cvt_pk_bf16_f32 v{X[k]+i}, v{t[i]}, v{t[i]+1}']
        return out
    acc_of = {0: 0, 1: 1, 4: 2, 2: 3, 3: 0, 5: 1, 6: 2}
    def epi(j):
        A = ACC[acc_of[j]]
        out = []
        for r in range(8): out.append(f'v_mul_f32 v{E[r]}, s{S_U0}, v{A+r}')
        for r in range(8): out.append(f'v_exp_f32 v{E[r]}, v{E[r]}')
        for r in range(0, 8, 2): out.append(f'v_pk_mul_f32 {vr(A+r,2)}, {vr(A+r,2)}, {vr(A+8+r,2)}')
        for r in range(8): out.append(f'v_add_f32 v{E[r]}, 1.0, v{E[r]}')
        for r in range(8): out.append(f'v_rcp_f32 v{E[r]}, v{E[r]}')
        for r in range(0, 8, 2): out.append(f'v_pk_mul_f32 {vr(A+r,2)}, {vr(A+r,2)}, {vr(E[r],2)}')
        for i in range(4): out.append(f'v_cvt_pk_bf16_f32 v{HP+i}, v{A+2*i}, v{A+2*i+1}')
        sreg, off = (SE, 1024*j) if j < 4 else ((S_U1, 0) if j == 4 else (SL, 1024*(j-5)))
        out.append(('vm', f'buffer_store_dwordx4 {vr(HP,4)}, v{V_OFF}, {sr4(SRD_WS)}, s{sreg} offen offset:{off} sc1', f'hh{j}'))
        return out
    a.stamp('F_stats')
    a.vmwait('x0')
    a.stamp('F_x0')
    for x in norm(0): a(x)
    pend = []; late = []
    R['vfE'] = vs; R['vpE'] = vp
    B1TAG = {3: 'hh4', 4: 'hh2'}[opt('b1', 3)]
    for n, (j, k) in enumerate(seq):
        nn = n + AH
        if nn < len(seq) and seq[nn] == (5, 0):
            a.vmwait('late'); a('s_barrier')
        rd = rdW(nn) if nn < len(seq) else []
        if n % 2 == 0:
            left = min(len(seq), n + AH) - (n + 2)
            a(f's_waitcnt lgkmcnt({max(0, 2*left)})')
        A = ACC[acc_of[j]]
        a(f'{MFMA} {vr(A,16)}, {vr(W[n % NW],4)}, {vr(X[k],4)}, {vr(A,16) if k else 0}')
        for x in rd: a(x)
        if n < 84 and j == 0 and k in (4, 8, 12, 16, 20, 24): a.stamp(f'F_k{k}')
        if n >= 84 and k == 27: a.stamp(f'F_t{j}')
        if n < 84:
            if j == 0 and k + 1 < 28:
                a.vmwait(f'x{k+1}'); pend = norm(k + 1)
            if j == 1 and k + XLA < 28: ldx(k + XLA)
            take = 6 if j < 2 else 4
            for x in pend[:take]: a(x)
            pend = pend[take:]
            if n == 83:
                a.stamp('D_st1')
                a(f's_mov_b32 s{S_U0}, {fx(-math.log2(math.e))}\ns_barrier')
                late = [pair_dma(S13, L13, 0, 0, i, 'late') for i in range(14)]
        else:
            if n == 84 + 2: pend = epi(0) + epi(1) + epi(4) + epi(2) + epi(3) + epi(5); done = 0; tot = len(pend); one = tot // 6
            if n >= 84 + 2:
                want = min(tot, (n - 85) * tot // 108 + 1)
                lim = {2: 3, 3: 3 + (k >= 2), 5: 4 + (k >= 2), 6: 5 + (k >= 2)}[j] * one
                while done < min(want, lim):
                    a.emit(pend.pop(0)); done += 1
                if k == 27:
                    need = {2: 1, 3: 2, 5: 3, 6: 6}[j] * one
                    while done < need:
                        a.emit(pend.pop(0)); done += 1
            if late and k % opt('latestep', 2) == 0:
                for x in late.pop(0): a.emit(x)
            if j == 6 and k == opt('f1k', 4):
                a.vmwait(B1TAG); flag_store(a, SF, vp)
            if j == 6 and k == opt('p1k', 20):
                flag8_addr(a, vs, vp, vl[4], S_SPIN + 1, FL_D1)
                poll_issue(a, S_SPIN + 1, vs, 8, vp)
    a.stamp('D_loop')
    for x in epi(6): a.emit(x)
    a.stamp('D_epi')
    R['SF'] = SF

def phase_e(a, R, stg):
    va = VA(4, 199)
    ACC = [va(16) for _ in range(4)]
    NB = 16
    BUF = [[va(4) for l in range(2)] for d in range(NB)]
    vf = R['vfE']; vp = R['vpE']
    t = [204, 205, 206, 207]; vt = 208
    assert vf >= va.n and vp >= va.n and vf < 204 and vp < 204
    STT, SCT = T1, T3
    SP = S_SPIN + 1
    tile_ids(a, STT, SCT)
    a(f's_mul_i32 s{T4}, s{S_W}, {28*1024}')
    for l in range(2):
        a(f'''
        s_xor_b32 s{T0}, s{STT}, {l}
        s_mul_i32 s{T0}, s{T0}, {112*1024}
        s_add_u32 s{T0}, s{T0}, s{T4}
        s_add_u32 s{S_U0+l}, s{T0}, {WS_HH}
        ''')
    e0 = lambda f: 2 if f == 2 else 0
    l0 = lambda f: 0 if f == 2 else 5
    B1 = opt('b1', 3)
    early = (0, 1, 4, 2, 3)
    order = [7*f + e0(f) + j for j in early[:B1] for f in range(4)] + [7*f + e0(f) + j for j in early[B1:] for f in range(4)] + \
            [7*f + l0(f) + j for j in range(2) for f in range(4)]
    assert sorted(order) == list(range(28))
    N1 = 4 * B1
    a(f's_add_u32 s{T6}, s{R["SF"]}, {FL_D2 - FL_D1}')
    poll_check(a, SP, vf, 8, vp)
    a.stamp('E_poll1')
    a(f's_add_u32 s{SP}, s{SP}, {FL_D2 - FL_D1}')
    st = dict(nxt=0)
    FL2 = opt('efl', 6); PI = opt('epoll', N1 - 2)
    def ld():
        n = st['nxt']; st['nxt'] += 1
        if n == FL2:
            a.vmwait('hh6'); flag_store(a, T6, vt)
        if n == PI: poll_issue(a, SP, vf, 8, vp)
        if n == N1:
            a.stamp('E_pre2'); poll_check(a, SP, vf, 8, vp); a.stamp('E_poll2')
        ks = order[n]
        for l in range(2):
            a(f's_add_u32 s{T0}, s{S_U0+l}, {(ks >> 2) * 4096}')
            a.vmem(f'buffer_load_dwordx4 {vr(BUF[n % NB][l],4)}, v{V_OFF}, {sr4(SRD_WS)}, s{T0} offen offset:{1024*(ks&3)} sc1', f'h{n}')
    LA = opt('ela', 8)
    for n in range(LA): ld()
    for j in range(8):
        a(f'v_lshlrev_b32 v{ACC[0]+2*j}, 16, v{HKEEP+j}\nv_and_b32 v{ACC[0]+2*j+1}, 0xffff0000, v{HKEEP+j}')
    red_addr(a, t)
    def mm(n, l):
        ks = order[n]
        p, b = stg.dest(4 + (ks >> 1), ks & 1, l >> 1)
        a(f'{MFMA} {vr(ACC[l],16)}, {vr(b,4,p)}, {vr(BUF[n % NB][l & 1],4)}, {vr(ACC[l],16) if (n or l == 0) else 0}')
    KT = 28 - opt('etail', 4)
    for n in range(KT):
        a.vmwait(f'h{n}')
        for l in range(4): mm(n, l)
        for _ in range(2 if st['nxt'] - n < NB - 1 and n >= opt('egrow', 2) else 1):
            if st['nxt'] < 28 and st['nxt'] - NB <= n: ld()
    assert st['nxt'] == 28
    for l in (1, 2, 3, 0):
        for n in range(KT, 28):
            if l == 1: a.vmwait(f'h{n}')
            mm(n, l)
        if l in (2, 3): red_write(a, ACC, t, l - 1)
    a.stamp('E_mfma')
    red_write(a, ACC, t, 3)
    srd(a, SRD_A, P_OUT, X_BYTES)
    a(f'''
    v_and_b32 v{vf}, 31, v{V_LANE}
    v_lshrrev_b32 v{vp}, 5, v{V_LANE}
    v_mul_u32_u24 v{vf}, 896, v{vf}
    v_lshl_add_u32 v{vf}, v{vp}, 4, v{vf}
    s_mul_i32 s{T0}, s{STT}, {32*896}
    s_lshl_b32 s{T2}, s{SCT}, 6
    s_add_u32 s{T0}, s{T0}, s{T2}
    ''')
    red_read(a, ACC, t)
    PKR = ACC[1]
    for j in range(8): a(f'v_cvt_pk_bf16_f32 v{PKR+j}, v{ACC[0]+2*j}, v{ACC[0]+2*j+1}')
    for g in (0, 4):
        a(f'v_permlane32_swap_b32 v{PKR+g}, v{PKR+g+2}\nv_permlane32_swap_b32 v{PKR+g+1}, v{PKR+g+3}')
    a(f'buffer_store_dwordx4 {vr(PKR,4)}, v{vf}, {sr4(SRD_A)}, s{T0} offen')
    a(f'buffer_store_dwordx4 {vr(PKR+4,4)}, v{vf}, {sr4(SRD_A)}, s{T0} offen offset:32')
    a.stamp('E_st')

def gen():
    a = K()
    a.stamp('rt0', True); a.stamp('t0')
    HB = opt('hb', 3)
    a(f'''
    s_cmp_ge_u32 s2, 256
    s_cbranch_scc1 Lend
    s_load_dwordx16 s[32:47], s[0:1], 0
    s_load_dwordx2 s[50:51], s[0:1], 72
    v_lshrrev_b32 v2, 6, v0
    v_and_b32 v{V_LANE}, 63, v0
    v_readfirstlane_b32 s{S_W}, v2
    v_lshlrev_b32 v{V_OFF}, 4, v{V_LANE}
    v_lshlrev_b32 v{V_FL}, 7, v{V_LANE}
    s_and_b32 s{T0}, s2, 7
    s_lshr_b32 s{S_J}, s2, 3
    s_and_b32 s{S_H}, s{T0}, {(16 >> HB) - 1}
    s_lshl_b32 s{S_H}, s{S_H}, {HB}
    s_and_b32 s{T1}, s{S_J}, {(1 << HB) - 1}
    s_add_u32 s{S_H}, s{S_H}, s{T1}
    s_lshr_b32 s{S_TB}, s{T0}, {4 - HB}
    s_lshl_b32 s{S_TB}, s{S_TB}, {5 - HB}
    s_lshr_b32 s{T1}, s{S_J}, {HB}
    s_add_u32 s{S_TB}, s{S_TB}, s{T1}
    s_mul_i32 s{T1}, s{S_J}, 9363
    s_lshr_b32 s{T1}, s{T1}, 16
    s_mul_i32 s{T2}, s{T1}, 7
    s_sub_u32 s{S_CB}, s{S_J}, s{T2}
    s_lshl_b32 s{S_RB}, s{T0}, 2
    s_add_u32 s{S_RB}, s{S_RB}, s{T1}
    s_and_b32 s{S_TD}, s{T0}, 1
    s_lshl_b32 s{S_TD}, s{S_TD}, 3
    s_and_b32 s{T1}, s{S_J}, 7
    s_add_u32 s{S_TD}, s{S_TD}, s{T1}
    s_lshr_b32 s{S_FS}, s{T0}, 1
    s_lshl_b32 s{S_FS}, s{S_FS}, 2
    s_lshr_b32 s{T1}, s{S_J}, 3
    s_add_u32 s{S_FS}, s{S_FS}, s{T1}
    ''')
    R = alloc_b()
    phase_a(a, R)
    a(f'''
    s_and_b32 s{T0}, s{S_FS}, 3
    s_cmp_eq_u32 s{T0}, 2
    s_cselect_b32 s{S_E0}, 2, 0
    s_cselect_b32 s{S_L0}, 0, 5
    ''')
    phase_b(a, R)
    stg = Stager(a)
    a(f's_cmp_ge_u32 s{S_J}, 28\ns_cbranch_scc1 LnoC')
    phase_c(a, R, stg)
    a('s_branch LD')
    vm_c = list(a.vm)
    a.label('LnoC')
    a.vmall()
    flag_store(a, T5, 4)
    a('s_barrier')
    put5(a, 5)
    a.label('LD')
    a.vm = vm_c
    phase_d(a, R, stg)
    a(f's_cmp_ge_u32 s{S_J}, 28\ns_cbranch_scc0 LE')
    a(f's_waitcnt vmcnt(0)\ns_add_u32 s{T0}, s{R["SF"]}, {FL_D2 - FL_D1}')
    vm_d = list(a.vm)
    flag_store(a, T0, 4)
    a('s_branch Lfin')
    a.label('LE')
    a.vm = vm_d
    phase_e(a, R, stg)
    a.label('Lfin')
    if STAMP:
        a('s_waitcnt vmcnt(0)')
        a.stamp('end'); a.stamp('rt1', True)
        a(f's_waitcnt lgkmcnt(0)\ns_lshl_b32 s{T0}, s2, 2\ns_add_u32 s{T0}, s{T0}, s{S_W}\ns_lshl_b32 s{T0}, s{T0}, 7\ns_add_u32 s{T0}, s{T0}, {WS_DBG}\nv_mov_b32 v4, 0')
        for i in range(a.nst):
            a(f'v_mov_b32 v5, s{60+2*i}\nbuffer_store_dword v5, v4, {sr4(SRD_WS)}, s{T0} offen offset:{4*i}')
    a.label('Lend')
    a('s_endpgm')
    a.finalize()
    head = open('sequential_preLN__mha_block__glu_gated_swiglu__prompt.s.ref').read().split('; Override')[0]
    s = head + f'; @launch grid=(256,1,1) block=(256,1,1) lds={LDS_BYTES}\n'
    s += f'.amdgcn_target "amdgcn-amd-amdhsa--gfx950"\n.text\n.globl {NAME}\n.p2align 8\n.type {NAME},@function\n{NAME}:\n' + a.text()
    s += f'''.section .rodata,"a"
.p2align 6
.amdhsa_kernel {NAME}
  .amdhsa_next_free_vgpr 512
  .amdhsa_next_free_sgpr 102
  .amdhsa_accum_offset 256
  .amdhsa_group_segment_fixed_size 0
  .amdhsa_kernarg_size 80
  .amdhsa_user_sgpr_count 2
  .amdhsa_user_sgpr_kernarg_segment_ptr 1
  .amdhsa_system_sgpr_workgroup_id_x 1
.end_amdhsa_kernel
'''
    if STAMP: s = '; STAMPS ' + ' '.join(a.names) + '\n' + s
    print(f'instrs={len(a.ins)} nop_states={a.nops} stamps={a.nst}', file=sys.stderr)
    return s

if __name__ == '__main__':
    open(sys.argv[1], 'w').write(gen())
```

```python
import sys, struct, math, os
from asmgen import Asm

NAME = 'sequential_preLN__mha_block__glu_gated_swiglu__prompt_kernel'
MB = 1 << 20
WS_KV  = 0
WS_O   = 4 * MB
WS_H   = 6 * MB
WS_ST  = 8 * MB
WS_HH  = 9 * MB
WS_FLG = 16 * MB
FL_A = WS_FLG + 0x10000
FL_B = FL_A + 1024 * 128
FL_C = FL_B + 1024 * 128
FL_D1 = FL_C + 1024 * 128
FL_D2 = FL_D1 + 1024 * 128
WS_DBG = 17 * MB
WS_SIZE = 18 * MB

X_BYTES = 2048 * 448 * 2
WQKV_BYTES = 448 * 1344 * 2
WO_BYTES = 448 * 448 * 2
W1_BYTES = 448 * 1792 * 2
W2_BYTES = 1792 * 448 * 2
LDS_BYTES = 163840
MFMA = 'v_mfma_f32_32x32x16_bf16'
STAMP = int(os.environ.get('STAMP', '0'))
OPT = dict(kv.split('=') for kv in os.environ.get('OPT', '').split(',') if kv)
def opt(k, d): return int(OPT.get(k, d))

def f2u(x): return struct.unpack('<I', struct.pack('<f', x))[0]
def fx(x): return hex(f2u(x))
def vr(b, n=1, p='v'): return f'{p}[{b}:{b+n-1}]' if n > 1 else f'{p}{b}'
def sr4(b): return f's[{b}:{b+3}]'

class VA:
    def __init__(self, start, limit): self.n = start; self.limit = limit
    def __call__(self, cnt=1, align=None):
        if align is None: align = 1 if cnt == 1 else (2 if cnt == 2 else 4)
        self.n = (self.n + align - 1) // align * align
        b = self.n; self.n += cnt
        assert self.n <= self.limit, f'out of registers {self.n} > {self.limit}'
        return b

class K(Asm):
    def __init__(self):
        super().__init__(); self.vm = []; self.nst = 0; self.nlab = 0; self.names = []
    def vmem(self, text, tag):
        self(text); self.vm.append(tag)
    def vmwait(self, *tags, lgkm=None):
        idx = [i for i, t in enumerate(self.vm) if t in tags]
        s = ''
        if idx:
            n = len(self.vm) - 1 - max(idx)
            s += f' vmcnt({min(n, 63)})'
            self.vm = self.vm[len(self.vm) - n:] if n else []
        if lgkm is not None: s += f' lgkmcnt({lgkm})'
        if s: self('s_waitcnt' + s)
    def vmall(self):
        self('s_waitcnt vmcnt(0)'); self.vm = []
    def emit(self, x):
        if isinstance(x, tuple):
            if x[0] == 'vm': self.vmem(x[1], x[2])
            elif x[0] == 'wait': self.vmwait(*x[1:])
            elif x[0] == 'call': x[1]()
        else: self(x)
    def stamp(self, name='', real=False):
        if not STAMP: return
        if name and name[0] in 'ABCDEFG' and name[0] not in os.environ.get('STAMPSET', 'AB'): return
        if name in self.names:
            i = self.names.index(name)
        else:
            i = self.nst; self.nst += 1; self.names.append(name)
        assert i < 19
        self(f's_mem{"real" if real else ""}time s[{60+2*i}:{61+2*i}]')
    def newlabel(self, p):
        self.nlab += 1; return f'L{p}{self.nlab}'

S_W = 3
SRD_X = 4; SRD_WQKV = 8; SRD_WS = 12; SRD_A = 16; SRD_B = 20
P_X, P_WQKV, P_WO, P_W1, P_W3, P_W2, P_OUT, P_WS = 32, 34, 36, 40, 42, 44, 46, 50
S_TAG = 24; S_H = 25; S_TB = 26; S_RB = 27; S_CB = 28; S_TD = 29; S_FS = 30; S_J = 31
S_E0 = 38; S_L0 = 39
S_U0 = 48; S_U1 = 49
S_ONES = 52
T0, T1, T2, T3, T4, T5, T6 = 53, 54, 55, 56, 57, 58, 59
S_SPIN = 98
S_ROT = 39
S_DUM = 100
V_LANE = 1; V_OFF = 2; V_FL = 3
V_SRC = 212; V_P13 = 213; V_RD = 214
HKEEP = 216
WOV = 224
PAIR = 57344; SCR = 2 * PAIR; SINGLE = SCR + 16384
RAW5 = 196

def xm(n):
    if n >= 64: return 's_mov_b64 exec, -1'
    if n < 31: return f's_mov_b64 exec, {hex((1 << n) - 1)}'
    lo = '-1' if n >= 32 else hex((1 << n) - 1)
    return f's_mov_b32 exec_lo, {lo}\ns_mov_b32 exec_hi, {hex((1 << max(0, n - 32)) - 1)}'

def srd(a, d, p, nbytes):
    a(f's_mov_b32 s{d}, s{p}\ns_mov_b32 s{d+1}, s{p+1}\ns_mov_b32 s{d+2}, {nbytes}\ns_mov_b32 s{d+3}, 0x20000')

def halfsum(a, x, t):
    a(f'v_mov_b32 v{t}, v{x}\nv_permlane32_swap_b32 v{x}, v{t}\nv_add_f32 v{x}, v{x}, v{t}')

def flag_store(a, sreg, vt):
    a(f'v_mov_b32 v{vt}, s{S_TAG}\ns_mov_b64 exec, 1')
    a.vmem(f'buffer_store_dword v{vt}, v{V_OFF}, {sr4(SRD_WS)}, s{sreg} offen sc1', 'flag')
    a('s_mov_b64 exec, -1')

def poll_issue(a, sreg, vaddr, nl, vt):
    a(xm(nl))
    a.vmem(f'buffer_load_dword v{vt}, v{vaddr}, {sr4(SRD_WS)}, s{sreg} offen sc1', 'poll')
    a('s_mov_b64 exec, -1')

def poll_check(a, sreg, vaddr, nl, vt):
    L = a.newlabel('poll'); D = L + 'd'
    a(xm(nl) + f'\ns_mov_b32 s{S_SPIN}, 0x40000')
    a.vmwait('poll')
    a(f'v_cmp_ne_u32 vcc, s{S_TAG}, v{vt}\ns_cbranch_vccz {D}')
    a.label(L)
    a(f'''
    s_sleep {opt('sleep', 2)}
    buffer_load_dword v{vt}, v{vaddr}, {sr4(SRD_WS)}, s{sreg} offen sc1
    s_sub_u32 s{S_SPIN}, s{S_SPIN}, 1
    s_waitcnt vmcnt(0)
    s_cbranch_scc1 {D}
    v_cmp_ne_u32 vcc, s{S_TAG}, v{vt}
    s_cbranch_vccnz {L}
    ''')
    a.label(D)
    a('s_mov_b64 exec, -1')

def phase_a(a, R):
    NSLOT = 5
    WR = 81920
    WQ = WR + NSLOT * 8192
    CSP = WQ + 28672
    PRV = CSP + 1536
    QX = 155648
    assert PRV + 2048 <= QX
    R['QX'] = QX
    Q0 = R['Q'][0]
    va = VA(4, 256)
    ACC = [va(16), va(16)]; accQ = va(16)
    PK = va(8); assert PK == Q0, (PK, Q0)
    X = [va(4) for _ in range(28)]
    NWF = 4
    WF = [[va(4) for j in range(2)] for b in range(NWF)]
    vx = [va(), va()]; vw = [va(), va()]; vq = va()
    ax = [va() for _ in range(4)]; aw = [va() for _ in range(4)]; ab = [va() for _ in range(4)]
    sm = [va(), va()]; sq = [va(), va()]; cs = [va(), va(), va()]
    t = [va() for _ in range(8)]
    hf = va(); n31 = va(); dB = va()
    assert va.n <= 240, va.n
    T16 = 240; U16 = accQ
    a(f'v_lshrrev_b32 v{hf}, 5, v{V_LANE}\nv_and_b32 v{n31}, 31, v{V_LANE}')
    for i in range(2):
        a(f'''
        v_lshrrev_b32 v{t[0]}, 3, v{V_LANE}
        v_add_u32 v{t[0]}, {8*i}, v{t[0]}
        v_lshrrev_b32 v{t[1]}, 1, v{t[0]}
        v_and_b32 v{t[1]}, 7, v{t[1]}
        v_and_b32 v{t[2]}, 7, v{V_LANE}
        v_xor_b32 v{t[1]}, v{t[1]}, v{t[2]}
        v_lshlrev_b32 v{t[1]}, 4, v{t[1]}
        v_mul_u32_u24 v{t[0]}, 896, v{t[0]}
        v_add_u32 v{vx[i]}, v{t[0]}, v{t[1]}
        ''')
    a(f'''
    v_subrev_u32 v{vx[1]}, 1024, v{vx[1]}
    v_lshrrev_b32 v{t[0]}, 3, v{V_LANE}
    v_lshrrev_b32 v{t[1]}, 2, v{V_LANE}
    v_and_b32 v{t[1]}, 4, v{t[1]}
    v_xor_b32 v{t[1]}, v{t[1]}, v{t[2]}
    v_min_u32 v{t[1]}, 6, v{t[1]}
    v_mul_u32_u24 v{t[0]}, 2688, v{t[0]}
    v_lshl_add_u32 v{vw[0]}, v{t[1]}, 4, v{t[0]}
    v_add_u32 v{vw[1]}, {8*2688 - 1024}, v{vw[0]}
    s_waitcnt lgkmcnt(0)
    ''')
    srd(a, SRD_X, P_X, X_BYTES); srd(a, SRD_WQKV, P_WQKV, WQKV_BYTES)
    SX, SW, LX, LW = T3, T4, T5, T6
    a(f'''
    s_lshl_b32 s{SX}, s{S_TB}, 2
    s_add_u32 s{SX}, s{SX}, s{S_W}
    s_mul_i32 s{SX}, s{SX}, {32*896}
    s_mul_i32 s{SW}, s{S_W}, {16*2688}
    s_lshr_b32 s{T0}, s{S_H}, 1
    s_mul_i32 s{T0}, s{T0}, 112
    s_add_u32 s{SW}, s{SW}, s{T0}
    s_and_b32 s{T0}, s{S_H}, 1
    s_mul_i32 s{T0}, s{T0}, 896
    s_add_u32 s{SW}, s{SW}, s{T0}
    s_add_u32 s{SW}, s{SW}, 896
    s_mul_i32 s{LX}, s{S_W}, 20480
    s_lshl_b32 s{LW}, s{S_W}, 11
    s_add_u32 s{LW}, s{LW}, {WR}
    ''')
    def dma_items(c):
        sl = c % NSLOT
        out = []
        for i in range(2):
            out.append(([f's_add_u32 m0, s{LW}, {sl*8192}', f's_mul_i32 s{T0}, s{S_ROT}, {64*2688}', f's_add_u32 s{T0}, s{T0}, s{SW}'] if i == 0 else []) +
                       [('vm', f'buffer_load_dwordx4 v{vw[i]}, {sr4(SRD_WQKV)}, s{T0} offen offset:{1024*i} lds', f'c{c}')])
        for i in range(4):
            out.append(([f's_add_u32 m0, s{LX}, {sl*4096}'] if i == 0 else []) +
                       ([f's_lshl_b32 s{T0}, s{S_ROT}, 7', f's_add_u32 s{T0}, s{T0}, s{SX}'] if i == 0 else []) +
                       ([f's_add_u32 s{T0}, s{T0}, 12288'] if i == 2 else []) +
                       [('vm', f'buffer_load_dwordx4 v{vx[i&1]}, {sr4(SRD_X)}, s{T0} offen offset:{1024*i} lds', f'c{c}')] +
                       ([f's_add_u32 s{S_ROT}, s{S_ROT}, 1', f's_cmp_eq_u32 s{S_ROT}, 7', f's_cselect_b32 s{S_ROT}, 0, s{S_ROT}'] if i == 3 else []))
        return out
    def dma(c):
        for it in dma_items(c):
            for x in it: a.emit(x)
    a.stamp('G_karg')
    NPRE = opt('npre', 2)
    a(f's_mov_b32 s{S_ROT}, ' + (f's{S_CB}' if opt('rot', 1) else '0'))
    for c in range(NPRE): dma(c)
    if opt('touchA', 0):
        HBv = opt('hb', 3); nl = {1: 2, 2: 3, 3: 4, 4: 7}[HBv]; ntok = 4096 >> HBv >> 0
        ntok = (32 >> HBv) * 128
        rows_x = ntok // 128
        a(f'''
        s_lshl_b32 s{T1}, s{S_J}, 2
        s_add_u32 s{T1}, s{T1}, s{S_W}
        s_lshr_b32 s{T2}, s{S_TB}, {5 - HBv}
        s_mul_i32 s{T2}, s{T2}, {ntok * 896}
        s_mul_i32 s{T0}, s{T1}, {rows_x * 896}
        s_add_u32 s{T0}, s{T0}, s{T2}
        ''')
        nx = rows_x * 7
        for i in range(0, nx, 64):
            a(xm(nx - i))
            a.vmem(f'buffer_load_dword a{1 + i // 64}, v{V_FL}, {sr4(SRD_X)}, s{T0} offen', 'touch')
            a(f's_add_u32 s{T0}, s{T0}, 8192')
        per = 4 * 3 * nl
        a(f'''
        s_mov_b64 exec, -1
        v_mul_u32_u24 v{t[3]}, {(65536 + nl - 1) // nl}, v{V_LANE}
        v_lshrrev_b32 v{t[3]}, 16, v{t[3]}
        v_mul_u32_u24 v{t[4]}, {nl}, v{t[3]}
        v_sub_u32 v{t[4]}, v{V_LANE}, v{t[4]}
        v_mul_u32_u24 v{t[3]}, 896, v{t[3]}
        v_lshl_add_u32 v{t[3]}, v{t[4]}, 7, v{t[3]}
        s_mul_i32 s{T0}, s{T1}, {4 * 2688}
        s_lshr_b32 s{T2}, s{S_H}, {HBv}
        s_mul_i32 s{T2}, s{T2}, {56 << HBv}
        s_and_b32 s{T2}, s{T2}, 0xffffff80
        s_add_u32 s{T0}, s{T0}, s{T2}
        {xm(per)}
        ''')
        a.vmem(f'buffer_load_dword a3, v{t[3]}, {sr4(SRD_WQKV)}, s{T0} offen', 'touch')
        a('s_mov_b64 exec, -1')
    a.stamp('G_dma0')
    assert T1 % 2 == 0 and T2 == T1 + 1
    a(f's_add_u32 s{T1}, s{P_WS}, {WS_FLG}\ns_addc_u32 s{T2}, s{P_WS+1}, 0\ns_load_dword s{S_TAG}, s[{T1}:{T2}], 0')
    srd(a, SRD_WS, P_WS, WS_SIZE)
    def touch_item():
        TA, TB, TC = T1, T2, T0
        return [f's_lshl_b32 s{TA}, s2, 2', f's_add_u32 s{TA}, s{TA}, s{S_W}', f's_mul_i32 s{TB}, s{TA}, 1338', f's_lshr_b32 s{TB}, s{TB}, 18',
                f's_mul_i32 s{TC}, s{TB}, 196', f's_sub_u32 s{TA}, s{TA}, s{TC}', f's_lshl_b32 s{TA}, s{TA}, 13',
                f's_cmp_eq_u32 s{TB}, 1', f's_cselect_b32 s{SRD_A}, s{P_W3}, s{P_W1}', f's_cselect_b32 s{SRD_A+1}, s{P_W3+1}, s{P_W1+1}',
                f's_cmp_eq_u32 s{TB}, 2', f's_cselect_b32 s{SRD_A}, s{P_W2}, s{SRD_A}', f's_cselect_b32 s{SRD_A+1}, s{P_W2+1}, s{SRD_A+1}',
                f's_mov_b32 s{SRD_A+2}, {W1_BYTES}',
                f's_cmp_eq_u32 s{TB}, 3', f's_cselect_b32 s{SRD_A}, s{P_WO}, s{SRD_A}', f's_cselect_b32 s{SRD_A+1}, s{P_WO+1}, s{SRD_A+1}',
                f's_cselect_b32 s{SRD_A+2}, {WO_BYTES}, s{SRD_A+2}',
                f's_cmp_gt_u32 s{TB}, 3', f's_cselect_b32 s{SRD_A+2}, 0, s{SRD_A+2}', f's_mov_b32 s{SRD_A+3}, 0x20000',
                ('vm', f'buffer_load_dword a0, v{V_FL}, {sr4(SRD_A)}, s{TA} offen', 'touch')]
    def dmaq_items():
        out = []
        for i in range(7):
            out.append([] +
                       [f's_add_u32 m0, s{S_U0}, {i*1024}', f's_mul_i32 s{T0}, s{S_U1}, {16*2688}', f's_add_u32 s{T0}, s{T0}, s{S_E0}',
                        ('vm', f'buffer_load_dwordx4 v{vq}, {sr4(SRD_WQKV)}, s{T0} offen lds', 'wq'),
                        f's_add_u32 s{S_U1}, s{S_U1}, 1', f's_cmp_eq_u32 s{S_U1}, 28', f's_cselect_b32 s{S_U1}, 0, s{S_U1}'])
        return out
    a(f'''
    s_mul_i32 s{S_U0}, s{S_W}, {7*1024}
    s_add_u32 s{S_U0}, s{S_U0}, {WQ}
    s_mul_i32 s{S_U1}, s{S_W}, 7
    s_lshl_b32 s{T0}, s{S_CB}, 2
    {'' if opt('rot', 1) else f's_mov_b32 s{T0}, 0'}
    s_add_u32 s{S_U1}, s{S_U1}, s{T0}
    s_cmp_ge_u32 s{S_U1}, 28
    s_cselect_b32 s{T0}, 28, 0
    s_sub_u32 s{S_U1}, s{S_U1}, s{T0}
    s_mul_i32 s{S_E0}, s{S_H}, 56
    ''')
    a(f'''
    v_lshrrev_b32 v{t[0]}, 2, v{V_LANE}
    v_mul_u32_u24 v{t[0]}, 2688, v{t[0]}
    v_and_b32 v{t[3]}, 3, v{V_LANE}
    v_lshl_add_u32 v{vq}, v{t[3]}, 4, v{t[0]}
    v_lshrrev_b32 v{t[0]}, 1, v{n31}
    v_and_b32 v{t[0]}, 7, v{t[0]}
    v_lshlrev_b32 v{t[1]}, 7, v{n31}
    v_add_u32 v{t[1]}, s{LX}, v{t[1]}
    v_bfe_u32 v{t[2]}, v{V_LANE}, 4, 1
    v_lshlrev_b32 v{t[2]}, 5, v{t[2]}
    v_lshl_add_u32 v{t[2]}, v{t[3]}, 3, v{t[2]}       ; cg*32 + c4*8
    v_bfe_u32 v{t[3]}, v{V_LANE}, 2, 2                ; r
    v_lshl_add_u32 v{t[5]}, v{hf}, 3, v{t[3]}         ; 8hf + r
    v_lshl_add_u32 v{t[6]}, v{t[5]}, 6, v{t[2]}
    v_bfe_u32 v{t[3]}, v{V_LANE}, 3, 1
    v_lshlrev_b32 v{t[3]}, 6, v{t[3]}                 ; 64*bit
    v_add_u32 v{t[4]}, 56, v{t[2]}
    v_xor_b32 v{t[4]}, v{t[4]}, v{t[3]}
    v_xor_b32 v{t[2]}, v{t[2]}, v{t[3]}
    v_sub_u32 v{dB}, v{t[4]}, v{t[2]}
    v_lshl_add_u32 v{t[2]}, v{t[5]}, 7, v{t[2]}
    v_add_u32 v{t[2]}, {WR}, v{t[2]}
    ''')
    AQ = t[6]
    for n in range(4):
        a(f'''
        s_add_u32 s{T0}, s{S_W}, {n}
        s_and_b32 s{T0}, s{T0}, 3
        s_lshl_b32 s{T1}, s{T0}, 1
        v_add_u32 v{t[4]}, s{T1}, v{hf}
        v_xor_b32 v{t[4]}, v{t[4]}, v{t[0]}
        v_lshl_add_u32 v{ax[n]}, v{t[4]}, 4, v{t[1]}
        s_lshl_b32 s{T1}, s{T0}, 11
        v_add_u32 v{aw[n]}, s{T1}, v{t[2]}
        v_add_u32 v{ab[n]}, v{dB}, v{aw[n]}
        ''')
    for r in sm + sq + cs: a(f'v_mov_b32 v{r}, 0')
    a(f's_mov_b32 s{S_ONES}, 0x3f803f80')
    mu = t[0]; rs = t[1]; rq = t[2]
    PA = ax[0]; CA = ax[1]; CR = ax[2]; PB = ax[3]
    def reads(s_):
        c, n = divmod(s_, 4); sl = c % NSLOT; b = s_ % NWF
        return [f'ds_read_b128 {vr(X[s_],4)}, v{ax[n]} offset:{sl*4096}'] + \
               [f'ds_read_b64_tr_b16 {vr(WF[b][0]+2*u,2)}, v{aw[n]} offset:{sl*8192 + u*512}' for u in range(2)] + \
               [f'ds_read_b64_tr_b16 {vr(WF[b][1]+2*u,2)}, v{ab[n]} offset:{sl*8192 + u*512}' for u in range(2)]
    a.stamp('A_issued')
    a.vmwait('c0', lgkm=0); a('s_barrier'); a.stamp('A_c0')
    a(f's_add_u32 s{S_TAG}, s{S_TAG}, 1')
    for x in reads(0) + reads(1): a(x)
    a(f's_bitcmp1_b32 s{S_H}, 0\ns_cbranch_scc1 LAV')
    vm0 = list(a.vm)
    for typ in range(2):
        if typ == 1:
            a.label('LAV'); a.vm = list(vm0)
        step = 0
        q_dma = []
        for c in range(NPRE, 7): q_dma += [(max(0, c - NSLOT + 1), it) for it in dma_items(c)]
        q_dma += [(0, it) for it in dmaq_items()]
        if opt('touch', 0): q_dma.insert(len(q_dma) - 7 + opt('touchpos', 0), (0, touch_item()))
        PER = opt('dmaper', 1)
        def side(c):
            for _ in range(PER):
                if q_dma and q_dma[0][0] <= c:
                    for x in q_dma.pop(0)[1]: a.emit(x)
        def dots(c):
            for n in range(4):
                x = X[4*c+n]
                for i in range(4):
                    a(f'v_dot2c_f32_bf16 v{sm[i&1]}, s{S_ONES}, v{x+i}')
                    a(f'v_dot2c_f32_bf16 v{sq[i&1]}, v{x+i}, v{x+i}')
                side(c + 1)
        for c in range(7):
            for n in range(4):
                b = step % NWF
                rd = []
                if step + 2 < 28:
                    if n == 2:
                        while q_dma and any(isinstance(x, tuple) and x[2] == f'c{c+1}' for _, it in q_dma for x in it):
                            assert q_dma[0][0] <= c
                            for x in q_dma.pop(0)[1]: a.emit(x)
                        a.stamp(f'G_pre{c+1}')
                        a.vmwait(f'c{c+1}', lgkm=0); a('s_barrier')
                        a.stamp(f'G_c{c+1}')
                    else:
                        a('s_waitcnt lgkmcnt(5)')
                    rd = reads(step + 2)
                else:
                    a(f's_waitcnt lgkmcnt({5*(27 - step)})')
                x = X[step]
                if n == 0:
                    for i in range(4):
                        for j in range(2): a(f'v_dot2c_f32_bf16 v{cs[1+j]}, s{S_ONES}, v{WF[b][j]+i}')
                for j in range(2):
                    A_, B_ = (WF[b][j], x) if typ == 0 else (x, WF[b][j])
                    a(f'{MFMA} {vr(ACC[j],16)}, {vr(A_,4)}, {vr(B_,4)}, {vr(ACC[j],16) if step else 0}')
                    for y in (rd[:3] if j == 0 else rd[3:]): a(y)
                    side(c + (1 if n >= 2 else 0))
                step += 1
            dots(c)
        while q_dma:
            for x in q_dma.pop(0)[1]: a.emit(x)
        a.stamp('A_kvloop')
        a(f'v_add_f32 v{sm[0]}, v{sm[0]}, v{sm[1]}\nv_add_f32 v{sq[0]}, v{sq[0]}, v{sq[1]}')
        halfsum(a, cs[1], t[3]); halfsum(a, cs[2], t[4])
        halfsum(a, sm[0], t[3]); halfsum(a, sq[0], t[4])
        a(f'''
        s_mul_i32 s{T0}, s{S_W}, 384
        s_add_u32 s{T0}, s{T0}, {CSP}
        v_lshlrev_b32 v{t[7]}, 2, v{n31}
        v_add_u32 v{CA}, s{T0}, v{t[7]}
        ds_write_b32 v{CA}, v{cs[1]} offset:128
        ds_write_b32 v{CA}, v{cs[2]} offset:256
        v_mul_f32 v{mu}, {fx(1.0/448)}, v{sm[0]}
        v_mul_f32 v{t[3]}, {fx(1.0/448)}, v{sq[0]}
        v_fma_f32 v{t[3]}, -v{mu}, v{mu}, v{t[3]}
        v_max_f32 v{t[3]}, 0, v{t[3]}
        v_add_f32 v{t[3]}, {fx(1e-5)}, v{t[3]}
        v_rsq_f32 v{rs}, v{t[3]}
        s_lshl_b32 s{T0}, s{S_W}, 9
        s_add_u32 s{T0}, s{T0}, {PRV}
        v_add_u32 v{PA}, s{T0}, v{t[7]}
        v_lshlrev_b32 v{PB}, 4, v{hf}
        v_add_u32 v{PB}, s{T0}, v{PB}
        ''')
        if typ == 1: a(f'ds_write_b32 v{PA}, v{mu} offset:256\nds_write_b32 v{PA}, v{rs} offset:384')
        a(f'''
        v_mul_u32_u24 v{CR}, 768, v{hf}
        v_add_u32 v{CR}, v{CR}, v{t[7]}
        v_add_u32 v{CR}, {CSP}, v{CR}
        v_mul_f32 v{rq}, {fx(28**-0.5 * math.log2(math.e))}, v{rs}
        s_lshl_b32 s{T0}, s{S_TB}, 2
        s_add_u32 s{T0}, s{T0}, s{S_W}
        s_and_b32 s{T1}, s{S_H}, 14
        s_lshl_b32 s{T1}, s{T1}, 6
        s_add_u32 s{T0}, s{T0}, s{T1}
        s_lshl_b32 s{T0}, s{T0}, 12
        s_add_u32 s{T1}, s{T0}, {64*4096}
        s_waitcnt lgkmcnt(0)
        s_barrier
        ''')
        for j in (1, 2):
            a(f'ds_read_b32 v{cs[j]}, v{CR} offset:{j*128}\nds_read_b32 v{t[3+j]}, v{CR} offset:{384 + j*128}')
        if typ == 1:
            for q in range(4):
                a(f'ds_read_b128 {vr(T16+4*q,4)}, v{PB} offset:{256 + 32*q}')
                a(f'ds_read_b128 {vr(U16+4*q,4)}, v{PB} offset:{384 + 32*q}')
            a(f'''
            v_cmp_eq_u32 vcc, 28, v{n31}
            v_mov_b32 v{t[7]}, s{S_ONES}
            v_cndmask_b32 v{t[7]}, 0, v{t[7]}, vcc
            v_cmp_lt_u32 vcc, 27, v{n31}
            s_waitcnt lgkmcnt(8)
            ''')
        else:
            a(f'v_cmp_lt_u32 vcc, 31, v{V_LANE}\ns_waitcnt lgkmcnt(0)')
        for j in (1, 2): a(f'v_add_f32 v{cs[j]}, v{cs[j]}, v{t[3+j]}')
        halfsum(a, cs[1], t[3]); halfsum(a, cs[2], t[4])
        if typ == 0:
            a(f'ds_write_b32 v{PA}, v{cs[1]}\nds_write_b32 v{PA}, v{cs[2]} offset:128\ns_waitcnt lgkmcnt(0)')
            for q in range(4): a(f'ds_read_b128 {vr(T16+4*q,4)}, v{PB} offset:{32*q}')
            for q in range(4): a(f'ds_read_b128 {vr(U16+4*q,4)}, v{PB} offset:{128 + 32*q}')
        for j in range(2):
            A_ = ACC[j]; P_ = WF[j][0]
            if typ == 0:
                a(f's_waitcnt lgkmcnt({4*(1-j)})')
                C_ = (T16, U16)[j]
                for r in range(16): a(f'v_fma_f32 v{A_+r}, -v{mu}, v{C_+r}, v{A_+r}')
                for r in range(16): a(f'v_mul_f32 v{A_+r}, v{A_+r}, v{rs}')
                for r in range(12, 16): a(f'v_cndmask_b32_e64 v{A_+r}, v{A_+r}, {"1.0" if r < 15 else "0"}, vcc')
                for i in range(8): a(f'v_cvt_pk_bf16_f32 v{P_+i}, v{A_+2*i}, v{A_+2*i+1}')
            else:
                if j == 0: a('s_waitcnt lgkmcnt(0)')
                for r in range(16): a(f'v_fma_f32 v{A_+r}, -v{T16+r}, v{cs[1+j]}, v{A_+r}')
                for r in range(0, 16, 2): a(f'v_pk_mul_f32 {vr(A_+r,2)}, {vr(A_+r,2)}, {vr(U16+r,2)}')
                for i in range(8): a(f'v_cvt_pk_bf16_f32 v{P_+i}, v{A_+2*i}, v{A_+2*i+1}')
                for i in range(8): a(f'v_cndmask_b32 v{P_+i}, v{P_+i}, v{t[7]}, vcc')
            for u in range(2):
                a.vmem(f'buffer_store_dwordx4 {vr(P_+4*u,4)}, v{V_OFF}, {sr4(SRD_WS)}, s{(T0, T1)[j]} offen offset:{2048*typ + 1024*u} sc1', 'stA')
        if typ == 0: a('s_branch LAQ')
    a.label('LAQ')
    a.stamp('A_kvst')
    aq = aw
    for n in range(4):
        a(f'''
        s_add_u32 s{T0}, s{S_W}, {n}
        s_and_b32 s{T0}, s{T0}, 3
        s_lshl_b32 s{T0}, s{T0}, 10
        s_add_u32 s{T0}, s{T0}, {WQ}
        v_add_u32 v{aq[n]}, s{T0}, v{AQ}
        ''')
    a.vmwait('wq'); a('s_barrier')
    QB = [ACC[0] + 4*i for i in range(8)]
    NQ = 8
    def rdq(s_):
        c, n = divmod(s_, 4)
        for u in range(2): a(f'ds_read_b64_tr_b16 {vr(QB[s_ % NQ]+2*u,2)}, v{aq[n]} offset:{c*4096 + u*256}')
    AH = 5
    for s_ in range(AH): rdq(s_)
    for s_ in range(28):
        if s_ + AH < 28:
            rdq(s_ + AH); a(f's_waitcnt lgkmcnt({2*AH})')
        else:
            a(f's_waitcnt lgkmcnt({2*(27 - s_)})')
        if s_ % 4 == 0:
            for i in range(4): a(f'v_dot2c_f32_bf16 v{cs[0]}, s{S_ONES}, v{QB[s_ % NQ]+i}')
        a(f'{MFMA} {vr(accQ,16)}, {vr(QB[s_ % NQ],4)}, {vr(X[s_],4)}, {vr(accQ,16) if s_ else 0}')
    halfsum(a, cs[0], t[4])
    a(f'ds_write_b32 v{CA}, v{cs[0]}')
    a(f'''
    s_lshr_b32 s{T0}, s{S_H}, 1
    s_lshl_b32 s{T0}, s{T0}, 2
    s_add_u32 s{T0}, s{T0}, s{S_W}
    s_lshl_b32 s{T0}, s{T0}, 12
    s_add_u32 s{T5}, s{T0}, {FL_A}
    s_and_b32 s{T1}, s{S_H}, 1
    s_lshl_b32 s{T1}, s{T1}, 4
    s_add_u32 s{T1}, s{T1}, s{S_TB}
    s_lshl_b32 s{T1}, s{T1}, 7
    s_add_u32 s{T0}, s{T5}, s{T1}
    ''')
    a.vmwait('stA')
    flag_store(a, T0, t[4])
    a.stamp('A_flag')
    a('s_waitcnt lgkmcnt(0)\ns_barrier')
    a(f'ds_read_b32 v{cs[0]}, v{CR}\nds_read_b32 v{t[4]}, v{CR} offset:384\ns_waitcnt lgkmcnt(0)')
    a(f'v_add_f32 v{cs[0]}, v{cs[0]}, v{t[4]}')
    halfsum(a, cs[0], t[4])
    a(f'ds_write_b32 v{PA}, v{cs[0]}\ns_waitcnt lgkmcnt(0)')
    for q in range(4): a(f'ds_read_b128 {vr(T16+4*q,4)}, v{PB} offset:{32*q}')
    a(f'v_cmp_lt_u32 vcc, 31, v{V_LANE}\ns_waitcnt lgkmcnt(0)')
    for r in range(16): a(f'v_fma_f32 v{accQ+r}, -v{mu}, v{T16+r}, v{accQ+r}')
    for r in range(16): a(f'v_mul_f32 v{accQ+r}, v{accQ+r}, v{rq}')
    for r in range(12, 16): a(f'v_cndmask_b32_e64 v{accQ+r}, v{accQ+r}, 0, vcc')
    for i in range(8): a(f'v_cvt_pk_bf16_f32 v{Q0+i}, v{accQ+2*i}, v{accQ+2*i+1}')

def w13_setup(a, S13, L13):
    a(f'''
    s_cmp_lt_u32 s{S_W}, 2
    s_cselect_b32 s{SRD_B}, s{P_W1}, s{P_W3}
    s_cselect_b32 s{SRD_B+1}, s{P_W1+1}, s{P_W3+1}
    s_mov_b32 s{SRD_B+2}, {W1_BYTES}
    s_mov_b32 s{SRD_B+3}, 0x20000
    s_and_b32 s{T0}, s{S_W}, 1
    s_mul_i32 s{S13}, s{T0}, {224*3584}
    s_mul_i32 s{T0}, s{S_FS}, 224
    s_add_u32 s{S13}, s{S13}, s{T0}
    s_mul_i32 s{L13}, s{S_W}, 14336
    ''')

def pair_dma(S13, L13, slot, col, i, tag):
    return [f's_add_u32 m0, s{L13}, {slot*PAIR + i*1024}',
            f's_add_u32 s{T0}, s{S13}, {col + i*16*3584}',
            ('vm', f'buffer_load_dwordx4 v{V_P13}, {sr4(SRD_B)}, s{T0} offen lds', tag)]

def alloc_b():
    va = VA(4, 212)
    KV = [va(16) for _ in range(3)]
    Q = [va(8) for _ in range(4)]
    O = [va(16) for _ in range(4)]
    S = [va(16), va(16)]
    P = [va(8), va(8)]
    t = [va() for _ in range(8)]
    v5 = va()
    return dict(KV=KV, Q=Q, O=O, S=S, P=P, t=t, v5=v5)

def phase_b(a, R):
    KV, Q, O, S, P, t, v5 = (R[k] for k in ('KV', 'Q', 'O', 'S', 'P', 't', 'v5'))
    QX = R['QX']
    S13, L13, SKV, SB = T3, T4, T6, T2
    qa = t[4:8]
    for lq in range(4):
        a(f'''
        s_add_u32 s{T0}, s{S_W}, {lq}
        s_and_b32 s{T0}, s{T0}, 3
        s_lshl_b32 s{T0}, s{T0}, 11
        s_add_u32 s{T0}, s{T0}, {QX}
        v_add_u32 v{qa[lq]}, s{T0}, v{V_OFF}
        ''')
    a(f'ds_write_b128 v{qa[0]}, {vr(Q[0],4)}')
    poll_issue(a, T5, V_FL, 32, t[0])
    w13_setup(a, S13, L13)
    a(f'''
    s_lshl_b32 s{T0}, s{S_E0}, 5
    s_add_u32 s{S13}, s{S13}, s{T0}
    s_and_b32 s{T0}, s{S_W}, 2
    v_and_b32 v{t[1]}, 3, v{V_LANE}
    v_xor_b32 v{t[1]}, s{T0}, v{t[1]}
    v_lshrrev_b32 v{t[2]}, 2, v{V_LANE}
    v_mul_u32_u24 v{t[2]}, 3584, v{t[2]}
    v_lshl_add_u32 v{V_P13}, v{t[1]}, 4, v{t[2]}
    s_lshl_b32 s{T0}, s{T0}, 1
    v_lshrrev_b32 v{t[1]}, 1, v{V_LANE}
    v_xor_b32 v{t[1]}, s{T0}, v{t[1]}
    v_mul_u32_u24 v{t[1]}, 3584, v{t[1]}
    v_and_b32 v{t[2]}, 1, v{V_LANE}
    v_lshl_add_u32 v{v5}, v{t[2]}, 4, v{t[1]}
    s_lshl_b32 s{SKV}, s{S_H}, 6
    s_add_u32 s{SKV}, s{SKV}, s{S_W}
    s_lshl_b32 s{SKV}, s{SKV}, 12
    s_sub_u32 s{SB}, s{S_TB}, 1
    s_waitcnt lgkmcnt(0)
    s_barrier
    ''')
    for lq in range(1, 4): a(f'ds_read_b128 {vr(Q[lq],4)}, v{qa[lq]}')
    spre = []; spre2 = []
    if opt('spre', 1):
        def ssrd(D, lim, pa, pb, na, nb, per):
            a(f'''
            s_lshl_b32 s{S_U0}, s2, 2
            s_add_u32 s{S_U0}, s{S_U0}, s{S_W}
            s_mov_b32 s{D+2}, {na}
            s_cmp_ge_u32 s{S_U0}, {lim}
            s_cselect_b32 s{D}, s{pb}, s{pa}
            s_cselect_b32 s{D+1}, s{pb+1}, s{pa+1}
            s_cselect_b32 s{D+2}, {nb}, s{D+2}
            s_cselect_b32 s{S_U1}, {lim}, 0
            s_sub_u32 s{S_U0}, s{S_U0}, s{S_U1}
            s_mul_i32 s{S_U0}, s{S_U0}, {per}
            s_min_u32 s{S_U0}, s{S_U0}, s{D+2}
            s_sub_u32 s{D+2}, s{D+2}, s{S_U0}
            s_add_u32 s{D}, s{D}, s{S_U0}
            s_addc_u32 s{D+1}, s{D+1}, 0
            s_mov_b32 s{D+3}, 0x20000
            ''')
        ld = lambda D, o: f's_buffer_load_dwordx2 s[{S_DUM}:{S_DUM+1}], {sr4(D)}, {o + 60}'
        ssrd(SRD_A, 512, P_W1, P_W3, W1_BYTES, W1_BYTES, 3200)
        ssrd(SRD_WQKV, 784, P_W2, P_WO, W2_BYTES, WO_BYTES, 2048)
        spre = [[ld(SRD_A, 128*i)] for i in range(25)]
        spre2 = [[ld(SRD_WQKV, 128*i)] for i in range(16)]
        a('s_waitcnt lgkmcnt(0)')
        for _ in range(opt('spre0', 7)): a(spre.pop(0)[0])
    a.stamp('B_pre')
    poll_check(a, T5, V_FL, 32, t[0])
    a.stamp('B_poll')
    def kvload(buf):
        return [f's_add_u32 s{SB}, s{SB}, 1', f's_and_b32 s{SB}, s{SB}, 15', f's_lshl_b32 s{T1}, s{SB}, 14', f's_add_u32 s{T1}, s{T1}, s{SKV}'] + \
               [('vm', f'buffer_load_dwordx4 {vr(KV[buf]+4*j,4)}, v{V_OFF}, {sr4(SRD_WS)}, s{T1} offen offset:{1024*j} sc1', f'k{buf}' if j < 2 else f'kv{buf}') for j in range(4)]
    for b in range(3):
        for x in kvload(b): a.emit(x)
    pre = []
    for g in range(7):
        for i in (2*g, 2*g + 1):
            pre.append(pair_dma(S13, L13, 0, 0, i, 'w13'))
            pre.append(pair_dma(S13, L13, 1, 64, i, 'w13'))
        pre.append([f's_add_u32 s{T0}, s{S13}, {128 + g*32*3584}',
                    ('vm', f'buffer_load_dwordx4 {vr(RAW5+4*g,4,"a")}, v{v5}, {sr4(SRD_B)}, s{T0} offen', 'w13')])
    a.vmwait('k0')
    a(f'{MFMA} {vr(S[0],16)}, {vr(KV[0],4)}, {vr(Q[0],4)}, 0')
    a(f'{MFMA} {vr(S[0],16)}, {vr(KV[0]+4,4)}, {vr(Q[0]+4,4)}, {vr(S[0],16)}')
    a(f'v_cmp_lt_u32 vcc, 31, v{V_LANE}')
    a(f'v_max3_f32 v{t[0]}, v{S[0]}, v{S[0]+1}, v{S[0]+2}\nv_max3_f32 v{t[1]}, v{S[0]+3}, v{S[0]+4}, v{S[0]+5}')
    for r in range(6, 14, 4):
        a(f'v_max3_f32 v{t[0]}, v{t[0]}, v{S[0]+r}, v{S[0]+r+1}\nv_max3_f32 v{t[1]}, v{t[1]}, v{S[0]+r+2}, v{S[0]+r+3}')
    a(f'''
    v_max3_f32 v{t[0]}, v{t[0]}, v{S[0]+14}, v{S[0]+15}
    v_max_f32 v{t[0]}, v{t[0]}, v{t[1]}
    v_mov_b32 v{t[1]}, v{t[0]}
    v_permlane32_swap_b32 v{t[0]}, v{t[1]}
    v_max_f32 v{t[0]}, v{t[0]}, v{t[1]}
    v_cvt_pk_bf16_f32 v{t[0]}, -v{t[0]}, 0
    v_cndmask_b32 v{Q[0]+6}, v{Q[0]+6}, v{t[0]}, vcc
    ds_write_b128 v{qa[0]}, {vr(Q[0]+4,4)} offset:1024
    v_lshlrev_b32 v{t[2]}, 16, v{t[0]}
    ''')
    assert t[2] % 2 == 0
    for r in range(0, 16, 2): a(f'v_pk_add_f32 {vr(S[0]+r,2)}, {vr(S[0]+r,2)}, {vr(t[2],2)} op_sel_hi:[1,0]')
    a('s_waitcnt lgkmcnt(0)\ns_barrier')
    for lq in range(1, 4): a(f'ds_read_b128 {vr(Q[lq]+4,4)}, v{qa[lq]} offset:1024')
    a.stamp('B_first')
    def slot(T, q, side):
        cb = q & 1; nb = cb ^ 1
        kvn, nq = (T % 3, q + 1) if q < 3 else ((T + 1) % 3, 0)
        kvp, pq = (T % 3, q - 1) if q else ((T - 1) % 3, 3)
        no_qk = (T == 15 and q == 3); no_pv = (T == 0 and q == 0); first = (T == 0 or (T == 1 and q == 0))
        M = [None if no_qk else f'{MFMA} {vr(S[nb],16)}, {vr(KV[kvn],4)}, {vr(Q[nq],4)}, 0',
             None if no_qk else f'{MFMA} {vr(S[nb],16)}, {vr(KV[kvn]+4,4)}, {vr(Q[nq]+4,4)}, {vr(S[nb],16)}',
             None if no_pv else f'{MFMA} {vr(O[pq],16)}, {vr(KV[kvp]+8,4)}, {vr(P[nb],4)}, {0 if first else vr(O[pq],16)}',
             None if no_pv else f'{MFMA} {vr(O[pq],16)}, {vr(KV[kvp]+12,4)}, {vr(P[nb]+4,4)}, {vr(O[pq],16)}']
        e = lambda r: f'v_exp_f32 v{S[cb]+r}, v{S[cb]+r}'
        c = lambda j: f'v_cvt_pk_bf16_f32 v{P[cb]+j}, v{S[cb]+2*j}, v{S[cb]+2*j+1}'
        seq = [M[0], e(0), e(1), e(2), c(0), e(3), e(4), M[1], c(1), e(5), e(6), c(2), e(7), e(8),
               M[2], c(3), e(9), e(10), c(4), e(11), e(12), M[3], c(5), e(13), e(14), e(15), c(6), c(7)]
        if T == 0 and q == 0: seq.insert(7, 's_waitcnt lgkmcnt(0)')
        side = list(side)
        per = (len(side) + 3) // 4
        for x in seq:
            if x is None: continue
            a(x)
            if x.startswith('v_mfma'):
                for y in side[:per]: a.emit(y)
                side = side[per:]
        for y in side: a.emit(y)
    for T in range(16):
        for q in range(4):
            side = []
            if q == 1 and T >= 1 and T + 2 <= 15: side = kvload((T + 2) % 3)
            elif pre and T >= opt('preT', 5): side = pre.pop(0)
            if (T, q) != (0, 0):
                for _ in range(opt('sper', 1)):
                    if spre: side = side + spre.pop(0)
                    elif spre2 and T >= opt('spre2T', 5): side = side + spre2.pop(0)
            if T == 0 and q == 1: a.vmwait('kv0')
            if q == 3 and T < 15: a.vmwait(f'kv{(T+1)%3}')
            slot(T, q, side)
    assert not pre and not spre and not spre2
    for lq in range(4):
        a(f'''
        s_add_u32 s{T0}, s{S_W}, {lq}
        s_and_b32 s{T0}, s{T0}, 3
        s_mul_i32 s{T0}, s{T0}, 12288
        s_add_u32 s{T0}, s{T0}, {SCR}
        v_add_u32 v{t[lq]}, s{T0}, v{V_OFF}
        ''')
    a(f'{MFMA} {vr(O[3],16)}, {vr(KV[0]+8,4)}, {vr(P[1],4)}, {vr(O[3],16)}')
    a(f'{MFMA} {vr(O[3],16)}, {vr(KV[0]+12,4)}, {vr(P[1]+4,4)}, {vr(O[3],16)}')
    a.stamp('B_loop')
    for lq in range(1, 4):
        for j in range(4): a(f'ds_write_b128 v{t[lq]}, {vr(O[lq]+4*j,4)} offset:{(lq-1)*4096 + j*1024}')
    a(f'''
    s_lshl_b32 s{T0}, s{S_TB}, 2
    s_add_u32 s{T0}, s{T0}, s{S_W}
    s_lshl_b32 s{T0}, s{T0}, 4
    s_add_u32 s{T0}, s{T0}, s{S_H}
    s_lshl_b32 s{T5}, s{T0}, 7
    s_add_u32 s{T5}, s{T5}, {FL_B}
    s_lshl_b32 s{T0}, s{T0}, 11
    s_add_u32 s{T0}, s{T0}, {WS_O}
    v_cmp_lt_u32 vcc, 31, v{V_LANE}
    s_waitcnt lgkmcnt(0)
    s_barrier
    ''')
    for lq in range(1, 4):
        for j in range(4): a(f'ds_read_b128 {vr(O[lq]+4*j,4)}, v{t[0]} offset:{(lq-1)*4096 + j*1024}')
    for lq in range(1, 4):
        a(f's_waitcnt lgkmcnt({4*(3-lq)})')
        for r in range(0, 16, 2): a(f'v_pk_add_f32 {vr(O[0]+r,2)}, {vr(O[0]+r,2)}, {vr(O[lq]+r,2)}')
    a(f'''
    v_mov_b32 v{t[0]}, v{O[0]+12}
    v_mov_b32 v{t[1]}, v{O[0]+12}
    v_permlane32_swap_b32 v{t[0]}, v{t[1]}
    v_rcp_f32 v{t[2]}, v{t[1]}
    ''')
    for r in range(0, 16, 2): a(f'v_pk_mul_f32 {vr(O[0]+r,2)}, {vr(O[0]+r,2)}, {vr(t[2],2)} op_sel_hi:[1,0]')
    for j in range(8): a(f'v_cvt_pk_bf16_f32 v{P[0]+j}, v{O[0]+2*j}, v{O[0]+2*j+1}')
    for j in (6, 7): a(f'v_cndmask_b32_e64 v{P[0]+j}, v{P[0]+j}, 0, vcc')
    for j in range(2):
        a.vmem(f'buffer_store_dwordx4 {vr(P[0]+4*j,4)}, v{V_OFF}, {sr4(SRD_WS)}, s{T0} offen offset:{1024*j} sc1', 'stB')
    a.stamp('B_st')

class Stager:
    def __init__(self, a): self.a = a; self.nl = 0; self.nt = 0; self.open = False
    def setup(self, t0, t1, t2, vw):
        a = self.a; self.vw = vw
        a(f'''
        v_lshrrev_b32 v{t0}, 3, v{V_LANE}
        v_lshrrev_b32 v{t1}, 2, v{V_LANE}
        v_and_b32 v{t1}, 4, v{t1}
        v_and_b32 v{t2}, 7, v{V_LANE}
        v_xor_b32 v{t1}, v{t1}, v{t2}
        v_mul_u32_u24 v{t0}, 896, v{t0}
        v_lshl_add_u32 v{V_SRC}, v{t1}, 4, v{t0}
        v_lshrrev_b32 v{t0}, 5, v{V_LANE}
        v_bfe_u32 v{t1}, v{V_LANE}, 2, 2
        v_lshl_add_u32 v{t0}, v{t0}, 2, v{t1}
        v_lshlrev_b32 v{t0}, 7, v{t0}
        v_bfe_u32 v{t1}, v{V_LANE}, 4, 1
        v_lshl_add_u32 v{t0}, v{t1}, 5, v{t0}
        v_and_b32 v{t1}, 3, v{V_LANE}
        v_lshl_add_u32 v{t0}, v{t1}, 3, v{t0}
        v_bfe_u32 v{t1}, v{V_LANE}, 3, 1
        s_lshr_b32 s{T0}, s{S_W}, 1
        v_xor_b32 v{t1}, s{T0}, v{t1}
        v_lshl_add_u32 v{t0}, v{t1}, 6, v{t0}
        s_lshl_b32 s{T0}, s{S_W}, 12
        s_add_u32 s{T0}, s{T0}, {SCR}
        v_add_u32 v{V_RD}, s{T0}, v{t0}
        v_xor_b32 v{V_RD+1}, 64, v{V_RD}
        v_add_u32 v{vw}, s{T0}, v{V_OFF}
        ''')
    def target(self, which):
        a = self.a
        srd(a, SRD_A, P_WO if which == 'wo' else P_W2, WO_BYTES if which == 'wo' else W2_BYTES)
        a(f's_mul_i32 s{S_U0}, s{S_W}, {(112 if which == "wo" else 448)*896}\ns_lshl_b32 s{T0}, s{S_CB}, 7\ns_add_u32 s{S_U0}, s{S_U0}, s{T0}')
    @staticmethod
    def base(g):
        if g < 2: return ('a', 224 + 16 * g)
        if g < 4: return ('v', WOV + 16 * (g - 2))
        return ('a', 16 * (g - 4))
    @staticmethod
    def dest(g, s_, lc):
        p, b = Stager.base(g); return p, b + (s_ * 2 + lc) * 4
    def load(self):
        a = self.a; g = self.nl; self.nl += 1
        if g == 0: self.target('wo')
        if g == 4: self.target('w2')
        row0 = 28 * g if g < 4 else 32 * (g - 4)
        p, b = self.base(g)
        for i in range(4):
            a(f's_add_u32 s{T0}, s{S_U0}, {(row0 + 8*i)*896}')
            a.vmem(f'buffer_load_dwordx4 {vr(b+4*i,4,p)}, v{V_SRC}, {sr4(SRD_A)}, s{T0} offen', f'hg{g}')
    def wr(self, u):
        a = self.a; g, s_ = divmod(u, 2); p, b = self.base(g)
        for i in range(2): a(f'ds_write_b128 v{self.vw}, {vr(b+8*s_+4*i,4,p)} offset:{2048*s_ + 1024*i}')
    def rd(self, u):
        a = self.a; g, s_ = divmod(u, 2); p, b = self.base(g)
        for lc in range(2):
            for uu in range(2):
                a(f'ds_read_b64_tr_b16 {vr(b+(s_*2+lc)*4+2*uu,2,p)}, v{V_RD+lc} offset:{s_*2048 + uu*1024}')
    def trans(self, last=False):
        a = self.a; g = self.nt; self.nt += 1
        a.vmwait(f'hg{g}', lgkm=0)
        self.wr(2*g)
        if self.open: self.rd(2*g - 1)
        a('s_waitcnt lgkmcnt(0)')
        self.wr(2*g + 1)
        self.rd(2*g)
        self.open = True
        if last: self.close()
    def close(self):
        if self.open:
            self.a('s_waitcnt lgkmcnt(0)'); self.rd(2*self.nt - 1); self.open = False

def red_addr(a, t):
    for l in range(4):
        a(f's_xor_b32 s{T0}, s{S_W}, {l}\ns_mul_i32 s{T0}, s{T0}, 12288\ns_add_u32 s{T0}, s{T0}, {SCR}\nv_add_u32 v{t[l]}, s{T0}, v{V_OFF}')
def red_write(a, ACC, t, l):
    for j in range(4): a(f'ds_write_b128 v{t[l]}, {vr(ACC[l]+4*j,4)} offset:{(l-1)*4096 + j*1024}')
def red_read(a, ACC, t):
    a('s_waitcnt lgkmcnt(0)\ns_barrier')
    for l in range(1, 4):
        for j in range(4): a(f'ds_read_b128 {vr(ACC[l]+4*j,4)}, v{t[0]} offset:{(l-1)*4096 + j*1024}')
    for l in range(1, 4):
        a(f's_waitcnt lgkmcnt({4*(3-l)})')
        for r in range(0, 16, 2): a(f'v_pk_add_f32 {vr(ACC[0]+r,2)}, {vr(ACC[0]+r,2)}, {vr(ACC[l]+r,2)}')

def put5(a, vt):
    a(f's_mul_i32 s{T0}, s{S_W}, 7168\ns_add_u32 s{T0}, s{T0}, {SINGLE}\nv_add_u32 v{vt}, s{T0}, v{V_OFF}')
    for g in range(7): a(f'ds_write_b128 v{vt}, {vr(RAW5+4*g,4,"a")} offset:{1024*g}')

def tile_ids(a, STT, SCT):
    a(f'''
    s_and_b32 s{STT}, s{S_W}, 1
    s_lshl_b32 s{T0}, s{S_RB}, 1
    s_add_u32 s{STT}, s{STT}, s{T0}
    s_lshr_b32 s{SCT}, s{S_W}, 1
    s_lshl_b32 s{T0}, s{S_CB}, 1
    s_add_u32 s{SCT}, s{SCT}, s{T0}
    ''')
def flag8_addr(a, vf, t0, t1, sdst, base):
    a(f'''
    v_lshrrev_b32 v{t0}, 2, v{V_LANE}
    v_lshlrev_b32 v{t0}, 11, v{t0}
    v_and_b32 v{t1}, 3, v{V_LANE}
    v_lshl_add_u32 v{vf}, v{t1}, 7, v{t0}
    s_lshl_b32 s{T0}, s{S_RB}, 3
    s_add_u32 s{T0}, s{T0}, s{S_W}
    s_lshl_b32 s{sdst}, s{T0}, 9
    s_add_u32 s{sdst}, s{sdst}, {base}
    ''')

def phase_c(a, R, stg):
    va = VA(4, 200)
    ACC = [va(16) for _ in range(4)]
    OF = [[va(4) for k in range(8)] for lt in range(2)]
    XR = va(8); t = [va() for _ in range(8)]; vx = va(); vf = va(); vw = va(); vp = va()
    STT, SCT = T1, T2
    stg.setup(t[0], t[1], t[2], vw)
    NB1 = opt('hgB', 9); NF = opt('hgBf', 4)
    for g in range(NF): stg.load()
    tile_ids(a, STT, SCT)
    a(f'''
    v_and_b32 v{t[0]}, 31, v{V_LANE}
    v_lshrrev_b32 v{t[1]}, 5, v{V_LANE}
    v_mul_u32_u24 v{t[0]}, 896, v{t[0]}
    v_lshl_add_u32 v{vx}, v{t[1]}, 3, v{t[0]}
    s_mul_i32 s{T6}, s{STT}, {32*896}
    s_lshl_b32 s{T0}, s{SCT}, 6
    s_add_u32 s{T6}, s{T6}, s{T0}
    ''')
    a.vmwait('stB')
    flag_store(a, T5, t[3])
    a.stamp('C_flag')
    for q in range(4):
        a.vmem(f'buffer_load_dwordx2 {vr(XR+2*q,2)}, v{vx}, {sr4(SRD_X)}, s{T6} offen offset:{16*q}', 'xr')
    flag8_addr(a, vf, t[0], t[1], T5, FL_B)
    for l in range(2):
        a(f'''
        s_xor_b32 s{T0}, s{STT}, {l}
        s_lshl_b32 s{T0}, s{T0}, 2
        s_add_u32 s{T0}, s{T0}, s{S_W}
        s_lshl_b32 s{T0}, s{T0}, 13
        s_add_u32 s{T3+l}, s{T0}, {WS_O}
        ''')
    a('s_barrier')
    NT1 = NB1 - opt('trB', 2)
    for g in range(NT1):
        if stg.nl < NB1: stg.load()
        if g == NT1 - opt('pollB', 2): poll_issue(a, T5, vf, 8, vp)
        stg.trans()
    a.vmwait('xr')
    for j in range(8):
        a(f'v_lshlrev_b32 v{ACC[0]+2*j}, 16, v{XR+j}\nv_and_b32 v{ACC[0]+2*j+1}, 0xffff0000, v{XR+j}')
    a.stamp('C_pre')
    poll_check(a, T5, vf, 8, vp)
    a.stamp('C_poll')
    for k in range(8):
        if k == 4: a(f's_add_u32 s{T3}, s{T3}, 4096\ns_add_u32 s{T4}, s{T4}, 4096')
        for l in range(2):
            a.vmem(f'buffer_load_dwordx4 {vr(OF[l][k],4)}, v{V_OFF}, {sr4(SRD_WS)}, s{T3+l} offen offset:{1024*(k&3)} sc1', f'o{k}')
    while stg.nt < NB1: stg.trans()
    stg.close()
    red_addr(a, t)
    a(f'''
    s_mul_i32 s{T6}, s{STT}, 14
    s_add_u32 s{T6}, s{T6}, s{SCT}
    s_lshl_b32 s{T5}, s{STT}, 4
    s_add_u32 s{T5}, s{T5}, s{SCT}
    s_lshl_b32 s{T5}, s{T5}, 7
    s_add_u32 s{T5}, s{T5}, {FL_C}
    s_waitcnt lgkmcnt(0)
    s_barrier
    ''')
    def mm(k, l):
        p, b = stg.dest(k >> 1, k & 1, l >> 1)
        a(f'{MFMA} {vr(ACC[l],16)}, {vr(b,4,p)}, {vr(OF[l & 1][k],4)}, {vr(ACC[l],16) if (k or l == 0) else 0}')
    KT = 5
    for k in range(KT):
        a.vmwait(f'o{k}')
        for l in range(4): mm(k, l)
    for l in (1, 2, 3, 0):
        for k in range(KT, 8):
            if l == 1: a.vmwait(f'o{k}')
            mm(k, l)
        if l in (2, 3): red_write(a, ACC, t, l - 1)
    a.stamp('C_mfma')
    red_write(a, ACC, t, 3)
    red_read(a, ACC, t)
    for j in range(8): a(f'v_cvt_pk_bf16_f32 v{HKEEP+j}, v{ACC[0]+2*j}, v{ACC[0]+2*j+1}')
    a(f's_lshl_b32 s{T0}, s{T6}, 11\ns_add_u32 s{T0}, s{T0}, {WS_H}')
    for j in range(2):
        a.vmem(f'buffer_store_dwordx4 {vr(HKEEP+4*j,4)}, v{V_OFF}, {sr4(SRD_WS)}, s{T0} offen offset:{1024*j} sc1', 'stC')
    for i in range(4): a(f'v_mov_b32 v{t[4+i]}, 0')
    for j in range(8):
        a(f'v_dot2c_f32_bf16 v{t[4+(j&1)]}, s{S_ONES}, v{HKEEP+j}')
        a(f'v_dot2c_f32_bf16 v{t[6+(j&1)]}, v{HKEEP+j}, v{HKEEP+j}')
    a(f'''
    v_add_f32 v{t[4]}, v{t[4]}, v{t[5]}
    v_add_f32 v{t[6]}, v{t[6]}, v{t[7]}
    v_permlane32_swap_b32 v{t[4]}, v{t[6]}
    v_add_f32 v{t[4]}, v{t[4]}, v{t[6]}
    v_lshlrev_b32 v{t[5]}, 2, v{V_LANE}
    s_lshl_b32 s{T0}, s{T6}, 8
    s_add_u32 s{T0}, s{T0}, {WS_ST}
    ''')
    a.vmem(f'buffer_store_dword v{t[4]}, v{t[5]}, {sr4(SRD_WS)}, s{T0} offen sc1', 'stC')
    a.stamp('C_st')
    nfree = 4 + RAW5 // 16
    NF2 = min(nfree, NB1 + opt('hgCf', 4))
    while stg.nl < NF2: stg.load()
    a('s_barrier')
    put5(a, t[0])
    a.vmwait('stC')
    flag_store(a, T5, t[3])
    a.stamp('C_flag2')
    a('s_waitcnt lgkmcnt(0)')
    NTP = 18 - opt('trC', 1) - opt('pollC', 2)
    while stg.nt < NTP:
        if stg.nl < 18: stg.load()
        stg.trans()
    while stg.nl < 18: stg.load()

def phase_d(a, R, stg):
    va = VA(4, 212)
    X = [va(4) for _ in range(28)]
    ACC = [va(16) for _ in range(4)]
    HP = va(4)
    t = [va(2) for _ in range(4)]
    mu = va(2)
    vl = [va() for _ in range(5)]
    vp = va(); vs = va()
    W = [va(4) for _ in range(2)] + [WOV + 4*i for i in range(8)]
    NW = len(W)
    ST = ACC[3]
    E = [t[0], t[0]+1, t[1], t[1]+1, t[2], t[2]+1, t[3], t[3]+1]
    STT = T6; SH = T5; S13, L13 = T3, T4
    w13_setup(a, S13, L13)
    a(f'''
    s_lshl_b32 s{T0}, s{S_L0}, 5
    s_add_u32 s{S13}, s{S13}, s{T0}
    s_lshl_b32 s{STT}, s{S_TD}, 2
    s_add_u32 s{STT}, s{STT}, s{S_W}
    s_lshl_b32 s{T2}, s{STT}, 11
    s_add_u32 s{T2}, s{T2}, {FL_C}
    v_bfe_u32 v{t[0]}, v{V_LANE}, 4, 1                 ; cg
    v_lshrrev_b32 v{t[1]}, 5, v{V_LANE}                ; hf
    v_bfe_u32 v{t[3]}, v{V_LANE}, 2, 2                 ; r
    v_and_b32 v{mu}, 3, v{V_LANE}
    v_lshlrev_b32 v{mu}, 3, v{mu}                      ; c4*8
    v_xor_b32 v{t[2]}, v{t[0]}, v{t[1]}
    v_lshl_add_u32 v{t[2]}, v{t[2]}, 2, v{t[3]}
    v_lshl_add_u32 v{t[2]}, v{t[2]}, 5, v{mu}
    v_mul_u32_u24 v{vl[4]}, 14336, v{t[0]}
    v_add_u32 v{vl[4]}, v{vl[4]}, v{t[2]}
    v_add_u32 v{vl[4]}, {SINGLE}, v{vl[4]}
    v_lshl_add_u32 v{t[2]}, v{t[1]}, 2, v{t[3]}
    v_lshl_add_u32 v{t[2]}, v{t[2]}, 6, v{mu}
    v_mul_u32_u24 v{t[0]}, {28672 + 32}, v{t[0]}
    v_add_u32 v{vl[0]}, v{t[0]}, v{t[2]}
    v_xor_b32 v{vl[1]}, 32, v{vl[0]}
    v_add_u32 v{vl[2]}, {PAIR}, v{vl[0]}
    v_add_u32 v{vl[3]}, {PAIR}, v{vl[1]}
    v_and_b32 v{t[0]}, 31, v{V_LANE}
    v_mul_u32_u24 v{t[1]}, {7*256}, v{t[1]}
    v_lshl_add_u32 v{vs}, v{t[0]}, 2, v{t[1]}
    s_mul_i32 s{T1}, s{STT}, {14*256}
    s_add_u32 s{T1}, s{T1}, {WS_ST}
    s_mul_i32 s{SH}, s{STT}, {28*1024}
    s_add_u32 s{SH}, s{SH}, {WS_H}
    ''')
    NTP = 18 - opt('trC', 1)
    poll_issue(a, T2, V_FL, 14, vp)
    Ls = a.newlabel('skip')
    a(f's_cmp_ge_u32 s{S_J}, 28\ns_cbranch_scc1 {Ls}')
    while stg.nt < NTP: stg.trans()
    a.label(Ls)
    a.stamp('D_pre')
    rest = [x for x in a.vm if x.startswith('hg')]
    poll_check(a, T2, V_FL, 14, vp)
    a.stamp('D_poll')
    for c in range(7):
        a.vmem(f'buffer_load_dword v{ST+2*c}, v{vs}, {sr4(SRD_WS)}, s{T1} offen offset:{256*c} sc1', 'st')
        a.vmem(f'buffer_load_dword v{ST+2*c+1}, v{vs}, {sr4(SRD_WS)}, s{T1} offen offset:{256*c+128} sc1', 'st')
    SX_ = S_SPIN + 1
    a(f's_mov_b32 s{SX_}, s{SH}')
    def ldx(k):
        if k and k % 4 == 0: a(f's_add_u32 s{SX_}, s{SX_}, 4096')
        a.vmem(f'buffer_load_dwordx4 {vr(X[k],4)}, v{V_OFF}, {sr4(SRD_WS)}, s{SX_} offen offset:{1024*(k&3)} sc1', f'x{k}')
    XLA = opt('xla', 10)
    for k in range(XLA): ldx(k)
    a(f's_or_b32 s{T0}, s2, s{S_W}\ns_cmp_lg_u32 s{T0}, 0\ns_cselect_b32 s{T0}, 0x40000000, {WS_FLG}')
    flag_store(a, T0, t[0])
    a.stamp('F_issued')
    Ls = a.newlabel('skip')
    a(f's_cmp_ge_u32 s{S_J}, 28\ns_cbranch_scc1 {Ls}')
    while stg.nt < 18: stg.trans()
    stg.close()
    a.label(Ls)
    SE = T5; SL = T1; SF = T2
    a(f'''
    s_mul_i32 s{SE}, s{STT}, 112
    s_mul_i32 s{T0}, s{S_FS}, 7
    s_add_u32 s{SE}, s{SE}, s{T0}
    s_add_u32 s{SL}, s{SE}, s{S_L0}
    s_add_u32 s{SE}, s{SE}, s{S_E0}
    s_lshl_b32 s{SE}, s{SE}, 10
    s_add_u32 s{SE}, s{SE}, {WS_HH}
    s_lshl_b32 s{SL}, s{SL}, 10
    s_add_u32 s{SL}, s{SL}, {WS_HH}
    s_add_u32 s{S_U1}, s{SE}, 4096
    s_lshl_b32 s{SF}, s{STT}, 4
    s_add_u32 s{SF}, s{SF}, s{S_FS}
    s_lshl_b32 s{SF}, s{SF}, 7
    s_add_u32 s{SF}, s{SF}, {FL_D1}
    s_waitcnt lgkmcnt(0)
    s_barrier
    ''')
    seq = [(j, k) for k in range(28) for j in (0, 1, 4)] + [(j, k) for j in (2, 3, 5, 6) for k in range(28)]
    def rdW(n):
        j, k = seq[n]
        if j == 4: return [f'ds_read_b64_tr_b16 {vr(W[n % NW]+2*u,2)}, v{vl[4]} offset:{k*512 + u*256}' for u in range(2)]
        return [f'ds_read_b64_tr_b16 {vr(W[n % NW]+2*u,2)}, v{vl[{0:0,1:1,2:2,3:3,5:0,6:1}[j]]} offset:{k*1024 + u*512}' for u in range(2)]
    AH = opt('ah', 6); assert AH + 2 <= NW and 2 * AH <= 15
    a.stamp('F_bar')
    for n in range(AH):
        for x in rdW(n): a(x)
    a.vmwait('st')
    a(f'v_add_f32 v{t[0]}, v{ST}, v{ST+2}\nv_add_f32 v{t[1]}, v{ST+1}, v{ST+3}')
    for c in range(2, 7):
        a(f'v_add_f32 v{t[0]}, v{t[0]}, v{ST+2*c}\nv_add_f32 v{t[1]}, v{t[1]}, v{ST+2*c+1}')
    halfsum(a, t[0], t[2]); halfsum(a, t[1], t[3])
    a(f'''
    v_mul_f32 v{t[0]}, {fx(1/448)}, v{t[0]}
    v_mul_f32 v{t[1]}, {fx(1/448)}, v{t[1]}
    v_fma_f32 v{t[1]}, -v{t[0]}, v{t[0]}, v{t[1]}
    v_max_f32 v{t[1]}, 0, v{t[1]}
    v_add_f32 v{t[1]}, {fx(1e-5)}, v{t[1]}
    v_rsq_f32 v{mu}, v{t[1]}
    s_mov_b32 s{S_U0}, 0xffff0000
    v_mul_f32 v{mu+1}, v{t[0]}, v{mu}
    v_sub_f32 v{mu+1}, 0, v{mu+1}
    ''')
    def norm(k):
        out = []
        for i in range(4): out += [f'v_lshlrev_b32 v{t[i]}, 16, v{X[k]+i}', f'v_and_b32 v{t[i]+1}, s{S_U0}, v{X[k]+i}']
        for i in range(4): out += [f'v_pk_fma_f32 {vr(t[i],2)}, {vr(t[i],2)}, {vr(mu,2)}, {vr(mu,2)} op_sel:[0,0,1] op_sel_hi:[1,0,1]']
        for i in range(4): out += [f'v_cvt_pk_bf16_f32 v{X[k]+i}, v{t[i]}, v{t[i]+1}']
        return out
    acc_of = {0: 0, 1: 1, 4: 2, 2: 3, 3: 0, 5: 1, 6: 2}
    def epi(j):
        A = ACC[acc_of[j]]
        out = []
        for r in range(8): out.append(f'v_mul_f32 v{E[r]}, s{S_U0}, v{A+r}')
        for r in range(8): out.append(f'v_exp_f32 v{E[r]}, v{E[r]}')
        for r in range(0, 8, 2): out.append(f'v_pk_mul_f32 {vr(A+r,2)}, {vr(A+r,2)}, {vr(A+8+r,2)}')
        for r in range(8): out.append(f'v_add_f32 v{E[r]}, 1.0, v{E[r]}')
        for r in range(8): out.append(f'v_rcp_f32 v{E[r]}, v{E[r]}')
        for r in range(0, 8, 2): out.append(f'v_pk_mul_f32 {vr(A+r,2)}, {vr(A+r,2)}, {vr(E[r],2)}')
        for i in range(4): out.append(f'v_cvt_pk_bf16_f32 v{HP+i}, v{A+2*i}, v{A+2*i+1}')
        sreg, off = (SE, 1024*j) if j < 4 else ((S_U1, 0) if j == 4 else (SL, 1024*(j-5)))
        out.append(('vm', f'buffer_store_dwordx4 {vr(HP,4)}, v{V_OFF}, {sr4(SRD_WS)}, s{sreg} offen offset:{off} sc1', f'hh{j}'))
        return out
    a.stamp('F_stats')
    a.vmwait('x0')
    a.stamp('F_x0')
    for x in norm(0): a(x)
    pend = []; late = []
    R['vfE'] = vs; R['vpE'] = vp
    B1TAG = {3: 'hh4', 4: 'hh2'}[opt('b1', 3)]
    for n, (j, k) in enumerate(seq):
        nn = n + AH
        if nn < len(seq) and seq[nn] == (5, 0):
            a.vmwait('late'); a('s_barrier')
        rd = rdW(nn) if nn < len(seq) else []
        if n % 2 == 0:
            left = min(len(seq), n + AH) - (n + 2)
            a(f's_waitcnt lgkmcnt({max(0, 2*left)})')
        A = ACC[acc_of[j]]
        a(f'{MFMA} {vr(A,16)}, {vr(W[n % NW],4)}, {vr(X[k],4)}, {vr(A,16) if k else 0}')
        for x in rd: a(x)
        if n < 84 and j == 0 and k in (4, 8, 12, 16, 20, 24): a.stamp(f'F_k{k}')
        if n >= 84 and k == 27: a.stamp(f'F_t{j}')
        if n < 84:
            if j == 0 and k + 1 < 28:
                a.vmwait(f'x{k+1}'); pend = norm(k + 1)
            if j == 1 and k + XLA < 28: ldx(k + XLA)
            take = 6 if j < 2 else 4
            for x in pend[:take]: a(x)
            pend = pend[take:]
            if n == 83:
                a.stamp('D_st1')
                a(f's_mov_b32 s{S_U0}, {fx(-math.log2(math.e))}\ns_barrier')
                late = [pair_dma(S13, L13, 0, 0, i, 'late') for i in range(14)]
        else:
            if n == 84 + 2: pend = epi(0) + epi(1) + epi(4) + epi(2) + epi(3) + epi(5); done = 0; tot = len(pend); one = tot // 6
            if n >= 84 + 2:
                want = min(tot, (n - 85) * tot // 108 + 1)
                lim = {2: 3, 3: 3 + (k >= 2), 5: 4 + (k >= 2), 6: 5 + (k >= 2)}[j] * one
                while done < min(want, lim):
                    a.emit(pend.pop(0)); done += 1
                if k == 27:
                    need = {2: 1, 3: 2, 5: 3, 6: 6}[j] * one
                    while done < need:
                        a.emit(pend.pop(0)); done += 1
            if late and k % opt('latestep', 2) == 0:
                for x in late.pop(0): a.emit(x)
            if j == 6 and k == opt('f1k', 4):
                a.vmwait(B1TAG); flag_store(a, SF, vp)
            if j == 6 and k == opt('p1k', 20):
                flag8_addr(a, vs, vp, vl[4], S_SPIN + 1, FL_D1)
                poll_issue(a, S_SPIN + 1, vs, 8, vp)
    a.stamp('D_loop')
    for x in epi(6): a.emit(x)
    a.stamp('D_epi')
    R['SF'] = SF

def phase_e(a, R, stg):
    va = VA(4, 199)
    ACC = [va(16) for _ in range(4)]
    NB = 16
    BUF = [[va(4) for l in range(2)] for d in range(NB)]
    vf = R['vfE']; vp = R['vpE']
    t = [204, 205, 206, 207]; vt = 208
    assert vf >= va.n and vp >= va.n and vf < 204 and vp < 204
    STT, SCT = T1, T3
    SP = S_SPIN + 1
    tile_ids(a, STT, SCT)
    a(f's_mul_i32 s{T4}, s{S_W}, {28*1024}')
    for l in range(2):
        a(f'''
        s_xor_b32 s{T0}, s{STT}, {l}
        s_mul_i32 s{T0}, s{T0}, {112*1024}
        s_add_u32 s{T0}, s{T0}, s{T4}
        s_add_u32 s{S_U0+l}, s{T0}, {WS_HH}
        ''')
    e0 = lambda f: 2 if f == 2 else 0
    l0 = lambda f: 0 if f == 2 else 5
    B1 = opt('b1', 3)
    early = (0, 1, 4, 2, 3)
    order = [7*f + e0(f) + j for j in early[:B1] for f in range(4)] + [7*f + e0(f) + j for j in early[B1:] for f in range(4)] + \
            [7*f + l0(f) + j for j in range(2) for f in range(4)]
    assert sorted(order) == list(range(28))
    N1 = 4 * B1
    a(f's_add_u32 s{T6}, s{R["SF"]}, {FL_D2 - FL_D1}')
    poll_check(a, SP, vf, 8, vp)
    a.stamp('E_poll1')
    a(f's_add_u32 s{SP}, s{SP}, {FL_D2 - FL_D1}')
    st = dict(nxt=0)
    FL2 = opt('efl', 6); PI = opt('epoll', N1 - 2)
    def ld():
        n = st['nxt']; st['nxt'] += 1
        if n == FL2:
            a.vmwait('hh6'); flag_store(a, T6, vt)
        if n == PI: poll_issue(a, SP, vf, 8, vp)
        if n == N1:
            a.stamp('E_pre2'); poll_check(a, SP, vf, 8, vp); a.stamp('E_poll2')
        ks = order[n]
        for l in range(2):
            a(f's_add_u32 s{T0}, s{S_U0+l}, {(ks >> 2) * 4096}')
            a.vmem(f'buffer_load_dwordx4 {vr(BUF[n % NB][l],4)}, v{V_OFF}, {sr4(SRD_WS)}, s{T0} offen offset:{1024*(ks&3)} sc1', f'h{n}')
    LA = opt('ela', 8)
    for n in range(LA): ld()
    for j in range(8):
        a(f'v_lshlrev_b32 v{ACC[0]+2*j}, 16, v{HKEEP+j}\nv_and_b32 v{ACC[0]+2*j+1}, 0xffff0000, v{HKEEP+j}')
    red_addr(a, t)
    def mm(n, l):
        ks = order[n]
        p, b = stg.dest(4 + (ks >> 1), ks & 1, l >> 1)
        a(f'{MFMA} {vr(ACC[l],16)}, {vr(b,4,p)}, {vr(BUF[n % NB][l & 1],4)}, {vr(ACC[l],16) if (n or l == 0) else 0}')
    KT = 28 - opt('etail', 4)
    for n in range(KT):
        a.vmwait(f'h{n}')
        for l in range(4): mm(n, l)
        for _ in range(2 if st['nxt'] - n < NB - 1 and n >= opt('egrow', 2) else 1):
            if st['nxt'] < 28 and st['nxt'] - NB <= n: ld()
    assert st['nxt'] == 28
    for l in (1, 2, 3, 0):
        for n in range(KT, 28):
            if l == 1: a.vmwait(f'h{n}')
            mm(n, l)
        if l in (2, 3): red_write(a, ACC, t, l - 1)
    a.stamp('E_mfma')
    red_write(a, ACC, t, 3)
    srd(a, SRD_A, P_OUT, X_BYTES)
    a(f'''
    v_and_b32 v{vf}, 31, v{V_LANE}
    v_lshrrev_b32 v{vp}, 5, v{V_LANE}
    v_mul_u32_u24 v{vf}, 896, v{vf}
    v_lshl_add_u32 v{vf}, v{vp}, 4, v{vf}
    s_mul_i32 s{T0}, s{STT}, {32*896}
    s_lshl_b32 s{T2}, s{SCT}, 6
    s_add_u32 s{T0}, s{T0}, s{T2}
    ''')
    red_read(a, ACC, t)
    PKR = ACC[1]
    for j in range(8): a(f'v_cvt_pk_bf16_f32 v{PKR+j}, v{ACC[0]+2*j}, v{ACC[0]+2*j+1}')
    for g in (0, 4):
        a(f'v_permlane32_swap_b32 v{PKR+g}, v{PKR+g+2}\nv_permlane32_swap_b32 v{PKR+g+1}, v{PKR+g+3}')
    a(f'buffer_store_dwordx4 {vr(PKR,4)}, v{vf}, {sr4(SRD_A)}, s{T0} offen')
    a(f'buffer_store_dwordx4 {vr(PKR+4,4)}, v{vf}, {sr4(SRD_A)}, s{T0} offen offset:32')
    a.stamp('E_st')

def gen():
    a = K()
    a.stamp('rt0', True); a.stamp('t0')
    HB = opt('hb', 3)
    a(f'''
    s_cmp_ge_u32 s2, 256
    s_cbranch_scc1 Lend
    s_load_dwordx16 s[32:47], s[0:1], 0
    s_load_dwordx2 s[50:51], s[0:1], 72
    v_lshrrev_b32 v2, 6, v0
    v_and_b32 v{V_LANE}, 63, v0
    v_readfirstlane_b32 s{S_W}, v2
    v_lshlrev_b32 v{V_OFF}, 4, v{V_LANE}
    v_lshlrev_b32 v{V_FL}, 7, v{V_LANE}
    s_and_b32 s{T0}, s2, 7
    s_lshr_b32 s{S_J}, s2, 3
    s_and_b32 s{S_H}, s{T0}, {(16 >> HB) - 1}
    s_lshl_b32 s{S_H}, s{S_H}, {HB}
    s_and_b32 s{T1}, s{S_J}, {(1 << HB) - 1}
    s_add_u32 s{S_H}, s{S_H}, s{T1}
    s_lshr_b32 s{S_TB}, s{T0}, {4 - HB}
    s_lshl_b32 s{S_TB}, s{S_TB}, {5 - HB}
    s_lshr_b32 s{T1}, s{S_J}, {HB}
    s_add_u32 s{S_TB}, s{S_TB}, s{T1}
    s_mul_i32 s{T1}, s{S_J}, 9363
    s_lshr_b32 s{T1}, s{T1}, 16
    s_mul_i32 s{T2}, s{T1}, 7
    s_sub_u32 s{S_CB}, s{S_J}, s{T2}
    s_lshl_b32 s{S_RB}, s{T0}, 2
    s_add_u32 s{S_RB}, s{S_RB}, s{T1}
    s_and_b32 s{S_TD}, s{T0}, 1
    s_lshl_b32 s{S_TD}, s{S_TD}, 3
    s_and_b32 s{T1}, s{S_J}, 7
    s_add_u32 s{S_TD}, s{S_TD}, s{T1}
    s_lshr_b32 s{S_FS}, s{T0}, 1
    s_lshl_b32 s{S_FS}, s{S_FS}, 2
    s_lshr_b32 s{T1}, s{S_J}, 3
    s_add_u32 s{S_FS}, s{S_FS}, s{T1}
    ''')
    R = alloc_b()
    phase_a(a, R)
    a(f'''
    s_and_b32 s{T0}, s{S_FS}, 3
    s_cmp_eq_u32 s{T0}, 2
    s_cselect_b32 s{S_E0}, 2, 0
    s_cselect_b32 s{S_L0}, 0, 5
    ''')
    phase_b(a, R)
    stg = Stager(a)
    a(f's_cmp_ge_u32 s{S_J}, 28\ns_cbranch_scc1 LnoC')
    phase_c(a, R, stg)
    a('s_branch LD')
    vm_c = list(a.vm)
    a.label('LnoC')
    a.vmall()
    flag_store(a, T5, 4)
    a('s_barrier')
    put5(a, 5)
    a.label('LD')
    a.vm = vm_c
    phase_d(a, R, stg)
    a(f's_cmp_ge_u32 s{S_J}, 28\ns_cbranch_scc0 LE')
    a(f's_waitcnt vmcnt(0)\ns_add_u32 s{T0}, s{R["SF"]}, {FL_D2 - FL_D1}')
    vm_d = list(a.vm)
    flag_store(a, T0, 4)
    a('s_branch Lfin')
    a.label('LE')
    a.vm = vm_d
    phase_e(a, R, stg)
    a.label('Lfin')
    if STAMP:
        a('s_waitcnt vmcnt(0)')
        a.stamp('end'); a.stamp('rt1', True)
        a(f's_waitcnt lgkmcnt(0)\ns_lshl_b32 s{T0}, s2, 2\ns_add_u32 s{T0}, s{T0}, s{S_W}\ns_lshl_b32 s{T0}, s{T0}, 7\ns_add_u32 s{T0}, s{T0}, {WS_DBG}\nv_mov_b32 v4, 0')
        for i in range(a.nst):
            a(f'v_mov_b32 v5, s{60+2*i}\nbuffer_store_dword v5, v4, {sr4(SRD_WS)}, s{T0} offen offset:{4*i}')
    a.label('Lend')
    a('s_endpgm')
    a.finalize()
    head = open('sequential_preLN__mha_block__glu_gated_swiglu__prompt.s.ref').read().split('; Override')[0]
    s = head + f'; @launch grid=(256,1,1) block=(256,1,1) lds={LDS_BYTES}\n'
    s += f'.amdgcn_target "amdgcn-amd-amdhsa--gfx950"\n.text\n.globl {NAME}\n.p2align 8\n.type {NAME},@function\n{NAME}:\n' + a.text()
    s += f'''.section .rodata,"a"
.p2align 6
.amdhsa_kernel {NAME}
  .amdhsa_next_free_vgpr 512
  .amdhsa_next_free_sgpr 102
  .amdhsa_accum_offset 256
  .amdhsa_group_segment_fixed_size 0
  .amdhsa_kernarg_size 80
  .amdhsa_user_sgpr_count 2
  .amdhsa_user_sgpr_kernarg_segment_ptr 1
  .amdhsa_system_sgpr_workgroup_id_x 1
.end_amdhsa_kernel
'''
    if STAMP: s = '; STAMPS ' + ' '.join(a.names) + '\n' + s
    print(f'instrs={len(a.ins)} nop_states={a.nops} stamps={a.nst}', file=sys.stderr)
    return s

if __name__ == '__main__':
    open(sys.argv[1], 'w').write(gen())
```

```python
import sys, struct, math, os
from asmgen import Asm

NAME = 'sequential_preLN__mha_block__glu_gated_swiglu__prompt_kernel'
MB = 1 << 20
WS_KV  = 0
WS_O   = 4 * MB
WS_H   = 6 * MB
WS_ST  = 8 * MB
WS_HH  = 9 * MB
WS_FLG = 16 * MB
FL_A = WS_FLG + 0x10000
FL_B = FL_A + 1024 * 128
FL_C = FL_B + 1024 * 128
FL_D1 = FL_C + 1024 * 128
FL_D2 = FL_D1 + 1024 * 128
WS_DBG = 17 * MB
WS_SIZE = 18 * MB

X_BYTES = 2048 * 448 * 2
WQKV_BYTES = 448 * 1344 * 2
WO_BYTES = 448 * 448 * 2
W1_BYTES = 448 * 1792 * 2
W2_BYTES = 1792 * 448 * 2
LDS_BYTES = 163840
MFMA = 'v_mfma_f32_32x32x16_bf16'
STAMP = int(os.environ.get('STAMP', '0'))
OPT = dict(kv.split('=') for kv in os.environ.get('OPT', '').split(',') if kv)
def opt(k, d): return int(OPT.get(k, d))

def f2u(x): return struct.unpack('<I', struct.pack('<f', x))[0]
def fx(x): return hex(f2u(x))
def vr(b, n=1, p='v'): return f'{p}[{b}:{b+n-1}]' if n > 1 else f'{p}{b}'
def sr4(b): return f's[{b}:{b+3}]'

class VA:
    def __init__(self, start, limit): self.n = start; self.limit = limit
    def __call__(self, cnt=1, align=None):
        if align is None: align = 1 if cnt == 1 else (2 if cnt == 2 else 4)
        self.n = (self.n + align - 1) // align * align
        b = self.n; self.n += cnt
        assert self.n <= self.limit, f'out of registers {self.n} > {self.limit}'
        return b

class K(Asm):
    def __init__(self):
        super().__init__(); self.vm = []; self.nst = 0; self.nlab = 0; self.names = []
    def vmem(self, text, tag):
        self(text); self.vm.append(tag)
    def vmwait(self, *tags, lgkm=None):
        idx = [i for i, t in enumerate(self.vm) if t in tags]
        s = ''
        if idx:
            n = len(self.vm) - 1 - max(idx)
            s += f' vmcnt({min(n, 63)})'
            self.vm = self.vm[len(self.vm) - n:] if n else []
        if lgkm is not None: s += f' lgkmcnt({lgkm})'
        if s: self('s_waitcnt' + s)
    def vmall(self):
        self('s_waitcnt vmcnt(0)'); self.vm = []
    def emit(self, x):
        if isinstance(x, tuple):
            if x[0] == 'vm': self.vmem(x[1], x[2])
            elif x[0] == 'wait': self.vmwait(*x[1:])
            elif x[0] == 'call': x[1]()
        else: self(x)
    def stamp(self, name='', real=False):
        if not STAMP: return
        if name and name[0] in 'ABCDEFG' and name[0] not in os.environ.get('STAMPSET', 'AB'): return
        if name in self.names:
            i = self.names.index(name)
        else:
            i = self.nst; self.nst += 1; self.names.append(name)
        assert i < 19
        self(f's_mem{"real" if real else ""}time s[{60+2*i}:{61+2*i}]')
    def newlabel(self, p):
        self.nlab += 1; return f'L{p}{self.nlab}'

S_W = 3
SRD_X = 4; SRD_WQKV = 8; SRD_WS = 12; SRD_A = 16; SRD_B = 20
P_X, P_WQKV, P_WO, P_W1, P_W3, P_W2, P_OUT, P_WS = 32, 34, 36, 40, 42, 44, 46, 50
S_TAG = 24; S_H = 25; S_TB = 26; S_RB = 27; S_CB = 28; S_TD = 29; S_FS = 30; S_J = 31
S_E0 = 38; S_L0 = 39
S_U0 = 48; S_U1 = 49
S_ONES = 52
T0, T1, T2, T3, T4, T5, T6 = 53, 54, 55, 56, 57, 58, 59
S_SPIN = 98
S_ROT = 39
S_DUM = 100
V_LANE = 1; V_OFF = 2; V_FL = 3
V_SRC = 212; V_P13 = 213; V_RD = 214
HKEEP = 216
WOV = 224
PAIR = 57344; SCR = 2 * PAIR; SINGLE = SCR + 16384
RAW5 = 196

def xm(n):
    if n >= 64: return 's_mov_b64 exec, -1'
    if n < 31: return f's_mov_b64 exec, {hex((1 << n) - 1)}'
    lo = '-1' if n >= 32 else hex((1 << n) - 1)
    return f's_mov_b32 exec_lo, {lo}\ns_mov_b32 exec_hi, {hex((1 << max(0, n - 32)) - 1)}'

def srd(a, d, p, nbytes):
    a(f's_mov_b32 s{d}, s{p}\ns_mov_b32 s{d+1}, s{p+1}\ns_mov_b32 s{d+2}, {nbytes}\ns_mov_b32 s{d+3}, 0x20000')

def halfsum(a, x, t):
    a(f'v_mov_b32 v{t}, v{x}\nv_permlane32_swap_b32 v{x}, v{t}\nv_add_f32 v{x}, v{x}, v{t}')

def flag_store(a, sreg, vt):
    a(f'v_mov_b32 v{vt}, s{S_TAG}\ns_mov_b64 exec, 1')
    a.vmem(f'buffer_store_dword v{vt}, v{V_OFF}, {sr4(SRD_WS)}, s{sreg} offen sc1', 'flag')
    a('s_mov_b64 exec, -1')

def poll_issue(a, sreg, vaddr, nl, vt):
    a(xm(nl))
    a.vmem(f'buffer_load_dword v{vt}, v{vaddr}, {sr4(SRD_WS)}, s{sreg} offen sc1', 'poll')
    a('s_mov_b64 exec, -1')

def poll_check(a, sreg, vaddr, nl, vt):
    L = a.newlabel('poll'); D = L + 'd'
    a(xm(nl) + f'\ns_mov_b32 s{S_SPIN}, 0x40000')
    a.vmwait('poll')
    a(f'v_cmp_ne_u32 vcc, s{S_TAG}, v{vt}\ns_cbranch_vccz {D}')
    a.label(L)
    a(f'''
    s_sleep {opt('sleep', 2)}
    buffer_load_dword v{vt}, v{vaddr}, {sr4(SRD_WS)}, s{sreg} offen sc1
    s_sub_u32 s{S_SPIN}, s{S_SPIN}, 1
    s_waitcnt vmcnt(0)
    s_cbranch_scc1 {D}
    v_cmp_ne_u32 vcc, s{S_TAG}, v{vt}
    s_cbranch_vccnz {L}
    ''')
    a.label(D)
    a('s_mov_b64 exec, -1')

def phase_a(a, R):
    NSLOT = 5
    WR = 81920
    WQ = WR + NSLOT * 8192
    CSP = WQ + 28672
    PRV = CSP + 1536
    QX = 155648
    assert PRV + 2048 <= QX
    R['QX'] = QX
    Q0 = R['Q'][0]
    va = VA(4, 256)
    ACC = [va(16), va(16)]; accQ = va(16)
    PK = va(8); assert PK == Q0, (PK, Q0)
    X = [va(4) for _ in range(28)]
    NWF = 4
    WF = [[va(4) for j in range(2)] for b in range(NWF)]
    vx = [va(), va()]; vw = [va(), va()]; vq = va()
    ax = [va() for _ in range(4)]; aw = [va() for _ in range(4)]; ab = [va() for _ in range(4)]
    sm = [va(), va()]; sq = [va(), va()]; cs = [va(), va(), va()]
    t = [va() for _ in range(8)]
    hf = va(); n31 = va(); dB = va()
    assert va.n <= 240, va.n
    T16 = 240; U16 = accQ
    a(f'v_lshrrev_b32 v{hf}, 5, v{V_LANE}\nv_and_b32 v{n31}, 31, v{V_LANE}')
    for i in range(2):
        a(f'''
        v_lshrrev_b32 v{t[0]}, 3, v{V_LANE}
        v_add_u32 v{t[0]}, {8*i}, v{t[0]}
        v_lshrrev_b32 v{t[1]}, 1, v{t[0]}
        v_and_b32 v{t[1]}, 7, v{t[1]}
        v_and_b32 v{t[2]}, 7, v{V_LANE}
        v_xor_b32 v{t[1]}, v{t[1]}, v{t[2]}
        v_lshlrev_b32 v{t[1]}, 4, v{t[1]}
        v_mul_u32_u24 v{t[0]}, 896, v{t[0]}
        v_add_u32 v{vx[i]}, v{t[0]}, v{t[1]}
        ''')
    a(f'''
    v_subrev_u32 v{vx[1]}, 1024, v{vx[1]}
    v_lshrrev_b32 v{t[0]}, 3, v{V_LANE}
    v_lshrrev_b32 v{t[1]}, 2, v{V_LANE}
    v_and_b32 v{t[1]}, 4, v{t[1]}
    v_xor_b32 v{t[1]}, v{t[1]}, v{t[2]}
    v_min_u32 v{t[1]}, 6, v{t[1]}
    v_mul_u32_u24 v{t[0]}, 2688, v{t[0]}
    v_lshl_add_u32 v{vw[0]}, v{t[1]}, 4, v{t[0]}
    v_add_u32 v{vw[1]}, {8*2688 - 1024}, v{vw[0]}
    s_waitcnt lgkmcnt(0)
    ''')
    srd(a, SRD_X, P_X, X_BYTES); srd(a, SRD_WQKV, P_WQKV, WQKV_BYTES)
    SX, SW, LX, LW = T3, T4, T5, T6
    a(f'''
    s_lshl_b32 s{SX}, s{S_TB}, 2
    s_add_u32 s{SX}, s{SX}, s{S_W}
    s_mul_i32 s{SX}, s{SX}, {32*896}
    s_mul_i32 s{SW}, s{S_W}, {16*2688}
    s_lshr_b32 s{T0}, s{S_H}, 1
    s_mul_i32 s{T0}, s{T0}, 112
    s_add_u32 s{SW}, s{SW}, s{T0}
    s_and_b32 s{T0}, s{S_H}, 1
    s_mul_i32 s{T0}, s{T0}, 896
    s_add_u32 s{SW}, s{SW}, s{T0}
    s_add_u32 s{SW}, s{SW}, 896
    s_mul_i32 s{LX}, s{S_W}, 20480
    s_lshl_b32 s{LW}, s{S_W}, 11
    s_add_u32 s{LW}, s{LW}, {WR}
    ''')
    def dma_items(c):
        sl = c % NSLOT
        out = []
        for i in range(2):
            out.append(([f's_add_u32 m0, s{LW}, {sl*8192}', f's_mul_i32 s{T0}, s{S_ROT}, {64*2688}', f's_add_u32 s{T0}, s{T0}, s{SW}'] if i == 0 else []) +
                       [('vm', f'buffer_load_dwordx4 v{vw[i]}, {sr4(SRD_WQKV)}, s{T0} offen offset:{1024*i} lds', f'c{c}')])
        for i in range(4):
            out.append(([f's_add_u32 m0, s{LX}, {sl*4096}'] if i == 0 else []) +
                       ([f's_lshl_b32 s{T0}, s{S_ROT}, 7', f's_add_u32 s{T0}, s{T0}, s{SX}'] if i == 0 else []) +
                       ([f's_add_u32 s{T0}, s{T0}, 12288'] if i == 2 else []) +
                       [('vm', f'buffer_load_dwordx4 v{vx[i&1]}, {sr4(SRD_X)}, s{T0} offen offset:{1024*i} lds', f'c{c}')] +
                       ([f's_add_u32 s{S_ROT}, s{S_ROT}, 1', f's_cmp_eq_u32 s{S_ROT}, 7', f's_cselect_b32 s{S_ROT}, 0, s{S_ROT}'] if i == 3 else []))
        return out
    def dma(c):
        for it in dma_items(c):
            for x in it: a.emit(x)
    a.stamp('G_karg')
    NPRE = opt('npre', 2)
    a(f's_mov_b32 s{S_ROT}, ' + (f's{S_CB}' if opt('rot', 1) else '0'))
    for c in range(NPRE): dma(c)
    if opt('touchA', 0):
        HBv = opt('hb', 3); nl = {1: 2, 2: 3, 3: 4, 4: 7}[HBv]; ntok = 4096 >> HBv >> 0
        ntok = (32 >> HBv) * 128
        rows_x = ntok // 128
        a(f'''
        s_lshl_b32 s{T1}, s{S_J}, 2
        s_add_u32 s{T1}, s{T1}, s{S_W}
        s_lshr_b32 s{T2}, s{S_TB}, {5 - HBv}
        s_mul_i32 s{T2}, s{T2}, {ntok * 896}
        s_mul_i32 s{T0}, s{T1}, {rows_x * 896}
        s_add_u32 s{T0}, s{T0}, s{T2}
        ''')
        nx = rows_x * 7
        for i in range(0, nx, 64):
            a(xm(nx - i))
            a.vmem(f'buffer_load_dword a{1 + i // 64}, v{V_FL}, {sr4(SRD_X)}, s{T0} offen', 'touch')
            a(f's_add_u32 s{T0}, s{T0}, 8192')
        per = 4 * 3 * nl
        a(f'''
        s_mov_b64 exec, -1
        v_mul_u32_u24 v{t[3]}, {(65536 + nl - 1) // nl}, v{V_LANE}
        v_lshrrev_b32 v{t[3]}, 16, v{t[3]}
        v_mul_u32_u24 v{t[4]}, {nl}, v{t[3]}
        v_sub_u32 v{t[4]}, v{V_LANE}, v{t[4]}
        v_mul_u32_u24 v{t[3]}, 896, v{t[3]}
        v_lshl_add_u32 v{t[3]}, v{t[4]}, 7, v{t[3]}
        s_mul_i32 s{T0}, s{T1}, {4 * 2688}
        s_lshr_b32 s{T2}, s{S_H}, {HBv}
        s_mul_i32 s{T2}, s{T2}, {56 << HBv}
        s_and_b32 s{T2}, s{T2}, 0xffffff80
        s_add_u32 s{T0}, s{T0}, s{T2}
        {xm(per)}
        ''')
        a.vmem(f'buffer_load_dword a3, v{t[3]}, {sr4(SRD_WQKV)}, s{T0} offen', 'touch')
        a('s_mov_b64 exec, -1')
    a.stamp('G_dma0')
    assert T1 % 2 == 0 and T2 == T1 + 1
    a(f's_add_u32 s{T1}, s{P_WS}, {WS_FLG}\ns_addc_u32 s{T2}, s{P_WS+1}, 0\ns_load_dword s{S_TAG}, s[{T1}:{T2}], 0')
    srd(a, SRD_WS, P_WS, WS_SIZE)
    def touch_item():
        TA, TB, TC = T1, T2, T0
        return [f's_lshl_b32 s{TA}, s2, 2', f's_add_u32 s{TA}, s{TA}, s{S_W}', f's_mul_i32 s{TB}, s{TA}, 1338', f's_lshr_b32 s{TB}, s{TB}, 18',
                f's_mul_i32 s{TC}, s{TB}, 196', f's_sub_u32 s{TA}, s{TA}, s{TC}', f's_lshl_b32 s{TA}, s{TA}, 13',
                f's_cmp_eq_u32 s{TB}, 1', f's_cselect_b32 s{SRD_A}, s{P_W3}, s{P_W1}', f's_cselect_b32 s{SRD_A+1}, s{P_W3+1}, s{P_W1+1}',
                f's_cmp_eq_u32 s{TB}, 2', f's_cselect_b32 s{SRD_A}, s{P_W2}, s{SRD_A}', f's_cselect_b32 s{SRD_A+1}, s{P_W2+1}, s{SRD_A+1}',
                f's_mov_b32 s{SRD_A+2}, {W1_BYTES}',
                f's_cmp_eq_u32 s{TB}, 3', f's_cselect_b32 s{SRD_A}, s{P_WO}, s{SRD_A}', f's_cselect_b32 s{SRD_A+1}, s{P_WO+1}, s{SRD_A+1}',
                f's_cselect_b32 s{SRD_A+2}, {WO_BYTES}, s{SRD_A+2}',
                f's_cmp_gt_u32 s{TB}, 3', f's_cselect_b32 s{SRD_A+2}, 0, s{SRD_A+2}', f's_mov_b32 s{SRD_A+3}, 0x20000',
                ('vm', f'buffer_load_dword a0, v{V_FL}, {sr4(SRD_A)}, s{TA} offen', 'touch')]
    def dmaq_items():
        out = []
        for i in range(7):
            out.append([] +
                       [f's_add_u32 m0, s{S_U0}, {i*1024}', f's_mul_i32 s{T0}, s{S_U1}, {16*2688}', f's_add_u32 s{T0}, s{T0}, s{S_E0}',
                        ('vm', f'buffer_load_dwordx4 v{vq}, {sr4(SRD_WQKV)}, s{T0} offen lds', 'wq'),
                        f's_add_u32 s{S_U1}, s{S_U1}, 1', f's_cmp_eq_u32 s{S_U1}, 28', f's_cselect_b32 s{S_U1}, 0, s{S_U1}'])
        return out
    a(f'''
    s_mul_i32 s{S_U0}, s{S_W}, {7*1024}
    s_add_u32 s{S_U0}, s{S_U0}, {WQ}
    s_mul_i32 s{S_U1}, s{S_W}, 7
    s_lshl_b32 s{T0}, s{S_CB}, 2
    {'' if opt('rot', 1) else f's_mov_b32 s{T0}, 0'}
    s_add_u32 s{S_U1}, s{S_U1}, s{T0}
    s_cmp_ge_u32 s{S_U1}, 28
    s_cselect_b32 s{T0}, 28, 0
    s_sub_u32 s{S_U1}, s{S_U1}, s{T0}
    s_mul_i32 s{S_E0}, s{S_H}, 56
    ''')
    a(f'''
    v_lshrrev_b32 v{t[0]}, 2, v{V_LANE}
    v_mul_u32_u24 v{t[0]}, 2688, v{t[0]}
    v_and_b32 v{t[3]}, 3, v{V_LANE}
    v_lshl_add_u32 v{vq}, v{t[3]}, 4, v{t[0]}
    v_lshrrev_b32 v{t[0]}, 1, v{n31}
    v_and_b32 v{t[0]}, 7, v{t[0]}
    v_lshlrev_b32 v{t[1]}, 7, v{n31}
    v_add_u32 v{t[1]}, s{LX}, v{t[1]}
    v_bfe_u32 v{t[2]}, v{V_LANE}, 4, 1
    v_lshlrev_b32 v{t[2]}, 5, v{t[2]}
    v_lshl_add_u32 v{t[2]}, v{t[3]}, 3, v{t[2]}       ; cg*32 + c4*8
    v_bfe_u32 v{t[3]}, v{V_LANE}, 2, 2                ; r
    v_lshl_add_u32 v{t[5]}, v{hf}, 3, v{t[3]}         ; 8hf + r
    v_lshl_add_u32 v{t[6]}, v{t[5]}, 6, v{t[2]}
    v_bfe_u32 v{t[3]}, v{V_LANE}, 3, 1
    v_lshlrev_b32 v{t[3]}, 6, v{t[3]}                 ; 64*bit
    v_add_u32 v{t[4]}, 56, v{t[2]}
    v_xor_b32 v{t[4]}, v{t[4]}, v{t[3]}
    v_xor_b32 v{t[2]}, v{t[2]}, v{t[3]}
    v_sub_u32 v{dB}, v{t[4]}, v{t[2]}
    v_lshl_add_u32 v{t[2]}, v{t[5]}, 7, v{t[2]}
    v_add_u32 v{t[2]}, {WR}, v{t[2]}
    ''')
    AQ = t[6]
    for n in range(4):
        a(f'''
        s_add_u32 s{T0}, s{S_W}, {n}
        s_and_b32 s{T0}, s{T0}, 3
        s_lshl_b32 s{T1}, s{T0}, 1
        v_add_u32 v{t[4]}, s{T1}, v{hf}
        v_xor_b32 v{t[4]}, v{t[4]}, v{t[0]}
        v_lshl_add_u32 v{ax[n]}, v{t[4]}, 4, v{t[1]}
        s_lshl_b32 s{T1}, s{T0}, 11
        v_add_u32 v{aw[n]}, s{T1}, v{t[2]}
        v_add_u32 v{ab[n]}, v{dB}, v{aw[n]}
        ''')
    for r in sm + sq + cs: a(f'v_mov_b32 v{r}, 0')
    a(f's_mov_b32 s{S_ONES}, 0x3f803f80')
    mu = t[0]; rs = t[1]; rq = t[2]
    PA = ax[0]; CA = ax[1]; CR = ax[2]; PB = ax[3]
    def reads(s_):
        c, n = divmod(s_, 4); sl = c % NSLOT; b = s_ % NWF
        return [f'ds_read_b128 {vr(X[s_],4)}, v{ax[n]} offset:{sl*4096}'] + \
               [f'ds_read_b64_tr_b16 {vr(WF[b][0]+2*u,2)}, v{aw[n]} offset:{sl*8192 + u*512}' for u in range(2)] + \
               [f'ds_read_b64_tr_b16 {vr(WF[b][1]+2*u,2)}, v{ab[n]} offset:{sl*8192 + u*512}' for u in range(2)]
    a.stamp('A_issued')
    a.vmwait('c0', lgkm=0); a('s_barrier'); a.stamp('A_c0')
    a(f's_add_u32 s{S_TAG}, s{S_TAG}, 1')
    for x in reads(0) + reads(1): a(x)
    a(f's_bitcmp1_b32 s{S_H}, 0\ns_cbranch_scc1 LAV')
    vm0 = list(a.vm)
    for typ in range(2):
        if typ == 1:
            a.label('LAV'); a.vm = list(vm0)
        step = 0
        q_dma = []
        for c in range(NPRE, 7): q_dma += [(max(0, c - NSLOT + 1), it) for it in dma_items(c)]
        q_dma += [(0, it) for it in dmaq_items()]
        if opt('touch', 0): q_dma.insert(len(q_dma) - 7 + opt('touchpos', 0), (0, touch_item()))
        PER = opt('dmaper', 1)
        def side(c):
            for _ in range(PER):
                if q_dma and q_dma[0][0] <= c:
                    for x in q_dma.pop(0)[1]: a.emit(x)
        def dots(c):
            for n in range(4):
                x = X[4*c+n]
                for i in range(4):
                    a(f'v_dot2c_f32_bf16 v{sm[i&1]}, s{S_ONES}, v{x+i}')
                    a(f'v_dot2c_f32_bf16 v{sq[i&1]}, v{x+i}, v{x+i}')
                side(c + 1)
        for c in range(7):
            for n in range(4):
                b = step % NWF
                rd = []
                if step + 2 < 28:
                    if n == 2:
                        while q_dma and any(isinstance(x, tuple) and x[2] == f'c{c+1}' for _, it in q_dma for x in it):
                            assert q_dma[0][0] <= c
                            for x in q_dma.pop(0)[1]: a.emit(x)
                        a.stamp(f'G_pre{c+1}')
                        a.vmwait(f'c{c+1}', lgkm=0); a('s_barrier')
                        a.stamp(f'G_c{c+1}')
                    else:
                        a('s_waitcnt lgkmcnt(5)')
                    rd = reads(step + 2)
                else:
                    a(f's_waitcnt lgkmcnt({5*(27 - step)})')
                x = X[step]
                if n == 0:
                    for i in range(4):
                        for j in range(2): a(f'v_dot2c_f32_bf16 v{cs[1+j]}, s{S_ONES}, v{WF[b][j]+i}')
                for j in range(2):
                    A_, B_ = (WF[b][j], x) if typ == 0 else (x, WF[b][j])
                    a(f'{MFMA} {vr(ACC[j],16)}, {vr(A_,4)}, {vr(B_,4)}, {vr(ACC[j],16) if step else 0}')
                    for y in (rd[:3] if j == 0 else rd[3:]): a(y)
                    side(c + (1 if n >= 2 else 0))
                step += 1
            dots(c)
        while q_dma:
            for x in q_dma.pop(0)[1]: a.emit(x)
        a.stamp('A_kvloop')
        a(f'v_add_f32 v{sm[0]}, v{sm[0]}, v{sm[1]}\nv_add_f32 v{sq[0]}, v{sq[0]}, v{sq[1]}')
        halfsum(a, cs[1], t[3]); halfsum(a, cs[2], t[4])
        halfsum(a, sm[0], t[3]); halfsum(a, sq[0], t[4])
        a(f'''
        s_mul_i32 s{T0}, s{S_W}, 384
        s_add_u32 s{T0}, s{T0}, {CSP}
        v_lshlrev_b32 v{t[7]}, 2, v{n31}
        v_add_u32 v{CA}, s{T0}, v{t[7]}
        ds_write_b32 v{CA}, v{cs[1]} offset:128
        ds_write_b32 v{CA}, v{cs[2]} offset:256
        v_mul_f32 v{mu}, {fx(1.0/448)}, v{sm[0]}
        v_mul_f32 v{t[3]}, {fx(1.0/448)}, v{sq[0]}
        v_fma_f32 v{t[3]}, -v{mu}, v{mu}, v{t[3]}
        v_max_f32 v{t[3]}, 0, v{t[3]}
        v_add_f32 v{t[3]}, {fx(1e-5)}, v{t[3]}
        v_rsq_f32 v{rs}, v{t[3]}
        s_lshl_b32 s{T0}, s{S_W}, 9
        s_add_u32 s{T0}, s{T0}, {PRV}
        v_add_u32 v{PA}, s{T0}, v{t[7]}
        v_lshlrev_b32 v{PB}, 4, v{hf}
        v_add_u32 v{PB}, s{T0}, v{PB}
        ''')
        if typ == 1: a(f'ds_write_b32 v{PA}, v{mu} offset:256\nds_write_b32 v{PA}, v{rs} offset:384')
        a(f'''
        v_mul_u32_u24 v{CR}, 768, v{hf}
        v_add_u32 v{CR}, v{CR}, v{t[7]}
        v_add_u32 v{CR}, {CSP}, v{CR}
        v_mul_f32 v{rq}, {fx(28**-0.5 * math.log2(math.e))}, v{rs}
        s_lshl_b32 s{T0}, s{S_TB}, 2
        s_add_u32 s{T0}, s{T0}, s{S_W}
        s_and_b32 s{T1}, s{S_H}, 14
        s_lshl_b32 s{T1}, s{T1}, 6
        s_add_u32 s{T0}, s{T0}, s{T1}
        s_lshl_b32 s{T0}, s{T0}, 12
        s_add_u32 s{T1}, s{T0}, {64*4096}
        s_waitcnt lgkmcnt(0)
        s_barrier
        ''')
        for j in (1, 2):
            a(f'ds_read_b32 v{cs[j]}, v{CR} offset:{j*128}\nds_read_b32 v{t[3+j]}, v{CR} offset:{384 + j*128}')
        if typ == 1:
            for q in range(4):
                a(f'ds_read_b128 {vr(T16+4*q,4)}, v{PB} offset:{256 + 32*q}')
                a(f'ds_read_b128 {vr(U16+4*q,4)}, v{PB} offset:{384 + 32*q}')
            a(f'''
            v_cmp_eq_u32 vcc, 28, v{n31}
            v_mov_b32 v{t[7]}, s{S_ONES}
            v_cndmask_b32 v{t[7]}, 0, v{t[7]}, vcc
            v_cmp_lt_u32 vcc, 27, v{n31}
            s_waitcnt lgkmcnt(8)
            ''')
        else:
            a(f'v_cmp_lt_u32 vcc, 31, v{V_LANE}\ns_waitcnt lgkmcnt(0)')
        for j in (1, 2): a(f'v_add_f32 v{cs[j]}, v{cs[j]}, v{t[3+j]}')
        halfsum(a, cs[1], t[3]); halfsum(a, cs[2], t[4])
        if typ == 0:
            a(f'ds_write_b32 v{PA}, v{cs[1]}\nds_write_b32 v{PA}, v{cs[2]} offset:128\ns_waitcnt lgkmcnt(0)')
            for q in range(4): a(f'ds_read_b128 {vr(T16+4*q,4)}, v{PB} offset:{32*q}')
            for q in range(4): a(f'ds_read_b128 {vr(U16+4*q,4)}, v{PB} offset:{128 + 32*q}')
        for j in range(2):
            A_ = ACC[j]; P_ = WF[j][0]
            if typ == 0:
                a(f's_waitcnt lgkmcnt({4*(1-j)})')
                C_ = (T16, U16)[j]
                for r in range(16): a(f'v_fma_f32 v{A_+r}, -v{mu}, v{C_+r}, v{A_+r}')
                for r in range(16): a(f'v_mul_f32 v{A_+r}, v{A_+r}, v{rs}')
                for r in range(12, 16): a(f'v_cndmask_b32_e64 v{A_+r}, v{A_+r}, {"1.0" if r < 15 else "0"}, vcc')
                for i in range(8): a(f'v_cvt_pk_bf16_f32 v{P_+i}, v{A_+2*i}, v{A_+2*i+1}')
            else:
                if j == 0: a('s_waitcnt lgkmcnt(0)')
                for r in range(16): a(f'v_fma_f32 v{A_+r}, -v{T16+r}, v{cs[1+j]}, v{A_+r}')
                for r in range(0, 16, 2): a(f'v_pk_mul_f32 {vr(A_+r,2)}, {vr(A_+r,2)}, {vr(U16+r,2)}')
                for i in range(8): a(f'v_cvt_pk_bf16_f32 v{P_+i}, v{A_+2*i}, v{A_+2*i+1}')
                for i in range(8): a(f'v_cndmask_b32 v{P_+i}, v{P_+i}, v{t[7]}, vcc')
            for u in range(2):
                a.vmem(f'buffer_store_dwordx4 {vr(P_+4*u,4)}, v{V_OFF}, {sr4(SRD_WS)}, s{(T0, T1)[j]} offen offset:{2048*typ + 1024*u} sc1', 'stA')
        if typ == 0: a('s_branch LAQ')
    a.label('LAQ')
    a.stamp('A_kvst')
    aq = aw
    for n in range(4):
        a(f'''
        s_add_u32 s{T0}, s{S_W}, {n}
        s_and_b32 s{T0}, s{T0}, 3
        s_lshl_b32 s{T0}, s{T0}, 10
        s_add_u32 s{T0}, s{T0}, {WQ}
        v_add_u32 v{aq[n]}, s{T0}, v{AQ}
        ''')
    a.vmwait('wq'); a('s_barrier')
    QB = [ACC[0] + 4*i for i in range(8)]
    NQ = 8
    def rdq(s_):
        c, n = divmod(s_, 4)
        for u in range(2): a(f'ds_read_b64_tr_b16 {vr(QB[s_ % NQ]+2*u,2)}, v{aq[n]} offset:{c*4096 + u*256}')
    AH = 5
    for s_ in range(AH): rdq(s_)
    for s_ in range(28):
        if s_ + AH < 28:
            rdq(s_ + AH); a(f's_waitcnt lgkmcnt({2*AH})')
        else:
            a(f's_waitcnt lgkmcnt({2*(27 - s_)})')
        if s_ % 4 == 0:
            for i in range(4): a(f'v_dot2c_f32_bf16 v{cs[0]}, s{S_ONES}, v{QB[s_ % NQ]+i}')
        a(f'{MFMA} {vr(accQ,16)}, {vr(QB[s_ % NQ],4)}, {vr(X[s_],4)}, {vr(accQ,16) if s_ else 0}')
    halfsum(a, cs[0], t[4])
    a(f'ds_write_b32 v{CA}, v{cs[0]}')
    a(f'''
    s_lshr_b32 s{T0}, s{S_H}, 1
    s_lshl_b32 s{T0}, s{T0}, 2
    s_add_u32 s{T0}, s{T0}, s{S_W}
    s_lshl_b32 s{T0}, s{T0}, 12
    s_add_u32 s{T5}, s{T0}, {FL_A}
    s_and_b32 s{T1}, s{S_H}, 1
    s_lshl_b32 s{T1}, s{T1}, 4
    s_add_u32 s{T1}, s{T1}, s{S_TB}
    s_lshl_b32 s{T1}, s{T1}, 7
    s_add_u32 s{T0}, s{T5}, s{T1}
    ''')
    a.vmwait('stA')
    flag_store(a, T0, t[4])
    a.stamp('A_flag')
    a('s_waitcnt lgkmcnt(0)\ns_barrier')
    a(f'ds_read_b32 v{cs[0]}, v{CR}\nds_read_b32 v{t[4]}, v{CR} offset:384\ns_waitcnt lgkmcnt(0)')
    a(f'v_add_f32 v{cs[0]}, v{cs[0]}, v{t[4]}')
    halfsum(a, cs[0], t[4])
    a(f'ds_write_b32 v{PA}, v{cs[0]}\ns_waitcnt lgkmcnt(0)')
    for q in range(4): a(f'ds_read_b128 {vr(T16+4*q,4)}, v{PB} offset:{32*q}')
    a(f'v_cmp_lt_u32 vcc, 31, v{V_LANE}\ns_waitcnt lgkmcnt(0)')
    for r in range(16): a(f'v_fma_f32 v{accQ+r}, -v{mu}, v{T16+r}, v{accQ+r}')
    for r in range(16): a(f'v_mul_f32 v{accQ+r}, v{accQ+r}, v{rq}')
    for r in range(12, 16): a(f'v_cndmask_b32_e64 v{accQ+r}, v{accQ+r}, 0, vcc')
    for i in range(8): a(f'v_cvt_pk_bf16_f32 v{Q0+i}, v{accQ+2*i}, v{accQ+2*i+1}')

def w13_setup(a, S13, L13):
    a(f'''
    s_cmp_lt_u32 s{S_W}, 2
    s_cselect_b32 s{SRD_B}, s{P_W1}, s{P_W3}
    s_cselect_b32 s{SRD_B+1}, s{P_W1+1}, s{P_W3+1}
    s_mov_b32 s{SRD_B+2}, {W1_BYTES}
    s_mov_b32 s{SRD_B+3}, 0x20000
    s_and_b32 s{T0}, s{S_W}, 1
    s_mul_i32 s{S13}, s{T0}, {224*3584}
    s_mul_i32 s{T0}, s{S_FS}, 224
    s_add_u32 s{S13}, s{S13}, s{T0}
    s_mul_i32 s{L13}, s{S_W}, 14336
    ''')

def pair_dma(S13, L13, slot, col, i, tag):
    return [f's_add_u32 m0, s{L13}, {slot*PAIR + i*1024}',
            f's_add_u32 s{T0}, s{S13}, {col + i*16*3584}',
            ('vm', f'buffer_load_dwordx4 v{V_P13}, {sr4(SRD_B)}, s{T0} offen lds', tag)]

def alloc_b():
    va = VA(4, 212)
    KV = [va(16) for _ in range(3)]
    Q = [va(8) for _ in range(4)]
    O = [va(16) for _ in range(4)]
    S = [va(16), va(16)]
    P = [va(8), va(8)]
    t = [va() for _ in range(8)]
    v5 = va()
    return dict(KV=KV, Q=Q, O=O, S=S, P=P, t=t, v5=v5)

def phase_b(a, R):
    KV, Q, O, S, P, t, v5 = (R[k] for k in ('KV', 'Q', 'O', 'S', 'P', 't', 'v5'))
    QX = R['QX']
    S13, L13, SKV, SB = T3, T4, T6, T2
    qa = t[4:8]
    for lq in range(4):
        a(f'''
        s_add_u32 s{T0}, s{S_W}, {lq}
        s_and_b32 s{T0}, s{T0}, 3
        s_lshl_b32 s{T0}, s{T0}, 11
        s_add_u32 s{T0}, s{T0}, {QX}
        v_add_u32 v{qa[lq]}, s{T0}, v{V_OFF}
        ''')
    a(f'ds_write_b128 v{qa[0]}, {vr(Q[0],4)}')
    poll_issue(a, T5, V_FL, 32, t[0])
    w13_setup(a, S13, L13)
    a(f'''
    s_lshl_b32 s{T0}, s{S_E0}, 5
    s_add_u32 s{S13}, s{S13}, s{T0}
    s_and_b32 s{T0}, s{S_W}, 2
    v_and_b32 v{t[1]}, 3, v{V_LANE}
    v_xor_b32 v{t[1]}, s{T0}, v{t[1]}
    v_lshrrev_b32 v{t[2]}, 2, v{V_LANE}
    v_mul_u32_u24 v{t[2]}, 3584, v{t[2]}
    v_lshl_add_u32 v{V_P13}, v{t[1]}, 4, v{t[2]}
    s_lshl_b32 s{T0}, s{T0}, 1
    v_lshrrev_b32 v{t[1]}, 1, v{V_LANE}
    v_xor_b32 v{t[1]}, s{T0}, v{t[1]}
    v_mul_u32_u24 v{t[1]}, 3584, v{t[1]}
    v_and_b32 v{t[2]}, 1, v{V_LANE}
    v_lshl_add_u32 v{v5}, v{t[2]}, 4, v{t[1]}
    s_lshl_b32 s{SKV}, s{S_H}, 6
    s_add_u32 s{SKV}, s{SKV}, s{S_W}
    s_lshl_b32 s{SKV}, s{SKV}, 12
    s_sub_u32 s{SB}, s{S_TB}, 1
    s_waitcnt lgkmcnt(0)
    s_barrier
    ''')
    for lq in range(1, 4): a(f'ds_read_b128 {vr(Q[lq],4)}, v{qa[lq]}')
    spre = []; spre2 = []
    if opt('spre', 1):
        def ssrd(D, lim, pa, pb, na, nb, per):
            a(f'''
            s_lshl_b32 s{S_U0}, s2, 2
            s_add_u32 s{S_U0}, s{S_U0}, s{S_W}
            s_mov_b32 s{D+2}, {na}
            s_cmp_ge_u32 s{S_U0}, {lim}
            s_cselect_b32 s{D}, s{pb}, s{pa}
            s_cselect_b32 s{D+1}, s{pb+1}, s{pa+1}
            s_cselect_b32 s{D+2}, {nb}, s{D+2}
            s_cselect_b32 s{S_U1}, {lim}, 0
            s_sub_u32 s{S_U0}, s{S_U0}, s{S_U1}
            s_mul_i32 s{S_U0}, s{S_U0}, {per}
            s_min_u32 s{S_U0}, s{S_U0}, s{D+2}
            s_sub_u32 s{D+2}, s{D+2}, s{S_U0}
            s_add_u32 s{D}, s{D}, s{S_U0}
            s_addc_u32 s{D+1}, s{D+1}, 0
            s_mov_b32 s{D+3}, 0x20000
            ''')
        ld = lambda D, o: f's_buffer_load_dwordx2 s[{S_DUM}:{S_DUM+1}], {sr4(D)}, {o + 60}'
        ssrd(SRD_A, 512, P_W1, P_W3, W1_BYTES, W1_BYTES, 3200)
        ssrd(SRD_WQKV, 784, P_W2, P_WO, W2_BYTES, WO_BYTES, 2048)
        spre = [[ld(SRD_A, 128*i)] for i in range(25)]
        spre2 = [[ld(SRD_WQKV, 128*i)] for i in range(16)]
        a('s_waitcnt lgkmcnt(0)')
        for _ in range(opt('spre0', 7)): a(spre.pop(0)[0])
    a.stamp('B_pre')
    poll_check(a, T5, V_FL, 32, t[0])
    a.stamp('B_poll')
    def kvload(buf):
        return [f's_add_u32 s{SB}, s{SB}, 1', f's_and_b32 s{SB}, s{SB}, 15', f's_lshl_b32 s{T1}, s{SB}, 14', f's_add_u32 s{T1}, s{T1}, s{SKV}'] + \
               [('vm', f'buffer_load_dwordx4 {vr(KV[buf]+4*j,4)}, v{V_OFF}, {sr4(SRD_WS)}, s{T1} offen offset:{1024*j} sc1', f'k{buf}' if j < 2 else f'kv{buf}') for j in range(4)]
    for b in range(3):
        for x in kvload(b): a.emit(x)
    pre = []
    for g in range(7):
        for i in (2*g, 2*g + 1):
            pre.append(pair_dma(S13, L13, 0, 0, i, 'w13'))
            pre.append(pair_dma(S13, L13, 1, 64, i, 'w13'))
        pre.append([f's_add_u32 s{T0}, s{S13}, {128 + g*32*3584}',
                    ('vm', f'buffer_load_dwordx4 {vr(RAW5+4*g,4,"a")}, v{v5}, {sr4(SRD_B)}, s{T0} offen', 'w13')])
    a.vmwait('k0')
    a(f'{MFMA} {vr(S[0],16)}, {vr(KV[0],4)}, {vr(Q[0],4)}, 0')
    a(f'{MFMA} {vr(S[0],16)}, {vr(KV[0]+4,4)}, {vr(Q[0]+4,4)}, {vr(S[0],16)}')
    a(f'v_cmp_lt_u32 vcc, 31, v{V_LANE}')
    a(f'v_max3_f32 v{t[0]}, v{S[0]}, v{S[0]+1}, v{S[0]+2}\nv_max3_f32 v{t[1]}, v{S[0]+3}, v{S[0]+4}, v{S[0]+5}')
    for r in range(6, 14, 4):
        a(f'v_max3_f32 v{t[0]}, v{t[0]}, v{S[0]+r}, v{S[0]+r+1}\nv_max3_f32 v{t[1]}, v{t[1]}, v{S[0]+r+2}, v{S[0]+r+3}')
    a(f'''
    v_max3_f32 v{t[0]}, v{t[0]}, v{S[0]+14}, v{S[0]+15}
    v_max_f32 v{t[0]}, v{t[0]}, v{t[1]}
    v_mov_b32 v{t[1]}, v{t[0]}
    v_permlane32_swap_b32 v{t[0]}, v{t[1]}
    v_max_f32 v{t[0]}, v{t[0]}, v{t[1]}
    v_cvt_pk_bf16_f32 v{t[0]}, -v{t[0]}, 0
    v_cndmask_b32 v{Q[0]+6}, v{Q[0]+6}, v{t[0]}, vcc
    ds_write_b128 v{qa[0]}, {vr(Q[0]+4,4)} offset:1024
    v_lshlrev_b32 v{t[2]}, 16, v{t[0]}
    ''')
    assert t[2] % 2 == 0
    for r in range(0, 16, 2): a(f'v_pk_add_f32 {vr(S[0]+r,2)}, {vr(S[0]+r,2)}, {vr(t[2],2)} op_sel_hi:[1,0]')
    a('s_waitcnt lgkmcnt(0)\ns_barrier')
    for lq in range(1, 4): a(f'ds_read_b128 {vr(Q[lq]+4,4)}, v{qa[lq]} offset:1024')
    a.stamp('B_first')
    def slot(T, q, side):
        cb = q & 1; nb = cb ^ 1
        kvn, nq = (T % 3, q + 1) if q < 3 else ((T + 1) % 3, 0)
        kvp, pq = (T % 3, q - 1) if q else ((T - 1) % 3, 3)
        no_qk = (T == 15 and q == 3); no_pv = (T == 0 and q == 0); first = (T == 0 or (T == 1 and q == 0))
        M = [None if no_qk else f'{MFMA} {vr(S[nb],16)}, {vr(KV[kvn],4)}, {vr(Q[nq],4)}, 0',
             None if no_qk else f'{MFMA} {vr(S[nb],16)}, {vr(KV[kvn]+4,4)}, {vr(Q[nq]+4,4)}, {vr(S[nb],16)}',
             None if no_pv else f'{MFMA} {vr(O[pq],16)}, {vr(KV[kvp]+8,4)}, {vr(P[nb],4)}, {0 if first else vr(O[pq],16)}',
             None if no_pv else f'{MFMA} {vr(O[pq],16)}, {vr(KV[kvp]+12,4)}, {vr(P[nb]+4,4)}, {vr(O[pq],16)}']
        e = lambda r: f'v_exp_f32 v{S[cb]+r}, v{S[cb]+r}'
        c = lambda j: f'v_cvt_pk_bf16_f32 v{P[cb]+j}, v{S[cb]+2*j}, v{S[cb]+2*j+1}'
        seq = [M[0], e(0), e(1), e(2), c(0), e(3), e(4), M[1], c(1), e(5), e(6), c(2), e(7), e(8),
               M[2], c(3), e(9), e(10), c(4), e(11), e(12), M[3], c(5), e(13), e(14), e(15), c(6), c(7)]
        if T == 0 and q == 0: seq.insert(7, 's_waitcnt lgkmcnt(0)')
        side = list(side)
        per = (len(side) + 3) // 4
        for x in seq:
            if x is None: continue
            a(x)
            if x.startswith('v_mfma'):
                for y in side[:per]: a.emit(y)
                side = side[per:]
        for y in side: a.emit(y)
    for T in range(16):
        for q in range(4):
            side = []
            if q == 1 and T >= 1 and T + 2 <= 15: side = kvload((T + 2) % 3)
            elif pre and T >= opt('preT', 5): side = pre.pop(0)
            if (T, q) != (0, 0):
                for _ in range(opt('sper', 1)):
                    if spre: side = side + spre.pop(0)
                    elif spre2 and T >= opt('spre2T', 5): side = side + spre2.pop(0)
            if T == 0 and q == 1: a.vmwait('kv0')
            if q == 3 and T < 15: a.vmwait(f'kv{(T+1)%3}')
            slot(T, q, side)
    assert not pre and not spre and not spre2
    for lq in range(4):
        a(f'''
        s_add_u32 s{T0}, s{S_W}, {lq}
        s_and_b32 s{T0}, s{T0}, 3
        s_mul_i32 s{T0}, s{T0}, 12288
        s_add_u32 s{T0}, s{T0}, {SCR}
        v_add_u32 v{t[lq]}, s{T0}, v{V_OFF}
        ''')
    a(f'{MFMA} {vr(O[3],16)}, {vr(KV[0]+8,4)}, {vr(P[1],4)}, {vr(O[3],16)}')
    a(f'{MFMA} {vr(O[3],16)}, {vr(KV[0]+12,4)}, {vr(P[1]+4,4)}, {vr(O[3],16)}')
    a.stamp('B_loop')
    for lq in range(1, 4):
        for j in range(4): a(f'ds_write_b128 v{t[lq]}, {vr(O[lq]+4*j,4)} offset:{(lq-1)*4096 + j*1024}')
    a(f'''
    s_lshl_b32 s{T0}, s{S_TB}, 2
    s_add_u32 s{T0}, s{T0}, s{S_W}
    s_lshl_b32 s{T0}, s{T0}, 4
    s_add_u32 s{T0}, s{T0}, s{S_H}
    s_lshl_b32 s{T5}, s{T0}, 7
    s_add_u32 s{T5}, s{T5}, {FL_B}
    s_lshl_b32 s{T0}, s{T0}, 11
    s_add_u32 s{T0}, s{T0}, {WS_O}
    v_cmp_lt_u32 vcc, 31, v{V_LANE}
    s_waitcnt lgkmcnt(0)
    s_barrier
    ''')
    for lq in range(1, 4):
        for j in range(4): a(f'ds_read_b128 {vr(O[lq]+4*j,4)}, v{t[0]} offset:{(lq-1)*4096 + j*1024}')
    for lq in range(1, 4):
        a(f's_waitcnt lgkmcnt({4*(3-lq)})')
        for r in range(0, 16, 2): a(f'v_pk_add_f32 {vr(O[0]+r,2)}, {vr(O[0]+r,2)}, {vr(O[lq]+r,2)}')
    a(f'''
    v_mov_b32 v{t[0]}, v{O[0]+12}
    v_mov_b32 v{t[1]}, v{O[0]+12}
    v_permlane32_swap_b32 v{t[0]}, v{t[1]}
    v_rcp_f32 v{t[2]}, v{t[1]}
    ''')
    for r in range(0, 16, 2): a(f'v_pk_mul_f32 {vr(O[0]+r,2)}, {vr(O[0]+r,2)}, {vr(t[2],2)} op_sel_hi:[1,0]')
    for j in range(8): a(f'v_cvt_pk_bf16_f32 v{P[0]+j}, v{O[0]+2*j}, v{O[0]+2*j+1}')
    for j in (6, 7): a(f'v_cndmask_b32_e64 v{P[0]+j}, v{P[0]+j}, 0, vcc')
    for j in range(2):
        a.vmem(f'buffer_store_dwordx4 {vr(P[0]+4*j,4)}, v{V_OFF}, {sr4(SRD_WS)}, s{T0} offen offset:{1024*j} sc1', 'stB')
    a.stamp('B_st')

class Stager:
    def __init__(self, a): self.a = a; self.nl = 0; self.nt = 0; self.open = False
    def setup(self, t0, t1, t2, vw):
        a = self.a; self.vw = vw
        a(f'''
        v_lshrrev_b32 v{t0}, 3, v{V_LANE}
        v_lshrrev_b32 v{t1}, 2, v{V_LANE}
        v_and_b32 v{t1}, 4, v{t1}
        v_and_b32 v{t2}, 7, v{V_LANE}
        v_xor_b32 v{t1}, v{t1}, v{t2}
        v_mul_u32_u24 v{t0}, 896, v{t0}
        v_lshl_add_u32 v{V_SRC}, v{t1}, 4, v{t0}
        v_lshrrev_b32 v{t0}, 5, v{V_LANE}
        v_bfe_u32 v{t1}, v{V_LANE}, 2, 2
        v_lshl_add_u32 v{t0}, v{t0}, 2, v{t1}
        v_lshlrev_b32 v{t0}, 7, v{t0}
        v_bfe_u32 v{t1}, v{V_LANE}, 4, 1
        v_lshl_add_u32 v{t0}, v{t1}, 5, v{t0}
        v_and_b32 v{t1}, 3, v{V_LANE}
        v_lshl_add_u32 v{t0}, v{t1}, 3, v{t0}
        v_bfe_u32 v{t1}, v{V_LANE}, 3, 1
        s_lshr_b32 s{T0}, s{S_W}, 1
        v_xor_b32 v{t1}, s{T0}, v{t1}
        v_lshl_add_u32 v{t0}, v{t1}, 6, v{t0}
        s_lshl_b32 s{T0}, s{S_W}, 12
        s_add_u32 s{T0}, s{T0}, {SCR}
        v_add_u32 v{V_RD}, s{T0}, v{t0}
        v_xor_b32 v{V_RD+1}, 64, v{V_RD}
        v_add_u32 v{vw}, s{T0}, v{V_OFF}
        ''')
    def target(self, which):
        a = self.a
        srd(a, SRD_A, P_WO if which == 'wo' else P_W2, WO_BYTES if which == 'wo' else W2_BYTES)
        a(f's_mul_i32 s{S_U0}, s{S_W}, {(112 if which == "wo" else 448)*896}\ns_lshl_b32 s{T0}, s{S_CB}, 7\ns_add_u32 s{S_U0}, s{S_U0}, s{T0}')
    @staticmethod
    def base(g):
        if g < 2: return ('a', 224 + 16 * g)
        if g < 4: return ('v', WOV + 16 * (g - 2))
        return ('a', 16 * (g - 4))
    @staticmethod
    def dest(g, s_, lc):
        p, b = Stager.base(g); return p, b + (s_ * 2 + lc) * 4
    def load(self):
        a = self.a; g = self.nl; self.nl += 1
        if g == 0: self.target('wo')
        if g == 4: self.target('w2')
        row0 = 28 * g if g < 4 else 32 * (g - 4)
        p, b = self.base(g)
        for i in range(4):
            a(f's_add_u32 s{T0}, s{S_U0}, {(row0 + 8*i)*896}')
            a.vmem(f'buffer_load_dwordx4 {vr(b+4*i,4,p)}, v{V_SRC}, {sr4(SRD_A)}, s{T0} offen', f'hg{g}')
    def wr(self, u):
        a = self.a; g, s_ = divmod(u, 2); p, b = self.base(g)
        for i in range(2): a(f'ds_write_b128 v{self.vw}, {vr(b+8*s_+4*i,4,p)} offset:{2048*s_ + 1024*i}')
    def rd(self, u):
        a = self.a; g, s_ = divmod(u, 2); p, b = self.base(g)
        for lc in range(2):
            for uu in range(2):
                a(f'ds_read_b64_tr_b16 {vr(b+(s_*2+lc)*4+2*uu,2,p)}, v{V_RD+lc} offset:{s_*2048 + uu*1024}')
    def trans(self, last=False):
        a = self.a; g = self.nt; self.nt += 1
        a.vmwait(f'hg{g}', lgkm=0)
        self.wr(2*g)
        if self.open: self.rd(2*g - 1)
        a('s_waitcnt lgkmcnt(0)')
        self.wr(2*g + 1)
        self.rd(2*g)
        self.open = True
        if last: self.close()
    def close(self):
        if self.open:
            self.a('s_waitcnt lgkmcnt(0)'); self.rd(2*self.nt - 1); self.open = False

def red_addr(a, t):
    for l in range(4):
        a(f's_xor_b32 s{T0}, s{S_W}, {l}\ns_mul_i32 s{T0}, s{T0}, 12288\ns_add_u32 s{T0}, s{T0}, {SCR}\nv_add_u32 v{t[l]}, s{T0}, v{V_OFF}')
def red_write(a, ACC, t, l):
    for j in range(4): a(f'ds_write_b128 v{t[l]}, {vr(ACC[l]+4*j,4)} offset:{(l-1)*4096 + j*1024}')
def red_read(a, ACC, t):
    a('s_waitcnt lgkmcnt(0)\ns_barrier')
    for l in range(1, 4):
        for j in range(4): a(f'ds_read_b128 {vr(ACC[l]+4*j,4)}, v{t[0]} offset:{(l-1)*4096 + j*1024}')
    for l in range(1, 4):
        a(f's_waitcnt lgkmcnt({4*(3-l)})')
        for r in range(0, 16, 2): a(f'v_pk_add_f32 {vr(ACC[0]+r,2)}, {vr(ACC[0]+r,2)}, {vr(ACC[l]+r,2)}')

def put5(a, vt):
    a(f's_mul_i32 s{T0}, s{S_W}, 7168\ns_add_u32 s{T0}, s{T0}, {SINGLE}\nv_add_u32 v{vt}, s{T0}, v{V_OFF}')
    for g in range(7): a(f'ds_write_b128 v{vt}, {vr(RAW5+4*g,4,"a")} offset:{1024*g}')

def tile_ids(a, STT, SCT):
    a(f'''
    s_and_b32 s{STT}, s{S_W}, 1
    s_lshl_b32 s{T0}, s{S_RB}, 1
    s_add_u32 s{STT}, s{STT}, s{T0}
    s_lshr_b32 s{SCT}, s{S_W}, 1
    s_lshl_b32 s{T0}, s{S_CB}, 1
    s_add_u32 s{SCT}, s{SCT}, s{T0}
    ''')
def flag8_addr(a, vf, t0, t1, sdst, base):
    a(f'''
    v_lshrrev_b32 v{t0}, 2, v{V_LANE}
    v_lshlrev_b32 v{t0}, 11, v{t0}
    v_and_b32 v{t1}, 3, v{V_LANE}
    v_lshl_add_u32 v{vf}, v{t1}, 7, v{t0}
    s_lshl_b32 s{T0}, s{S_RB}, 3
    s_add_u32 s{T0}, s{T0}, s{S_W}
    s_lshl_b32 s{sdst}, s{T0}, 9
    s_add_u32 s{sdst}, s{sdst}, {base}
    ''')

def phase_c(a, R, stg):
    va = VA(4, 200)
    ACC = [va(16) for _ in range(4)]
    OF = [[va(4) for k in range(8)] for lt in range(2)]
    XR = va(8); t = [va() for _ in range(8)]; vx = va(); vf = va(); vw = va(); vp = va()
    STT, SCT = T1, T2
    stg.setup(t[0], t[1], t[2], vw)
    NB1 = opt('hgB', 9); NF = opt('hgBf', 4)
    for g in range(NF): stg.load()
    tile_ids(a, STT, SCT)
    a(f'''
    v_and_b32 v{t[0]}, 31, v{V_LANE}
    v_lshrrev_b32 v{t[1]}, 5, v{V_LANE}
    v_mul_u32_u24 v{t[0]}, 896, v{t[0]}
    v_lshl_add_u32 v{vx}, v{t[1]}, 3, v{t[0]}
    s_mul_i32 s{T6}, s{STT}, {32*896}
    s_lshl_b32 s{T0}, s{SCT}, 6
    s_add_u32 s{T6}, s{T6}, s{T0}
    ''')
    a.vmwait('stB')
    flag_store(a, T5, t[3])
    a.stamp('C_flag')
    for q in range(4):
        a.vmem(f'buffer_load_dwordx2 {vr(XR+2*q,2)}, v{vx}, {sr4(SRD_X)}, s{T6} offen offset:{16*q}', 'xr')
    flag8_addr(a, vf, t[0], t[1], T5, FL_B)
    for l in range(2):
        a(f'''
        s_xor_b32 s{T0}, s{STT}, {l}
        s_lshl_b32 s{T0}, s{T0}, 2
        s_add_u32 s{T0}, s{T0}, s{S_W}
        s_lshl_b32 s{T0}, s{T0}, 13
        s_add_u32 s{T3+l}, s{T0}, {WS_O}
        ''')
    a('s_barrier')
    NT1 = NB1 - opt('trB', 2)
    for g in range(NT1):
        if stg.nl < NB1: stg.load()
        if g == NT1 - opt('pollB', 2): poll_issue(a, T5, vf, 8, vp)
        stg.trans()
    a.vmwait('xr')
    for j in range(8):
        a(f'v_lshlrev_b32 v{ACC[0]+2*j}, 16, v{XR+j}\nv_and_b32 v{ACC[0]+2*j+1}, 0xffff0000, v{XR+j}')
    a.stamp('C_pre')
    poll_check(a, T5, vf, 8, vp)
    a.stamp('C_poll')
    for k in range(8):
        if k == 4: a(f's_add_u32 s{T3}, s{T3}, 4096\ns_add_u32 s{T4}, s{T4}, 4096')
        for l in range(2):
            a.vmem(f'buffer_load_dwordx4 {vr(OF[l][k],4)}, v{V_OFF}, {sr4(SRD_WS)}, s{T3+l} offen offset:{1024*(k&3)} sc1', f'o{k}')
    while stg.nt < NB1: stg.trans()
    stg.close()
    red_addr(a, t)
    a(f'''
    s_mul_i32 s{T6}, s{STT}, 14
    s_add_u32 s{T6}, s{T6}, s{SCT}
    s_lshl_b32 s{T5}, s{STT}, 4
    s_add_u32 s{T5}, s{T5}, s{SCT}
    s_lshl_b32 s{T5}, s{T5}, 7
    s_add_u32 s{T5}, s{T5}, {FL_C}
    s_waitcnt lgkmcnt(0)
    s_barrier
    ''')
    def mm(k, l):
        p, b = stg.dest(k >> 1, k & 1, l >> 1)
        a(f'{MFMA} {vr(ACC[l],16)}, {vr(b,4,p)}, {vr(OF[l & 1][k],4)}, {vr(ACC[l],16) if (k or l == 0) else 0}')
    KT = 5
    for k in range(KT):
        a.vmwait(f'o{k}')
        for l in range(4): mm(k, l)
    for l in (1, 2, 3, 0):
        for k in range(KT, 8):
            if l == 1: a.vmwait(f'o{k}')
            mm(k, l)
        if l in (2, 3): red_write(a, ACC, t, l - 1)
    a.stamp('C_mfma')
    red_write(a, ACC, t, 3)
    red_read(a, ACC, t)
    for j in range(8): a(f'v_cvt_pk_bf16_f32 v{HKEEP+j}, v{ACC[0]+2*j}, v{ACC[0]+2*j+1}')
    a(f's_lshl_b32 s{T0}, s{T6}, 11\ns_add_u32 s{T0}, s{T0}, {WS_H}')
    for j in range(2):
        a.vmem(f'buffer_store_dwordx4 {vr(HKEEP+4*j,4)}, v{V_OFF}, {sr4(SRD_WS)}, s{T0} offen offset:{1024*j} sc1', 'stC')
    for i in range(4): a(f'v_mov_b32 v{t[4+i]}, 0')
    for j in range(8):
        a(f'v_dot2c_f32_bf16 v{t[4+(j&1)]}, s{S_ONES}, v{HKEEP+j}')
        a(f'v_dot2c_f32_bf16 v{t[6+(j&1)]}, v{HKEEP+j}, v{HKEEP+j}')
    a(f'''
    v_add_f32 v{t[4]}, v{t[4]}, v{t[5]}
    v_add_f32 v{t[6]}, v{t[6]}, v{t[7]}
    v_permlane32_swap_b32 v{t[4]}, v{t[6]}
    v_add_f32 v{t[4]}, v{t[4]}, v{t[6]}
    v_lshlrev_b32 v{t[5]}, 2, v{V_LANE}
    s_lshl_b32 s{T0}, s{T6}, 8
    s_add_u32 s{T0}, s{T0}, {WS_ST}
    ''')
    a.vmem(f'buffer_store_dword v{t[4]}, v{t[5]}, {sr4(SRD_WS)}, s{T0} offen sc1', 'stC')
    a.stamp('C_st')
    nfree = 4 + RAW5 // 16
    NF2 = min(nfree, NB1 + opt('hgCf', 4))
    while stg.nl < NF2: stg.load()
    a('s_barrier')
    put5(a, t[0])
    a.vmwait('stC')
    flag_store(a, T5, t[3])
    a.stamp('C_flag2')
    a('s_waitcnt lgkmcnt(0)')
    NTP = 18 - opt('trC', 1) - opt('pollC', 2)
    while stg.nt < NTP:
        if stg.nl < 18: stg.load()
        stg.trans()
    while stg.nl < 18: stg.load()

def phase_d(a, R, stg):
    va = VA(4, 212)
    X = [va(4) for _ in range(28)]
    ACC = [va(16) for _ in range(4)]
    HP = va(4)
    t = [va(2) for _ in range(4)]
    mu = va(2)
    vl = [va() for _ in range(5)]
    vp = va(); vs = va()
    W = [va(4) for _ in range(2)] + [WOV + 4*i for i in range(8)]
    NW = len(W)
    ST = ACC[3]
    E = [t[0], t[0]+1, t[1], t[1]+1, t[2], t[2]+1, t[3], t[3]+1]
    STT = T6; SH = T5; S13, L13 = T3, T4
    w13_setup(a, S13, L13)
    a(f'''
    s_lshl_b32 s{T0}, s{S_L0}, 5
    s_add_u32 s{S13}, s{S13}, s{T0}
    s_lshl_b32 s{STT}, s{S_TD}, 2
    s_add_u32 s{STT}, s{STT}, s{S_W}
    s_lshl_b32 s{T2}, s{STT}, 11
    s_add_u32 s{T2}, s{T2}, {FL_C}
    v_bfe_u32 v{t[0]}, v{V_LANE}, 4, 1                 ; cg
    v_lshrrev_b32 v{t[1]}, 5, v{V_LANE}                ; hf
    v_bfe_u32 v{t[3]}, v{V_LANE}, 2, 2                 ; r
    v_and_b32 v{mu}, 3, v{V_LANE}
    v_lshlrev_b32 v{mu}, 3, v{mu}                      ; c4*8
    v_xor_b32 v{t[2]}, v{t[0]}, v{t[1]}
    v_lshl_add_u32 v{t[2]}, v{t[2]}, 2, v{t[3]}
    v_lshl_add_u32 v{t[2]}, v{t[2]}, 5, v{mu}
    v_mul_u32_u24 v{vl[4]}, 14336, v{t[0]}
    v_add_u32 v{vl[4]}, v{vl[4]}, v{t[2]}
    v_add_u32 v{vl[4]}, {SINGLE}, v{vl[4]}
    v_lshl_add_u32 v{t[2]}, v{t[1]}, 2, v{t[3]}
    v_lshl_add_u32 v{t[2]}, v{t[2]}, 6, v{mu}
    v_mul_u32_u24 v{t[0]}, {28672 + 32}, v{t[0]}
    v_add_u32 v{vl[0]}, v{t[0]}, v{t[2]}
    v_xor_b32 v{vl[1]}, 32, v{vl[0]}
    v_add_u32 v{vl[2]}, {PAIR}, v{vl[0]}
    v_add_u32 v{vl[3]}, {PAIR}, v{vl[1]}
    v_and_b32 v{t[0]}, 31, v{V_LANE}
    v_mul_u32_u24 v{t[1]}, {7*256}, v{t[1]}
    v_lshl_add_u32 v{vs}, v{t[0]}, 2, v{t[1]}
    s_mul_i32 s{T1}, s{STT}, {14*256}
    s_add_u32 s{T1}, s{T1}, {WS_ST}
    s_mul_i32 s{SH}, s{STT}, {28*1024}
    s_add_u32 s{SH}, s{SH}, {WS_H}
    ''')
    NTP = 18 - opt('trC', 1)
    poll_issue(a, T2, V_FL, 14, vp)
    Ls = a.newlabel('skip')
    a(f's_cmp_ge_u32 s{S_J}, 28\ns_cbranch_scc1 {Ls}')
    while stg.nt < NTP: stg.trans()
    a.label(Ls)
    a.stamp('D_pre')
    rest = [x for x in a.vm if x.startswith('hg')]
    poll_check(a, T2, V_FL, 14, vp)
    a.stamp('D_poll')
    for c in range(7):
        a.vmem(f'buffer_load_dword v{ST+2*c}, v{vs}, {sr4(SRD_WS)}, s{T1} offen offset:{256*c} sc1', 'st')
        a.vmem(f'buffer_load_dword v{ST+2*c+1}, v{vs}, {sr4(SRD_WS)}, s{T1} offen offset:{256*c+128} sc1', 'st')
    SX_ = S_SPIN + 1
    a(f's_mov_b32 s{SX_}, s{SH}')
    def ldx(k):
        if k and k % 4 == 0: a(f's_add_u32 s{SX_}, s{SX_}, 4096')
        a.vmem(f'buffer_load_dwordx4 {vr(X[k],4)}, v{V_OFF}, {sr4(SRD_WS)}, s{SX_} offen offset:{1024*(k&3)} sc1', f'x{k}')
    XLA = opt('xla', 10)
    for k in range(XLA): ldx(k)
    a(f's_or_b32 s{T0}, s2, s{S_W}\ns_cmp_lg_u32 s{T0}, 0\ns_cselect_b32 s{T0}, 0x40000000, {WS_FLG}')
    flag_store(a, T0, t[0])
    a.stamp('F_issued')
    Ls = a.newlabel('skip')
    a(f's_cmp_ge_u32 s{S_J}, 28\ns_cbranch_scc1 {Ls}')
    while stg.nt < 18: stg.trans()
    stg.close()
    a.label(Ls)
    SE = T5; SL = T1; SF = T2
    a(f'''
    s_mul_i32 s{SE}, s{STT}, 112
    s_mul_i32 s{T0}, s{S_FS}, 7
    s_add_u32 s{SE}, s{SE}, s{T0}
    s_add_u32 s{SL}, s{SE}, s{S_L0}
    s_add_u32 s{SE}, s{SE}, s{S_E0}
    s_lshl_b32 s{SE}, s{SE}, 10
    s_add_u32 s{SE}, s{SE}, {WS_HH}
    s_lshl_b32 s{SL}, s{SL}, 10
    s_add_u32 s{SL}, s{SL}, {WS_HH}
    s_add_u32 s{S_U1}, s{SE}, 4096
    s_lshl_b32 s{SF}, s{STT}, 4
    s_add_u32 s{SF}, s{SF}, s{S_FS}
    s_lshl_b32 s{SF}, s{SF}, 7
    s_add_u32 s{SF}, s{SF}, {FL_D1}
    s_waitcnt lgkmcnt(0)
    s_barrier
    ''')
    seq = [(j, k) for k in range(28) for j in (0, 1, 4)] + [(j, k) for j in (2, 3, 5, 6) for k in range(28)]
    def rdW(n):
        j, k = seq[n]
        if j == 4: return [f'ds_read_b64_tr_b16 {vr(W[n % NW]+2*u,2)}, v{vl[4]} offset:{k*512 + u*256}' for u in range(2)]
        return [f'ds_read_b64_tr_b16 {vr(W[n % NW]+2*u,2)}, v{vl[{0:0,1:1,2:2,3:3,5:0,6:1}[j]]} offset:{k*1024 + u*512}' for u in range(2)]
    AH = opt('ah', 6); assert AH + 2 <= NW and 2 * AH <= 15
    a.stamp('F_bar')
    for n in range(AH):
        for x in rdW(n): a(x)
    a.vmwait('st')
    a(f'v_add_f32 v{t[0]}, v{ST}, v{ST+2}\nv_add_f32 v{t[1]}, v{ST+1}, v{ST+3}')
    for c in range(2, 7):
        a(f'v_add_f32 v{t[0]}, v{t[0]}, v{ST+2*c}\nv_add_f32 v{t[1]}, v{t[1]}, v{ST+2*c+1}')
    halfsum(a, t[0], t[2]); halfsum(a, t[1], t[3])
    a(f'''
    v_mul_f32 v{t[0]}, {fx(1/448)}, v{t[0]}
    v_mul_f32 v{t[1]}, {fx(1/448)}, v{t[1]}
    v_fma_f32 v{t[1]}, -v{t[0]}, v{t[0]}, v{t[1]}
    v_max_f32 v{t[1]}, 0, v{t[1]}
    v_add_f32 v{t[1]}, {fx(1e-5)}, v{t[1]}
    v_rsq_f32 v{mu}, v{t[1]}
    s_mov_b32 s{S_U0}, 0xffff0000
    v_mul_f32 v{mu+1}, v{t[0]}, v{mu}
    v_sub_f32 v{mu+1}, 0, v{mu+1}
    ''')
    def norm(k):
        out = []
        for i in range(4): out += [f'v_lshlrev_b32 v{t[i]}, 16, v{X[k]+i}', f'v_and_b32 v{t[i]+1}, s{S_U0}, v{X[k]+i}']
        for i in range(4): out += [f'v_pk_fma_f32 {vr(t[i],2)}, {vr(t[i],2)}, {vr(mu,2)}, {vr(mu,2)} op_sel:[0,0,1] op_sel_hi:[1,0,1]']
        for i in range(4): out += [f'v_cvt_pk_bf16_f32 v{X[k]+i}, v{t[i]}, v{t[i]+1}']
        return out
    acc_of = {0: 0, 1: 1, 4: 2, 2: 3, 3: 0, 5: 1, 6: 2}
    def epi(j):
        A = ACC[acc_of[j]]
        out = []
        for r in range(8): out.append(f'v_mul_f32 v{E[r]}, s{S_U0}, v{A+r}')
        for r in range(8): out.append(f'v_exp_f32 v{E[r]}, v{E[r]}')
        for r in range(0, 8, 2): out.append(f'v_pk_mul_f32 {vr(A+r,2)}, {vr(A+r,2)}, {vr(A+8+r,2)}')
        for r in range(8): out.append(f'v_add_f32 v{E[r]}, 1.0, v{E[r]}')
        for r in range(8): out.append(f'v_rcp_f32 v{E[r]}, v{E[r]}')
        for r in range(0, 8, 2): out.append(f'v_pk_mul_f32 {vr(A+r,2)}, {vr(A+r,2)}, {vr(E[r],2)}')
        for i in range(4): out.append(f'v_cvt_pk_bf16_f32 v{HP+i}, v{A+2*i}, v{A+2*i+1}')
        sreg, off = (SE, 1024*j) if j < 4 else ((S_U1, 0) if j == 4 else (SL, 1024*(j-5)))
        out.append(('vm', f'buffer_store_dwordx4 {vr(HP,4)}, v{V_OFF}, {sr4(SRD_WS)}, s{sreg} offen offset:{off} sc1', f'hh{j}'))
        return out
    a.stamp('F_stats')
    a.vmwait('x0')
    a.stamp('F_x0')
    for x in norm(0): a(x)
    pend = []; late = []
    R['vfE'] = vs; R['vpE'] = vp
    B1TAG = {3: 'hh4', 4: 'hh2'}[opt('b1', 3)]
    for n, (j, k) in enumerate(seq):
        nn = n + AH
        if nn < len(seq) and seq[nn] == (5, 0):
            a.vmwait('late'); a('s_barrier')
        rd = rdW(nn) if nn < len(seq) else []
        if n % 2 == 0:
            left = min(len(seq), n + AH) - (n + 2)
            a(f's_waitcnt lgkmcnt({max(0, 2*left)})')
        A = ACC[acc_of[j]]
        a(f'{MFMA} {vr(A,16)}, {vr(W[n % NW],4)}, {vr(X[k],4)}, {vr(A,16) if k else 0}')
        for x in rd: a(x)
        if n < 84 and j == 0 and k in (4, 8, 12, 16, 20, 24): a.stamp(f'F_k{k}')
        if n >= 84 and k == 27: a.stamp(f'F_t{j}')
        if n < 84:
            if j == 0 and k + 1 < 28:
                a.vmwait(f'x{k+1}'); pend = norm(k + 1)
            if j == 1 and k + XLA < 28: ldx(k + XLA)
            take = 6 if j < 2 else 4
            for x in pend[:take]: a(x)
            pend = pend[take:]
            if n == 83:
                a.stamp('D_st1')
                a(f's_mov_b32 s{S_U0}, {fx(-math.log2(math.e))}\ns_barrier')
                late = [pair_dma(S13, L13, 0, 0, i, 'late') for i in range(14)]
        else:
            if n == 84 + 2: pend = epi(0) + epi(1) + epi(4) + epi(2) + epi(3) + epi(5); done = 0; tot = len(pend); one = tot // 6
            if n >= 84 + 2:
                want = min(tot, (n - 85) * tot // 108 + 1)
                lim = {2: 3, 3: 3 + (k >= 2), 5: 4 + (k >= 2), 6: 5 + (k >= 2)}[j] * one
                while done < min(want, lim):
                    a.emit(pend.pop(0)); done += 1
                if k == 27:
                    need = {2: 1, 3: 2, 5: 3, 6: 6}[j] * one
                    while done < need:
                        a.emit(pend.pop(0)); done += 1
            if late and k % opt('latestep', 2) == 0:
                for x in late.pop(0): a.emit(x)
            if j == 6 and k == opt('f1k', 4):
                a.vmwait(B1TAG); flag_store(a, SF, vp)
            if j == 6 and k == opt('p1k', 20):
                flag8_addr(a, vs, vp, vl[4], S_SPIN + 1, FL_D1)
                poll_issue(a, S_SPIN + 1, vs, 8, vp)
    a.stamp('D_loop')
    for x in epi(6): a.emit(x)
    a.stamp('D_epi')
    R['SF'] = SF

def phase_e(a, R, stg):
    va = VA(4, 199)
    ACC = [va(16) for _ in range(4)]
    NB = 16
    BUF = [[va(4) for l in range(2)] for d in range(NB)]
    vf = R['vfE']; vp = R['vpE']
    t = [204, 205, 206, 207]; vt = 208
    assert vf >= va.n and vp >= va.n and vf < 204 and vp < 204
    STT, SCT = T1, T3
    SP = S_SPIN + 1
    tile_ids(a, STT, SCT)
    a(f's_mul_i32 s{T4}, s{S_W}, {28*1024}')
    for l in range(2):
        a(f'''
        s_xor_b32 s{T0}, s{STT}, {l}
        s_mul_i32 s{T0}, s{T0}, {112*1024}
        s_add_u32 s{T0}, s{T0}, s{T4}
        s_add_u32 s{S_U0+l}, s{T0}, {WS_HH}
        ''')
    e0 = lambda f: 2 if f == 2 else 0
    l0 = lambda f: 0 if f == 2 else 5
    B1 = opt('b1', 3)
    early = (0, 1, 4, 2, 3)
    order = [7*f + e0(f) + j for j in early[:B1] for f in range(4)] + [7*f + e0(f) + j for j in early[B1:] for f in range(4)] + \
            [7*f + l0(f) + j for j in range(2) for f in range(4)]
    assert sorted(order) == list(range(28))
    N1 = 4 * B1
    a(f's_add_u32 s{T6}, s{R["SF"]}, {FL_D2 - FL_D1}')
    poll_check(a, SP, vf, 8, vp)
    a.stamp('E_poll1')
    a(f's_add_u32 s{SP}, s{SP}, {FL_D2 - FL_D1}')
    st = dict(nxt=0)
    FL2 = opt('efl', 6); PI = opt('epoll', N1 - 2)
    def ld():
        n = st['nxt']; st['nxt'] += 1
        if n == FL2:
            a.vmwait('hh6'); flag_store(a, T6, vt)
        if n == PI: poll_issue(a, SP, vf, 8, vp)
        if n == N1:
            a.stamp('E_pre2'); poll_check(a, SP, vf, 8, vp); a.stamp('E_poll2')
        ks = order[n]
        for l in range(2):
            a(f's_add_u32 s{T0}, s{S_U0+l}, {(ks >> 2) * 4096}')
            a.vmem(f'buffer_load_dwordx4 {vr(BUF[n % NB][l],4)}, v{V_OFF}, {sr4(SRD_WS)}, s{T0} offen offset:{1024*(ks&3)} sc1', f'h{n}')
    LA = opt('ela', 8)
    for n in range(LA): ld()
    for j in range(8):
        a(f'v_lshlrev_b32 v{ACC[0]+2*j}, 16, v{HKEEP+j}\nv_and_b32 v{ACC[0]+2*j+1}, 0xffff0000, v{HKEEP+j}')
    red_addr(a, t)
    def mm(n, l):
        ks = order[n]
        p, b = stg.dest(4 + (ks >> 1), ks & 1, l >> 1)
        a(f'{MFMA} {vr(ACC[l],16)}, {vr(b,4,p)}, {vr(BUF[n % NB][l & 1],4)}, {vr(ACC[l],16) if (n or l == 0) else 0}')
    KT = 28 - opt('etail', 4)
    for n in range(KT):
        a.vmwait(f'h{n}')
        for l in range(4): mm(n, l)
        for _ in range(2 if st['nxt'] - n < NB - 1 and n >= opt('egrow', 2) else 1):
            if st['nxt'] < 28 and st['nxt'] - NB <= n: ld()
    assert st['nxt'] == 28
    for l in (1, 2, 3, 0):
        for n in range(KT, 28):
            if l == 1: a.vmwait(f'h{n}')
            mm(n, l)
        if l in (2, 3): red_write(a, ACC, t, l - 1)
    a.stamp('E_mfma')
    red_write(a, ACC, t, 3)
    srd(a, SRD_A, P_OUT, X_BYTES)
    a(f'''
    v_and_b32 v{vf}, 31, v{V_LANE}
    v_lshrrev_b32 v{vp}, 5, v{V_LANE}
    v_mul_u32_u24 v{vf}, 896, v{vf}
    v_lshl_add_u32 v{vf}, v{vp}, 4, v{vf}
    s_mul_i32 s{T0}, s{STT}, {32*896}
    s_lshl_b32 s{T2}, s{SCT}, 6
    s_add_u32 s{T0}, s{T0}, s{T2}
    ''')
    red_read(a, ACC, t)
    PKR = ACC[1]
    for j in range(8): a(f'v_cvt_pk_bf16_f32 v{PKR+j}, v{ACC[0]+2*j}, v{ACC[0]+2*j+1}')
    for g in (0, 4):
        a(f'v_permlane32_swap_b32 v{PKR+g}, v{PKR+g+2}\nv_permlane32_swap_b32 v{PKR+g+1}, v{PKR+g+3}')
    a(f'buffer_store_dwordx4 {vr(PKR,4)}, v{vf}, {sr4(SRD_A)}, s{T0} offen')
    a(f'buffer_store_dwordx4 {vr(PKR+4,4)}, v{vf}, {sr4(SRD_A)}, s{T0} offen offset:32')
    a.stamp('E_st')

def gen():
    a = K()
    a.stamp('rt0', True); a.stamp('t0')
    HB = opt('hb', 3)
    a(f'''
    s_cmp_ge_u32 s2, 256
    s_cbranch_scc1 Lend
    s_load_dwordx16 s[32:47], s[0:1], 0
    s_load_dwordx2 s[50:51], s[0:1], 72
    v_lshrrev_b32 v2, 6, v0
    v_and_b32 v{V_LANE}, 63, v0
    v_readfirstlane_b32 s{S_W}, v2
    v_lshlrev_b32 v{V_OFF}, 4, v{V_LANE}
    v_lshlrev_b32 v{V_FL}, 7, v{V_LANE}
    s_and_b32 s{T0}, s2, 7
    s_lshr_b32 s{S_J}, s2, 3
    s_and_b32 s{S_H}, s{T0}, {(16 >> HB) - 1}
    s_lshl_b32 s{S_H}, s{S_H}, {HB}
    s_and_b32 s{T1}, s{S_J}, {(1 << HB) - 1}
    s_add_u32 s{S_H}, s{S_H}, s{T1}
    s_lshr_b32 s{S_TB}, s{T0}, {4 - HB}
    s_lshl_b32 s{S_TB}, s{S_TB}, {5 - HB}
    s_lshr_b32 s{T1}, s{S_J}, {HB}
    s_add_u32 s{S_TB}, s{S_TB}, s{T1}
    s_mul_i32 s{T1}, s{S_J}, 9363
    s_lshr_b32 s{T1}, s{T1}, 16
    s_mul_i32 s{T2}, s{T1}, 7
    s_sub_u32 s{S_CB}, s{S_J}, s{T2}
    s_lshl_b32 s{S_RB}, s{T0}, 2
    s_add_u32 s{S_RB}, s{S_RB}, s{T1}
    s_and_b32 s{S_TD}, s{T0}, 1
    s_lshl_b32 s{S_TD}, s{S_TD}, 3
    s_and_b32 s{T1}, s{S_J}, 7
    s_add_u32 s{S_TD}, s{S_TD}, s{T1}
    s_lshr_b32 s{S_FS}, s{T0}, 1
    s_lshl_b32 s{S_FS}, s{S_FS}, 2
    s_lshr_b32 s{T1}, s{S_J}, 3
    s_add_u32 s{S_FS}, s{S_FS}, s{T1}
    ''')
    R = alloc_b()
    phase_a(a, R)
    a(f'''
    s_and_b32 s{T0}, s{S_FS}, 3
    s_cmp_eq_u32 s{T0}, 2
    s_cselect_b32 s{S_E0}, 2, 0
    s_cselect_b32 s{S_L0}, 0, 5
    ''')
    phase_b(a, R)
    stg = Stager(a)
    a(f's_cmp_ge_u32 s{S_J}, 28\ns_cbranch_scc1 LnoC')
    phase_c(a, R, stg)
    a('s_branch LD')
    vm_c = list(a.vm)
    a.label('LnoC')
    a.vmall()
    flag_store(a, T5, 4)
    a('s_barrier')
    put5(a, 5)
    a.label('LD')
    a.vm = vm_c
    phase_d(a, R, stg)
    a(f's_cmp_ge_u32 s{S_J}, 28\ns_cbranch_scc0 LE')
    a(f's_waitcnt vmcnt(0)\ns_add_u32 s{T0}, s{R["SF"]}, {FL_D2 - FL_D1}')
    vm_d = list(a.vm)
    flag_store(a, T0, 4)
    a('s_branch Lfin')
    a.label('LE')
    a.vm = vm_d
    phase_e(a, R, stg)
    a.label('Lfin')
    if STAMP:
        a('s_waitcnt vmcnt(0)')
        a.stamp('end'); a.stamp('rt1', True)
        a(f's_waitcnt lgkmcnt(0)\ns_lshl_b32 s{T0}, s2, 2\ns_add_u32 s{T0}, s{T0}, s{S_W}\ns_lshl_b32 s{T0}, s{T0}, 7\ns_add_u32 s{T0}, s{T0}, {WS_DBG}\nv_mov_b32 v4, 0')
        for i in range(a.nst):
            a(f'v_mov_b32 v5, s{60+2*i}\nbuffer_store_dword v5, v4, {sr4(SRD_WS)}, s{T0} offen offset:{4*i}')
    if STAMP and int(os.environ.get('DBGOUT', '0')):
        n = a.nst
        a(f'''
        s_load_dwordx2 s[{SRD_A}:{SRD_A+1}], s[0:1], 64
        s_mov_b32 s{SRD_A+2}, 256
        s_mov_b32 s{SRD_A+3}, 0x20000
        s_not_b32 s{T1}, s60
        v_mov_b32 v6, s{T1}
        v_mov_b32 v7, s{60+2*(n-1)}
        v_mov_b32 v8, s60
        s_mov_b64 exec, 1
        s_waitcnt lgkmcnt(0)
        buffer_atomic_umax v6, v4, {sr4(SRD_A)}, 0 offen
        buffer_atomic_umax v7, v4, {sr4(SRD_A)}, 0 offen offset:4
        buffer_atomic_umax v8, v4, {sr4(SRD_A)}, 0 offen offset:8
        s_or_b32 s{T0}, s2, s{S_W}
        s_cmp_lg_u32 s{T0}, {int(os.environ.get('DBGWG', '0'))}
        s_cbranch_scc1 Lend
        ''')
        for i in range(2, min(n - 1, 15)):
            a(f's_sub_u32 s{T0}, s{60+2*i}, s62\nv_mov_b32 v5, s{T0}\nbuffer_store_dword v5, v4, {sr4(SRD_A)}, 0 offen offset:{4*(i+1)}')
    a.label('Lend')
    a('s_endpgm')
    a.finalize()
    head = open('sequential_preLN__mha_block__glu_gated_swiglu__prompt.s.ref').read().split('; Override')[0]
    s = head + f'; @launch grid=(256,1,1) block=(256,1,1) lds={LDS_BYTES}\n'
    s += f'.amdgcn_target "amdgcn-amd-amdhsa--gfx950"\n.text\n.globl {NAME}\n.p2align 8\n.type {NAME},@function\n{NAME}:\n' + a.text()
    s += f'''.section .rodata,"a"
.p2align 6
.amdhsa_kernel {NAME}
  .amdhsa_next_free_vgpr 512
  .amdhsa_next_free_sgpr 102
  .amdhsa_accum_offset 256
  .amdhsa_group_segment_fixed_size 0
  .amdhsa_kernarg_size 80
  .amdhsa_user_sgpr_count 2
  .amdhsa_user_sgpr_kernarg_segment_ptr 1
  .amdhsa_system_sgpr_workgroup_id_x 1
.end_amdhsa_kernel
'''
    if STAMP: s = '; STAMPS ' + ' '.join(a.names) + '\n' + s
    print(f'instrs={len(a.ins)} nop_states={a.nops} stamps={a.nst}', file=sys.stderr)
    return s

if __name__ == '__main__':
    open(sys.argv[1], 'w').write(gen())
```

```python
import sys, struct, math, os
from asmgen import Asm

NAME = 'sequential_preLN__mha_block__glu_gated_swiglu__prompt_kernel'
MB = 1 << 20
WS_KV  = 0
WS_O   = 4 * MB
WS_H   = 6 * MB
WS_ST  = 8 * MB
WS_HH  = 9 * MB
WS_FLG = 16 * MB
FL_A = WS_FLG + 0x10000
FL_B = FL_A + 1024 * 128
FL_C = FL_B + 1024 * 128
FL_D1 = FL_C + 1024 * 128
FL_D2 = FL_D1 + 1024 * 128
FL_D3 = FL_D2 + 1024 * 128
FLS = 1024 * 128
WS_DBG = 17 * MB
WS_SIZE = 18 * MB

X_BYTES = 2048 * 448 * 2
WQKV_BYTES = 448 * 1344 * 2
WO_BYTES = 448 * 448 * 2
W1_BYTES = 448 * 1792 * 2
W2_BYTES = 1792 * 448 * 2
LDS_BYTES = 163840
MFMA = 'v_mfma_f32_32x32x16_bf16'
STAMP = int(os.environ.get('STAMP', '0'))
OPT = dict(kv.split('=') for kv in os.environ.get('OPT', '').split(',') if kv)
def opt(k, d): return int(OPT.get(k, d))

def f2u(x): return struct.unpack('<I', struct.pack('<f', x))[0]
def fx(x): return hex(f2u(x))
def vr(b, n=1, p='v'): return f'{p}[{b}:{b+n-1}]' if n > 1 else f'{p}{b}'
def sr4(b): return f's[{b}:{b+3}]'

class VA:
    def __init__(self, start, limit): self.n = start; self.limit = limit
    def __call__(self, cnt=1, align=None):
        if align is None: align = 1 if cnt == 1 else (2 if cnt == 2 else 4)
        self.n = (self.n + align - 1) // align * align
        b = self.n; self.n += cnt
        assert self.n <= self.limit, f'out of registers {self.n} > {self.limit}'
        return b

class K(Asm):
    def __init__(self):
        super().__init__(); self.vm = []; self.nst = 0; self.nlab = 0; self.names = []
    def vmem(self, text, tag):
        self(text); self.vm.append(tag)
    def vmwait(self, *tags, lgkm=None):
        idx = [i for i, t in enumerate(self.vm) if t in tags]
        s = ''
        if idx:
            n = len(self.vm) - 1 - max(idx)
            s += f' vmcnt({min(n, 63)})'
            self.vm = self.vm[len(self.vm) - n:] if n else []
        if lgkm is not None: s += f' lgkmcnt({lgkm})'
        if s: self('s_waitcnt' + s)
    def vmall(self):
        self('s_waitcnt vmcnt(0)'); self.vm = []
    def emit(self, x):
        if isinstance(x, tuple):
            if x[0] == 'vm': self.vmem(x[1], x[2])
            elif x[0] == 'wait': self.vmwait(*x[1:])
            elif x[0] == 'call': x[1]()
        else: self(x)
    def stamp(self, name='', real=False):
        if not STAMP: return
        if name and name[0] in 'ABCDEFGHI' and name[0] not in os.environ.get('STAMPSET', 'AB'): return
        if name in self.names:
            i = self.names.index(name)
        else:
            i = self.nst; self.nst += 1; self.names.append(name)
        assert i < 19
        self(f's_mem{"real" if real else ""}time s[{60+2*i}:{61+2*i}]')
    def newlabel(self, p):
        self.nlab += 1; return f'L{p}{self.nlab}'

S_W = 3
SRD_X = 4; SRD_WQKV = 8; SRD_WS = 12; SRD_A = 16; SRD_B = 20
P_X, P_WQKV, P_WO, P_W1, P_W3, P_W2, P_OUT, P_WS = 32, 34, 36, 40, 42, 44, 46, 50
S_TAG = 24; S_H = 25; S_TB = 26; S_RB = 27; S_CB = 28; S_TD = 29; S_FS = 30; S_J = 31
S_E0 = 38; S_L0 = 39
S_U0 = 48; S_U1 = 49
S_ONES = 52
T0, T1, T2, T3, T4, T5, T6 = 53, 54, 55, 56, 57, 58, 59
S_SPIN = 98
S_ROT = 39
S_DUM = 100
V_LANE = 1; V_OFF = 2; V_FL = 3
V_SRC = 212; V_P13 = 213; V_RD = 214
HKEEP = 216
XRES = 204
WOV = 224
PAIR = 57344; SCR = 2 * PAIR; SINGLE = SCR + 16384
RAW5 = 196

def xm(n):
    if n >= 64: return 's_mov_b64 exec, -1'
    if n < 31: return f's_mov_b64 exec, {hex((1 << n) - 1)}'
    lo = '-1' if n >= 32 else hex((1 << n) - 1)
    return f's_mov_b32 exec_lo, {lo}\ns_mov_b32 exec_hi, {hex((1 << max(0, n - 32)) - 1)}'

def srd(a, d, p, nbytes):
    a(f's_mov_b32 s{d}, s{p}\ns_mov_b32 s{d+1}, s{p+1}\ns_mov_b32 s{d+2}, {nbytes}\ns_mov_b32 s{d+3}, 0x20000')

def halfsum(a, x, t):
    a(f'v_mov_b32 v{t}, v{x}\nv_permlane32_swap_b32 v{x}, v{t}\nv_add_f32 v{x}, v{x}, v{t}')

def flag_store(a, sreg, vt):
    a(f'v_mov_b32 v{vt}, s{S_TAG}\ns_mov_b64 exec, 1')
    a.vmem(f'buffer_store_dword v{vt}, v{V_OFF}, {sr4(SRD_WS)}, s{sreg} offen sc1', 'flag')
    a('s_mov_b64 exec, -1')

def poll_issue(a, sreg, vaddr, nl, vt):
    a(xm(nl))
    a.vmem(f'buffer_load_dword v{vt}, v{vaddr}, {sr4(SRD_WS)}, s{sreg} offen sc1', 'poll')
    a('s_mov_b64 exec, -1')

def poll_check(a, sreg, vaddr, nl, vt):
    L = a.newlabel('poll'); D = L + 'd'
    a(xm(nl) + f'\ns_mov_b32 s{S_SPIN}, 0x40000')
    a.vmwait('poll')
    a(f'v_cmp_ne_u32 vcc, s{S_TAG}, v{vt}\ns_cbranch_vccz {D}')
    a.label(L)
    a(f'''
    s_sleep {opt('sleep', 2)}
    buffer_load_dword v{vt}, v{vaddr}, {sr4(SRD_WS)}, s{sreg} offen sc1
    s_sub_u32 s{S_SPIN}, s{S_SPIN}, 1
    s_waitcnt vmcnt(0)
    s_cbranch_scc1 {D}
    v_cmp_ne_u32 vcc, s{S_TAG}, v{vt}
    s_cbranch_vccnz {L}
    ''')
    a.label(D)
    a('s_mov_b64 exec, -1')

def ssrd(a, D, lim, pa, pb, na, nb, per, u0, u1):
    a(f'''
    s_lshl_b32 s{u0}, s2, 2
    s_add_u32 s{u0}, s{u0}, s{S_W}
    s_mov_b32 s{D+2}, {na}
    s_cmp_ge_u32 s{u0}, {lim}
    s_cselect_b32 s{D}, s{pb}, s{pa}
    s_cselect_b32 s{D+1}, s{pb+1}, s{pa+1}
    s_cselect_b32 s{D+2}, {nb}, s{D+2}
    s_cselect_b32 s{u1}, {lim}, 0
    s_sub_u32 s{u0}, s{u0}, s{u1}
    s_mul_i32 s{u0}, s{u0}, {per}
    s_min_u32 s{u0}, s{u0}, s{D+2}
    s_sub_u32 s{D+2}, s{D+2}, s{u0}
    s_add_u32 s{D}, s{D}, s{u0}
    s_addc_u32 s{D+1}, s{D+1}, 0
    s_mov_b32 s{D+3}, 0x20000
    ''')

def sld(D, o): return f's_buffer_load_dwordx2 s[{S_DUM}:{S_DUM+1}], {sr4(D)}, {o + 60}'

def phase_a(a, R):
    NSLOT = 5
    WR = 81920
    WQ = WR + NSLOT * 8192
    CSP = WQ + 28672
    PRV = CSP + 1536
    QX = 155648
    assert PRV + 2048 <= QX
    R['QX'] = QX
    Q0 = R['Q'][0]
    va = VA(4, 256)
    ACC = [va(16), va(16)]; accQ = va(16)
    PK = va(8); assert PK == Q0, (PK, Q0)
    X = [va(4) for _ in range(28)]
    NWF = 4
    WF = [[va(4) for j in range(2)] for b in range(NWF)]
    vx = [va(), va()]; vw = [va(), va()]
    ax = [va() for _ in range(4)]; aw = [va() for _ in range(4)]; ab = [va() for _ in range(4)]
    pr = [va(2) for _ in range(6)]
    cs = [pr[0], pr[1], pr[2]]; mu = pr[3]; rs = pr[4]; rq = pr[5]
    sm = [pr[0] + 1, pr[1] + 1]; sq = [pr[2] + 1, pr[3] + 1]
    hf = pr[4] + 1; n31 = pr[5] + 1
    vq = va()
    t = [va() for _ in range(7)] + [0]
    dB = t[7]
    assert va.n <= 240, va.n
    T16 = 240; U16 = accQ
    a(f'v_lshrrev_b32 v{hf}, 5, v{V_LANE}\nv_and_b32 v{n31}, 31, v{V_LANE}')
    for i in range(2):
        a(f'''
        v_lshrrev_b32 v{t[0]}, 3, v{V_LANE}
        v_add_u32 v{t[0]}, {8*i}, v{t[0]}
        v_lshrrev_b32 v{t[1]}, 1, v{t[0]}
        v_and_b32 v{t[1]}, 7, v{t[1]}
        v_and_b32 v{t[2]}, 7, v{V_LANE}
        v_xor_b32 v{t[1]}, v{t[1]}, v{t[2]}
        v_lshlrev_b32 v{t[1]}, 4, v{t[1]}
        v_mul_u32_u24 v{t[0]}, 896, v{t[0]}
        v_add_u32 v{vx[i]}, v{t[0]}, v{t[1]}
        ''')
    a(f'''
    v_subrev_u32 v{vx[1]}, 1024, v{vx[1]}
    v_lshrrev_b32 v{t[0]}, 3, v{V_LANE}
    v_lshrrev_b32 v{t[1]}, 2, v{V_LANE}
    v_and_b32 v{t[1]}, 4, v{t[1]}
    v_xor_b32 v{t[1]}, v{t[1]}, v{t[2]}
    v_min_u32 v{t[1]}, 6, v{t[1]}
    v_mul_u32_u24 v{t[0]}, 2688, v{t[0]}
    v_lshl_add_u32 v{vw[0]}, v{t[1]}, 4, v{t[0]}
    v_add_u32 v{vw[1]}, {8*2688 - 1024}, v{vw[0]}
    s_waitcnt lgkmcnt(0)
    ''')
    srd(a, SRD_X, P_X, X_BYTES); srd(a, SRD_WQKV, P_WQKV, WQKV_BYTES)
    SX, SW, LX, LW = T3, T4, T5, T6
    a(f'''
    s_lshl_b32 s{SX}, s{S_TB}, 2
    s_add_u32 s{SX}, s{SX}, s{S_W}
    s_mul_i32 s{SX}, s{SX}, {32*896}
    s_mul_i32 s{SW}, s{S_W}, {16*2688}
    s_lshr_b32 s{T0}, s{S_H}, 1
    s_mul_i32 s{T0}, s{T0}, 112
    s_add_u32 s{SW}, s{SW}, s{T0}
    s_and_b32 s{T0}, s{S_H}, 1
    s_mul_i32 s{T0}, s{T0}, 896
    s_add_u32 s{SW}, s{SW}, s{T0}
    s_add_u32 s{SW}, s{SW}, 896
    s_mul_i32 s{LX}, s{S_W}, 20480
    s_lshl_b32 s{LW}, s{S_W}, 11
    s_add_u32 s{LW}, s{LW}, {WR}
    ''')
    def dma_items(c):
        sl = c % NSLOT
        out = []
        for i in range(2):
            out.append(([f's_add_u32 m0, s{LW}, {sl*8192}', f's_mul_i32 s{T0}, s{S_ROT}, {64*2688}', f's_add_u32 s{T0}, s{T0}, s{SW}'] if i == 0 else []) +
                       [('vm', f'buffer_load_dwordx4 v{vw[i]}, {sr4(SRD_WQKV)}, s{T0} offen offset:{1024*i} lds', f'c{c}')])
        for i in range(4):
            out.append(([f's_add_u32 m0, s{LX}, {sl*4096}'] if i == 0 else []) +
                       ([f's_lshl_b32 s{T0}, s{S_ROT}, 7', f's_add_u32 s{T0}, s{T0}, s{SX}'] if i == 0 else []) +
                       ([f's_add_u32 s{T0}, s{T0}, 12288'] if i == 2 else []) +
                       [('vm', f'buffer_load_dwordx4 v{vx[i&1]}, {sr4(SRD_X)}, s{T0} offen offset:{1024*i} lds', f'c{c}')] +
                       ([f's_add_u32 s{S_ROT}, s{S_ROT}, 1', f's_cmp_eq_u32 s{S_ROT}, 7', f's_cselect_b32 s{S_ROT}, 0, s{S_ROT}'] if i == 3 else []))
        return out
    def dma(c):
        for it in dma_items(c):
            for x in it: a.emit(x)
    a.stamp('G_karg')
    NPRE = opt('npre', 2)
    a(f'''
    s_lshr_b32 s{S_ROT}, s{S_J}, 3
    s_mul_i32 s{S_ROT}, s{S_ROT}, {opt('rotm', 2)}
    s_and_b32 s{T0}, s{S_J}, 7
    s_add_u32 s{S_ROT}, s{S_ROT}, s{T0}
    s_mul_i32 s{T0}, s{S_ROT}, 37
    s_lshr_b32 s{T0}, s{T0}, 8
    s_mul_i32 s{T0}, s{T0}, 7
    s_sub_u32 s{S_ROT}, s{S_ROT}, s{T0}
    s_lshl_b32 s{S_DUM}, s{S_ROT}, 2
    ''')
    for c in range(NPRE): dma(c)
    if opt('touchA', 0):
        HBv = opt('hb', 3); nl = {1: 2, 2: 3, 3: 4, 4: 7}[HBv]; ntok = 4096 >> HBv >> 0
        ntok = (32 >> HBv) * 128
        rows_x = ntok // 128
        a(f'''
        s_lshl_b32 s{T1}, s{S_J}, 2
        s_add_u32 s{T1}, s{T1}, s{S_W}
        s_lshr_b32 s{T2}, s{S_TB}, {5 - HBv}
        s_mul_i32 s{T2}, s{T2}, {ntok * 896}
        s_mul_i32 s{T0}, s{T1}, {rows_x * 896}
        s_add_u32 s{T0}, s{T0}, s{T2}
        ''')
        nx = rows_x * 7
        for i in range(0, nx, 64):
            a(xm(nx - i))
            a.vmem(f'buffer_load_dword a{1 + i // 64}, v{V_FL}, {sr4(SRD_X)}, s{T0} offen', 'touch')
            a(f's_add_u32 s{T0}, s{T0}, 8192')
        per = 4 * 3 * nl
        a(f'''
        s_mov_b64 exec, -1
        v_mul_u32_u24 v{t[3]}, {(65536 + nl - 1) // nl}, v{V_LANE}
        v_lshrrev_b32 v{t[3]}, 16, v{t[3]}
        v_mul_u32_u24 v{t[4]}, {nl}, v{t[3]}
        v_sub_u32 v{t[4]}, v{V_LANE}, v{t[4]}
        v_mul_u32_u24 v{t[3]}, 896, v{t[3]}
        v_lshl_add_u32 v{t[3]}, v{t[4]}, 7, v{t[3]}
        s_mul_i32 s{T0}, s{T1}, {4 * 2688}
        s_lshr_b32 s{T2}, s{S_H}, {HBv}
        s_mul_i32 s{T2}, s{T2}, {56 << HBv}
        s_and_b32 s{T2}, s{T2}, 0xffffff80
        s_add_u32 s{T0}, s{T0}, s{T2}
        {xm(per)}
        ''')
        a.vmem(f'buffer_load_dword a3, v{t[3]}, {sr4(SRD_WQKV)}, s{T0} offen', 'touch')
        a('s_mov_b64 exec, -1')
    a.stamp('G_dma0')
    assert T1 % 2 == 0 and T2 == T1 + 1
    a(f's_add_u32 s{T1}, s{P_WS}, {WS_FLG}\ns_addc_u32 s{T2}, s{P_WS+1}, 0\ns_load_dword s{S_TAG}, s[{T1}:{T2}], 0')
    srd(a, SRD_WS, P_WS, WS_SIZE)
    def touch_item():
        TA, TB, TC = T1, T2, T0
        return [f's_lshl_b32 s{TA}, s2, 2', f's_add_u32 s{TA}, s{TA}, s{S_W}', f's_mul_i32 s{TB}, s{TA}, 1338', f's_lshr_b32 s{TB}, s{TB}, 18',
                f's_mul_i32 s{TC}, s{TB}, 196', f's_sub_u32 s{TA}, s{TA}, s{TC}', f's_lshl_b32 s{TA}, s{TA}, 13',
                f's_cmp_eq_u32 s{TB}, 1', f's_cselect_b32 s{SRD_A}, s{P_W3}, s{P_W1}', f's_cselect_b32 s{SRD_A+1}, s{P_W3+1}, s{P_W1+1}',
                f's_cmp_eq_u32 s{TB}, 2', f's_cselect_b32 s{SRD_A}, s{P_W2}, s{SRD_A}', f's_cselect_b32 s{SRD_A+1}, s{P_W2+1}, s{SRD_A+1}',
                f's_mov_b32 s{SRD_A+2}, {W1_BYTES}',
                f's_cmp_eq_u32 s{TB}, 3', f's_cselect_b32 s{SRD_A}, s{P_WO}, s{SRD_A}', f's_cselect_b32 s{SRD_A+1}, s{P_WO+1}, s{SRD_A+1}',
                f's_cselect_b32 s{SRD_A+2}, {WO_BYTES}, s{SRD_A+2}',
                f's_cmp_gt_u32 s{TB}, 3', f's_cselect_b32 s{SRD_A+2}, 0, s{SRD_A+2}', f's_mov_b32 s{SRD_A+3}, 0x20000',
                ('vm', f'buffer_load_dword a0, v{V_FL}, {sr4(SRD_A)}, s{TA} offen', 'touch')]
    def prew():
        a(f'''
        v_mov_b32 v{t[7]}, s{S_TAG}
        v_add_u32 v{t[7]}, -1, v{t[7]}
        v_lshlrev_b32 v{t[5]}, 2, v{V_LANE}
        {xm(32)}
        s_lshr_b32 s{T1}, s{S_H}, 1
        s_lshl_b32 s{T1}, s{T1}, 2
        s_add_u32 s{T1}, s{T1}, s{S_W}
        s_lshl_b32 s{T1}, s{T1}, 1
        s_and_b32 s{T2}, s{S_H}, 1
        s_add_u32 s{T1}, s{T1}, s{T2}
        s_lshl_b32 s{T1}, s{T1}, 4
        s_add_u32 s{T1}, s{T1}, s{S_TB}
        s_lshl_b32 s{T1}, s{T1}, 7
        s_add_u32 s{T1}, s{T1}, {FL_A}
        ''')
        st_ = lambda: a.vmem(f'buffer_store_dword v{t[7]}, v{t[5]}, {sr4(SRD_WS)}, s{T1} offen sc1', 'prew')
        st_()
        a(f's_lshl_b32 s{T1}, s{S_TB}, 2\ns_add_u32 s{T1}, s{T1}, s{S_W}\ns_lshl_b32 s{T1}, s{T1}, 4\ns_add_u32 s{T1}, s{T1}, s{S_H}\ns_lshl_b32 s{T1}, s{T1}, 7\ns_add_u32 s{T1}, s{T1}, {FL_B}')
        st_()
        a(f's_lshl_b32 s{T1}, s{S_TD}, 2\ns_add_u32 s{T1}, s{T1}, s{S_W}\ns_lshl_b32 s{T1}, s{T1}, 4\ns_add_u32 s{T1}, s{T1}, s{S_FS}\ns_lshl_b32 s{T1}, s{T1}, 7\ns_add_u32 s{T1}, s{T1}, {FL_D1}')
        for i in range(3):
            st_(); a(f's_add_u32 s{T1}, s{T1}, {FLS}')
        a(f'''
        s_lshl_b32 s{T1}, s{S_RB}, 1
        s_and_b32 s{T2}, s{S_W}, 1
        s_add_u32 s{T1}, s{T1}, s{T2}
        s_lshl_b32 s{T1}, s{T1}, 3
        s_add_u32 s{T1}, s{T1}, s{S_CB}
        s_lshl_b32 s{T1}, s{T1}, 1
        s_lshr_b32 s{T2}, s{S_W}, 1
        s_add_u32 s{T1}, s{T1}, s{T2}
        s_lshl_b32 s{T1}, s{T1}, 7
        s_add_u32 s{T1}, s{T1}, {FL_C}
        s_cmp_ge_u32 s{S_J}, 28
        s_cselect_b32 s{T1}, 0x40000000, s{T1}
        ''')
        st_()
        a('s_mov_b64 exec, -1')
    def dmaq_items():
        out = []
        for i in range(7):
            out.append([] +
                       [f's_add_u32 m0, s{S_U0}, {i*1024}', f's_mul_i32 s{T0}, s{S_U1}, {16*2688}', f's_add_u32 s{T0}, s{T0}, s{S_E0}',
                        ('vm', f'buffer_load_dwordx4 v{vq}, {sr4(SRD_WQKV)}, s{T0} offen lds', 'wq'),
                        f's_add_u32 s{S_U1}, s{S_U1}, 1', f's_cmp_eq_u32 s{S_U1}, 28', f's_cselect_b32 s{S_U1}, 0, s{S_U1}'])
        return out
    a(f'''
    s_mul_i32 s{S_U0}, s{S_W}, {7*1024}
    s_add_u32 s{S_U0}, s{S_U0}, {WQ}
    s_mul_i32 s{S_U1}, s{S_W}, 7
    s_add_u32 s{S_U1}, s{S_U1}, s{S_DUM}
    s_cmp_ge_u32 s{S_U1}, 28
    s_cselect_b32 s{T0}, 28, 0
    s_sub_u32 s{S_U1}, s{S_U1}, s{T0}
    s_mul_i32 s{S_E0}, s{S_H}, 56
    ''')
    a(f'''
    v_lshrrev_b32 v{t[0]}, 2, v{V_LANE}
    v_mul_u32_u24 v{t[0]}, 2688, v{t[0]}
    v_and_b32 v{t[3]}, 3, v{V_LANE}
    v_lshl_add_u32 v{vq}, v{t[3]}, 4, v{t[0]}
    v_lshrrev_b32 v{t[0]}, 1, v{n31}
    v_and_b32 v{t[0]}, 7, v{t[0]}
    v_lshlrev_b32 v{t[1]}, 7, v{n31}
    v_add_u32 v{t[1]}, s{LX}, v{t[1]}
    v_bfe_u32 v{t[2]}, v{V_LANE}, 4, 1
    v_lshlrev_b32 v{t[2]}, 5, v{t[2]}
    v_lshl_add_u32 v{t[2]}, v{t[3]}, 3, v{t[2]}       ; cg*32 + c4*8
    v_bfe_u32 v{t[3]}, v{V_LANE}, 2, 2                ; r
    v_lshl_add_u32 v{t[5]}, v{hf}, 3, v{t[3]}         ; 8hf + r
    v_lshl_add_u32 v{t[6]}, v{t[5]}, 6, v{t[2]}
    v_bfe_u32 v{t[3]}, v{V_LANE}, 3, 1
    v_lshlrev_b32 v{t[3]}, 6, v{t[3]}                 ; 64*bit
    v_add_u32 v{t[4]}, 56, v{t[2]}
    v_xor_b32 v{t[4]}, v{t[4]}, v{t[3]}
    v_xor_b32 v{t[2]}, v{t[2]}, v{t[3]}
    v_sub_u32 v{dB}, v{t[4]}, v{t[2]}
    v_lshl_add_u32 v{t[2]}, v{t[5]}, 7, v{t[2]}
    v_add_u32 v{t[2]}, {WR}, v{t[2]}
    ''')
    AQ = t[6]
    for n in range(4):
        a(f'''
        s_add_u32 s{T0}, s{S_W}, {n}
        s_and_b32 s{T0}, s{T0}, 3
        s_lshl_b32 s{T1}, s{T0}, 1
        v_add_u32 v{t[4]}, s{T1}, v{hf}
        v_xor_b32 v{t[4]}, v{t[4]}, v{t[0]}
        v_lshl_add_u32 v{ax[n]}, v{t[4]}, 4, v{t[1]}
        s_lshl_b32 s{T1}, s{T0}, 11
        v_add_u32 v{aw[n]}, s{T1}, v{t[2]}
        v_add_u32 v{ab[n]}, v{dB}, v{aw[n]}
        ''')
    for r in sm + sq + cs: a(f'v_mov_b32 v{r}, 0')
    a(f's_mov_b32 s{S_ONES}, 0x3f803f80')
    PA = t[0]; CA = t[1]; CR = t[2]; PB = vx[0]
    def reads(s_):
        c, n = divmod(s_, 4); sl = c % NSLOT; b = s_ % NWF
        return [f'ds_read_b128 {vr(X[s_],4)}, v{ax[n]} offset:{sl*4096}'] + \
               [f'ds_read_b64_tr_b16 {vr(WF[b][0]+2*u,2)}, v{aw[n]} offset:{sl*8192 + u*512}' for u in range(2)] + \
               [f'ds_read_b64_tr_b16 {vr(WF[b][1]+2*u,2)}, v{ab[n]} offset:{sl*8192 + u*512}' for u in range(2)]
    if opt('spre', 1):
        ssrd(a, SRD_A, 512, P_W1, P_W3, W1_BYTES, W1_BYTES, 3200, T1, T2)
        for i in range(opt('spreA', 0)): a(sld(SRD_A, 128*i))
    a.stamp('A_issued')
    a.vmwait('c0', lgkm=0); a('s_barrier'); a.stamp('A_c0')
    a(f's_add_u32 s{S_TAG}, s{S_TAG}, 1')
    for x in reads(0) + reads(1): a(x)
    a(f's_bitcmp1_b32 s{S_H}, 0\ns_cbranch_scc1 LAV')
    vm0 = list(a.vm)
    for typ in range(2):
        if typ == 1:
            a.label('LAV'); a.vm = list(vm0)
        step = 0
        q_dma = []
        for c in range(NPRE, 7): q_dma += [(max(0, c - NSLOT + 1), it) for it in dma_items(c)]
        wq0 = opt('wq0', 11); wqs = opt('wqs', 2)
        NQE = opt('nqe', 7)
        q_dma += [(0, [('at', wq0 + wqs*i)] + it) for i, it in enumerate(dmaq_items()) if i < NQE]
        pass
        if opt('prew', 1): q_dma.insert(len(q_dma) - NQE, (0, [('at', opt('prewat', 12)), ('call', prew)]))
        PER = opt('dmaper', 1); cur = [0]
        def side(c):
            for _ in range(PER):
                if q_dma and q_dma[0][0] <= c:
                    x0 = q_dma[0][1][0]
                    if isinstance(x0, tuple) and x0[0] == 'at' and x0[1] > cur[0]: return
                    for x in q_dma.pop(0)[1]: a.emit(x)
        def dots(c):
            for n in range(4):
                x = X[4*c+n]
                for i in range(4):
                    a(f'v_dot2c_f32_bf16 v{sm[i&1]}, s{S_ONES}, v{x+i}')
                    a(f'v_dot2c_f32_bf16 v{sq[i&1]}, v{x+i}, v{x+i}')
                side(c + 1)
        def mf(step_, j):
            x = X[step_]; b = step_ % NWF
            A_, B_ = (WF[b][j], x) if typ == 0 else (x, WF[b][j])
            return f'{MFMA} {vr(ACC[j],16)}, {vr(A_,4)}, {vr(B_,4)}, {vr(ACC[j],16) if step_ else 0}'
        def csdots(step_):
            for i in range(4):
                for j in range(2): a(f'v_dot2c_f32_bf16 v{cs[1+j]}, s{S_ONES}, v{WF[step_ % NWF][j]+i}')
        for c in range(6):
            for n in range(4):
                if n == 2:
                    while q_dma and any(isinstance(x, tuple) and x[0] == 'vm' and x[2] == f'c{c+1}' for _, it in q_dma for x in it):
                        assert q_dma[0][0] <= c
                        for x in q_dma.pop(0)[1]: a.emit(x)
                    a.stamp(f'G_pre{c+1}')
                    a.vmwait(f'c{c+1}', lgkm=0); a('s_barrier')
                    a.stamp(f'G_c{c+1}')
                else:
                    a('s_waitcnt lgkmcnt(5)')
                rd = reads(step + 2)
                if n == 0: csdots(step)
                for j in range(2):
                    a(mf(step, j))
                    for y in (rd[:3] if j == 0 else rd[3:]): a(y)
                    side(c + (1 if n >= 2 else 0))
                step += 1; cur[0] = step
            if c == 5:
                for y in reads(26) + reads(27): a(y)
            dots(c)
        a('s_waitcnt lgkmcnt(0)')
        cur[0] = 24
        csdots(24); dots(6)
        while q_dma:
            for x in q_dma.pop(0)[1]: a.emit(x)
        hs = lambda x, tt: [f'v_mov_b32 v{tt}, v{x}', f'v_permlane32_swap_b32 v{x}, v{tt}', f'v_add_f32 v{x}, v{x}, v{tt}']
        ex = hs(cs[1], t[3]) + hs(cs[2], t[4]) + [
            f's_mul_i32 s{T0}, s{S_W}, 384', f's_add_u32 s{T0}, s{T0}, {CSP}', f'v_lshlrev_b32 v{t[7]}, 2, v{n31}', f'v_add_u32 v{CA}, s{T0}, v{t[7]}',
            f'ds_write_b32 v{CA}, v{cs[1]} offset:128', f'ds_write_b32 v{CA}, v{cs[2]} offset:256',
            f'v_add_f32 v{sm[0]}, v{sm[0]}, v{sm[1]}', f'v_add_f32 v{sq[0]}, v{sq[0]}, v{sq[1]}'] + hs(sm[0], t[3]) + hs(sq[0], t[4]) + [
            f'v_mul_u32_u24 v{CR}, 768, v{hf}', f'v_add_u32 v{CR}, v{CR}, v{t[7]}', f'v_add_u32 v{CR}, {CSP}, v{CR}',
            's_waitcnt lgkmcnt(0)', 's_barrier']
        for j in (1, 2): ex += [f'ds_read_b32 v{cs[j]}, v{CR} offset:{j*128}', f'ds_read_b32 v{t[3+j]}, v{CR} offset:{384 + j*128}']
        ex += [f'v_mul_f32 v{mu}, {fx(1.0/448)}, v{sm[0]}', f'v_mul_f32 v{t[3]}, {fx(1.0/448)}, v{sq[0]}',
               f'v_fma_f32 v{t[3]}, -v{mu}, v{mu}, v{t[3]}', f'v_max_f32 v{t[3]}, 0, v{t[3]}', f'v_add_f32 v{t[3]}, {fx(1e-5)}, v{t[3]}',
               f'v_rsq_f32 v{rs}, v{t[3]}', f's_lshl_b32 s{T0}, s{S_W}, 9', f's_add_u32 s{T0}, s{T0}, {PRV}',
               f'v_add_u32 v{PA}, s{T0}, v{t[7]}', f'v_lshlrev_b32 v{PB}, 4, v{hf}', f'v_add_u32 v{PB}, s{T0}, v{PB}']
        if typ == 1:
            ex += [f'ds_write_b32 v{PA}, v{mu} offset:256', f'ds_write_b32 v{PA}, v{rs} offset:384']
            for q in range(4): ex += [f'ds_read_b128 {vr(T16+4*q,4)}, v{PB} offset:{256 + 32*q}', f'ds_read_b128 {vr(U16+4*q,4)}, v{PB} offset:{384 + 32*q}']
            ex += ['s_waitcnt lgkmcnt(10)']
        else:
            ex += ['s_waitcnt lgkmcnt(0)']
        for j in (1, 2): ex += [f'v_add_f32 v{cs[j]}, v{cs[j]}, v{t[3+j]}']
        ex += hs(cs[1], t[3]) + hs(cs[2], t[4])
        if typ == 0:
            ex += [f'ds_write_b32 v{PA}, v{cs[1]}', f'ds_write_b32 v{PA}, v{cs[2]} offset:128']
            ex += [f'ds_read_b128 {vr(T16+4*q,4)}, v{PB} offset:{32*q}' for q in range(4)]
            ex += [f'ds_read_b128 {vr(U16+4*q,4)}, v{PB} offset:{128 + 32*q}' for q in range(4)]
            ex += [f'v_cmp_lt_u32 vcc, 31, v{V_LANE}']
        else:
            ex += [f'v_cmp_eq_u32 vcc, 28, v{n31}', f'v_mov_b32 v{t[7]}, s{S_ONES}', f'v_cndmask_b32 v{t[7]}, 0, v{t[7]}, vcc', f'v_cmp_lt_u32 vcc, 27, v{n31}']
        ex += [f'v_mul_f32 v{rq}, {fx(28**-0.5 * math.log2(math.e))}, v{rs}',
               f's_lshl_b32 s{T0}, s{S_TB}, 2', f's_add_u32 s{T0}, s{T0}, s{S_W}', f's_and_b32 s{T1}, s{S_H}, 14', f's_lshl_b32 s{T1}, s{T1}, 6',
               f's_add_u32 s{T0}, s{T0}, s{T1}', f's_lshl_b32 s{T0}, s{T0}, 12', f's_add_u32 s{T1}, s{T0}, {64*4096}']
        order = [(st_, 0) for st_ in range(24, 28)] + [(st_, 1) for st_ in range(24, 28)]
        per = opt('exper', 6)
        for st_, j in order:
            a(mf(st_, j))
            for x in ex[:per]: a(x)
            ex = ex[per:]
        for x in ex: a(x)
        a.stamp('A_kvloop')
        NEG1 = 'op_sel_hi:[1,0,1] neg_lo:[0,1,0] neg_hi:[0,1,0]'
        for j in range(2):
            A_ = ACC[j]; P_ = WF[j][0]
            if typ == 0:
                a(f's_waitcnt lgkmcnt({4*(1-j)})')
                C_ = (T16, U16)[j]
                for r in range(0, 16, 2): a(f'v_pk_fma_f32 {vr(A_+r,2)}, {vr(C_+r,2)}, {vr(mu,2)}, {vr(A_+r,2)} {NEG1}')
                for r in range(0, 16, 2): a(f'v_pk_mul_f32 {vr(A_+r,2)}, {vr(A_+r,2)}, {vr(rs,2)} op_sel_hi:[1,0]')
                for i in range(8): a(f'v_cvt_pk_bf16_f32 v{P_+i}, v{A_+2*i}, v{A_+2*i+1}')
                if j == 0: a(f'v_mov_b32 v{t[3]}, s{S_ONES}\nv_mov_b32 v{t[4]}, 0x3f80')
                a(f'v_cndmask_b32 v{P_+6}, v{P_+6}, v{t[3]}, vcc\nv_cndmask_b32 v{P_+7}, v{P_+7}, v{t[4]}, vcc')
            else:
                if j == 0: a('s_waitcnt lgkmcnt(0)')
                for r in range(0, 16, 2): a(f'v_pk_fma_f32 {vr(A_+r,2)}, {vr(T16+r,2)}, {vr(cs[1+j],2)}, {vr(A_+r,2)} {NEG1}')
                for r in range(0, 16, 2): a(f'v_pk_mul_f32 {vr(A_+r,2)}, {vr(A_+r,2)}, {vr(U16+r,2)}')
                for i in range(8): a(f'v_cvt_pk_bf16_f32 v{P_+i}, v{A_+2*i}, v{A_+2*i+1}')
                for i in range(8): a(f'v_cndmask_b32 v{P_+i}, v{P_+i}, v{t[7]}, vcc')
            for u in range(2):
                a.vmem(f'buffer_store_dwordx4 {vr(P_+4*u,4)}, v{V_OFF}, {sr4(SRD_WS)}, s{(T0, T1)[j]} offen offset:{2048*typ + 1024*u} sc1', 'stA')
        if typ == 0: a('s_branch LAQ')
    a.label('LAQ')
    a.stamp('A_kvst')
    aq = aw
    for n in range(4):
        a(f'''
        s_add_u32 s{T0}, s{S_W}, {n}
        s_and_b32 s{T0}, s{T0}, 3
        s_lshl_b32 s{T0}, s{T0}, 10
        s_add_u32 s{T0}, s{T0}, {WQ}
        v_add_u32 v{aq[n]}, s{T0}, v{AQ}
        ''')
    a(f'''
    s_lshr_b32 s{T1}, s{S_H}, 1
    s_lshl_b32 s{T1}, s{T1}, 2
    s_add_u32 s{T1}, s{T1}, s{S_W}
    s_lshl_b32 s{T1}, s{T1}, 12
    s_add_u32 s{T5}, s{T1}, {FL_A}
    s_and_b32 s{T1}, s{S_H}, 1
    s_lshl_b32 s{T1}, s{T1}, 4
    s_add_u32 s{T1}, s{T1}, s{S_TB}
    s_lshl_b32 s{T1}, s{T1}, 7
    s_add_u32 s{T1}, s{T5}, s{T1}
    ''')
    def publish():
        a.vmwait('stA'); flag_store(a, T1, t[3]); a.stamp('A_flag')
    FAQ = opt('fAq', 7)
    for i, it in enumerate(dmaq_items()):
        if i >= NQE:
            for x in it: a.emit(x)
        if i == FAQ: publish()
    a.vmwait('wq'); a('s_barrier')
    a.stamp('A_wq')
    QB = [ACC[0] + 4*i for i in range(8)]
    NQ = 8
    def rdq(s_):
        c, n = divmod(s_, 4)
        for u in range(2): a(f'ds_read_b64_tr_b16 {vr(QB[s_ % NQ]+2*u,2)}, v{aq[n]} offset:{c*4096 + u*256}')
    AH = 5
    for s_ in range(AH): rdq(s_)
    hs = lambda x, tt: [f'v_mov_b32 v{tt}, v{x}', f'v_permlane32_swap_b32 v{x}, v{tt}', f'v_add_f32 v{x}, v{x}, v{tt}']
    ex = []
    for s_ in range(28):
        if s_ + AH < 28:
            a(f's_waitcnt lgkmcnt({2*(AH-1)})')
        elif s_ == 28 - AH:
            a('s_waitcnt lgkmcnt(0)')
            for i in range(4): a(f'v_dot2c_f32_bf16 v{cs[0]}, s{S_ONES}, v{QB[24 % NQ]+i}')
            ex = hs(cs[0], t[4]) + [f'ds_write_b32 v{CA}, v{cs[0]}', 's_waitcnt lgkmcnt(0)', 's_barrier',
                 f'ds_read_b32 v{cs[0]}, v{CR}', f'ds_read_b32 v{t[4]}, v{CR} offset:384', f'v_cmp_lt_u32 vcc, 31, v{V_LANE}', 's_waitcnt lgkmcnt(0)',
                 f'v_add_f32 v{cs[0]}, v{cs[0]}, v{t[4]}'] + hs(cs[0], t[4]) + [f'ds_write_b32 v{PA}, v{cs[0]}'] + \
                 [f'ds_read_b128 {vr(T16+4*q,4)}, v{PB} offset:{32*q}' for q in range(4)]
        if s_ % 4 == 0 and s_ < 24:
            for i in range(4): a(f'v_dot2c_f32_bf16 v{cs[0]}, s{S_ONES}, v{QB[s_ % NQ]+i}')
        a(f'{MFMA} {vr(accQ,16)}, {vr(QB[s_ % NQ],4)}, {vr(X[s_],4)}, {vr(accQ,16) if s_ else 0}')
        if s_ + AH < 28: rdq(s_ + AH)
        for x in ex[:4]: a(x)
        ex = ex[4:]
        if s_ == opt('fAs', 20) and FAQ > 6: publish()
    for x in ex: a(x)
    a('s_waitcnt lgkmcnt(0)')
    NEG1 = 'op_sel_hi:[1,0,1] neg_lo:[0,1,0] neg_hi:[0,1,0]'
    for r in range(0, 16, 2): a(f'v_pk_fma_f32 {vr(accQ+r,2)}, {vr(T16+r,2)}, {vr(mu,2)}, {vr(accQ+r,2)} {NEG1}')
    for r in range(0, 16, 2): a(f'v_pk_mul_f32 {vr(accQ+r,2)}, {vr(accQ+r,2)}, {vr(rq,2)} op_sel_hi:[1,0]')
    for i in range(8): a(f'v_cvt_pk_bf16_f32 v{Q0+i}, v{accQ+2*i}, v{accQ+2*i+1}')
    for i in (6, 7): a(f'v_cndmask_b32_e64 v{Q0+i}, v{Q0+i}, 0, vcc')
    a.stamp('A_q')

def w13_setup(a, S13, L13):
    a(f'''
    s_cmp_lt_u32 s{S_W}, 2
    s_cselect_b32 s{SRD_B}, s{P_W1}, s{P_W3}
    s_cselect_b32 s{SRD_B+1}, s{P_W1+1}, s{P_W3+1}
    s_mov_b32 s{SRD_B+2}, {W1_BYTES}
    s_mov_b32 s{SRD_B+3}, 0x20000
    s_and_b32 s{T0}, s{S_W}, 1
    s_mul_i32 s{S13}, s{T0}, {224*3584}
    s_mul_i32 s{T0}, s{S_FS}, 224
    s_add_u32 s{S13}, s{S13}, s{T0}
    s_mul_i32 s{L13}, s{S_W}, 14336
    ''')

def pair_dma(S13, L13, slot, col, i, tag):
    return [f's_add_u32 m0, s{L13}, {slot*PAIR + i*1024}',
            f's_add_u32 s{T0}, s{S13}, {col + i*16*3584}',
            ('vm', f'buffer_load_dwordx4 v{V_P13}, {sr4(SRD_B)}, s{T0} offen lds', tag)]

def alloc_b():
    va = VA(4, 204)
    KV = [va(16) for _ in range(3)] + ([WOV] if opt('nkv', 4) == 4 else [])
    Q = [va(8) for _ in range(4)]
    O = [va(16) for _ in range(4)]
    S = [va(16), va(16)]
    P = [va(8), va(8)]
    t = [va() for _ in range(8)]
    v5 = 215 + 8
    return dict(KV=KV, Q=Q, O=O, S=S, P=P, t=t, v5=v5)

def phase_b(a, R, stg):
    KV, Q, O, S, P, t, v5 = (R[k] for k in ('KV', 'Q', 'O', 'S', 'P', 't', 'v5'))
    QX = R['QX']
    S13, L13, SKV, SB = T3, T4, T6, T2
    qa = t[4:8]
    for lq in range(4):
        a(f'''
        s_add_u32 s{T0}, s{S_W}, {lq}
        s_and_b32 s{T0}, s{T0}, 3
        s_lshl_b32 s{T0}, s{T0}, 11
        s_add_u32 s{T0}, s{T0}, {QX}
        v_add_u32 v{qa[lq]}, s{T0}, v{V_OFF}
        ''')
    a(f'ds_write_b128 v{qa[0]}, {vr(Q[0],4)}')
    if opt('pollA', 1) == 0: poll_issue(a, T5, V_FL, 32, t[0])
    stg.src_setup(t[1], t[2], t[3])
    w13_setup(a, S13, L13)
    a(f'''
    s_lshl_b32 s{T0}, s{S_E0}, 5
    s_add_u32 s{S13}, s{S13}, s{T0}
    s_and_b32 s{T0}, s{S_W}, 2
    v_and_b32 v{t[1]}, 3, v{V_LANE}
    v_xor_b32 v{t[1]}, s{T0}, v{t[1]}
    v_lshrrev_b32 v{t[2]}, 2, v{V_LANE}
    v_mul_u32_u24 v{t[2]}, 3584, v{t[2]}
    v_lshl_add_u32 v{V_P13}, v{t[1]}, 4, v{t[2]}
    s_lshl_b32 s{T0}, s{T0}, 1
    v_lshrrev_b32 v{t[1]}, 1, v{V_LANE}
    v_xor_b32 v{t[1]}, s{T0}, v{t[1]}
    v_mul_u32_u24 v{t[1]}, 3584, v{t[1]}
    v_and_b32 v{t[2]}, 1, v{V_LANE}
    v_lshl_add_u32 v{v5}, v{t[2]}, 4, v{t[1]}
    s_lshl_b32 s{SKV}, s{S_H}, 6
    s_add_u32 s{SKV}, s{SKV}, s{S_W}
    s_lshl_b32 s{SKV}, s{SKV}, 12
    s_sub_u32 s{SB}, s{S_TB}, 1
    s_waitcnt lgkmcnt(0)
    s_barrier
    ''')
    for lq in range(1, 4): a(f'ds_read_b128 {vr(Q[lq],4)}, v{qa[lq]}')
    spre = []; spre2 = []
    if opt('spre', 1):
        ssrd(a, SRD_WQKV, 784, P_W2, P_WO, W2_BYTES, WO_BYTES, 2048, S_U0, S_U1)
        spre = [[sld(SRD_A, 128*i)] for i in range(opt('spreA', 0), 25)]
        spre2 = [[sld(SRD_WQKV, 128*i)] for i in range(16)]
        if opt('spre0', 0):
            a('s_waitcnt lgkmcnt(0)')
            for _ in range(opt('spre0', 0)): a(spre.pop(0)[0])
    if opt('pollA', 1) == 1:
        if opt('dlyA', 10): a(f"s_sleep {opt('dlyA', 10)}")
        poll_issue(a, T5, V_FL, 32, t[0])
    a.stamp('B_pre')
    poll_check(a, T5, V_FL, 32, t[0])
    a.stamp('B_poll')
    def kvload(buf):
        return [f's_add_u32 s{SB}, s{SB}, 1', f's_and_b32 s{SB}, s{SB}, 15', f's_lshl_b32 s{T1}, s{SB}, 14', f's_add_u32 s{T1}, s{T1}, s{SKV}'] + \
               [('vm', f'buffer_load_dwordx4 {vr(KV[buf]+4*j,4)}, v{V_OFF}, {sr4(SRD_WS)}, s{T1} offen offset:{1024*j} sc1', f'k{buf}' if j < 2 else f'kv{buf}') for j in range(4)]
    NKV = len(KV)
    for b in range(NKV):
        for x in kvload(b): a.emit(x)
    pre = []
    for g in range(7):
        for i in (2*g, 2*g + 1):
            pre.append(pair_dma(S13, L13, 0, 0, i, 'w13'))
            pre.append(pair_dma(S13, L13, 1, 64, i, 'w13'))
        pre.append([f's_add_u32 s{T0}, s{S13}, {128 + g*32*3584}',
                    ('vm', f'buffer_load_dwordx4 {vr(RAW5+4*g,4,"a")}, v{v5}, {sr4(SRD_B)}, s{T0} offen', 'w13')])
    vx = qa[1]
    xr_items = [[f's_and_b32 s{S_U0}, s{S_W}, 1', f's_lshl_b32 s{S_U1}, s{S_RB}, 1', f's_add_u32 s{S_U0}, s{S_U0}, s{S_U1}', f's_mul_i32 s{S_U0}, s{S_U0}, {32*896}'],
                [f's_lshr_b32 s{S_U1}, s{S_W}, 1', f's_lshl_b32 s{S_U1}, s{S_U1}, 6', f's_add_u32 s{S_U0}, s{S_U0}, s{S_U1}', f's_lshl_b32 s{S_U1}, s{S_CB}, 7'],
                [f's_add_u32 s{S_U0}, s{S_U0}, s{S_U1}', f'v_and_b32 v{vx}, 31, v{V_LANE}', f'v_lshrrev_b32 v{qa[2]}, 5, v{V_LANE}', f'v_mul_u32_u24 v{vx}, 896, v{vx}'],
                [f'v_lshl_add_u32 v{vx}, v{qa[2]}, 4, v{vx}',
                 ('vm', f'buffer_load_dwordx4 {vr(XRES,4)}, v{vx}, {sr4(SRD_X)}, s{S_U0} offen', 'xr'),
                 ('vm', f'buffer_load_dwordx4 {vr(XRES+4,4)}, v{vx}, {sr4(SRD_X)}, s{S_U0} offen offset:32', 'xr')]]
    raw = []
    for g in range(opt('hgIn', 0)): raw += stg.load_items()
    a.vmwait('k0')
    a(f'{MFMA} {vr(S[0],16)}, {vr(KV[0],4)}, {vr(Q[0],4)}, 0')
    a(f'{MFMA} {vr(S[0],16)}, {vr(KV[0]+4,4)}, {vr(Q[0]+4,4)}, {vr(S[0],16)}')
    a(f'v_cmp_lt_u32 vcc, 31, v{V_LANE}')
    a(f'v_max3_f32 v{t[0]}, v{S[0]}, v{S[0]+1}, v{S[0]+2}\nv_max3_f32 v{t[1]}, v{S[0]+3}, v{S[0]+4}, v{S[0]+5}')
    for r in range(6, 14, 4):
        a(f'v_max3_f32 v{t[0]}, v{t[0]}, v{S[0]+r}, v{S[0]+r+1}\nv_max3_f32 v{t[1]}, v{t[1]}, v{S[0]+r+2}, v{S[0]+r+3}')
    a(f'''
    v_max3_f32 v{t[0]}, v{t[0]}, v{S[0]+14}, v{S[0]+15}
    v_max_f32 v{t[0]}, v{t[0]}, v{t[1]}
    v_mov_b32 v{t[1]}, v{t[0]}
    v_permlane32_swap_b32 v{t[0]}, v{t[1]}
    v_max_f32 v{t[0]}, v{t[0]}, v{t[1]}
    v_cvt_pk_bf16_f32 v{t[0]}, -v{t[0]}, 0
    v_cndmask_b32 v{Q[0]+6}, v{Q[0]+6}, v{t[0]}, vcc
    ds_write_b128 v{qa[0]}, {vr(Q[0]+4,4)} offset:1024
    v_lshlrev_b32 v{t[2]}, 16, v{t[0]}
    ''')
    assert t[2] % 2 == 0
    for r in range(0, 16, 2): a(f'v_pk_add_f32 {vr(S[0]+r,2)}, {vr(S[0]+r,2)}, {vr(t[2],2)} op_sel_hi:[1,0]')
    a('s_waitcnt lgkmcnt(0)\ns_barrier')
    for lq in range(1, 4): a(f'ds_read_b128 {vr(Q[lq]+4,4)}, v{qa[lq]} offset:1024')
    a.stamp('B_first')
    def slot(T, q, side):
        cb = q & 1; nb = cb ^ 1
        kvn, nq = (T % NKV, q + 1) if q < 3 else ((T + 1) % NKV, 0)
        kvp, pq = (T % NKV, q - 1) if q else ((T - 1) % NKV, 3)
        no_qk = (T == 15 and q == 3); no_pv = (T == 0 and q == 0); first = (T == 0 or (T == 1 and q == 0))
        M = [None if no_qk else f'{MFMA} {vr(S[nb],16)}, {vr(KV[kvn],4)}, {vr(Q[nq],4)}, 0',
             None if no_qk else f'{MFMA} {vr(S[nb],16)}, {vr(KV[kvn]+4,4)}, {vr(Q[nq]+4,4)}, {vr(S[nb],16)}',
             None if no_pv else f'{MFMA} {vr(O[pq],16)}, {vr(KV[kvp]+8,4)}, {vr(P[nb],4)}, {0 if first else vr(O[pq],16)}',
             None if no_pv else f'{MFMA} {vr(O[pq],16)}, {vr(KV[kvp]+12,4)}, {vr(P[nb]+4,4)}, {vr(O[pq],16)}']
        e = lambda r: f'v_exp_f32 v{S[cb]+r}, v{S[cb]+r}'
        c = lambda j: f'v_cvt_pk_bf16_f32 v{P[cb]+j}, v{S[cb]+2*j}, v{S[cb]+2*j+1}'
        seq = [M[0], e(0), e(1), e(2), c(0), e(3), e(4), M[1], c(1), e(5), e(6), c(2), e(7), e(8),
               M[2], c(3), e(9), e(10), c(4), e(11), e(12), M[3], c(5), e(13), e(14), e(15), c(6), c(7)]
        if T == 0 and q == 0: seq.insert(7, 's_waitcnt lgkmcnt(0)')
        side = list(side)
        per = (len(side) + 3) // 4
        for x in seq:
            if x is None: continue
            a(x)
            if x.startswith('v_mfma'):
                for y in side[:per]: a.emit(y)
                side = side[per:]
        for y in side: a.emit(y)
    for T in range(16):
        for q in range(4):
            side = []
            if q == 1 and T >= 1 and T + NKV - 1 <= 15: side = kvload((T + NKV - 1) % NKV)
            elif pre and T >= opt('preT', 6):
                side = pre.pop(0)
                left = sum(1 for T2 in range(T, 16) for q2 in range(4) if (T2, q2) > (T, q) and not (q2 == 1 and T2 <= 16 - NKV))
                if len(pre) > left: side = side + pre.pop(0)
            if (T, q) != (0, 0):
                for _ in range(opt('sper', 1)):
                    if spre: side = side + spre.pop(0)
                    elif spre2 and T >= opt('spre2T', 5): side = side + spre2.pop(0)
            if raw and not spre and T >= opt('rawT', 11) and (q != 1 or T >= 14): side = side + raw.pop(0)
            if T == opt('xrT', 2): side = side + xr_items.pop(0)
            if T == 0 and q == 1: a.vmwait('kv0')
            if q == 3 and T < 15: a.vmwait(f'kv{(T+1)%NKV}')
            slot(T, q, side)
    assert not pre and not spre and not spre2 and not raw
    for lq in range(4):
        a(f'''
        s_add_u32 s{T0}, s{S_W}, {lq}
        s_and_b32 s{T0}, s{T0}, 3
        s_mul_i32 s{T0}, s{T0}, 12288
        s_add_u32 s{T0}, s{T0}, {SCR}
        v_add_u32 v{t[lq]}, s{T0}, v{V_OFF}
        ''')
    a(f'{MFMA} {vr(O[3],16)}, {vr(KV[15 % NKV]+8,4)}, {vr(P[1],4)}, {vr(O[3],16)}')
    a(f'{MFMA} {vr(O[3],16)}, {vr(KV[15 % NKV]+12,4)}, {vr(P[1]+4,4)}, {vr(O[3],16)}')
    a.stamp('B_loop')
    stg.queue(opt('hgM', 4))
    for lq in range(1, 4):
        for j in range(4):
            a(f'ds_write_b128 v{t[lq]}, {vr(O[lq]+4*j,4)} offset:{(lq-1)*4096 + j*1024}'); stg.one()
    a(f'''
    s_lshl_b32 s{T0}, s{S_TB}, 2
    s_add_u32 s{T0}, s{T0}, s{S_W}
    s_lshl_b32 s{T0}, s{T0}, 4
    s_add_u32 s{T0}, s{T0}, s{S_H}
    s_lshl_b32 s{T5}, s{T0}, 7
    s_add_u32 s{T5}, s{T5}, {FL_B}
    s_lshl_b32 s{T0}, s{T0}, 11
    s_add_u32 s{T0}, s{T0}, {WS_O}
    v_cmp_lt_u32 vcc, 31, v{V_LANE}
    s_waitcnt lgkmcnt(0)
    s_barrier
    ''')
    for lq in range(1, 4):
        for j in range(4): a(f'ds_read_b128 {vr(O[lq]+4*j,4)}, v{t[0]} offset:{(lq-1)*4096 + j*1024}')
    stg.flush()
    for lq in range(1, 4):
        a(f's_waitcnt lgkmcnt({4*(3-lq)})')
        for r in range(0, 16, 2): a(f'v_pk_add_f32 {vr(O[0]+r,2)}, {vr(O[0]+r,2)}, {vr(O[lq]+r,2)}')
    a(f'''
    v_mov_b32 v{t[0]}, v{O[0]+12}
    v_mov_b32 v{t[1]}, v{O[0]+12}
    v_permlane32_swap_b32 v{t[0]}, v{t[1]}
    v_rcp_f32 v{t[2]}, v{t[1]}
    ''')
    for r in range(0, 16, 2): a(f'v_pk_mul_f32 {vr(O[0]+r,2)}, {vr(O[0]+r,2)}, {vr(t[2],2)} op_sel_hi:[1,0]')
    for j in range(8): a(f'v_cvt_pk_bf16_f32 v{P[0]+j}, v{O[0]+2*j}, v{O[0]+2*j+1}')
    for j in (6, 7): a(f'v_cndmask_b32_e64 v{P[0]+j}, v{P[0]+j}, 0, vcc')
    for j in range(2):
        a.vmem(f'buffer_store_dwordx4 {vr(P[0]+4*j,4)}, v{V_OFF}, {sr4(SRD_WS)}, s{T0} offen offset:{1024*j} sc1', 'stB')
    a.stamp('B_st'); a.stamp('H_st')

class Stager:
    def __init__(self, a): self.a = a; self.nl = 0; self.nt = 0; self.q = []
    def src_setup(self, t0, t1, t2):
        self.a(f'''
        v_lshrrev_b32 v{t0}, 3, v{V_LANE}
        v_lshrrev_b32 v{t1}, 1, v{V_LANE}
        v_and_b32 v{t1}, 4, v{t1}
        v_and_b32 v{t2}, 7, v{V_LANE}
        v_xor_b32 v{t1}, v{t1}, v{t2}
        v_mul_u32_u24 v{t0}, 1792, v{t0}
        v_lshl_add_u32 v{V_SRC}, v{t1}, 4, v{t0}
        ''')
    def setup(self, t0, t1, t2, vw):
        a = self.a; self.vw = vw
        a(f'''
        v_lshrrev_b32 v{t0}, 5, v{V_LANE}
        v_bfe_u32 v{t1}, v{V_LANE}, 2, 2
        v_lshl_add_u32 v{t0}, v{t0}, 2, v{t1}
        v_lshlrev_b32 v{t0}, 7, v{t0}
        v_bfe_u32 v{t1}, v{V_LANE}, 4, 1
        v_lshl_add_u32 v{t0}, v{t1}, 5, v{t0}
        v_and_b32 v{t1}, 3, v{V_LANE}
        v_lshl_add_u32 v{t0}, v{t1}, 3, v{t0}
        v_bfe_u32 v{t1}, v{V_LANE}, 3, 1
        s_lshr_b32 s{T0}, s{S_W}, 1
        v_xor_b32 v{t1}, s{T0}, v{t1}
        v_lshl_add_u32 v{t0}, v{t1}, 6, v{t0}
        s_lshl_b32 s{T0}, s{S_W}, 12
        s_add_u32 s{T0}, s{T0}, {SCR}
        v_add_u32 v{V_RD}, s{T0}, v{t0}
        v_xor_b32 v{V_RD+1}, 64, v{V_RD}
        v_lshrrev_b32 v{t0}, 3, v{V_LANE}
        v_lshlrev_b32 v{t0}, 7, v{t0}
        v_add3_u32 v{vw}, s{T0}, v{V_OFF}, v{t0}
        ''')
    def target_items(self, which):
        p, nb = (P_WO, WO_BYTES) if which == 'wo' else (P_W2, W2_BYTES)
        return [f's_mov_b32 s{SRD_A}, s{p}', f's_mov_b32 s{SRD_A+1}, s{p+1}', f's_mov_b32 s{SRD_A+2}, {nb}', f's_mov_b32 s{SRD_A+3}, 0x20000',
                f's_mul_i32 s{S_U0}, s{S_W}, {(112 if which == "wo" else 448)*896}', f's_lshl_b32 s{S_U1}, s{S_CB}, 7', f's_add_u32 s{S_U0}, s{S_U0}, s{S_U1}']
    @staticmethod
    def base(g):
        if g < 2: return ('a', 224 + 16 * g)
        if g < 4: return ('v', WOV + 16 * (g - 2))
        return ('a', 16 * (g - 4))
    @staticmethod
    def dest(g, s_, lc):
        p, b = Stager.base(g); return p, b + (s_ * 2 + lc) * 4
    def load_items(self):
        g = self.nl; self.nl += 1
        pre = self.target_items('wo') if g == 0 else (self.target_items('w2') if g == 4 else [])
        row0 = 28 * g if g < 4 else 32 * (g - 4)
        p, b = self.base(g)
        out = [pre] if pre else []
        for h_ in range(2):
            out.append([f's_add_u32 s{S_U1}, s{S_U0}, {(row0 + 16*h_)*896}'] +
                       [('vm', f'buffer_load_dwordx4 {vr(b+8*h_+4*i,4,p)}, v{V_SRC}, {sr4(SRD_A)}, s{S_U1} offen offset:{896*i}', f'hg{g}') for i in range(2)])
        return out
    def load(self):
        self.flush()
        for it in self.load_items():
            for x in it: self.a.emit(x)
    def queue(self, upto):
        while self.nl < upto:
            for it in self.load_items(): self.q += it
    def one(self):
        while self.q:
            x = self.q.pop(0); self.a.emit(x)
            if isinstance(x, tuple): break
    def flush(self):
        while self.q: self.one()
    def wr(self, u):
        a = self.a; g, s_ = divmod(u, 2); p, b = self.base(g)
        for i in range(2): a(f'ds_write_b128 v{self.vw}, {vr(b+8*s_+4*i,4,p)} offset:{2048*s_ + 128*i}')
    def rd(self, u):
        a = self.a; g, s_ = divmod(u, 2); p, b = self.base(g)
        for lc in range(2):
            for uu in range(2):
                a(f'ds_read_b64_tr_b16 {vr(b+(s_*2+lc)*4+2*uu,2,p)}, v{V_RD+lc} offset:{s_*2048 + uu*1024}')
    def trans(self):
        a = self.a; g = self.nt; self.nt += 1
        a.stamp(f'{"H" if g < 11 else "I"}_pre{g}')
        a.vmwait(f'hg{g}')
        if g in (0, 6): a.stamp(f'H_got{g}')
        for u in (2*g, 2*g + 1): self.wr(u)
        for u in (2*g, 2*g + 1): self.rd(u)
    def close(self): pass

def red_addr(a, t):
    for l in range(4):
        a(f's_xor_b32 s{T0}, s{S_W}, {l}\ns_mul_i32 s{T0}, s{T0}, 12288\ns_add_u32 s{T0}, s{T0}, {SCR}\nv_add_u32 v{t[l]}, s{T0}, v{V_OFF}')
def red_write(a, ACC, t, l, side=lambda: None):
    for j in range(4):
        a(f'ds_write_b128 v{t[l]}, {vr(ACC[l]+4*j,4)} offset:{(l-1)*4096 + j*1024}'); side()
def red_read(a, ACC, t, side=lambda: None):
    a('s_waitcnt lgkmcnt(0)\ns_barrier')
    for l in range(1, 4):
        for j in range(4): a(f'ds_read_b128 {vr(ACC[l]+4*j,4)}, v{t[0]} offset:{(l-1)*4096 + j*1024}')
    side()
    for l in range(1, 4):
        a(f's_waitcnt lgkmcnt({4*(3-l)})')
        for r in range(0, 16, 2): a(f'v_pk_add_f32 {vr(ACC[0]+r,2)}, {vr(ACC[0]+r,2)}, {vr(ACC[l]+r,2)}')

def put5(a, vt):
    a(f's_mul_i32 s{T0}, s{S_W}, 7168\ns_add_u32 s{T0}, s{T0}, {SINGLE}\nv_add_u32 v{vt}, s{T0}, v{V_OFF}')
    for g in range(7): a(f'ds_write_b128 v{vt}, {vr(RAW5+4*g,4,"a")} offset:{1024*g}')

def tile_ids(a, STT, SCT):
    a(f'''
    s_and_b32 s{STT}, s{S_W}, 1
    s_lshl_b32 s{T0}, s{S_RB}, 1
    s_add_u32 s{STT}, s{STT}, s{T0}
    s_lshr_b32 s{SCT}, s{S_W}, 1
    s_lshl_b32 s{T0}, s{S_CB}, 1
    s_add_u32 s{SCT}, s{SCT}, s{T0}
    ''')
def flag8_addr(a, vf, t0, t1, sdst, base):
    a(f'''
    v_lshrrev_b32 v{t0}, 2, v{V_LANE}
    v_lshlrev_b32 v{t0}, 11, v{t0}
    v_and_b32 v{t1}, 3, v{V_LANE}
    v_lshl_add_u32 v{vf}, v{t1}, 7, v{t0}
    s_lshl_b32 s{T0}, s{S_RB}, 3
    s_add_u32 s{T0}, s{T0}, s{S_W}
    s_lshl_b32 s{sdst}, s{T0}, 9
    s_add_u32 s{sdst}, s{sdst}, {base}
    ''')

def phase_c(a, R, stg):
    va = VA(4, 200)
    ACC = [va(16) for _ in range(4)]
    OF = [[va(4) for k in range(8)] for lt in range(2)]
    t = [va() for _ in range(8)]; vf = va(); vw = va(); vp = va()
    STT, SCT = T1, T2
    NB1 = opt('hgB', 10); NF = opt('hgBf', 2)
    for g in range(NF):
        if stg.nl < NB1: stg.load()
    stg.setup(t[0], t[1], t[2], vw)
    tile_ids(a, STT, SCT)
    for l in range(2):
        a(f'''
        s_xor_b32 s{T0}, s{STT}, {l}
        s_lshl_b32 s{T0}, s{T0}, 2
        s_add_u32 s{T0}, s{T0}, s{S_W}
        s_lshl_b32 s{T0}, s{T0}, 13
        s_add_u32 s{T3+l}, s{T0}, {WS_O}
        ''')
    for g in (0, 4):
        a(f'v_permlane32_swap_b32 v{XRES+g}, v{XRES+g+2}\nv_permlane32_swap_b32 v{XRES+g+1}, v{XRES+g+3}')
    for j in range(8):
        a(f'v_lshlrev_b32 v{ACC[0]+2*j}, 16, v{XRES+j}\nv_and_b32 v{ACC[0]+2*j+1}, 0xffff0000, v{XRES+j}')
    a('s_barrier')
    for _ in range(opt('trB0', 2)): stg.trans()
    a.vmwait('stB')
    flag_store(a, T5, t[3])
    a.stamp('C_flag'); a.stamp('H_flag')
    flag8_addr(a, vf, t[0], t[1], T5, FL_B)
    NT1 = NB1 - opt('trB', 2)
    for _ in range(opt('hgBg', 2)):
        if stg.nl < NB1: stg.load()
    while stg.nt < NT1:
        if stg.nt == NT1 - opt('pollB', 2): poll_issue(a, T5, vf, 8, vp)
        stg.trans()
        if stg.nl < NB1: stg.load()
    a.stamp('C_pre')
    poll_check(a, T5, vf, 8, vp)
    a.stamp('C_poll')
    for k in range(8):
        if k == 4: a(f's_add_u32 s{T3}, s{T3}, 4096\ns_add_u32 s{T4}, s{T4}, 4096')
        for l in range(2):
            a.vmem(f'buffer_load_dwordx4 {vr(OF[l][k],4)}, v{V_OFF}, {sr4(SRD_WS)}, s{T3+l} offen offset:{1024*(k&3)} sc1', f'o{k}')
    nfree = 4 + RAW5 // 16
    while stg.nt < NB1: stg.trans()
    red_addr(a, t)
    a(f'''
    s_mul_i32 s{T6}, s{STT}, 14
    s_add_u32 s{T6}, s{T6}, s{SCT}
    s_lshl_b32 s{T5}, s{STT}, 4
    s_add_u32 s{T5}, s{T5}, s{SCT}
    s_lshl_b32 s{T5}, s{T5}, 7
    s_add_u32 s{T5}, s{T5}, {FL_C}
    s_waitcnt lgkmcnt(0)
    s_barrier
    ''')
    def mm(k, l):
        p, b = stg.dest(k >> 1, k & 1, l >> 1)
        a(f'{MFMA} {vr(ACC[l],16)}, {vr(b,4,p)}, {vr(OF[l & 1][k],4)}, {vr(ACC[l],16) if (k or l == 0) else 0}')
    KT = 5
    for k in range(KT):
        a.vmwait(f'o{k}')
        for l in range(4): mm(k, l)
    stg.queue(min(nfree, NB1 + opt('hgC0', 4)))
    for l in (1, 2, 3, 0):
        for k in range(KT, 8):
            if l == 1: a.vmwait(f'o{k}')
            mm(k, l)
        if l in (2, 3): red_write(a, ACC, t, l - 1, stg.one)
    a.stamp('C_mfma')
    red_write(a, ACC, t, 3, stg.one)
    red_read(a, ACC, t, stg.flush)
    for j in range(8): a(f'v_cvt_pk_bf16_f32 v{HKEEP+j}, v{ACC[0]+2*j}, v{ACC[0]+2*j+1}')
    a(f's_lshl_b32 s{T0}, s{T6}, 11\ns_add_u32 s{T0}, s{T0}, {WS_H}')
    for j in range(2):
        a.vmem(f'buffer_store_dwordx4 {vr(HKEEP+4*j,4)}, v{V_OFF}, {sr4(SRD_WS)}, s{T0} offen offset:{1024*j} sc1', 'stC')
    for i in range(4): a(f'v_mov_b32 v{t[4+i]}, 0')
    for j in range(8):
        a(f'v_dot2c_f32_bf16 v{t[4+(j&1)]}, s{S_ONES}, v{HKEEP+j}')
        a(f'v_dot2c_f32_bf16 v{t[6+(j&1)]}, v{HKEEP+j}, v{HKEEP+j}')
    a(f'''
    v_add_f32 v{t[4]}, v{t[4]}, v{t[5]}
    v_add_f32 v{t[6]}, v{t[6]}, v{t[7]}
    v_permlane32_swap_b32 v{t[4]}, v{t[6]}
    v_add_f32 v{t[4]}, v{t[4]}, v{t[6]}
    v_and_b32 v{t[5]}, 31, v{V_LANE}
    v_lshrrev_b32 v{t[6]}, 5, v{V_LANE}
    v_lshlrev_b32 v{t[6]}, 2, v{t[6]}
    v_lshl_add_u32 v{t[5]}, v{t[5]}, 3, v{t[6]}
    s_lshl_b32 s{T0}, s{T6}, 8
    s_add_u32 s{T0}, s{T0}, {WS_ST}
    ''')
    a.vmem(f'buffer_store_dword v{t[4]}, v{t[5]}, {sr4(SRD_WS)}, s{T0} offen sc1', 'stC')
    a.stamp('C_st')
    for _ in range(opt('hgCf', 2)):
        if stg.nl < nfree: stg.load()
    a('s_barrier')
    put5(a, t[0])
    for _ in range(opt('trC0', 1)): stg.trans()
    a.vmwait('stC')
    flag_store(a, T5, t[3])
    a.stamp('C_flag2')
    NTP = 18 - opt('trC', 2) - opt('pollC', 2)
    while stg.nl < 18: stg.load()
    while stg.nt < NTP: stg.trans()

def phase_d(a, R, stg):
    va = VA(4, 212)
    X = [va(4) for _ in range(28)]
    ACC = [va(16) for _ in range(4)]
    HP = va(4)
    t = [va(2) for _ in range(4)]
    mu = va(2)
    vl = [va() for _ in range(5)]
    vp = va(); vs = va()
    W = [va(4) for _ in range(2)] + [WOV + 4*i for i in range(8)]
    NW = len(W)
    ST = ACC[3]
    E = [t[0], t[0]+1, t[1], t[1]+1, t[2], t[2]+1, t[3], t[3]+1]
    STT = T6; SH = T5; S13, L13 = T3, T4
    w13_setup(a, S13, L13)
    a(f'''
    s_lshl_b32 s{T0}, s{S_L0}, 5
    s_add_u32 s{S13}, s{S13}, s{T0}
    s_lshl_b32 s{STT}, s{S_TD}, 2
    s_add_u32 s{STT}, s{STT}, s{S_W}
    s_lshl_b32 s{T2}, s{STT}, 11
    s_add_u32 s{T2}, s{T2}, {FL_C}
    v_bfe_u32 v{t[0]}, v{V_LANE}, 4, 1                 ; cg
    v_lshrrev_b32 v{t[1]}, 5, v{V_LANE}                ; hf
    v_bfe_u32 v{t[3]}, v{V_LANE}, 2, 2                 ; r
    v_and_b32 v{mu}, 3, v{V_LANE}
    v_lshlrev_b32 v{mu}, 3, v{mu}                      ; c4*8
    v_xor_b32 v{t[2]}, v{t[0]}, v{t[1]}
    v_lshl_add_u32 v{t[2]}, v{t[2]}, 2, v{t[3]}
    v_lshl_add_u32 v{t[2]}, v{t[2]}, 5, v{mu}
    v_mul_u32_u24 v{vl[4]}, 14336, v{t[0]}
    v_add_u32 v{vl[4]}, v{vl[4]}, v{t[2]}
    v_add_u32 v{vl[4]}, {SINGLE}, v{vl[4]}
    v_lshl_add_u32 v{t[2]}, v{t[1]}, 2, v{t[3]}
    v_lshl_add_u32 v{t[2]}, v{t[2]}, 6, v{mu}
    v_mul_u32_u24 v{t[0]}, {28672 + 32}, v{t[0]}
    v_add_u32 v{vl[0]}, v{t[0]}, v{t[2]}
    v_xor_b32 v{vl[1]}, 32, v{vl[0]}
    v_add_u32 v{vl[2]}, {PAIR}, v{vl[0]}
    v_add_u32 v{vl[3]}, {PAIR}, v{vl[1]}
    v_and_b32 v{t[0]}, 31, v{V_LANE}
    v_mul_u32_u24 v{t[1]}, {7*256}, v{t[1]}
    v_lshl_add_u32 v{vs}, v{t[0]}, 3, v{t[1]}
    s_mul_i32 s{T1}, s{STT}, {14*256}
    s_add_u32 s{T1}, s{T1}, {WS_ST}
    s_mul_i32 s{SH}, s{STT}, {28*1024}
    s_add_u32 s{SH}, s{SH}, {WS_H}
    ''')
    NTP = 18 - opt('trC', 2)
    poll_issue(a, T2, V_FL, 14, vp)
    Ls = a.newlabel('skip')
    a(f's_cmp_ge_u32 s{S_J}, 28\ns_cbranch_scc1 {Ls}')
    while stg.nt < NTP: stg.trans()
    a.label(Ls)
    a('s_waitcnt lgkmcnt(0)\ns_barrier')
    a.stamp('D_pre')
    rest = [x for x in a.vm if x.startswith('hg')]
    poll_check(a, T2, V_FL, 14, vp)
    a.stamp('D_poll')
    for c in range(7):
        a.vmem(f'buffer_load_dwordx2 {vr(ST+2*c,2)}, v{vs}, {sr4(SRD_WS)}, s{T1} offen offset:{256*c} sc1', 'st')
    SX_ = S_SPIN + 1
    a(f's_mov_b32 s{SX_}, s{SH}')
    def ldx(k):
        if k and k % 4 == 0: a(f's_add_u32 s{SX_}, s{SX_}, 4096')
        a.vmem(f'buffer_load_dwordx4 {vr(X[k],4)}, v{V_OFF}, {sr4(SRD_WS)}, s{SX_} offen offset:{1024*(k&3)} sc1', f'x{k}')
    XLA = opt('xla', 10)
    for k in range(XLA): ldx(k)
    a(f's_or_b32 s{T0}, s2, s{S_W}\ns_cmp_lg_u32 s{T0}, 0\ns_cselect_b32 s{T0}, 0x40000000, {WS_FLG}')
    flag_store(a, T0, t[0])
    a.stamp('F_issued')
    Ls = a.newlabel('skip')
    a(f's_cmp_ge_u32 s{S_J}, 28\ns_cbranch_scc1 {Ls}')
    while stg.nt < 18: stg.trans()
    stg.close()
    a.label(Ls)
    SE = T5; SL = T1; SF = T2
    a(f'''
    s_mul_i32 s{SE}, s{STT}, 112
    s_mul_i32 s{T0}, s{S_FS}, 7
    s_add_u32 s{SE}, s{SE}, s{T0}
    s_add_u32 s{SL}, s{SE}, s{S_L0}
    s_add_u32 s{SE}, s{SE}, s{S_E0}
    s_lshl_b32 s{SE}, s{SE}, 10
    s_add_u32 s{SE}, s{SE}, {WS_HH}
    s_lshl_b32 s{SL}, s{SL}, 10
    s_add_u32 s{SL}, s{SL}, {WS_HH}
    s_add_u32 s{S_U1}, s{SE}, 4096
    s_lshl_b32 s{SF}, s{STT}, 4
    s_add_u32 s{SF}, s{SF}, s{S_FS}
    s_lshl_b32 s{SF}, s{SF}, 7
    s_add_u32 s{SF}, s{SF}, {FL_D1}
    ''')
    if opt('trC', 2): a('s_waitcnt lgkmcnt(0)')
    seq = [(j, k) for k in range(28) for j in (0, 1, 4)] + [(j, k) for j in (2, 3, 5, 6) for k in range(28)]
    def rdW(n):
        j, k = seq[n]
        if j == 4: return [f'ds_read_b64_tr_b16 {vr(W[n % NW]+2*u,2)}, v{vl[4]} offset:{k*512 + u*256}' for u in range(2)]
        return [f'ds_read_b64_tr_b16 {vr(W[n % NW]+2*u,2)}, v{vl[{0:0,1:1,2:2,3:3,5:0,6:1}[j]]} offset:{k*1024 + u*512}' for u in range(2)]
    AH = opt('ah', 6); assert AH + 2 <= NW and 2 * AH <= 15
    a.stamp('F_bar')
    for n in range(AH):
        for x in rdW(n): a(x)
    a.vmwait('st')
    for c in range(3): a(f'v_pk_add_f32 {vr(ST+4*c,2)}, {vr(ST+4*c,2)}, {vr(ST+4*c+2,2)}')
    a(f'v_pk_add_f32 {vr(ST,2)}, {vr(ST,2)}, {vr(ST+4,2)}\nv_pk_add_f32 {vr(ST+8,2)}, {vr(ST+8,2)}, {vr(ST+12,2)}\nv_pk_add_f32 {vr(ST,2)}, {vr(ST,2)}, {vr(ST+8,2)}')
    a(f'v_mov_b32 v{t[0]}, v{ST}\nv_mov_b32 v{t[1]}, v{ST+1}\nv_permlane32_swap_b32 v{t[0]}, v{ST}\nv_permlane32_swap_b32 v{t[1]}, v{ST+1}')
    a(f'v_add_f32 v{t[0]}, v{t[0]}, v{ST}\nv_add_f32 v{t[1]}, v{t[1]}, v{ST+1}')
    a(f'''
    v_mul_f32 v{t[0]}, {fx(1/448)}, v{t[0]}
    v_mul_f32 v{t[1]}, {fx(1/448)}, v{t[1]}
    v_fma_f32 v{t[1]}, -v{t[0]}, v{t[0]}, v{t[1]}
    v_max_f32 v{t[1]}, 0, v{t[1]}
    v_add_f32 v{t[1]}, {fx(1e-5)}, v{t[1]}
    v_rsq_f32 v{mu}, v{t[1]}
    s_mov_b32 s{S_U0}, 0xffff0000
    v_mul_f32 v{mu+1}, v{t[0]}, v{mu}
    v_sub_f32 v{mu+1}, 0, v{mu+1}
    ''')
    def norm(k):
        out = []
        for i in range(4): out += [f'v_lshlrev_b32 v{t[i]}, 16, v{X[k]+i}', f'v_and_b32 v{t[i]+1}, s{S_U0}, v{X[k]+i}']
        if opt('pkN', 1):
            for i in range(4): out += [f'v_pk_fma_f32 {vr(t[i],2)}, {vr(t[i],2)}, {vr(mu,2)}, {vr(mu,2)} op_sel:[0,0,1] op_sel_hi:[1,0,1]']
        else:
            for i in range(4): out += [f'v_fma_f32 v{t[i]}, v{t[i]}, v{mu}, v{mu+1}', f'v_fma_f32 v{t[i]+1}, v{t[i]+1}, v{mu}, v{mu+1}']
        for i in range(4): out += [f'v_cvt_pk_bf16_f32 v{X[k]+i}, v{t[i]}, v{t[i]+1}']
        return out
    acc_of = {0: 0, 1: 1, 4: 2, 2: 3, 3: 0, 5: 1, 6: 2}
    def epi(j):
        A = ACC[acc_of[j]]
        out = []
        pk = opt('pkE', 0) if j != 6 else 2
        if pk >= 2:
            for r in range(0, 8, 2): out.append(f'v_pk_mul_f32 {vr(E[r],2)}, {vr(A+r,2)}, {vr(mu,2)} op_sel_hi:[1,0]')
        else:
            for r in range(8): out.append(f'v_mul_f32 v{E[r]}, v{mu}, v{A+r}')
        for r in range(8): out.append(f'v_exp_f32 v{E[r]}, v{E[r]}')
        if pk >= 1:
            for r in range(0, 8, 2): out.append(f'v_pk_mul_f32 {vr(A+r,2)}, {vr(A+r,2)}, {vr(A+8+r,2)}')
        else:
            for r in range(8): out.append(f'v_mul_f32 v{A+r}, v{A+r}, v{A+8+r}')
        if pk >= 2:
            for r in range(0, 8, 2): out.append(f'v_pk_add_f32 {vr(E[r],2)}, {vr(E[r],2)}, {vr(mu,2)} op_sel:[0,1] op_sel_hi:[1,1]')
        else:
            for r in range(8): out.append(f'v_add_f32 v{E[r]}, 1.0, v{E[r]}')
        for r in range(8): out.append(f'v_rcp_f32 v{E[r]}, v{E[r]}')
        if pk >= 1:
            for r in range(0, 8, 2): out.append(f'v_pk_mul_f32 {vr(A+r,2)}, {vr(A+r,2)}, {vr(E[r],2)}')
        else:
            for r in range(8): out.append(f'v_mul_f32 v{A+r}, v{A+r}, v{E[r]}')
        for i in range(4): out.append(f'v_cvt_pk_bf16_f32 v{HP+i}, v{A+2*i}, v{A+2*i+1}')
        sreg, off = (SE, 1024*j) if j < 4 else ((S_U1, 0) if j == 4 else (SL, 1024*(j-5)))
        out.append(('vm', f'buffer_store_dwordx4 {vr(HP,4)}, v{V_OFF}, {sr4(SRD_WS)}, s{sreg} offen offset:{off} sc1', f'hh{j}'))
        return out
    a.stamp('F_stats')
    a.vmwait('x0')
    a.stamp('F_x0')
    for x in norm(0): a(x)
    pend = []; late = []
    R['vfE'] = vs; R['vpE'] = vp
    for n, (j, k) in enumerate(seq):
        nn = n + AH
        if nn < len(seq) and seq[nn] == (5, 0):
            a.vmwait('late'); a('s_barrier')
        rd = rdW(nn) if nn < len(seq) else []
        if n % 2 == 0:
            left = min(len(seq), n + AH) - (n + 2)
            a(f's_waitcnt lgkmcnt({max(0, 2*left)})')
        A = ACC[acc_of[j]]
        a(f'{MFMA} {vr(A,16)}, {vr(W[n % NW],4)}, {vr(X[k],4)}, {vr(A,16) if k else 0}')
        for x in rd: a(x)
        if n < 84 and j == 0 and k in (4, 8, 12, 16, 20, 24): a.stamp(f'F_k{k}')
        if n >= 84 and k == 27: a.stamp(f'F_t{j}')
        if n < 84:
            if j == 0 and k + 1 < 28:
                a.vmwait(f'x{k+1}'); pend = norm(k + 1)
            if j == 1 and k + XLA < 28: ldx(k + XLA)
            take = (6 if j < 2 else 4) if opt('pkN', 1) else (7 if j < 2 else 6)
            for x in pend[:take]: a(x)
            pend = pend[take:]
            if n == 83:
                a.stamp('D_st1')
                a(f'v_mov_b32 v{mu}, {fx(-math.log2(math.e))}\nv_mov_b32 v{mu+1}, 1.0\ns_barrier')
                late = [pair_dma(S13, L13, 0, 0, i, 'late') for i in range(14)]
        else:
            if n == 84 + 2: pend = epi(0) + epi(1) + epi(4) + epi(2) + epi(3) + epi(5); done = 0; tot = len(pend); one = tot // 6
            if n >= 84 + 2:
                want = min(tot, (n - 85) * tot // 108 + 1)
                lim = {2: 3, 3: 3 + (k >= 2), 5: 4 + (k >= 2), 6: 5 + (k >= 2)}[j] * one
                while done < min(want, lim):
                    a.emit(pend.pop(0)); done += 1
                if k == 27:
                    need = {2: 1, 3: 2, 5: 3, 6: 6}[j] * one
                    while done < need:
                        a.emit(pend.pop(0)); done += 1
            if late and k % opt('latestep', 2) == 0:
                for x in late.pop(0): a.emit(x)
            if j == 5 and k == opt('f1k', 6):
                a.vmwait('hh1'); flag_store(a, SF, vp)
            if j == 6 and k == opt('f2k', 14) and not opt('d2late', 1):
                a(f's_add_u32 s{SF}, s{SF}, {FLS}')
                a.vmwait('hh2'); flag_store(a, SF, vl[2])
                a(f's_add_u32 s{SF}, s{SF}, {FLS}')
            if j == 6 and k == opt('p1k', 18):
                flag8_addr(a, vs, vp, vl[4], S_SPIN + 1, FL_D1)
                poll_issue(a, S_SPIN + 1, vs, 8, vp)
    a.stamp('D_loop')
    if opt('d2late', 1):
        a(f's_add_u32 s{SF}, s{SF}, {FLS}')
        a.vmwait('hh3'); flag_store(a, SF, vl[2])
        a(f's_add_u32 s{SF}, s{SF}, {FLS}')
    for x in epi(6): a.emit(x)
    a.stamp('D_epi')
    R['SF'] = SF

def phase_e(a, R, stg):
    va = VA(4, 199)
    ACC = [va(16) for _ in range(4)]
    NB = 16
    BUF = [[va(4) for l in range(2)] for d in range(NB)]
    vf = R['vfE']; vp = R['vpE']
    t = [204, 205, 206, 207]; vt = 208
    assert vf >= va.n and vp >= va.n and vf < 204 and vp < 204
    STT, SCT = T1, T3
    SP = S_SPIN + 1
    tile_ids(a, STT, SCT)
    a(f's_mul_i32 s{T4}, s{S_W}, {28*1024}')
    for l in range(2):
        a(f'''
        s_xor_b32 s{T0}, s{STT}, {l}
        s_mul_i32 s{T0}, s{T0}, {112*1024}
        s_add_u32 s{T0}, s{T0}, s{T4}
        s_add_u32 s{S_U0+l}, s{T0}, {WS_HH}
        ''')
    e0 = lambda f: 2 if f == 2 else 0
    l0 = lambda f: 0 if f == 2 else 5
    order = [7*f + e0(f) + j for j in (0, 1, 4, 2, 3) for f in range(4)] + [7*f + l0(f) + j for j in range(2) for f in range(4)]
    assert sorted(order) == list(range(28))
    poll_check(a, SP, vf, 8, vp)
    a.stamp('E_poll1')
    N2 = 20 if opt('d2late', 1) else 16
    st = dict(nxt=0)
    FL3 = opt('efl', 7); PI2 = opt('epi2', 3); PI3 = opt('epi3', 19)
    def ld():
        n = st['nxt']; st['nxt'] += 1
        if n == FL3:
            a.vmwait('hh6'); flag_store(a, R['SF'], vt)
        if n in (8, N2):
            a.stamp('E_pre2' if n == 8 else 'E_pre3'); poll_check(a, SP, vf, 8, vp); a.stamp('E_poll2' if n == 8 else 'E_poll3')
        if n in (PI2, PI3):
            a(f's_add_u32 s{SP}, s{SP}, {FLS}'); poll_issue(a, SP, vf, 8, vp)
        ks = order[n]
        for l in range(2):
            a(f's_add_u32 s{T0}, s{S_U0+l}, {(ks >> 2) * 4096}')
            a.vmem(f'buffer_load_dwordx4 {vr(BUF[n % NB][l],4)}, v{V_OFF}, {sr4(SRD_WS)}, s{T0} offen offset:{1024*(ks&3)} sc1', f'h{n}')
    LA = opt('ela', 9)
    for n in range(LA): ld()
    for j in range(8):
        a(f'v_lshlrev_b32 v{ACC[0]+2*j}, 16, v{HKEEP+j}\nv_and_b32 v{ACC[0]+2*j+1}, 0xffff0000, v{HKEEP+j}')
    red_addr(a, t)
    def mm(n, l):
        ks = order[n]
        p, b = stg.dest(4 + (ks >> 1), ks & 1, l >> 1)
        a(f'{MFMA} {vr(ACC[l],16)}, {vr(b,4,p)}, {vr(BUF[n % NB][l & 1],4)}, {vr(ACC[l],16) if (n or l == 0) else 0}')
    KT = 28 - opt('etail', 4)
    for n in range(KT):
        a.vmwait(f'h{n}')
        for l in range(4): mm(n, l)
        for _ in range(2 if st['nxt'] < N2 else 12):
            if st['nxt'] == N2 and n < opt('ec3', 8): break
            if st['nxt'] < 28 and st['nxt'] - NB <= n: ld()
    assert st['nxt'] == 28
    for l in (1, 2, 3, 0):
        for n in range(KT, 28):
            if l == 1: a.vmwait(f'h{n}')
            mm(n, l)
        if l in (2, 3): red_write(a, ACC, t, l - 1)
    a.stamp('E_mfma')
    red_write(a, ACC, t, 3)
    srd(a, SRD_A, P_OUT, X_BYTES)
    a(f'''
    v_and_b32 v{vf}, 31, v{V_LANE}
    v_lshrrev_b32 v{vp}, 5, v{V_LANE}
    v_mul_u32_u24 v{vf}, 896, v{vf}
    v_lshl_add_u32 v{vf}, v{vp}, 4, v{vf}
    s_mul_i32 s{T0}, s{STT}, {32*896}
    s_lshl_b32 s{T2}, s{SCT}, 6
    s_add_u32 s{T0}, s{T0}, s{T2}
    ''')
    red_read(a, ACC, t)
    PKR = ACC[1]
    for j in range(8): a(f'v_cvt_pk_bf16_f32 v{PKR+j}, v{ACC[0]+2*j}, v{ACC[0]+2*j+1}')
    for g in (0, 4):
        a(f'v_permlane32_swap_b32 v{PKR+g}, v{PKR+g+2}\nv_permlane32_swap_b32 v{PKR+g+1}, v{PKR+g+3}')
    fl_ = ['', ' sc1', ' nt', ' sc0 sc1'][opt('outst', 0)]
    a(f'buffer_store_dwordx4 {vr(PKR,4)}, v{vf}, {sr4(SRD_A)}, s{T0} offen{fl_}')
    a(f'buffer_store_dwordx4 {vr(PKR+4,4)}, v{vf}, {sr4(SRD_A)}, s{T0} offen offset:32{fl_}')
    a.stamp('E_st')

def gen():
    a = K()
    a.stamp('rt0', True); a.stamp('t0')
    HB = opt('hb', 3)
    if int(os.environ.get('TFIX', '0')): a('s_memrealtime s[60:61]')
    a(f'''
    s_cmp_ge_u32 s2, 256
    s_cbranch_scc1 Lend
    s_load_dwordx16 s[32:47], s[0:1], 0
    s_load_dwordx2 s[50:51], s[0:1], 72
    v_lshrrev_b32 v2, 6, v0
    v_and_b32 v{V_LANE}, 63, v0
    v_readfirstlane_b32 s{S_W}, v2
    v_lshlrev_b32 v{V_OFF}, 4, v{V_LANE}
    v_lshlrev_b32 v{V_FL}, 7, v{V_LANE}
    s_and_b32 s{T0}, s2, 7
    s_lshr_b32 s{S_J}, s2, 3
    s_and_b32 s{S_H}, s{T0}, {(16 >> HB) - 1}
    s_lshl_b32 s{S_H}, s{S_H}, {HB}
    s_and_b32 s{T1}, s{S_J}, {(1 << HB) - 1}
    s_add_u32 s{S_H}, s{S_H}, s{T1}
    s_lshr_b32 s{S_TB}, s{T0}, {4 - HB}
    s_lshl_b32 s{S_TB}, s{S_TB}, {5 - HB}
    s_lshr_b32 s{T1}, s{S_J}, {HB}
    s_add_u32 s{S_TB}, s{S_TB}, s{T1}
    s_mul_i32 s{T1}, s{S_J}, 9363
    s_lshr_b32 s{T1}, s{T1}, 16
    s_mul_i32 s{T2}, s{T1}, 7
    s_sub_u32 s{S_CB}, s{S_J}, s{T2}
    s_lshl_b32 s{S_RB}, s{T0}, 2
    s_add_u32 s{S_RB}, s{S_RB}, s{T1}
    s_and_b32 s{S_TD}, s{T0}, 1
    s_lshl_b32 s{S_TD}, s{S_TD}, 3
    s_and_b32 s{T1}, s{S_J}, 7
    s_add_u32 s{S_TD}, s{S_TD}, s{T1}
    s_lshr_b32 s{S_FS}, s{T0}, 1
    s_lshl_b32 s{S_FS}, s{S_FS}, 2
    s_lshr_b32 s{T1}, s{S_J}, 3
    s_add_u32 s{S_FS}, s{S_FS}, s{T1}
    ''')
    R = alloc_b()
    phase_a(a, R)
    a(f'''
    s_and_b32 s{T0}, s{S_FS}, 3
    s_cmp_eq_u32 s{T0}, 2
    s_cselect_b32 s{S_E0}, 2, 0
    s_cselect_b32 s{S_L0}, 0, 5
    ''')
    stg = Stager(a)
    phase_b(a, R, stg)
    a(f's_cmp_ge_u32 s{S_J}, 28\ns_cbranch_scc1 LnoC')
    phase_c(a, R, stg)
    a('s_branch LD')
    vm_c = list(a.vm)
    a.label('LnoC')
    a.vmall()
    flag_store(a, T5, 4)
    a('s_barrier')
    put5(a, 5)
    a.label('LD')
    a.vm = vm_c
    phase_d(a, R, stg)
    a(f's_cmp_ge_u32 s{S_J}, 28\ns_cbranch_scc0 LE')
    vm_d = list(a.vm)
    a('s_waitcnt vmcnt(0)')
    flag_store(a, R['SF'], 4)
    a('s_branch Lfin')
    a.label('LE')
    a.vm = vm_d
    phase_e(a, R, stg)
    a.label('Lfin')
    if int(os.environ.get('TFIX', '0')):
        a.label('Lfix')
        a(f's_memrealtime s[62:63]\ns_waitcnt lgkmcnt(0)\ns_sub_u32 s62, s62, s60\ns_cmp_lt_u32 s62, {int(os.environ["TFIX"])}\ns_cbranch_scc1 Lfix')
    if STAMP:
        a('s_waitcnt vmcnt(0)')
        a.stamp('end'); a.stamp('rt1', True)
        a(f's_waitcnt lgkmcnt(0)\ns_lshl_b32 s{T0}, s2, 2\ns_add_u32 s{T0}, s{T0}, s{S_W}\ns_lshl_b32 s{T0}, s{T0}, 7\ns_add_u32 s{T0}, s{T0}, {WS_DBG}\nv_mov_b32 v4, 0')
        for i in range(a.nst):
            a(f'v_mov_b32 v5, s{60+2*i}\nbuffer_store_dword v5, v4, {sr4(SRD_WS)}, s{T0} offen offset:{4*i}')
    if STAMP and int(os.environ.get('DBGOUT', '0')):
        n = a.nst
        a(f'''
        s_load_dwordx2 s[{SRD_A}:{SRD_A+1}], s[0:1], 64
        s_mov_b32 s{SRD_A+2}, 256
        s_mov_b32 s{SRD_A+3}, 0x20000
        s_not_b32 s{T1}, s60
        v_mov_b32 v6, s{T1}
        v_mov_b32 v7, s{60+2*(n-1)}
        v_mov_b32 v8, s60
        s_mov_b64 exec, 1
        s_waitcnt lgkmcnt(0)
        buffer_atomic_umax v6, v4, {sr4(SRD_A)}, 0 offen
        buffer_atomic_umax v7, v4, {sr4(SRD_A)}, 0 offen offset:4
        buffer_atomic_umax v8, v4, {sr4(SRD_A)}, 0 offen offset:8
        s_or_b32 s{T0}, s2, s{S_W}
        s_cmp_lg_u32 s{T0}, {int(os.environ.get('DBGWG', '0'))}
        s_cbranch_scc1 Lend
        ''')
        for i in range(2, min(n - 1, 15)):
            a(f's_sub_u32 s{T0}, s{60+2*i}, s62\nv_mov_b32 v5, s{T0}\nbuffer_store_dword v5, v4, {sr4(SRD_A)}, 0 offen offset:{4*(i+1)}')
    a.label('Lend')
    a('s_endpgm')
    a.finalize()
    head = open('sequential_preLN__mha_block__glu_gated_swiglu__prompt.s.ref').read().split('; Override')[0]
    s = head + f'; @launch grid=(256,1,1) block=(256,1,1) lds={LDS_BYTES}\n'
    s += f'.amdgcn_target "amdgcn-amd-amdhsa--gfx950"\n.text\n.globl {NAME}\n.p2align 8\n.type {NAME},@function\n{NAME}:\n' + a.text()
    s += f'''.section .rodata,"a"
.p2align 6
.amdhsa_kernel {NAME}
  .amdhsa_next_free_vgpr 512
  .amdhsa_next_free_sgpr 102
  .amdhsa_accum_offset 256
  .amdhsa_group_segment_fixed_size 0
  .amdhsa_kernarg_size 80
  .amdhsa_user_sgpr_count 2
  .amdhsa_user_sgpr_kernarg_segment_ptr 1
  .amdhsa_system_sgpr_workgroup_id_x 1
.end_amdhsa_kernel
'''
    if STAMP: s = '; STAMPS ' + ' '.join(a.names) + '\n' + s
    print(f'instrs={len(a.ins)} nop_states={a.nops} stamps={a.nst}', file=sys.stderr)
    return s

if __name__ == '__main__':
    open(sys.argv[1], 'w').write(gen())
```

```python
import sys, struct, math, os
from asmgen import Asm

NAME = 'sequential_preLN__mha_block__glu_gated_swiglu__prompt_kernel'
MB = 1 << 20
WS_KV  = 0
WS_O   = 4 * MB
WS_H   = 6 * MB
WS_ST  = 8 * MB
WS_HH  = 9 * MB
WS_FLG = 16 * MB
FL_A = WS_FLG + 0x10000
FL_B = FL_A + 1024 * 128
FL_C = FL_B + 1024 * 128
FL_D1 = FL_C + 1024 * 128
FL_D2 = FL_D1 + 1024 * 128
FL_D3 = FL_D2 + 1024 * 128
FLS = 1024 * 128
WS_DBG = 17 * MB
WS_SIZE = 18 * MB

X_BYTES = 2048 * 448 * 2
WQKV_BYTES = 448 * 1344 * 2
WO_BYTES = 448 * 448 * 2
W1_BYTES = 448 * 1792 * 2
W2_BYTES = 1792 * 448 * 2
LDS_BYTES = 163840
MFMA = 'v_mfma_f32_32x32x16_bf16'
STAMP = int(os.environ.get('STAMP', '0'))
OPT = dict(kv.split('=') for kv in os.environ.get('OPT', '').split(',') if kv)
def opt(k, d): return int(OPT.get(k, d))

def f2u(x): return struct.unpack('<I', struct.pack('<f', x))[0]
def fx(x): return hex(f2u(x))
def vr(b, n=1, p='v'): return f'{p}[{b}:{b+n-1}]' if n > 1 else f'{p}{b}'
def sr4(b): return f's[{b}:{b+3}]'

class VA:
    def __init__(self, start, limit): self.n = start; self.limit = limit
    def __call__(self, cnt=1, align=None):
        if align is None: align = 1 if cnt == 1 else (2 if cnt == 2 else 4)
        self.n = (self.n + align - 1) // align * align
        b = self.n; self.n += cnt
        assert self.n <= self.limit, f'out of registers {self.n} > {self.limit}'
        return b

class K(Asm):
    def __init__(self):
        super().__init__(); self.vm = []; self.nst = 0; self.nlab = 0; self.names = []
    def vmem(self, text, tag):
        self(text); self.vm.append(tag)
    def vmwait(self, *tags, lgkm=None):
        idx = [i for i, t in enumerate(self.vm) if t in tags]
        s = ''
        if idx:
            n = len(self.vm) - 1 - max(idx)
            s += f' vmcnt({min(n, 63)})'
            self.vm = self.vm[len(self.vm) - n:] if n else []
        if lgkm is not None: s += f' lgkmcnt({lgkm})'
        if s: self('s_waitcnt' + s)
    def vmall(self):
        self('s_waitcnt vmcnt(0)'); self.vm = []
    def emit(self, x):
        if isinstance(x, tuple):
            if x[0] == 'vm': self.vmem(x[1], x[2])
            elif x[0] == 'wait': self.vmwait(*x[1:])
            elif x[0] == 'call': x[1]()
        else: self(x)
    def stamp(self, name='', real=False):
        if not STAMP: return
        if name and name[0] in 'ABCDEFGHI' and name[0] not in os.environ.get('STAMPSET', 'AB'): return
        if name in self.names:
            i = self.names.index(name)
        else:
            i = self.nst; self.nst += 1; self.names.append(name)
        assert i < 19
        self(f's_mem{"real" if real else ""}time s[{60+2*i}:{61+2*i}]')
    def newlabel(self, p):
        self.nlab += 1; return f'L{p}{self.nlab}'

S_W = 3
SRD_X = 4; SRD_WQKV = 8; SRD_WS = 12; SRD_A = 16; SRD_B = 20
P_X, P_WQKV, P_WO, P_W1, P_W3, P_W2, P_OUT, P_WS = 32, 34, 36, 40, 42, 44, 46, 50
S_TAG = 24; S_H = 25; S_TB = 26; S_RB = 27; S_CB = 28; S_TD = 29; S_FS = 30; S_J = 31
S_E0 = 38; S_L0 = 39
S_U0 = 48; S_U1 = 49
S_ONES = 52
T0, T1, T2, T3, T4, T5, T6 = 53, 54, 55, 56, 57, 58, 59
S_SPIN = 98
S_ROT = 39
S_DUM = 100
S_R14 = 0; S_RG = 1
V_LANE = 1; V_OFF = 2; V_FL = 3
V_SRC = 212; V_P13 = 213; V_RD = 214
HKEEP = 216
XRES = 204
WOV = 224
PAIR = 57344; SCR = 2 * PAIR; SINGLE = SCR + 16384
RAW5 = 196

def xm(n):
    if n >= 64: return 's_mov_b64 exec, -1'
    if n < 31: return f's_mov_b64 exec, {hex((1 << n) - 1)}'
    lo = '-1' if n >= 32 else hex((1 << n) - 1)
    return f's_mov_b32 exec_lo, {lo}\ns_mov_b32 exec_hi, {hex((1 << max(0, n - 32)) - 1)}'

def srd(a, d, p, nbytes):
    a(f's_mov_b32 s{d}, s{p}\ns_mov_b32 s{d+1}, s{p+1}\ns_mov_b32 s{d+2}, {nbytes}\ns_mov_b32 s{d+3}, 0x20000')

def halfsum(a, x, t):
    a(f'v_mov_b32 v{t}, v{x}\nv_permlane32_swap_b32 v{x}, v{t}\nv_add_f32 v{x}, v{x}, v{t}')

def flag_store(a, sreg, vt):
    a(f'v_mov_b32 v{vt}, s{S_TAG}\ns_mov_b64 exec, 1')
    a.vmem(f'buffer_store_dword v{vt}, v{V_OFF}, {sr4(SRD_WS)}, s{sreg} offen sc1', 'flag')
    a('s_mov_b64 exec, -1')

def poll_issue(a, sreg, vaddr, nl, vt):
    a(xm(nl))
    a.vmem(f'buffer_load_dword v{vt}, v{vaddr}, {sr4(SRD_WS)}, s{sreg} offen sc1', 'poll')
    a('s_mov_b64 exec, -1')

def poll_check(a, sreg, vaddr, nl, vt):
    L = a.newlabel('poll'); D = L + 'd'
    a(xm(nl) + f'\ns_mov_b32 s{S_SPIN}, 0x40000')
    a.vmwait('poll')
    a(f'v_cmp_ne_u32 vcc, s{S_TAG}, v{vt}\ns_cbranch_vccz {D}')
    a.label(L)
    a(f'''
    s_sleep {opt('sleep', 2)}
    buffer_load_dword v{vt}, v{vaddr}, {sr4(SRD_WS)}, s{sreg} offen sc1
    s_sub_u32 s{S_SPIN}, s{S_SPIN}, 1
    s_waitcnt vmcnt(0)
    s_cbranch_scc1 {D}
    v_cmp_ne_u32 vcc, s{S_TAG}, v{vt}
    s_cbranch_vccnz {L}
    ''')
    a.label(D)
    a('s_mov_b64 exec, -1')

def ssrd(a, D, lim, pa, pb, na, nb, per, u0, u1):
    a(f'''
    s_lshl_b32 s{u0}, s2, 2
    s_add_u32 s{u0}, s{u0}, s{S_W}
    s_mov_b32 s{D+2}, {na}
    s_cmp_ge_u32 s{u0}, {lim}
    s_cselect_b32 s{D}, s{pb}, s{pa}
    s_cselect_b32 s{D+1}, s{pb+1}, s{pa+1}
    s_cselect_b32 s{D+2}, {nb}, s{D+2}
    s_cselect_b32 s{u1}, {lim}, 0
    s_sub_u32 s{u0}, s{u0}, s{u1}
    s_mul_i32 s{u0}, s{u0}, {per}
    s_min_u32 s{u0}, s{u0}, s{D+2}
    s_sub_u32 s{D+2}, s{D+2}, s{u0}
    s_add_u32 s{D}, s{D}, s{u0}
    s_addc_u32 s{D+1}, s{D+1}, 0
    s_mov_b32 s{D+3}, 0x20000
    ''')

def sld(D, o): return f's_buffer_load_dwordx2 s[{S_DUM}:{S_DUM+1}], {sr4(D)}, {o + 60}'

def phase_a(a, R):
    NSLOT = 5
    WR = 81920
    WQ = WR + NSLOT * 8192
    CSP = WQ + 28672
    PRV = CSP + 1536
    QX = 155648
    assert PRV + 2048 <= QX
    R['QX'] = QX
    Q0 = R['Q'][0]
    va = VA(4, 256)
    ACC = [va(16), va(16)]; accQ = va(16)
    PK = va(8); assert PK == Q0, (PK, Q0)
    X = [va(4) for _ in range(28)]
    NWF = 4
    WF = [[va(4) for j in range(2)] for b in range(NWF)]
    vx = [va(), va()]; vw = [va(), va()]
    ax = [va() for _ in range(4)]; aw = [va() for _ in range(4)]; ab = [va() for _ in range(4)]
    pr = [va(2) for _ in range(6)]
    cs = [pr[0], pr[1], pr[2]]; mu = pr[3]; rs = pr[4]; rq = pr[5]
    sm = [pr[0] + 1, pr[1] + 1]; sq = [pr[2] + 1, pr[3] + 1]
    hf = pr[4] + 1; n31 = pr[5] + 1
    vq = va()
    t = [va() for _ in range(7)] + [0]
    dB = t[7]
    assert va.n <= 240, va.n
    T16 = 240; U16 = accQ
    a(f'v_lshrrev_b32 v{hf}, 5, v{V_LANE}\nv_and_b32 v{n31}, 31, v{V_LANE}')
    for i in range(2):
        a(f'''
        v_lshrrev_b32 v{t[0]}, 3, v{V_LANE}
        v_add_u32 v{t[0]}, {8*i}, v{t[0]}
        v_lshrrev_b32 v{t[1]}, 1, v{t[0]}
        v_and_b32 v{t[1]}, 7, v{t[1]}
        v_and_b32 v{t[2]}, 7, v{V_LANE}
        v_xor_b32 v{t[1]}, v{t[1]}, v{t[2]}
        v_lshlrev_b32 v{t[1]}, 4, v{t[1]}
        v_mul_u32_u24 v{t[0]}, 896, v{t[0]}
        v_add_u32 v{vx[i]}, v{t[0]}, v{t[1]}
        ''')
    a(f'''
    v_subrev_u32 v{vx[1]}, 1024, v{vx[1]}
    v_lshrrev_b32 v{t[0]}, 3, v{V_LANE}
    v_lshrrev_b32 v{t[1]}, 2, v{V_LANE}
    v_and_b32 v{t[1]}, 4, v{t[1]}
    v_xor_b32 v{t[1]}, v{t[1]}, v{t[2]}
    v_min_u32 v{t[1]}, 6, v{t[1]}
    v_mul_u32_u24 v{t[0]}, 2688, v{t[0]}
    v_lshl_add_u32 v{vw[0]}, v{t[1]}, 4, v{t[0]}
    v_add_u32 v{vw[1]}, {8*2688 - 1024}, v{vw[0]}
    s_waitcnt lgkmcnt(0)
    ''')
    srd(a, SRD_X, P_X, X_BYTES); srd(a, SRD_WQKV, P_WQKV, WQKV_BYTES)
    SX, SW, LX, LW = T3, T4, T5, T6
    a(f'''
    s_lshl_b32 s{SX}, s{S_TB}, 2
    s_add_u32 s{SX}, s{SX}, s{S_W}
    s_mul_i32 s{SX}, s{SX}, {32*896}
    s_mul_i32 s{SW}, s{S_W}, {16*2688}
    s_lshr_b32 s{T0}, s{S_H}, 1
    s_mul_i32 s{T0}, s{T0}, 112
    s_add_u32 s{SW}, s{SW}, s{T0}
    s_and_b32 s{T0}, s{S_H}, 1
    s_mul_i32 s{T0}, s{T0}, 896
    s_add_u32 s{SW}, s{SW}, s{T0}
    s_add_u32 s{SW}, s{SW}, 896
    s_mul_i32 s{LX}, s{S_W}, 20480
    s_lshl_b32 s{LW}, s{S_W}, 11
    s_add_u32 s{LW}, s{LW}, {WR}
    ''')
    def dma_items(c):
        sl = c % NSLOT
        out = []
        for i in range(2):
            out.append(([f's_add_u32 m0, s{LW}, {sl*8192}', f's_mul_i32 s{T0}, s{S_ROT}, {64*2688}', f's_add_u32 s{T0}, s{T0}, s{SW}'] if i == 0 else []) +
                       [('vm', f'buffer_load_dwordx4 v{vw[i]}, {sr4(SRD_WQKV)}, s{T0} offen offset:{1024*i} lds', f'c{c}')])
        for i in range(4):
            out.append(([f's_add_u32 m0, s{LX}, {sl*4096}'] if i == 0 else []) +
                       ([f's_lshl_b32 s{T0}, s{S_ROT}, 7', f's_add_u32 s{T0}, s{T0}, s{SX}'] if i == 0 else []) +
                       ([f's_add_u32 s{T0}, s{T0}, 12288'] if i == 2 else []) +
                       [('vm', f'buffer_load_dwordx4 v{vx[i&1]}, {sr4(SRD_X)}, s{T0} offen offset:{1024*i} lds', f'c{c}')] +
                       ([f's_add_u32 s{S_ROT}, s{S_ROT}, 1', f's_cmp_eq_u32 s{S_ROT}, 7', f's_cselect_b32 s{S_ROT}, 0, s{S_ROT}'] if i == 3 else []))
        return out
    def dma(c):
        for it in dma_items(c):
            for x in it: a.emit(x)
    a.stamp('G_karg')
    NPRE = opt('npre', 2)
    a(f'''
    s_lshr_b32 s{S_ROT}, s{S_J}, 3
    s_mul_i32 s{S_ROT}, s{S_ROT}, {opt('rotm', 2)}
    s_and_b32 s{T0}, s{S_J}, 7
    s_add_u32 s{S_ROT}, s{S_ROT}, s{T0}
    s_mul_i32 s{T0}, s{S_ROT}, 37
    s_lshr_b32 s{T0}, s{T0}, 8
    s_mul_i32 s{T0}, s{T0}, 7
    s_sub_u32 s{S_ROT}, s{S_ROT}, s{T0}
    s_lshl_b32 s{S_DUM}, s{S_ROT}, 2
    ''')
    for c in range(NPRE): dma(c)
    if opt('touchA', 0):
        HBv = opt('hb', 3); nl = {1: 2, 2: 3, 3: 4, 4: 7}[HBv]; ntok = 4096 >> HBv >> 0
        ntok = (32 >> HBv) * 128
        rows_x = ntok // 128
        a(f'''
        s_lshl_b32 s{T1}, s{S_J}, 2
        s_add_u32 s{T1}, s{T1}, s{S_W}
        s_lshr_b32 s{T2}, s{S_TB}, {5 - HBv}
        s_mul_i32 s{T2}, s{T2}, {ntok * 896}
        s_mul_i32 s{T0}, s{T1}, {rows_x * 896}
        s_add_u32 s{T0}, s{T0}, s{T2}
        ''')
        nx = rows_x * 7
        for i in range(0, nx, 64):
            a(xm(nx - i))
            a.vmem(f'buffer_load_dword a{1 + i // 64}, v{V_FL}, {sr4(SRD_X)}, s{T0} offen', 'touch')
            a(f's_add_u32 s{T0}, s{T0}, 8192')
        per = 4 * 3 * nl
        a(f'''
        s_mov_b64 exec, -1
        v_mul_u32_u24 v{t[3]}, {(65536 + nl - 1) // nl}, v{V_LANE}
        v_lshrrev_b32 v{t[3]}, 16, v{t[3]}
        v_mul_u32_u24 v{t[4]}, {nl}, v{t[3]}
        v_sub_u32 v{t[4]}, v{V_LANE}, v{t[4]}
        v_mul_u32_u24 v{t[3]}, 896, v{t[3]}
        v_lshl_add_u32 v{t[3]}, v{t[4]}, 7, v{t[3]}
        s_mul_i32 s{T0}, s{T1}, {4 * 2688}
        s_lshr_b32 s{T2}, s{S_H}, {HBv}
        s_mul_i32 s{T2}, s{T2}, {56 << HBv}
        s_and_b32 s{T2}, s{T2}, 0xffffff80
        s_add_u32 s{T0}, s{T0}, s{T2}
        {xm(per)}
        ''')
        a.vmem(f'buffer_load_dword a3, v{t[3]}, {sr4(SRD_WQKV)}, s{T0} offen', 'touch')
        a('s_mov_b64 exec, -1')
    a.stamp('G_dma0')
    assert T1 % 2 == 0 and T2 == T1 + 1
    a(f's_add_u32 s{T1}, s{P_WS}, {WS_FLG}\ns_addc_u32 s{T2}, s{P_WS+1}, 0\ns_load_dword s{S_TAG}, s[{T1}:{T2}], 0')
    srd(a, SRD_WS, P_WS, WS_SIZE)
    def touch_item():
        TA, TB, TC = T1, T2, T0
        return [f's_lshl_b32 s{TA}, s2, 2', f's_add_u32 s{TA}, s{TA}, s{S_W}', f's_mul_i32 s{TB}, s{TA}, 1338', f's_lshr_b32 s{TB}, s{TB}, 18',
                f's_mul_i32 s{TC}, s{TB}, 196', f's_sub_u32 s{TA}, s{TA}, s{TC}', f's_lshl_b32 s{TA}, s{TA}, 13',
                f's_cmp_eq_u32 s{TB}, 1', f's_cselect_b32 s{SRD_A}, s{P_W3}, s{P_W1}', f's_cselect_b32 s{SRD_A+1}, s{P_W3+1}, s{P_W1+1}',
                f's_cmp_eq_u32 s{TB}, 2', f's_cselect_b32 s{SRD_A}, s{P_W2}, s{SRD_A}', f's_cselect_b32 s{SRD_A+1}, s{P_W2+1}, s{SRD_A+1}',
                f's_mov_b32 s{SRD_A+2}, {W1_BYTES}',
                f's_cmp_eq_u32 s{TB}, 3', f's_cselect_b32 s{SRD_A}, s{P_WO}, s{SRD_A}', f's_cselect_b32 s{SRD_A+1}, s{P_WO+1}, s{SRD_A+1}',
                f's_cselect_b32 s{SRD_A+2}, {WO_BYTES}, s{SRD_A+2}',
                f's_cmp_gt_u32 s{TB}, 3', f's_cselect_b32 s{SRD_A+2}, 0, s{SRD_A+2}', f's_mov_b32 s{SRD_A+3}, 0x20000',
                ('vm', f'buffer_load_dword a0, v{V_FL}, {sr4(SRD_A)}, s{TA} offen', 'touch')]
    def prew():
        a(f'''
        v_mov_b32 v{t[7]}, s{S_TAG}
        v_add_u32 v{t[7]}, -1, v{t[7]}
        v_lshlrev_b32 v{t[5]}, 2, v{V_LANE}
        {xm(32)}
        s_lshr_b32 s{T1}, s{S_H}, 1
        s_lshl_b32 s{T1}, s{T1}, 2
        s_add_u32 s{T1}, s{T1}, s{S_W}
        s_lshl_b32 s{T1}, s{T1}, 1
        s_and_b32 s{T2}, s{S_H}, 1
        s_add_u32 s{T1}, s{T1}, s{T2}
        s_lshl_b32 s{T1}, s{T1}, 4
        s_add_u32 s{T1}, s{T1}, s{S_TB}
        s_lshl_b32 s{T1}, s{T1}, 7
        s_add_u32 s{T1}, s{T1}, {FL_A}
        ''')
        st_ = lambda: a.vmem(f'buffer_store_dword v{t[7]}, v{t[5]}, {sr4(SRD_WS)}, s{T1} offen sc1', 'prew')
        st_()
        a(f's_lshl_b32 s{T1}, s{S_TB}, 2\ns_add_u32 s{T1}, s{T1}, s{S_W}\ns_lshl_b32 s{T1}, s{T1}, 4\ns_add_u32 s{T1}, s{T1}, s{S_H}\ns_lshl_b32 s{T1}, s{T1}, 7\ns_add_u32 s{T1}, s{T1}, {FL_B}')
        st_()
        a(f's_lshl_b32 s{T1}, s{S_TD}, 2\ns_add_u32 s{T1}, s{T1}, s{S_W}\ns_lshl_b32 s{T1}, s{T1}, 4\ns_add_u32 s{T1}, s{T1}, s{S_FS}\ns_lshl_b32 s{T1}, s{T1}, 7\ns_add_u32 s{T1}, s{T1}, {FL_D1}')
        for i in range(3):
            st_(); a(f's_add_u32 s{T1}, s{T1}, {FLS}')
        a(f'''
        s_lshl_b32 s{T1}, s{S_RB}, 1
        s_and_b32 s{T2}, s{S_W}, 1
        s_add_u32 s{T1}, s{T1}, s{T2}
        s_lshl_b32 s{T1}, s{T1}, 3
        s_add_u32 s{T1}, s{T1}, s{S_CB}
        s_lshl_b32 s{T1}, s{T1}, 1
        s_lshr_b32 s{T2}, s{S_W}, 1
        s_add_u32 s{T1}, s{T1}, s{T2}
        s_lshl_b32 s{T1}, s{T1}, 7
        s_add_u32 s{T1}, s{T1}, {FL_C}
        s_cmp_ge_u32 s{S_J}, 28
        s_cselect_b32 s{T1}, 0x40000000, s{T1}
        ''')
        st_()
        a('s_mov_b64 exec, -1')
    def dmaq_items():
        out = []
        for i in range(7):
            out.append([] +
                       [f's_add_u32 m0, s{S_U0}, {i*1024}', f's_mul_i32 s{T0}, s{S_U1}, {16*2688}', f's_add_u32 s{T0}, s{T0}, s{S_E0}',
                        ('vm', f'buffer_load_dwordx4 v{vq}, {sr4(SRD_WQKV)}, s{T0} offen lds', 'wq'),
                        f's_add_u32 s{S_U1}, s{S_U1}, 1', f's_cmp_eq_u32 s{S_U1}, 28', f's_cselect_b32 s{S_U1}, 0, s{S_U1}'])
        return out
    a(f'''
    s_mul_i32 s{S_U0}, s{S_W}, {7*1024}
    s_add_u32 s{S_U0}, s{S_U0}, {WQ}
    s_mul_i32 s{S_U1}, s{S_W}, 7
    s_add_u32 s{S_U1}, s{S_U1}, s{S_DUM}
    s_cmp_ge_u32 s{S_U1}, 28
    s_cselect_b32 s{T0}, 28, 0
    s_sub_u32 s{S_U1}, s{S_U1}, s{T0}
    s_mul_i32 s{S_E0}, s{S_H}, 56
    ''')
    a(f'''
    v_lshrrev_b32 v{t[0]}, 2, v{V_LANE}
    v_mul_u32_u24 v{t[0]}, 2688, v{t[0]}
    v_and_b32 v{t[3]}, 3, v{V_LANE}
    v_lshl_add_u32 v{vq}, v{t[3]}, 4, v{t[0]}
    v_lshrrev_b32 v{t[0]}, 1, v{n31}
    v_and_b32 v{t[0]}, 7, v{t[0]}
    v_lshlrev_b32 v{t[1]}, 7, v{n31}
    v_add_u32 v{t[1]}, s{LX}, v{t[1]}
    v_bfe_u32 v{t[2]}, v{V_LANE}, 4, 1
    v_lshlrev_b32 v{t[2]}, 5, v{t[2]}
    v_lshl_add_u32 v{t[2]}, v{t[3]}, 3, v{t[2]}       ; cg*32 + c4*8
    v_bfe_u32 v{t[3]}, v{V_LANE}, 2, 2                ; r
    v_lshl_add_u32 v{t[5]}, v{hf}, 3, v{t[3]}         ; 8hf + r
    v_lshl_add_u32 v{t[6]}, v{t[5]}, 6, v{t[2]}
    v_bfe_u32 v{t[3]}, v{V_LANE}, 3, 1
    v_lshlrev_b32 v{t[3]}, 6, v{t[3]}                 ; 64*bit
    v_add_u32 v{t[4]}, 56, v{t[2]}
    v_xor_b32 v{t[4]}, v{t[4]}, v{t[3]}
    v_xor_b32 v{t[2]}, v{t[2]}, v{t[3]}
    v_sub_u32 v{dB}, v{t[4]}, v{t[2]}
    v_lshl_add_u32 v{t[2]}, v{t[5]}, 7, v{t[2]}
    v_add_u32 v{t[2]}, {WR}, v{t[2]}
    ''')
    AQ = t[6]
    for n in range(4):
        a(f'''
        s_add_u32 s{T0}, s{S_W}, {n}
        s_and_b32 s{T0}, s{T0}, 3
        s_lshl_b32 s{T1}, s{T0}, 1
        v_add_u32 v{t[4]}, s{T1}, v{hf}
        v_xor_b32 v{t[4]}, v{t[4]}, v{t[0]}
        v_lshl_add_u32 v{ax[n]}, v{t[4]}, 4, v{t[1]}
        s_lshl_b32 s{T1}, s{T0}, 11
        v_add_u32 v{aw[n]}, s{T1}, v{t[2]}
        v_add_u32 v{ab[n]}, v{dB}, v{aw[n]}
        ''')
    for r in sm + sq + cs: a(f'v_mov_b32 v{r}, 0')
    a(f's_mov_b32 s{S_ONES}, 0x3f803f80')
    PA = t[0]; CA = t[1]; CR = t[2]; PB = vx[0]
    def reads(s_):
        c, n = divmod(s_, 4); sl = c % NSLOT; b = s_ % NWF
        return [f'ds_read_b128 {vr(X[s_],4)}, v{ax[n]} offset:{sl*4096}'] + \
               [f'ds_read_b64_tr_b16 {vr(WF[b][0]+2*u,2)}, v{aw[n]} offset:{sl*8192 + u*512}' for u in range(2)] + \
               [f'ds_read_b64_tr_b16 {vr(WF[b][1]+2*u,2)}, v{ab[n]} offset:{sl*8192 + u*512}' for u in range(2)]
    if opt('spre', 1):
        ssrd(a, SRD_A, 512, P_W1, P_W3, W1_BYTES, W1_BYTES, 3200, T1, T2)
        for i in range(opt('spreA', 0)): a(sld(SRD_A, 128*i))
    a.stamp('A_issued')
    a.vmwait('c0', lgkm=0); a('s_barrier'); a.stamp('A_c0')
    a(f's_add_u32 s{S_TAG}, s{S_TAG}, 1')
    for x in reads(0) + reads(1): a(x)
    a(f's_bitcmp1_b32 s{S_H}, 0\ns_cbranch_scc1 LAV')
    vm0 = list(a.vm)
    for typ in range(2):
        if typ == 1:
            a.label('LAV'); a.vm = list(vm0)
        step = 0
        q_dma = []
        for c in range(NPRE, 7): q_dma += [(max(0, c - NSLOT + 1), it) for it in dma_items(c)]
        wq0 = opt('wq0', 11); wqs = opt('wqs', 2)
        NQE = opt('nqe', 7)
        q_dma += [(0, [('at', wq0 + wqs*i)] + it) for i, it in enumerate(dmaq_items()) if i < NQE]
        pass
        if opt('prew', 1): q_dma.insert(len(q_dma) - NQE, (0, [('at', opt('prewat', 12)), ('call', prew)]))
        PER = opt('dmaper', 1); cur = [0]
        def side(c):
            for _ in range(PER):
                if q_dma and q_dma[0][0] <= c:
                    x0 = q_dma[0][1][0]
                    if isinstance(x0, tuple) and x0[0] == 'at' and x0[1] > cur[0]: return
                    for x in q_dma.pop(0)[1]: a.emit(x)
        def dots(c):
            for n in range(4):
                x = X[4*c+n]
                for i in range(4):
                    a(f'v_dot2c_f32_bf16 v{sm[i&1]}, s{S_ONES}, v{x+i}')
                    a(f'v_dot2c_f32_bf16 v{sq[i&1]}, v{x+i}, v{x+i}')
                side(c + 1)
        def mf(step_, j):
            x = X[step_]; b = step_ % NWF
            A_, B_ = (WF[b][j], x) if typ == 0 else (x, WF[b][j])
            return f'{MFMA} {vr(ACC[j],16)}, {vr(A_,4)}, {vr(B_,4)}, {vr(ACC[j],16) if step_ else 0}'
        def csdots(step_):
            for i in range(4):
                for j in range(2): a(f'v_dot2c_f32_bf16 v{cs[1+j]}, s{S_ONES}, v{WF[step_ % NWF][j]+i}')
        for c in range(6):
            for n in range(4):
                if n == 2:
                    while q_dma and any(isinstance(x, tuple) and x[0] == 'vm' and x[2] == f'c{c+1}' for _, it in q_dma for x in it):
                        assert q_dma[0][0] <= c
                        for x in q_dma.pop(0)[1]: a.emit(x)
                    a.stamp(f'G_pre{c+1}')
                    a.vmwait(f'c{c+1}', lgkm=0); a('s_barrier')
                    a.stamp(f'G_c{c+1}')
                else:
                    a('s_waitcnt lgkmcnt(5)')
                rd = reads(step + 2)
                if n == 0: csdots(step)
                for j in range(2):
                    a(mf(step, j))
                    for y in (rd[:3] if j == 0 else rd[3:]): a(y)
                    side(c + (1 if n >= 2 else 0))
                step += 1; cur[0] = step
            if c == 5:
                for y in reads(26) + reads(27): a(y)
            dots(c)
        a('s_waitcnt lgkmcnt(0)')
        cur[0] = 24
        csdots(24); dots(6)
        while q_dma:
            for x in q_dma.pop(0)[1]: a.emit(x)
        hs = lambda x, tt: [f'v_mov_b32 v{tt}, v{x}', f'v_permlane32_swap_b32 v{x}, v{tt}', f'v_add_f32 v{x}, v{x}, v{tt}']
        ex = hs(cs[1], t[3]) + hs(cs[2], t[4]) + [
            f's_mul_i32 s{T0}, s{S_W}, 384', f's_add_u32 s{T0}, s{T0}, {CSP}', f'v_lshlrev_b32 v{t[7]}, 2, v{n31}', f'v_add_u32 v{CA}, s{T0}, v{t[7]}',
            f'ds_write_b32 v{CA}, v{cs[1]} offset:128', f'ds_write_b32 v{CA}, v{cs[2]} offset:256',
            f'v_add_f32 v{sm[0]}, v{sm[0]}, v{sm[1]}', f'v_add_f32 v{sq[0]}, v{sq[0]}, v{sq[1]}'] + hs(sm[0], t[3]) + hs(sq[0], t[4]) + [
            f'v_mul_u32_u24 v{CR}, 768, v{hf}', f'v_add_u32 v{CR}, v{CR}, v{t[7]}', f'v_add_u32 v{CR}, {CSP}, v{CR}',
            's_waitcnt lgkmcnt(0)', 's_barrier']
        for j in (1, 2): ex += [f'ds_read_b32 v{cs[j]}, v{CR} offset:{j*128}', f'ds_read_b32 v{t[3+j]}, v{CR} offset:{384 + j*128}']
        ex += [f'v_mul_f32 v{mu}, {fx(1.0/448)}, v{sm[0]}', f'v_mul_f32 v{t[3]}, {fx(1.0/448)}, v{sq[0]}',
               f'v_fma_f32 v{t[3]}, -v{mu}, v{mu}, v{t[3]}', f'v_max_f32 v{t[3]}, 0, v{t[3]}', f'v_add_f32 v{t[3]}, {fx(1e-5)}, v{t[3]}',
               f'v_rsq_f32 v{rs}, v{t[3]}', f's_lshl_b32 s{T0}, s{S_W}, 9', f's_add_u32 s{T0}, s{T0}, {PRV}',
               f'v_add_u32 v{PA}, s{T0}, v{t[7]}', f'v_lshlrev_b32 v{PB}, 4, v{hf}', f'v_add_u32 v{PB}, s{T0}, v{PB}']
        if typ == 1:
            ex += [f'ds_write_b32 v{PA}, v{mu} offset:256', f'ds_write_b32 v{PA}, v{rs} offset:384']
            for q in range(4): ex += [f'ds_read_b128 {vr(T16+4*q,4)}, v{PB} offset:{256 + 32*q}', f'ds_read_b128 {vr(U16+4*q,4)}, v{PB} offset:{384 + 32*q}']
            ex += ['s_waitcnt lgkmcnt(10)']
        else:
            ex += ['s_waitcnt lgkmcnt(0)']
        for j in (1, 2): ex += [f'v_add_f32 v{cs[j]}, v{cs[j]}, v{t[3+j]}']
        ex += hs(cs[1], t[3]) + hs(cs[2], t[4])
        if typ == 0:
            ex += [f'ds_write_b32 v{PA}, v{cs[1]}', f'ds_write_b32 v{PA}, v{cs[2]} offset:128']
            ex += [f'ds_read_b128 {vr(T16+4*q,4)}, v{PB} offset:{32*q}' for q in range(4)]
            ex += [f'ds_read_b128 {vr(U16+4*q,4)}, v{PB} offset:{128 + 32*q}' for q in range(4)]
            ex += [f'v_cmp_lt_u32 vcc, 31, v{V_LANE}']
        else:
            ex += [f'v_cmp_eq_u32 vcc, 28, v{n31}', f'v_mov_b32 v{t[7]}, s{S_ONES}', f'v_cndmask_b32 v{t[7]}, 0, v{t[7]}, vcc', f'v_cmp_lt_u32 vcc, 27, v{n31}']
        ex += [f'v_mul_f32 v{rq}, {fx(28**-0.5 * math.log2(math.e))}, v{rs}',
               f's_lshl_b32 s{T0}, s{S_TB}, 2', f's_add_u32 s{T0}, s{T0}, s{S_W}', f's_and_b32 s{T1}, s{S_H}, 14', f's_lshl_b32 s{T1}, s{T1}, 6',
               f's_add_u32 s{T0}, s{T0}, s{T1}', f's_lshl_b32 s{T0}, s{T0}, 12', f's_add_u32 s{T1}, s{T0}, {64*4096}']
        order = [(st_, 0) for st_ in range(24, 28)] + [(st_, 1) for st_ in range(24, 28)]
        per = opt('exper', 6)
        for st_, j in order:
            a(mf(st_, j))
            for x in ex[:per]: a(x)
            ex = ex[per:]
        for x in ex: a(x)
        a.stamp('A_kvloop')
        NEG1 = 'op_sel_hi:[1,0,1] neg_lo:[0,1,0] neg_hi:[0,1,0]'
        for j in range(2):
            A_ = ACC[j]; P_ = WF[j][0]
            if typ == 0:
                a(f's_waitcnt lgkmcnt({4*(1-j)})')
                C_ = (T16, U16)[j]
                for r in range(0, 16, 2): a(f'v_pk_fma_f32 {vr(A_+r,2)}, {vr(C_+r,2)}, {vr(mu,2)}, {vr(A_+r,2)} {NEG1}')
                for r in range(0, 16, 2): a(f'v_pk_mul_f32 {vr(A_+r,2)}, {vr(A_+r,2)}, {vr(rs,2)} op_sel_hi:[1,0]')
                for i in range(8): a(f'v_cvt_pk_bf16_f32 v{P_+i}, v{A_+2*i}, v{A_+2*i+1}')
                if j == 0: a(f'v_mov_b32 v{t[3]}, s{S_ONES}\nv_mov_b32 v{t[4]}, 0x3f80')
                a(f'v_cndmask_b32 v{P_+6}, v{P_+6}, v{t[3]}, vcc\nv_cndmask_b32 v{P_+7}, v{P_+7}, v{t[4]}, vcc')
            else:
                if j == 0: a('s_waitcnt lgkmcnt(0)')
                for r in range(0, 16, 2): a(f'v_pk_fma_f32 {vr(A_+r,2)}, {vr(T16+r,2)}, {vr(cs[1+j],2)}, {vr(A_+r,2)} {NEG1}')
                for r in range(0, 16, 2): a(f'v_pk_mul_f32 {vr(A_+r,2)}, {vr(A_+r,2)}, {vr(U16+r,2)}')
                for i in range(8): a(f'v_cvt_pk_bf16_f32 v{P_+i}, v{A_+2*i}, v{A_+2*i+1}')
                for i in range(8): a(f'v_cndmask_b32 v{P_+i}, v{P_+i}, v{t[7]}, vcc')
            for u in range(2):
                a.vmem(f'buffer_store_dwordx4 {vr(P_+4*u,4)}, v{V_OFF}, {sr4(SRD_WS)}, s{(T0, T1)[j]} offen offset:{2048*typ + 1024*u} sc1', 'stA')
        if typ == 0: a('s_branch LAQ')
    a.label('LAQ')
    a.stamp('A_kvst')
    aq = aw
    for n in range(4):
        a(f'''
        s_add_u32 s{T0}, s{S_W}, {n}
        s_and_b32 s{T0}, s{T0}, 3
        s_lshl_b32 s{T0}, s{T0}, 10
        s_add_u32 s{T0}, s{T0}, {WQ}
        v_add_u32 v{aq[n]}, s{T0}, v{AQ}
        ''')
    a(f'''
    s_lshr_b32 s{T1}, s{S_H}, 1
    s_lshl_b32 s{T1}, s{T1}, 2
    s_add_u32 s{T1}, s{T1}, s{S_W}
    s_lshl_b32 s{T1}, s{T1}, 12
    s_add_u32 s{T5}, s{T1}, {FL_A}
    s_and_b32 s{T1}, s{S_H}, 1
    s_lshl_b32 s{T1}, s{T1}, 4
    s_add_u32 s{T1}, s{T1}, s{S_TB}
    s_lshl_b32 s{T1}, s{T1}, 7
    s_add_u32 s{T1}, s{T5}, s{T1}
    ''')
    def publish():
        a.vmwait('stA'); flag_store(a, T1, t[3]); a.stamp('A_flag')
    FAQ = opt('fAq', 7)
    for i, it in enumerate(dmaq_items()):
        if i >= NQE:
            for x in it: a.emit(x)
        if i == FAQ: publish()
    a.vmwait('wq'); a('s_barrier')
    a.stamp('A_wq')
    QB = [ACC[0] + 4*i for i in range(8)]
    NQ = 8
    def rdq(s_):
        c, n = divmod(s_, 4)
        for u in range(2): a(f'ds_read_b64_tr_b16 {vr(QB[s_ % NQ]+2*u,2)}, v{aq[n]} offset:{c*4096 + u*256}')
    AH = 5
    for s_ in range(AH): rdq(s_)
    hs = lambda x, tt: [f'v_mov_b32 v{tt}, v{x}', f'v_permlane32_swap_b32 v{x}, v{tt}', f'v_add_f32 v{x}, v{x}, v{tt}']
    ex = []
    for s_ in range(28):
        if s_ + AH < 28:
            a(f's_waitcnt lgkmcnt({2*(AH-1)})')
        elif s_ == 28 - AH:
            a('s_waitcnt lgkmcnt(0)')
            for i in range(4): a(f'v_dot2c_f32_bf16 v{cs[0]}, s{S_ONES}, v{QB[24 % NQ]+i}')
            ex = hs(cs[0], t[4]) + [f'ds_write_b32 v{CA}, v{cs[0]}', 's_waitcnt lgkmcnt(0)', 's_barrier',
                 f'ds_read_b32 v{cs[0]}, v{CR}', f'ds_read_b32 v{t[4]}, v{CR} offset:384', f'v_cmp_lt_u32 vcc, 31, v{V_LANE}', 's_waitcnt lgkmcnt(0)',
                 f'v_add_f32 v{cs[0]}, v{cs[0]}, v{t[4]}'] + hs(cs[0], t[4]) + [f'ds_write_b32 v{PA}, v{cs[0]}'] + \
                 [f'ds_read_b128 {vr(T16+4*q,4)}, v{PB} offset:{32*q}' for q in range(4)]
        if s_ % 4 == 0 and s_ < 24:
            for i in range(4): a(f'v_dot2c_f32_bf16 v{cs[0]}, s{S_ONES}, v{QB[s_ % NQ]+i}')
        a(f'{MFMA} {vr(accQ,16)}, {vr(QB[s_ % NQ],4)}, {vr(X[s_],4)}, {vr(accQ,16) if s_ else 0}')
        if s_ + AH < 28: rdq(s_ + AH)
        for x in ex[:4]: a(x)
        ex = ex[4:]
        if s_ == opt('fAs', 20) and FAQ > 6: publish()
    for x in ex: a(x)
    if opt('pollA', 1) == 2: poll_issue(a, T5, V_FL, 32, R['t'][0])
    a('s_waitcnt lgkmcnt(0)')
    NEG1 = 'op_sel_hi:[1,0,1] neg_lo:[0,1,0] neg_hi:[0,1,0]'
    for r in range(0, 16, 2): a(f'v_pk_fma_f32 {vr(accQ+r,2)}, {vr(T16+r,2)}, {vr(mu,2)}, {vr(accQ+r,2)} {NEG1}')
    for r in range(0, 16, 2): a(f'v_pk_mul_f32 {vr(accQ+r,2)}, {vr(accQ+r,2)}, {vr(rq,2)} op_sel_hi:[1,0]')
    for i in range(8): a(f'v_cvt_pk_bf16_f32 v{Q0+i}, v{accQ+2*i}, v{accQ+2*i+1}')
    for i in (6, 7): a(f'v_cndmask_b32_e64 v{Q0+i}, v{Q0+i}, 0, vcc')
    a.stamp('A_q')

def w13_setup(a, S13, L13):
    a(f'''
    s_cmp_lt_u32 s{S_W}, 2
    s_cselect_b32 s{SRD_B}, s{P_W1}, s{P_W3}
    s_cselect_b32 s{SRD_B+1}, s{P_W1+1}, s{P_W3+1}
    s_mov_b32 s{SRD_B+2}, {W1_BYTES}
    s_mov_b32 s{SRD_B+3}, 0x20000
    s_and_b32 s{T0}, s{S_W}, 1
    s_mul_i32 s{T0}, s{T0}, 7
    s_add_u32 s{T0}, s{T0}, s{S_R14}
    s_sub_u32 s{S_RG}, s{T0}, 14
    s_min_u32 s{S_RG}, s{S_RG}, s{T0}
    s_mul_i32 s{S_RG}, s{S_RG}, {32*3584}
    s_mul_i32 s{S13}, s{S_FS}, 224
    s_mul_i32 s{L13}, s{S_W}, 14336
    ''')

def rg_next():
    return [f's_add_u32 s{S_RG}, s{S_RG}, {32*3584}', f's_sub_u32 s{T0}, s{S_RG}, {14*32*3584}', f's_min_u32 s{S_RG}, s{S_RG}, s{T0}']

def pair_dma(S13, L13, slot, col, i, tag):
    return [f's_add_u32 m0, s{L13}, {slot*PAIR + i*1024}',
            f's_add_u32 s{T0}, s{S13}, s{S_RG}'] + ([f's_add_u32 s{T0}, s{T0}, {16*3584}'] if i & 1 else []) + \
           [('vm', f'buffer_load_dwordx4 v{V_P13}, {sr4(SRD_B)}, s{T0} offen lds', tag)] + (rg_next() if i & 1 else [])

def alloc_b():
    va = VA(4, 204)
    KV = [va(16) for _ in range(3)] + ([WOV] if opt('nkv', 4) == 4 else [])
    Q = [va(8) for _ in range(4)]
    O = [va(16) for _ in range(4)]
    S = [va(16), va(16)]
    P = [va(8), va(8)]
    t = [va() for _ in range(8)]
    v5 = 215 + 8
    return dict(KV=KV, Q=Q, O=O, S=S, P=P, t=t, v5=v5)

def phase_b(a, R, stg):
    KV, Q, O, S, P, t, v5 = (R[k] for k in ('KV', 'Q', 'O', 'S', 'P', 't', 'v5'))
    QX = R['QX']
    S13, L13, SKV, SB = T3, T4, T6, T2
    qa = t[4:8]
    MA = [240, 241, 242, 243]; VKV = 244; VP2 = 245; VX = 246
    a(f'''
    s_lshl_b32 s{SKV}, s{S_H}, 6
    s_add_u32 s{SKV}, s{SKV}, s{S_W}
    s_lshl_b32 s{SKV}, s{SKV}, 12
    v_add_u32 v{VKV}, s{SKV}, v{V_OFF}
    s_lshl_b32 s{SB}, s{S_TB}, 14
    ''')
    if opt('pollA', 1) == 1:
        if opt('dlyA', 4): a(f"s_sleep {opt('dlyA', 4)}")
        poll_issue(a, T5, V_FL, 32, t[0])
    a.stamp('B_pre')
    poll_check(a, T5, V_FL, 32, t[0])
    a.stamp('B_poll')
    def kvload(buf):
        return [('vm', f'buffer_load_dwordx4 {vr(KV[buf]+4*j,4)}, v{VKV}, {sr4(SRD_WS)}, s{SB} offen offset:{1024*j} sc1', f'k{buf}' if j < 2 else f'kv{buf}') for j in range(4)] + \
               [f's_add_u32 s{SB}, s{SB}, 0x4000', f's_and_b32 s{SB}, s{SB}, 0x3c000']
    NKV = len(KV)
    NK0 = opt('nk0', 1)
    for b in range(NK0):
        for x in kvload(b): a.emit(x)
    for lq in range(4):
        a(f'''
        s_add_u32 s{T0}, s{S_W}, {lq}
        s_and_b32 s{T0}, s{T0}, 3
        s_lshl_b32 s{T0}, s{T0}, 11
        s_add_u32 s{T0}, s{T0}, {QX}
        v_add_u32 v{qa[lq]}, s{T0}, v{V_OFF}
        ''')
    a(f'ds_write_b128 v{qa[0]}, {vr(Q[0],4)}')
    stg.src_setup(t[1], t[2], t[3])
    w13_setup(a, S13, L13)
    a(f'''
    s_lshl_b32 s{T0}, s{S_E0}, 5
    s_add_u32 s{S13}, s{S13}, s{T0}
    s_and_b32 s{T0}, s{S_W}, 2
    v_and_b32 v{t[1]}, 3, v{V_LANE}
    v_xor_b32 v{t[1]}, s{T0}, v{t[1]}
    v_lshrrev_b32 v{t[2]}, 2, v{V_LANE}
    v_mul_u32_u24 v{t[2]}, 3584, v{t[2]}
    v_lshl_add_u32 v{V_P13}, v{t[1]}, 4, v{t[2]}
    s_lshl_b32 s{T0}, s{T0}, 1
    v_lshrrev_b32 v{t[1]}, 1, v{V_LANE}
    v_xor_b32 v{t[1]}, s{T0}, v{t[1]}
    v_mul_u32_u24 v{t[1]}, 3584, v{t[1]}
    v_and_b32 v{t[2]}, 1, v{V_LANE}
    v_lshl_add_u32 v{v5}, v{t[2]}, 4, v{t[1]}
    v_add_u32 v{VP2}, {16*3584 - 1024}, v{V_P13}
    s_waitcnt lgkmcnt(0)
    s_barrier
    ''')
    for lq in range(4):
        a(f'''
        s_add_u32 s{T0}, s{S_W}, {lq}
        s_and_b32 s{T0}, s{T0}, 3
        s_mul_i32 s{T0}, s{T0}, 12288
        s_add_u32 s{T0}, s{T0}, {SCR}
        v_add_u32 v{MA[lq]}, s{T0}, v{V_OFF}
        ''')
    a(f'''
    s_and_b32 s{SKV}, s{S_W}, 1
    s_lshl_b32 s{T0}, s{S_RB}, 1
    s_add_u32 s{SKV}, s{SKV}, s{T0}
    s_mul_i32 s{SKV}, s{SKV}, {32*896}
    s_lshr_b32 s{T0}, s{S_W}, 1
    s_lshl_b32 s{T0}, s{T0}, 6
    s_add_u32 s{SKV}, s{SKV}, s{T0}
    s_lshl_b32 s{T0}, s{S_CB}, 7
    s_add_u32 s{SKV}, s{SKV}, s{T0}
    v_and_b32 v{VX}, 31, v{V_LANE}
    v_lshrrev_b32 v{t[1]}, 5, v{V_LANE}
    v_mul_u32_u24 v{VX}, 896, v{VX}
    v_lshl_add_u32 v{VX}, v{t[1]}, 4, v{VX}
    ''')
    for lq in range(1, 4): a(f'ds_read_b128 {vr(Q[lq],4)}, v{qa[lq]}')
    spre = []; spre2 = []
    if opt('spre', 1):
        ssrd(a, SRD_WQKV, 784, P_W2, P_WO, W2_BYTES, WO_BYTES, 2048, S_U0, S_U1)
        spre = [[sld(SRD_A, 128*i)] for i in range(opt('spreA', 0), 25)]
        spre2 = [[sld(SRD_WQKV, 128*i)] for i in range(16)]
        if opt('spre0', 0):
            a('s_waitcnt lgkmcnt(0)')
            for _ in range(opt('spre0', 0)): a(spre.pop(0)[0])
    NK1 = opt('nk1', 2)
    for b in range(NK0, NK1):
        for x in kvload(b): a.emit(x)
    s_kv = []
    for T in range(NK1, NKV):
        s_kv += [(opt('kvS', 2) * (6 * (T - NK1) + k_), x) for k_, x in enumerate(kvload(T))]
    for T in range(NKV, 16):
        s_kv += [(16 * (T - NKV + 1) + 3 + opt('kvS', 2) * k_, x) for k_, x in enumerate(kvload(T % NKV))]
    s_w = []; wp = [opt('preP', 70)]
    for g in range(7):
        it = (rg_next() if g else []) + [f's_add_u32 s{T0}, s{S13}, s{S_RG}']
        for sl in range(2):
            it += [f's_add_u32 m0, s{L13}, {sl*PAIR + 2*g*1024 - 64*sl}',
                   ('vm', f'buffer_load_dwordx4 v{V_P13}, {sr4(SRD_B)}, s{T0} offen offset:{64*sl} lds', 'w13'),
                   ('vm', f'buffer_load_dwordx4 v{VP2}, {sr4(SRD_B)}, s{T0} offen offset:{1024 + 64*sl} lds', 'w13')]
        it += [('vm', f'buffer_load_dwordx4 {vr(RAW5+4*g,4,"a")}, v{v5}, {sr4(SRD_B)}, s{T0} offen offset:128', 'w13')]
        for x in it:
            if isinstance(x, tuple):
                s_w.append((wp[0], x)); wp[0] += opt('preS', 5)
            else: s_w.append((wp[0] - 4, x))
    s_s = [(4 + opt('sS', 4) * k_, x[0]) for k_, x in enumerate(spre + spre2)]
    s_x = [(opt('xrP', 40), ('vm', f'buffer_load_dwordx4 {vr(XRES,4)}, v{VX}, {sr4(SRD_X)}, s{SKV} offen', 'xr')),
           (opt('xrP', 40) + 6, ('vm', f'buffer_load_dwordx4 {vr(XRES+4,4)}, v{VX}, {sr4(SRD_X)}, s{SKV} offen offset:32', 'xr'))]
    if opt('noW', 0): s_w = []
    if opt('noS', 0): s_s = []
    if opt('noKV', 0): s_kv = []
    streams = [s_kv, s_w, s_x, s_s]
    a.vmwait('k0')
    a(f'{MFMA} {vr(S[0],16)}, {vr(KV[0],4)}, {vr(Q[0],4)}, 0')
    a(f'{MFMA} {vr(S[0],16)}, {vr(KV[0]+4,4)}, {vr(Q[0]+4,4)}, {vr(S[0],16)}')
    a(f'v_cmp_lt_u32 vcc, 31, v{V_LANE}')
    a(f'v_max3_f32 v{t[0]}, v{S[0]}, v{S[0]+1}, v{S[0]+2}\nv_max3_f32 v{t[1]}, v{S[0]+3}, v{S[0]+4}, v{S[0]+5}')
    for r in range(6, 14, 4):
        a(f'v_max3_f32 v{t[0]}, v{t[0]}, v{S[0]+r}, v{S[0]+r+1}\nv_max3_f32 v{t[1]}, v{t[1]}, v{S[0]+r+2}, v{S[0]+r+3}')
    a(f'''
    v_max3_f32 v{t[0]}, v{t[0]}, v{S[0]+14}, v{S[0]+15}
    v_max_f32 v{t[0]}, v{t[0]}, v{t[1]}
    v_mov_b32 v{t[1]}, v{t[0]}
    v_permlane32_swap_b32 v{t[0]}, v{t[1]}
    v_max_f32 v{t[0]}, v{t[0]}, v{t[1]}
    v_cvt_pk_bf16_f32 v{t[0]}, -v{t[0]}, 0
    v_cndmask_b32 v{Q[0]+6}, v{Q[0]+6}, v{t[0]}, vcc
    ds_write_b128 v{qa[0]}, {vr(Q[0]+4,4)} offset:1024
    v_lshlrev_b32 v{t[2]}, 16, v{t[0]}
    ''')
    assert t[2] % 2 == 0
    for r in range(0, 16, 2): a(f'v_pk_add_f32 {vr(S[0]+r,2)}, {vr(S[0]+r,2)}, {vr(t[2],2)} op_sel_hi:[1,0]')
    a('s_waitcnt lgkmcnt(0)\ns_barrier')
    for lq in range(1, 4): a(f'ds_read_b128 {vr(Q[lq]+4,4)}, v{qa[lq]} offset:1024')
    if opt('stag', 0):
        Ls = a.newlabel('stag')
        for w in range(1, 4):
            a(f's_cmp_lt_u32 s{S_W}, {w}\ns_cbranch_scc1 {Ls}')
            for _ in range(opt('stag', 0)): a('s_nop 15')
        a.label(Ls)
    a.stamp('B_first')
    def slot(T, q):
        cb = q & 1; nb = cb ^ 1
        kvn, nq = (T % NKV, q + 1) if q < 3 else ((T + 1) % NKV, 0)
        kvp, pq = (T % NKV, q - 1) if q else ((T - 1) % NKV, 3)
        no_qk = (T == 15 and q == 3); no_pv = (T == 0 and q == 0); first = (T == 0 or (T == 1 and q == 0))
        M = [None if no_qk else f'{MFMA} {vr(S[nb],16)}, {vr(KV[kvn],4)}, {vr(Q[nq],4)}, 0',
             None if no_qk else f'{MFMA} {vr(S[nb],16)}, {vr(KV[kvn]+4,4)}, {vr(Q[nq]+4,4)}, {vr(S[nb],16)}',
             None if no_pv else f'{MFMA} {vr(O[pq],16)}, {vr(KV[kvp]+8,4)}, {vr(P[nb],4)}, {0 if first else vr(O[pq],16)}',
             None if no_pv else f'{MFMA} {vr(O[pq],16)}, {vr(KV[kvp]+12,4)}, {vr(P[nb]+4,4)}, {vr(O[pq],16)}']
        e = lambda r: f'v_exp_f32 v{S[cb]+r}, v{S[cb]+r}'
        c = lambda j: f'v_cvt_pk_bf16_f32 v{P[cb]+j}, v{S[cb]+2*j}, v{S[cb]+2*j+1}'
        seq = [M[0], e(0), e(1), e(2), c(0), e(3), e(4), M[1], c(1), e(5), e(6), c(2), e(7), e(8),
               M[2], c(3), e(9), e(10), c(4), e(11), e(12), M[3], c(5), e(13), e(14), e(15), c(6), c(7)]
        if T == 0 and q == 0: seq.insert(7, 's_waitcnt lgkmcnt(0)')
        for k_, x in enumerate(seq):
            if x is not None: a(x)
            if x is None or x.startswith('v_mfma'):
                mi = pos[0] & 3
                if mi == 3 and q == 2 and T < 15: a.vmwait(f'kv{(T+1)%NKV}')
                elif mi == 3 and q == 0 and T == 0: a.vmwait('kv0')
                else:
                    for st_ in streams:
                        if st_ and st_[0][0] <= pos[0]:
                            a.emit(st_.pop(0)[1]); break
                pos[0] += 1
    pos = [0]
    for T in range(16):
        for q in range(4): slot(T, q)
    assert not any(streams), [len(x) for x in streams]
    a(f'{MFMA} {vr(O[3],16)}, {vr(KV[15 % NKV]+8,4)}, {vr(P[1],4)}, {vr(O[3],16)}')
    a(f'{MFMA} {vr(O[3],16)}, {vr(KV[15 % NKV]+12,4)}, {vr(P[1]+4,4)}, {vr(O[3],16)}')
    a.stamp('B_loop')
    stg.queue(opt('hgM', 4))
    for lq in range(1, 4):
        for j in range(4):
            a(f'ds_write_b128 v{MA[lq]}, {vr(O[lq]+4*j,4)} offset:{(lq-1)*4096 + j*1024}'); stg.one()
    a(f'''
    s_lshl_b32 s{T0}, s{S_TB}, 2
    s_add_u32 s{T0}, s{T0}, s{S_W}
    s_lshl_b32 s{T0}, s{T0}, 4
    s_add_u32 s{T0}, s{T0}, s{S_H}
    s_lshl_b32 s{T5}, s{T0}, 7
    s_add_u32 s{T5}, s{T5}, {FL_B}
    s_lshl_b32 s{T0}, s{T0}, 11
    s_add_u32 s{T0}, s{T0}, {WS_O}
    v_mov_b32 v{t[4]}, {fx(2.0 ** (64 if not opt('forcefb', 0) else -60))}
    v_mov_b32 v{t[5]}, {fx(2.0 ** -64)}
    s_waitcnt lgkmcnt(0)
    s_barrier
    ''')
    for lq in range(1, 4):
        for j in range(4): a(f'ds_read_b128 {vr(O[lq]+4*j,4)}, v{MA[0]} offset:{(lq-1)*4096 + j*1024}')
    stg.flush()
    for lq in range(1, 4):
        a(f's_waitcnt lgkmcnt({4*(3-lq)})')
        for r in range(0, 16, 2): a(f'v_pk_add_f32 {vr(O[0]+r,2)}, {vr(O[0]+r,2)}, {vr(O[lq]+r,2)}')
    a(f'''
    v_mov_b32 v{t[0]}, v{O[0]+12}
    v_mov_b32 v{t[1]}, v{O[0]+12}
    v_permlane32_swap_b32 v{t[0]}, v{t[1]}
    v_med3_f32 v{t[3]}, v{t[1]}, v{t[4]}, v{t[5]}
    v_cmp_neq_f32 vcc, v{t[3]}, v{t[1]}
    v_rcp_f32 v{t[2]}, v{t[1]}
    s_cbranch_vccnz Lfb
    ''')
    a.label('Lfb_ret')
    a(f'v_cmp_lt_u32 vcc, 31, v{V_LANE}')
    for r in range(0, 16, 2): a(f'v_pk_mul_f32 {vr(O[0]+r,2)}, {vr(O[0]+r,2)}, {vr(t[2],2)} op_sel_hi:[1,0]')
    for j in range(8): a(f'v_cvt_pk_bf16_f32 v{P[0]+j}, v{O[0]+2*j}, v{O[0]+2*j+1}')
    for j in (6, 7): a(f'v_cndmask_b32_e64 v{P[0]+j}, v{P[0]+j}, 0, vcc')
    for j in range(2):
        a.vmem(f'buffer_store_dwordx4 {vr(P[0]+4*j,4)}, v{V_OFF}, {sr4(SRD_WS)}, s{T0} offen offset:{1024*j} sc1', 'stB')
    a.stamp('B_st'); a.stamp('H_st')


def fallback(a, R):
    KV, Q, O, S, P, t = R['KV'][0], R['Q'][0], R['O'][0], R['S'][0], R['P'][0], R['t']
    a.label('Lfb')
    a(f"""
    v_cmp_lt_u32 vcc, 31, v{V_LANE}
    s_lshl_b32 s{T1}, s{S_H}, 18
    s_mov_b32 s{T2}, 64
    v_mov_b32 v{t[0]}, 0xff7fffff
    v_cndmask_b32_e64 v{Q+6}, v{Q+6}, 0, vcc
    v_cndmask_b32_e64 v{Q+7}, v{Q+7}, 0, vcc
    """)
    a.label('Lfb1')
    a(f"""
    buffer_load_dwordx4 {vr(KV,4)}, v{V_OFF}, {sr4(SRD_WS)}, s{T1} offen sc1
    buffer_load_dwordx4 {vr(KV+4,4)}, v{V_OFF}, {sr4(SRD_WS)}, s{T1} offen offset:1024 sc1
    s_add_u32 s{T1}, s{T1}, 4096
    s_waitcnt vmcnt(0)
    {MFMA} {vr(S,16)}, {vr(KV,4)}, {vr(Q,4)}, 0
    {MFMA} {vr(S,16)}, {vr(KV+4,4)}, {vr(Q+4,4)}, {vr(S,16)}
    """)
    for r in range(0, 16, 2): a(f'v_max3_f32 v{t[0]}, v{t[0]}, v{S+r}, v{S+r+1}')
    a(f"""
    s_sub_u32 s{T2}, s{T2}, 1
    s_cmp_lg_u32 s{T2}, 0
    s_cbranch_scc1 Lfb1
    v_mov_b32 v{t[1]}, v{t[0]}
    v_permlane32_swap_b32 v{t[0]}, v{t[1]}
    v_max_f32 v{t[0]}, v{t[0]}, v{t[1]}
    v_cvt_pk_bf16_f32 v{t[1]}, -v{t[0]}, 0
    v_lshlrev_b32 v{t[2]}, 16, v{t[1]}
    v_sub_f32 v{t[0]}, -v{t[0]}, v{t[2]}
    v_cvt_pk_bf16_f32 v{t[2]}, v{t[0]}, 0
    v_lshlrev_b32 v{t[2]}, 16, v{t[2]}
    v_sub_f32 v{t[0]}, v{t[0]}, v{t[2]}
    v_or_b32 v{t[1]}, v{t[1]}, v{t[2]}
    v_cvt_pk_bf16_f32 v{t[0]}, v{t[0]}, 0
    v_cndmask_b32 v{Q+6}, v{Q+6}, v{t[1]}, vcc
    v_cndmask_b32 v{Q+7}, v{Q+7}, v{t[0]}, vcc
    s_lshl_b32 s{T1}, s{S_H}, 18
    s_mov_b32 s{T2}, 64
    """)
    for r in range(16): a(f'v_mov_b32 v{O+r}, 0')
    a.label('Lfb2')
    for j in range(4): a(f'buffer_load_dwordx4 {vr(KV+4*j,4)}, v{V_OFF}, {sr4(SRD_WS)}, s{T1} offen offset:{1024*j} sc1')
    a(f"""
    s_add_u32 s{T1}, s{T1}, 4096
    s_waitcnt vmcnt(0)
    {MFMA} {vr(S,16)}, {vr(KV,4)}, {vr(Q,4)}, 0
    {MFMA} {vr(S,16)}, {vr(KV+4,4)}, {vr(Q+4,4)}, {vr(S,16)}
    """)
    for r in range(16): a(f'v_exp_f32 v{S+r}, v{S+r}')
    for j in range(8): a(f'v_cvt_pk_bf16_f32 v{P+j}, v{S+2*j}, v{S+2*j+1}')
    a(f"""
    {MFMA} {vr(O,16)}, {vr(KV+8,4)}, {vr(P,4)}, {vr(O,16)}
    {MFMA} {vr(O,16)}, {vr(KV+12,4)}, {vr(P+4,4)}, {vr(O,16)}
    s_sub_u32 s{T2}, s{T2}, 1
    s_cmp_lg_u32 s{T2}, 0
    s_nop 7
    s_cbranch_scc1 Lfb2
    s_nop 7
    v_mov_b32 v{t[0]}, v{O+12}
    v_mov_b32 v{t[1]}, v{O+12}
    v_permlane32_swap_b32 v{t[0]}, v{t[1]}
    v_rcp_f32 v{t[2]}, v{t[1]}
    s_branch Lfb_ret
    """)

class Stager:
    def __init__(self, a): self.a = a; self.nl = 0; self.nt = 0; self.q = []
    def src_setup(self, t0, t1, t2):
        self.a(f'''
        v_lshrrev_b32 v{t0}, 3, v{V_LANE}
        v_lshrrev_b32 v{t1}, 1, v{V_LANE}
        v_and_b32 v{t1}, 4, v{t1}
        v_and_b32 v{t2}, 7, v{V_LANE}
        v_xor_b32 v{t1}, v{t1}, v{t2}
        v_mul_u32_u24 v{t0}, 1792, v{t0}
        v_lshl_add_u32 v{V_SRC}, v{t1}, 4, v{t0}
        ''')
    def setup(self, t0, t1, t2, vw):
        a = self.a; self.vw = vw
        a(f'''
        v_lshrrev_b32 v{t0}, 5, v{V_LANE}
        v_bfe_u32 v{t1}, v{V_LANE}, 2, 2
        v_lshl_add_u32 v{t0}, v{t0}, 2, v{t1}
        v_lshlrev_b32 v{t0}, 7, v{t0}
        v_bfe_u32 v{t1}, v{V_LANE}, 4, 1
        v_lshl_add_u32 v{t0}, v{t1}, 5, v{t0}
        v_and_b32 v{t1}, 3, v{V_LANE}
        v_lshl_add_u32 v{t0}, v{t1}, 3, v{t0}
        v_bfe_u32 v{t1}, v{V_LANE}, 3, 1
        s_lshr_b32 s{T0}, s{S_W}, 1
        v_xor_b32 v{t1}, s{T0}, v{t1}
        v_lshl_add_u32 v{t0}, v{t1}, 6, v{t0}
        s_lshl_b32 s{T0}, s{S_W}, 12
        s_add_u32 s{T0}, s{T0}, {SCR}
        v_add_u32 v{V_RD}, s{T0}, v{t0}
        v_xor_b32 v{V_RD+1}, 64, v{V_RD}
        v_lshrrev_b32 v{t0}, 3, v{V_LANE}
        v_lshlrev_b32 v{t0}, 7, v{t0}
        v_add3_u32 v{vw}, s{T0}, v{V_OFF}, v{t0}
        ''')
    def target_items(self, which):
        p, nb = (P_WO, WO_BYTES) if which == 'wo' else (P_W2, W2_BYTES)
        return [f's_mov_b32 s{SRD_A}, s{p}', f's_mov_b32 s{SRD_A+1}, s{p+1}', f's_mov_b32 s{SRD_A+2}, {nb}', f's_mov_b32 s{SRD_A+3}, 0x20000',
                f's_mul_i32 s{S_U0}, s{S_W}, {(112 if which == "wo" else 448)*896}', f's_lshl_b32 s{S_U1}, s{S_CB}, 7', f's_add_u32 s{S_U0}, s{S_U0}, s{S_U1}']
    @staticmethod
    def base(g):
        if g < 2: return ('a', 224 + 16 * g)
        if g < 4: return ('v', WOV + 16 * (g - 2))
        return ('a', 16 * (g - 4))
    @staticmethod
    def dest(g, s_, lc):
        p, b = Stager.base(g); return p, b + (s_ * 2 + lc) * 4
    def load_items(self):
        g = self.nl; self.nl += 1
        pre = self.target_items('wo') if g == 0 else (self.target_items('w2') if g == 4 else [])
        row0 = 28 * g if g < 4 else 32 * (g - 4)
        p, b = self.base(g)
        out = [pre] if pre else []
        for h_ in range(2):
            out.append([f's_add_u32 s{S_U1}, s{S_U0}, {(row0 + 16*h_)*896}'] +
                       [('vm', f'buffer_load_dwordx4 {vr(b+8*h_+4*i,4,p)}, v{V_SRC}, {sr4(SRD_A)}, s{S_U1} offen offset:{896*i}', f'hg{g}') for i in range(2)])
        return out
    def load(self):
        self.flush()
        for it in self.load_items():
            for x in it: self.a.emit(x)
    def queue(self, upto):
        while self.nl < upto:
            for it in self.load_items(): self.q += it
    def one(self):
        while self.q:
            x = self.q.pop(0); self.a.emit(x)
            if isinstance(x, tuple): break
    def flush(self):
        while self.q: self.one()
    def wr(self, u):
        a = self.a; g, s_ = divmod(u, 2); p, b = self.base(g)
        for i in range(2): a(f'ds_write_b128 v{self.vw}, {vr(b+8*s_+4*i,4,p)} offset:{2048*s_ + 128*i}')
    def rd(self, u):
        a = self.a; g, s_ = divmod(u, 2); p, b = self.base(g)
        for lc in range(2):
            for uu in range(2):
                a(f'ds_read_b64_tr_b16 {vr(b+(s_*2+lc)*4+2*uu,2,p)}, v{V_RD+lc} offset:{s_*2048 + uu*1024}')
    def trans(self):
        a = self.a; g = self.nt; self.nt += 1
        a.stamp(f'{"H" if g < 11 else "I"}_pre{g}')
        a.vmwait(f'hg{g}')
        if g in (0, 6): a.stamp(f'H_got{g}')
        for u in (2*g, 2*g + 1): self.wr(u)
        for u in (2*g, 2*g + 1): self.rd(u)
    def close(self): pass

def red_addr(a, t):
    for l in range(4):
        a(f's_xor_b32 s{T0}, s{S_W}, {l}\ns_mul_i32 s{T0}, s{T0}, 12288\ns_add_u32 s{T0}, s{T0}, {SCR}\nv_add_u32 v{t[l]}, s{T0}, v{V_OFF}')
def red_write(a, ACC, t, l, side=lambda: None):
    for j in range(4):
        a(f'ds_write_b128 v{t[l]}, {vr(ACC[l]+4*j,4)} offset:{(l-1)*4096 + j*1024}'); side()
def red_read(a, ACC, t, side=lambda: None):
    a('s_waitcnt lgkmcnt(0)\ns_barrier')
    for l in range(1, 4):
        for j in range(4): a(f'ds_read_b128 {vr(ACC[l]+4*j,4)}, v{t[0]} offset:{(l-1)*4096 + j*1024}')
    side()
    for l in range(1, 4):
        a(f's_waitcnt lgkmcnt({4*(3-l)})')
        for r in range(0, 16, 2): a(f'v_pk_add_f32 {vr(ACC[0]+r,2)}, {vr(ACC[0]+r,2)}, {vr(ACC[l]+r,2)}')

def put5(a, vt):
    a(f's_mul_i32 s{T0}, s{S_W}, 7168\ns_add_u32 s{T0}, s{T0}, {SINGLE}\nv_add_u32 v{vt}, s{T0}, v{V_OFF}')
    for g in range(7): a(f'ds_write_b128 v{vt}, {vr(RAW5+4*g,4,"a")} offset:{1024*g}')

def tile_ids(a, STT, SCT):
    a(f'''
    s_and_b32 s{STT}, s{S_W}, 1
    s_lshl_b32 s{T0}, s{S_RB}, 1
    s_add_u32 s{STT}, s{STT}, s{T0}
    s_lshr_b32 s{SCT}, s{S_W}, 1
    s_lshl_b32 s{T0}, s{S_CB}, 1
    s_add_u32 s{SCT}, s{SCT}, s{T0}
    ''')
def flag8_addr(a, vf, t0, t1, sdst, base):
    a(f'''
    v_lshrrev_b32 v{t0}, 2, v{V_LANE}
    v_lshlrev_b32 v{t0}, 11, v{t0}
    v_and_b32 v{t1}, 3, v{V_LANE}
    v_lshl_add_u32 v{vf}, v{t1}, 7, v{t0}
    s_lshl_b32 s{T0}, s{S_RB}, 3
    s_add_u32 s{T0}, s{T0}, s{S_W}
    s_lshl_b32 s{sdst}, s{T0}, 9
    s_add_u32 s{sdst}, s{sdst}, {base}
    ''')

def phase_c(a, R, stg):
    va = VA(4, 200)
    ACC = [va(16) for _ in range(4)]
    OF = [[va(4) for k in range(8)] for lt in range(2)]
    t = [va() for _ in range(8)]; vf = va(); vw = va(); vp = va()
    STT, SCT = T1, T2
    NB1 = opt('hgB', 10); NF = opt('hgBf', 2)
    for g in range(NF):
        if stg.nl < NB1: stg.load()
    stg.setup(t[0], t[1], t[2], vw)
    tile_ids(a, STT, SCT)
    for l in range(2):
        a(f'''
        s_xor_b32 s{T0}, s{STT}, {l}
        s_lshl_b32 s{T0}, s{T0}, 2
        s_add_u32 s{T0}, s{T0}, s{S_W}
        s_lshl_b32 s{T0}, s{T0}, 13
        s_add_u32 s{T3+l}, s{T0}, {WS_O}
        ''')
    for g in (0, 4):
        a(f'v_permlane32_swap_b32 v{XRES+g}, v{XRES+g+2}\nv_permlane32_swap_b32 v{XRES+g+1}, v{XRES+g+3}')
    for j in range(8):
        a(f'v_lshlrev_b32 v{ACC[0]+2*j}, 16, v{XRES+j}\nv_and_b32 v{ACC[0]+2*j+1}, 0xffff0000, v{XRES+j}')
    a('s_barrier')
    for _ in range(opt('trB0', 2)): stg.trans()
    a.vmwait('stB')
    flag_store(a, T5, t[3])
    a.stamp('C_flag'); a.stamp('H_flag')
    flag8_addr(a, vf, t[0], t[1], T5, FL_B)
    NT1 = NB1 - opt('trB', 2)
    for _ in range(opt('hgBg', 2)):
        if stg.nl < NB1: stg.load()
    while stg.nt < NT1:
        if stg.nt == NT1 - opt('pollB', 2): poll_issue(a, T5, vf, 8, vp)
        stg.trans()
        if stg.nl < NB1: stg.load()
    a.stamp('C_pre')
    poll_check(a, T5, vf, 8, vp)
    a.stamp('C_poll')
    for k in range(8):
        if k == 4: a(f's_add_u32 s{T3}, s{T3}, 4096\ns_add_u32 s{T4}, s{T4}, 4096')
        for l in range(2):
            a.vmem(f'buffer_load_dwordx4 {vr(OF[l][k],4)}, v{V_OFF}, {sr4(SRD_WS)}, s{T3+l} offen offset:{1024*(k&3)} sc1', f'o{k}')
    nfree = 4 + RAW5 // 16
    while stg.nt < NB1: stg.trans()
    red_addr(a, t)
    a(f'''
    s_mul_i32 s{T6}, s{STT}, 14
    s_add_u32 s{T6}, s{T6}, s{SCT}
    s_lshl_b32 s{T5}, s{STT}, 4
    s_add_u32 s{T5}, s{T5}, s{SCT}
    s_lshl_b32 s{T5}, s{T5}, 7
    s_add_u32 s{T5}, s{T5}, {FL_C}
    s_waitcnt lgkmcnt(0)
    s_barrier
    ''')
    def mm(k, l):
        p, b = stg.dest(k >> 1, k & 1, l >> 1)
        a(f'{MFMA} {vr(ACC[l],16)}, {vr(b,4,p)}, {vr(OF[l & 1][k],4)}, {vr(ACC[l],16) if (k or l == 0) else 0}')
    KT = 5
    for k in range(KT):
        a.vmwait(f'o{k}')
        for l in range(4): mm(k, l)
    stg.queue(min(nfree, NB1 + opt('hgC0', 4)))
    for l in (1, 2, 3, 0):
        for k in range(KT, 8):
            if l == 1: a.vmwait(f'o{k}')
            mm(k, l)
        if l in (2, 3): red_write(a, ACC, t, l - 1, stg.one)
    a.stamp('C_mfma')
    red_write(a, ACC, t, 3, stg.one)
    red_read(a, ACC, t, stg.flush)
    for j in range(8): a(f'v_cvt_pk_bf16_f32 v{HKEEP+j}, v{ACC[0]+2*j}, v{ACC[0]+2*j+1}')
    a(f's_lshl_b32 s{T0}, s{T6}, 11\ns_add_u32 s{T0}, s{T0}, {WS_H}')
    for j in range(2):
        a.vmem(f'buffer_store_dwordx4 {vr(HKEEP+4*j,4)}, v{V_OFF}, {sr4(SRD_WS)}, s{T0} offen offset:{1024*j} sc1', 'stC')
    for i in range(4): a(f'v_mov_b32 v{t[4+i]}, 0')
    for j in range(8):
        a(f'v_dot2c_f32_bf16 v{t[4+(j&1)]}, s{S_ONES}, v{HKEEP+j}')
        a(f'v_dot2c_f32_bf16 v{t[6+(j&1)]}, v{HKEEP+j}, v{HKEEP+j}')
    a(f'''
    v_add_f32 v{t[4]}, v{t[4]}, v{t[5]}
    v_add_f32 v{t[6]}, v{t[6]}, v{t[7]}
    v_permlane32_swap_b32 v{t[4]}, v{t[6]}
    v_add_f32 v{t[4]}, v{t[4]}, v{t[6]}
    v_and_b32 v{t[5]}, 31, v{V_LANE}
    v_lshrrev_b32 v{t[6]}, 5, v{V_LANE}
    v_lshlrev_b32 v{t[6]}, 2, v{t[6]}
    v_lshl_add_u32 v{t[5]}, v{t[5]}, 3, v{t[6]}
    s_lshl_b32 s{T0}, s{T6}, 8
    s_add_u32 s{T0}, s{T0}, {WS_ST}
    ''')
    a.vmem(f'buffer_store_dword v{t[4]}, v{t[5]}, {sr4(SRD_WS)}, s{T0} offen sc1', 'stC')
    a.stamp('C_st')
    for _ in range(opt('hgCf', 2)):
        if stg.nl < nfree: stg.load()
    a('s_barrier')
    put5(a, t[0])
    for _ in range(opt('trC0', 1)): stg.trans()
    a.vmwait('stC')
    flag_store(a, T5, t[3])
    a.stamp('C_flag2')
    NTP = 18 - opt('trC', 2) - opt('pollC', 2)
    while stg.nl < 18: stg.load()
    while stg.nt < NTP: stg.trans()

def phase_d(a, R, stg):
    va = VA(4, 212)
    X = [va(4) for _ in range(28)]
    ACC = [va(16) for _ in range(4)]
    HP = va(4)
    t = [va(2) for _ in range(4)]
    mu = va(2)
    vl = [va() for _ in range(6)]
    vp = va(); vs = va()
    W = [va(4) for _ in range(2)] + [WOV + 4*i for i in range(8)]
    NW = len(W)
    ST = ACC[3]
    E = [t[0], t[0]+1, t[1], t[1]+1, t[2], t[2]+1, t[3], t[3]+1]
    STT = T6; SH = T5; S13, L13 = T3, T4
    w13_setup(a, S13, L13)
    a(f'''
    s_lshl_b32 s{T0}, s{S_L0}, 5
    s_add_u32 s{S13}, s{S13}, s{T0}
    s_lshl_b32 s{STT}, s{S_TD}, 2
    s_add_u32 s{STT}, s{STT}, s{S_W}
    s_lshl_b32 s{T2}, s{STT}, 11
    s_add_u32 s{T2}, s{T2}, {FL_C}
    v_bfe_u32 v{t[0]}, v{V_LANE}, 4, 1                 ; cg
    v_lshrrev_b32 v{t[1]}, 5, v{V_LANE}                ; hf
    v_bfe_u32 v{t[3]}, v{V_LANE}, 2, 2                 ; r
    v_and_b32 v{mu}, 3, v{V_LANE}
    v_lshlrev_b32 v{mu}, 3, v{mu}                      ; c4*8
    v_xor_b32 v{t[2]}, v{t[0]}, v{t[1]}
    v_lshl_add_u32 v{t[2]}, v{t[2]}, 2, v{t[3]}
    v_lshl_add_u32 v{t[2]}, v{t[2]}, 5, v{mu}
    v_mul_u32_u24 v{vl[4]}, 14336, v{t[0]}
    v_add_u32 v{vl[4]}, v{vl[4]}, v{t[2]}
    v_add_u32 v{vl[4]}, {SINGLE}, v{vl[4]}
    v_lshl_add_u32 v{t[2]}, v{t[1]}, 2, v{t[3]}
    v_lshl_add_u32 v{t[2]}, v{t[2]}, 6, v{mu}
    v_mul_u32_u24 v{t[0]}, {28672 + 32}, v{t[0]}
    v_add_u32 v{vl[0]}, v{t[0]}, v{t[2]}
    v_xor_b32 v{vl[1]}, 32, v{vl[0]}
    v_add_u32 v{vl[2]}, {PAIR}, v{vl[0]}
    v_add_u32 v{vl[3]}, {PAIR}, v{vl[1]}
    v_and_b32 v{t[0]}, 31, v{V_LANE}
    v_mul_u32_u24 v{t[1]}, {7*256}, v{t[1]}
    v_lshl_add_u32 v{vs}, v{t[0]}, 3, v{t[1]}
    s_mul_i32 s{T1}, s{STT}, {14*256}
    s_add_u32 s{T1}, s{T1}, {WS_ST}
    s_mul_i32 s{SH}, s{STT}, {28*1024}
    s_add_u32 s{SH}, s{SH}, {WS_H}
    ''')
    NTP = 18 - opt('trC', 2)
    poll_issue(a, T2, V_FL, 14, vp)
    Ls = a.newlabel('skip')
    a(f's_cmp_ge_u32 s{S_J}, 28\ns_cbranch_scc1 {Ls}')
    while stg.nt < NTP: stg.trans()
    a.label(Ls)
    a('s_waitcnt lgkmcnt(0)\ns_barrier')
    a.stamp('D_pre')
    rest = [x for x in a.vm if x.startswith('hg')]
    poll_check(a, T2, V_FL, 14, vp)
    a.stamp('D_poll')
    for c in range(7):
        a.vmem(f'buffer_load_dwordx2 {vr(ST+2*c,2)}, v{vs}, {sr4(SRD_WS)}, s{T1} offen offset:{256*c} sc1', 'st')
    SX_ = S_SPIN + 1
    a(f's_lshl_b32 s{SX_}, s{S_R14}, 11\nv_add_u32 v{vl[5]}, s{SH}, v{V_OFF}')
    def ldx(k):
        if k and k % 2 == 0: a(f's_add_u32 s{SX_}, s{SX_}, 2048\ns_sub_u32 s{T0}, s{SX_}, {28*1024}\ns_min_u32 s{SX_}, s{SX_}, s{T0}')
        a.vmem(f'buffer_load_dwordx4 {vr(X[k],4)}, v{vl[5]}, {sr4(SRD_WS)}, s{SX_} offen offset:{1024*(k&1)} sc1', f'x{k}')
    XLA = opt('xla', 10)
    for k in range(XLA): ldx(k)
    a(f's_or_b32 s{T0}, s2, s{S_W}\ns_cmp_lg_u32 s{T0}, 0\ns_cselect_b32 s{T0}, 0x40000000, {WS_FLG}')
    flag_store(a, T0, t[0])
    a.stamp('F_issued')
    Ls = a.newlabel('skip')
    a(f's_cmp_ge_u32 s{S_J}, 28\ns_cbranch_scc1 {Ls}')
    while stg.nt < 18: stg.trans()
    stg.close()
    a.label(Ls)
    SE = T5; SL = T1; SF = T2
    a(f'''
    s_mul_i32 s{SE}, s{STT}, 112
    s_mul_i32 s{T0}, s{S_FS}, 7
    s_add_u32 s{SE}, s{SE}, s{T0}
    s_add_u32 s{SL}, s{SE}, s{S_L0}
    s_add_u32 s{SE}, s{SE}, s{S_E0}
    s_lshl_b32 s{SE}, s{SE}, 10
    s_add_u32 s{SE}, s{SE}, {WS_HH}
    s_lshl_b32 s{SL}, s{SL}, 10
    s_add_u32 s{SL}, s{SL}, {WS_HH}
    s_add_u32 s{S_U1}, s{SE}, 4096
    s_lshl_b32 s{SF}, s{STT}, 4
    s_add_u32 s{SF}, s{SF}, s{S_FS}
    s_lshl_b32 s{SF}, s{SF}, 7
    s_add_u32 s{SF}, s{SF}, {FL_D1}
    ''')
    if opt('trC', 2): a('s_waitcnt lgkmcnt(0)')
    seq = [(j, k) for k in range(28) for j in (0, 1, 4)] + [(j, k) for j in (2, 3, 5, 6) for k in range(28)]
    def rdW(n):
        j, k = seq[n]
        if j == 4: return [f'ds_read_b64_tr_b16 {vr(W[n % NW]+2*u,2)}, v{vl[4]} offset:{k*512 + u*256}' for u in range(2)]
        return [f'ds_read_b64_tr_b16 {vr(W[n % NW]+2*u,2)}, v{vl[{0:0,1:1,2:2,3:3,5:0,6:1}[j]]} offset:{k*1024 + u*512}' for u in range(2)]
    AH = opt('ah', 6); assert AH + 2 <= NW and 2 * AH <= 15
    a.stamp('F_bar')
    for n in range(AH):
        for x in rdW(n): a(x)
    a.vmwait('st')
    for c in range(3): a(f'v_pk_add_f32 {vr(ST+4*c,2)}, {vr(ST+4*c,2)}, {vr(ST+4*c+2,2)}')
    a(f'v_pk_add_f32 {vr(ST,2)}, {vr(ST,2)}, {vr(ST+4,2)}\nv_pk_add_f32 {vr(ST+8,2)}, {vr(ST+8,2)}, {vr(ST+12,2)}\nv_pk_add_f32 {vr(ST,2)}, {vr(ST,2)}, {vr(ST+8,2)}')
    a(f'v_mov_b32 v{t[0]}, v{ST}\nv_mov_b32 v{t[1]}, v{ST+1}\nv_permlane32_swap_b32 v{t[0]}, v{ST}\nv_permlane32_swap_b32 v{t[1]}, v{ST+1}')
    a(f'v_add_f32 v{t[0]}, v{t[0]}, v{ST}\nv_add_f32 v{t[1]}, v{t[1]}, v{ST+1}')
    a(f'''
    v_mul_f32 v{t[0]}, {fx(1/448)}, v{t[0]}
    v_mul_f32 v{t[1]}, {fx(1/448)}, v{t[1]}
    v_fma_f32 v{t[1]}, -v{t[0]}, v{t[0]}, v{t[1]}
    v_max_f32 v{t[1]}, 0, v{t[1]}
    v_add_f32 v{t[1]}, {fx(1e-5)}, v{t[1]}
    v_rsq_f32 v{mu}, v{t[1]}
    s_mov_b32 s{S_U0}, 0xffff0000
    v_mul_f32 v{mu+1}, v{t[0]}, v{mu}
    v_sub_f32 v{mu+1}, 0, v{mu+1}
    ''')
    def norm(k):
        out = []
        for i in range(4): out += [f'v_lshlrev_b32 v{t[i]}, 16, v{X[k]+i}', f'v_and_b32 v{t[i]+1}, s{S_U0}, v{X[k]+i}']
        if opt('pkN', 1):
            for i in range(4): out += [f'v_pk_fma_f32 {vr(t[i],2)}, {vr(t[i],2)}, {vr(mu,2)}, {vr(mu,2)} op_sel:[0,0,1] op_sel_hi:[1,0,1]']
        else:
            for i in range(4): out += [f'v_fma_f32 v{t[i]}, v{t[i]}, v{mu}, v{mu+1}', f'v_fma_f32 v{t[i]+1}, v{t[i]+1}, v{mu}, v{mu+1}']
        for i in range(4): out += [f'v_cvt_pk_bf16_f32 v{X[k]+i}, v{t[i]}, v{t[i]+1}']
        return out
    acc_of = {0: 0, 1: 1, 4: 2, 2: 3, 3: 0, 5: 1, 6: 2}
    def epi(j):
        A = ACC[acc_of[j]]
        out = []
        pk = opt('pkE', 0) if j != 6 else 2
        if pk >= 2:
            for r in range(0, 8, 2): out.append(f'v_pk_mul_f32 {vr(E[r],2)}, {vr(A+r,2)}, {vr(mu,2)} op_sel_hi:[1,0]')
        else:
            for r in range(8): out.append(f'v_mul_f32 v{E[r]}, v{mu}, v{A+r}')
        for r in range(8): out.append(f'v_exp_f32 v{E[r]}, v{E[r]}')
        if pk >= 1:
            for r in range(0, 8, 2): out.append(f'v_pk_mul_f32 {vr(A+r,2)}, {vr(A+r,2)}, {vr(A+8+r,2)}')
        else:
            for r in range(8): out.append(f'v_mul_f32 v{A+r}, v{A+r}, v{A+8+r}')
        if pk >= 2:
            for r in range(0, 8, 2): out.append(f'v_pk_add_f32 {vr(E[r],2)}, {vr(E[r],2)}, {vr(mu,2)} op_sel:[0,1] op_sel_hi:[1,1]')
        else:
            for r in range(8): out.append(f'v_add_f32 v{E[r]}, 1.0, v{E[r]}')
        for r in range(8): out.append(f'v_rcp_f32 v{E[r]}, v{E[r]}')
        if pk >= 1:
            for r in range(0, 8, 2): out.append(f'v_pk_mul_f32 {vr(A+r,2)}, {vr(A+r,2)}, {vr(E[r],2)}')
        else:
            for r in range(8): out.append(f'v_mul_f32 v{A+r}, v{A+r}, v{E[r]}')
        for i in range(4): out.append(f'v_cvt_pk_bf16_f32 v{HP+i}, v{A+2*i}, v{A+2*i+1}')
        sreg, off = (SE, 1024*j) if j < 4 else ((S_U1, 0) if j == 4 else (SL, 1024*(j-5)))
        out.append(('vm', f'buffer_store_dwordx4 {vr(HP,4)}, v{V_OFF}, {sr4(SRD_WS)}, s{sreg} offen offset:{off} sc1', f'hh{j}'))
        return out
    a.stamp('F_stats')
    a.vmwait('x0')
    a.stamp('F_x0')
    for x in norm(0): a(x)
    pend = []; late = []
    R['vfE'] = vs; R['vpE'] = vp
    for n, (j, k) in enumerate(seq):
        nn = n + AH
        if nn < len(seq) and seq[nn] == (5, 0):
            a.vmwait('late'); a('s_barrier')
        rd = rdW(nn) if nn < len(seq) else []
        if n % 2 == 0:
            left = min(len(seq), n + AH) - (n + 2)
            a(f's_waitcnt lgkmcnt({max(0, 2*left)})')
        A = ACC[acc_of[j]]
        a(f'{MFMA} {vr(A,16)}, {vr(W[n % NW],4)}, {vr(X[k],4)}, {vr(A,16) if k else 0}')
        for x in rd: a(x)
        if n < 84 and j == 0 and k in (4, 8, 12, 16, 20, 24): a.stamp(f'F_k{k}')
        if n >= 84 and k == 27: a.stamp(f'F_t{j}')
        if n < 84:
            if j == 0 and k + 1 < 28:
                a.vmwait(f'x{k+1}'); pend = norm(k + 1)
            if j == 1 and k + XLA < 28: ldx(k + XLA)
            take = (6 if j < 2 else 4) if opt('pkN', 1) else (7 if j < 2 else 6)
            for x in pend[:take]: a(x)
            pend = pend[take:]
            if n == 83:
                a.stamp('D_st1')
                a(f'v_mov_b32 v{mu}, {fx(-math.log2(math.e))}\nv_mov_b32 v{mu+1}, 1.0\ns_barrier')
                late = [pair_dma(S13, L13, 0, 0, i, 'late') for i in range(14)]
        else:
            if n == 84 + 2: pend = epi(0) + epi(1) + epi(4) + epi(2) + epi(3) + epi(5); done = 0; tot = len(pend); one = tot // 6
            if n >= 84 + 2:
                want = min(tot, (n - 85) * tot // 108 + 1)
                lim = {2: 3, 3: 3 + (k >= 2), 5: 4 + (k >= 2), 6: 5 + (k >= 2)}[j] * one
                while done < min(want, lim):
                    a.emit(pend.pop(0)); done += 1
                if k == 27:
                    need = {2: 1, 3: 2, 5: 3, 6: 6}[j] * one
                    while done < need:
                        a.emit(pend.pop(0)); done += 1
            if late and k % opt('latestep', 2) == 0:
                for x in late.pop(0): a.emit(x)
            if j == 5 and k == opt('f1k', 6):
                a.vmwait('hh1'); flag_store(a, SF, vp)
            if j == 6 and k == opt('f2k', 14) and not opt('d2late', 1):
                a(f's_add_u32 s{SF}, s{SF}, {FLS}')
                a.vmwait('hh2'); flag_store(a, SF, vl[2])
                a(f's_add_u32 s{SF}, s{SF}, {FLS}')
            if j == 6 and k == opt('p1k', 18):
                flag8_addr(a, vs, vp, vl[4], S_SPIN + 1, FL_D1)
                poll_issue(a, S_SPIN + 1, vs, 8, vp)
    a.stamp('D_loop')
    if opt('d2late', 1):
        a(f's_add_u32 s{SF}, s{SF}, {FLS}')
        a.vmwait('hh3'); flag_store(a, SF, vl[2])
        a(f's_add_u32 s{SF}, s{SF}, {FLS}')
    for x in epi(6): a.emit(x)
    a.stamp('D_epi')
    R['SF'] = SF

def phase_e(a, R, stg):
    va = VA(4, 199)
    ACC = [va(16) for _ in range(4)]
    NB = 16
    BUF = [[va(4) for l in range(2)] for d in range(NB)]
    vf = R['vfE']; vp = R['vpE']
    t = [204, 205, 206, 207]; vt = 208
    assert vf >= va.n and vp >= va.n and vf < 204 and vp < 204
    STT, SCT = T1, T3
    SP = S_SPIN + 1
    tile_ids(a, STT, SCT)
    a(f's_mul_i32 s{T4}, s{S_W}, {28*1024}')
    for l in range(2):
        a(f'''
        s_xor_b32 s{T0}, s{STT}, {l}
        s_mul_i32 s{T0}, s{T0}, {112*1024}
        s_add_u32 s{T0}, s{T0}, s{T4}
        s_add_u32 s{S_U0+l}, s{T0}, {WS_HH}
        ''')
    e0 = lambda f: 2 if f == 2 else 0
    l0 = lambda f: 0 if f == 2 else 5
    order = [7*f + e0(f) + j for j in (0, 1, 4, 2, 3) for f in range(4)] + [7*f + l0(f) + j for j in range(2) for f in range(4)]
    assert sorted(order) == list(range(28))
    poll_check(a, SP, vf, 8, vp)
    a.stamp('E_poll1')
    N2 = 20 if opt('d2late', 1) else 16
    st = dict(nxt=0)
    FL3 = opt('efl', 7); PI2 = opt('epi2', 3); PI3 = opt('epi3', 19)
    def ld():
        n = st['nxt']; st['nxt'] += 1
        if n == FL3:
            a.vmwait('hh6'); flag_store(a, R['SF'], vt)
        if n in (8, N2):
            a.stamp('E_pre2' if n == 8 else 'E_pre3'); poll_check(a, SP, vf, 8, vp); a.stamp('E_poll2' if n == 8 else 'E_poll3')
        if n in (PI2, PI3):
            a(f's_add_u32 s{SP}, s{SP}, {FLS}'); poll_issue(a, SP, vf, 8, vp)
        ks = order[n]
        for l in range(2):
            a(f's_add_u32 s{T0}, s{S_U0+l}, {(ks >> 2) * 4096}')
            a.vmem(f'buffer_load_dwordx4 {vr(BUF[n % NB][l],4)}, v{V_OFF}, {sr4(SRD_WS)}, s{T0} offen offset:{1024*(ks&3)} sc1', f'h{n}')
    LA = opt('ela', 9)
    for n in range(LA): ld()
    for j in range(8):
        a(f'v_lshlrev_b32 v{ACC[0]+2*j}, 16, v{HKEEP+j}\nv_and_b32 v{ACC[0]+2*j+1}, 0xffff0000, v{HKEEP+j}')
    red_addr(a, t)
    def mm(n, l):
        ks = order[n]
        p, b = stg.dest(4 + (ks >> 1), ks & 1, l >> 1)
        a(f'{MFMA} {vr(ACC[l],16)}, {vr(b,4,p)}, {vr(BUF[n % NB][l & 1],4)}, {vr(ACC[l],16) if (n or l == 0) else 0}')
    KT = 28 - opt('etail', 4)
    for n in range(KT):
        a.vmwait(f'h{n}')
        for l in range(4): mm(n, l)
        for _ in range(2 if st['nxt'] < N2 else 12):
            if st['nxt'] == N2 and n < opt('ec3', 8): break
            if st['nxt'] < 28 and st['nxt'] - NB <= n: ld()
    assert st['nxt'] == 28
    for l in (1, 2, 3, 0):
        for n in range(KT, 28):
            if l == 1: a.vmwait(f'h{n}')
            mm(n, l)
        if l in (2, 3): red_write(a, ACC, t, l - 1)
    a.stamp('E_mfma')
    red_write(a, ACC, t, 3)
    srd(a, SRD_A, P_OUT, X_BYTES)
    a(f'''
    v_and_b32 v{vf}, 31, v{V_LANE}
    v_lshrrev_b32 v{vp}, 5, v{V_LANE}
    v_mul_u32_u24 v{vf}, 896, v{vf}
    v_lshl_add_u32 v{vf}, v{vp}, 4, v{vf}
    s_mul_i32 s{T0}, s{STT}, {32*896}
    s_lshl_b32 s{T2}, s{SCT}, 6
    s_add_u32 s{T0}, s{T0}, s{T2}
    ''')
    red_read(a, ACC, t)
    if opt('bias', 0):
        for r in range(16): a(f"v_add_f32 v{ACC[0]+r}, {fx(opt('bias', 0) * 1e-3)}, v{ACC[0]+r}")
    PKR = ACC[1]
    for j in range(8): a(f'v_cvt_pk_bf16_f32 v{PKR+j}, v{ACC[0]+2*j}, v{ACC[0]+2*j+1}')
    for g in (0, 4):
        a(f'v_permlane32_swap_b32 v{PKR+g}, v{PKR+g+2}\nv_permlane32_swap_b32 v{PKR+g+1}, v{PKR+g+3}')
    fl_ = ['', ' sc1', ' nt', ' sc0 sc1'][opt('outst', 0)]
    a(f'buffer_store_dwordx4 {vr(PKR,4)}, v{vf}, {sr4(SRD_A)}, s{T0} offen{fl_}')
    a(f'buffer_store_dwordx4 {vr(PKR+4,4)}, v{vf}, {sr4(SRD_A)}, s{T0} offen offset:32{fl_}')
    a.stamp('E_st')

def gen():
    a = K()
    a.stamp('rt0', True); a.stamp('t0')
    HB = opt('hb', 3)
    if int(os.environ.get('TFIX', '0')): a('s_memrealtime s[60:61]')
    a(f'''
    s_cmp_ge_u32 s2, 256
    s_cbranch_scc1 Lend
    s_load_dwordx16 s[32:47], s[0:1], 0
    s_load_dwordx2 s[50:51], s[0:1], 72
    v_lshrrev_b32 v2, 6, v0
    v_and_b32 v{V_LANE}, 63, v0
    v_readfirstlane_b32 s{S_W}, v2
    v_lshlrev_b32 v{V_OFF}, 4, v{V_LANE}
    v_lshlrev_b32 v{V_FL}, 7, v{V_LANE}
    s_and_b32 s{T0}, s2, 7
    s_lshr_b32 s{S_J}, s2, 3
    s_and_b32 s{S_H}, s{T0}, {(16 >> HB) - 1}
    s_lshl_b32 s{S_H}, s{S_H}, {HB}
    s_and_b32 s{T1}, s{S_J}, {(1 << HB) - 1}
    s_add_u32 s{S_H}, s{S_H}, s{T1}
    s_lshr_b32 s{S_TB}, s{T0}, {4 - HB}
    s_lshl_b32 s{S_TB}, s{S_TB}, {5 - HB}
    s_lshr_b32 s{T1}, s{S_J}, {HB}
    s_add_u32 s{S_TB}, s{S_TB}, s{T1}
    s_mul_i32 s{T1}, s{S_J}, 9363
    s_lshr_b32 s{T1}, s{T1}, 16
    s_mul_i32 s{T2}, s{T1}, 7
    s_sub_u32 s{S_CB}, s{S_J}, s{T2}
    s_lshl_b32 s{S_RB}, s{T0}, 2
    s_add_u32 s{S_RB}, s{S_RB}, s{T1}
    s_and_b32 s{S_TD}, s{T0}, 1
    s_lshl_b32 s{S_TD}, s{S_TD}, 3
    s_and_b32 s{T1}, s{S_J}, 7
    s_add_u32 s{S_TD}, s{S_TD}, s{T1}
    s_lshr_b32 s{S_FS}, s{T0}, 1
    s_lshl_b32 s{S_FS}, s{S_FS}, 2
    s_lshr_b32 s{T1}, s{S_J}, 3
    s_add_u32 s{S_FS}, s{S_FS}, s{T1}
    ''')
    R = alloc_b()
    phase_a(a, R)
    a(f'''
    s_and_b32 s{T0}, s{S_FS}, 3
    s_cmp_eq_u32 s{T0}, 2
    s_cselect_b32 s{S_E0}, 2, 0
    s_cselect_b32 s{S_L0}, 0, 5
    s_and_b32 s{T0}, s{S_J}, 7
    s_lshr_b32 s{T1}, s{S_J}, 3
    s_mul_i32 s{T1}, s{T1}, {opt('r14b', 4)}
    s_mul_i32 s{T0}, s{T0}, {opt('r14a', 2)}
    s_add_u32 s{T0}, s{T0}, s{T1}
    s_sub_u32 s{T1}, s{T0}, 14
    s_min_u32 s{S_R14}, s{T0}, s{T1}
    s_sub_u32 s{T1}, s{S_R14}, 14
    s_min_u32 s{S_R14}, s{S_R14}, s{T1}
    ''')
    stg = Stager(a)
    phase_b(a, R, stg)
    a(f's_cmp_ge_u32 s{S_J}, 28\ns_cbranch_scc1 LnoC')
    phase_c(a, R, stg)
    a('s_branch LD')
    vm_c = list(a.vm)
    a.label('LnoC')
    a.vmall()
    flag_store(a, T5, 4)
    a('s_barrier')
    put5(a, 5)
    a.label('LD')
    a.vm = vm_c
    phase_d(a, R, stg)
    a(f's_cmp_ge_u32 s{S_J}, 28\ns_cbranch_scc0 LE')
    vm_d = list(a.vm)
    a('s_waitcnt vmcnt(0)')
    flag_store(a, R['SF'], 4)
    a('s_branch Lfin')
    a.label('LE')
    a.vm = vm_d
    phase_e(a, R, stg)
    a.label('Lfin')
    if int(os.environ.get('TFIX', '0')):
        a.label('Lfix')
        a(f's_memrealtime s[62:63]\ns_waitcnt lgkmcnt(0)\ns_sub_u32 s62, s62, s60\ns_cmp_lt_u32 s62, {int(os.environ["TFIX"])}\ns_cbranch_scc1 Lfix')
    if STAMP:
        a('s_waitcnt vmcnt(0)')
        a.stamp('end'); a.stamp('rt1', True)
        a(f's_waitcnt lgkmcnt(0)\ns_lshl_b32 s{T0}, s2, 2\ns_add_u32 s{T0}, s{T0}, s{S_W}\ns_lshl_b32 s{T0}, s{T0}, 7\ns_add_u32 s{T0}, s{T0}, {WS_DBG}\nv_mov_b32 v4, 0')
        for i in range(a.nst):
            a(f'v_mov_b32 v5, s{60+2*i}\nbuffer_store_dword v5, v4, {sr4(SRD_WS)}, s{T0} offen offset:{4*i}')
    if STAMP and int(os.environ.get('DBGOUT', '0')):
        n = a.nst
        a(f'''
        s_load_dwordx2 s[{SRD_A}:{SRD_A+1}], s[0:1], 64
        s_mov_b32 s{SRD_A+2}, 256
        s_mov_b32 s{SRD_A+3}, 0x20000
        s_not_b32 s{T1}, s60
        v_mov_b32 v6, s{T1}
        v_mov_b32 v7, s{60+2*(n-1)}
        v_mov_b32 v8, s60
        s_mov_b64 exec, 1
        s_waitcnt lgkmcnt(0)
        buffer_atomic_umax v6, v4, {sr4(SRD_A)}, 0 offen
        buffer_atomic_umax v7, v4, {sr4(SRD_A)}, 0 offen offset:4
        buffer_atomic_umax v8, v4, {sr4(SRD_A)}, 0 offen offset:8
        s_or_b32 s{T0}, s2, s{S_W}
        s_cmp_lg_u32 s{T0}, {int(os.environ.get('DBGWG', '0'))}
        s_cbranch_scc1 Lend
        ''')
        for i in range(2, min(n - 1, 15)):
            a(f's_sub_u32 s{T0}, s{60+2*i}, s62\nv_mov_b32 v5, s{T0}\nbuffer_store_dword v5, v4, {sr4(SRD_A)}, 0 offen offset:{4*(i+1)}')
    a.label('Lend')
    a('s_endpgm')
    fallback(a, R)
    a.finalize()
    head = open('sequential_preLN__mha_block__glu_gated_swiglu__prompt.s.ref').read().split('; Override')[0]
    s = head + f'; @launch grid=(256,1,1) block=(256,1,1) lds={LDS_BYTES}\n'
    s += f'.amdgcn_target "amdgcn-amd-amdhsa--gfx950"\n.text\n.globl {NAME}\n.p2align 8\n.type {NAME},@function\n{NAME}:\n' + a.text()
    s += f'''.section .rodata,"a"
.p2align 6
.amdhsa_kernel {NAME}
  .amdhsa_next_free_vgpr 512
  .amdhsa_next_free_sgpr 102
  .amdhsa_accum_offset 256
  .amdhsa_group_segment_fixed_size 0
  .amdhsa_kernarg_size 80
  .amdhsa_user_sgpr_count 2
  .amdhsa_user_sgpr_kernarg_segment_ptr 1
  .amdhsa_system_sgpr_workgroup_id_x 1
.end_amdhsa_kernel
'''
    if STAMP: s = '; STAMPS ' + ' '.join(a.names) + '\n' + s
    print(f'instrs={len(a.ins)} nop_states={a.nops} stamps={a.nst}', file=sys.stderr)
    return s

if __name__ == '__main__':
    open(sys.argv[1], 'w').write(gen())
```

```python
import sys, struct, math, os
from asmgen import Asm

NAME = 'sequential_preLN__mha_block__glu_gated_swiglu__prompt_kernel'
MB = 1 << 20
WS_KV  = 0
WS_O   = 4 * MB
WS_H   = 6 * MB
WS_ST  = 8 * MB
WS_HH  = 9 * MB
WS_FLG = 16 * MB
FL_A = WS_FLG + 0x10000
FL_B = FL_A + 1024 * 128
FL_C = FL_B + 1024 * 128
FL_D1 = FL_C + 1024 * 128
FL_D2 = FL_D1 + 1024 * 128
FL_D3 = FL_D2 + 1024 * 128
FLS = 1024 * 128
WS_DBG = 17 * MB
WS_SIZE = 18 * MB

X_BYTES = 2048 * 448 * 2
WQKV_BYTES = 448 * 1344 * 2
WO_BYTES = 448 * 448 * 2
W1_BYTES = 448 * 1792 * 2
W2_BYTES = 1792 * 448 * 2
LDS_BYTES = 163840
MFMA = 'v_mfma_f32_32x32x16_bf16'
STAMP = int(os.environ.get('STAMP', '0'))
OPT = dict(kv.split('=') for kv in os.environ.get('OPT', '').split(',') if kv)
def opt(k, d): return int(OPT.get(k, d))

def f2u(x): return struct.unpack('<I', struct.pack('<f', x))[0]
def fx(x): return hex(f2u(x))
def vr(b, n=1, p='v'): return f'{p}[{b}:{b+n-1}]' if n > 1 else f'{p}{b}'
def sr4(b): return f's[{b}:{b+3}]'

class VA:
    def __init__(self, start, limit): self.n = start; self.limit = limit
    def __call__(self, cnt=1, align=None):
        if align is None: align = 1 if cnt == 1 else (2 if cnt == 2 else 4)
        self.n = (self.n + align - 1) // align * align
        b = self.n; self.n += cnt
        assert self.n <= self.limit, f'out of registers {self.n} > {self.limit}'
        return b

class K(Asm):
    def __init__(self):
        super().__init__(); self.vm = []; self.nst = 0; self.nlab = 0; self.names = []
    def vmem(self, text, tag):
        self(text); self.vm.append(tag)
    def vmwait(self, *tags, lgkm=None):
        idx = [i for i, t in enumerate(self.vm) if t in tags]
        s = ''
        if idx:
            n = len(self.vm) - 1 - max(idx)
            s += f' vmcnt({min(n, 63)})'
            self.vm = self.vm[len(self.vm) - n:] if n else []
        if lgkm is not None: s += f' lgkmcnt({lgkm})'
        if s: self('s_waitcnt' + s)
    def vmall(self):
        self('s_waitcnt vmcnt(0)'); self.vm = []
    def emit(self, x):
        if isinstance(x, tuple):
            if x[0] == 'vm': self.vmem(x[1], x[2])
            elif x[0] == 'wait': self.vmwait(*x[1:])
            elif x[0] == 'call': x[1]()
        else: self(x)
    def stamp(self, name='', real=False):
        if not STAMP: return
        if name and name[0] in 'ABCDEFGHI' and name[0] not in os.environ.get('STAMPSET', 'AB'): return
        if name in self.names:
            i = self.names.index(name)
        else:
            i = self.nst; self.nst += 1; self.names.append(name)
        assert i < 19
        self(f's_mem{"real" if real else ""}time s[{60+2*i}:{61+2*i}]')
    def newlabel(self, p):
        self.nlab += 1; return f'L{p}{self.nlab}'

S_W = 3
SRD_X = 4; SRD_WQKV = 8; SRD_WS = 12; SRD_A = 16; SRD_B = 20
P_X, P_WQKV, P_WO, P_W1, P_W3, P_W2, P_OUT, P_WS = 32, 34, 36, 40, 42, 44, 46, 50
S_TAG = 24; S_H = 25; S_TB = 26; S_RB = 27; S_CB = 28; S_TD = 29; S_FS = 30; S_J = 31
S_E0 = 38; S_L0 = 39
S_U0 = 48; S_U1 = 49
S_ONES = 52
T0, T1, T2, T3, T4, T5, T6 = 53, 54, 55, 56, 57, 58, 59
S_SPIN = 98
S_ROT = 39
S_DUM = 100
S_R14 = 0; S_RG = 1
V_LANE = 1; V_OFF = 2; V_FL = 3
V_SRC = 212; V_P13 = 213; V_RD = 214
HKEEP = 216
XRES = 204
WOV = 224
PAIR = 57344; SCR = 2 * PAIR; SINGLE = SCR + 16384
RAW5 = 196

def xm(n):
    if n >= 64: return 's_mov_b64 exec, -1'
    if n < 31: return f's_mov_b64 exec, {hex((1 << n) - 1)}'
    lo = '-1' if n >= 32 else hex((1 << n) - 1)
    return f's_mov_b32 exec_lo, {lo}\ns_mov_b32 exec_hi, {hex((1 << max(0, n - 32)) - 1)}'

def srd(a, d, p, nbytes):
    a(f's_mov_b32 s{d}, s{p}\ns_mov_b32 s{d+1}, s{p+1}\ns_mov_b32 s{d+2}, {nbytes}\ns_mov_b32 s{d+3}, 0x20000')

def halfsum(a, x, t):
    a(f'v_mov_b32 v{t}, v{x}\nv_permlane32_swap_b32 v{x}, v{t}\nv_add_f32 v{x}, v{x}, v{t}')

def flag_store(a, sreg, vt):
    a(f'v_mov_b32 v{vt}, s{S_TAG}\ns_mov_b64 exec, 1')
    a.vmem(f'buffer_store_dword v{vt}, v{V_OFF}, {sr4(SRD_WS)}, s{sreg} offen sc1', 'flag')
    a('s_mov_b64 exec, -1')

def poll_issue(a, sreg, vaddr, nl, vt):
    a(xm(nl))
    a.vmem(f'buffer_load_dword v{vt}, v{vaddr}, {sr4(SRD_WS)}, s{sreg} offen sc1', 'poll')
    a('s_mov_b64 exec, -1')

def poll_check(a, sreg, vaddr, nl, vt):
    L = a.newlabel('poll'); D = L + 'd'
    a(xm(nl) + f'\ns_mov_b32 s{S_SPIN}, 0x40000')
    a.vmwait('poll')
    a(f'v_cmp_ne_u32 vcc, s{S_TAG}, v{vt}\ns_cbranch_vccz {D}')
    a.label(L)
    a(f'''
    s_sleep {opt('sleep', 2)}
    buffer_load_dword v{vt}, v{vaddr}, {sr4(SRD_WS)}, s{sreg} offen sc1
    s_sub_u32 s{S_SPIN}, s{S_SPIN}, 1
    s_waitcnt vmcnt(0)
    s_cbranch_scc1 {D}
    v_cmp_ne_u32 vcc, s{S_TAG}, v{vt}
    s_cbranch_vccnz {L}
    ''')
    a.label(D)
    a('s_mov_b64 exec, -1')

def ssrd(a, D, lim, pa, pb, na, nb, per, u0, u1):
    a(f'''
    s_lshl_b32 s{u0}, s2, 2
    s_add_u32 s{u0}, s{u0}, s{S_W}
    s_mov_b32 s{D+2}, {na}
    s_cmp_ge_u32 s{u0}, {lim}
    s_cselect_b32 s{D}, s{pb}, s{pa}
    s_cselect_b32 s{D+1}, s{pb+1}, s{pa+1}
    s_cselect_b32 s{D+2}, {nb}, s{D+2}
    s_cselect_b32 s{u1}, {lim}, 0
    s_sub_u32 s{u0}, s{u0}, s{u1}
    s_mul_i32 s{u0}, s{u0}, {per}
    s_min_u32 s{u0}, s{u0}, s{D+2}
    s_sub_u32 s{D+2}, s{D+2}, s{u0}
    s_add_u32 s{D}, s{D}, s{u0}
    s_addc_u32 s{D+1}, s{D+1}, 0
    s_mov_b32 s{D+3}, 0x20000
    ''')

def sld(D, o): return f's_buffer_load_dwordx2 s[{S_DUM}:{S_DUM+1}], {sr4(D)}, {o + 60}'

def phase_a(a, R):
    NSLOT = 5
    WR = 81920
    WQ = WR + NSLOT * 8192
    CSP = WQ + 28672
    PRV = CSP + 1536
    QX = 155648
    assert PRV + 2048 <= QX
    R['QX'] = QX
    Q0 = R['Q'][0]
    va = VA(4, 256)
    ACC = [va(16), va(16)]; accQ = va(16)
    PK = va(8); assert PK == Q0, (PK, Q0)
    X = [va(4) for _ in range(28)]
    NWF = 4
    WF = [[va(4) for j in range(2)] for b in range(NWF)]
    vx = [va(), va()]; vw = [va(), va()]
    ax = [va() for _ in range(4)]; aw = [va() for _ in range(4)]; ab = [va() for _ in range(4)]
    pr = [va(2) for _ in range(6)]
    cs = [pr[0], pr[1], pr[2]]; mu = pr[3]; rs = pr[4]; rq = pr[5]
    sm = [pr[0] + 1, pr[1] + 1]; sq = [pr[2] + 1, pr[3] + 1]
    hf = pr[4] + 1; n31 = pr[5] + 1
    vq = va()
    t = [va() for _ in range(7)] + [0]
    dB = t[7]
    assert va.n <= 240, va.n
    T16 = 240; U16 = accQ
    a(f'v_lshrrev_b32 v{hf}, 5, v{V_LANE}\nv_and_b32 v{n31}, 31, v{V_LANE}')
    for i in range(2):
        a(f'''
        v_lshrrev_b32 v{t[0]}, 3, v{V_LANE}
        v_add_u32 v{t[0]}, {8*i}, v{t[0]}
        v_lshrrev_b32 v{t[1]}, 1, v{t[0]}
        v_and_b32 v{t[1]}, 7, v{t[1]}
        v_and_b32 v{t[2]}, 7, v{V_LANE}
        v_xor_b32 v{t[1]}, v{t[1]}, v{t[2]}
        v_lshlrev_b32 v{t[1]}, 4, v{t[1]}
        v_mul_u32_u24 v{t[0]}, 896, v{t[0]}
        v_add_u32 v{vx[i]}, v{t[0]}, v{t[1]}
        ''')
    a(f'''
    v_subrev_u32 v{vx[1]}, 1024, v{vx[1]}
    v_lshrrev_b32 v{t[0]}, 3, v{V_LANE}
    v_lshrrev_b32 v{t[1]}, 2, v{V_LANE}
    v_and_b32 v{t[1]}, 4, v{t[1]}
    v_xor_b32 v{t[1]}, v{t[1]}, v{t[2]}
    v_min_u32 v{t[1]}, 6, v{t[1]}
    v_mul_u32_u24 v{t[0]}, 2688, v{t[0]}
    v_lshl_add_u32 v{vw[0]}, v{t[1]}, 4, v{t[0]}
    v_add_u32 v{vw[1]}, {8*2688 - 1024}, v{vw[0]}
    s_waitcnt lgkmcnt(0)
    ''')
    srd(a, SRD_X, P_X, X_BYTES); srd(a, SRD_WQKV, P_WQKV, WQKV_BYTES)
    SX, SW, LX, LW = T3, T4, T5, T6
    a(f'''
    s_lshl_b32 s{SX}, s{S_TB}, 2
    s_add_u32 s{SX}, s{SX}, s{S_W}
    s_mul_i32 s{SX}, s{SX}, {32*896}
    s_mul_i32 s{SW}, s{S_W}, {16*2688}
    s_lshr_b32 s{T0}, s{S_H}, 1
    s_mul_i32 s{T0}, s{T0}, 112
    s_add_u32 s{SW}, s{SW}, s{T0}
    s_and_b32 s{T0}, s{S_H}, 1
    s_mul_i32 s{T0}, s{T0}, 896
    s_add_u32 s{SW}, s{SW}, s{T0}
    s_add_u32 s{SW}, s{SW}, 896
    s_mul_i32 s{LX}, s{S_W}, 20480
    s_lshl_b32 s{LW}, s{S_W}, 11
    s_add_u32 s{LW}, s{LW}, {WR}
    ''')
    def dma_items(c):
        sl = c % NSLOT
        out = []
        for i in range(2):
            out.append(([f's_add_u32 m0, s{LW}, {sl*8192}', f's_mul_i32 s{T0}, s{S_ROT}, {64*2688}', f's_add_u32 s{T0}, s{T0}, s{SW}'] if i == 0 else []) +
                       [('vm', f'buffer_load_dwordx4 v{vw[i]}, {sr4(SRD_WQKV)}, s{T0} offen offset:{1024*i} lds', f'c{c}')])
        for i in range(4):
            out.append(([f's_add_u32 m0, s{LX}, {sl*4096}'] if i == 0 else []) +
                       ([f's_lshl_b32 s{T0}, s{S_ROT}, 7', f's_add_u32 s{T0}, s{T0}, s{SX}'] if i == 0 else []) +
                       ([f's_add_u32 s{T0}, s{T0}, 12288'] if i == 2 else []) +
                       [('vm', f'buffer_load_dwordx4 v{vx[i&1]}, {sr4(SRD_X)}, s{T0} offen offset:{1024*i} lds', f'c{c}')] +
                       ([f's_add_u32 s{S_ROT}, s{S_ROT}, 1', f's_cmp_eq_u32 s{S_ROT}, 7', f's_cselect_b32 s{S_ROT}, 0, s{S_ROT}'] if i == 3 else []))
        return out
    def dma(c):
        for it in dma_items(c):
            for x in it: a.emit(x)
    a.stamp('G_karg')
    NPRE = opt('npre', 2)
    a(f'''
    s_lshr_b32 s{S_ROT}, s{S_J}, 3
    s_mul_i32 s{S_ROT}, s{S_ROT}, {opt('rotm', 2)}
    s_and_b32 s{T0}, s{S_J}, 7
    s_add_u32 s{S_ROT}, s{S_ROT}, s{T0}
    s_mul_i32 s{T0}, s{S_ROT}, 37
    s_lshr_b32 s{T0}, s{T0}, 8
    s_mul_i32 s{T0}, s{T0}, 7
    s_sub_u32 s{S_ROT}, s{S_ROT}, s{T0}
    s_lshl_b32 s{S_DUM}, s{S_ROT}, 2
    ''')
    for c in range(NPRE): dma(c)
    if opt('touchA', 0):
        HBv = opt('hb', 3); nl = {1: 2, 2: 3, 3: 4, 4: 7}[HBv]; ntok = 4096 >> HBv >> 0
        ntok = (32 >> HBv) * 128
        rows_x = ntok // 128
        a(f'''
        s_lshl_b32 s{T1}, s{S_J}, 2
        s_add_u32 s{T1}, s{T1}, s{S_W}
        s_lshr_b32 s{T2}, s{S_TB}, {5 - HBv}
        s_mul_i32 s{T2}, s{T2}, {ntok * 896}
        s_mul_i32 s{T0}, s{T1}, {rows_x * 896}
        s_add_u32 s{T0}, s{T0}, s{T2}
        ''')
        nx = rows_x * 7
        for i in range(0, nx, 64):
            a(xm(nx - i))
            a.vmem(f'buffer_load_dword a{1 + i // 64}, v{V_FL}, {sr4(SRD_X)}, s{T0} offen', 'touch')
            a(f's_add_u32 s{T0}, s{T0}, 8192')
        per = 4 * 3 * nl
        a(f'''
        s_mov_b64 exec, -1
        v_mul_u32_u24 v{t[3]}, {(65536 + nl - 1) // nl}, v{V_LANE}
        v_lshrrev_b32 v{t[3]}, 16, v{t[3]}
        v_mul_u32_u24 v{t[4]}, {nl}, v{t[3]}
        v_sub_u32 v{t[4]}, v{V_LANE}, v{t[4]}
        v_mul_u32_u24 v{t[3]}, 896, v{t[3]}
        v_lshl_add_u32 v{t[3]}, v{t[4]}, 7, v{t[3]}
        s_mul_i32 s{T0}, s{T1}, {4 * 2688}
        s_lshr_b32 s{T2}, s{S_H}, {HBv}
        s_mul_i32 s{T2}, s{T2}, {56 << HBv}
        s_and_b32 s{T2}, s{T2}, 0xffffff80
        s_add_u32 s{T0}, s{T0}, s{T2}
        {xm(per)}
        ''')
        a.vmem(f'buffer_load_dword a3, v{t[3]}, {sr4(SRD_WQKV)}, s{T0} offen', 'touch')
        a('s_mov_b64 exec, -1')
    a.stamp('G_dma0')
    assert T1 % 2 == 0 and T2 == T1 + 1
    a(f's_add_u32 s{T1}, s{P_WS}, {WS_FLG}\ns_addc_u32 s{T2}, s{P_WS+1}, 0\ns_load_dword s{S_TAG}, s[{T1}:{T2}], 0')
    srd(a, SRD_WS, P_WS, WS_SIZE)
    def touch_item():
        TA, TB, TC = T1, T2, T0
        return [f's_lshl_b32 s{TA}, s2, 2', f's_add_u32 s{TA}, s{TA}, s{S_W}', f's_mul_i32 s{TB}, s{TA}, 1338', f's_lshr_b32 s{TB}, s{TB}, 18',
                f's_mul_i32 s{TC}, s{TB}, 196', f's_sub_u32 s{TA}, s{TA}, s{TC}', f's_lshl_b32 s{TA}, s{TA}, 13',
                f's_cmp_eq_u32 s{TB}, 1', f's_cselect_b32 s{SRD_A}, s{P_W3}, s{P_W1}', f's_cselect_b32 s{SRD_A+1}, s{P_W3+1}, s{P_W1+1}',
                f's_cmp_eq_u32 s{TB}, 2', f's_cselect_b32 s{SRD_A}, s{P_W2}, s{SRD_A}', f's_cselect_b32 s{SRD_A+1}, s{P_W2+1}, s{SRD_A+1}',
                f's_mov_b32 s{SRD_A+2}, {W1_BYTES}',
                f's_cmp_eq_u32 s{TB}, 3', f's_cselect_b32 s{SRD_A}, s{P_WO}, s{SRD_A}', f's_cselect_b32 s{SRD_A+1}, s{P_WO+1}, s{SRD_A+1}',
                f's_cselect_b32 s{SRD_A+2}, {WO_BYTES}, s{SRD_A+2}',
                f's_cmp_gt_u32 s{TB}, 3', f's_cselect_b32 s{SRD_A+2}, 0, s{SRD_A+2}', f's_mov_b32 s{SRD_A+3}, 0x20000',
                ('vm', f'buffer_load_dword a0, v{V_FL}, {sr4(SRD_A)}, s{TA} offen', 'touch')]
    def prew():
        a(f'''
        v_mov_b32 v{t[7]}, s{S_TAG}
        v_add_u32 v{t[7]}, -1, v{t[7]}
        v_lshlrev_b32 v{t[5]}, 2, v{V_LANE}
        {xm(32)}
        s_lshr_b32 s{T1}, s{S_H}, 1
        s_lshl_b32 s{T1}, s{T1}, 2
        s_add_u32 s{T1}, s{T1}, s{S_W}
        s_lshl_b32 s{T1}, s{T1}, 1
        s_and_b32 s{T2}, s{S_H}, 1
        s_add_u32 s{T1}, s{T1}, s{T2}
        s_lshl_b32 s{T1}, s{T1}, 4
        s_add_u32 s{T1}, s{T1}, s{S_TB}
        s_lshl_b32 s{T1}, s{T1}, 7
        s_add_u32 s{T1}, s{T1}, {FL_A}
        ''')
        st_ = lambda: a.vmem(f'buffer_store_dword v{t[7]}, v{t[5]}, {sr4(SRD_WS)}, s{T1} offen sc1', 'prew')
        st_()
        a(f's_lshl_b32 s{T1}, s{S_TB}, 2\ns_add_u32 s{T1}, s{T1}, s{S_W}\ns_lshl_b32 s{T1}, s{T1}, 4\ns_add_u32 s{T1}, s{T1}, s{S_H}\ns_lshl_b32 s{T1}, s{T1}, 7\ns_add_u32 s{T1}, s{T1}, {FL_B}')
        st_()
        a(f's_lshl_b32 s{T1}, s{S_TD}, 2\ns_add_u32 s{T1}, s{T1}, s{S_W}\ns_lshl_b32 s{T1}, s{T1}, 4\ns_add_u32 s{T1}, s{T1}, s{S_FS}\ns_lshl_b32 s{T1}, s{T1}, 7\ns_add_u32 s{T1}, s{T1}, {FL_D1}')
        for i in range(3):
            st_(); a(f's_add_u32 s{T1}, s{T1}, {FLS}')
        a(f'''
        s_lshl_b32 s{T1}, s{S_RB}, 1
        s_and_b32 s{T2}, s{S_W}, 1
        s_add_u32 s{T1}, s{T1}, s{T2}
        s_lshl_b32 s{T1}, s{T1}, 3
        s_add_u32 s{T1}, s{T1}, s{S_CB}
        s_lshl_b32 s{T1}, s{T1}, 1
        s_lshr_b32 s{T2}, s{S_W}, 1
        s_add_u32 s{T1}, s{T1}, s{T2}
        s_lshl_b32 s{T1}, s{T1}, 7
        s_add_u32 s{T1}, s{T1}, {FL_C}
        s_cmp_ge_u32 s{S_J}, 28
        s_cselect_b32 s{T1}, 0x40000000, s{T1}
        ''')
        st_()
        a('s_mov_b64 exec, -1')
    def dmaq_items():
        out = []
        for i in range(7):
            out.append([] +
                       [f's_add_u32 m0, s{S_U0}, {i*1024}', f's_mul_i32 s{T0}, s{S_U1}, {16*2688}', f's_add_u32 s{T0}, s{T0}, s{S_E0}',
                        ('vm', f'buffer_load_dwordx4 v{vq}, {sr4(SRD_WQKV)}, s{T0} offen lds', 'wq'),
                        f's_add_u32 s{S_U1}, s{S_U1}, 1', f's_cmp_eq_u32 s{S_U1}, 28', f's_cselect_b32 s{S_U1}, 0, s{S_U1}'])
        return out
    a(f'''
    s_mul_i32 s{S_U0}, s{S_W}, {7*1024}
    s_add_u32 s{S_U0}, s{S_U0}, {WQ}
    s_mul_i32 s{S_U1}, s{S_W}, 7
    s_add_u32 s{S_U1}, s{S_U1}, s{S_DUM}
    s_cmp_ge_u32 s{S_U1}, 28
    s_cselect_b32 s{T0}, 28, 0
    s_sub_u32 s{S_U1}, s{S_U1}, s{T0}
    s_mul_i32 s{S_E0}, s{S_H}, 56
    ''')
    a(f'''
    v_lshrrev_b32 v{t[0]}, 2, v{V_LANE}
    v_mul_u32_u24 v{t[0]}, 2688, v{t[0]}
    v_and_b32 v{t[3]}, 3, v{V_LANE}
    v_lshl_add_u32 v{vq}, v{t[3]}, 4, v{t[0]}
    v_lshrrev_b32 v{t[0]}, 1, v{n31}
    v_and_b32 v{t[0]}, 7, v{t[0]}
    v_lshlrev_b32 v{t[1]}, 7, v{n31}
    v_add_u32 v{t[1]}, s{LX}, v{t[1]}
    v_bfe_u32 v{t[2]}, v{V_LANE}, 4, 1
    v_lshlrev_b32 v{t[2]}, 5, v{t[2]}
    v_lshl_add_u32 v{t[2]}, v{t[3]}, 3, v{t[2]}       ; cg*32 + c4*8
    v_bfe_u32 v{t[3]}, v{V_LANE}, 2, 2                ; r
    v_lshl_add_u32 v{t[5]}, v{hf}, 3, v{t[3]}         ; 8hf + r
    v_lshl_add_u32 v{t[6]}, v{t[5]}, 6, v{t[2]}
    v_bfe_u32 v{t[3]}, v{V_LANE}, 3, 1
    v_lshlrev_b32 v{t[3]}, 6, v{t[3]}                 ; 64*bit
    v_add_u32 v{t[4]}, 56, v{t[2]}
    v_xor_b32 v{t[4]}, v{t[4]}, v{t[3]}
    v_xor_b32 v{t[2]}, v{t[2]}, v{t[3]}
    v_sub_u32 v{dB}, v{t[4]}, v{t[2]}
    v_lshl_add_u32 v{t[2]}, v{t[5]}, 7, v{t[2]}
    v_add_u32 v{t[2]}, {WR}, v{t[2]}
    ''')
    AQ = t[6]
    for n in range(4):
        a(f'''
        s_add_u32 s{T0}, s{S_W}, {n}
        s_and_b32 s{T0}, s{T0}, 3
        s_lshl_b32 s{T1}, s{T0}, 1
        v_add_u32 v{t[4]}, s{T1}, v{hf}
        v_xor_b32 v{t[4]}, v{t[4]}, v{t[0]}
        v_lshl_add_u32 v{ax[n]}, v{t[4]}, 4, v{t[1]}
        s_lshl_b32 s{T1}, s{T0}, 11
        v_add_u32 v{aw[n]}, s{T1}, v{t[2]}
        v_add_u32 v{ab[n]}, v{dB}, v{aw[n]}
        ''')
    for r in sm + sq + cs: a(f'v_mov_b32 v{r}, 0')
    a(f's_mov_b32 s{S_ONES}, 0x3f803f80')
    PA = t[0]; CA = t[1]; CR = t[2]; PB = vx[0]
    def reads(s_):
        c, n = divmod(s_, 4); sl = c % NSLOT; b = s_ % NWF
        return [f'ds_read_b128 {vr(X[s_],4)}, v{ax[n]} offset:{sl*4096}'] + \
               [f'ds_read_b64_tr_b16 {vr(WF[b][0]+2*u,2)}, v{aw[n]} offset:{sl*8192 + u*512}' for u in range(2)] + \
               [f'ds_read_b64_tr_b16 {vr(WF[b][1]+2*u,2)}, v{ab[n]} offset:{sl*8192 + u*512}' for u in range(2)]
    if opt('spre', 1):
        ssrd(a, SRD_A, 512, P_W1, P_W3, W1_BYTES, W1_BYTES, 3200, T1, T2)
        for i in range(opt('spreA', 0)): a(sld(SRD_A, 128*i))
    a.stamp('A_issued')
    a.vmwait('c0', lgkm=0); a('s_barrier'); a.stamp('A_c0')
    a(f's_add_u32 s{S_TAG}, s{S_TAG}, 1')
    for x in reads(0) + reads(1): a(x)
    a(f's_bitcmp1_b32 s{S_H}, 0\ns_cbranch_scc1 LAV')
    vm0 = list(a.vm)
    for typ in range(2):
        if typ == 1:
            a.label('LAV'); a.vm = list(vm0)
        step = 0
        q_dma = []
        for c in range(NPRE, 7): q_dma += [(max(0, c - NSLOT + 1), it) for it in dma_items(c)]
        wq0 = opt('wq0', 11); wqs = opt('wqs', 2)
        NQE = opt('nqe', 7)
        q_dma += [(0, [('at', wq0 + wqs*i)] + it) for i, it in enumerate(dmaq_items()) if i < NQE]
        pass
        if opt('prew', 1): q_dma.insert(len(q_dma) - NQE, (0, [('at', opt('prewat', 12)), ('call', prew)]))
        PER = opt('dmaper', 1); cur = [0]
        def side(c):
            for _ in range(PER):
                if q_dma and q_dma[0][0] <= c:
                    x0 = q_dma[0][1][0]
                    if isinstance(x0, tuple) and x0[0] == 'at' and x0[1] > cur[0]: return
                    for x in q_dma.pop(0)[1]: a.emit(x)
        def dots(c):
            for n in range(4):
                x = X[4*c+n]
                for i in range(4):
                    a(f'v_dot2c_f32_bf16 v{sm[i&1]}, s{S_ONES}, v{x+i}')
                    a(f'v_dot2c_f32_bf16 v{sq[i&1]}, v{x+i}, v{x+i}')
                side(c + 1)
        def mf(step_, j):
            x = X[step_]; b = step_ % NWF
            A_, B_ = (WF[b][j], x) if typ == 0 else (x, WF[b][j])
            return f'{MFMA} {vr(ACC[j],16)}, {vr(A_,4)}, {vr(B_,4)}, {vr(ACC[j],16) if step_ else 0}'
        def csdots(step_):
            for i in range(4):
                for j in range(2): a(f'v_dot2c_f32_bf16 v{cs[1+j]}, s{S_ONES}, v{WF[step_ % NWF][j]+i}')
        for c in range(6):
            for n in range(4):
                if n == 2:
                    while q_dma and any(isinstance(x, tuple) and x[0] == 'vm' and x[2] == f'c{c+1}' for _, it in q_dma for x in it):
                        assert q_dma[0][0] <= c
                        for x in q_dma.pop(0)[1]: a.emit(x)
                    a.stamp(f'G_pre{c+1}')
                    a.vmwait(f'c{c+1}', lgkm=0); a('s_barrier')
                    a.stamp(f'G_c{c+1}')
                else:
                    a('s_waitcnt lgkmcnt(5)')
                rd = reads(step + 2)
                if n == 0: csdots(step)
                for j in range(2):
                    a(mf(step, j))
                    for y in (rd[:3] if j == 0 else rd[3:]): a(y)
                    side(c + (1 if n >= 2 else 0))
                step += 1; cur[0] = step
            if c == 5:
                for y in reads(26) + reads(27): a(y)
            dots(c)
        a('s_waitcnt lgkmcnt(0)')
        cur[0] = 24
        csdots(24); dots(6)
        while q_dma:
            for x in q_dma.pop(0)[1]: a.emit(x)
        hs = lambda x, tt: [f'v_mov_b32 v{tt}, v{x}', f'v_permlane32_swap_b32 v{x}, v{tt}', f'v_add_f32 v{x}, v{x}, v{tt}']
        ex = hs(cs[1], t[3]) + hs(cs[2], t[4]) + [
            f's_mul_i32 s{T0}, s{S_W}, 384', f's_add_u32 s{T0}, s{T0}, {CSP}', f'v_lshlrev_b32 v{t[7]}, 2, v{n31}', f'v_add_u32 v{CA}, s{T0}, v{t[7]}',
            f'ds_write_b32 v{CA}, v{cs[1]} offset:128', f'ds_write_b32 v{CA}, v{cs[2]} offset:256',
            f'v_add_f32 v{sm[0]}, v{sm[0]}, v{sm[1]}', f'v_add_f32 v{sq[0]}, v{sq[0]}, v{sq[1]}'] + hs(sm[0], t[3]) + hs(sq[0], t[4]) + [
            f'v_mul_u32_u24 v{CR}, 768, v{hf}', f'v_add_u32 v{CR}, v{CR}, v{t[7]}', f'v_add_u32 v{CR}, {CSP}, v{CR}',
            's_waitcnt lgkmcnt(0)', 's_barrier']
        for j in (1, 2): ex += [f'ds_read_b32 v{cs[j]}, v{CR} offset:{j*128}', f'ds_read_b32 v{t[3+j]}, v{CR} offset:{384 + j*128}']
        ex += [f'v_mul_f32 v{mu}, {fx(1.0/448)}, v{sm[0]}', f'v_mul_f32 v{t[3]}, {fx(1.0/448)}, v{sq[0]}',
               f'v_fma_f32 v{t[3]}, -v{mu}, v{mu}, v{t[3]}', f'v_max_f32 v{t[3]}, 0, v{t[3]}', f'v_add_f32 v{t[3]}, {fx(1e-5)}, v{t[3]}',
               f'v_rsq_f32 v{rs}, v{t[3]}', f's_lshl_b32 s{T0}, s{S_W}, 9', f's_add_u32 s{T0}, s{T0}, {PRV}',
               f'v_add_u32 v{PA}, s{T0}, v{t[7]}', f'v_lshlrev_b32 v{PB}, 4, v{hf}', f'v_add_u32 v{PB}, s{T0}, v{PB}']
        if typ == 1:
            ex += [f'ds_write_b32 v{PA}, v{mu} offset:256', f'ds_write_b32 v{PA}, v{rs} offset:384']
            for q in range(4): ex += [f'ds_read_b128 {vr(T16+4*q,4)}, v{PB} offset:{256 + 32*q}', f'ds_read_b128 {vr(U16+4*q,4)}, v{PB} offset:{384 + 32*q}']
            ex += ['s_waitcnt lgkmcnt(10)']
        else:
            ex += ['s_waitcnt lgkmcnt(0)']
        for j in (1, 2): ex += [f'v_add_f32 v{cs[j]}, v{cs[j]}, v{t[3+j]}']
        ex += hs(cs[1], t[3]) + hs(cs[2], t[4])
        if typ == 0:
            ex += [f'ds_write_b32 v{PA}, v{cs[1]}', f'ds_write_b32 v{PA}, v{cs[2]} offset:128']
            ex += [f'ds_read_b128 {vr(T16+4*q,4)}, v{PB} offset:{32*q}' for q in range(4)]
            ex += [f'ds_read_b128 {vr(U16+4*q,4)}, v{PB} offset:{128 + 32*q}' for q in range(4)]
            ex += [f'v_cmp_lt_u32 vcc, 31, v{V_LANE}']
        else:
            ex += [f'v_cmp_eq_u32 vcc, 28, v{n31}', f'v_mov_b32 v{t[7]}, s{S_ONES}', f'v_cndmask_b32 v{t[7]}, 0, v{t[7]}, vcc', f'v_cmp_lt_u32 vcc, 27, v{n31}']
        ex += [f'v_mul_f32 v{rq}, {fx(28**-0.5 * math.log2(math.e))}, v{rs}',
               f's_lshl_b32 s{T0}, s{S_TB}, 2', f's_add_u32 s{T0}, s{T0}, s{S_W}', f's_and_b32 s{T1}, s{S_H}, 14', f's_lshl_b32 s{T1}, s{T1}, 6',
               f's_add_u32 s{T0}, s{T0}, s{T1}', f's_lshl_b32 s{T0}, s{T0}, 12', f's_add_u32 s{T1}, s{T0}, {64*4096}']
        order = [(st_, 0) for st_ in range(24, 28)] + [(st_, 1) for st_ in range(24, 28)]
        per = opt('exper', 6)
        for st_, j in order:
            a(mf(st_, j))
            for x in ex[:per]: a(x)
            ex = ex[per:]
        for x in ex: a(x)
        a.stamp('A_kvloop')
        NEG1 = 'op_sel_hi:[1,0,1] neg_lo:[0,1,0] neg_hi:[0,1,0]'
        for j in range(2):
            A_ = ACC[j]; P_ = WF[j][0]
            if typ == 0:
                a(f's_waitcnt lgkmcnt({4*(1-j)})')
                C_ = (T16, U16)[j]
                for r in range(0, 16, 2): a(f'v_pk_fma_f32 {vr(A_+r,2)}, {vr(C_+r,2)}, {vr(mu,2)}, {vr(A_+r,2)} {NEG1}')
                for r in range(0, 16, 2): a(f'v_pk_mul_f32 {vr(A_+r,2)}, {vr(A_+r,2)}, {vr(rs,2)} op_sel_hi:[1,0]')
                for i in range(8): a(f'v_cvt_pk_bf16_f32 v{P_+i}, v{A_+2*i}, v{A_+2*i+1}')
                if j == 0: a(f'v_mov_b32 v{t[3]}, s{S_ONES}\nv_mov_b32 v{t[4]}, 0x3f80')
                a(f'v_cndmask_b32 v{P_+6}, v{P_+6}, v{t[3]}, vcc\nv_cndmask_b32 v{P_+7}, v{P_+7}, v{t[4]}, vcc')
            else:
                if j == 0: a('s_waitcnt lgkmcnt(0)')
                for r in range(0, 16, 2): a(f'v_pk_fma_f32 {vr(A_+r,2)}, {vr(T16+r,2)}, {vr(cs[1+j],2)}, {vr(A_+r,2)} {NEG1}')
                for r in range(0, 16, 2): a(f'v_pk_mul_f32 {vr(A_+r,2)}, {vr(A_+r,2)}, {vr(U16+r,2)}')
                for i in range(8): a(f'v_cvt_pk_bf16_f32 v{P_+i}, v{A_+2*i}, v{A_+2*i+1}')
                for i in range(8): a(f'v_cndmask_b32 v{P_+i}, v{P_+i}, v{t[7]}, vcc')
            for u in range(2):
                a.vmem(f'buffer_store_dwordx4 {vr(P_+4*u,4)}, v{V_OFF}, {sr4(SRD_WS)}, s{(T0, T1)[j]} offen offset:{2048*typ + 1024*u} sc1', 'stA')
        if typ == 0: a('s_branch LAQ')
    a.label('LAQ')
    a.stamp('A_kvst')
    aq = aw
    for n in range(4):
        a(f'''
        s_add_u32 s{T0}, s{S_W}, {n}
        s_and_b32 s{T0}, s{T0}, 3
        s_lshl_b32 s{T0}, s{T0}, 10
        s_add_u32 s{T0}, s{T0}, {WQ}
        v_add_u32 v{aq[n]}, s{T0}, v{AQ}
        ''')
    a(f'''
    s_lshr_b32 s{T1}, s{S_H}, 1
    s_lshl_b32 s{T1}, s{T1}, 2
    s_add_u32 s{T1}, s{T1}, s{S_W}
    s_lshl_b32 s{T1}, s{T1}, 12
    s_add_u32 s{T5}, s{T1}, {FL_A}
    s_and_b32 s{T1}, s{S_H}, 1
    s_lshl_b32 s{T1}, s{T1}, 4
    s_add_u32 s{T1}, s{T1}, s{S_TB}
    s_lshl_b32 s{T1}, s{T1}, 7
    s_add_u32 s{T1}, s{T5}, s{T1}
    ''')
    def publish():
        a.vmwait('stA'); flag_store(a, T1, t[3]); a.stamp('A_flag')
    FAQ = opt('fAq', 7)
    for i, it in enumerate(dmaq_items()):
        if i >= NQE:
            for x in it: a.emit(x)
        if i == FAQ: publish()
    a.vmwait('wq'); a('s_barrier')
    a.stamp('A_wq')
    QB = [ACC[0] + 4*i for i in range(8)]
    NQ = 8
    def rdq(s_):
        c, n = divmod(s_, 4)
        for u in range(2): a(f'ds_read_b64_tr_b16 {vr(QB[s_ % NQ]+2*u,2)}, v{aq[n]} offset:{c*4096 + u*256}')
    AH = 5
    for s_ in range(AH): rdq(s_)
    hs = lambda x, tt: [f'v_mov_b32 v{tt}, v{x}', f'v_permlane32_swap_b32 v{x}, v{tt}', f'v_add_f32 v{x}, v{x}, v{tt}']
    ex = []
    for s_ in range(28):
        if s_ + AH < 28:
            a(f's_waitcnt lgkmcnt({2*(AH-1)})')
        elif s_ == 28 - AH:
            a('s_waitcnt lgkmcnt(0)')
            for i in range(4): a(f'v_dot2c_f32_bf16 v{cs[0]}, s{S_ONES}, v{QB[24 % NQ]+i}')
            ex = hs(cs[0], t[4]) + [f'ds_write_b32 v{CA}, v{cs[0]}', 's_waitcnt lgkmcnt(0)', 's_barrier',
                 f'ds_read_b32 v{cs[0]}, v{CR}', f'ds_read_b32 v{t[4]}, v{CR} offset:384', f'v_cmp_lt_u32 vcc, 31, v{V_LANE}', 's_waitcnt lgkmcnt(0)',
                 f'v_add_f32 v{cs[0]}, v{cs[0]}, v{t[4]}'] + hs(cs[0], t[4]) + [f'ds_write_b32 v{PA}, v{cs[0]}'] + \
                 [f'ds_read_b128 {vr(T16+4*q,4)}, v{PB} offset:{32*q}' for q in range(4)]
        if s_ % 4 == 0 and s_ < 24:
            for i in range(4): a(f'v_dot2c_f32_bf16 v{cs[0]}, s{S_ONES}, v{QB[s_ % NQ]+i}')
        a(f'{MFMA} {vr(accQ,16)}, {vr(QB[s_ % NQ],4)}, {vr(X[s_],4)}, {vr(accQ,16) if s_ else 0}')
        if s_ + AH < 28: rdq(s_ + AH)
        for x in ex[:4]: a(x)
        ex = ex[4:]
        if s_ == opt('fAs', 20) and FAQ > 6: publish()
    for x in ex: a(x)
    if opt('pollA', 1) == 2: poll_issue(a, T5, V_FL, 32, R['t'][0])
    a('s_waitcnt lgkmcnt(0)')
    NEG1 = 'op_sel_hi:[1,0,1] neg_lo:[0,1,0] neg_hi:[0,1,0]'
    for r in range(0, 16, 2): a(f'v_pk_fma_f32 {vr(accQ+r,2)}, {vr(T16+r,2)}, {vr(mu,2)}, {vr(accQ+r,2)} {NEG1}')
    for r in range(0, 16, 2): a(f'v_pk_mul_f32 {vr(accQ+r,2)}, {vr(accQ+r,2)}, {vr(rq,2)} op_sel_hi:[1,0]')
    for i in range(8): a(f'v_cvt_pk_bf16_f32 v{Q0+i}, v{accQ+2*i}, v{accQ+2*i+1}')
    for i in (6, 7): a(f'v_cndmask_b32_e64 v{Q0+i}, v{Q0+i}, 0, vcc')
    a.stamp('A_q')

def w13_setup(a, S13, L13):
    a(f'''
    s_cmp_lt_u32 s{S_W}, 2
    s_cselect_b32 s{SRD_B}, s{P_W1}, s{P_W3}
    s_cselect_b32 s{SRD_B+1}, s{P_W1+1}, s{P_W3+1}
    s_mov_b32 s{SRD_B+2}, {W1_BYTES}
    s_mov_b32 s{SRD_B+3}, 0x20000
    s_and_b32 s{T0}, s{S_W}, 1
    s_mul_i32 s{T0}, s{T0}, 7
    s_add_u32 s{T0}, s{T0}, s{S_R14}
    s_sub_u32 s{S_RG}, s{T0}, 14
    s_min_u32 s{S_RG}, s{S_RG}, s{T0}
    s_mul_i32 s{S_RG}, s{S_RG}, {32*3584}
    s_mul_i32 s{S13}, s{S_FS}, 224
    s_mul_i32 s{L13}, s{S_W}, 14336
    ''')

def rg_next():
    return [f's_add_u32 s{S_RG}, s{S_RG}, {32*3584}', f's_sub_u32 s{T0}, s{S_RG}, {14*32*3584}', f's_min_u32 s{S_RG}, s{S_RG}, s{T0}']

def pair_dma(S13, L13, slot, col, i, tag):
    return [f's_add_u32 m0, s{L13}, {slot*PAIR + i*1024}',
            f's_add_u32 s{T0}, s{S13}, s{S_RG}'] + ([f's_add_u32 s{T0}, s{T0}, {16*3584}'] if i & 1 else []) + \
           [('vm', f'buffer_load_dwordx4 v{V_P13}, {sr4(SRD_B)}, s{T0} offen lds', tag)] + (rg_next() if i & 1 else [])

def alloc_b():
    va = VA(4, 204)
    KV = [va(16) for _ in range(3)] + ([WOV] if opt('nkv', 4) == 4 else [])
    Q = [va(8) for _ in range(4)]
    O = [va(16) for _ in range(4)]
    S = [va(16), va(16)]
    P = [va(8), va(8)]
    t = [va() for _ in range(8)]
    v5 = 215 + 8
    return dict(KV=KV, Q=Q, O=O, S=S, P=P, t=t, v5=v5)

def phase_b(a, R, stg):
    KV, Q, O, S, P, t, v5 = (R[k] for k in ('KV', 'Q', 'O', 'S', 'P', 't', 'v5'))
    QX = R['QX']
    S13, L13, SKV, SB = T3, T4, T6, T2
    qa = t[4:8]
    MA = [240, 241, 242, 243]; VKV = 244; VP2 = 245; VX = 246
    a(f'''
    s_lshl_b32 s{SKV}, s{S_H}, 6
    s_add_u32 s{SKV}, s{SKV}, s{S_W}
    s_lshl_b32 s{SKV}, s{SKV}, 12
    v_add_u32 v{VKV}, s{SKV}, v{V_OFF}
    s_lshl_b32 s{SB}, s{S_TB}, 14
    ''')
    if opt('pollA', 1) == 1:
        if opt('dlyA', 4): a(f"s_sleep {opt('dlyA', 4)}")
        poll_issue(a, T5, V_FL, 32, t[0])
    a.stamp('B_pre')
    poll_check(a, T5, V_FL, 32, t[0])
    a.stamp('B_poll')
    def kvload(buf):
        return [('vm', f'buffer_load_dwordx4 {vr(KV[buf]+4*j,4)}, v{VKV}, {sr4(SRD_WS)}, s{SB} offen offset:{1024*j} sc1', f'k{buf}' if j < 2 else f'kv{buf}') for j in range(4)] + \
               [f's_add_u32 s{SB}, s{SB}, 0x4000', f's_and_b32 s{SB}, s{SB}, 0x3c000']
    NKV = len(KV)
    NK0 = opt('nk0', 1)
    for b in range(NK0):
        for x in kvload(b): a.emit(x)
    for lq in range(4):
        a(f'''
        s_add_u32 s{T0}, s{S_W}, {lq}
        s_and_b32 s{T0}, s{T0}, 3
        s_lshl_b32 s{T0}, s{T0}, 11
        s_add_u32 s{T0}, s{T0}, {QX}
        v_add_u32 v{qa[lq]}, s{T0}, v{V_OFF}
        ''')
    a(f'ds_write_b128 v{qa[0]}, {vr(Q[0],4)}')
    stg.src_setup(t[1], t[2], t[3])
    w13_setup(a, S13, L13)
    a(f'''
    s_lshl_b32 s{T0}, s{S_E0}, 5
    s_add_u32 s{S13}, s{S13}, s{T0}
    s_and_b32 s{T0}, s{S_W}, 2
    v_and_b32 v{t[1]}, 3, v{V_LANE}
    v_xor_b32 v{t[1]}, s{T0}, v{t[1]}
    v_lshrrev_b32 v{t[2]}, 2, v{V_LANE}
    v_mul_u32_u24 v{t[2]}, 3584, v{t[2]}
    v_lshl_add_u32 v{V_P13}, v{t[1]}, 4, v{t[2]}
    s_lshl_b32 s{T0}, s{T0}, 1
    v_lshrrev_b32 v{t[1]}, 1, v{V_LANE}
    v_xor_b32 v{t[1]}, s{T0}, v{t[1]}
    v_mul_u32_u24 v{t[1]}, 3584, v{t[1]}
    v_and_b32 v{t[2]}, 1, v{V_LANE}
    v_lshl_add_u32 v{v5}, v{t[2]}, 4, v{t[1]}
    v_add_u32 v{VP2}, {16*3584 - 1024}, v{V_P13}
    s_waitcnt lgkmcnt(0)
    s_barrier
    ''')
    for lq in range(4):
        a(f'''
        s_add_u32 s{T0}, s{S_W}, {lq}
        s_and_b32 s{T0}, s{T0}, 3
        s_mul_i32 s{T0}, s{T0}, 12288
        s_add_u32 s{T0}, s{T0}, {SCR}
        v_add_u32 v{MA[lq]}, s{T0}, v{V_OFF}
        ''')
    a(f'''
    s_and_b32 s{SKV}, s{S_W}, 1
    s_lshl_b32 s{T0}, s{S_RB}, 1
    s_add_u32 s{SKV}, s{SKV}, s{T0}
    s_mul_i32 s{SKV}, s{SKV}, {32*896}
    s_lshr_b32 s{T0}, s{S_W}, 1
    s_lshl_b32 s{T0}, s{T0}, 6
    s_add_u32 s{SKV}, s{SKV}, s{T0}
    s_lshl_b32 s{T0}, s{S_CB}, 7
    s_add_u32 s{SKV}, s{SKV}, s{T0}
    v_and_b32 v{VX}, 31, v{V_LANE}
    v_lshrrev_b32 v{t[1]}, 5, v{V_LANE}
    v_mul_u32_u24 v{VX}, 896, v{VX}
    v_lshl_add_u32 v{VX}, v{t[1]}, 4, v{VX}
    ''')
    for lq in range(1, 4): a(f'ds_read_b128 {vr(Q[lq],4)}, v{qa[lq]}')
    spre = []; spre2 = []
    if opt('spre', 1):
        ssrd(a, SRD_WQKV, 784, P_W2, P_WO, W2_BYTES, WO_BYTES, 2048, S_U0, S_U1)
        spre = [[sld(SRD_A, 128*i)] for i in range(opt('spreA', 0), 25)]
        spre2 = [[sld(SRD_WQKV, 128*i)] for i in range(16)]
        if opt('spre0', 0):
            a('s_waitcnt lgkmcnt(0)')
            for _ in range(opt('spre0', 0)): a(spre.pop(0)[0])
    NK1 = opt('nk1', 2)
    for b in range(NK0, NK1):
        for x in kvload(b): a.emit(x)
    s_kv = []
    for T in range(NK1, NKV):
        s_kv += [(opt('kvS', 2) * (6 * (T - NK1) + k_), x) for k_, x in enumerate(kvload(T))]
    for T in range(NKV, 16):
        s_kv += [(16 * (T - NKV + 1) + 3 + opt('kvS', 2) * k_, x) for k_, x in enumerate(kvload(T % NKV))]
    s_w = []; wp = [opt('preP', 70)]
    for g in range(7):
        it = (rg_next() if g else []) + [f's_add_u32 s{T0}, s{S13}, s{S_RG}']
        for sl in range(2):
            it += [f's_add_u32 m0, s{L13}, {sl*PAIR + 2*g*1024 - 64*sl}',
                   ('vm', f'buffer_load_dwordx4 v{V_P13}, {sr4(SRD_B)}, s{T0} offen offset:{64*sl} lds', 'w13'),
                   ('vm', f'buffer_load_dwordx4 v{VP2}, {sr4(SRD_B)}, s{T0} offen offset:{1024 + 64*sl} lds', 'w13')]
        it += [('vm', f'buffer_load_dwordx4 {vr(RAW5+4*g,4,"a")}, v{v5}, {sr4(SRD_B)}, s{T0} offen offset:128', 'w13')]
        for x in it:
            if isinstance(x, tuple):
                s_w.append((wp[0], x)); wp[0] += opt('preS', 5)
            else: s_w.append((wp[0] - 4, x))
    s_s = [(4 + opt('sS', 4) * k_, x[0]) for k_, x in enumerate(spre + spre2)]
    s_x = [(opt('xrP', 40), ('vm', f'buffer_load_dwordx4 {vr(XRES,4)}, v{VX}, {sr4(SRD_X)}, s{SKV} offen', 'xr')),
           (opt('xrP', 40) + 6, ('vm', f'buffer_load_dwordx4 {vr(XRES+4,4)}, v{VX}, {sr4(SRD_X)}, s{SKV} offen offset:32', 'xr'))]
    if opt('noW', 0): s_w = []
    if opt('noS', 0): s_s = []
    if opt('noKV', 0): s_kv = []
    streams = [s_kv, s_w, s_x, s_s]
    a.vmwait('k0')
    a(f'{MFMA} {vr(S[0],16)}, {vr(KV[0],4)}, {vr(Q[0],4)}, 0')
    a(f'{MFMA} {vr(S[0],16)}, {vr(KV[0]+4,4)}, {vr(Q[0]+4,4)}, {vr(S[0],16)}')
    a(f'v_cmp_lt_u32 vcc, 31, v{V_LANE}')
    a(f'v_max3_f32 v{t[0]}, v{S[0]}, v{S[0]+1}, v{S[0]+2}\nv_max3_f32 v{t[1]}, v{S[0]+3}, v{S[0]+4}, v{S[0]+5}')
    for r in range(6, 14, 4):
        a(f'v_max3_f32 v{t[0]}, v{t[0]}, v{S[0]+r}, v{S[0]+r+1}\nv_max3_f32 v{t[1]}, v{t[1]}, v{S[0]+r+2}, v{S[0]+r+3}')
    a(f'''
    v_max3_f32 v{t[0]}, v{t[0]}, v{S[0]+14}, v{S[0]+15}
    v_max_f32 v{t[0]}, v{t[0]}, v{t[1]}
    v_mov_b32 v{t[1]}, v{t[0]}
    v_permlane32_swap_b32 v{t[0]}, v{t[1]}
    v_max_f32 v{t[0]}, v{t[0]}, v{t[1]}
    v_cvt_pk_bf16_f32 v{t[0]}, -v{t[0]}, 0
    v_cndmask_b32 v{Q[0]+6}, v{Q[0]+6}, v{t[0]}, vcc
    ds_write_b128 v{qa[0]}, {vr(Q[0]+4,4)} offset:1024
    v_lshlrev_b32 v{t[2]}, 16, v{t[0]}
    ''')
    assert t[2] % 2 == 0
    for r in range(0, 16, 2): a(f'v_pk_add_f32 {vr(S[0]+r,2)}, {vr(S[0]+r,2)}, {vr(t[2],2)} op_sel_hi:[1,0]')
    a('s_waitcnt lgkmcnt(0)\ns_barrier')
    for lq in range(1, 4): a(f'ds_read_b128 {vr(Q[lq]+4,4)}, v{qa[lq]} offset:1024')
    if opt('stag', 0):
        Ls = a.newlabel('stag')
        for w in range(1, 4):
            a(f's_cmp_lt_u32 s{S_W}, {w}\ns_cbranch_scc1 {Ls}')
            for _ in range(opt('stag', 0)): a('s_nop 15')
        a.label(Ls)
    a.stamp('B_first')
    def slot(T, q):
        cb = q & 1; nb = cb ^ 1
        kvn, nq = (T % NKV, q + 1) if q < 3 else ((T + 1) % NKV, 0)
        kvp, pq = (T % NKV, q - 1) if q else ((T - 1) % NKV, 3)
        no_qk = (T == 15 and q == 3); no_pv = (T == 0 and q == 0); first = (T == 0 or (T == 1 and q == 0))
        M = [None if no_qk else f'{MFMA} {vr(S[nb],16)}, {vr(KV[kvn],4)}, {vr(Q[nq],4)}, 0',
             None if no_qk else f'{MFMA} {vr(S[nb],16)}, {vr(KV[kvn]+4,4)}, {vr(Q[nq]+4,4)}, {vr(S[nb],16)}',
             None if no_pv else f'{MFMA} {vr(O[pq],16)}, {vr(KV[kvp]+8,4)}, {vr(P[nb],4)}, {0 if first else vr(O[pq],16)}',
             None if no_pv else f'{MFMA} {vr(O[pq],16)}, {vr(KV[kvp]+12,4)}, {vr(P[nb]+4,4)}, {vr(O[pq],16)}']
        e = lambda r: f'v_exp_f32 v{S[cb]+r}, v{S[cb]+r}'
        c = lambda j: f'v_cvt_pk_bf16_f32 v{P[cb]+j}, v{S[cb]+2*j}, v{S[cb]+2*j+1}'
        seq = [M[0], e(0), e(1), e(2), c(0), e(3), e(4), M[1], c(1), e(5), e(6), c(2), e(7), e(8),
               M[2], c(3), e(9), e(10), c(4), e(11), e(12), M[3], c(5), e(13), e(14), e(15), c(6), c(7)]
        if T == 0 and q == 0: seq.insert(7, 's_waitcnt lgkmcnt(0)')
        for k_, x in enumerate(seq):
            if x is not None: a(x)
            if x is None or x.startswith('v_mfma'):
                mi = pos[0] & 3
                if mi == 3 and q == 2 and T < 15: a.vmwait(f'kv{(T+1)%NKV}')
                elif mi == 3 and q == 0 and T == 0: a.vmwait('kv0')
                else:
                    for st_ in streams:
                        if st_ and st_[0][0] <= pos[0]:
                            a.emit(st_.pop(0)[1]); break
                pos[0] += 1
    pos = [0]
    for T in range(16):
        for q in range(4): slot(T, q)
    assert not any(streams), [len(x) for x in streams]
    a(f'{MFMA} {vr(O[3],16)}, {vr(KV[15 % NKV]+8,4)}, {vr(P[1],4)}, {vr(O[3],16)}')
    a(f'{MFMA} {vr(O[3],16)}, {vr(KV[15 % NKV]+12,4)}, {vr(P[1]+4,4)}, {vr(O[3],16)}')
    a.stamp('B_loop')
    stg.queue(opt('hgM', 4))
    for lq in range(1, 4):
        for j in range(4):
            a(f'ds_write_b128 v{MA[lq]}, {vr(O[lq]+4*j,4)} offset:{(lq-1)*4096 + j*1024}'); stg.one()
    a(f'''
    s_lshl_b32 s{T0}, s{S_TB}, 2
    s_add_u32 s{T0}, s{T0}, s{S_W}
    s_lshl_b32 s{T0}, s{T0}, 4
    s_add_u32 s{T0}, s{T0}, s{S_H}
    s_lshl_b32 s{T5}, s{T0}, 7
    s_add_u32 s{T5}, s{T5}, {FL_B}
    s_lshl_b32 s{T0}, s{T0}, 11
    s_add_u32 s{T0}, s{T0}, {WS_O}
    v_mov_b32 v{t[4]}, {fx(2.0 ** (64 if not opt('forcefb', 0) else -60))}
    v_mov_b32 v{t[5]}, {fx(2.0 ** -64)}
    s_waitcnt lgkmcnt(0)
    s_barrier
    ''')
    for lq in range(1, 4):
        for j in range(4): a(f'ds_read_b128 {vr(O[lq]+4*j,4)}, v{MA[0]} offset:{(lq-1)*4096 + j*1024}')
    stg.flush()
    for lq in range(1, 4):
        a(f's_waitcnt lgkmcnt({4*(3-lq)})')
        for r in range(0, 16, 2): a(f'v_pk_add_f32 {vr(O[0]+r,2)}, {vr(O[0]+r,2)}, {vr(O[lq]+r,2)}')
    a(f'''
    v_mov_b32 v{t[0]}, v{O[0]+12}
    v_mov_b32 v{t[1]}, v{O[0]+12}
    v_permlane32_swap_b32 v{t[0]}, v{t[1]}
    v_med3_f32 v{t[3]}, v{t[1]}, v{t[4]}, v{t[5]}
    v_cmp_neq_f32 vcc, v{t[3]}, v{t[1]}
    v_rcp_f32 v{t[2]}, v{t[1]}
    s_cbranch_vccnz Lfb
    ''')
    a.label('Lfb_ret')
    a(f'v_cmp_lt_u32 vcc, 31, v{V_LANE}')
    for r in range(0, 16, 2): a(f'v_pk_mul_f32 {vr(O[0]+r,2)}, {vr(O[0]+r,2)}, {vr(t[2],2)} op_sel_hi:[1,0]')
    for j in range(8): a(f'v_cvt_pk_bf16_f32 v{P[0]+j}, v{O[0]+2*j}, v{O[0]+2*j+1}')
    for j in (6, 7): a(f'v_cndmask_b32_e64 v{P[0]+j}, v{P[0]+j}, 0, vcc')
    for j in range(2):
        a.vmem(f'buffer_store_dwordx4 {vr(P[0]+4*j,4)}, v{V_OFF}, {sr4(SRD_WS)}, s{T0} offen offset:{1024*j} sc1', 'stB')
    a.stamp('B_st'); a.stamp('H_st')


def fallback(a, R):
    KV, Q, O, S, P, t = R['KV'][0], R['Q'][0], R['O'][0], R['S'][0], R['P'][0], R['t']
    a.label('Lfb')
    a(f"""
    v_cmp_lt_u32 vcc, 31, v{V_LANE}
    s_lshl_b32 s{T1}, s{S_H}, 18
    s_mov_b32 s{T2}, 64
    v_mov_b32 v{t[0]}, 0xff7fffff
    v_cndmask_b32_e64 v{Q+6}, v{Q+6}, 0, vcc
    v_cndmask_b32_e64 v{Q+7}, v{Q+7}, 0, vcc
    """)
    a.label('Lfb1')
    a(f"""
    buffer_load_dwordx4 {vr(KV,4)}, v{V_OFF}, {sr4(SRD_WS)}, s{T1} offen sc1
    buffer_load_dwordx4 {vr(KV+4,4)}, v{V_OFF}, {sr4(SRD_WS)}, s{T1} offen offset:1024 sc1
    s_add_u32 s{T1}, s{T1}, 4096
    s_waitcnt vmcnt(0)
    {MFMA} {vr(S,16)}, {vr(KV,4)}, {vr(Q,4)}, 0
    {MFMA} {vr(S,16)}, {vr(KV+4,4)}, {vr(Q+4,4)}, {vr(S,16)}
    """)
    for r in range(0, 16, 2): a(f'v_max3_f32 v{t[0]}, v{t[0]}, v{S+r}, v{S+r+1}')
    a(f"""
    s_sub_u32 s{T2}, s{T2}, 1
    s_cmp_lg_u32 s{T2}, 0
    s_cbranch_scc1 Lfb1
    v_mov_b32 v{t[1]}, v{t[0]}
    v_permlane32_swap_b32 v{t[0]}, v{t[1]}
    v_max_f32 v{t[0]}, v{t[0]}, v{t[1]}
    v_cvt_pk_bf16_f32 v{t[1]}, -v{t[0]}, 0
    v_lshlrev_b32 v{t[2]}, 16, v{t[1]}
    v_sub_f32 v{t[0]}, -v{t[0]}, v{t[2]}
    v_cvt_pk_bf16_f32 v{t[2]}, v{t[0]}, 0
    v_lshlrev_b32 v{t[2]}, 16, v{t[2]}
    v_sub_f32 v{t[0]}, v{t[0]}, v{t[2]}
    v_or_b32 v{t[1]}, v{t[1]}, v{t[2]}
    v_cvt_pk_bf16_f32 v{t[0]}, v{t[0]}, 0
    v_cndmask_b32 v{Q+6}, v{Q+6}, v{t[1]}, vcc
    v_cndmask_b32 v{Q+7}, v{Q+7}, v{t[0]}, vcc
    s_lshl_b32 s{T1}, s{S_H}, 18
    s_mov_b32 s{T2}, 64
    """)
    for r in range(16): a(f'v_mov_b32 v{O+r}, 0')
    a.label('Lfb2')
    for j in range(4): a(f'buffer_load_dwordx4 {vr(KV+4*j,4)}, v{V_OFF}, {sr4(SRD_WS)}, s{T1} offen offset:{1024*j} sc1')
    a(f"""
    s_add_u32 s{T1}, s{T1}, 4096
    s_waitcnt vmcnt(0)
    {MFMA} {vr(S,16)}, {vr(KV,4)}, {vr(Q,4)}, 0
    {MFMA} {vr(S,16)}, {vr(KV+4,4)}, {vr(Q+4,4)}, {vr(S,16)}
    """)
    for r in range(16): a(f'v_exp_f32 v{S+r}, v{S+r}')
    for j in range(8): a(f'v_cvt_pk_bf16_f32 v{P+j}, v{S+2*j}, v{S+2*j+1}')
    a(f"""
    {MFMA} {vr(O,16)}, {vr(KV+8,4)}, {vr(P,4)}, {vr(O,16)}
    {MFMA} {vr(O,16)}, {vr(KV+12,4)}, {vr(P+4,4)}, {vr(O,16)}
    s_sub_u32 s{T2}, s{T2}, 1
    s_cmp_lg_u32 s{T2}, 0
    s_nop 7
    s_cbranch_scc1 Lfb2
    s_nop 7
    v_mov_b32 v{t[0]}, v{O+12}
    v_mov_b32 v{t[1]}, v{O+12}
    v_permlane32_swap_b32 v{t[0]}, v{t[1]}
    v_rcp_f32 v{t[2]}, v{t[1]}
    s_branch Lfb_ret
    """)

class Stager:
    def __init__(self, a): self.a = a; self.nl = 0; self.nt = 0; self.q = []
    def src_setup(self, t0, t1, t2):
        self.a(f'''
        v_lshrrev_b32 v{t0}, 3, v{V_LANE}
        v_lshrrev_b32 v{t1}, 1, v{V_LANE}
        v_and_b32 v{t1}, 4, v{t1}
        v_and_b32 v{t2}, 7, v{V_LANE}
        v_xor_b32 v{t1}, v{t1}, v{t2}
        v_mul_u32_u24 v{t0}, 1792, v{t0}
        v_lshl_add_u32 v{V_SRC}, v{t1}, 4, v{t0}
        ''')
    def setup(self, t0, t1, t2, vw):
        a = self.a; self.vw = vw
        a(f'''
        v_lshrrev_b32 v{t0}, 5, v{V_LANE}
        v_bfe_u32 v{t1}, v{V_LANE}, 2, 2
        v_lshl_add_u32 v{t0}, v{t0}, 2, v{t1}
        v_lshlrev_b32 v{t0}, 7, v{t0}
        v_bfe_u32 v{t1}, v{V_LANE}, 4, 1
        v_lshl_add_u32 v{t0}, v{t1}, 5, v{t0}
        v_and_b32 v{t1}, 3, v{V_LANE}
        v_lshl_add_u32 v{t0}, v{t1}, 3, v{t0}
        v_bfe_u32 v{t1}, v{V_LANE}, 3, 1
        s_lshr_b32 s{T0}, s{S_W}, 1
        v_xor_b32 v{t1}, s{T0}, v{t1}
        v_lshl_add_u32 v{t0}, v{t1}, 6, v{t0}
        s_lshl_b32 s{T0}, s{S_W}, 12
        s_add_u32 s{T0}, s{T0}, {SCR}
        v_add_u32 v{V_RD}, s{T0}, v{t0}
        v_xor_b32 v{V_RD+1}, 64, v{V_RD}
        v_lshrrev_b32 v{t0}, 3, v{V_LANE}
        v_lshlrev_b32 v{t0}, 7, v{t0}
        v_add3_u32 v{vw}, s{T0}, v{V_OFF}, v{t0}
        ''')
    def target_items(self, which):
        p, nb = (P_WO, WO_BYTES) if which == 'wo' else (P_W2, W2_BYTES)
        return [f's_mov_b32 s{SRD_A}, s{p}', f's_mov_b32 s{SRD_A+1}, s{p+1}', f's_mov_b32 s{SRD_A+2}, {nb}', f's_mov_b32 s{SRD_A+3}, 0x20000',
                f's_mul_i32 s{S_U0}, s{S_W}, {(112 if which == "wo" else 448)*896}', f's_lshl_b32 s{S_U1}, s{S_CB}, 7', f's_add_u32 s{S_U0}, s{S_U0}, s{S_U1}']
    @staticmethod
    def base(g):
        if g < 2: return ('a', 224 + 16 * g)
        if g < 4: return ('v', WOV + 16 * (g - 2))
        return ('a', 16 * (g - 4))
    @staticmethod
    def dest(g, s_, lc):
        p, b = Stager.base(g); return p, b + (s_ * 2 + lc) * 4
    def load_items(self):
        g = self.nl; self.nl += 1
        pre = self.target_items('wo') if g == 0 else (self.target_items('w2') if g == 4 else [])
        row0 = 28 * g if g < 4 else 32 * (g - 4)
        p, b = self.base(g)
        out = [pre] if pre else []
        for h_ in range(2):
            out.append([f's_add_u32 s{S_U1}, s{S_U0}, {(row0 + 16*h_)*896}'] +
                       [('vm', f'buffer_load_dwordx4 {vr(b+8*h_+4*i,4,p)}, v{V_SRC}, {sr4(SRD_A)}, s{S_U1} offen offset:{896*i}', f'hg{g}') for i in range(2)])
        return out
    def load(self):
        self.flush()
        for it in self.load_items():
            for x in it: self.a.emit(x)
    def queue(self, upto):
        while self.nl < upto:
            for it in self.load_items(): self.q += it
    def one(self):
        while self.q:
            x = self.q.pop(0); self.a.emit(x)
            if isinstance(x, tuple): break
    def flush(self):
        while self.q: self.one()
    def wr(self, u):
        a = self.a; g, s_ = divmod(u, 2); p, b = self.base(g)
        for i in range(2): a(f'ds_write_b128 v{self.vw}, {vr(b+8*s_+4*i,4,p)} offset:{2048*s_ + 128*i}')
    def rd(self, u):
        a = self.a; g, s_ = divmod(u, 2); p, b = self.base(g)
        for lc in range(2):
            for uu in range(2):
                a(f'ds_read_b64_tr_b16 {vr(b+(s_*2+lc)*4+2*uu,2,p)}, v{V_RD+lc} offset:{s_*2048 + uu*1024}')
    def trans(self):
        a = self.a; g = self.nt; self.nt += 1
        a.stamp(f'{"H" if g < 11 else "I"}_pre{g}')
        a.vmwait(f'hg{g}')
        if g in (0, 6): a.stamp(f'H_got{g}')
        for u in (2*g, 2*g + 1): self.wr(u)
        for u in (2*g, 2*g + 1): self.rd(u)
    def close(self): pass

def red_addr(a, t):
    for l in range(4):
        a(f's_xor_b32 s{T0}, s{S_W}, {l}\ns_mul_i32 s{T0}, s{T0}, 12288\ns_add_u32 s{T0}, s{T0}, {SCR}\nv_add_u32 v{t[l]}, s{T0}, v{V_OFF}')
def red_write(a, ACC, t, l, side=lambda: None):
    for j in range(4):
        a(f'ds_write_b128 v{t[l]}, {vr(ACC[l]+4*j,4)} offset:{(l-1)*4096 + j*1024}'); side()
def red_read(a, ACC, t, side=lambda: None):
    a('s_waitcnt lgkmcnt(0)\ns_barrier')
    for l in range(1, 4):
        for j in range(4): a(f'ds_read_b128 {vr(ACC[l]+4*j,4)}, v{t[0]} offset:{(l-1)*4096 + j*1024}')
    side()
    for l in range(1, 4):
        a(f's_waitcnt lgkmcnt({4*(3-l)})')
        for r in range(0, 16, 2): a(f'v_pk_add_f32 {vr(ACC[0]+r,2)}, {vr(ACC[0]+r,2)}, {vr(ACC[l]+r,2)}')

def put5(a, vt):
    a(f's_mul_i32 s{T0}, s{S_W}, 7168\ns_add_u32 s{T0}, s{T0}, {SINGLE}\nv_add_u32 v{vt}, s{T0}, v{V_OFF}')
    for g in range(7): a(f'ds_write_b128 v{vt}, {vr(RAW5+4*g,4,"a")} offset:{1024*g}')

def tile_ids(a, STT, SCT):
    a(f'''
    s_and_b32 s{STT}, s{S_W}, 1
    s_lshl_b32 s{T0}, s{S_RB}, 1
    s_add_u32 s{STT}, s{STT}, s{T0}
    s_lshr_b32 s{SCT}, s{S_W}, 1
    s_lshl_b32 s{T0}, s{S_CB}, 1
    s_add_u32 s{SCT}, s{SCT}, s{T0}
    ''')
def flag8_addr(a, vf, t0, t1, sdst, base):
    a(f'''
    v_lshrrev_b32 v{t0}, 2, v{V_LANE}
    v_lshlrev_b32 v{t0}, 11, v{t0}
    v_and_b32 v{t1}, 3, v{V_LANE}
    v_lshl_add_u32 v{vf}, v{t1}, 7, v{t0}
    s_lshl_b32 s{T0}, s{S_RB}, 3
    s_add_u32 s{T0}, s{T0}, s{S_W}
    s_lshl_b32 s{sdst}, s{T0}, 9
    s_add_u32 s{sdst}, s{sdst}, {base}
    ''')

def phase_c(a, R, stg):
    va = VA(4, 200)
    ACC = [va(16) for _ in range(4)]
    OF = [[va(4) for k in range(8)] for lt in range(2)]
    t = [va() for _ in range(8)]; vf = va(); vw = va(); vp = va()
    STT, SCT = T1, T2
    NB1 = opt('hgB', 10); NF = opt('hgBf', 2)
    for g in range(NF):
        if stg.nl < NB1: stg.load()
    stg.setup(t[0], t[1], t[2], vw)
    tile_ids(a, STT, SCT)
    for l in range(2):
        a(f'''
        s_xor_b32 s{T0}, s{STT}, {l}
        s_lshl_b32 s{T0}, s{T0}, 2
        s_add_u32 s{T0}, s{T0}, s{S_W}
        s_lshl_b32 s{T0}, s{T0}, 13
        s_add_u32 s{T3+l}, s{T0}, {WS_O}
        ''')
    for g in (0, 4):
        a(f'v_permlane32_swap_b32 v{XRES+g}, v{XRES+g+2}\nv_permlane32_swap_b32 v{XRES+g+1}, v{XRES+g+3}')
    for j in range(8):
        a(f'v_lshlrev_b32 v{ACC[0]+2*j}, 16, v{XRES+j}\nv_and_b32 v{ACC[0]+2*j+1}, 0xffff0000, v{XRES+j}')
    a('s_barrier')
    for _ in range(opt('trB0', 2)): stg.trans()
    a.vmwait('stB')
    flag_store(a, T5, t[3])
    a.stamp('C_flag'); a.stamp('H_flag')
    flag8_addr(a, vf, t[0], t[1], T5, FL_B)
    NT1 = NB1 - opt('trB', 2)
    for _ in range(opt('hgBg', 2)):
        if stg.nl < NB1: stg.load()
    while stg.nt < NT1:
        if stg.nt == NT1 - opt('pollB', 2): poll_issue(a, T5, vf, 8, vp)
        stg.trans()
        if stg.nl < NB1: stg.load()
    a.stamp('C_pre')
    poll_check(a, T5, vf, 8, vp)
    a.stamp('C_poll')
    for k in range(8):
        if k == 4: a(f's_add_u32 s{T3}, s{T3}, 4096\ns_add_u32 s{T4}, s{T4}, 4096')
        for l in range(2):
            a.vmem(f'buffer_load_dwordx4 {vr(OF[l][k],4)}, v{V_OFF}, {sr4(SRD_WS)}, s{T3+l} offen offset:{1024*(k&3)} sc1', f'o{k}')
    nfree = 4 + RAW5 // 16
    while stg.nt < NB1: stg.trans()
    red_addr(a, t)
    a(f'''
    s_mul_i32 s{T6}, s{STT}, 14
    s_add_u32 s{T6}, s{T6}, s{SCT}
    s_lshl_b32 s{T5}, s{STT}, 4
    s_add_u32 s{T5}, s{T5}, s{SCT}
    s_lshl_b32 s{T5}, s{T5}, 7
    s_add_u32 s{T5}, s{T5}, {FL_C}
    s_waitcnt lgkmcnt(0)
    s_barrier
    ''')
    def mm(k, l):
        p, b = stg.dest(k >> 1, k & 1, l >> 1)
        a(f'{MFMA} {vr(ACC[l],16)}, {vr(b,4,p)}, {vr(OF[l & 1][k],4)}, {vr(ACC[l],16) if (k or l == 0) else 0}')
    KT = 5
    for k in range(KT):
        a.vmwait(f'o{k}')
        for l in range(4): mm(k, l)
    stg.queue(min(nfree, NB1 + opt('hgC0', 4)))
    for l in (1, 2, 3, 0):
        for k in range(KT, 8):
            if l == 1: a.vmwait(f'o{k}')
            mm(k, l)
        if l in (2, 3): red_write(a, ACC, t, l - 1, stg.one)
    a.stamp('C_mfma')
    red_write(a, ACC, t, 3, stg.one)
    red_read(a, ACC, t, stg.flush)
    for j in range(8): a(f'v_cvt_pk_bf16_f32 v{HKEEP+j}, v{ACC[0]+2*j}, v{ACC[0]+2*j+1}')
    a(f's_lshl_b32 s{T0}, s{T6}, 11\ns_add_u32 s{T0}, s{T0}, {WS_H}')
    for j in range(2):
        a.vmem(f'buffer_store_dwordx4 {vr(HKEEP+4*j,4)}, v{V_OFF}, {sr4(SRD_WS)}, s{T0} offen offset:{1024*j} sc1', 'stC')
    for i in range(4): a(f'v_mov_b32 v{t[4+i]}, 0')
    for j in range(8):
        a(f'v_dot2c_f32_bf16 v{t[4+(j&1)]}, s{S_ONES}, v{HKEEP+j}')
        a(f'v_dot2c_f32_bf16 v{t[6+(j&1)]}, v{HKEEP+j}, v{HKEEP+j}')
    a(f'''
    v_add_f32 v{t[4]}, v{t[4]}, v{t[5]}
    v_add_f32 v{t[6]}, v{t[6]}, v{t[7]}
    v_permlane32_swap_b32 v{t[4]}, v{t[6]}
    v_add_f32 v{t[4]}, v{t[4]}, v{t[6]}
    v_and_b32 v{t[5]}, 31, v{V_LANE}
    v_lshrrev_b32 v{t[6]}, 5, v{V_LANE}
    v_lshlrev_b32 v{t[6]}, 2, v{t[6]}
    v_lshl_add_u32 v{t[5]}, v{t[5]}, 3, v{t[6]}
    s_lshl_b32 s{T0}, s{T6}, 8
    s_add_u32 s{T0}, s{T0}, {WS_ST}
    ''')
    a.vmem(f'buffer_store_dword v{t[4]}, v{t[5]}, {sr4(SRD_WS)}, s{T0} offen sc1', 'stC')
    a.stamp('C_st')
    for _ in range(opt('hgCf', 2)):
        if stg.nl < nfree: stg.load()
    a('s_barrier')
    put5(a, t[0])
    for _ in range(opt('trC0', 1)): stg.trans()
    a.vmwait('stC')
    flag_store(a, T5, t[3])
    a.stamp('C_flag2')
    NTP = 18 - opt('trC', 2) - opt('pollC', 2)
    while stg.nl < 18: stg.load()
    while stg.nt < NTP: stg.trans()

def phase_d(a, R, stg):
    va = VA(4, 212)
    X = [va(4) for _ in range(28)]
    ACC = [va(16) for _ in range(4)]
    HP = va(4)
    t = [va(2) for _ in range(4)]
    mu = va(2)
    vl = [va() for _ in range(6)]
    vp = va(); vs = va()
    W = [va(4) for _ in range(2)] + [WOV + 4*i for i in range(8)]
    NW = len(W)
    ST = ACC[3]
    E = [t[0], t[0]+1, t[1], t[1]+1, t[2], t[2]+1, t[3], t[3]+1]
    STT = T6; SH = T5; S13, L13 = T3, T4
    w13_setup(a, S13, L13)
    a(f'''
    s_lshl_b32 s{T0}, s{S_L0}, 5
    s_add_u32 s{S13}, s{S13}, s{T0}
    s_lshl_b32 s{STT}, s{S_TD}, 2
    s_add_u32 s{STT}, s{STT}, s{S_W}
    s_lshl_b32 s{T2}, s{STT}, 11
    s_add_u32 s{T2}, s{T2}, {FL_C}
    v_bfe_u32 v{t[0]}, v{V_LANE}, 4, 1                 ; cg
    v_lshrrev_b32 v{t[1]}, 5, v{V_LANE}                ; hf
    v_bfe_u32 v{t[3]}, v{V_LANE}, 2, 2                 ; r
    v_and_b32 v{mu}, 3, v{V_LANE}
    v_lshlrev_b32 v{mu}, 3, v{mu}                      ; c4*8
    v_xor_b32 v{t[2]}, v{t[0]}, v{t[1]}
    v_lshl_add_u32 v{t[2]}, v{t[2]}, 2, v{t[3]}
    v_lshl_add_u32 v{t[2]}, v{t[2]}, 5, v{mu}
    v_mul_u32_u24 v{vl[4]}, 14336, v{t[0]}
    v_add_u32 v{vl[4]}, v{vl[4]}, v{t[2]}
    v_add_u32 v{vl[4]}, {SINGLE}, v{vl[4]}
    v_lshl_add_u32 v{t[2]}, v{t[1]}, 2, v{t[3]}
    v_lshl_add_u32 v{t[2]}, v{t[2]}, 6, v{mu}
    v_mul_u32_u24 v{t[0]}, {28672 + 32}, v{t[0]}
    v_add_u32 v{vl[0]}, v{t[0]}, v{t[2]}
    v_xor_b32 v{vl[1]}, 32, v{vl[0]}
    v_add_u32 v{vl[2]}, {PAIR}, v{vl[0]}
    v_add_u32 v{vl[3]}, {PAIR}, v{vl[1]}
    v_and_b32 v{t[0]}, 31, v{V_LANE}
    v_mul_u32_u24 v{t[1]}, {7*256}, v{t[1]}
    v_lshl_add_u32 v{vs}, v{t[0]}, 3, v{t[1]}
    s_mul_i32 s{T1}, s{STT}, {14*256}
    s_add_u32 s{T1}, s{T1}, {WS_ST}
    s_mul_i32 s{SH}, s{STT}, {28*1024}
    s_add_u32 s{SH}, s{SH}, {WS_H}
    ''')
    NTP = 18 - opt('trC', 2)
    poll_issue(a, T2, V_FL, 14, vp)
    Ls = a.newlabel('skip')
    a(f's_cmp_ge_u32 s{S_J}, 28\ns_cbranch_scc1 {Ls}')
    while stg.nt < NTP: stg.trans()
    a.label(Ls)
    a('s_waitcnt lgkmcnt(0)\ns_barrier')
    a.stamp('D_pre')
    rest = [x for x in a.vm if x.startswith('hg')]
    poll_check(a, T2, V_FL, 14, vp)
    a.stamp('D_poll')
    for c in range(7):
        a.vmem(f'buffer_load_dwordx2 {vr(ST+2*c,2)}, v{vs}, {sr4(SRD_WS)}, s{T1} offen offset:{256*c} sc1', 'st')
    SX_ = S_SPIN + 1
    a(f's_lshl_b32 s{SX_}, s{S_R14}, 11\nv_add_u32 v{vl[5]}, s{SH}, v{V_OFF}')
    def ldx(k):
        if k and k % 2 == 0: a(f's_add_u32 s{SX_}, s{SX_}, 2048\ns_sub_u32 s{T0}, s{SX_}, {28*1024}\ns_min_u32 s{SX_}, s{SX_}, s{T0}')
        a.vmem(f'buffer_load_dwordx4 {vr(X[k],4)}, v{vl[5]}, {sr4(SRD_WS)}, s{SX_} offen offset:{1024*(k&1)} sc1', f'x{k}')
    XLA = opt('xla', 10)
    for k in range(XLA): ldx(k)
    a(f's_or_b32 s{T0}, s2, s{S_W}\ns_cmp_lg_u32 s{T0}, 0\ns_cselect_b32 s{T0}, 0x40000000, {WS_FLG}')
    flag_store(a, T0, t[0])
    a.stamp('F_issued')
    Ls = a.newlabel('skip')
    a(f's_cmp_ge_u32 s{S_J}, 28\ns_cbranch_scc1 {Ls}')
    while stg.nt < 18: stg.trans()
    stg.close()
    a.label(Ls)
    SE = T5; SL = T1; SF = T2
    a(f'''
    s_mul_i32 s{SE}, s{STT}, 112
    s_mul_i32 s{T0}, s{S_FS}, 7
    s_add_u32 s{SE}, s{SE}, s{T0}
    s_add_u32 s{SL}, s{SE}, s{S_L0}
    s_add_u32 s{SE}, s{SE}, s{S_E0}
    s_lshl_b32 s{SE}, s{SE}, 10
    s_add_u32 s{SE}, s{SE}, {WS_HH}
    s_lshl_b32 s{SL}, s{SL}, 10
    s_add_u32 s{SL}, s{SL}, {WS_HH}
    s_add_u32 s{S_U1}, s{SE}, 4096
    s_lshl_b32 s{SF}, s{STT}, 4
    s_add_u32 s{SF}, s{SF}, s{S_FS}
    s_lshl_b32 s{SF}, s{SF}, 7
    s_add_u32 s{SF}, s{SF}, {FL_D1}
    ''')
    if opt('trC', 2): a('s_waitcnt lgkmcnt(0)')
    seq = [(j, k) for k in range(28) for j in (0, 1, 4)] + [(j, k) for j in (2, 3, 5, 6) for k in range(28)]
    def rdW(n):
        j, k = seq[n]
        if j == 4: return [f'ds_read_b64_tr_b16 {vr(W[n % NW]+2*u,2)}, v{vl[4]} offset:{k*512 + u*256}' for u in range(2)]
        return [f'ds_read_b64_tr_b16 {vr(W[n % NW]+2*u,2)}, v{vl[{0:0,1:1,2:2,3:3,5:0,6:1}[j]]} offset:{k*1024 + u*512}' for u in range(2)]
    AH = opt('ah', 6); assert AH + 2 <= NW and 2 * AH <= 15
    a.stamp('F_bar')
    for n in range(AH):
        for x in rdW(n): a(x)
    a.vmwait('st')
    for c in range(3): a(f'v_pk_add_f32 {vr(ST+4*c,2)}, {vr(ST+4*c,2)}, {vr(ST+4*c+2,2)}')
    a(f'v_pk_add_f32 {vr(ST,2)}, {vr(ST,2)}, {vr(ST+4,2)}\nv_pk_add_f32 {vr(ST+8,2)}, {vr(ST+8,2)}, {vr(ST+12,2)}\nv_pk_add_f32 {vr(ST,2)}, {vr(ST,2)}, {vr(ST+8,2)}')
    a(f'v_mov_b32 v{t[0]}, v{ST}\nv_mov_b32 v{t[1]}, v{ST+1}\nv_permlane32_swap_b32 v{t[0]}, v{ST}\nv_permlane32_swap_b32 v{t[1]}, v{ST+1}')
    a(f'v_add_f32 v{t[0]}, v{t[0]}, v{ST}\nv_add_f32 v{t[1]}, v{t[1]}, v{ST+1}')
    a(f'''
    v_mul_f32 v{t[0]}, {fx(1/448)}, v{t[0]}
    v_mul_f32 v{t[1]}, {fx(1/448)}, v{t[1]}
    v_fma_f32 v{t[1]}, -v{t[0]}, v{t[0]}, v{t[1]}
    v_max_f32 v{t[1]}, 0, v{t[1]}
    v_add_f32 v{t[1]}, {fx(1e-5)}, v{t[1]}
    v_rsq_f32 v{mu}, v{t[1]}
    s_mov_b32 s{S_U0}, 0xffff0000
    v_mul_f32 v{mu+1}, v{t[0]}, v{mu}
    v_sub_f32 v{mu+1}, 0, v{mu+1}
    ''')
    def norm(k):
        out = []
        for i in range(4): out += [f'v_lshlrev_b32 v{t[i]}, 16, v{X[k]+i}', f'v_and_b32 v{t[i]+1}, s{S_U0}, v{X[k]+i}']
        if opt('pkN', 1):
            for i in range(4): out += [f'v_pk_fma_f32 {vr(t[i],2)}, {vr(t[i],2)}, {vr(mu,2)}, {vr(mu,2)} op_sel:[0,0,1] op_sel_hi:[1,0,1]']
        else:
            for i in range(4): out += [f'v_fma_f32 v{t[i]}, v{t[i]}, v{mu}, v{mu+1}', f'v_fma_f32 v{t[i]+1}, v{t[i]+1}, v{mu}, v{mu+1}']
        for i in range(4): out += [f'v_cvt_pk_bf16_f32 v{X[k]+i}, v{t[i]}, v{t[i]+1}']
        return out
    acc_of = {0: 0, 1: 1, 4: 2, 2: 3, 3: 0, 5: 1, 6: 2}
    def epi(j):
        A = ACC[acc_of[j]]
        out = []
        pk = opt('pkE', 0) if j != 6 else 2
        if pk >= 2:
            for r in range(0, 8, 2): out.append(f'v_pk_mul_f32 {vr(E[r],2)}, {vr(A+r,2)}, {vr(mu,2)} op_sel_hi:[1,0]')
        else:
            for r in range(8): out.append(f'v_mul_f32 v{E[r]}, v{mu}, v{A+r}')
        for r in range(8): out.append(f'v_exp_f32 v{E[r]}, v{E[r]}')
        if pk >= 1:
            for r in range(0, 8, 2): out.append(f'v_pk_mul_f32 {vr(A+r,2)}, {vr(A+r,2)}, {vr(A+8+r,2)}')
        else:
            for r in range(8): out.append(f'v_mul_f32 v{A+r}, v{A+r}, v{A+8+r}')
        if pk >= 2:
            for r in range(0, 8, 2): out.append(f'v_pk_add_f32 {vr(E[r],2)}, {vr(E[r],2)}, {vr(mu,2)} op_sel:[0,1] op_sel_hi:[1,1]')
        else:
            for r in range(8): out.append(f'v_add_f32 v{E[r]}, 1.0, v{E[r]}')
        for r in range(8): out.append(f'v_rcp_f32 v{E[r]}, v{E[r]}')
        if pk >= 1:
            for r in range(0, 8, 2): out.append(f'v_pk_mul_f32 {vr(A+r,2)}, {vr(A+r,2)}, {vr(E[r],2)}')
        else:
            for r in range(8): out.append(f'v_mul_f32 v{A+r}, v{A+r}, v{E[r]}')
        for i in range(4): out.append(f'v_cvt_pk_bf16_f32 v{HP+i}, v{A+2*i}, v{A+2*i+1}')
        sreg, off = (SE, 1024*j) if j < 4 else ((S_U1, 0) if j == 4 else (SL, 1024*(j-5)))
        out.append(('vm', f'buffer_store_dwordx4 {vr(HP,4)}, v{V_OFF}, {sr4(SRD_WS)}, s{sreg} offen offset:{off} sc1', f'hh{j}'))
        return out
    a.stamp('F_stats')
    a.vmwait('x0')
    a.stamp('F_x0')
    for x in norm(0): a(x)
    pend = []; late = []
    R['vfE'] = vs; R['vpE'] = vp
    for n, (j, k) in enumerate(seq):
        nn = n + AH
        if nn < len(seq) and seq[nn] == (5, 0):
            a.vmwait('late'); a('s_barrier')
        rd = rdW(nn) if nn < len(seq) else []
        if n % 2 == 0:
            left = min(len(seq), n + AH) - (n + 2)
            a(f's_waitcnt lgkmcnt({max(0, 2*left)})')
        A = ACC[acc_of[j]]
        a(f'{MFMA} {vr(A,16)}, {vr(W[n % NW],4)}, {vr(X[k],4)}, {vr(A,16) if k else 0}')
        for x in rd: a(x)
        if n < 84 and j == 0 and k in (4, 8, 12, 16, 20, 24): a.stamp(f'F_k{k}')
        if n >= 84 and k == 27: a.stamp(f'F_t{j}')
        if n < 84:
            if j == 0 and k + 1 < 28:
                a.vmwait(f'x{k+1}'); pend = norm(k + 1)
            if j == 1 and k + XLA < 28: ldx(k + XLA)
            take = (6 if j < 2 else 4) if opt('pkN', 1) else (7 if j < 2 else 6)
            for x in pend[:take]: a(x)
            pend = pend[take:]
            if n == 83:
                a.stamp('D_st1')
                a(f'v_mov_b32 v{mu}, {fx(-math.log2(math.e))}\nv_mov_b32 v{mu+1}, 1.0\ns_barrier')
                late = [pair_dma(S13, L13, 0, 0, i, 'late') for i in range(14)]
        else:
            if n == 84 + 2: pend = epi(0) + epi(1) + epi(4) + epi(2) + epi(3) + epi(5); done = 0; tot = len(pend); one = tot // 6
            if n >= 84 + 2:
                want = min(tot, (n - 85) * tot // 108 + 1)
                lim = {2: 3, 3: 3 + (k >= 2), 5: 4 + (k >= 2), 6: 5 + (k >= 2)}[j] * one
                while done < min(want, lim):
                    a.emit(pend.pop(0)); done += 1
                if k == 27:
                    need = {2: 1, 3: 2, 5: 3, 6: 6}[j] * one
                    while done < need:
                        a.emit(pend.pop(0)); done += 1
            if late and k % opt('latestep', 2) == 0:
                for x in late.pop(0): a.emit(x)
            if j == 5 and k == opt('f1k', 6):
                a.vmwait('hh1'); flag_store(a, SF, vp)
            if j == 6 and k == opt('f2k', 14) and not opt('d2late', 1):
                a(f's_add_u32 s{SF}, s{SF}, {FLS}')
                a.vmwait('hh2'); flag_store(a, SF, vl[2])
                a(f's_add_u32 s{SF}, s{SF}, {FLS}')
            if j == 6 and k == opt('p1k', 18):
                flag8_addr(a, vs, vp, vl[4], S_SPIN + 1, FL_D1)
                poll_issue(a, S_SPIN + 1, vs, 8, vp)
    a.stamp('D_loop')
    if opt('d2late', 1):
        a(f's_add_u32 s{SF}, s{SF}, {FLS}')
        a.vmwait('hh3'); flag_store(a, SF, vl[2])
        a(f's_add_u32 s{SF}, s{SF}, {FLS}')
    for x in epi(6): a.emit(x)
    a.stamp('D_epi')
    R['SF'] = SF

def phase_e(a, R, stg):
    va = VA(4, 199)
    ACC = [va(16) for _ in range(4)]
    NB = 16
    BUF = [[va(4) for l in range(2)] for d in range(NB)]
    vf = R['vfE']; vp = R['vpE']
    t = [204, 205, 206, 207]; vt = 208
    assert vf >= va.n and vp >= va.n and vf < 204 and vp < 204
    STT, SCT = T1, T3
    SP = S_SPIN + 1
    tile_ids(a, STT, SCT)
    a(f's_mul_i32 s{T4}, s{S_W}, {28*1024}')
    for l in range(2):
        a(f'''
        s_xor_b32 s{T0}, s{STT}, {l}
        s_mul_i32 s{T0}, s{T0}, {112*1024}
        s_add_u32 s{T0}, s{T0}, s{T4}
        s_add_u32 s{S_U0+l}, s{T0}, {WS_HH}
        ''')
    e0 = lambda f: 2 if f == 2 else 0
    l0 = lambda f: 0 if f == 2 else 5
    order = [7*f + e0(f) + j for j in (0, 1, 4, 2, 3) for f in range(4)] + [7*f + l0(f) + j for j in range(2) for f in range(4)]
    assert sorted(order) == list(range(28))
    poll_check(a, SP, vf, 8, vp)
    a.stamp('E_poll1')
    N2 = 20 if opt('d2late', 1) else 16
    st = dict(nxt=0)
    FL3 = opt('efl', 7); PI2 = opt('epi2', 3); PI3 = opt('epi3', 19)
    def ld():
        n = st['nxt']; st['nxt'] += 1
        if n == FL3:
            a.vmwait('hh6'); flag_store(a, R['SF'], vt)
        if n in (8, N2):
            a.stamp('E_pre2' if n == 8 else 'E_pre3'); poll_check(a, SP, vf, 8, vp); a.stamp('E_poll2' if n == 8 else 'E_poll3')
        if n in (PI2, PI3):
            a(f's_add_u32 s{SP}, s{SP}, {FLS}'); poll_issue(a, SP, vf, 8, vp)
        ks = order[n]
        for l in range(2):
            a(f's_add_u32 s{T0}, s{S_U0+l}, {(ks >> 2) * 4096}')
            a.vmem(f'buffer_load_dwordx4 {vr(BUF[n % NB][l],4)}, v{V_OFF}, {sr4(SRD_WS)}, s{T0} offen offset:{1024*(ks&3)} sc1', f'h{n}')
    LA = opt('ela', 9)
    for n in range(LA): ld()
    for j in range(8):
        a(f'v_lshlrev_b32 v{ACC[0]+2*j}, 16, v{HKEEP+j}\nv_and_b32 v{ACC[0]+2*j+1}, 0xffff0000, v{HKEEP+j}')
    red_addr(a, t)
    def mm(n, l):
        ks = order[n]
        p, b = stg.dest(4 + (ks >> 1), ks & 1, l >> 1)
        a(f'{MFMA} {vr(ACC[l],16)}, {vr(b,4,p)}, {vr(BUF[n % NB][l & 1],4)}, {vr(ACC[l],16) if (n or l == 0) else 0}')
    KT = 28 - opt('etail', 4)
    for n in range(KT):
        a.vmwait(f'h{n}')
        for l in range(4): mm(n, l)
        for _ in range(2 if st['nxt'] < N2 else 12):
            if st['nxt'] == N2 and n < opt('ec3', 8): break
            if st['nxt'] < 28 and st['nxt'] - NB <= n: ld()
    assert st['nxt'] == 28
    for l in (1, 2, 3, 0):
        for n in range(KT, 28):
            if l == 1: a.vmwait(f'h{n}')
            mm(n, l)
        if l in (2, 3): red_write(a, ACC, t, l - 1)
    a.stamp('E_mfma')
    red_write(a, ACC, t, 3)
    srd(a, SRD_A, P_OUT, X_BYTES)
    a(f'''
    v_and_b32 v{vf}, 31, v{V_LANE}
    v_lshrrev_b32 v{vp}, 5, v{V_LANE}
    v_mul_u32_u24 v{vf}, 896, v{vf}
    v_lshl_add_u32 v{vf}, v{vp}, 4, v{vf}
    s_mul_i32 s{T0}, s{STT}, {32*896}
    s_lshl_b32 s{T2}, s{SCT}, 6
    s_add_u32 s{T0}, s{T0}, s{T2}
    ''')
    red_read(a, ACC, t)
    if opt('bias', 0):
        for r in range(16): a(f"v_add_f32 v{ACC[0]+r}, {fx(opt('bias', 0) * 1e-3)}, v{ACC[0]+r}")
    PKR = ACC[1]
    for j in range(8): a(f'v_cvt_pk_bf16_f32 v{PKR+j}, v{ACC[0]+2*j}, v{ACC[0]+2*j+1}')
    for g in (0, 4):
        a(f'v_permlane32_swap_b32 v{PKR+g}, v{PKR+g+2}\nv_permlane32_swap_b32 v{PKR+g+1}, v{PKR+g+3}')
    fl_ = ['', ' sc1', ' nt', ' sc0 sc1'][opt('outst', 0)]
    a(f'buffer_store_dwordx4 {vr(PKR,4)}, v{vf}, {sr4(SRD_A)}, s{T0} offen{fl_}')
    a(f'buffer_store_dwordx4 {vr(PKR+4,4)}, v{vf}, {sr4(SRD_A)}, s{T0} offen offset:32{fl_}')
    a.stamp('E_st')

def gen():
    a = K()
    a.stamp('rt0', True); a.stamp('t0')
    HB = opt('hb', 3)
    if int(os.environ.get('TFIX', '0')): a('s_memrealtime s[60:61]')
    a(f'''
    s_cmp_ge_u32 s2, 256
    s_cbranch_scc1 Lend
    s_load_dwordx16 s[32:47], s[0:1], 0
    s_load_dwordx2 s[50:51], s[0:1], 72
    v_lshrrev_b32 v2, 6, v0
    v_and_b32 v{V_LANE}, 63, v0
    v_readfirstlane_b32 s{S_W}, v2
    v_lshlrev_b32 v{V_OFF}, 4, v{V_LANE}
    v_lshlrev_b32 v{V_FL}, 7, v{V_LANE}
    s_and_b32 s{T0}, s2, 7
    s_lshr_b32 s{S_J}, s2, 3
    s_and_b32 s{S_H}, s{T0}, {(16 >> HB) - 1}
    s_lshl_b32 s{S_H}, s{S_H}, {HB}
    s_and_b32 s{T1}, s{S_J}, {(1 << HB) - 1}
    s_add_u32 s{S_H}, s{S_H}, s{T1}
    s_lshr_b32 s{S_TB}, s{T0}, {4 - HB}
    s_lshl_b32 s{S_TB}, s{S_TB}, {5 - HB}
    s_lshr_b32 s{T1}, s{S_J}, {HB}
    s_add_u32 s{S_TB}, s{S_TB}, s{T1}
    s_mul_i32 s{T1}, s{S_J}, 9363
    s_lshr_b32 s{T1}, s{T1}, 16
    s_mul_i32 s{T2}, s{T1}, 7
    s_sub_u32 s{S_CB}, s{S_J}, s{T2}
    s_lshl_b32 s{S_RB}, s{T0}, 2
    s_add_u32 s{S_RB}, s{S_RB}, s{T1}
    s_and_b32 s{S_TD}, s{T0}, 1
    s_lshl_b32 s{S_TD}, s{S_TD}, 3
    s_and_b32 s{T1}, s{S_J}, 7
    s_add_u32 s{S_TD}, s{S_TD}, s{T1}
    s_lshr_b32 s{S_FS}, s{T0}, 1
    s_lshl_b32 s{S_FS}, s{S_FS}, 2
    s_lshr_b32 s{T1}, s{S_J}, 3
    s_add_u32 s{S_FS}, s{S_FS}, s{T1}
    ''')
    if opt('cpre', 1):
        a('s_getpc_b64 s[54:55]')
        a.label('Lpc')
        a(f'''
        s_lshl_b32 s{T0}, s{S_J}, 2
        s_add_u32 s{T0}, s{T0}, s{S_W}
        s_mul_i32 s{T0}, s{T0}, 3
        v_add_u32 v4, s{T0}, v{V_LANE}
        v_lshlrev_b32 v4, 7, v4
        v_min_u32 v4, Lcode_end-Lpc-4, v4
        v_mov_b32 v5, s55
        v_add_co_u32 v4, vcc, s54, v4
        v_addc_co_u32 v5, vcc, 0, v5, vcc
        s_mov_b64 exec, 7
        ''')
        a.vmem('global_load_dword a4, v[4:5], off', 'code')
        a('s_mov_b64 exec, -1')
    R = alloc_b()
    phase_a(a, R)
    a(f'''
    s_and_b32 s{T0}, s{S_FS}, 3
    s_cmp_eq_u32 s{T0}, 2
    s_cselect_b32 s{S_E0}, 2, 0
    s_cselect_b32 s{S_L0}, 0, 5
    s_and_b32 s{T0}, s{S_J}, 7
    s_lshr_b32 s{T1}, s{S_J}, 3
    s_mul_i32 s{T1}, s{T1}, {opt('r14b', 4)}
    s_mul_i32 s{T0}, s{T0}, {opt('r14a', 2)}
    s_add_u32 s{T0}, s{T0}, s{T1}
    s_sub_u32 s{T1}, s{T0}, 14
    s_min_u32 s{S_R14}, s{T0}, s{T1}
    s_sub_u32 s{T1}, s{S_R14}, 14
    s_min_u32 s{S_R14}, s{S_R14}, s{T1}
    ''')
    stg = Stager(a)
    phase_b(a, R, stg)
    a(f's_cmp_ge_u32 s{S_J}, 28\ns_cbranch_scc1 LnoC')
    phase_c(a, R, stg)
    a('s_branch LD')
    vm_c = list(a.vm)
    a.label('LnoC')
    a.vmall()
    flag_store(a, T5, 4)
    a('s_barrier')
    put5(a, 5)
    a.label('LD')
    a.vm = vm_c
    phase_d(a, R, stg)
    a(f's_cmp_ge_u32 s{S_J}, 28\ns_cbranch_scc0 LE')
    vm_d = list(a.vm)
    a('s_waitcnt vmcnt(0)')
    flag_store(a, R['SF'], 4)
    a('s_branch Lfin')
    a.label('LE')
    a.vm = vm_d
    phase_e(a, R, stg)
    a.label('Lfin')
    if int(os.environ.get('TFIX', '0')):
        a.label('Lfix')
        a(f's_memrealtime s[62:63]\ns_waitcnt lgkmcnt(0)\ns_sub_u32 s62, s62, s60\ns_cmp_lt_u32 s62, {int(os.environ["TFIX"])}\ns_cbranch_scc1 Lfix')
    if STAMP:
        a('s_waitcnt vmcnt(0)')
        a.stamp('end'); a.stamp('rt1', True)
        a(f's_waitcnt lgkmcnt(0)\ns_lshl_b32 s{T0}, s2, 2\ns_add_u32 s{T0}, s{T0}, s{S_W}\ns_lshl_b32 s{T0}, s{T0}, 7\ns_add_u32 s{T0}, s{T0}, {WS_DBG}\nv_mov_b32 v4, 0')
        for i in range(a.nst):
            a(f'v_mov_b32 v5, s{60+2*i}\nbuffer_store_dword v5, v4, {sr4(SRD_WS)}, s{T0} offen offset:{4*i}')
    if STAMP and int(os.environ.get('DBGOUT', '0')):
        n = a.nst
        a(f'''
        s_load_dwordx2 s[{SRD_A}:{SRD_A+1}], s[0:1], 64
        s_mov_b32 s{SRD_A+2}, 256
        s_mov_b32 s{SRD_A+3}, 0x20000
        s_not_b32 s{T1}, s60
        v_mov_b32 v6, s{T1}
        v_mov_b32 v7, s{60+2*(n-1)}
        v_mov_b32 v8, s60
        s_mov_b64 exec, 1
        s_waitcnt lgkmcnt(0)
        buffer_atomic_umax v6, v4, {sr4(SRD_A)}, 0 offen
        buffer_atomic_umax v7, v4, {sr4(SRD_A)}, 0 offen offset:4
        buffer_atomic_umax v8, v4, {sr4(SRD_A)}, 0 offen offset:8
        s_or_b32 s{T0}, s2, s{S_W}
        s_cmp_lg_u32 s{T0}, {int(os.environ.get('DBGWG', '0'))}
        s_cbranch_scc1 Lend
        ''')
        for i in range(2, min(n - 1, 15)):
            a(f's_sub_u32 s{T0}, s{60+2*i}, s62\nv_mov_b32 v5, s{T0}\nbuffer_store_dword v5, v4, {sr4(SRD_A)}, 0 offen offset:{4*(i+1)}')
    a.label('Lend')
    a('s_endpgm')
    fallback(a, R)
    a.label('Lcode_end')
    a.finalize()
    head = open('sequential_preLN__mha_block__glu_gated_swiglu__prompt.s.ref').read().split('; Override')[0]
    s = head + f'; @launch grid=(256,1,1) block=(256,1,1) lds={LDS_BYTES}\n'
    s += f'.amdgcn_target "amdgcn-amd-amdhsa--gfx950"\n.text\n.globl {NAME}\n.p2align 8\n.type {NAME},@function\n{NAME}:\n' + a.text()
    s += f'''.section .rodata,"a"
.p2align 6
.amdhsa_kernel {NAME}
  .amdhsa_next_free_vgpr 512
  .amdhsa_next_free_sgpr 102
  .amdhsa_accum_offset 256
  .amdhsa_group_segment_fixed_size 0
  .amdhsa_kernarg_size 80
  .amdhsa_user_sgpr_count 2
  .amdhsa_user_sgpr_kernarg_segment_ptr 1
  .amdhsa_system_sgpr_workgroup_id_x 1
.end_amdhsa_kernel
'''
    if STAMP: s = '; STAMPS ' + ' '.join(a.names) + '\n' + s
    print(f'instrs={len(a.ins)} nop_states={a.nops} stamps={a.nst}', file=sys.stderr)
    return s

if __name__ == '__main__':
    open(sys.argv[1], 'w').write(gen())
```

```python
import sys, struct, math, os
from asmgen import Asm

NAME = 'sequential_preLN__mha_block__glu_gated_swiglu__prompt_kernel'
MB = 1 << 20
WS_KV  = 0
WS_O   = 4 * MB
WS_H   = 6 * MB
WS_ST  = 8 * MB
WS_HH  = 9 * MB
WS_FLG = 16 * MB
FL_A = WS_FLG + 0x10000
FL_B = FL_A + 1024 * 128
FL_C = FL_B + 1024 * 128
FL_D1 = FL_C + 1024 * 128
FL_D2 = FL_D1 + 1024 * 128
FL_D3 = FL_D2 + 1024 * 128
FLS = 1024 * 128
WS_DBG = 17 * MB
WS_SIZE = 18 * MB

X_BYTES = 2048 * 448 * 2
WQKV_BYTES = 448 * 1344 * 2
WO_BYTES = 448 * 448 * 2
W1_BYTES = 448 * 1792 * 2
W2_BYTES = 1792 * 448 * 2
LDS_BYTES = 163840
MFMA = 'v_mfma_f32_32x32x16_bf16'
STAMP = int(os.environ.get('STAMP', '0'))
OPT = dict(kv.split('=') for kv in os.environ.get('OPT', '').split(',') if kv)
def opt(k, d): return int(OPT.get(k, d))

def f2u(x): return struct.unpack('<I', struct.pack('<f', x))[0]
def fx(x): return hex(f2u(x))
def vr(b, n=1, p='v'): return f'{p}[{b}:{b+n-1}]' if n > 1 else f'{p}{b}'
def sr4(b): return f's[{b}:{b+3}]'

class VA:
    def __init__(self, start, limit): self.n = start; self.limit = limit
    def __call__(self, cnt=1, align=None):
        if align is None: align = 1 if cnt == 1 else (2 if cnt == 2 else 4)
        self.n = (self.n + align - 1) // align * align
        b = self.n; self.n += cnt
        assert self.n <= self.limit, f'out of registers {self.n} > {self.limit}'
        return b

class K(Asm):
    def __init__(self):
        super().__init__(); self.vm = []; self.nst = 0; self.nlab = 0; self.names = []
    def vmem(self, text, tag):
        self(text); self.vm.append(tag)
    def vmwait(self, *tags, lgkm=None):
        idx = [i for i, t in enumerate(self.vm) if t in tags]
        s = ''
        if idx:
            n = len(self.vm) - 1 - max(idx)
            s += f' vmcnt({min(n, 63)})'
            self.vm = self.vm[len(self.vm) - n:] if n else []
        if lgkm is not None: s += f' lgkmcnt({lgkm})'
        if s: self('s_waitcnt' + s)
    def vmall(self):
        self('s_waitcnt vmcnt(0)'); self.vm = []
    def emit(self, x):
        if isinstance(x, tuple):
            if x[0] == 'vm': self.vmem(x[1], x[2])
            elif x[0] == 'wait': self.vmwait(*x[1:])
            elif x[0] == 'call': x[1]()
        else: self(x)
    def stamp(self, name='', real=False):
        if not STAMP: return
        if name and name[0] in 'ABCDEFGHI' and name[0] not in os.environ.get('STAMPSET', 'AB'): return
        if name in self.names:
            i = self.names.index(name)
        else:
            i = self.nst; self.nst += 1; self.names.append(name)
        assert i < 19
        self(f's_mem{"real" if real else ""}time s[{60+2*i}:{61+2*i}]')
    def newlabel(self, p):
        self.nlab += 1; return f'L{p}{self.nlab}'

S_W = 3
SRD_X = 4; SRD_WQKV = 8; SRD_WS = 12; SRD_A = 16; SRD_B = 20
P_X, P_WQKV, P_WO, P_W1, P_W3, P_W2, P_OUT, P_WS = 32, 34, 36, 40, 42, 44, 46, 50
S_TAG = 24; S_H = 25; S_TB = 26; S_RB = 27; S_CB = 28; S_TD = 29; S_FS = 30; S_J = 31
S_E0 = 38; S_L0 = 39
S_U0 = 48; S_U1 = 49
S_ONES = 52
T0, T1, T2, T3, T4, T5, T6 = 53, 54, 55, 56, 57, 58, 59
S_SPIN = 98
S_ROT = 39
S_DUM = 100
S_R14 = 0; S_RG = 1
V_LANE = 1; V_OFF = 2; V_FL = 3
V_SRC = 212; V_P13 = 213; V_RD = 214
HKEEP = 216
V_SRC2 = 0
XRES = 204
WOV = 224
PAIR = 57344; SCR = 2 * PAIR; SINGLE = SCR + 16384
NHG = 12
RAW5 = 196

def xm(n):
    if n >= 64: return 's_mov_b64 exec, -1'
    if n < 31: return f's_mov_b64 exec, {hex((1 << n) - 1)}'
    lo = '-1' if n >= 32 else hex((1 << n) - 1)
    return f's_mov_b32 exec_lo, {lo}\ns_mov_b32 exec_hi, {hex((1 << max(0, n - 32)) - 1)}'

def srd(a, d, p, nbytes):
    a(f's_mov_b32 s{d}, s{p}\ns_mov_b32 s{d+1}, s{p+1}\ns_mov_b32 s{d+2}, {nbytes}\ns_mov_b32 s{d+3}, 0x20000')

def halfsum(a, x, t):
    a(f'v_mov_b32 v{t}, v{x}\nv_permlane32_swap_b32 v{x}, v{t}\nv_add_f32 v{x}, v{x}, v{t}')

def flag_store(a, sreg, vt):
    a(f'v_mov_b32 v{vt}, s{S_TAG}\ns_mov_b64 exec, 1')
    a.vmem(f'buffer_store_dword v{vt}, v{V_OFF}, {sr4(SRD_WS)}, s{sreg} offen sc1', 'flag')
    a('s_mov_b64 exec, -1')

def poll_issue(a, sreg, vaddr, nl, vt):
    a(xm(nl))
    a.vmem(f'buffer_load_dword v{vt}, v{vaddr}, {sr4(SRD_WS)}, s{sreg} offen sc1', 'poll')
    a('s_mov_b64 exec, -1')

def poll_check(a, sreg, vaddr, nl, vt):
    L = a.newlabel('poll'); D = L + 'd'
    a(xm(nl) + f'\ns_mov_b32 s{S_SPIN}, 0x40000')
    a.vmwait('poll')
    a(f'v_cmp_ne_u32 vcc, s{S_TAG}, v{vt}\ns_cbranch_vccz {D}')
    a.label(L)
    a(f'''
    s_sleep {opt('sleep', 2)}
    buffer_load_dword v{vt}, v{vaddr}, {sr4(SRD_WS)}, s{sreg} offen sc1
    s_sub_u32 s{S_SPIN}, s{S_SPIN}, 1
    s_waitcnt vmcnt(0)
    s_cbranch_scc1 {D}
    v_cmp_ne_u32 vcc, s{S_TAG}, v{vt}
    s_cbranch_vccnz {L}
    ''')
    a.label(D)
    a('s_mov_b64 exec, -1')

def ssrd(a, D, lim, pa, pb, na, nb, per, u0, u1):
    a(f'''
    s_lshl_b32 s{u0}, s2, 2
    s_add_u32 s{u0}, s{u0}, s{S_W}
    s_mov_b32 s{D+2}, {na}
    s_cmp_ge_u32 s{u0}, {lim}
    s_cselect_b32 s{D}, s{pb}, s{pa}
    s_cselect_b32 s{D+1}, s{pb+1}, s{pa+1}
    s_cselect_b32 s{D+2}, {nb}, s{D+2}
    s_cselect_b32 s{u1}, {lim}, 0
    s_sub_u32 s{u0}, s{u0}, s{u1}
    s_mul_i32 s{u0}, s{u0}, {per}
    s_min_u32 s{u0}, s{u0}, s{D+2}
    s_sub_u32 s{D+2}, s{D+2}, s{u0}
    s_add_u32 s{D}, s{D}, s{u0}
    s_addc_u32 s{D+1}, s{D+1}, 0
    s_mov_b32 s{D+3}, 0x20000
    ''')

def sld(D, o): return f's_buffer_load_dwordx2 s[{S_DUM}:{S_DUM+1}], {sr4(D)}, {o + 60}'

def phase_a(a, R):
    NSLOT = 5
    WR = 81920
    WQ = WR + NSLOT * 8192
    CSP = WQ + 28672
    PRV = CSP + 1536
    QX = 155648
    assert PRV + 2048 <= QX
    R['QX'] = QX
    Q0 = R['Q'][0]
    va = VA(4, 256)
    ACC = [va(16), va(16)]; accQ = va(16)
    PK = va(8); assert PK == Q0, (PK, Q0)
    X = [va(4) for _ in range(28)]
    NWF = 4
    WF = [[va(4) for j in range(2)] for b in range(NWF)]
    vx = [va(), va()]; vw = [va(), va()]
    ax = [va() for _ in range(4)]; aw = [va() for _ in range(4)]; ab = [va() for _ in range(4)]
    pr = [va(2) for _ in range(6)]
    cs = [pr[0], pr[1], pr[2]]; mu = pr[3]; rs = pr[4]; rq = pr[5]
    sm = [pr[0] + 1, pr[1] + 1]; sq = [pr[2] + 1, pr[3] + 1]
    hf = pr[4] + 1; n31 = pr[5] + 1
    vq = va()
    t = [va() for _ in range(7)] + [0]
    dB = t[7]
    assert va.n <= 240, va.n
    T16 = 240; U16 = accQ
    a(f'v_lshrrev_b32 v{hf}, 5, v{V_LANE}\nv_and_b32 v{n31}, 31, v{V_LANE}')
    for i in range(2):
        a(f'''
        v_lshrrev_b32 v{t[0]}, 3, v{V_LANE}
        v_add_u32 v{t[0]}, {8*i}, v{t[0]}
        v_lshrrev_b32 v{t[1]}, 1, v{t[0]}
        v_and_b32 v{t[1]}, 7, v{t[1]}
        v_and_b32 v{t[2]}, 7, v{V_LANE}
        v_xor_b32 v{t[1]}, v{t[1]}, v{t[2]}
        v_lshlrev_b32 v{t[1]}, 4, v{t[1]}
        v_mul_u32_u24 v{t[0]}, 896, v{t[0]}
        v_add_u32 v{vx[i]}, v{t[0]}, v{t[1]}
        ''')
    a(f'''
    v_subrev_u32 v{vx[1]}, 1024, v{vx[1]}
    v_lshrrev_b32 v{t[0]}, 3, v{V_LANE}
    v_lshrrev_b32 v{t[1]}, 2, v{V_LANE}
    v_and_b32 v{t[1]}, 4, v{t[1]}
    v_xor_b32 v{t[1]}, v{t[1]}, v{t[2]}
    v_min_u32 v{t[1]}, 6, v{t[1]}
    v_mul_u32_u24 v{t[0]}, 2688, v{t[0]}
    v_lshl_add_u32 v{vw[0]}, v{t[1]}, 4, v{t[0]}
    v_add_u32 v{vw[1]}, {8*2688 - 1024}, v{vw[0]}
    s_waitcnt lgkmcnt(0)
    ''')
    srd(a, SRD_X, P_X, X_BYTES); srd(a, SRD_WQKV, P_WQKV, WQKV_BYTES)
    SX, SW, LX, LW = T3, T4, T5, T6
    a(f'''
    s_lshl_b32 s{SX}, s{S_TB}, 2
    s_add_u32 s{SX}, s{SX}, s{S_W}
    s_mul_i32 s{SX}, s{SX}, {32*896}
    s_mul_i32 s{SW}, s{S_W}, {16*2688}
    s_lshr_b32 s{T0}, s{S_H}, 1
    s_mul_i32 s{T0}, s{T0}, 112
    s_add_u32 s{SW}, s{SW}, s{T0}
    s_and_b32 s{T0}, s{S_H}, 1
    s_mul_i32 s{T0}, s{T0}, 896
    s_add_u32 s{SW}, s{SW}, s{T0}
    s_add_u32 s{SW}, s{SW}, 896
    s_mul_i32 s{LX}, s{S_W}, 20480
    s_lshl_b32 s{LW}, s{S_W}, 11
    s_add_u32 s{LW}, s{LW}, {WR}
    ''')
    def dma_items(c):
        sl = c % NSLOT
        out = []
        for i in range(2):
            out.append(([f's_add_u32 m0, s{LW}, {sl*8192}', f's_mul_i32 s{T0}, s{S_ROT}, {64*2688}', f's_add_u32 s{T0}, s{T0}, s{SW}'] if i == 0 else []) +
                       [('vm', f'buffer_load_dwordx4 v{vw[i]}, {sr4(SRD_WQKV)}, s{T0} offen offset:{1024*i} lds', f'c{c}')])
        for i in range(4):
            out.append(([f's_add_u32 m0, s{LX}, {sl*4096}'] if i == 0 else []) +
                       ([f's_lshl_b32 s{T0}, s{S_ROT}, 7', f's_add_u32 s{T0}, s{T0}, s{SX}'] if i == 0 else []) +
                       ([f's_add_u32 s{T0}, s{T0}, 12288'] if i == 2 else []) +
                       [('vm', f'buffer_load_dwordx4 v{vx[i&1]}, {sr4(SRD_X)}, s{T0} offen offset:{1024*i} lds', f'c{c}')] +
                       ([f's_add_u32 s{S_ROT}, s{S_ROT}, 1', f's_cmp_eq_u32 s{S_ROT}, 7', f's_cselect_b32 s{S_ROT}, 0, s{S_ROT}'] if i == 3 else []))
        return out
    def dma(c):
        for it in dma_items(c):
            for x in it: a.emit(x)
    a.stamp('G_karg')
    NPRE = opt('npre', 2)
    a(f'''
    s_lshr_b32 s{S_ROT}, s{S_J}, 3
    s_mul_i32 s{S_ROT}, s{S_ROT}, {opt('rotm', 2)}
    s_and_b32 s{T0}, s{S_J}, 7
    s_add_u32 s{S_ROT}, s{S_ROT}, s{T0}
    s_mul_i32 s{T0}, s{S_ROT}, 37
    s_lshr_b32 s{T0}, s{T0}, 8
    s_mul_i32 s{T0}, s{T0}, 7
    s_sub_u32 s{S_ROT}, s{S_ROT}, s{T0}
    s_lshl_b32 s{S_DUM}, s{S_ROT}, 2
    ''')
    for c in range(NPRE): dma(c)
    if opt('touchA', 0):
        HBv = opt('hb', 3); nl = {1: 2, 2: 3, 3: 4, 4: 7}[HBv]; ntok = 4096 >> HBv >> 0
        ntok = (32 >> HBv) * 128
        rows_x = ntok // 128
        a(f'''
        s_lshl_b32 s{T1}, s{S_J}, 2
        s_add_u32 s{T1}, s{T1}, s{S_W}
        s_lshr_b32 s{T2}, s{S_TB}, {5 - HBv}
        s_mul_i32 s{T2}, s{T2}, {ntok * 896}
        s_mul_i32 s{T0}, s{T1}, {rows_x * 896}
        s_add_u32 s{T0}, s{T0}, s{T2}
        ''')
        nx = rows_x * 7
        for i in range(0, nx, 64):
            a(xm(nx - i))
            a.vmem(f'buffer_load_dword a{1 + i // 64}, v{V_FL}, {sr4(SRD_X)}, s{T0} offen', 'touch')
            a(f's_add_u32 s{T0}, s{T0}, 8192')
        per = 4 * 3 * nl
        a(f'''
        s_mov_b64 exec, -1
        v_mul_u32_u24 v{t[3]}, {(65536 + nl - 1) // nl}, v{V_LANE}
        v_lshrrev_b32 v{t[3]}, 16, v{t[3]}
        v_mul_u32_u24 v{t[4]}, {nl}, v{t[3]}
        v_sub_u32 v{t[4]}, v{V_LANE}, v{t[4]}
        v_mul_u32_u24 v{t[3]}, 896, v{t[3]}
        v_lshl_add_u32 v{t[3]}, v{t[4]}, 7, v{t[3]}
        s_mul_i32 s{T0}, s{T1}, {4 * 2688}
        s_lshr_b32 s{T2}, s{S_H}, {HBv}
        s_mul_i32 s{T2}, s{T2}, {56 << HBv}
        s_and_b32 s{T2}, s{T2}, 0xffffff80
        s_add_u32 s{T0}, s{T0}, s{T2}
        {xm(per)}
        ''')
        a.vmem(f'buffer_load_dword a3, v{t[3]}, {sr4(SRD_WQKV)}, s{T0} offen', 'touch')
        a('s_mov_b64 exec, -1')
    a.stamp('G_dma0')
    assert T1 % 2 == 0 and T2 == T1 + 1
    a(f's_add_u32 s{T1}, s{P_WS}, {WS_FLG}\ns_addc_u32 s{T2}, s{P_WS+1}, 0\ns_load_dword s{S_TAG}, s[{T1}:{T2}], 0')
    srd(a, SRD_WS, P_WS, WS_SIZE)
    def touch_item():
        TA, TB, TC = T1, T2, T0
        return [f's_lshl_b32 s{TA}, s2, 2', f's_add_u32 s{TA}, s{TA}, s{S_W}', f's_mul_i32 s{TB}, s{TA}, 1338', f's_lshr_b32 s{TB}, s{TB}, 18',
                f's_mul_i32 s{TC}, s{TB}, 196', f's_sub_u32 s{TA}, s{TA}, s{TC}', f's_lshl_b32 s{TA}, s{TA}, 13',
                f's_cmp_eq_u32 s{TB}, 1', f's_cselect_b32 s{SRD_A}, s{P_W3}, s{P_W1}', f's_cselect_b32 s{SRD_A+1}, s{P_W3+1}, s{P_W1+1}',
                f's_cmp_eq_u32 s{TB}, 2', f's_cselect_b32 s{SRD_A}, s{P_W2}, s{SRD_A}', f's_cselect_b32 s{SRD_A+1}, s{P_W2+1}, s{SRD_A+1}',
                f's_mov_b32 s{SRD_A+2}, {W1_BYTES}',
                f's_cmp_eq_u32 s{TB}, 3', f's_cselect_b32 s{SRD_A}, s{P_WO}, s{SRD_A}', f's_cselect_b32 s{SRD_A+1}, s{P_WO+1}, s{SRD_A+1}',
                f's_cselect_b32 s{SRD_A+2}, {WO_BYTES}, s{SRD_A+2}',
                f's_cmp_gt_u32 s{TB}, 3', f's_cselect_b32 s{SRD_A+2}, 0, s{SRD_A+2}', f's_mov_b32 s{SRD_A+3}, 0x20000',
                ('vm', f'buffer_load_dword a0, v{V_FL}, {sr4(SRD_A)}, s{TA} offen', 'touch')]
    def prew():
        a(f'''
        v_mov_b32 v{t[7]}, s{S_TAG}
        v_add_u32 v{t[7]}, -1, v{t[7]}
        v_lshlrev_b32 v{t[5]}, 2, v{V_LANE}
        {xm(32)}
        s_lshr_b32 s{T1}, s{S_H}, 1
        s_lshl_b32 s{T1}, s{T1}, 2
        s_add_u32 s{T1}, s{T1}, s{S_W}
        s_lshl_b32 s{T1}, s{T1}, 1
        s_and_b32 s{T2}, s{S_H}, 1
        s_add_u32 s{T1}, s{T1}, s{T2}
        s_lshl_b32 s{T1}, s{T1}, 4
        s_add_u32 s{T1}, s{T1}, s{S_TB}
        s_lshl_b32 s{T1}, s{T1}, 7
        s_add_u32 s{T1}, s{T1}, {FL_A}
        ''')
        st_ = lambda: a.vmem(f'buffer_store_dword v{t[7]}, v{t[5]}, {sr4(SRD_WS)}, s{T1} offen sc1', 'prew')
        st_()
        a(f's_lshl_b32 s{T1}, s{S_TB}, 2\ns_add_u32 s{T1}, s{T1}, s{S_W}\ns_lshl_b32 s{T1}, s{T1}, 4\ns_add_u32 s{T1}, s{T1}, s{S_H}\ns_lshl_b32 s{T1}, s{T1}, 7\ns_add_u32 s{T1}, s{T1}, {FL_B}')
        st_()
        a(f's_lshl_b32 s{T1}, s{S_TD}, 2\ns_add_u32 s{T1}, s{T1}, s{S_W}\ns_lshl_b32 s{T1}, s{T1}, 4\ns_add_u32 s{T1}, s{T1}, s{S_FS}\ns_lshl_b32 s{T1}, s{T1}, 7\ns_add_u32 s{T1}, s{T1}, {FL_D1}')
        for i in range(3):
            st_(); a(f's_add_u32 s{T1}, s{T1}, {FLS}')
        a(f'''
        s_lshl_b32 s{T1}, s{S_RB}, 1
        s_and_b32 s{T2}, s{S_W}, 1
        s_add_u32 s{T1}, s{T1}, s{T2}
        s_lshl_b32 s{T1}, s{T1}, 3
        s_add_u32 s{T1}, s{T1}, s{S_CB}
        s_lshl_b32 s{T1}, s{T1}, 1
        s_lshr_b32 s{T2}, s{S_W}, 1
        s_add_u32 s{T1}, s{T1}, s{T2}
        s_lshl_b32 s{T1}, s{T1}, 7
        s_add_u32 s{T1}, s{T1}, {FL_C}
        s_cmp_ge_u32 s{S_J}, 28
        s_cselect_b32 s{T1}, 0x40000000, s{T1}
        ''')
        st_()
        a('s_mov_b64 exec, -1')
    def dmaq_items():
        out = []
        for i in range(7):
            out.append([] +
                       [f's_add_u32 m0, s{S_U0}, {i*1024}', f's_mul_i32 s{T0}, s{S_U1}, {16*2688}', f's_add_u32 s{T0}, s{T0}, s{S_E0}',
                        ('vm', f'buffer_load_dwordx4 v{vq}, {sr4(SRD_WQKV)}, s{T0} offen lds', 'wq'),
                        f's_add_u32 s{S_U1}, s{S_U1}, 1', f's_cmp_eq_u32 s{S_U1}, 28', f's_cselect_b32 s{S_U1}, 0, s{S_U1}'])
        return out
    a(f'''
    s_mul_i32 s{S_U0}, s{S_W}, {7*1024}
    s_add_u32 s{S_U0}, s{S_U0}, {WQ}
    s_mul_i32 s{S_U1}, s{S_W}, 7
    s_add_u32 s{S_U1}, s{S_U1}, s{S_DUM}
    s_cmp_ge_u32 s{S_U1}, 28
    s_cselect_b32 s{T0}, 28, 0
    s_sub_u32 s{S_U1}, s{S_U1}, s{T0}
    s_mul_i32 s{S_E0}, s{S_H}, 56
    ''')
    a(f'''
    v_lshrrev_b32 v{t[0]}, 2, v{V_LANE}
    v_mul_u32_u24 v{t[0]}, 2688, v{t[0]}
    v_and_b32 v{t[3]}, 3, v{V_LANE}
    v_lshl_add_u32 v{vq}, v{t[3]}, 4, v{t[0]}
    v_lshrrev_b32 v{t[0]}, 1, v{n31}
    v_and_b32 v{t[0]}, 7, v{t[0]}
    v_lshlrev_b32 v{t[1]}, 7, v{n31}
    v_add_u32 v{t[1]}, s{LX}, v{t[1]}
    v_bfe_u32 v{t[2]}, v{V_LANE}, 4, 1
    v_lshlrev_b32 v{t[2]}, 5, v{t[2]}
    v_lshl_add_u32 v{t[2]}, v{t[3]}, 3, v{t[2]}       ; cg*32 + c4*8
    v_bfe_u32 v{t[3]}, v{V_LANE}, 2, 2                ; r
    v_lshl_add_u32 v{t[5]}, v{hf}, 3, v{t[3]}         ; 8hf + r
    v_lshl_add_u32 v{t[6]}, v{t[5]}, 6, v{t[2]}
    v_bfe_u32 v{t[3]}, v{V_LANE}, 3, 1
    v_lshlrev_b32 v{t[3]}, 6, v{t[3]}                 ; 64*bit
    v_add_u32 v{t[4]}, 56, v{t[2]}
    v_xor_b32 v{t[4]}, v{t[4]}, v{t[3]}
    v_xor_b32 v{t[2]}, v{t[2]}, v{t[3]}
    v_sub_u32 v{dB}, v{t[4]}, v{t[2]}
    v_lshl_add_u32 v{t[2]}, v{t[5]}, 7, v{t[2]}
    v_add_u32 v{t[2]}, {WR}, v{t[2]}
    ''')
    AQ = t[6]
    for n in range(4):
        a(f'''
        s_add_u32 s{T0}, s{S_W}, {n}
        s_and_b32 s{T0}, s{T0}, 3
        s_lshl_b32 s{T1}, s{T0}, 1
        v_add_u32 v{t[4]}, s{T1}, v{hf}
        v_xor_b32 v{t[4]}, v{t[4]}, v{t[0]}
        v_lshl_add_u32 v{ax[n]}, v{t[4]}, 4, v{t[1]}
        s_lshl_b32 s{T1}, s{T0}, 11
        v_add_u32 v{aw[n]}, s{T1}, v{t[2]}
        v_add_u32 v{ab[n]}, v{dB}, v{aw[n]}
        ''')
    for r in sm + sq + cs: a(f'v_mov_b32 v{r}, 0')
    a(f's_mov_b32 s{S_ONES}, 0x3f803f80')
    PA = t[0]; CA = t[1]; CR = t[2]; PB = vx[0]
    def reads(s_):
        c, n = divmod(s_, 4); sl = c % NSLOT; b = s_ % NWF
        return [f'ds_read_b128 {vr(X[s_],4)}, v{ax[n]} offset:{sl*4096}'] + \
               [f'ds_read_b64_tr_b16 {vr(WF[b][0]+2*u,2)}, v{aw[n]} offset:{sl*8192 + u*512}' for u in range(2)] + \
               [f'ds_read_b64_tr_b16 {vr(WF[b][1]+2*u,2)}, v{ab[n]} offset:{sl*8192 + u*512}' for u in range(2)]
    if opt('spre', 1):
        ssrd(a, SRD_A, 512, P_W1, P_W3, W1_BYTES, W1_BYTES, 3200, T1, T2)
        for i in range(opt('spreA', 0)): a(sld(SRD_A, 128*i))
    a.stamp('A_issued')
    a.vmwait('c0', lgkm=0); a('s_barrier'); a.stamp('A_c0')
    a(f's_add_u32 s{S_TAG}, s{S_TAG}, 1')
    for x in reads(0) + reads(1): a(x)
    a(f's_bitcmp1_b32 s{S_H}, 0\ns_cbranch_scc1 LAV')
    vm0 = list(a.vm)
    for typ in range(2):
        if typ == 1:
            a.label('LAV'); a.vm = list(vm0)
        step = 0
        q_dma = []
        for c in range(NPRE, 7): q_dma += [(max(0, c - NSLOT + 1), it) for it in dma_items(c)]
        wq0 = opt('wq0', 11); wqs = opt('wqs', 2)
        NQE = opt('nqe', 7)
        q_dma += [(0, [('at', wq0 + wqs*i)] + it) for i, it in enumerate(dmaq_items()) if i < NQE]
        pass
        if opt('prew', 1): q_dma.insert(len(q_dma) - NQE, (0, [('at', opt('prewat', 12)), ('call', prew)]))
        PER = opt('dmaper', 1); cur = [0]
        def side(c):
            for _ in range(PER):
                if q_dma and q_dma[0][0] <= c:
                    x0 = q_dma[0][1][0]
                    if isinstance(x0, tuple) and x0[0] == 'at' and x0[1] > cur[0]: return
                    for x in q_dma.pop(0)[1]: a.emit(x)
        def dots(c):
            for n in range(4):
                x = X[4*c+n]
                for i in range(4):
                    a(f'v_dot2c_f32_bf16 v{sm[i&1]}, s{S_ONES}, v{x+i}')
                    a(f'v_dot2c_f32_bf16 v{sq[i&1]}, v{x+i}, v{x+i}')
                side(c + 1)
        def mf(step_, j):
            x = X[step_]; b = step_ % NWF
            A_, B_ = (WF[b][j], x) if typ == 0 else (x, WF[b][j])
            return f'{MFMA} {vr(ACC[j],16)}, {vr(A_,4)}, {vr(B_,4)}, {vr(ACC[j],16) if step_ else 0}'
        def csdots(step_):
            for i in range(4):
                for j in range(2): a(f'v_dot2c_f32_bf16 v{cs[1+j]}, s{S_ONES}, v{WF[step_ % NWF][j]+i}')
        for c in range(6):
            for n in range(4):
                if n == 2:
                    while q_dma and any(isinstance(x, tuple) and x[0] == 'vm' and x[2] == f'c{c+1}' for _, it in q_dma for x in it):
                        assert q_dma[0][0] <= c
                        for x in q_dma.pop(0)[1]: a.emit(x)
                    a.stamp(f'G_pre{c+1}')
                    a.vmwait(f'c{c+1}', lgkm=0); a('s_barrier')
                    a.stamp(f'G_c{c+1}')
                else:
                    a('s_waitcnt lgkmcnt(5)')
                rd = reads(step + 2)
                if n == 0: csdots(step)
                for j in range(2):
                    a(mf(step, j))
                    for y in (rd[:3] if j == 0 else rd[3:]): a(y)
                    side(c + (1 if n >= 2 else 0))
                step += 1; cur[0] = step
            if c == 5:
                for y in reads(26) + reads(27): a(y)
            dots(c)
        a('s_waitcnt lgkmcnt(0)')
        cur[0] = 24
        csdots(24); dots(6)
        while q_dma:
            for x in q_dma.pop(0)[1]: a.emit(x)
        hs = lambda x, tt: [f'v_mov_b32 v{tt}, v{x}', f'v_permlane32_swap_b32 v{x}, v{tt}', f'v_add_f32 v{x}, v{x}, v{tt}']
        ex = hs(cs[1], t[3]) + hs(cs[2], t[4]) + [
            f's_mul_i32 s{T0}, s{S_W}, 384', f's_add_u32 s{T0}, s{T0}, {CSP}', f'v_lshlrev_b32 v{t[7]}, 2, v{n31}', f'v_add_u32 v{CA}, s{T0}, v{t[7]}',
            f'ds_write_b32 v{CA}, v{cs[1]} offset:128', f'ds_write_b32 v{CA}, v{cs[2]} offset:256',
            f'v_add_f32 v{sm[0]}, v{sm[0]}, v{sm[1]}', f'v_add_f32 v{sq[0]}, v{sq[0]}, v{sq[1]}'] + hs(sm[0], t[3]) + hs(sq[0], t[4]) + [
            f'v_mul_u32_u24 v{CR}, 768, v{hf}', f'v_add_u32 v{CR}, v{CR}, v{t[7]}', f'v_add_u32 v{CR}, {CSP}, v{CR}',
            's_waitcnt lgkmcnt(0)', 's_barrier']
        for j in (1, 2): ex += [f'ds_read_b32 v{cs[j]}, v{CR} offset:{j*128}', f'ds_read_b32 v{t[3+j]}, v{CR} offset:{384 + j*128}']
        ex += [f'v_mul_f32 v{mu}, {fx(1.0/448)}, v{sm[0]}', f'v_mul_f32 v{t[3]}, {fx(1.0/448)}, v{sq[0]}',
               f'v_fma_f32 v{t[3]}, -v{mu}, v{mu}, v{t[3]}', f'v_max_f32 v{t[3]}, 0, v{t[3]}', f'v_add_f32 v{t[3]}, {fx(1e-5)}, v{t[3]}',
               f'v_rsq_f32 v{rs}, v{t[3]}', f's_lshl_b32 s{T0}, s{S_W}, 9', f's_add_u32 s{T0}, s{T0}, {PRV}',
               f'v_add_u32 v{PA}, s{T0}, v{t[7]}', f'v_lshlrev_b32 v{PB}, 4, v{hf}', f'v_add_u32 v{PB}, s{T0}, v{PB}']
        if typ == 1:
            ex += [f'ds_write_b32 v{PA}, v{mu} offset:256', f'ds_write_b32 v{PA}, v{rs} offset:384']
            for q in range(4): ex += [f'ds_read_b128 {vr(T16+4*q,4)}, v{PB} offset:{256 + 32*q}', f'ds_read_b128 {vr(U16+4*q,4)}, v{PB} offset:{384 + 32*q}']
            ex += ['s_waitcnt lgkmcnt(10)']
        else:
            ex += ['s_waitcnt lgkmcnt(0)']
        for j in (1, 2): ex += [f'v_add_f32 v{cs[j]}, v{cs[j]}, v{t[3+j]}']
        ex += hs(cs[1], t[3]) + hs(cs[2], t[4])
        if typ == 0:
            ex += [f'ds_write_b32 v{PA}, v{cs[1]}', f'ds_write_b32 v{PA}, v{cs[2]} offset:128']
            ex += [f'ds_read_b128 {vr(T16+4*q,4)}, v{PB} offset:{32*q}' for q in range(4)]
            ex += [f'ds_read_b128 {vr(U16+4*q,4)}, v{PB} offset:{128 + 32*q}' for q in range(4)]
            ex += [f'v_cmp_lt_u32 vcc, 31, v{V_LANE}']
        else:
            ex += [f'v_cmp_eq_u32 vcc, 28, v{n31}', f'v_mov_b32 v{t[7]}, s{S_ONES}', f'v_cndmask_b32 v{t[7]}, 0, v{t[7]}, vcc', f'v_cmp_lt_u32 vcc, 27, v{n31}']
        ex += [f'v_mul_f32 v{rq}, {fx(28**-0.5 * math.log2(math.e))}, v{rs}',
               f's_lshl_b32 s{T0}, s{S_TB}, 2', f's_add_u32 s{T0}, s{T0}, s{S_W}', f's_and_b32 s{T1}, s{S_H}, 14', f's_lshl_b32 s{T1}, s{T1}, 6',
               f's_add_u32 s{T0}, s{T0}, s{T1}', f's_lshl_b32 s{T0}, s{T0}, 12', f's_add_u32 s{T1}, s{T0}, {64*4096}']
        order = [(st_, 0) for st_ in range(24, 28)] + [(st_, 1) for st_ in range(24, 28)]
        per = opt('exper', 6)
        for st_, j in order:
            a(mf(st_, j))
            for x in ex[:per]: a(x)
            ex = ex[per:]
        for x in ex: a(x)
        a.stamp('A_kvloop')
        NEG1 = 'op_sel_hi:[1,0,1] neg_lo:[0,1,0] neg_hi:[0,1,0]'
        for j in range(2):
            A_ = ACC[j]; P_ = WF[j][0]
            if typ == 0:
                a(f's_waitcnt lgkmcnt({4*(1-j)})')
                C_ = (T16, U16)[j]
                for r in range(0, 16, 2): a(f'v_pk_fma_f32 {vr(A_+r,2)}, {vr(C_+r,2)}, {vr(mu,2)}, {vr(A_+r,2)} {NEG1}')
                for r in range(0, 16, 2): a(f'v_pk_mul_f32 {vr(A_+r,2)}, {vr(A_+r,2)}, {vr(rs,2)} op_sel_hi:[1,0]')
                for i in range(8): a(f'v_cvt_pk_bf16_f32 v{P_+i}, v{A_+2*i}, v{A_+2*i+1}')
                if j == 0: a(f'v_mov_b32 v{t[3]}, s{S_ONES}\nv_mov_b32 v{t[4]}, 0x3f80')
                a(f'v_cndmask_b32 v{P_+6}, v{P_+6}, v{t[3]}, vcc\nv_cndmask_b32 v{P_+7}, v{P_+7}, v{t[4]}, vcc')
            else:
                if j == 0: a('s_waitcnt lgkmcnt(0)')
                for r in range(0, 16, 2): a(f'v_pk_fma_f32 {vr(A_+r,2)}, {vr(T16+r,2)}, {vr(cs[1+j],2)}, {vr(A_+r,2)} {NEG1}')
                for r in range(0, 16, 2): a(f'v_pk_mul_f32 {vr(A_+r,2)}, {vr(A_+r,2)}, {vr(U16+r,2)}')
                for i in range(8): a(f'v_cvt_pk_bf16_f32 v{P_+i}, v{A_+2*i}, v{A_+2*i+1}')
                for i in range(8): a(f'v_cndmask_b32 v{P_+i}, v{P_+i}, v{t[7]}, vcc')
            for u in range(2):
                a.vmem(f'buffer_store_dwordx4 {vr(P_+4*u,4)}, v{V_OFF}, {sr4(SRD_WS)}, s{(T0, T1)[j]} offen offset:{2048*typ + 1024*u} sc1', 'stA')
        if typ == 0: a('s_branch LAQ')
    a.label('LAQ')
    a.stamp('A_kvst')
    aq = aw
    for n in range(4):
        a(f'''
        s_add_u32 s{T0}, s{S_W}, {n}
        s_and_b32 s{T0}, s{T0}, 3
        s_lshl_b32 s{T0}, s{T0}, 10
        s_add_u32 s{T0}, s{T0}, {WQ}
        v_add_u32 v{aq[n]}, s{T0}, v{AQ}
        ''')
    a(f'''
    s_lshr_b32 s{T1}, s{S_H}, 1
    s_lshl_b32 s{T1}, s{T1}, 2
    s_add_u32 s{T1}, s{T1}, s{S_W}
    s_lshl_b32 s{T1}, s{T1}, 12
    s_add_u32 s{T5}, s{T1}, {FL_A}
    s_and_b32 s{T1}, s{S_H}, 1
    s_lshl_b32 s{T1}, s{T1}, 4
    s_add_u32 s{T1}, s{T1}, s{S_TB}
    s_lshl_b32 s{T1}, s{T1}, 7
    s_add_u32 s{T1}, s{T5}, s{T1}
    ''')
    def publish():
        a.vmwait('stA'); flag_store(a, T1, t[3]); a.stamp('A_flag')
    FAQ = opt('fAq', 7)
    for i, it in enumerate(dmaq_items()):
        if i >= NQE:
            for x in it: a.emit(x)
        if i == FAQ: publish()
    a.vmwait('wq'); a('s_barrier')
    a.stamp('A_wq')
    QB = [ACC[0] + 4*i for i in range(8)]
    NQ = 8
    def rdq(s_):
        c, n = divmod(s_, 4)
        for u in range(2): a(f'ds_read_b64_tr_b16 {vr(QB[s_ % NQ]+2*u,2)}, v{aq[n]} offset:{c*4096 + u*256}')
    AH = 5
    for s_ in range(AH): rdq(s_)
    hs = lambda x, tt: [f'v_mov_b32 v{tt}, v{x}', f'v_permlane32_swap_b32 v{x}, v{tt}', f'v_add_f32 v{x}, v{x}, v{tt}']
    ex = []
    for s_ in range(28):
        if s_ + AH < 28:
            a(f's_waitcnt lgkmcnt({2*(AH-1)})')
        elif s_ == 28 - AH:
            a('s_waitcnt lgkmcnt(0)')
            for i in range(4): a(f'v_dot2c_f32_bf16 v{cs[0]}, s{S_ONES}, v{QB[24 % NQ]+i}')
            ex = hs(cs[0], t[4]) + [f'ds_write_b32 v{CA}, v{cs[0]}', 's_waitcnt lgkmcnt(0)', 's_barrier',
                 f'ds_read_b32 v{cs[0]}, v{CR}', f'ds_read_b32 v{t[4]}, v{CR} offset:384', f'v_cmp_lt_u32 vcc, 31, v{V_LANE}', 's_waitcnt lgkmcnt(0)',
                 f'v_add_f32 v{cs[0]}, v{cs[0]}, v{t[4]}'] + hs(cs[0], t[4]) + [f'ds_write_b32 v{PA}, v{cs[0]}'] + \
                 [f'ds_read_b128 {vr(T16+4*q,4)}, v{PB} offset:{32*q}' for q in range(4)]
        if s_ % 4 == 0 and s_ < 24:
            for i in range(4): a(f'v_dot2c_f32_bf16 v{cs[0]}, s{S_ONES}, v{QB[s_ % NQ]+i}')
        a(f'{MFMA} {vr(accQ,16)}, {vr(QB[s_ % NQ],4)}, {vr(X[s_],4)}, {vr(accQ,16) if s_ else 0}')
        if s_ + AH < 28: rdq(s_ + AH)
        for x in ex[:4]: a(x)
        ex = ex[4:]
        if s_ == opt('fAs', 20) and FAQ > 6: publish()
    for x in ex: a(x)
    if opt('pollA', 1) == 2: poll_issue(a, T5, V_FL, 32, R['t'][0])
    a('s_waitcnt lgkmcnt(0)')
    NEG1 = 'op_sel_hi:[1,0,1] neg_lo:[0,1,0] neg_hi:[0,1,0]'
    for r in range(0, 16, 2): a(f'v_pk_fma_f32 {vr(accQ+r,2)}, {vr(T16+r,2)}, {vr(mu,2)}, {vr(accQ+r,2)} {NEG1}')
    for r in range(0, 16, 2): a(f'v_pk_mul_f32 {vr(accQ+r,2)}, {vr(accQ+r,2)}, {vr(rq,2)} op_sel_hi:[1,0]')
    for i in range(8): a(f'v_cvt_pk_bf16_f32 v{Q0+i}, v{accQ+2*i}, v{accQ+2*i+1}')
    for i in (6, 7): a(f'v_cndmask_b32_e64 v{Q0+i}, v{Q0+i}, 0, vcc')
    a.stamp('A_q')

def w13_setup(a, S13, L13):
    a(f'''
    s_cmp_lt_u32 s{S_W}, 2
    s_cselect_b32 s{SRD_B}, s{P_W1}, s{P_W3}
    s_cselect_b32 s{SRD_B+1}, s{P_W1+1}, s{P_W3+1}
    s_mov_b32 s{SRD_B+2}, {W1_BYTES}
    s_mov_b32 s{SRD_B+3}, 0x20000
    s_and_b32 s{T0}, s{S_W}, 1
    s_mul_i32 s{T0}, s{T0}, 7
    s_add_u32 s{T0}, s{T0}, s{S_R14}
    s_sub_u32 s{S_RG}, s{T0}, 14
    s_min_u32 s{S_RG}, s{S_RG}, s{T0}
    s_mul_i32 s{S_RG}, s{S_RG}, {32*3584}
    s_mul_i32 s{S13}, s{S_FS}, 224
    s_mul_i32 s{L13}, s{S_W}, 14336
    ''')

def rg_next():
    return [f's_add_u32 s{S_RG}, s{S_RG}, {32*3584}', f's_sub_u32 s{T0}, s{S_RG}, {14*32*3584}', f's_min_u32 s{S_RG}, s{S_RG}, s{T0}']

def pair_dma(S13, L13, slot, col, i, tag):
    return [f's_add_u32 m0, s{L13}, {slot*PAIR + i*1024}',
            f's_add_u32 s{T0}, s{S13}, s{S_RG}'] + ([f's_add_u32 s{T0}, s{T0}, {16*3584}'] if i & 1 else []) + \
           [('vm', f'buffer_load_dwordx4 v{V_P13}, {sr4(SRD_B)}, s{T0} offen lds', tag)] + (rg_next() if i & 1 else [])

def alloc_b():
    va = VA(4, 204)
    KV = [va(16) for _ in range(3)] + ([WOV] if opt('nkv', 4) == 4 else [])
    Q = [va(8) for _ in range(4)]
    O = [va(16) for _ in range(4)]
    S = [va(16), va(16)]
    P = [va(8), va(8)]
    t = [va() for _ in range(8)]
    v5 = 215 + 8
    return dict(KV=KV, Q=Q, O=O, S=S, P=P, t=t, v5=v5)

def phase_b(a, R, stg):
    KV, Q, O, S, P, t, v5 = (R[k] for k in ('KV', 'Q', 'O', 'S', 'P', 't', 'v5'))
    QX = R['QX']
    S13, L13, SKV, SB = T3, T4, T6, T2
    qa = t[4:8]
    MA = [240, 241, 242, 243]; VKV = 244; VP2 = 245; VX = 246
    a(f'''
    s_lshl_b32 s{SKV}, s{S_H}, 6
    s_add_u32 s{SKV}, s{SKV}, s{S_W}
    s_lshl_b32 s{SKV}, s{SKV}, 12
    v_add_u32 v{VKV}, s{SKV}, v{V_OFF}
    s_lshl_b32 s{SB}, s{S_TB}, 14
    ''')
    if opt('pollA', 1) == 1:
        if opt('dlyA', 4): a(f"s_sleep {opt('dlyA', 4)}")
        poll_issue(a, T5, V_FL, 32, t[0])
    a.stamp('B_pre')
    poll_check(a, T5, V_FL, 32, t[0])
    a.stamp('B_poll')
    def kvload(buf):
        return [('vm', f'buffer_load_dwordx4 {vr(KV[buf]+4*j,4)}, v{VKV}, {sr4(SRD_WS)}, s{SB} offen offset:{1024*j} sc1', f'k{buf}' if j < 2 else f'kv{buf}') for j in range(4)] + \
               [f's_add_u32 s{SB}, s{SB}, 0x4000', f's_and_b32 s{SB}, s{SB}, 0x3c000']
    NKV = len(KV)
    NK0 = opt('nk0', 1)
    for b in range(NK0):
        for x in kvload(b): a.emit(x)
    for lq in range(4):
        a(f'''
        s_add_u32 s{T0}, s{S_W}, {lq}
        s_and_b32 s{T0}, s{T0}, 3
        s_lshl_b32 s{T0}, s{T0}, 11
        s_add_u32 s{T0}, s{T0}, {QX}
        v_add_u32 v{qa[lq]}, s{T0}, v{V_OFF}
        ''')
    a(f'ds_write_b128 v{qa[0]}, {vr(Q[0],4)}')
    stg.src_setup(t[1], t[2], t[3])
    w13_setup(a, S13, L13)
    a(f'''
    s_lshl_b32 s{T0}, s{S_E0}, 5
    s_add_u32 s{S13}, s{S13}, s{T0}
    s_and_b32 s{T0}, s{S_W}, 2
    v_and_b32 v{t[1]}, 3, v{V_LANE}
    v_xor_b32 v{t[1]}, s{T0}, v{t[1]}
    v_lshrrev_b32 v{t[2]}, 2, v{V_LANE}
    v_mul_u32_u24 v{t[2]}, 3584, v{t[2]}
    v_lshl_add_u32 v{V_P13}, v{t[1]}, 4, v{t[2]}
    s_lshl_b32 s{T0}, s{T0}, 1
    v_lshrrev_b32 v{t[1]}, 1, v{V_LANE}
    v_xor_b32 v{t[1]}, s{T0}, v{t[1]}
    v_mul_u32_u24 v{t[1]}, 3584, v{t[1]}
    v_and_b32 v{t[2]}, 1, v{V_LANE}
    v_lshl_add_u32 v{v5}, v{t[2]}, 4, v{t[1]}
    v_add_u32 v{VP2}, {16*3584 - 1024}, v{V_P13}
    s_waitcnt lgkmcnt(0)
    s_barrier
    ''')
    for lq in range(4):
        a(f'''
        s_add_u32 s{T0}, s{S_W}, {lq}
        s_and_b32 s{T0}, s{T0}, 3
        s_mul_i32 s{T0}, s{T0}, 12288
        s_add_u32 s{T0}, s{T0}, {SCR}
        v_add_u32 v{MA[lq]}, s{T0}, v{V_OFF}
        ''')
    a(f'''
    s_and_b32 s{SKV}, s{S_W}, 1
    s_lshl_b32 s{T0}, s{S_RB}, 1
    s_add_u32 s{SKV}, s{SKV}, s{T0}
    s_mul_i32 s{SKV}, s{SKV}, {32*896}
    s_lshr_b32 s{T0}, s{S_W}, 1
    s_lshl_b32 s{T0}, s{T0}, 6
    s_add_u32 s{SKV}, s{SKV}, s{T0}
    s_lshl_b32 s{T0}, s{S_CB}, 7
    s_add_u32 s{SKV}, s{SKV}, s{T0}
    v_and_b32 v{VX}, 31, v{V_LANE}
    v_lshrrev_b32 v{t[1]}, 5, v{V_LANE}
    v_mul_u32_u24 v{VX}, 896, v{VX}
    v_lshl_add_u32 v{VX}, v{t[1]}, 4, v{VX}
    ''')
    for lq in range(1, 4): a(f'ds_read_b128 {vr(Q[lq],4)}, v{qa[lq]}')
    spre = []; spre2 = []
    if opt('spre', 1):
        ssrd(a, SRD_WQKV, 784, P_W2, P_WO, W2_BYTES, WO_BYTES, 2048, S_U0, S_U1)
        spre = [[sld(SRD_A, 128*i)] for i in range(opt('spreA', 0), 25)]
        spre2 = [[sld(SRD_WQKV, 128*i)] for i in range(16)]
        if opt('spre0', 0):
            a('s_waitcnt lgkmcnt(0)')
            for _ in range(opt('spre0', 0)): a(spre.pop(0)[0])
    NK1 = opt('nk1', 2)
    for b in range(NK0, NK1):
        for x in kvload(b): a.emit(x)
    s_kv = []
    for T in range(NK1, NKV):
        s_kv += [(opt('kvS', 2) * (6 * (T - NK1) + k_), x) for k_, x in enumerate(kvload(T))]
    for T in range(NKV, 16):
        s_kv += [(16 * (T - NKV + 1) + 3 + opt('kvS', 2) * k_, x) for k_, x in enumerate(kvload(T % NKV))]
    s_w = []; wp = [opt('preP', 70)]
    for g in range(7):
        it = (rg_next() if g else []) + [f's_add_u32 s{T0}, s{S13}, s{S_RG}']
        for sl in range(2):
            it += [f's_add_u32 m0, s{L13}, {sl*PAIR + 2*g*1024 - 64*sl}',
                   ('vm', f'buffer_load_dwordx4 v{V_P13}, {sr4(SRD_B)}, s{T0} offen offset:{64*sl} lds', 'w13'),
                   ('vm', f'buffer_load_dwordx4 v{VP2}, {sr4(SRD_B)}, s{T0} offen offset:{1024 + 64*sl} lds', 'w13')]
        it += [('vm', f'buffer_load_dwordx4 {vr(RAW5+4*g,4,"a")}, v{v5}, {sr4(SRD_B)}, s{T0} offen offset:128', 'w13')]
        for x in it:
            if isinstance(x, tuple):
                s_w.append((wp[0], x)); wp[0] += opt('preS', 5)
            else: s_w.append((wp[0] - 4, x))
    s_s = [(4 + opt('sS', 4) * k_, x[0]) for k_, x in enumerate(spre + spre2)]
    s_x = [(opt('xrP', 40), ('vm', f'buffer_load_dwordx4 {vr(XRES,4)}, v{VX}, {sr4(SRD_X)}, s{SKV} offen', 'xr')),
           (opt('xrP', 40) + 6, ('vm', f'buffer_load_dwordx4 {vr(XRES+4,4)}, v{VX}, {sr4(SRD_X)}, s{SKV} offen offset:32', 'xr'))]
    if opt('noW', 0): s_w = []
    if opt('noS', 0): s_s = []
    if opt('noKV', 0): s_kv = []
    streams = [s_kv, s_w, s_x, s_s]
    a.vmwait('k0')
    a(f'{MFMA} {vr(S[0],16)}, {vr(KV[0],4)}, {vr(Q[0],4)}, 0')
    a(f'{MFMA} {vr(S[0],16)}, {vr(KV[0]+4,4)}, {vr(Q[0]+4,4)}, {vr(S[0],16)}')
    a(f'v_cmp_lt_u32 vcc, 31, v{V_LANE}')
    a(f'v_max3_f32 v{t[0]}, v{S[0]}, v{S[0]+1}, v{S[0]+2}\nv_max3_f32 v{t[1]}, v{S[0]+3}, v{S[0]+4}, v{S[0]+5}')
    for r in range(6, 14, 4):
        a(f'v_max3_f32 v{t[0]}, v{t[0]}, v{S[0]+r}, v{S[0]+r+1}\nv_max3_f32 v{t[1]}, v{t[1]}, v{S[0]+r+2}, v{S[0]+r+3}')
    a(f'''
    v_max3_f32 v{t[0]}, v{t[0]}, v{S[0]+14}, v{S[0]+15}
    v_max_f32 v{t[0]}, v{t[0]}, v{t[1]}
    v_mov_b32 v{t[1]}, v{t[0]}
    v_permlane32_swap_b32 v{t[0]}, v{t[1]}
    v_max_f32 v{t[0]}, v{t[0]}, v{t[1]}
    v_cvt_pk_bf16_f32 v{t[0]}, -v{t[0]}, 0
    v_cndmask_b32 v{Q[0]+6}, v{Q[0]+6}, v{t[0]}, vcc
    ds_write_b128 v{qa[0]}, {vr(Q[0]+4,4)} offset:1024
    v_lshlrev_b32 v{t[2]}, 16, v{t[0]}
    ''')
    assert t[2] % 2 == 0
    for r in range(0, 16, 2): a(f'v_pk_add_f32 {vr(S[0]+r,2)}, {vr(S[0]+r,2)}, {vr(t[2],2)} op_sel_hi:[1,0]')
    a('s_waitcnt lgkmcnt(0)\ns_barrier')
    for lq in range(1, 4): a(f'ds_read_b128 {vr(Q[lq]+4,4)}, v{qa[lq]} offset:1024')
    if opt('stag', 0):
        Ls = a.newlabel('stag')
        for w in range(1, 4):
            a(f's_cmp_lt_u32 s{S_W}, {w}\ns_cbranch_scc1 {Ls}')
            for _ in range(opt('stag', 0)): a('s_nop 15')
        a.label(Ls)
    a.stamp('B_first')
    def slot(T, q):
        cb = q & 1; nb = cb ^ 1
        kvn, nq = (T % NKV, q + 1) if q < 3 else ((T + 1) % NKV, 0)
        kvp, pq = (T % NKV, q - 1) if q else ((T - 1) % NKV, 3)
        no_qk = (T == 15 and q == 3); no_pv = (T == 0 and q == 0); first = (T == 0 or (T == 1 and q == 0))
        M = [None if no_qk else f'{MFMA} {vr(S[nb],16)}, {vr(KV[kvn],4)}, {vr(Q[nq],4)}, 0',
             None if no_qk else f'{MFMA} {vr(S[nb],16)}, {vr(KV[kvn]+4,4)}, {vr(Q[nq]+4,4)}, {vr(S[nb],16)}',
             None if no_pv else f'{MFMA} {vr(O[pq],16)}, {vr(KV[kvp]+8,4)}, {vr(P[nb],4)}, {0 if first else vr(O[pq],16)}',
             None if no_pv else f'{MFMA} {vr(O[pq],16)}, {vr(KV[kvp]+12,4)}, {vr(P[nb]+4,4)}, {vr(O[pq],16)}']
        e = lambda r: f'v_exp_f32 v{S[cb]+r}, v{S[cb]+r}'
        c = lambda j: f'v_cvt_pk_bf16_f32 v{P[cb]+j}, v{S[cb]+2*j}, v{S[cb]+2*j+1}'
        seq = [M[0], e(0), e(1), e(2), c(0), e(3), e(4), M[1], c(1), e(5), e(6), c(2), e(7), e(8),
               M[2], c(3), e(9), e(10), c(4), e(11), e(12), M[3], c(5), e(13), e(14), e(15), c(6), c(7)]
        if T == 0 and q == 0: seq.insert(7, 's_waitcnt lgkmcnt(0)')
        for k_, x in enumerate(seq):
            if x is not None: a(x)
            if x is None or x.startswith('v_mfma'):
                mi = pos[0] & 3
                if mi == 3 and q == 2 and T < 15: a.vmwait(f'kv{(T+1)%NKV}')
                elif mi == 3 and q == 0 and T == 0: a.vmwait('kv0')
                else:
                    for st_ in streams:
                        if st_ and st_[0][0] <= pos[0]:
                            a.emit(st_.pop(0)[1]); break
                pos[0] += 1
    pos = [0]
    for T in range(16):
        for q in range(4): slot(T, q)
    assert not any(streams), [len(x) for x in streams]
    a(f'{MFMA} {vr(O[3],16)}, {vr(KV[15 % NKV]+8,4)}, {vr(P[1],4)}, {vr(O[3],16)}')
    a(f'{MFMA} {vr(O[3],16)}, {vr(KV[15 % NKV]+12,4)}, {vr(P[1]+4,4)}, {vr(O[3],16)}')
    a.stamp('B_loop')
    stg.queue(opt('hgM', 4))
    for lq in range(1, 4):
        for j in range(4):
            a(f'ds_write_b128 v{MA[lq]}, {vr(O[lq]+4*j,4)} offset:{(lq-1)*4096 + j*1024}'); stg.one()
    a(f'''
    s_lshl_b32 s{T0}, s{S_TB}, 2
    s_add_u32 s{T0}, s{T0}, s{S_W}
    s_lshl_b32 s{T0}, s{T0}, 4
    s_add_u32 s{T0}, s{T0}, s{S_H}
    s_lshl_b32 s{T5}, s{T0}, 7
    s_add_u32 s{T5}, s{T5}, {FL_B}
    s_lshl_b32 s{T0}, s{T0}, 11
    s_add_u32 s{T0}, s{T0}, {WS_O}
    v_mov_b32 v{t[4]}, {fx(2.0 ** (64 if not opt('forcefb', 0) else -60))}
    v_mov_b32 v{t[5]}, {fx(2.0 ** -64)}
    s_waitcnt lgkmcnt(0)
    s_barrier
    ''')
    for lq in range(1, 4):
        for j in range(4): a(f'ds_read_b128 {vr(O[lq]+4*j,4)}, v{MA[0]} offset:{(lq-1)*4096 + j*1024}')
    stg.flush()
    for lq in range(1, 4):
        a(f's_waitcnt lgkmcnt({4*(3-lq)})')
        for r in range(0, 16, 2): a(f'v_pk_add_f32 {vr(O[0]+r,2)}, {vr(O[0]+r,2)}, {vr(O[lq]+r,2)}')
    a(f'''
    v_mov_b32 v{t[0]}, v{O[0]+12}
    v_mov_b32 v{t[1]}, v{O[0]+12}
    v_permlane32_swap_b32 v{t[0]}, v{t[1]}
    v_med3_f32 v{t[3]}, v{t[1]}, v{t[4]}, v{t[5]}
    v_cmp_neq_f32 vcc, v{t[3]}, v{t[1]}
    v_rcp_f32 v{t[2]}, v{t[1]}
    s_cbranch_vccnz Lfb
    ''')
    a.label('Lfb_ret')
    a(f'v_cmp_lt_u32 vcc, 31, v{V_LANE}')
    for r in range(0, 16, 2): a(f'v_pk_mul_f32 {vr(O[0]+r,2)}, {vr(O[0]+r,2)}, {vr(t[2],2)} op_sel_hi:[1,0]')
    for j in range(8): a(f'v_cvt_pk_bf16_f32 v{P[0]+j}, v{O[0]+2*j}, v{O[0]+2*j+1}')
    for j in (6, 7): a(f'v_cndmask_b32_e64 v{P[0]+j}, v{P[0]+j}, 0, vcc')
    for j in range(2):
        a.vmem(f'buffer_store_dwordx4 {vr(P[0]+4*j,4)}, v{V_OFF}, {sr4(SRD_WS)}, s{T0} offen offset:{1024*j} sc1', 'stB')
    a.stamp('B_st'); a.stamp('H_st')


def fallback(a, R):
    KV, Q, O, S, P, t = R['KV'][0], R['Q'][0], R['O'][0], R['S'][0], R['P'][0], R['t']
    a.label('Lfb')
    a(f"""
    v_cmp_lt_u32 vcc, 31, v{V_LANE}
    s_lshl_b32 s{T1}, s{S_H}, 18
    s_mov_b32 s{T2}, 64
    v_mov_b32 v{t[0]}, 0xff7fffff
    v_cndmask_b32_e64 v{Q+6}, v{Q+6}, 0, vcc
    v_cndmask_b32_e64 v{Q+7}, v{Q+7}, 0, vcc
    """)
    a.label('Lfb1')
    a(f"""
    buffer_load_dwordx4 {vr(KV,4)}, v{V_OFF}, {sr4(SRD_WS)}, s{T1} offen sc1
    buffer_load_dwordx4 {vr(KV+4,4)}, v{V_OFF}, {sr4(SRD_WS)}, s{T1} offen offset:1024 sc1
    s_add_u32 s{T1}, s{T1}, 4096
    s_waitcnt vmcnt(0)
    {MFMA} {vr(S,16)}, {vr(KV,4)}, {vr(Q,4)}, 0
    {MFMA} {vr(S,16)}, {vr(KV+4,4)}, {vr(Q+4,4)}, {vr(S,16)}
    """)
    for r in range(0, 16, 2): a(f'v_max3_f32 v{t[0]}, v{t[0]}, v{S+r}, v{S+r+1}')
    a(f"""
    s_sub_u32 s{T2}, s{T2}, 1
    s_cmp_lg_u32 s{T2}, 0
    s_cbranch_scc1 Lfb1
    v_mov_b32 v{t[1]}, v{t[0]}
    v_permlane32_swap_b32 v{t[0]}, v{t[1]}
    v_max_f32 v{t[0]}, v{t[0]}, v{t[1]}
    v_cvt_pk_bf16_f32 v{t[1]}, -v{t[0]}, 0
    v_lshlrev_b32 v{t[2]}, 16, v{t[1]}
    v_sub_f32 v{t[0]}, -v{t[0]}, v{t[2]}
    v_cvt_pk_bf16_f32 v{t[2]}, v{t[0]}, 0
    v_lshlrev_b32 v{t[2]}, 16, v{t[2]}
    v_sub_f32 v{t[0]}, v{t[0]}, v{t[2]}
    v_or_b32 v{t[1]}, v{t[1]}, v{t[2]}
    v_cvt_pk_bf16_f32 v{t[0]}, v{t[0]}, 0
    v_cndmask_b32 v{Q+6}, v{Q+6}, v{t[1]}, vcc
    v_cndmask_b32 v{Q+7}, v{Q+7}, v{t[0]}, vcc
    s_lshl_b32 s{T1}, s{S_H}, 18
    s_mov_b32 s{T2}, 64
    """)
    for r in range(16): a(f'v_mov_b32 v{O+r}, 0')
    a.label('Lfb2')
    for j in range(4): a(f'buffer_load_dwordx4 {vr(KV+4*j,4)}, v{V_OFF}, {sr4(SRD_WS)}, s{T1} offen offset:{1024*j} sc1')
    a(f"""
    s_add_u32 s{T1}, s{T1}, 4096
    s_waitcnt vmcnt(0)
    {MFMA} {vr(S,16)}, {vr(KV,4)}, {vr(Q,4)}, 0
    {MFMA} {vr(S,16)}, {vr(KV+4,4)}, {vr(Q+4,4)}, {vr(S,16)}
    """)
    for r in range(16): a(f'v_exp_f32 v{S+r}, v{S+r}')
    for j in range(8): a(f'v_cvt_pk_bf16_f32 v{P+j}, v{S+2*j}, v{S+2*j+1}')
    a(f"""
    {MFMA} {vr(O,16)}, {vr(KV+8,4)}, {vr(P,4)}, {vr(O,16)}
    {MFMA} {vr(O,16)}, {vr(KV+12,4)}, {vr(P+4,4)}, {vr(O,16)}
    s_sub_u32 s{T2}, s{T2}, 1
    s_cmp_lg_u32 s{T2}, 0
    s_nop 7
    s_cbranch_scc1 Lfb2
    s_nop 7
    v_mov_b32 v{t[0]}, v{O+12}
    v_mov_b32 v{t[1]}, v{O+12}
    v_permlane32_swap_b32 v{t[0]}, v{t[1]}
    v_rcp_f32 v{t[2]}, v{t[1]}
    s_branch Lfb_ret
    """)

class Stager:
    def __init__(self, a): self.a = a; self.nl = 0; self.nt = 0; self.q = []
    def src_setup(self, t0, t1, t2):
        self.a(f'''
        v_lshrrev_b32 v{t0}, 3, v{V_LANE}
        v_lshrrev_b32 v{t1}, 1, v{V_LANE}
        v_and_b32 v{t1}, 4, v{t1}
        v_and_b32 v{t2}, 7, v{V_LANE}
        v_xor_b32 v{t1}, v{t1}, v{t2}
        v_mul_u32_u24 v{t0}, 1792, v{t0}
        v_lshl_add_u32 v{V_SRC}, v{t1}, 4, v{t0}
        ''')
    def setup(self, t0, t1, t2, vw):
        a = self.a; self.vw = vw
        a(f'''
        v_lshrrev_b32 v{t0}, 5, v{V_LANE}
        v_bfe_u32 v{t1}, v{V_LANE}, 2, 2
        v_lshl_add_u32 v{t0}, v{t0}, 2, v{t1}
        v_lshlrev_b32 v{t0}, 7, v{t0}
        v_bfe_u32 v{t1}, v{V_LANE}, 4, 1
        v_lshl_add_u32 v{t0}, v{t1}, 5, v{t0}
        v_and_b32 v{t1}, 3, v{V_LANE}
        v_lshl_add_u32 v{t0}, v{t1}, 3, v{t0}
        v_bfe_u32 v{t1}, v{V_LANE}, 3, 1
        s_lshr_b32 s{T0}, s{S_W}, 1
        v_xor_b32 v{t1}, s{T0}, v{t1}
        v_lshl_add_u32 v{t0}, v{t1}, 6, v{t0}
        s_lshl_b32 s{T0}, s{S_W}, 12
        s_add_u32 s{T0}, s{T0}, {SCR}
        v_add_u32 v{V_RD}, s{T0}, v{t0}
        v_xor_b32 v{V_RD+1}, 64, v{V_RD}
        v_lshrrev_b32 v{t0}, 3, v{V_LANE}
        v_lshlrev_b32 v{t0}, 7, v{t0}
        v_add3_u32 v{vw}, s{T0}, v{V_OFF}, v{t0}
        ''')
    def target_items(self, which):
        p, nb = (P_WO, WO_BYTES) if which == 'wo' else (P_W2, W2_BYTES)
        return [f's_mov_b32 s{SRD_A}, s{p}', f's_mov_b32 s{SRD_A+1}, s{p+1}', f's_mov_b32 s{SRD_A+2}, {nb}', f's_mov_b32 s{SRD_A+3}, 0x20000',
                f's_mul_i32 s{S_U0}, s{S_W}, {(112 if which == "wo" else 448)*896}', f's_lshl_b32 s{S_U1}, s{S_CB}, 7', f's_add_u32 s{S_U0}, s{S_U0}, s{S_U1}']
    @staticmethod
    def base(g):
        if g < 2: return ('a', 224 + 16 * g)
        if g < 4: return ('v', WOV + 16 * (g - 2))
        return ('a', 16 * (g - 4))
    @staticmethod
    def dest(g, s_, lc):
        p, b = Stager.base(g); return p, b + (s_ * 2 + lc) * 4
    def load_items(self):
        g = self.nl; self.nl += 1
        pre = self.target_items('wo') if g == 0 else (self.target_items('w2') if g == 4 else [])
        row0 = 28 * g if g < 4 else 32 * (g - 4)
        p, b = self.base(g)
        out = [pre] if pre else []
        for h_ in range(2):
            out.append([f's_add_u32 s{S_U1}, s{S_U0}, {(row0 + 16*h_)*896}'] +
                       [('vm', f'buffer_load_dwordx4 {vr(b+8*h_+4*i,4,p)}, v{V_SRC}, {sr4(SRD_A)}, s{S_U1} offen offset:{896*i}', f'hg{g}') for i in range(2)])
        return out
    def load(self):
        self.flush()
        for it in self.load_items():
            for x in it: self.a.emit(x)
    def queue(self, upto):
        while self.nl < upto:
            for it in self.load_items(): self.q += it
    def one(self):
        while self.q:
            x = self.q.pop(0); self.a.emit(x)
            if isinstance(x, tuple): break
    def flush(self):
        while self.q: self.one()
    def wr(self, u):
        a = self.a; g, s_ = divmod(u, 2); p, b = self.base(g)
        for i in range(2): a(f'ds_write_b128 v{self.vw}, {vr(b+8*s_+4*i,4,p)} offset:{2048*s_ + 128*i}')
    def rd(self, u):
        a = self.a; g, s_ = divmod(u, 2); p, b = self.base(g)
        for lc in range(2):
            for uu in range(2):
                a(f'ds_read_b64_tr_b16 {vr(b+(s_*2+lc)*4+2*uu,2,p)}, v{V_RD+lc} offset:{s_*2048 + uu*1024}')
    def trans(self):
        a = self.a; g = self.nt; self.nt += 1
        a.stamp(f'{"H" if g < 11 else "I"}_pre{g}')
        a.vmwait(f'hg{g}')
        if g in (0, 6): a.stamp(f'H_got{g}')
        for u in (2*g, 2*g + 1): self.wr(u)
        for u in (2*g, 2*g + 1): self.rd(u)
    def close(self): pass

def red_addr(a, t):
    for l in range(4):
        a(f's_xor_b32 s{T0}, s{S_W}, {l}\ns_mul_i32 s{T0}, s{T0}, 12288\ns_add_u32 s{T0}, s{T0}, {SCR}\nv_add_u32 v{t[l]}, s{T0}, v{V_OFF}')
def red_write(a, ACC, t, l, side=lambda: None):
    for j in range(4):
        a(f'ds_write_b128 v{t[l]}, {vr(ACC[l]+4*j,4)} offset:{(l-1)*4096 + j*1024}'); side()
def red_read(a, ACC, t, side=lambda: None):
    a('s_waitcnt lgkmcnt(0)\ns_barrier')
    for l in range(1, 4):
        for j in range(4): a(f'ds_read_b128 {vr(ACC[l]+4*j,4)}, v{t[0]} offset:{(l-1)*4096 + j*1024}')
    side()
    for l in range(1, 4):
        a(f's_waitcnt lgkmcnt({4*(3-l)})')
        for r in range(0, 16, 2): a(f'v_pk_add_f32 {vr(ACC[0]+r,2)}, {vr(ACC[0]+r,2)}, {vr(ACC[l]+r,2)}')

def put5(a, vt):
    a(f's_mul_i32 s{T0}, s{S_W}, 7168\ns_add_u32 s{T0}, s{T0}, {SINGLE}\nv_add_u32 v{vt}, s{T0}, v{V_OFF}')
    for g in range(7): a(f'ds_write_b128 v{vt}, {vr(RAW5+4*g,4,"a")} offset:{1024*g}')

def tile_ids(a, STT, SCT):
    a(f'''
    s_and_b32 s{STT}, s{S_W}, 1
    s_lshl_b32 s{T0}, s{S_RB}, 1
    s_add_u32 s{STT}, s{STT}, s{T0}
    s_lshr_b32 s{SCT}, s{S_W}, 1
    s_lshl_b32 s{T0}, s{S_CB}, 1
    s_add_u32 s{SCT}, s{SCT}, s{T0}
    ''')
def flag8_addr(a, vf, t0, t1, sdst, base):
    a(f'''
    v_lshrrev_b32 v{t0}, 2, v{V_LANE}
    v_lshlrev_b32 v{t0}, 11, v{t0}
    v_and_b32 v{t1}, 3, v{V_LANE}
    v_lshl_add_u32 v{vf}, v{t1}, 7, v{t0}
    s_lshl_b32 s{T0}, s{S_RB}, 3
    s_add_u32 s{T0}, s{T0}, s{S_W}
    s_lshl_b32 s{sdst}, s{T0}, 9
    s_add_u32 s{sdst}, s{sdst}, {base}
    ''')

def phase_c(a, R, stg):
    va = VA(4, 200)
    ACC = [va(16) for _ in range(4)]
    OF = [[va(4) for k in range(8)] for lt in range(2)]
    t = [va() for _ in range(8)]; vf = va(); vw = va(); vp = va()
    STT, SCT = T1, T2
    NB1 = opt('hgB', 7); NF = opt('hgBf', 0)
    for g in range(NF):
        if stg.nl < NB1: stg.load()
    stg.setup(t[0], t[1], t[2], vw)
    tile_ids(a, STT, SCT)
    for l in range(2):
        a(f'''
        s_xor_b32 s{T0}, s{STT}, {l}
        s_lshl_b32 s{T0}, s{T0}, 2
        s_add_u32 s{T0}, s{T0}, s{S_W}
        s_lshl_b32 s{T0}, s{T0}, 13
        s_add_u32 s{T3+l}, s{T0}, {WS_O}
        ''')
    for g in (0, 4):
        a(f'v_permlane32_swap_b32 v{XRES+g}, v{XRES+g+2}\nv_permlane32_swap_b32 v{XRES+g+1}, v{XRES+g+3}')
    for j in range(8):
        a(f'v_lshlrev_b32 v{ACC[0]+2*j}, 16, v{XRES+j}\nv_and_b32 v{ACC[0]+2*j+1}, 0xffff0000, v{XRES+j}')
    a('s_barrier')
    for _ in range(opt('trB0', 2)): stg.trans()
    a.vmwait('stB')
    flag_store(a, T5, t[3])
    a.stamp('C_flag'); a.stamp('H_flag')
    flag8_addr(a, vf, t[0], t[1], T5, FL_B)
    NT1 = NB1 - opt('trB', 1)
    for _ in range(opt('hgBg', 3)):
        if stg.nl < NB1: stg.load()
    while stg.nt < NT1:
        if stg.nt == NT1 - opt('pollB', 2): poll_issue(a, T5, vf, 8, vp)
        stg.trans()
        if stg.nl < NB1: stg.load()
    a.stamp('C_pre')
    poll_check(a, T5, vf, 8, vp)
    a.stamp('C_poll')
    def old_(k, l):
        if k == 4 and l == 0: a(f's_add_u32 s{T3}, s{T3}, 4096\ns_add_u32 s{T4}, s{T4}, 4096')
        a.vmem(f'buffer_load_dwordx4 {vr(OF[l][k],4)}, v{V_OFF}, {sr4(SRD_WS)}, s{T3+l} offen offset:{1024*(k&3)} sc1', f'o{k}')
    OLA = opt('ola', 6)
    oq = [(k, l) for k in range(8) for l in range(2)]
    for _ in range(2 * OLA): old_(*oq.pop(0))
    nfree = NHG
    while stg.nt < NB1: stg.trans()
    red_addr(a, t)
    a(f'''
    s_mul_i32 s{T6}, s{STT}, 14
    s_add_u32 s{T6}, s{T6}, s{SCT}
    s_lshl_b32 s{T5}, s{STT}, 4
    s_add_u32 s{T5}, s{T5}, s{SCT}
    s_lshl_b32 s{T5}, s{T5}, 7
    s_add_u32 s{T5}, s{T5}, {FL_C}
    s_waitcnt lgkmcnt(0)
    s_barrier
    ''')
    def mm(k, l):
        p, b = stg.dest(k >> 1, k & 1, l >> 1)
        a(f'{MFMA} {vr(ACC[l],16)}, {vr(b,4,p)}, {vr(OF[l & 1][k],4)}, {vr(ACC[l],16) if (k or l == 0) else 0}')
    KT = 5
    for k in range(KT):
        a.vmwait(f'o{k}')
        for l in range(4):
            mm(k, l)
            if oq and l & 1 == 0: old_(*oq.pop(0))
    assert not oq
    stg.queue(min(nfree, NB1 + opt('hgC0', 4)))
    for l in (1, 2, 3, 0):
        for k in range(KT, 8):
            if l == 1: a.vmwait(f'o{k}')
            mm(k, l)
        if l in (2, 3): red_write(a, ACC, t, l - 1, stg.one)
    a.stamp('C_mfma')
    red_write(a, ACC, t, 3, stg.one)
    red_read(a, ACC, t, stg.flush)
    for j in range(8): a(f'v_cvt_pk_bf16_f32 v{HKEEP+j}, v{ACC[0]+2*j}, v{ACC[0]+2*j+1}')
    a(f's_lshl_b32 s{T0}, s{T6}, 11\ns_add_u32 s{T0}, s{T0}, {WS_H}')
    for j in range(2):
        a.vmem(f'buffer_store_dwordx4 {vr(HKEEP+4*j,4)}, v{V_OFF}, {sr4(SRD_WS)}, s{T0} offen offset:{1024*j} sc1', 'stC')
    for i in range(4): a(f'v_mov_b32 v{t[4+i]}, 0')
    for j in range(8):
        a(f'v_dot2c_f32_bf16 v{t[4+(j&1)]}, s{S_ONES}, v{HKEEP+j}')
        a(f'v_dot2c_f32_bf16 v{t[6+(j&1)]}, v{HKEEP+j}, v{HKEEP+j}')
    a(f'''
    v_add_f32 v{t[4]}, v{t[4]}, v{t[5]}
    v_add_f32 v{t[6]}, v{t[6]}, v{t[7]}
    v_permlane32_swap_b32 v{t[4]}, v{t[6]}
    v_add_f32 v{t[4]}, v{t[4]}, v{t[6]}
    v_and_b32 v{t[5]}, 31, v{V_LANE}
    v_lshrrev_b32 v{t[6]}, 5, v{V_LANE}
    v_lshlrev_b32 v{t[6]}, 2, v{t[6]}
    v_lshl_add_u32 v{t[5]}, v{t[5]}, 3, v{t[6]}
    s_lshl_b32 s{T0}, s{T6}, 8
    s_add_u32 s{T0}, s{T0}, {WS_ST}
    ''')
    a.vmem(f'buffer_store_dword v{t[4]}, v{t[5]}, {sr4(SRD_WS)}, s{T0} offen sc1', 'stC')
    a.stamp('C_st')
    for _ in range(opt('hgCf', 0)):
        if stg.nl < nfree: stg.load()
    a('s_barrier')
    put5(a, t[0])
    for _ in range(opt('trC0', 1)): stg.trans()
    a.vmwait('stC')
    flag_store(a, T5, t[3])
    a.stamp('C_flag2')
    NTP = NHG - opt('trC', 0) - opt('pollC', 2)
    while stg.nl < NHG: stg.load()
    while stg.nt < NTP: stg.trans()

def phase_d(a, R, stg):
    va = VA(4, 212)
    X = [va(4) for _ in range(28)]
    ACC = [va(16) for _ in range(4)]
    HP = va(4)
    t = [va(2) for _ in range(4)]
    mu = va(2)
    vl = [va() for _ in range(6)]
    vp = va(); vs = va()
    W = [va(4) for _ in range(2)] + [WOV + 4*i for i in range(8)]
    NW = len(W)
    ST = ACC[3]
    E = [t[0], t[0]+1, t[1], t[1]+1, t[2], t[2]+1, t[3], t[3]+1]
    STT = T6; SH = T5; S13, L13 = T3, T4
    w13_setup(a, S13, L13)
    a(f'''
    s_lshl_b32 s{T0}, s{S_L0}, 5
    s_add_u32 s{S13}, s{S13}, s{T0}
    s_lshl_b32 s{STT}, s{S_TD}, 2
    s_add_u32 s{STT}, s{STT}, s{S_W}
    s_lshl_b32 s{T2}, s{STT}, 11
    s_add_u32 s{T2}, s{T2}, {FL_C}
    v_bfe_u32 v{t[0]}, v{V_LANE}, 4, 1                 ; cg
    v_lshrrev_b32 v{t[1]}, 5, v{V_LANE}                ; hf
    v_bfe_u32 v{t[3]}, v{V_LANE}, 2, 2                 ; r
    v_and_b32 v{mu}, 3, v{V_LANE}
    v_lshlrev_b32 v{mu}, 3, v{mu}                      ; c4*8
    v_xor_b32 v{t[2]}, v{t[0]}, v{t[1]}
    v_lshl_add_u32 v{t[2]}, v{t[2]}, 2, v{t[3]}
    v_lshl_add_u32 v{t[2]}, v{t[2]}, 5, v{mu}
    v_mul_u32_u24 v{vl[4]}, 14336, v{t[0]}
    v_add_u32 v{vl[4]}, v{vl[4]}, v{t[2]}
    v_add_u32 v{vl[4]}, {SINGLE}, v{vl[4]}
    v_lshl_add_u32 v{t[2]}, v{t[1]}, 2, v{t[3]}
    v_lshl_add_u32 v{t[2]}, v{t[2]}, 6, v{mu}
    v_mul_u32_u24 v{t[0]}, {28672 + 32}, v{t[0]}
    v_add_u32 v{vl[0]}, v{t[0]}, v{t[2]}
    v_xor_b32 v{vl[1]}, 32, v{vl[0]}
    v_add_u32 v{vl[2]}, {PAIR}, v{vl[0]}
    v_add_u32 v{vl[3]}, {PAIR}, v{vl[1]}
    v_and_b32 v{t[0]}, 31, v{V_LANE}
    v_mul_u32_u24 v{t[1]}, {7*256}, v{t[1]}
    v_lshl_add_u32 v{vs}, v{t[0]}, 3, v{t[1]}
    s_mul_i32 s{T1}, s{STT}, {14*256}
    s_add_u32 s{T1}, s{T1}, {WS_ST}
    s_mul_i32 s{SH}, s{STT}, {28*1024}
    s_add_u32 s{SH}, s{SH}, {WS_H}
    ''')
    VSD = 222; SWB = S_DUM; SLB = S_DUM + 1
    a(f'''
    v_lshrrev_b32 v{t[0]}, 3, v{V_LANE}
    v_lshrrev_b32 v{t[1]}, 2, v{V_LANE}
    v_and_b32 v{t[1]}, 4, v{t[1]}
    v_and_b32 v{t[2]}, 7, v{V_LANE}
    v_xor_b32 v{t[1]}, v{t[1]}, v{t[2]}
    v_mul_u32_u24 v{t[0]}, 896, v{t[0]}
    v_lshl_add_u32 v{V_SRC2}, v{t[1]}, 4, v{t[0]}
    s_mul_i32 s{SWB}, s{S_W}, {448*896}
    s_lshl_b32 s{T0}, s{S_CB}, 7
    s_add_u32 s{SWB}, s{SWB}, s{T0}
    ''')
    def w2_dma(hl):
        base, per = (SCR, 12288) if hl < 3 else (PAIR, 14336)
        out = []
        for i in range(4):
            out.append(([f's_mul_i32 s{SLB}, s{S_W}, {per}', f's_add_u32 m0, s{SLB}, {base + (hl % 3)*4096}'] if i == 0 else []) +
                       [f's_add_u32 s{T0}, s{SWB}, {(256 + 32*hl + 8*i)*896 - 1024*i}',
                        ('vm', f'buffer_load_dwordx4 v{V_SRC2}, {sr4(SRD_A)}, s{T0} offen offset:{1024*i} lds', 'w2l')])
        return out
    NTP = NHG - opt('trC', 0)
    poll_issue(a, T2, V_FL, 14, vp)
    Ls = a.newlabel('skip')
    a(f's_cmp_ge_u32 s{S_J}, 28\ns_cbranch_scc1 {Ls}')
    while stg.nt < NTP: stg.trans()
    a.label(Ls)
    a('s_waitcnt lgkmcnt(0)\ns_barrier')
    a.stamp('D_pre')
    rest = [x for x in a.vm if x.startswith('hg')]
    poll_check(a, T2, V_FL, 14, vp)
    a.stamp('D_poll'); a.stamp('F_poll')
    for c in range(7):
        a.vmem(f'buffer_load_dwordx2 {vr(ST+2*c,2)}, v{vs}, {sr4(SRD_WS)}, s{T1} offen offset:{256*c} sc1', 'st')
    SX_ = S_SPIN + 1
    a(f's_lshl_b32 s{SX_}, s{S_R14}, 11\nv_add_u32 v{vl[5]}, s{SH}, v{V_OFF}')
    def ldx(k):
        if k and k % 2 == 0: a(f's_add_u32 s{SX_}, s{SX_}, 2048\ns_sub_u32 s{T0}, s{SX_}, {28*1024}\ns_min_u32 s{SX_}, s{SX_}, s{T0}')
        a.vmem(f'buffer_load_dwordx4 {vr(X[k],4)}, v{vl[5]}, {sr4(SRD_WS)}, s{SX_} offen offset:{1024*(k&1)} sc1', f'x{k}')
    XLA = opt('xla', 8)
    for k in range(XLA): ldx(k)
    a(f's_or_b32 s{T0}, s2, s{S_W}\ns_cmp_lg_u32 s{T0}, 0\ns_cselect_b32 s{T0}, 0x40000000, {WS_FLG}')
    flag_store(a, T0, t[0])
    a.stamp('F_issued')
    Ls = a.newlabel('skip')
    a(f's_cmp_ge_u32 s{S_J}, 28\ns_cbranch_scc1 {Ls}')
    while stg.nt < NHG: stg.trans()
    stg.close()
    a.label(Ls)
    SE = T5; SL = T1; SF = T2
    a(f'''
    s_mul_i32 s{SE}, s{STT}, 112
    s_mul_i32 s{T0}, s{S_FS}, 7
    s_add_u32 s{SE}, s{SE}, s{T0}
    s_add_u32 s{SL}, s{SE}, s{S_L0}
    s_add_u32 s{SE}, s{SE}, s{S_E0}
    s_lshl_b32 s{SE}, s{SE}, 10
    s_add_u32 s{SE}, s{SE}, {WS_HH}
    s_lshl_b32 s{SL}, s{SL}, 10
    s_add_u32 s{SL}, s{SL}, {WS_HH}
    s_add_u32 s{S_U1}, s{SE}, 4096
    s_lshl_b32 s{SF}, s{STT}, 4
    s_add_u32 s{SF}, s{SF}, s{S_FS}
    s_lshl_b32 s{SF}, s{SF}, 7
    s_add_u32 s{SF}, s{SF}, {FL_D1}
    ''')
    if opt('trC', 0): a('s_waitcnt lgkmcnt(0)')
    seq = [(j, k) for k in range(28) for j in (0, 1, 4)] + [(j, k) for j in (2, 3, 5, 6) for k in range(28)]
    def rdW(n):
        j, k = seq[n]
        if j == 4: return [f'ds_read_b64_tr_b16 {vr(W[n % NW]+2*u,2)}, v{vl[4]} offset:{k*512 + u*256}' for u in range(2)]
        return [f'ds_read_b64_tr_b16 {vr(W[n % NW]+2*u,2)}, v{vl[{0:0,1:1,2:2,3:3,5:0,6:1}[j]]} offset:{k*1024 + u*512}' for u in range(2)]
    AH = opt('ah', 6); assert AH + 2 <= NW and 2 * AH <= 15
    a.stamp('F_bar')
    for n in range(AH):
        for x in rdW(n): a(x)
    a.vmwait('st')
    for c in range(3): a(f'v_pk_add_f32 {vr(ST+4*c,2)}, {vr(ST+4*c,2)}, {vr(ST+4*c+2,2)}')
    a(f'v_pk_add_f32 {vr(ST,2)}, {vr(ST,2)}, {vr(ST+4,2)}\nv_pk_add_f32 {vr(ST+8,2)}, {vr(ST+8,2)}, {vr(ST+12,2)}\nv_pk_add_f32 {vr(ST,2)}, {vr(ST,2)}, {vr(ST+8,2)}')
    a(f'v_mov_b32 v{t[0]}, v{ST}\nv_mov_b32 v{t[1]}, v{ST+1}\nv_permlane32_swap_b32 v{t[0]}, v{ST}\nv_permlane32_swap_b32 v{t[1]}, v{ST+1}')
    a(f'v_add_f32 v{t[0]}, v{t[0]}, v{ST}\nv_add_f32 v{t[1]}, v{t[1]}, v{ST+1}')
    a(f'''
    v_mul_f32 v{t[0]}, {fx(1/448)}, v{t[0]}
    v_mul_f32 v{t[1]}, {fx(1/448)}, v{t[1]}
    v_fma_f32 v{t[1]}, -v{t[0]}, v{t[0]}, v{t[1]}
    v_max_f32 v{t[1]}, 0, v{t[1]}
    v_add_f32 v{t[1]}, {fx(1e-5)}, v{t[1]}
    v_rsq_f32 v{mu}, v{t[1]}
    s_mov_b32 s{S_U0}, 0xffff0000
    v_mul_f32 v{mu+1}, v{t[0]}, v{mu}
    v_sub_f32 v{mu+1}, 0, v{mu+1}
    ''')
    def norm(k):
        out = []
        for i in range(4): out += [f'v_lshlrev_b32 v{t[i]}, 16, v{X[k]+i}', f'v_and_b32 v{t[i]+1}, s{S_U0}, v{X[k]+i}']
        if opt('pkN', 1):
            for i in range(4): out += [f'v_pk_fma_f32 {vr(t[i],2)}, {vr(t[i],2)}, {vr(mu,2)}, {vr(mu,2)} op_sel:[0,0,1] op_sel_hi:[1,0,1]']
        else:
            for i in range(4): out += [f'v_fma_f32 v{t[i]}, v{t[i]}, v{mu}, v{mu+1}', f'v_fma_f32 v{t[i]+1}, v{t[i]+1}, v{mu}, v{mu+1}']
        for i in range(4): out += [f'v_cvt_pk_bf16_f32 v{X[k]+i}, v{t[i]}, v{t[i]+1}']
        return out
    acc_of = {0: 0, 1: 1, 4: 2, 2: 3, 3: 0, 5: 1, 6: 2}
    def epi(j):
        A = ACC[acc_of[j]]
        out = []
        pk = opt('pkE', 0) if j != 6 else 2
        if pk >= 2:
            for r in range(0, 8, 2): out.append(f'v_pk_mul_f32 {vr(E[r],2)}, {vr(A+r,2)}, {vr(mu,2)} op_sel_hi:[1,0]')
        else:
            for r in range(8): out.append(f'v_mul_f32 v{E[r]}, v{mu}, v{A+r}')
        for r in range(8): out.append(f'v_exp_f32 v{E[r]}, v{E[r]}')
        if pk >= 1:
            for r in range(0, 8, 2): out.append(f'v_pk_mul_f32 {vr(A+r,2)}, {vr(A+r,2)}, {vr(A+8+r,2)}')
        else:
            for r in range(8): out.append(f'v_mul_f32 v{A+r}, v{A+r}, v{A+8+r}')
        if pk >= 2:
            for r in range(0, 8, 2): out.append(f'v_pk_add_f32 {vr(E[r],2)}, {vr(E[r],2)}, {vr(mu,2)} op_sel:[0,1] op_sel_hi:[1,1]')
        else:
            for r in range(8): out.append(f'v_add_f32 v{E[r]}, 1.0, v{E[r]}')
        for r in range(8): out.append(f'v_rcp_f32 v{E[r]}, v{E[r]}')
        if pk >= 1:
            for r in range(0, 8, 2): out.append(f'v_pk_mul_f32 {vr(A+r,2)}, {vr(A+r,2)}, {vr(E[r],2)}')
        else:
            for r in range(8): out.append(f'v_mul_f32 v{A+r}, v{A+r}, v{E[r]}')
        for i in range(4): out.append(f'v_cvt_pk_bf16_f32 v{HP+i}, v{A+2*i}, v{A+2*i+1}')
        sreg, off = (SE, 1024*j) if j < 4 else ((S_U1, 0) if j == 4 else (SL, 1024*(j-5)))
        out.append(('vm', f'buffer_store_dwordx4 {vr(HP,4)}, v{V_OFF}, {sr4(SRD_WS)}, s{sreg} offen offset:{off} sc1', f'hh{j}'))
        return out
    a.stamp('F_stats')
    a.vmwait('x0')
    a.stamp('F_x0')
    for x in norm(0): a(x)
    pend = []; late = []
    R['vfE'] = vs; R['vpE'] = vp
    for n, (j, k) in enumerate(seq):
        nn = n + AH
        if nn < len(seq) and seq[nn] == (5, 0):
            a.vmwait('late'); a('s_barrier')
        rd = rdW(nn) if nn < len(seq) else []
        if n % 2 == 0:
            left = min(len(seq), n + AH) - (n + 2)
            a(f's_waitcnt lgkmcnt({max(0, 2*left)})')
        A = ACC[acc_of[j]]
        a(f'{MFMA} {vr(A,16)}, {vr(W[n % NW],4)}, {vr(X[k],4)}, {vr(A,16) if k else 0}')
        for x in rd: a(x)
        if n < 84 and j == 0 and k in (2, 4, 8, 16, 24): a.stamp(f'F_k{k}')
        if n >= 84 and k == 27: a.stamp(f'F_t{j}')
        if n < 84:
            if j == 0 and k + 1 < 28:
                a.vmwait(f'x{k+1}'); pend = norm(k + 1)
            if j == 1 and k + XLA < 28: ldx(k + XLA)
            take = (6 if j < 2 else 4) if opt('pkN', 1) else (7 if j < 2 else 6)
            for x in pend[:take]: a(x)
            pend = pend[take:]
            if n == 83:
                a.stamp('D_st1')
                a(f'v_mov_b32 v{mu}, {fx(-math.log2(math.e))}\nv_mov_b32 v{mu+1}, 1.0\ns_barrier')
                srd(a, SRD_A, P_W2, W2_BYTES)
                late = [pair_dma(S13, L13, 0, 0, i, 'late') for i in range(14)]
                g1 = [x for hl in range(3) for x in w2_dma(hl)]; g2 = [x for hl in range(3, 6) for x in w2_dma(hl)]
        else:
            if n == 84 + 2: pend = epi(0) + epi(1) + epi(4) + epi(2) + epi(3) + epi(5); done = 0; tot = len(pend); one = tot // 6
            if n >= 84 + 2:
                want = min(tot, (n - 85) * tot // 108 + 1)
                lim = {2: 3, 3: 3 + (k >= 2), 5: 4 + (k >= 2), 6: 5 + (k >= 2)}[j] * one
                while done < min(want, lim):
                    a.emit(pend.pop(0)); done += 1
                if k == 27:
                    need = {2: 1, 3: 2, 5: 3, 6: 6}[j] * one
                    while done < need:
                        a.emit(pend.pop(0)); done += 1
            if (j, k) == (5, 0): a('s_barrier')
            if k % opt('latestep', 2) == 0:
                q_ = late if late else (g1 if g1 else (g2 if j >= 5 else []))
                if q_:
                    for x in q_.pop(0): a.emit(x)
            if j == 5 and k == opt('f1k', 6):
                a.vmwait('hh1'); flag_store(a, SF, vp)
            if j == 6 and k == opt('f2k', 14) and not opt('d2late', 1):
                a(f's_add_u32 s{SF}, s{SF}, {FLS}')
                a.vmwait('hh2'); flag_store(a, SF, vl[2])
                a(f's_add_u32 s{SF}, s{SF}, {FLS}')
            if j == 6 and k == opt('p1k', 18):
                flag8_addr(a, vs, vp, vl[4], S_SPIN + 1, FL_D1)
                poll_issue(a, S_SPIN + 1, vs, 8, vp)
    assert not late and not g1 and not g2
    a.stamp('D_loop')
    if opt('d2late', 1):
        a(f's_add_u32 s{SF}, s{SF}, {FLS}')
        a.vmwait('hh3'); flag_store(a, SF, vl[2])
        a(f's_add_u32 s{SF}, s{SF}, {FLS}')
    for x in epi(6): a.emit(x)
    a.stamp('D_epi')
    R['SF'] = SF

def phase_e(a, R, stg):
    va = VA(4, 199)
    ACC = [va(16) for _ in range(4)]
    NB = 16
    BUF = [[va(4) for l in range(2)] for d in range(NB)]
    vf = R['vfE']; vp = R['vpE']
    t = [204, 205, 206, 207]; vt = 208
    assert vf >= va.n and vp >= va.n and vf < 204 and vp < 204
    STT, SCT = T1, T3
    SP = S_SPIN + 1
    tile_ids(a, STT, SCT)
    a(f's_mul_i32 s{T4}, s{S_W}, {28*1024}')
    for l in range(2):
        a(f'''
        s_xor_b32 s{T0}, s{STT}, {l}
        s_mul_i32 s{T0}, s{T0}, {112*1024}
        s_add_u32 s{T0}, s{T0}, s{T4}
        s_add_u32 s{S_U0+l}, s{T0}, {WS_HH}
        ''')
    e0 = lambda f: 2 if f == 2 else 0
    l0 = lambda f: 0 if f == 2 else 5
    order = [7*f + e0(f) + j for j in (0, 1, 4, 2, 3) for f in range(4)] + [7*f + l0(f) + j for j in range(2) for f in range(4)]
    assert sorted(order) == list(range(28))
    poll_check(a, SP, vf, 8, vp)
    a.stamp('E_poll1')
    N2 = 20 if opt('d2late', 1) else 16
    st = dict(nxt=0)
    FL3 = opt('efl', 7); PI2 = opt('epi2', 3); PI3 = opt('epi3', 15)
    def ld_items():
        n = st['nxt']; st['nxt'] += 1
        pre = []
        if n == FL3: pre.append(('call', lambda: (a.vmwait('hh6'), flag_store(a, R['SF'], vt))))
        if n in (8, N2):
            pre.append(('call', lambda: (a.stamp('E_pre2' if n == 8 else 'E_pre3'), poll_check(a, SP, vf, 8, vp), a.stamp('E_poll2' if n == 8 else 'E_poll3'))))
        if n in (PI2, PI3): pre.append(('call', lambda: (a(f's_add_u32 s{SP}, s{SP}, {FLS}'), poll_issue(a, SP, vf, 8, vp))))
        ks = order[n]
        out = []
        for l in range(2):
            out.append((pre if l == 0 else []) + [f's_add_u32 s{T0}, s{S_U0+l}, {(ks >> 2) * 4096}',
                       ('vm', f'buffer_load_dwordx4 {vr(BUF[n % NB][l],4)}, v{V_OFF}, {sr4(SRD_WS)}, s{T0} offen offset:{1024*(ks&3)} sc1', f'h{n}')])
        return out
    def ld():
        for it in ld_items():
            for x in it: a.emit(x)
    LA = opt('ela', 8)
    for n in range(LA): ld()
    for j in range(8):
        a(f'v_lshlrev_b32 v{ACC[0]+2*j}, 16, v{HKEEP+j}\nv_and_b32 v{ACC[0]+2*j+1}, 0xffff0000, v{HKEEP+j}')
    red_addr(a, t)
    RA = [209, 210, 211, 212]
    a(f'''
    s_lshl_b32 s{T0}, s{S_W}, 13
    v_add_u32 v{RA[0]}, s{T0}, v{V_RD}
    v_add_u32 v{RA[1]}, s{T0}, v{V_RD+1}
    s_mul_i32 s{T0}, s{S_W}, {14336 - 4096}
    s_sub_u32 s{T0}, s{T0}, {SCR - PAIR}
    v_add_u32 v{RA[2]}, s{T0}, v{V_RD}
    v_add_u32 v{RA[3]}, s{T0}, v{V_RD+1}
    ''')
    Ls = [n for n in range(28) if order[n] >= 16]
    WB = [WOV + 8*i for i in range(4)]
    lst = dict(rd=0)
    def lread():
        i = lst['rd']; lst['rd'] += 1
        hl, s_ = divmod(order[Ls[i]] - 16, 2)
        return [f'ds_read_b64_tr_b16 {vr(WB[i % 4] + 4*lc + 2*u, 2)}, v{RA[2*(hl // 3) + lc]} offset:{(hl % 3)*4096 + s_*2048 + u*1024}' for lc in range(2) for u in range(2)]
    for _ in range(3):
        for x in lread(): a(x)
    def lwait(n):
        if n in Ls: a(f's_waitcnt lgkmcnt({4 * (lst["rd"] - 1 - Ls.index(n))})')
    def mm(n, l):
        ks = order[n]
        p, b = stg.dest(4 + (ks >> 1), ks & 1, l >> 1) if ks < 16 else ('v', WB[Ls.index(n) % 4] + 4 * (l >> 1))
        a(f'{MFMA} {vr(ACC[l],16)}, {vr(b,4,p)}, {vr(BUF[n % NB][l & 1],4)}, {vr(ACC[l],16) if (n or l == 0) else 0}')
    KT = 28 - opt('etail', 3)
    for n in range(KT):
        lwait(n)
        a.vmwait(f'h{n}')
        items = []
        for _ in range(2 if n < opt('egrow', 0) else 1):
            if st['nxt'] < 28 and st['nxt'] - NB < n: items += ld_items()
        rd = lread() if (n in Ls and lst['rd'] < len(Ls)) else []
        for l in range(4):
            mm(n, l)
            if rd: a(rd.pop(0))
            if items and (len(items) > 2 or l & 1 == 0 or l == 3):
                for x in items.pop(0): a.emit(x)
        assert not items
        if n == opt('ebar', 20):
            assert all(m <= n for m in Ls if order[m] < 22)
            a('s_barrier')
    assert st['nxt'] == 28 and lst['rd'] == len(Ls)
    a('s_waitcnt lgkmcnt(0)')
    for l in (1, 2, 3, 0):
        for n in range(KT, 28):
            if l == 1: a.vmwait(f'h{n}')
            mm(n, l)
        if l in (2, 3): red_write(a, ACC, t, l - 1)
    a.stamp('E_mfma')
    red_write(a, ACC, t, 3)
    srd(a, SRD_A, P_OUT, X_BYTES)
    a(f'''
    v_and_b32 v{vf}, 31, v{V_LANE}
    v_lshrrev_b32 v{vp}, 5, v{V_LANE}
    v_mul_u32_u24 v{vf}, 896, v{vf}
    v_lshl_add_u32 v{vf}, v{vp}, 4, v{vf}
    s_mul_i32 s{T0}, s{STT}, {32*896}
    s_lshl_b32 s{T2}, s{SCT}, 6
    s_add_u32 s{T0}, s{T0}, s{T2}
    ''')
    red_read(a, ACC, t)
    if opt('bias', 0):
        for r in range(16): a(f"v_add_f32 v{ACC[0]+r}, {fx(opt('bias', 0) * 1e-3)}, v{ACC[0]+r}")
    PKR = ACC[1]
    for j in range(8): a(f'v_cvt_pk_bf16_f32 v{PKR+j}, v{ACC[0]+2*j}, v{ACC[0]+2*j+1}')
    for g in (0, 4):
        a(f'v_permlane32_swap_b32 v{PKR+g}, v{PKR+g+2}\nv_permlane32_swap_b32 v{PKR+g+1}, v{PKR+g+3}')
    fl_ = ['', ' sc1', ' nt', ' sc0 sc1'][opt('outst', 0)]
    a(f'buffer_store_dwordx4 {vr(PKR,4)}, v{vf}, {sr4(SRD_A)}, s{T0} offen{fl_}')
    a(f'buffer_store_dwordx4 {vr(PKR+4,4)}, v{vf}, {sr4(SRD_A)}, s{T0} offen offset:32{fl_}')
    a.stamp('E_st')

def gen():
    a = K()
    a.stamp('rt0', True); a.stamp('t0')
    HB = opt('hb', 3)
    if int(os.environ.get('TFIX', '0')): a('s_memrealtime s[60:61]')
    a(f'''
    s_cmp_ge_u32 s2, 256
    s_cbranch_scc1 Lend
    s_load_dwordx16 s[32:47], s[0:1], 0
    s_load_dwordx2 s[50:51], s[0:1], 72
    v_lshrrev_b32 v2, 6, v0
    v_and_b32 v{V_LANE}, 63, v0
    v_readfirstlane_b32 s{S_W}, v2
    v_lshlrev_b32 v{V_OFF}, 4, v{V_LANE}
    v_lshlrev_b32 v{V_FL}, 7, v{V_LANE}
    s_and_b32 s{T0}, s2, 7
    s_lshr_b32 s{S_J}, s2, 3
    s_and_b32 s{S_H}, s{T0}, {(16 >> HB) - 1}
    s_lshl_b32 s{S_H}, s{S_H}, {HB}
    s_and_b32 s{T1}, s{S_J}, {(1 << HB) - 1}
    s_add_u32 s{S_H}, s{S_H}, s{T1}
    s_lshr_b32 s{S_TB}, s{T0}, {4 - HB}
    s_lshl_b32 s{S_TB}, s{S_TB}, {5 - HB}
    s_lshr_b32 s{T1}, s{S_J}, {HB}
    s_add_u32 s{S_TB}, s{S_TB}, s{T1}
    s_mul_i32 s{T1}, s{S_J}, 9363
    s_lshr_b32 s{T1}, s{T1}, 16
    s_mul_i32 s{T2}, s{T1}, 7
    s_sub_u32 s{S_CB}, s{S_J}, s{T2}
    s_lshl_b32 s{S_RB}, s{T0}, 2
    s_add_u32 s{S_RB}, s{S_RB}, s{T1}
    s_and_b32 s{S_TD}, s{T0}, 1
    s_lshl_b32 s{S_TD}, s{S_TD}, 3
    s_and_b32 s{T1}, s{S_J}, 7
    s_add_u32 s{S_TD}, s{S_TD}, s{T1}
    s_lshr_b32 s{S_FS}, s{T0}, 1
    s_lshl_b32 s{S_FS}, s{S_FS}, 2
    s_lshr_b32 s{T1}, s{S_J}, 3
    s_add_u32 s{S_FS}, s{S_FS}, s{T1}
    ''')
    if opt('cpre', 1):
        a('s_getpc_b64 s[54:55]')
        a.label('Lpc')
        a(f'''
        s_lshl_b32 s{T0}, s{S_J}, 2
        s_add_u32 s{T0}, s{T0}, s{S_W}
        s_mul_i32 s{T0}, s{T0}, 3
        v_add_u32 v4, s{T0}, v{V_LANE}
        v_lshlrev_b32 v4, 7, v4
        v_min_u32 v4, Lcode_end-Lpc-4, v4
        v_mov_b32 v5, s55
        v_add_co_u32 v4, vcc, s54, v4
        v_addc_co_u32 v5, vcc, 0, v5, vcc
        s_mov_b64 exec, 7
        ''')
        a.vmem('global_load_dword a4, v[4:5], off', 'code')
        a('s_mov_b64 exec, -1')
    R = alloc_b()
    phase_a(a, R)
    a(f'''
    s_and_b32 s{T0}, s{S_FS}, 3
    s_cmp_eq_u32 s{T0}, 2
    s_cselect_b32 s{S_E0}, 2, 0
    s_cselect_b32 s{S_L0}, 0, 5
    s_and_b32 s{T0}, s{S_J}, 7
    s_lshr_b32 s{T1}, s{S_J}, 3
    s_mul_i32 s{T1}, s{T1}, {opt('r14b', 4)}
    s_mul_i32 s{T0}, s{T0}, {opt('r14a', 2)}
    s_add_u32 s{T0}, s{T0}, s{T1}
    s_sub_u32 s{T1}, s{T0}, 14
    s_min_u32 s{S_R14}, s{T0}, s{T1}
    s_sub_u32 s{T1}, s{S_R14}, 14
    s_min_u32 s{S_R14}, s{S_R14}, s{T1}
    ''')
    stg = Stager(a)
    phase_b(a, R, stg)
    a(f's_cmp_ge_u32 s{S_J}, 28\ns_cbranch_scc1 LnoC')
    phase_c(a, R, stg)
    a('s_branch LD')
    vm_c = list(a.vm)
    a.label('LnoC')
    a.vmall()
    flag_store(a, T5, 4)
    a('s_barrier')
    put5(a, 5)
    a.label('LD')
    a.vm = vm_c
    phase_d(a, R, stg)
    a(f's_cmp_ge_u32 s{S_J}, 28\ns_cbranch_scc0 LE')
    vm_d = list(a.vm)
    a('s_waitcnt vmcnt(0)')
    flag_store(a, R['SF'], 4)
    a('s_branch Lfin')
    a.label('LE')
    a.vm = vm_d
    phase_e(a, R, stg)
    a.label('Lfin')
    if int(os.environ.get('TFIX', '0')):
        a.label('Lfix')
        a(f's_memrealtime s[62:63]\ns_waitcnt lgkmcnt(0)\ns_sub_u32 s62, s62, s60\ns_cmp_lt_u32 s62, {int(os.environ["TFIX"])}\ns_cbranch_scc1 Lfix')
    if STAMP:
        a('s_waitcnt vmcnt(0)')
        a.stamp('end'); a.stamp('rt1', True)
        a(f's_waitcnt lgkmcnt(0)\ns_lshl_b32 s{T0}, s2, 2\ns_add_u32 s{T0}, s{T0}, s{S_W}\ns_lshl_b32 s{T0}, s{T0}, 7\ns_add_u32 s{T0}, s{T0}, {WS_DBG}\nv_mov_b32 v4, 0')
        for i in range(a.nst):
            a(f'v_mov_b32 v5, s{60+2*i}\nbuffer_store_dword v5, v4, {sr4(SRD_WS)}, s{T0} offen offset:{4*i}')
    if STAMP and int(os.environ.get('DBGOUT', '0')):
        n = a.nst
        a(f'''
        s_load_dwordx2 s[{SRD_A}:{SRD_A+1}], s[0:1], 64
        s_mov_b32 s{SRD_A+2}, 256
        s_mov_b32 s{SRD_A+3}, 0x20000
        s_not_b32 s{T1}, s60
        v_mov_b32 v6, s{T1}
        v_mov_b32 v7, s{60+2*(n-1)}
        v_mov_b32 v8, s60
        s_mov_b64 exec, 1
        s_waitcnt lgkmcnt(0)
        buffer_atomic_umax v6, v4, {sr4(SRD_A)}, 0 offen
        buffer_atomic_umax v7, v4, {sr4(SRD_A)}, 0 offen offset:4
        buffer_atomic_umax v8, v4, {sr4(SRD_A)}, 0 offen offset:8
        s_or_b32 s{T0}, s2, s{S_W}
        s_cmp_lg_u32 s{T0}, {int(os.environ.get('DBGWG', '0'))}
        s_cbranch_scc1 Lend
        ''')
        for i in range(2, min(n - 1, 15)):
            a(f's_sub_u32 s{T0}, s{60+2*i}, s62\nv_mov_b32 v5, s{T0}\nbuffer_store_dword v5, v4, {sr4(SRD_A)}, 0 offen offset:{4*(i+1)}')
    a.label('Lend')
    a('s_endpgm')
    fallback(a, R)
    a.label('Lcode_end')
    a.finalize()
    head = open('sequential_preLN__mha_block__glu_gated_swiglu__prompt.s.ref').read().split('; Override')[0]
    s = head + f'; @launch grid=(256,1,1) block=(256,1,1) lds={LDS_BYTES}\n'
    s += f'.amdgcn_target "amdgcn-amd-amdhsa--gfx950"\n.text\n.globl {NAME}\n.p2align 8\n.type {NAME},@function\n{NAME}:\n' + a.text()
    s += f'''.section .rodata,"a"
.p2align 6
.amdhsa_kernel {NAME}
  .amdhsa_next_free_vgpr 512
  .amdhsa_next_free_sgpr 102
  .amdhsa_accum_offset 256
  .amdhsa_group_segment_fixed_size 0
  .amdhsa_kernarg_size 80
  .amdhsa_user_sgpr_count 2
  .amdhsa_user_sgpr_kernarg_segment_ptr 1
  .amdhsa_system_sgpr_workgroup_id_x 1
.end_amdhsa_kernel
'''
    if STAMP: s = '; STAMPS ' + ' '.join(a.names) + '\n' + s
    print(f'instrs={len(a.ins)} nop_states={a.nops} stamps={a.nst}', file=sys.stderr)
    return s

if __name__ == '__main__':
    open(sys.argv[1], 'w').write(gen())
```

```python
import sys, struct, math, os
from asmgen import Asm

NAME = 'sequential_preLN__mha_block__glu_gated_swiglu__prompt_kernel'
MB = 1 << 20
WS_KV  = 0
WS_O   = 4 * MB
WS_H   = 6 * MB
WS_ST  = 8 * MB
WS_HH  = 9 * MB
WS_FLG = 16 * MB
FL_A = WS_FLG + 0x10000
FL_B = FL_A + 1024 * 128
FL_C = FL_B + 1024 * 128
FL_D1 = FL_C + 1024 * 128
FL_D2 = FL_D1 + 1024 * 128
FL_D3 = FL_D2 + 1024 * 128
FLS = 1024 * 128
WS_DBG = 17 * MB
WS_SIZE = 18 * MB

X_BYTES = 2048 * 448 * 2
WQKV_BYTES = 448 * 1344 * 2
WO_BYTES = 448 * 448 * 2
W1_BYTES = 448 * 1792 * 2
W2_BYTES = 1792 * 448 * 2
LDS_BYTES = 163840
MFMA = 'v_mfma_f32_32x32x16_bf16'
STAMP = int(os.environ.get('STAMP', '0'))
OPT = dict(kv.split('=') for kv in os.environ.get('OPT', '').split(',') if kv)
def opt(k, d): return int(OPT.get(k, d))

def f2u(x): return struct.unpack('<I', struct.pack('<f', x))[0]
def fx(x): return hex(f2u(x))
def vr(b, n=1, p='v'): return f'{p}[{b}:{b+n-1}]' if n > 1 else f'{p}{b}'
def sr4(b): return f's[{b}:{b+3}]'

class VA:
    def __init__(self, start, limit): self.n = start; self.limit = limit
    def __call__(self, cnt=1, align=None):
        if align is None: align = 1 if cnt == 1 else (2 if cnt == 2 else 4)
        self.n = (self.n + align - 1) // align * align
        b = self.n; self.n += cnt
        assert self.n <= self.limit, f'out of registers {self.n} > {self.limit}'
        return b

class K(Asm):
    def __init__(self):
        super().__init__(); self.vm = []; self.nst = 0; self.nlab = 0; self.names = []
    def vmem(self, text, tag):
        self(text); self.vm.append(tag)
    def vmwait(self, *tags, lgkm=None):
        idx = [i for i, t in enumerate(self.vm) if t in tags]
        s = ''
        if idx:
            n = len(self.vm) - 1 - max(idx)
            s += f' vmcnt({min(n, 63)})'
            self.vm = self.vm[len(self.vm) - n:] if n else []
        if lgkm is not None: s += f' lgkmcnt({lgkm})'
        if s: self('s_waitcnt' + s)
    def vmall(self):
        self('s_waitcnt vmcnt(0)'); self.vm = []
    def emit(self, x):
        if isinstance(x, tuple):
            if x[0] == 'vm': self.vmem(x[1], x[2])
            elif x[0] == 'wait': self.vmwait(*x[1:])
            elif x[0] == 'call': x[1]()
        else: self(x)
    def stamp(self, name='', real=False):
        if not STAMP: return
        if name and name[0] in 'ABCDEFGHI' and name[0] not in os.environ.get('STAMPSET', 'AB'): return
        if name in self.names:
            i = self.names.index(name)
        else:
            i = self.nst; self.nst += 1; self.names.append(name)
        assert i < 19
        self(f's_mem{"real" if real else ""}time s[{60+2*i}:{61+2*i}]')
    def newlabel(self, p):
        self.nlab += 1; return f'L{p}{self.nlab}'

S_W = 3
SRD_X = 4; SRD_WQKV = 8; SRD_WS = 12; SRD_A = 16; SRD_B = 20
P_X, P_WQKV, P_WO, P_W1, P_W3, P_W2, P_OUT, P_WS = 32, 34, 36, 40, 42, 44, 46, 50
S_TAG = 24; S_H = 25; S_TB = 26; S_RB = 27; S_CB = 28; S_TD = 29; S_FS = 30; S_J = 31
S_E0 = 38; S_L0 = 39
S_U0 = 48; S_U1 = 49
S_ONES = 52
T0, T1, T2, T3, T4, T5, T6 = 53, 54, 55, 56, 57, 58, 59
S_SPIN = 98
S_ROT = 39
S_DUM = 100
S_R14 = 0; S_RG = 1
V_LANE = 1; V_OFF = 2; V_FL = 3
V_SRC = 212; V_P13 = 213; V_RD = 214
HKEEP = 216
V_SRC2 = 0
XRES = 204
WOV = 224
PAIR = 57344; SCR = 2 * PAIR; SINGLE = SCR + 16384
NHG = 12
RAW5 = 196

def xm(n):
    if n >= 64: return 's_mov_b64 exec, -1'
    if n < 31: return f's_mov_b64 exec, {hex((1 << n) - 1)}'
    lo = '-1' if n >= 32 else hex((1 << n) - 1)
    return f's_mov_b32 exec_lo, {lo}\ns_mov_b32 exec_hi, {hex((1 << max(0, n - 32)) - 1)}'

def srd(a, d, p, nbytes):
    a(f's_mov_b32 s{d}, s{p}\ns_mov_b32 s{d+1}, s{p+1}\ns_mov_b32 s{d+2}, {nbytes}\ns_mov_b32 s{d+3}, 0x20000')

def visit(a, site):
    if not opt('visit', 1): return
    a('s_mov_b64 exec, 0')
    for w in range(4):
        a(f's_cmp_eq_u32 s{S_W}, {w}\ns_cbranch_scc1 Lpage{1 + 4*site + w}')
    a.label(f'Lvis{site}')
    a('s_mov_b64 exec, -1')

def halfsum(a, x, t):
    a(f'v_mov_b32 v{t}, v{x}\nv_permlane32_swap_b32 v{x}, v{t}\nv_add_f32 v{x}, v{x}, v{t}')

def flag_store(a, sreg, vt):
    a(f'v_mov_b32 v{vt}, s{S_TAG}\ns_mov_b64 exec, 1')
    a.vmem(f'buffer_store_dword v{vt}, v{V_OFF}, {sr4(SRD_WS)}, s{sreg} offen sc1', 'flag')
    a('s_mov_b64 exec, -1')

def poll_issue(a, sreg, vaddr, nl, vt):
    a(xm(nl))
    a.vmem(f'buffer_load_dword v{vt}, v{vaddr}, {sr4(SRD_WS)}, s{sreg} offen sc1', 'poll')
    a('s_mov_b64 exec, -1')

def poll_check(a, sreg, vaddr, nl, vt):
    L = a.newlabel('poll'); D = L + 'd'
    a(xm(nl) + f'\ns_mov_b32 s{S_SPIN}, 0x40000')
    a.vmwait('poll')
    a(f'v_cmp_ne_u32 vcc, s{S_TAG}, v{vt}\ns_cbranch_vccz {D}')
    a.label(L)
    a(f'''
    {f"s_sleep {opt('sleep', 2)}" if opt('sleep', 2) else ''}
    buffer_load_dword v{vt}, v{vaddr}, {sr4(SRD_WS)}, s{sreg} offen sc1
    s_sub_u32 s{S_SPIN}, s{S_SPIN}, 1
    s_waitcnt vmcnt(0)
    s_cbranch_scc1 {D}
    v_cmp_ne_u32 vcc, s{S_TAG}, v{vt}
    s_cbranch_vccnz {L}
    ''')
    a.label(D)
    a('s_mov_b64 exec, -1')

def ssrd(a, D, lim, pa, pb, na, nb, per, u0, u1):
    a(f'''
    s_lshl_b32 s{u0}, s2, 2
    s_add_u32 s{u0}, s{u0}, s{S_W}
    s_mov_b32 s{D+2}, {na}
    s_cmp_ge_u32 s{u0}, {lim}
    s_cselect_b32 s{D}, s{pb}, s{pa}
    s_cselect_b32 s{D+1}, s{pb+1}, s{pa+1}
    s_cselect_b32 s{D+2}, {nb}, s{D+2}
    s_cselect_b32 s{u1}, {lim}, 0
    s_sub_u32 s{u0}, s{u0}, s{u1}
    s_mul_i32 s{u0}, s{u0}, {per}
    s_min_u32 s{u0}, s{u0}, s{D+2}
    s_sub_u32 s{D+2}, s{D+2}, s{u0}
    s_add_u32 s{D}, s{D}, s{u0}
    s_addc_u32 s{D+1}, s{D+1}, 0
    s_mov_b32 s{D+3}, 0x20000
    ''')

def sld(D, o): return f's_buffer_load_dwordx2 s[{S_DUM}:{S_DUM+1}], {sr4(D)}, {o + 60}'

def phase_a(a, R):
    NSLOT = 5
    WR = 81920
    WQ = WR + NSLOT * 8192
    CSP = WQ + 28672
    PRV = CSP + 1536
    QX = 155648
    assert PRV + 2048 <= QX
    R['QX'] = QX
    Q0 = R['Q'][0]
    va = VA(4, 256)
    ACC = [va(16), va(16)]; accQ = va(16)
    PK = va(8); assert PK == Q0, (PK, Q0)
    X = [va(4) for _ in range(28)]
    NWF = 4
    WF = [[va(4) for j in range(2)] for b in range(NWF)]
    vx = [va(), va()]; vw = [va(), va()]
    ax = [va() for _ in range(4)]; aw = [va() for _ in range(4)]; ab = [va() for _ in range(4)]
    pr = [va(2) for _ in range(6)]
    cs = [pr[0], pr[1], pr[2]]; mu = pr[3]; rs = pr[4]; rq = pr[5]
    sm = [pr[0] + 1, pr[1] + 1]; sq = [pr[2] + 1, pr[3] + 1]
    hf = pr[4] + 1; n31 = pr[5] + 1
    vq = va()
    t = [va() for _ in range(7)] + [0]
    dB = t[7]
    assert va.n <= 240, va.n
    T16 = 240; U16 = accQ
    a(f'v_lshrrev_b32 v{hf}, 5, v{V_LANE}\nv_and_b32 v{n31}, 31, v{V_LANE}')
    for i in range(2):
        a(f'''
        v_lshrrev_b32 v{t[0]}, 3, v{V_LANE}
        v_add_u32 v{t[0]}, {8*i}, v{t[0]}
        v_lshrrev_b32 v{t[1]}, 1, v{t[0]}
        v_and_b32 v{t[1]}, 7, v{t[1]}
        v_and_b32 v{t[2]}, 7, v{V_LANE}
        v_xor_b32 v{t[1]}, v{t[1]}, v{t[2]}
        v_lshlrev_b32 v{t[1]}, 4, v{t[1]}
        v_mul_u32_u24 v{t[0]}, 896, v{t[0]}
        v_add_u32 v{vx[i]}, v{t[0]}, v{t[1]}
        ''')
    a(f'''
    v_subrev_u32 v{vx[1]}, 1024, v{vx[1]}
    v_lshrrev_b32 v{t[0]}, 3, v{V_LANE}
    v_lshrrev_b32 v{t[1]}, 2, v{V_LANE}
    v_and_b32 v{t[1]}, 4, v{t[1]}
    v_xor_b32 v{t[1]}, v{t[1]}, v{t[2]}
    v_min_u32 v{t[1]}, 6, v{t[1]}
    v_mul_u32_u24 v{t[0]}, 2688, v{t[0]}
    v_lshl_add_u32 v{vw[0]}, v{t[1]}, 4, v{t[0]}
    v_add_u32 v{vw[1]}, {8*2688 - 1024}, v{vw[0]}
    s_waitcnt lgkmcnt(0)
    ''')
    srd(a, SRD_X, P_X, X_BYTES); srd(a, SRD_WQKV, P_WQKV, WQKV_BYTES)
    SX, SW, LX, LW = T3, T4, T5, T6
    a(f'''
    s_lshl_b32 s{SX}, s{S_TB}, 2
    s_add_u32 s{SX}, s{SX}, s{S_W}
    s_mul_i32 s{SX}, s{SX}, {32*896}
    s_mul_i32 s{SW}, s{S_W}, {16*2688}
    s_lshr_b32 s{T0}, s{S_H}, 1
    s_mul_i32 s{T0}, s{T0}, 112
    s_add_u32 s{SW}, s{SW}, s{T0}
    s_and_b32 s{T0}, s{S_H}, 1
    s_mul_i32 s{T0}, s{T0}, 896
    s_add_u32 s{SW}, s{SW}, s{T0}
    s_add_u32 s{SW}, s{SW}, 896
    s_mul_i32 s{LX}, s{S_W}, 20480
    s_lshl_b32 s{LW}, s{S_W}, 11
    s_add_u32 s{LW}, s{LW}, {WR}
    ''')
    def dma_items(c):
        sl = c % NSLOT
        out = []
        for i in range(2):
            out.append(([f's_add_u32 m0, s{LW}, {sl*8192}', f's_mul_i32 s{T0}, s{S_ROT}, {64*2688}', f's_add_u32 s{T0}, s{T0}, s{SW}'] if i == 0 else []) +
                       [('vm', f'buffer_load_dwordx4 v{vw[i]}, {sr4(SRD_WQKV)}, s{T0} offen offset:{1024*i} lds', f'c{c}')])
        for i in range(4):
            out.append(([f's_add_u32 m0, s{LX}, {sl*4096}'] if i == 0 else []) +
                       ([f's_lshl_b32 s{T0}, s{S_ROT}, 7', f's_add_u32 s{T0}, s{T0}, s{SX}'] if i == 0 else []) +
                       ([f's_add_u32 s{T0}, s{T0}, 12288'] if i == 2 else []) +
                       [('vm', f'buffer_load_dwordx4 v{vx[i&1]}, {sr4(SRD_X)}, s{T0} offen offset:{1024*i} lds', f'c{c}')] +
                       ([f's_add_u32 s{S_ROT}, s{S_ROT}, 1', f's_cmp_eq_u32 s{S_ROT}, 7', f's_cselect_b32 s{S_ROT}, 0, s{S_ROT}'] if i == 3 else []))
        return out
    def dma(c):
        for it in dma_items(c):
            for x in it: a.emit(x)
    a.stamp('G_karg')
    NPRE = opt('npre', 2)
    a(f'''
    s_lshr_b32 s{S_ROT}, s{S_J}, 3
    s_mul_i32 s{S_ROT}, s{S_ROT}, {opt('rotm', 2)}
    s_and_b32 s{T0}, s{S_J}, 7
    s_add_u32 s{S_ROT}, s{S_ROT}, s{T0}
    s_mul_i32 s{T0}, s{S_ROT}, 37
    s_lshr_b32 s{T0}, s{T0}, 8
    s_mul_i32 s{T0}, s{T0}, 7
    s_sub_u32 s{S_ROT}, s{S_ROT}, s{T0}
    s_lshl_b32 s{S_DUM}, s{S_ROT}, 2
    ''')
    for c in range(NPRE): dma(c)
    if opt('touchA', 0):
        HBv = opt('hb', 3); nl = {1: 2, 2: 3, 3: 4, 4: 7}[HBv]; ntok = 4096 >> HBv >> 0
        ntok = (32 >> HBv) * 128
        rows_x = ntok // 128
        a(f'''
        s_lshl_b32 s{T1}, s{S_J}, 2
        s_add_u32 s{T1}, s{T1}, s{S_W}
        s_lshr_b32 s{T2}, s{S_TB}, {5 - HBv}
        s_mul_i32 s{T2}, s{T2}, {ntok * 896}
        s_mul_i32 s{T0}, s{T1}, {rows_x * 896}
        s_add_u32 s{T0}, s{T0}, s{T2}
        ''')
        nx = rows_x * 7
        for i in range(0, nx, 64):
            a(xm(nx - i))
            a.vmem(f'buffer_load_dword a{1 + i // 64}, v{V_FL}, {sr4(SRD_X)}, s{T0} offen', 'touch')
            a(f's_add_u32 s{T0}, s{T0}, 8192')
        per = 4 * 3 * nl
        a(f'''
        s_mov_b64 exec, -1
        v_mul_u32_u24 v{t[3]}, {(65536 + nl - 1) // nl}, v{V_LANE}
        v_lshrrev_b32 v{t[3]}, 16, v{t[3]}
        v_mul_u32_u24 v{t[4]}, {nl}, v{t[3]}
        v_sub_u32 v{t[4]}, v{V_LANE}, v{t[4]}
        v_mul_u32_u24 v{t[3]}, 896, v{t[3]}
        v_lshl_add_u32 v{t[3]}, v{t[4]}, 7, v{t[3]}
        s_mul_i32 s{T0}, s{T1}, {4 * 2688}
        s_lshr_b32 s{T2}, s{S_H}, {HBv}
        s_mul_i32 s{T2}, s{T2}, {56 << HBv}
        s_and_b32 s{T2}, s{T2}, 0xffffff80
        s_add_u32 s{T0}, s{T0}, s{T2}
        {xm(per)}
        ''')
        a.vmem(f'buffer_load_dword a3, v{t[3]}, {sr4(SRD_WQKV)}, s{T0} offen', 'touch')
        a('s_mov_b64 exec, -1')
    a.stamp('G_dma0')
    assert T1 % 2 == 0 and T2 == T1 + 1
    a(f's_add_u32 s{T1}, s{P_WS}, {WS_FLG}\ns_addc_u32 s{T2}, s{P_WS+1}, 0\ns_load_dword s{S_TAG}, s[{T1}:{T2}], 0')
    srd(a, SRD_WS, P_WS, WS_SIZE)
    def touch_item():
        TA, TB, TC = T1, T2, T0
        return [f's_lshl_b32 s{TA}, s2, 2', f's_add_u32 s{TA}, s{TA}, s{S_W}', f's_mul_i32 s{TB}, s{TA}, 1338', f's_lshr_b32 s{TB}, s{TB}, 18',
                f's_mul_i32 s{TC}, s{TB}, 196', f's_sub_u32 s{TA}, s{TA}, s{TC}', f's_lshl_b32 s{TA}, s{TA}, 13',
                f's_cmp_eq_u32 s{TB}, 1', f's_cselect_b32 s{SRD_A}, s{P_W3}, s{P_W1}', f's_cselect_b32 s{SRD_A+1}, s{P_W3+1}, s{P_W1+1}',
                f's_cmp_eq_u32 s{TB}, 2', f's_cselect_b32 s{SRD_A}, s{P_W2}, s{SRD_A}', f's_cselect_b32 s{SRD_A+1}, s{P_W2+1}, s{SRD_A+1}',
                f's_mov_b32 s{SRD_A+2}, {W1_BYTES}',
                f's_cmp_eq_u32 s{TB}, 3', f's_cselect_b32 s{SRD_A}, s{P_WO}, s{SRD_A}', f's_cselect_b32 s{SRD_A+1}, s{P_WO+1}, s{SRD_A+1}',
                f's_cselect_b32 s{SRD_A+2}, {WO_BYTES}, s{SRD_A+2}',
                f's_cmp_gt_u32 s{TB}, 3', f's_cselect_b32 s{SRD_A+2}, 0, s{SRD_A+2}', f's_mov_b32 s{SRD_A+3}, 0x20000',
                ('vm', f'buffer_load_dword a0, v{V_FL}, {sr4(SRD_A)}, s{TA} offen', 'touch')]
    def prew():
        a(f'''
        v_mov_b32 v{t[7]}, s{S_TAG}
        v_add_u32 v{t[7]}, -1, v{t[7]}
        v_lshlrev_b32 v{t[5]}, 2, v{V_LANE}
        {xm(32)}
        s_lshr_b32 s{T1}, s{S_H}, 1
        s_lshl_b32 s{T1}, s{T1}, 2
        s_add_u32 s{T1}, s{T1}, s{S_W}
        s_lshl_b32 s{T1}, s{T1}, 1
        s_and_b32 s{T2}, s{S_H}, 1
        s_add_u32 s{T1}, s{T1}, s{T2}
        s_lshl_b32 s{T1}, s{T1}, 4
        s_add_u32 s{T1}, s{T1}, s{S_TB}
        s_lshl_b32 s{T1}, s{T1}, 7
        s_add_u32 s{T1}, s{T1}, {FL_A}
        ''')
        st_ = lambda: a.vmem(f'buffer_store_dword v{t[7]}, v{t[5]}, {sr4(SRD_WS)}, s{T1} offen sc1', 'prew')
        st_()
        a(f's_lshl_b32 s{T1}, s{S_TB}, 2\ns_add_u32 s{T1}, s{T1}, s{S_W}\ns_lshl_b32 s{T1}, s{T1}, 4\ns_add_u32 s{T1}, s{T1}, s{S_H}\ns_lshl_b32 s{T1}, s{T1}, 7\ns_add_u32 s{T1}, s{T1}, {FL_B}')
        st_()
        a(f's_lshl_b32 s{T1}, s{S_TD}, 2\ns_add_u32 s{T1}, s{T1}, s{S_W}\ns_lshl_b32 s{T1}, s{T1}, 4\ns_add_u32 s{T1}, s{T1}, s{S_FS}\ns_lshl_b32 s{T1}, s{T1}, 7\ns_add_u32 s{T1}, s{T1}, {FL_D1}')
        for i in range(3):
            st_(); a(f's_add_u32 s{T1}, s{T1}, {FLS}')
        a(f'''
        s_lshl_b32 s{T1}, s{S_RB}, 1
        s_and_b32 s{T2}, s{S_W}, 1
        s_add_u32 s{T1}, s{T1}, s{T2}
        s_lshl_b32 s{T1}, s{T1}, 3
        s_add_u32 s{T1}, s{T1}, s{S_CB}
        s_lshl_b32 s{T1}, s{T1}, 1
        s_lshr_b32 s{T2}, s{S_W}, 1
        s_add_u32 s{T1}, s{T1}, s{T2}
        s_lshl_b32 s{T1}, s{T1}, 7
        s_add_u32 s{T1}, s{T1}, {FL_C}
        s_cmp_ge_u32 s{S_J}, 28
        s_cselect_b32 s{T1}, 0x40000000, s{T1}
        ''')
        st_()
        a('s_mov_b64 exec, -1')
    def dmaq_items():
        out = []
        for i in range(7):
            out.append([] +
                       [f's_add_u32 m0, s{S_U0}, {i*1024}', f's_mul_i32 s{T0}, s{S_U1}, {16*2688}', f's_add_u32 s{T0}, s{T0}, s{S_E0}',
                        ('vm', f'buffer_load_dwordx4 v{vq}, {sr4(SRD_WQKV)}, s{T0} offen lds', 'wq'),
                        f's_add_u32 s{S_U1}, s{S_U1}, 1', f's_cmp_eq_u32 s{S_U1}, 28', f's_cselect_b32 s{S_U1}, 0, s{S_U1}'])
        return out
    a(f'''
    s_mul_i32 s{S_U0}, s{S_W}, {7*1024}
    s_add_u32 s{S_U0}, s{S_U0}, {WQ}
    s_mul_i32 s{S_U1}, s{S_W}, 7
    s_add_u32 s{S_U1}, s{S_U1}, s{S_DUM}
    s_cmp_ge_u32 s{S_U1}, 28
    s_cselect_b32 s{T0}, 28, 0
    s_sub_u32 s{S_U1}, s{S_U1}, s{T0}
    s_mul_i32 s{S_E0}, s{S_H}, 56
    ''')
    a(f'''
    v_lshrrev_b32 v{t[0]}, 2, v{V_LANE}
    v_mul_u32_u24 v{t[0]}, 2688, v{t[0]}
    v_and_b32 v{t[3]}, 3, v{V_LANE}
    v_lshl_add_u32 v{vq}, v{t[3]}, 4, v{t[0]}
    v_lshrrev_b32 v{t[0]}, 1, v{n31}
    v_and_b32 v{t[0]}, 7, v{t[0]}
    v_lshlrev_b32 v{t[1]}, 7, v{n31}
    v_add_u32 v{t[1]}, s{LX}, v{t[1]}
    v_bfe_u32 v{t[2]}, v{V_LANE}, 4, 1
    v_lshlrev_b32 v{t[2]}, 5, v{t[2]}
    v_lshl_add_u32 v{t[2]}, v{t[3]}, 3, v{t[2]}       ; cg*32 + c4*8
    v_bfe_u32 v{t[3]}, v{V_LANE}, 2, 2                ; r
    v_lshl_add_u32 v{t[5]}, v{hf}, 3, v{t[3]}         ; 8hf + r
    v_lshl_add_u32 v{t[6]}, v{t[5]}, 6, v{t[2]}
    v_bfe_u32 v{t[3]}, v{V_LANE}, 3, 1
    v_lshlrev_b32 v{t[3]}, 6, v{t[3]}                 ; 64*bit
    v_add_u32 v{t[4]}, 56, v{t[2]}
    v_xor_b32 v{t[4]}, v{t[4]}, v{t[3]}
    v_xor_b32 v{t[2]}, v{t[2]}, v{t[3]}
    v_sub_u32 v{dB}, v{t[4]}, v{t[2]}
    v_lshl_add_u32 v{t[2]}, v{t[5]}, 7, v{t[2]}
    v_add_u32 v{t[2]}, {WR}, v{t[2]}
    ''')
    AQ = t[6]
    for n in range(4):
        a(f'''
        s_add_u32 s{T0}, s{S_W}, {n}
        s_and_b32 s{T0}, s{T0}, 3
        s_lshl_b32 s{T1}, s{T0}, 1
        v_add_u32 v{t[4]}, s{T1}, v{hf}
        v_xor_b32 v{t[4]}, v{t[4]}, v{t[0]}
        v_lshl_add_u32 v{ax[n]}, v{t[4]}, 4, v{t[1]}
        s_lshl_b32 s{T1}, s{T0}, 11
        v_add_u32 v{aw[n]}, s{T1}, v{t[2]}
        v_add_u32 v{ab[n]}, v{dB}, v{aw[n]}
        ''')
    for r in sm + sq + cs: a(f'v_mov_b32 v{r}, 0')
    a(f's_mov_b32 s{S_ONES}, 0x3f803f80')
    PA = t[0]; CA = t[1]; CR = t[2]; PB = vx[0]
    def reads(s_):
        c, n = divmod(s_, 4); sl = c % NSLOT; b = s_ % NWF
        return [f'ds_read_b128 {vr(X[s_],4)}, v{ax[n]} offset:{sl*4096}'] + \
               [f'ds_read_b64_tr_b16 {vr(WF[b][0]+2*u,2)}, v{aw[n]} offset:{sl*8192 + u*512}' for u in range(2)] + \
               [f'ds_read_b64_tr_b16 {vr(WF[b][1]+2*u,2)}, v{ab[n]} offset:{sl*8192 + u*512}' for u in range(2)]
    if opt('spre', 1):
        ssrd(a, SRD_A, 512, P_W1, P_W3, W1_BYTES, W1_BYTES, 3200, T1, T2)
        for i in range(opt('spreA', 0)): a(sld(SRD_A, 128*i))
    visit(a, 0)
    a.stamp('A_issued')
    a.vmwait('c0', lgkm=0); a('s_barrier'); a.stamp('A_c0')
    a(f's_add_u32 s{S_TAG}, s{S_TAG}, 1')
    for x in reads(0) + reads(1): a(x)
    a(f's_bitcmp1_b32 s{S_H}, 0\ns_cbranch_scc1 LAV')
    vm0 = list(a.vm)
    for typ in range(2):
        if typ == 1:
            a.label('LAV'); a.vm = list(vm0)
        step = 0
        q_dma = []
        for c in range(NPRE, 7): q_dma += [(max(0, c - NSLOT + 1), it) for it in dma_items(c)]
        wq0 = opt('wq0', 11); wqs = opt('wqs', 2)
        NQE = opt('nqe', 7)
        q_dma += [(0, [('at', wq0 + wqs*i)] + it) for i, it in enumerate(dmaq_items()) if i < NQE]
        pass
        if opt('prew', 1): q_dma.insert(len(q_dma) - NQE, (0, [('at', opt('prewat', 12)), ('call', prew)]))
        PER = opt('dmaper', 1); cur = [0]
        def side(c):
            for _ in range(PER):
                if q_dma and q_dma[0][0] <= c:
                    x0 = q_dma[0][1][0]
                    if isinstance(x0, tuple) and x0[0] == 'at' and x0[1] > cur[0]: return
                    for x in q_dma.pop(0)[1]: a.emit(x)
        def dots(c):
            for n in range(4):
                x = X[4*c+n]
                for i in range(4):
                    a(f'v_dot2c_f32_bf16 v{sm[i&1]}, s{S_ONES}, v{x+i}')
                    a(f'v_dot2c_f32_bf16 v{sq[i&1]}, v{x+i}, v{x+i}')
                side(c + 1)
        def mf(step_, j):
            x = X[step_]; b = step_ % NWF
            A_, B_ = (WF[b][j], x) if typ == 0 else (x, WF[b][j])
            return f'{MFMA} {vr(ACC[j],16)}, {vr(A_,4)}, {vr(B_,4)}, {vr(ACC[j],16) if step_ else 0}'
        def csdots(step_):
            for i in range(4):
                for j in range(2): a(f'v_dot2c_f32_bf16 v{cs[1+j]}, s{S_ONES}, v{WF[step_ % NWF][j]+i}')
        for c in range(6):
            for n in range(4):
                if n == 2:
                    while q_dma and any(isinstance(x, tuple) and x[0] == 'vm' and x[2] == f'c{c+1}' for _, it in q_dma for x in it):
                        assert q_dma[0][0] <= c
                        for x in q_dma.pop(0)[1]: a.emit(x)
                    a.stamp(f'G_pre{c+1}')
                    a.vmwait(f'c{c+1}', lgkm=0); a('s_barrier')
                    a.stamp(f'G_c{c+1}')
                else:
                    a('s_waitcnt lgkmcnt(5)')
                rd = reads(step + 2)
                if n == 0: csdots(step)
                for j in range(2):
                    a(mf(step, j))
                    for y in (rd[:3] if j == 0 else rd[3:]): a(y)
                    side(c + (1 if n >= 2 else 0))
                step += 1; cur[0] = step
            if c == 5:
                for y in reads(26) + reads(27): a(y)
            dots(c)
        a('s_waitcnt lgkmcnt(0)')
        cur[0] = 24
        csdots(24); dots(6)
        while q_dma:
            for x in q_dma.pop(0)[1]: a.emit(x)
        hs = lambda x, tt: [f'v_mov_b32 v{tt}, v{x}', f'v_permlane32_swap_b32 v{x}, v{tt}', f'v_add_f32 v{x}, v{x}, v{tt}']
        ex = hs(cs[1], t[3]) + hs(cs[2], t[4]) + [
            f's_mul_i32 s{T0}, s{S_W}, 384', f's_add_u32 s{T0}, s{T0}, {CSP}', f'v_lshlrev_b32 v{t[7]}, 2, v{n31}', f'v_add_u32 v{CA}, s{T0}, v{t[7]}',
            f'ds_write_b32 v{CA}, v{cs[1]} offset:128', f'ds_write_b32 v{CA}, v{cs[2]} offset:256',
            f'v_add_f32 v{sm[0]}, v{sm[0]}, v{sm[1]}', f'v_add_f32 v{sq[0]}, v{sq[0]}, v{sq[1]}'] + hs(sm[0], t[3]) + hs(sq[0], t[4]) + [
            f'v_mul_u32_u24 v{CR}, 768, v{hf}', f'v_add_u32 v{CR}, v{CR}, v{t[7]}', f'v_add_u32 v{CR}, {CSP}, v{CR}',
            's_waitcnt lgkmcnt(0)', 's_barrier']
        for j in (1, 2): ex += [f'ds_read_b32 v{cs[j]}, v{CR} offset:{j*128}', f'ds_read_b32 v{t[3+j]}, v{CR} offset:{384 + j*128}']
        ex += [f'v_mul_f32 v{mu}, {fx(1.0/448)}, v{sm[0]}', f'v_mul_f32 v{t[3]}, {fx(1.0/448)}, v{sq[0]}',
               f'v_fma_f32 v{t[3]}, -v{mu}, v{mu}, v{t[3]}', f'v_max_f32 v{t[3]}, 0, v{t[3]}', f'v_add_f32 v{t[3]}, {fx(1e-5)}, v{t[3]}',
               f'v_rsq_f32 v{rs}, v{t[3]}', f's_lshl_b32 s{T0}, s{S_W}, 9', f's_add_u32 s{T0}, s{T0}, {PRV}',
               f'v_add_u32 v{PA}, s{T0}, v{t[7]}', f'v_lshlrev_b32 v{PB}, 4, v{hf}', f'v_add_u32 v{PB}, s{T0}, v{PB}']
        if typ == 1:
            ex += [f'ds_write_b32 v{PA}, v{mu} offset:256', f'ds_write_b32 v{PA}, v{rs} offset:384']
            for q in range(4): ex += [f'ds_read_b128 {vr(T16+4*q,4)}, v{PB} offset:{256 + 32*q}', f'ds_read_b128 {vr(U16+4*q,4)}, v{PB} offset:{384 + 32*q}']
            ex += ['s_waitcnt lgkmcnt(10)']
        else:
            ex += ['s_waitcnt lgkmcnt(0)']
        for j in (1, 2): ex += [f'v_add_f32 v{cs[j]}, v{cs[j]}, v{t[3+j]}']
        ex += hs(cs[1], t[3]) + hs(cs[2], t[4])
        if typ == 0:
            ex += [f'ds_write_b32 v{PA}, v{cs[1]}', f'ds_write_b32 v{PA}, v{cs[2]} offset:128']
            ex += [f'ds_read_b128 {vr(T16+4*q,4)}, v{PB} offset:{32*q}' for q in range(4)]
            ex += [f'ds_read_b128 {vr(U16+4*q,4)}, v{PB} offset:{128 + 32*q}' for q in range(4)]
            ex += [f'v_cmp_lt_u32 vcc, 31, v{V_LANE}']
        else:
            ex += [f'v_cmp_eq_u32 vcc, 28, v{n31}', f'v_mov_b32 v{t[7]}, s{S_ONES}', f'v_cndmask_b32 v{t[7]}, 0, v{t[7]}, vcc', f'v_cmp_lt_u32 vcc, 27, v{n31}']
        ex += [f'v_mul_f32 v{rq}, {fx(28**-0.5 * math.log2(math.e))}, v{rs}',
               f's_lshl_b32 s{T0}, s{S_TB}, 2', f's_add_u32 s{T0}, s{T0}, s{S_W}', f's_and_b32 s{T1}, s{S_H}, 14', f's_lshl_b32 s{T1}, s{T1}, 6',
               f's_add_u32 s{T0}, s{T0}, s{T1}', f's_lshl_b32 s{T0}, s{T0}, 12', f's_add_u32 s{T1}, s{T0}, {64*4096}']
        order = [(st_, 0) for st_ in range(24, 28)] + [(st_, 1) for st_ in range(24, 28)]
        per = opt('exper', 6)
        for st_, j in order:
            a(mf(st_, j))
            for x in ex[:per]: a(x)
            ex = ex[per:]
        for x in ex: a(x)
        a.stamp('A_kvloop')
        NEG1 = 'op_sel_hi:[1,0,1] neg_lo:[0,1,0] neg_hi:[0,1,0]'
        for j in range(2):
            A_ = ACC[j]; P_ = WF[j][0]
            if typ == 0:
                a(f's_waitcnt lgkmcnt({4*(1-j)})')
                C_ = (T16, U16)[j]
                for r in range(0, 16, 2): a(f'v_pk_fma_f32 {vr(A_+r,2)}, {vr(C_+r,2)}, {vr(mu,2)}, {vr(A_+r,2)} {NEG1}')
                for r in range(0, 16, 2): a(f'v_pk_mul_f32 {vr(A_+r,2)}, {vr(A_+r,2)}, {vr(rs,2)} op_sel_hi:[1,0]')
                for i in range(8): a(f'v_cvt_pk_bf16_f32 v{P_+i}, v{A_+2*i}, v{A_+2*i+1}')
                if j == 0: a(f'v_mov_b32 v{t[3]}, s{S_ONES}\nv_mov_b32 v{t[4]}, 0x3f80')
                a(f'v_cndmask_b32 v{P_+6}, v{P_+6}, v{t[3]}, vcc\nv_cndmask_b32 v{P_+7}, v{P_+7}, v{t[4]}, vcc')
            else:
                if j == 0: a('s_waitcnt lgkmcnt(0)')
                for r in range(0, 16, 2): a(f'v_pk_fma_f32 {vr(A_+r,2)}, {vr(T16+r,2)}, {vr(cs[1+j],2)}, {vr(A_+r,2)} {NEG1}')
                for r in range(0, 16, 2): a(f'v_pk_mul_f32 {vr(A_+r,2)}, {vr(A_+r,2)}, {vr(U16+r,2)}')
                for i in range(8): a(f'v_cvt_pk_bf16_f32 v{P_+i}, v{A_+2*i}, v{A_+2*i+1}')
                for i in range(8): a(f'v_cndmask_b32 v{P_+i}, v{P_+i}, v{t[7]}, vcc')
            for u in range(2):
                a.vmem(f'buffer_store_dwordx4 {vr(P_+4*u,4)}, v{V_OFF}, {sr4(SRD_WS)}, s{(T0, T1)[j]} offen offset:{2048*typ + 1024*u} sc1', 'stA')
        if typ == 0: a('s_branch LAQ')
    a.label('LAQ')
    a.stamp('A_kvst')
    aq = aw
    for n in range(4):
        a(f'''
        s_add_u32 s{T0}, s{S_W}, {n}
        s_and_b32 s{T0}, s{T0}, 3
        s_lshl_b32 s{T0}, s{T0}, 10
        s_add_u32 s{T0}, s{T0}, {WQ}
        v_add_u32 v{aq[n]}, s{T0}, v{AQ}
        ''')
    a(f'''
    s_lshr_b32 s{T1}, s{S_H}, 1
    s_lshl_b32 s{T1}, s{T1}, 2
    s_add_u32 s{T1}, s{T1}, s{S_W}
    s_lshl_b32 s{T1}, s{T1}, 12
    s_add_u32 s{T5}, s{T1}, {FL_A}
    s_and_b32 s{T1}, s{S_H}, 1
    s_lshl_b32 s{T1}, s{T1}, 4
    s_add_u32 s{T1}, s{T1}, s{S_TB}
    s_lshl_b32 s{T1}, s{T1}, 7
    s_add_u32 s{T1}, s{T5}, s{T1}
    ''')
    def publish():
        a.vmwait('stA'); flag_store(a, T1, t[3]); a.stamp('A_flag')
    FAQ = opt('fAq', 7)
    for i, it in enumerate(dmaq_items()):
        if i >= NQE:
            for x in it: a.emit(x)
        if i == FAQ: publish()
    a.vmwait('wq'); a('s_barrier')
    a.stamp('A_wq')
    QB = [ACC[0] + 4*i for i in range(8)]
    NQ = 8
    def rdq(s_):
        c, n = divmod(s_, 4)
        for u in range(2): a(f'ds_read_b64_tr_b16 {vr(QB[s_ % NQ]+2*u,2)}, v{aq[n]} offset:{c*4096 + u*256}')
    AH = 5
    for s_ in range(AH): rdq(s_)
    hs = lambda x, tt: [f'v_mov_b32 v{tt}, v{x}', f'v_permlane32_swap_b32 v{x}, v{tt}', f'v_add_f32 v{x}, v{x}, v{tt}']
    ex = []
    for s_ in range(28):
        if s_ + AH < 28:
            a(f's_waitcnt lgkmcnt({2*(AH-1)})')
        elif s_ == 28 - AH:
            a('s_waitcnt lgkmcnt(0)')
            for i in range(4): a(f'v_dot2c_f32_bf16 v{cs[0]}, s{S_ONES}, v{QB[24 % NQ]+i}')
            ex = hs(cs[0], t[4]) + [f'ds_write_b32 v{CA}, v{cs[0]}', 's_waitcnt lgkmcnt(0)', 's_barrier',
                 f'ds_read_b32 v{cs[0]}, v{CR}', f'ds_read_b32 v{t[4]}, v{CR} offset:384', f'v_cmp_lt_u32 vcc, 31, v{V_LANE}', 's_waitcnt lgkmcnt(0)',
                 f'v_add_f32 v{cs[0]}, v{cs[0]}, v{t[4]}'] + hs(cs[0], t[4]) + [f'ds_write_b32 v{PA}, v{cs[0]}'] + \
                 [f'ds_read_b128 {vr(T16+4*q,4)}, v{PB} offset:{32*q}' for q in range(4)]
        if s_ % 4 == 0 and s_ < 24:
            for i in range(4): a(f'v_dot2c_f32_bf16 v{cs[0]}, s{S_ONES}, v{QB[s_ % NQ]+i}')
        a(f'{MFMA} {vr(accQ,16)}, {vr(QB[s_ % NQ],4)}, {vr(X[s_],4)}, {vr(accQ,16) if s_ else 0}')
        if s_ + AH < 28: rdq(s_ + AH)
        for x in ex[:4]: a(x)
        ex = ex[4:]
        if s_ == opt('fAs', 20) and FAQ > 6: publish()
    for x in ex: a(x)
    if opt('pollA', 1) == 2: poll_issue(a, T5, V_FL, 32, R['t'][0])
    a('s_waitcnt lgkmcnt(0)')
    NEG1 = 'op_sel_hi:[1,0,1] neg_lo:[0,1,0] neg_hi:[0,1,0]'
    for r in range(0, 16, 2): a(f'v_pk_fma_f32 {vr(accQ+r,2)}, {vr(T16+r,2)}, {vr(mu,2)}, {vr(accQ+r,2)} {NEG1}')
    for r in range(0, 16, 2): a(f'v_pk_mul_f32 {vr(accQ+r,2)}, {vr(accQ+r,2)}, {vr(rq,2)} op_sel_hi:[1,0]')
    for i in range(8): a(f'v_cvt_pk_bf16_f32 v{Q0+i}, v{accQ+2*i}, v{accQ+2*i+1}')
    for i in (6, 7): a(f'v_cndmask_b32_e64 v{Q0+i}, v{Q0+i}, 0, vcc')
    a.stamp('A_q')

def w13_setup(a, S13, L13):
    a(f'''
    s_cmp_lt_u32 s{S_W}, 2
    s_cselect_b32 s{SRD_B}, s{P_W1}, s{P_W3}
    s_cselect_b32 s{SRD_B+1}, s{P_W1+1}, s{P_W3+1}
    s_mov_b32 s{SRD_B+2}, {W1_BYTES}
    s_mov_b32 s{SRD_B+3}, 0x20000
    s_and_b32 s{T0}, s{S_W}, 1
    s_mul_i32 s{T0}, s{T0}, 7
    s_add_u32 s{T0}, s{T0}, s{S_R14}
    s_sub_u32 s{S_RG}, s{T0}, 14
    s_min_u32 s{S_RG}, s{S_RG}, s{T0}
    s_mul_i32 s{S_RG}, s{S_RG}, {32*3584}
    s_mul_i32 s{S13}, s{S_FS}, 224
    s_mul_i32 s{L13}, s{S_W}, 14336
    ''')

def rg_next():
    return [f's_add_u32 s{S_RG}, s{S_RG}, {32*3584}', f's_sub_u32 s{T0}, s{S_RG}, {14*32*3584}', f's_min_u32 s{S_RG}, s{S_RG}, s{T0}']

def pair_dma(S13, L13, slot, col, i, tag):
    return [f's_add_u32 m0, s{L13}, {slot*PAIR + i*1024}',
            f's_add_u32 s{T0}, s{S13}, s{S_RG}'] + ([f's_add_u32 s{T0}, s{T0}, {16*3584}'] if i & 1 else []) + \
           [('vm', f'buffer_load_dwordx4 v{V_P13}, {sr4(SRD_B)}, s{T0} offen lds', tag)] + (rg_next() if i & 1 else [])

def alloc_b():
    va = VA(4, 204)
    KV = [va(16) for _ in range(3)] + ([WOV] if opt('nkv', 4) == 4 else [])
    Q = [va(8) for _ in range(4)]
    O = [va(16) for _ in range(4)]
    S = [va(16), va(16)]
    P = [va(8), va(8)]
    t = [va() for _ in range(8)]
    v5 = 215 + 8
    return dict(KV=KV, Q=Q, O=O, S=S, P=P, t=t, v5=v5)

def phase_b(a, R, stg):
    KV, Q, O, S, P, t, v5 = (R[k] for k in ('KV', 'Q', 'O', 'S', 'P', 't', 'v5'))
    QX = R['QX']
    S13, L13, SKV, SB = T3, T4, T6, T2
    qa = t[4:8]
    MA = [240, 241, 242, 243]; VKV = 244; VP2 = 245; VX = 246
    a(f'''
    s_lshl_b32 s{SKV}, s{S_H}, 6
    s_add_u32 s{SKV}, s{SKV}, s{S_W}
    s_lshl_b32 s{SKV}, s{SKV}, 12
    v_add_u32 v{VKV}, s{SKV}, v{V_OFF}
    s_lshl_b32 s{SB}, s{S_TB}, 14
    ''')
    if opt('pollA', 1) == 1:
        visit(a, 1)
        if opt('dlyA', 0): a(f"s_sleep {opt('dlyA', 0)}")
        poll_issue(a, T5, V_FL, 32, t[0])
    a.stamp('B_pre')
    poll_check(a, T5, V_FL, 32, t[0])
    a.stamp('B_poll')
    def kvload(buf):
        return [('vm', f'buffer_load_dwordx4 {vr(KV[buf]+4*j,4)}, v{VKV}, {sr4(SRD_WS)}, s{SB} offen offset:{1024*j} sc1', f'k{buf}' if j < 2 else f'kv{buf}') for j in range(4)] + \
               [f's_add_u32 s{SB}, s{SB}, 0x4000', f's_and_b32 s{SB}, s{SB}, 0x3c000']
    NKV = len(KV)
    NK0 = opt('nk0', 1)
    for b in range(NK0):
        for x in kvload(b): a.emit(x)
    for lq in range(4):
        a(f'''
        s_add_u32 s{T0}, s{S_W}, {lq}
        s_and_b32 s{T0}, s{T0}, 3
        s_lshl_b32 s{T0}, s{T0}, 11
        s_add_u32 s{T0}, s{T0}, {QX}
        v_add_u32 v{qa[lq]}, s{T0}, v{V_OFF}
        ''')
    a(f'ds_write_b128 v{qa[0]}, {vr(Q[0],4)}')
    stg.src_setup(t[1], t[2], t[3])
    w13_setup(a, S13, L13)
    a(f'''
    s_lshl_b32 s{T0}, s{S_E0}, 5
    s_add_u32 s{S13}, s{S13}, s{T0}
    s_and_b32 s{T0}, s{S_W}, 2
    v_and_b32 v{t[1]}, 3, v{V_LANE}
    v_xor_b32 v{t[1]}, s{T0}, v{t[1]}
    v_lshrrev_b32 v{t[2]}, 2, v{V_LANE}
    v_mul_u32_u24 v{t[2]}, 3584, v{t[2]}
    v_lshl_add_u32 v{V_P13}, v{t[1]}, 4, v{t[2]}
    s_lshl_b32 s{T0}, s{T0}, 1
    v_lshrrev_b32 v{t[1]}, 1, v{V_LANE}
    v_xor_b32 v{t[1]}, s{T0}, v{t[1]}
    v_mul_u32_u24 v{t[1]}, 3584, v{t[1]}
    v_and_b32 v{t[2]}, 1, v{V_LANE}
    v_lshl_add_u32 v{v5}, v{t[2]}, 4, v{t[1]}
    v_add_u32 v{VP2}, {16*3584 - 1024}, v{V_P13}
    s_waitcnt lgkmcnt(0)
    s_barrier
    ''')
    for lq in range(4):
        a(f'''
        s_add_u32 s{T0}, s{S_W}, {lq}
        s_and_b32 s{T0}, s{T0}, 3
        s_mul_i32 s{T0}, s{T0}, 12288
        s_add_u32 s{T0}, s{T0}, {SCR}
        v_add_u32 v{MA[lq]}, s{T0}, v{V_OFF}
        ''')
    a(f'''
    s_and_b32 s{SKV}, s{S_W}, 1
    s_lshl_b32 s{T0}, s{S_RB}, 1
    s_add_u32 s{SKV}, s{SKV}, s{T0}
    s_mul_i32 s{SKV}, s{SKV}, {32*896}
    s_lshr_b32 s{T0}, s{S_W}, 1
    s_lshl_b32 s{T0}, s{T0}, 6
    s_add_u32 s{SKV}, s{SKV}, s{T0}
    s_lshl_b32 s{T0}, s{S_CB}, 7
    s_add_u32 s{SKV}, s{SKV}, s{T0}
    v_and_b32 v{VX}, 31, v{V_LANE}
    v_lshrrev_b32 v{t[1]}, 5, v{V_LANE}
    v_mul_u32_u24 v{VX}, 896, v{VX}
    v_lshl_add_u32 v{VX}, v{t[1]}, 4, v{VX}
    ''')
    for lq in range(1, 4): a(f'ds_read_b128 {vr(Q[lq],4)}, v{qa[lq]}')
    spre = []; spre2 = []
    if opt('spre', 1):
        ssrd(a, SRD_WQKV, 784, P_W2, P_WO, W2_BYTES, WO_BYTES, 2048, S_U0, S_U1)
        spre = [[sld(SRD_A, 128*i)] for i in range(opt('spreA', 0), 25)]
        spre2 = [[sld(SRD_WQKV, 128*i)] for i in range(16)]
        if opt('spre0', 0):
            a('s_waitcnt lgkmcnt(0)')
            for _ in range(opt('spre0', 0)): a(spre.pop(0)[0])
    NK1 = opt('nk1', 2)
    for b in range(NK0, NK1):
        for x in kvload(b): a.emit(x)
    s_kv = []
    for T in range(NK1, NKV):
        s_kv += [(opt('kvS', 2) * (6 * (T - NK1) + k_), x) for k_, x in enumerate(kvload(T))]
    for T in range(NKV, 16):
        s_kv += [(16 * (T - NKV + 1) + 3 + opt('kvS', 2) * k_, x) for k_, x in enumerate(kvload(T % NKV))]
    s_w = []; wp = [opt('preP', 70)]
    for g in range(7):
        it = (rg_next() if g else []) + [f's_add_u32 s{T0}, s{S13}, s{S_RG}']
        for sl in range(2):
            it += [f's_add_u32 m0, s{L13}, {sl*PAIR + 2*g*1024 - 64*sl}',
                   ('vm', f'buffer_load_dwordx4 v{V_P13}, {sr4(SRD_B)}, s{T0} offen offset:{64*sl} lds', 'w13'),
                   ('vm', f'buffer_load_dwordx4 v{VP2}, {sr4(SRD_B)}, s{T0} offen offset:{1024 + 64*sl} lds', 'w13')]
        it += [('vm', f'buffer_load_dwordx4 {vr(RAW5+4*g,4,"a")}, v{v5}, {sr4(SRD_B)}, s{T0} offen offset:128', 'w13')]
        for x in it:
            if isinstance(x, tuple):
                s_w.append((wp[0], x)); wp[0] += opt('preS', 5)
            else: s_w.append((wp[0] - 4, x))
    s_s = [(4 + opt('sS', 4) * k_, x[0]) for k_, x in enumerate(spre + spre2)]
    s_x = [(opt('xrP', 40), ('vm', f'buffer_load_dwordx4 {vr(XRES,4)}, v{VX}, {sr4(SRD_X)}, s{SKV} offen', 'xr')),
           (opt('xrP', 40) + 6, ('vm', f'buffer_load_dwordx4 {vr(XRES+4,4)}, v{VX}, {sr4(SRD_X)}, s{SKV} offen offset:32', 'xr'))]
    if opt('noW', 0): s_w = []
    if opt('noS', 0): s_s = []
    if opt('noKV', 0): s_kv = []
    streams = [s_kv, s_w, s_x, s_s]
    a.vmwait('k0')
    a(f'{MFMA} {vr(S[0],16)}, {vr(KV[0],4)}, {vr(Q[0],4)}, 0')
    a(f'{MFMA} {vr(S[0],16)}, {vr(KV[0]+4,4)}, {vr(Q[0]+4,4)}, {vr(S[0],16)}')
    a(f'v_cmp_lt_u32 vcc, 31, v{V_LANE}')
    a(f'v_max3_f32 v{t[0]}, v{S[0]}, v{S[0]+1}, v{S[0]+2}\nv_max3_f32 v{t[1]}, v{S[0]+3}, v{S[0]+4}, v{S[0]+5}')
    for r in range(6, 14, 4):
        a(f'v_max3_f32 v{t[0]}, v{t[0]}, v{S[0]+r}, v{S[0]+r+1}\nv_max3_f32 v{t[1]}, v{t[1]}, v{S[0]+r+2}, v{S[0]+r+3}')
    a(f'''
    v_max3_f32 v{t[0]}, v{t[0]}, v{S[0]+14}, v{S[0]+15}
    v_max_f32 v{t[0]}, v{t[0]}, v{t[1]}
    v_mov_b32 v{t[1]}, v{t[0]}
    v_permlane32_swap_b32 v{t[0]}, v{t[1]}
    v_max_f32 v{t[0]}, v{t[0]}, v{t[1]}
    v_cvt_pk_bf16_f32 v{t[0]}, -v{t[0]}, 0
    v_cndmask_b32 v{Q[0]+6}, v{Q[0]+6}, v{t[0]}, vcc
    ds_write_b128 v{qa[0]}, {vr(Q[0]+4,4)} offset:1024
    v_lshlrev_b32 v{t[2]}, 16, v{t[0]}
    ''')
    assert t[2] % 2 == 0
    for r in range(0, 16, 2): a(f'v_pk_add_f32 {vr(S[0]+r,2)}, {vr(S[0]+r,2)}, {vr(t[2],2)} op_sel_hi:[1,0]')
    a('s_waitcnt lgkmcnt(0)\ns_barrier')
    for lq in range(1, 4): a(f'ds_read_b128 {vr(Q[lq]+4,4)}, v{qa[lq]} offset:1024')
    if opt('stag', 0):
        Ls = a.newlabel('stag')
        for w in range(1, 4):
            a(f's_cmp_lt_u32 s{S_W}, {w}\ns_cbranch_scc1 {Ls}')
            for _ in range(opt('stag', 0)): a('s_nop 15')
        a.label(Ls)
    a.stamp('B_first')
    def slot(T, q):
        cb = q & 1; nb = cb ^ 1
        kvn, nq = (T % NKV, q + 1) if q < 3 else ((T + 1) % NKV, 0)
        kvp, pq = (T % NKV, q - 1) if q else ((T - 1) % NKV, 3)
        no_qk = (T == 15 and q == 3); no_pv = (T == 0 and q == 0); first = (T == 0 or (T == 1 and q == 0))
        M = [None if no_qk else f'{MFMA} {vr(S[nb],16)}, {vr(KV[kvn],4)}, {vr(Q[nq],4)}, 0',
             None if no_qk else f'{MFMA} {vr(S[nb],16)}, {vr(KV[kvn]+4,4)}, {vr(Q[nq]+4,4)}, {vr(S[nb],16)}',
             None if no_pv else f'{MFMA} {vr(O[pq],16)}, {vr(KV[kvp]+8,4)}, {vr(P[nb],4)}, {0 if first else vr(O[pq],16)}',
             None if no_pv else f'{MFMA} {vr(O[pq],16)}, {vr(KV[kvp]+12,4)}, {vr(P[nb]+4,4)}, {vr(O[pq],16)}']
        e = lambda r: f'v_exp_f32 v{S[cb]+r}, v{S[cb]+r}'
        c = lambda j: f'v_cvt_pk_bf16_f32 v{P[cb]+j}, v{S[cb]+2*j}, v{S[cb]+2*j+1}'
        seq = [M[0], e(0), e(1), e(2), c(0), e(3), e(4), M[1], c(1), e(5), e(6), c(2), e(7), e(8),
               M[2], c(3), e(9), e(10), c(4), e(11), e(12), M[3], c(5), e(13), e(14), e(15), c(6), c(7)]
        if T == 0 and q == 0: seq.insert(7, 's_waitcnt lgkmcnt(0)')
        for k_, x in enumerate(seq):
            if x is not None: a(x)
            if x is None or x.startswith('v_mfma'):
                mi = pos[0] & 3
                if mi == 3 and q == 2 and T < 15: a.vmwait(f'kv{(T+1)%NKV}')
                elif mi == 3 and q == 0 and T == 0: a.vmwait('kv0')
                else:
                    for st_ in streams:
                        if st_ and st_[0][0] <= pos[0]:
                            a.emit(st_.pop(0)[1]); break
                pos[0] += 1
    pos = [0]
    for T in range(16):
        for q in range(4): slot(T, q)
    assert not any(streams), [len(x) for x in streams]
    a(f'{MFMA} {vr(O[3],16)}, {vr(KV[15 % NKV]+8,4)}, {vr(P[1],4)}, {vr(O[3],16)}')
    a(f'{MFMA} {vr(O[3],16)}, {vr(KV[15 % NKV]+12,4)}, {vr(P[1]+4,4)}, {vr(O[3],16)}')
    a.stamp('B_loop')
    stg.queue(opt('hgM', 4))
    for lq in range(1, 4):
        for j in range(4):
            a(f'ds_write_b128 v{MA[lq]}, {vr(O[lq]+4*j,4)} offset:{(lq-1)*4096 + j*1024}'); stg.one()
    a(f'''
    s_lshl_b32 s{T0}, s{S_TB}, 2
    s_add_u32 s{T0}, s{T0}, s{S_W}
    s_lshl_b32 s{T0}, s{T0}, 4
    s_add_u32 s{T0}, s{T0}, s{S_H}
    s_lshl_b32 s{T5}, s{T0}, 7
    s_add_u32 s{T5}, s{T5}, {FL_B}
    s_lshl_b32 s{T0}, s{T0}, 11
    s_add_u32 s{T0}, s{T0}, {WS_O}
    v_mov_b32 v{t[4]}, {fx(2.0 ** (64 if not opt('forcefb', 0) else -60))}
    v_mov_b32 v{t[5]}, {fx(2.0 ** -64)}
    s_waitcnt lgkmcnt(0)
    s_barrier
    ''')
    for lq in range(1, 4):
        for j in range(4): a(f'ds_read_b128 {vr(O[lq]+4*j,4)}, v{MA[0]} offset:{(lq-1)*4096 + j*1024}')
    stg.flush()
    for lq in range(1, 4):
        a(f's_waitcnt lgkmcnt({4*(3-lq)})')
        for r in range(0, 16, 2): a(f'v_pk_add_f32 {vr(O[0]+r,2)}, {vr(O[0]+r,2)}, {vr(O[lq]+r,2)}')
    a(f'''
    v_mov_b32 v{t[0]}, v{O[0]+12}
    v_mov_b32 v{t[1]}, v{O[0]+12}
    v_permlane32_swap_b32 v{t[0]}, v{t[1]}
    v_med3_f32 v{t[3]}, v{t[1]}, v{t[4]}, v{t[5]}
    v_cmp_neq_f32 vcc, v{t[3]}, v{t[1]}
    v_rcp_f32 v{t[2]}, v{t[1]}
    s_cbranch_vccnz Lfb
    ''')
    a.label('Lfb_ret')
    a(f'v_cmp_lt_u32 vcc, 31, v{V_LANE}')
    for r in range(0, 16, 2): a(f'v_pk_mul_f32 {vr(O[0]+r,2)}, {vr(O[0]+r,2)}, {vr(t[2],2)} op_sel_hi:[1,0]')
    for j in range(8): a(f'v_cvt_pk_bf16_f32 v{P[0]+j}, v{O[0]+2*j}, v{O[0]+2*j+1}')
    for j in (6, 7): a(f'v_cndmask_b32_e64 v{P[0]+j}, v{P[0]+j}, 0, vcc')
    for j in range(2):
        a.vmem(f'buffer_store_dwordx4 {vr(P[0]+4*j,4)}, v{V_OFF}, {sr4(SRD_WS)}, s{T0} offen offset:{1024*j} sc1', 'stB')
    a.stamp('B_st'); a.stamp('H_st')


def fallback(a, R):
    KV, Q, O, S, P, t = R['KV'][0], R['Q'][0], R['O'][0], R['S'][0], R['P'][0], R['t']
    a.label('Lfb')
    a(f"""
    v_cmp_lt_u32 vcc, 31, v{V_LANE}
    s_lshl_b32 s{T1}, s{S_H}, 18
    s_mov_b32 s{T2}, 64
    v_mov_b32 v{t[0]}, 0xff7fffff
    v_cndmask_b32_e64 v{Q+6}, v{Q+6}, 0, vcc
    v_cndmask_b32_e64 v{Q+7}, v{Q+7}, 0, vcc
    """)
    a.label('Lfb1')
    a(f"""
    buffer_load_dwordx4 {vr(KV,4)}, v{V_OFF}, {sr4(SRD_WS)}, s{T1} offen sc1
    buffer_load_dwordx4 {vr(KV+4,4)}, v{V_OFF}, {sr4(SRD_WS)}, s{T1} offen offset:1024 sc1
    s_add_u32 s{T1}, s{T1}, 4096
    s_waitcnt vmcnt(0)
    {MFMA} {vr(S,16)}, {vr(KV,4)}, {vr(Q,4)}, 0
    {MFMA} {vr(S,16)}, {vr(KV+4,4)}, {vr(Q+4,4)}, {vr(S,16)}
    """)
    for r in range(0, 16, 2): a(f'v_max3_f32 v{t[0]}, v{t[0]}, v{S+r}, v{S+r+1}')
    a(f"""
    s_sub_u32 s{T2}, s{T2}, 1
    s_cmp_lg_u32 s{T2}, 0
    s_cbranch_scc1 Lfb1
    v_mov_b32 v{t[1]}, v{t[0]}
    v_permlane32_swap_b32 v{t[0]}, v{t[1]}
    v_max_f32 v{t[0]}, v{t[0]}, v{t[1]}
    v_cvt_pk_bf16_f32 v{t[1]}, -v{t[0]}, 0
    v_lshlrev_b32 v{t[2]}, 16, v{t[1]}
    v_sub_f32 v{t[0]}, -v{t[0]}, v{t[2]}
    v_cvt_pk_bf16_f32 v{t[2]}, v{t[0]}, 0
    v_lshlrev_b32 v{t[2]}, 16, v{t[2]}
    v_sub_f32 v{t[0]}, v{t[0]}, v{t[2]}
    v_or_b32 v{t[1]}, v{t[1]}, v{t[2]}
    v_cvt_pk_bf16_f32 v{t[0]}, v{t[0]}, 0
    v_cndmask_b32 v{Q+6}, v{Q+6}, v{t[1]}, vcc
    v_cndmask_b32 v{Q+7}, v{Q+7}, v{t[0]}, vcc
    s_lshl_b32 s{T1}, s{S_H}, 18
    s_mov_b32 s{T2}, 64
    """)
    for r in range(16): a(f'v_mov_b32 v{O+r}, 0')
    a.label('Lfb2')
    for j in range(4): a(f'buffer_load_dwordx4 {vr(KV+4*j,4)}, v{V_OFF}, {sr4(SRD_WS)}, s{T1} offen offset:{1024*j} sc1')
    a(f"""
    s_add_u32 s{T1}, s{T1}, 4096
    s_waitcnt vmcnt(0)
    {MFMA} {vr(S,16)}, {vr(KV,4)}, {vr(Q,4)}, 0
    {MFMA} {vr(S,16)}, {vr(KV+4,4)}, {vr(Q+4,4)}, {vr(S,16)}
    """)
    for r in range(16): a(f'v_exp_f32 v{S+r}, v{S+r}')
    for j in range(8): a(f'v_cvt_pk_bf16_f32 v{P+j}, v{S+2*j}, v{S+2*j+1}')
    a(f"""
    {MFMA} {vr(O,16)}, {vr(KV+8,4)}, {vr(P,4)}, {vr(O,16)}
    {MFMA} {vr(O,16)}, {vr(KV+12,4)}, {vr(P+4,4)}, {vr(O,16)}
    s_sub_u32 s{T2}, s{T2}, 1
    s_cmp_lg_u32 s{T2}, 0
    s_nop 7
    s_cbranch_scc1 Lfb2
    s_nop 7
    v_mov_b32 v{t[0]}, v{O+12}
    v_mov_b32 v{t[1]}, v{O+12}
    v_permlane32_swap_b32 v{t[0]}, v{t[1]}
    v_rcp_f32 v{t[2]}, v{t[1]}
    s_branch Lfb_ret
    """)

class Stager:
    def __init__(self, a): self.a = a; self.nl = 0; self.nt = 0; self.q = []
    def src_setup(self, t0, t1, t2):
        self.a(f'''
        v_lshrrev_b32 v{t0}, 3, v{V_LANE}
        v_lshrrev_b32 v{t1}, 1, v{V_LANE}
        v_and_b32 v{t1}, 4, v{t1}
        v_and_b32 v{t2}, 7, v{V_LANE}
        v_xor_b32 v{t1}, v{t1}, v{t2}
        v_mul_u32_u24 v{t0}, 1792, v{t0}
        v_lshl_add_u32 v{V_SRC}, v{t1}, 4, v{t0}
        ''')
    def setup(self, t0, t1, t2, vw):
        a = self.a; self.vw = vw
        a(f'''
        v_lshrrev_b32 v{t0}, 5, v{V_LANE}
        v_bfe_u32 v{t1}, v{V_LANE}, 2, 2
        v_lshl_add_u32 v{t0}, v{t0}, 2, v{t1}
        v_lshlrev_b32 v{t0}, 7, v{t0}
        v_bfe_u32 v{t1}, v{V_LANE}, 4, 1
        v_lshl_add_u32 v{t0}, v{t1}, 5, v{t0}
        v_and_b32 v{t1}, 3, v{V_LANE}
        v_lshl_add_u32 v{t0}, v{t1}, 3, v{t0}
        v_bfe_u32 v{t1}, v{V_LANE}, 3, 1
        s_lshr_b32 s{T0}, s{S_W}, 1
        v_xor_b32 v{t1}, s{T0}, v{t1}
        v_lshl_add_u32 v{t0}, v{t1}, 6, v{t0}
        s_lshl_b32 s{T0}, s{S_W}, 12
        s_add_u32 s{T0}, s{T0}, {SCR}
        v_add_u32 v{V_RD}, s{T0}, v{t0}
        v_xor_b32 v{V_RD+1}, 64, v{V_RD}
        v_lshrrev_b32 v{t0}, 3, v{V_LANE}
        v_lshlrev_b32 v{t0}, 7, v{t0}
        v_add3_u32 v{vw}, s{T0}, v{V_OFF}, v{t0}
        ''')
    def target_items(self, which):
        p, nb = (P_WO, WO_BYTES) if which == 'wo' else (P_W2, W2_BYTES)
        return [f's_mov_b32 s{SRD_A}, s{p}', f's_mov_b32 s{SRD_A+1}, s{p+1}', f's_mov_b32 s{SRD_A+2}, {nb}', f's_mov_b32 s{SRD_A+3}, 0x20000',
                f's_mul_i32 s{S_U0}, s{S_W}, {(112 if which == "wo" else 448)*896}', f's_lshl_b32 s{S_U1}, s{S_CB}, 7', f's_add_u32 s{S_U0}, s{S_U0}, s{S_U1}']
    @staticmethod
    def base(g):
        if g < 2: return ('a', 224 + 16 * g)
        if g < 4: return ('v', WOV + 16 * (g - 2))
        return ('a', 16 * (g - 4))
    @staticmethod
    def dest(g, s_, lc):
        p, b = Stager.base(g); return p, b + (s_ * 2 + lc) * 4
    def load_items(self):
        g = self.nl; self.nl += 1
        pre = self.target_items('wo') if g == 0 else (self.target_items('w2') if g == 4 else [])
        row0 = 28 * g if g < 4 else 32 * (g - 4)
        p, b = self.base(g)
        out = [pre] if pre else []
        for h_ in range(2):
            out.append([f's_add_u32 s{S_U1}, s{S_U0}, {(row0 + 16*h_)*896}'] +
                       [('vm', f'buffer_load_dwordx4 {vr(b+8*h_+4*i,4,p)}, v{V_SRC}, {sr4(SRD_A)}, s{S_U1} offen offset:{896*i}', f'hg{g}') for i in range(2)])
        return out
    def load(self):
        self.flush()
        for it in self.load_items():
            for x in it: self.a.emit(x)
    def queue(self, upto):
        while self.nl < upto:
            for it in self.load_items(): self.q += it
    def one(self):
        while self.q:
            x = self.q.pop(0); self.a.emit(x)
            if isinstance(x, tuple): break
    def flush(self):
        while self.q: self.one()
    def wr(self, u):
        a = self.a; g, s_ = divmod(u, 2); p, b = self.base(g)
        for i in range(2): a(f'ds_write_b128 v{self.vw}, {vr(b+8*s_+4*i,4,p)} offset:{2048*s_ + 128*i}')
    def rd(self, u):
        a = self.a; g, s_ = divmod(u, 2); p, b = self.base(g)
        for lc in range(2):
            for uu in range(2):
                a(f'ds_read_b64_tr_b16 {vr(b+(s_*2+lc)*4+2*uu,2,p)}, v{V_RD+lc} offset:{s_*2048 + uu*1024}')
    def trans(self):
        a = self.a; g = self.nt; self.nt += 1
        a.stamp(f'{"H" if g < 11 else "I"}_pre{g}')
        a.vmwait(f'hg{g}')
        if g in (0, 6): a.stamp(f'H_got{g}')
        for u in (2*g, 2*g + 1): self.wr(u)
        for u in (2*g, 2*g + 1): self.rd(u)
    def close(self): pass

def red_addr(a, t):
    for l in range(4):
        a(f's_xor_b32 s{T0}, s{S_W}, {l}\ns_mul_i32 s{T0}, s{T0}, 12288\ns_add_u32 s{T0}, s{T0}, {SCR}\nv_add_u32 v{t[l]}, s{T0}, v{V_OFF}')
def red_write(a, ACC, t, l, side=lambda: None):
    for j in range(4):
        a(f'ds_write_b128 v{t[l]}, {vr(ACC[l]+4*j,4)} offset:{(l-1)*4096 + j*1024}'); side()
def red_read(a, ACC, t, side=lambda: None):
    a('s_waitcnt lgkmcnt(0)\ns_barrier')
    for l in range(1, 4):
        for j in range(4): a(f'ds_read_b128 {vr(ACC[l]+4*j,4)}, v{t[0]} offset:{(l-1)*4096 + j*1024}')
    side()
    for l in range(1, 4):
        a(f's_waitcnt lgkmcnt({4*(3-l)})')
        for r in range(0, 16, 2): a(f'v_pk_add_f32 {vr(ACC[0]+r,2)}, {vr(ACC[0]+r,2)}, {vr(ACC[l]+r,2)}')

def put5(a, vt):
    a(f's_mul_i32 s{T0}, s{S_W}, 7168\ns_add_u32 s{T0}, s{T0}, {SINGLE}\nv_add_u32 v{vt}, s{T0}, v{V_OFF}')
    for g in range(7): a(f'ds_write_b128 v{vt}, {vr(RAW5+4*g,4,"a")} offset:{1024*g}')

def tile_ids(a, STT, SCT):
    a(f'''
    s_and_b32 s{STT}, s{S_W}, 1
    s_lshl_b32 s{T0}, s{S_RB}, 1
    s_add_u32 s{STT}, s{STT}, s{T0}
    s_lshr_b32 s{SCT}, s{S_W}, 1
    s_lshl_b32 s{T0}, s{S_CB}, 1
    s_add_u32 s{SCT}, s{SCT}, s{T0}
    ''')
def flag8_addr(a, vf, t0, t1, sdst, base):
    a(f'''
    v_lshrrev_b32 v{t0}, 2, v{V_LANE}
    v_lshlrev_b32 v{t0}, 11, v{t0}
    v_and_b32 v{t1}, 3, v{V_LANE}
    v_lshl_add_u32 v{vf}, v{t1}, 7, v{t0}
    s_lshl_b32 s{T0}, s{S_RB}, 3
    s_add_u32 s{T0}, s{T0}, s{S_W}
    s_lshl_b32 s{sdst}, s{T0}, 9
    s_add_u32 s{sdst}, s{sdst}, {base}
    ''')

def phase_c(a, R, stg):
    va = VA(4, 200)
    ACC = [va(16) for _ in range(4)]
    OF = [[va(4) for k in range(8)] for lt in range(2)]
    t = [va() for _ in range(8)]; vf = va(); vw = va(); vp = va()
    STT, SCT = T1, T2
    NB1 = opt('hgB', 7); NF = opt('hgBf', 0)
    for g in range(NF):
        if stg.nl < NB1: stg.load()
    stg.setup(t[0], t[1], t[2], vw)
    tile_ids(a, STT, SCT)
    for l in range(2):
        a(f'''
        s_xor_b32 s{T0}, s{STT}, {l}
        s_lshl_b32 s{T0}, s{T0}, 2
        s_add_u32 s{T0}, s{T0}, s{S_W}
        s_lshl_b32 s{T0}, s{T0}, 13
        s_add_u32 s{T3+l}, s{T0}, {WS_O}
        ''')
    for g in (0, 4):
        a(f'v_permlane32_swap_b32 v{XRES+g}, v{XRES+g+2}\nv_permlane32_swap_b32 v{XRES+g+1}, v{XRES+g+3}')
    for j in range(8):
        a(f'v_lshlrev_b32 v{ACC[0]+2*j}, 16, v{XRES+j}\nv_and_b32 v{ACC[0]+2*j+1}, 0xffff0000, v{XRES+j}')
    a('s_barrier')
    for _ in range(opt('trB0', 2)): stg.trans()
    a.vmwait('stB')
    flag_store(a, T5, t[3])
    a.stamp('C_flag'); a.stamp('H_flag')
    visit(a, 2)
    flag8_addr(a, vf, t[0], t[1], T5, FL_B)
    NT1 = NB1 - opt('trB', 1)
    for _ in range(opt('hgBg', 3)):
        if stg.nl < NB1: stg.load()
    while stg.nt < NT1:
        if stg.nt == NT1 - opt('pollB', 2): poll_issue(a, T5, vf, 8, vp)
        stg.trans()
        if stg.nl < NB1: stg.load()
    a.stamp('C_pre')
    poll_check(a, T5, vf, 8, vp)
    a.stamp('C_poll')
    def old_(k, l):
        if k == 4 and l == 0: a(f's_add_u32 s{T3}, s{T3}, 4096\ns_add_u32 s{T4}, s{T4}, 4096')
        a.vmem(f'buffer_load_dwordx4 {vr(OF[l][k],4)}, v{V_OFF}, {sr4(SRD_WS)}, s{T3+l} offen offset:{1024*(k&3)} sc1', f'o{k}')
    OLA = opt('ola', 6)
    oq = [(k, l) for k in range(8) for l in range(2)]
    for _ in range(2 * OLA): old_(*oq.pop(0))
    nfree = NHG
    while stg.nt < NB1: stg.trans()
    red_addr(a, t)
    a(f'''
    s_mul_i32 s{T6}, s{STT}, 14
    s_add_u32 s{T6}, s{T6}, s{SCT}
    s_lshl_b32 s{T5}, s{STT}, 4
    s_add_u32 s{T5}, s{T5}, s{SCT}
    s_lshl_b32 s{T5}, s{T5}, 7
    s_add_u32 s{T5}, s{T5}, {FL_C}
    s_waitcnt lgkmcnt(0)
    s_barrier
    ''')
    def mm(k, l):
        p, b = stg.dest(k >> 1, k & 1, l >> 1)
        a(f'{MFMA} {vr(ACC[l],16)}, {vr(b,4,p)}, {vr(OF[l & 1][k],4)}, {vr(ACC[l],16) if (k or l == 0) else 0}')
    KT = 5
    for k in range(KT):
        a.vmwait(f'o{k}')
        for l in range(4):
            mm(k, l)
            if oq and l & 1 == 0: old_(*oq.pop(0))
    assert not oq
    stg.queue(min(nfree, NB1 + opt('hgC0', 4)))
    for l in (1, 2, 3, 0):
        for k in range(KT, 8):
            if l == 1: a.vmwait(f'o{k}')
            mm(k, l)
        if l in (2, 3): red_write(a, ACC, t, l - 1, stg.one)
    a.stamp('C_mfma')
    red_write(a, ACC, t, 3, stg.one)
    red_read(a, ACC, t, stg.flush)
    for j in range(8): a(f'v_cvt_pk_bf16_f32 v{HKEEP+j}, v{ACC[0]+2*j}, v{ACC[0]+2*j+1}')
    a(f's_lshl_b32 s{T0}, s{T6}, 11\ns_add_u32 s{T0}, s{T0}, {WS_H}')
    for j in range(2):
        a.vmem(f'buffer_store_dwordx4 {vr(HKEEP+4*j,4)}, v{V_OFF}, {sr4(SRD_WS)}, s{T0} offen offset:{1024*j} sc1', 'stC')
    for i in range(4): a(f'v_mov_b32 v{t[4+i]}, 0')
    for j in range(8):
        a(f'v_dot2c_f32_bf16 v{t[4+(j&1)]}, s{S_ONES}, v{HKEEP+j}')
        a(f'v_dot2c_f32_bf16 v{t[6+(j&1)]}, v{HKEEP+j}, v{HKEEP+j}')
    a(f'''
    v_add_f32 v{t[4]}, v{t[4]}, v{t[5]}
    v_add_f32 v{t[6]}, v{t[6]}, v{t[7]}
    v_permlane32_swap_b32 v{t[4]}, v{t[6]}
    v_add_f32 v{t[4]}, v{t[4]}, v{t[6]}
    v_and_b32 v{t[5]}, 31, v{V_LANE}
    v_lshrrev_b32 v{t[6]}, 5, v{V_LANE}
    v_lshlrev_b32 v{t[6]}, 2, v{t[6]}
    v_lshl_add_u32 v{t[5]}, v{t[5]}, 3, v{t[6]}
    s_lshl_b32 s{T0}, s{T6}, 8
    s_add_u32 s{T0}, s{T0}, {WS_ST}
    ''')
    a.vmem(f'buffer_store_dword v{t[4]}, v{t[5]}, {sr4(SRD_WS)}, s{T0} offen sc1', 'stC')
    a.stamp('C_st')
    for _ in range(opt('hgCf', 0)):
        if stg.nl < nfree: stg.load()
    a('s_barrier')
    put5(a, t[0])
    for _ in range(opt('trC0', 1)): stg.trans()
    a.vmwait('stC')
    flag_store(a, T5, t[3])
    a.stamp('C_flag2')
    NTP = NHG - opt('trC', 0) - opt('pollC', 2)
    while stg.nl < NHG: stg.load()
    while stg.nt < NTP: stg.trans()

def phase_d(a, R, stg):
    va = VA(4, 212)
    X = [va(4) for _ in range(28)]
    ACC = [va(16) for _ in range(4)]
    HP = va(4)
    t = [va(2) for _ in range(4)]
    mu = va(2)
    vl = [va() for _ in range(6)]
    vp = va(); vs = va()
    W = [va(4) for _ in range(2)] + [WOV + 4*i for i in range(8)]
    NW = len(W)
    ST = ACC[3]
    E = [t[0], t[0]+1, t[1], t[1]+1, t[2], t[2]+1, t[3], t[3]+1]
    STT = T6; SH = T5; S13, L13 = T3, T4
    w13_setup(a, S13, L13)
    a(f'''
    s_lshl_b32 s{T0}, s{S_L0}, 5
    s_add_u32 s{S13}, s{S13}, s{T0}
    s_lshl_b32 s{STT}, s{S_TD}, 2
    s_add_u32 s{STT}, s{STT}, s{S_W}
    s_lshl_b32 s{T2}, s{STT}, 11
    s_add_u32 s{T2}, s{T2}, {FL_C}
    v_bfe_u32 v{t[0]}, v{V_LANE}, 4, 1                 ; cg
    v_lshrrev_b32 v{t[1]}, 5, v{V_LANE}                ; hf
    v_bfe_u32 v{t[3]}, v{V_LANE}, 2, 2                 ; r
    v_and_b32 v{mu}, 3, v{V_LANE}
    v_lshlrev_b32 v{mu}, 3, v{mu}                      ; c4*8
    v_xor_b32 v{t[2]}, v{t[0]}, v{t[1]}
    v_lshl_add_u32 v{t[2]}, v{t[2]}, 2, v{t[3]}
    v_lshl_add_u32 v{t[2]}, v{t[2]}, 5, v{mu}
    v_mul_u32_u24 v{vl[4]}, 14336, v{t[0]}
    v_add_u32 v{vl[4]}, v{vl[4]}, v{t[2]}
    v_add_u32 v{vl[4]}, {SINGLE}, v{vl[4]}
    v_lshl_add_u32 v{t[2]}, v{t[1]}, 2, v{t[3]}
    v_lshl_add_u32 v{t[2]}, v{t[2]}, 6, v{mu}
    v_mul_u32_u24 v{t[0]}, {28672 + 32}, v{t[0]}
    v_add_u32 v{vl[0]}, v{t[0]}, v{t[2]}
    v_xor_b32 v{vl[1]}, 32, v{vl[0]}
    v_add_u32 v{vl[2]}, {PAIR}, v{vl[0]}
    v_add_u32 v{vl[3]}, {PAIR}, v{vl[1]}
    v_and_b32 v{t[0]}, 31, v{V_LANE}
    v_mul_u32_u24 v{t[1]}, {7*256}, v{t[1]}
    v_lshl_add_u32 v{vs}, v{t[0]}, 3, v{t[1]}
    s_mul_i32 s{T1}, s{STT}, {14*256}
    s_add_u32 s{T1}, s{T1}, {WS_ST}
    s_mul_i32 s{SH}, s{STT}, {28*1024}
    s_add_u32 s{SH}, s{SH}, {WS_H}
    ''')
    VSD = 222; SWB = S_DUM; SLB = S_DUM + 1
    a(f'''
    v_lshrrev_b32 v{t[0]}, 3, v{V_LANE}
    v_lshrrev_b32 v{t[1]}, 2, v{V_LANE}
    v_and_b32 v{t[1]}, 4, v{t[1]}
    v_and_b32 v{t[2]}, 7, v{V_LANE}
    v_xor_b32 v{t[1]}, v{t[1]}, v{t[2]}
    v_mul_u32_u24 v{t[0]}, 896, v{t[0]}
    v_lshl_add_u32 v{V_SRC2}, v{t[1]}, 4, v{t[0]}
    s_mul_i32 s{SWB}, s{S_W}, {448*896}
    s_lshl_b32 s{T0}, s{S_CB}, 7
    s_add_u32 s{SWB}, s{SWB}, s{T0}
    ''')
    def w2_dma(hl):
        base, per = (SCR, 12288) if hl < 3 else (PAIR, 14336)
        out = []
        for i in range(4):
            out.append(([f's_mul_i32 s{SLB}, s{S_W}, {per}', f's_add_u32 m0, s{SLB}, {base + (hl % 3)*4096}'] if i == 0 else []) +
                       [f's_add_u32 s{T0}, s{SWB}, {(256 + 32*hl + 8*i)*896 - 1024*i}',
                        ('vm', f'buffer_load_dwordx4 v{V_SRC2}, {sr4(SRD_A)}, s{T0} offen offset:{1024*i} lds', 'w2l')])
        return out
    NTP = NHG - opt('trC', 0)
    poll_issue(a, T2, V_FL, 14, vp)
    Ls = a.newlabel('skip')
    a(f's_cmp_ge_u32 s{S_J}, 28\ns_cbranch_scc1 {Ls}')
    while stg.nt < NTP: stg.trans()
    a.label(Ls)
    a('s_waitcnt lgkmcnt(0)\ns_barrier')
    a.stamp('D_pre')
    rest = [x for x in a.vm if x.startswith('hg')]
    poll_check(a, T2, V_FL, 14, vp)
    a.stamp('D_poll'); a.stamp('F_poll')
    for c in range(7):
        a.vmem(f'buffer_load_dwordx2 {vr(ST+2*c,2)}, v{vs}, {sr4(SRD_WS)}, s{T1} offen offset:{256*c} sc1', 'st')
    SX_ = S_SPIN + 1
    a(f's_lshl_b32 s{SX_}, s{S_R14}, 11\nv_add_u32 v{vl[5]}, s{SH}, v{V_OFF}')
    def ldx(k):
        if k and k % 2 == 0: a(f's_add_u32 s{SX_}, s{SX_}, 2048\ns_sub_u32 s{T0}, s{SX_}, {28*1024}\ns_min_u32 s{SX_}, s{SX_}, s{T0}')
        a.vmem(f'buffer_load_dwordx4 {vr(X[k],4)}, v{vl[5]}, {sr4(SRD_WS)}, s{SX_} offen offset:{1024*(k&1)} sc1', f'x{k}')
    XLA = opt('xla', 8)
    for k in range(XLA): ldx(k)
    a(f's_or_b32 s{T0}, s2, s{S_W}\ns_cmp_lg_u32 s{T0}, 0\ns_cselect_b32 s{T0}, 0x40000000, {WS_FLG}')
    flag_store(a, T0, t[0])
    a.stamp('F_issued')
    Ls = a.newlabel('skip')
    a(f's_cmp_ge_u32 s{S_J}, 28\ns_cbranch_scc1 {Ls}')
    while stg.nt < NHG: stg.trans()
    stg.close()
    a.label(Ls)
    SE = T5; SL = T1; SF = T2
    a(f'''
    s_mul_i32 s{SE}, s{STT}, 112
    s_mul_i32 s{T0}, s{S_FS}, 7
    s_add_u32 s{SE}, s{SE}, s{T0}
    s_add_u32 s{SL}, s{SE}, s{S_L0}
    s_add_u32 s{SE}, s{SE}, s{S_E0}
    s_lshl_b32 s{SE}, s{SE}, 10
    s_add_u32 s{SE}, s{SE}, {WS_HH}
    s_lshl_b32 s{SL}, s{SL}, 10
    s_add_u32 s{SL}, s{SL}, {WS_HH}
    s_add_u32 s{S_U1}, s{SE}, 4096
    s_lshl_b32 s{SF}, s{STT}, 4
    s_add_u32 s{SF}, s{SF}, s{S_FS}
    s_lshl_b32 s{SF}, s{SF}, 7
    s_add_u32 s{SF}, s{SF}, {FL_D1}
    ''')
    if opt('trC', 0): a('s_waitcnt lgkmcnt(0)')
    seq = [(j, k) for k in range(28) for j in (0, 1, 4)] + [(j, k) for j in (2, 3, 5, 6) for k in range(28)]
    def rdW(n):
        j, k = seq[n]
        if j == 4: return [f'ds_read_b64_tr_b16 {vr(W[n % NW]+2*u,2)}, v{vl[4]} offset:{k*512 + u*256}' for u in range(2)]
        return [f'ds_read_b64_tr_b16 {vr(W[n % NW]+2*u,2)}, v{vl[{0:0,1:1,2:2,3:3,5:0,6:1}[j]]} offset:{k*1024 + u*512}' for u in range(2)]
    AH = opt('ah', 6); assert AH + 2 <= NW and 2 * AH <= 15
    a.stamp('F_bar')
    for n in range(AH):
        for x in rdW(n): a(x)
    a.vmwait('st')
    for c in range(3): a(f'v_pk_add_f32 {vr(ST+4*c,2)}, {vr(ST+4*c,2)}, {vr(ST+4*c+2,2)}')
    a(f'v_pk_add_f32 {vr(ST,2)}, {vr(ST,2)}, {vr(ST+4,2)}\nv_pk_add_f32 {vr(ST+8,2)}, {vr(ST+8,2)}, {vr(ST+12,2)}\nv_pk_add_f32 {vr(ST,2)}, {vr(ST,2)}, {vr(ST+8,2)}')
    a(f'v_mov_b32 v{t[0]}, v{ST}\nv_mov_b32 v{t[1]}, v{ST+1}\nv_permlane32_swap_b32 v{t[0]}, v{ST}\nv_permlane32_swap_b32 v{t[1]}, v{ST+1}')
    a(f'v_add_f32 v{t[0]}, v{t[0]}, v{ST}\nv_add_f32 v{t[1]}, v{t[1]}, v{ST+1}')
    a(f'''
    v_mul_f32 v{t[0]}, {fx(1/448)}, v{t[0]}
    v_mul_f32 v{t[1]}, {fx(1/448)}, v{t[1]}
    v_fma_f32 v{t[1]}, -v{t[0]}, v{t[0]}, v{t[1]}
    v_max_f32 v{t[1]}, 0, v{t[1]}
    v_add_f32 v{t[1]}, {fx(1e-5)}, v{t[1]}
    v_rsq_f32 v{mu}, v{t[1]}
    s_mov_b32 s{S_U0}, 0xffff0000
    v_mul_f32 v{mu+1}, v{t[0]}, v{mu}
    v_sub_f32 v{mu+1}, 0, v{mu+1}
    ''')
    def norm(k):
        out = []
        for i in range(4): out += [f'v_lshlrev_b32 v{t[i]}, 16, v{X[k]+i}', f'v_and_b32 v{t[i]+1}, s{S_U0}, v{X[k]+i}']
        if opt('pkN', 1):
            for i in range(4): out += [f'v_pk_fma_f32 {vr(t[i],2)}, {vr(t[i],2)}, {vr(mu,2)}, {vr(mu,2)} op_sel:[0,0,1] op_sel_hi:[1,0,1]']
        else:
            for i in range(4): out += [f'v_fma_f32 v{t[i]}, v{t[i]}, v{mu}, v{mu+1}', f'v_fma_f32 v{t[i]+1}, v{t[i]+1}, v{mu}, v{mu+1}']
        for i in range(4): out += [f'v_cvt_pk_bf16_f32 v{X[k]+i}, v{t[i]}, v{t[i]+1}']
        return out
    acc_of = {0: 0, 1: 1, 4: 2, 2: 3, 3: 0, 5: 1, 6: 2}
    def epi(j):
        A = ACC[acc_of[j]]
        out = []
        pk = opt('pkE', 0) if j != 6 else 2
        if pk >= 2:
            for r in range(0, 8, 2): out.append(f'v_pk_mul_f32 {vr(E[r],2)}, {vr(A+r,2)}, {vr(mu,2)} op_sel_hi:[1,0]')
        else:
            for r in range(8): out.append(f'v_mul_f32 v{E[r]}, v{mu}, v{A+r}')
        for r in range(8): out.append(f'v_exp_f32 v{E[r]}, v{E[r]}')
        if pk >= 1:
            for r in range(0, 8, 2): out.append(f'v_pk_mul_f32 {vr(A+r,2)}, {vr(A+r,2)}, {vr(A+8+r,2)}')
        else:
            for r in range(8): out.append(f'v_mul_f32 v{A+r}, v{A+r}, v{A+8+r}')
        if pk >= 2:
            for r in range(0, 8, 2): out.append(f'v_pk_add_f32 {vr(E[r],2)}, {vr(E[r],2)}, {vr(mu,2)} op_sel:[0,1] op_sel_hi:[1,1]')
        else:
            for r in range(8): out.append(f'v_add_f32 v{E[r]}, 1.0, v{E[r]}')
        for r in range(8): out.append(f'v_rcp_f32 v{E[r]}, v{E[r]}')
        if pk >= 1:
            for r in range(0, 8, 2): out.append(f'v_pk_mul_f32 {vr(A+r,2)}, {vr(A+r,2)}, {vr(E[r],2)}')
        else:
            for r in range(8): out.append(f'v_mul_f32 v{A+r}, v{A+r}, v{E[r]}')
        for i in range(4): out.append(f'v_cvt_pk_bf16_f32 v{HP+i}, v{A+2*i}, v{A+2*i+1}')
        sreg, off = (SE, 1024*j) if j < 4 else ((S_U1, 0) if j == 4 else (SL, 1024*(j-5)))
        out.append(('vm', f'buffer_store_dwordx4 {vr(HP,4)}, v{V_OFF}, {sr4(SRD_WS)}, s{sreg} offen offset:{off} sc1', f'hh{j}'))
        return out
    a.stamp('F_stats')
    a.vmwait('x0')
    a.stamp('F_x0')
    for x in norm(0): a(x)
    pend = []; late = []
    R['vfE'] = vs; R['vpE'] = vp
    for n, (j, k) in enumerate(seq):
        nn = n + AH
        if nn < len(seq) and seq[nn] == (5, 0):
            a.vmwait('late'); a('s_barrier')
        rd = rdW(nn) if nn < len(seq) else []
        if n % 2 == 0:
            left = min(len(seq), n + AH) - (n + 2)
            a(f's_waitcnt lgkmcnt({max(0, 2*left)})')
        A = ACC[acc_of[j]]
        a(f'{MFMA} {vr(A,16)}, {vr(W[n % NW],4)}, {vr(X[k],4)}, {vr(A,16) if k else 0}')
        for x in rd: a(x)
        if n < 84 and j == 0 and k in (2, 4, 8, 16, 24): a.stamp(f'F_k{k}')
        if n >= 84 and k == 27: a.stamp(f'F_t{j}')
        if n < 84:
            if j == 0 and k + 1 < 28:
                a.vmwait(f'x{k+1}'); pend = norm(k + 1)
            if j == 1 and k + XLA < 28: ldx(k + XLA)
            take = (6 if j < 2 else 4) if opt('pkN', 1) else (7 if j < 2 else 6)
            for x in pend[:take]: a(x)
            pend = pend[take:]
            if n == 83:
                a.stamp('D_st1')
                a(f'v_mov_b32 v{mu}, {fx(-math.log2(math.e))}\nv_mov_b32 v{mu+1}, 1.0\ns_barrier')
                srd(a, SRD_A, P_W2, W2_BYTES)
                late = [pair_dma(S13, L13, 0, 0, i, 'late') for i in range(14)]
                g1 = [x for hl in range(3) for x in w2_dma(hl)]; g2 = [x for hl in range(3, 6) for x in w2_dma(hl)]
        else:
            if n == 84 + 2: pend = epi(0) + epi(1) + epi(4) + epi(2) + epi(3) + epi(5); done = 0; tot = len(pend); one = tot // 6
            if n >= 84 + 2:
                want = min(tot, (n - 85) * tot // 108 + 1)
                lim = {2: 3, 3: 3 + (k >= 2), 5: 4 + (k >= 2), 6: 5 + (k >= 2)}[j] * one
                while done < min(want, lim):
                    a.emit(pend.pop(0)); done += 1
                if k == 27:
                    need = {2: 1, 3: 2, 5: 3, 6: 6}[j] * one
                    while done < need:
                        a.emit(pend.pop(0)); done += 1
            if (j, k) == (5, 0): a('s_barrier')
            if k % opt('latestep', 2) == 0:
                q_ = late if late else (g1 if g1 else (g2 if j >= 5 else []))
                if q_:
                    for x in q_.pop(0): a.emit(x)
            if j == 5 and k == opt('f1k', 6):
                a.vmwait('hh1'); flag_store(a, SF, vp)
            if j == 6 and k == opt('f2k', 14) and not opt('d2late', 1):
                a(f's_add_u32 s{SF}, s{SF}, {FLS}')
                a.vmwait('hh2'); flag_store(a, SF, vl[2])
                a(f's_add_u32 s{SF}, s{SF}, {FLS}')
            if j == 6 and k == opt('p1k', 18):
                flag8_addr(a, vs, vp, vl[4], S_SPIN + 1, FL_D1)
                poll_issue(a, S_SPIN + 1, vs, 8, vp)
    assert not late and not g1 and not g2
    a.stamp('D_loop')
    if opt('d2late', 1):
        a(f's_add_u32 s{SF}, s{SF}, {FLS}')
        a.vmwait('hh3'); flag_store(a, SF, vl[2])
        a(f's_add_u32 s{SF}, s{SF}, {FLS}')
    for x in epi(6): a.emit(x)
    a.stamp('D_epi')
    R['SF'] = SF

def phase_e(a, R, stg):
    va = VA(4, 199)
    ACC = [va(16) for _ in range(4)]
    NB = 16
    BUF = [[va(4) for l in range(2)] for d in range(NB)]
    vf = R['vfE']; vp = R['vpE']
    t = [204, 205, 206, 207]; vt = 208
    assert vf >= va.n and vp >= va.n and vf < 204 and vp < 204
    STT, SCT = T1, T3
    SP = S_SPIN + 1
    tile_ids(a, STT, SCT)
    a(f's_mul_i32 s{T4}, s{S_W}, {28*1024}')
    for l in range(2):
        a(f'''
        s_xor_b32 s{T0}, s{STT}, {l}
        s_mul_i32 s{T0}, s{T0}, {112*1024}
        s_add_u32 s{T0}, s{T0}, s{T4}
        s_add_u32 s{S_U0+l}, s{T0}, {WS_HH}
        ''')
    e0 = lambda f: 2 if f == 2 else 0
    l0 = lambda f: 0 if f == 2 else 5
    order = [7*f + e0(f) + j for j in (0, 1, 4, 2, 3) for f in range(4)] + [7*f + l0(f) + j for j in range(2) for f in range(4)]
    assert sorted(order) == list(range(28))
    poll_check(a, SP, vf, 8, vp)
    a.stamp('E_poll1')
    N2 = 20 if opt('d2late', 1) else 16
    st = dict(nxt=0)
    FL3 = opt('efl', 7); PI2 = opt('epi2', 3); PI3 = opt('epi3', 15)
    def ld_items():
        n = st['nxt']; st['nxt'] += 1
        pre = []
        if n == FL3: pre.append(('call', lambda: (a.vmwait('hh6'), flag_store(a, R['SF'], vt))))
        if n in (8, N2):
            pre.append(('call', lambda: (a.stamp('E_pre2' if n == 8 else 'E_pre3'), poll_check(a, SP, vf, 8, vp), a.stamp('E_poll2' if n == 8 else 'E_poll3'))))
        if n in (PI2, PI3): pre.append(('call', lambda: (a(f's_add_u32 s{SP}, s{SP}, {FLS}'), poll_issue(a, SP, vf, 8, vp))))
        ks = order[n]
        out = []
        for l in range(2):
            out.append((pre if l == 0 else []) + [f's_add_u32 s{T0}, s{S_U0+l}, {(ks >> 2) * 4096}',
                       ('vm', f'buffer_load_dwordx4 {vr(BUF[n % NB][l],4)}, v{V_OFF}, {sr4(SRD_WS)}, s{T0} offen offset:{1024*(ks&3)} sc1', f'h{n}')])
        return out
    def ld():
        for it in ld_items():
            for x in it: a.emit(x)
    LA = opt('ela', 8)
    for n in range(LA): ld()
    for j in range(8):
        a(f'v_lshlrev_b32 v{ACC[0]+2*j}, 16, v{HKEEP+j}\nv_and_b32 v{ACC[0]+2*j+1}, 0xffff0000, v{HKEEP+j}')
    red_addr(a, t)
    RA = [209, 210, 211, 212]
    a(f'''
    s_lshl_b32 s{T0}, s{S_W}, 13
    v_add_u32 v{RA[0]}, s{T0}, v{V_RD}
    v_add_u32 v{RA[1]}, s{T0}, v{V_RD+1}
    s_mul_i32 s{T0}, s{S_W}, {14336 - 4096}
    s_sub_u32 s{T0}, s{T0}, {SCR - PAIR}
    v_add_u32 v{RA[2]}, s{T0}, v{V_RD}
    v_add_u32 v{RA[3]}, s{T0}, v{V_RD+1}
    ''')
    Ls = [n for n in range(28) if order[n] >= 16]
    WB = [WOV + 8*i for i in range(4)]
    lst = dict(rd=0)
    def lread():
        i = lst['rd']; lst['rd'] += 1
        hl, s_ = divmod(order[Ls[i]] - 16, 2)
        return [f'ds_read_b64_tr_b16 {vr(WB[i % 4] + 4*lc + 2*u, 2)}, v{RA[2*(hl // 3) + lc]} offset:{(hl % 3)*4096 + s_*2048 + u*1024}' for lc in range(2) for u in range(2)]
    for _ in range(3):
        for x in lread(): a(x)
    def lwait(n):
        if n in Ls: a(f's_waitcnt lgkmcnt({4 * (lst["rd"] - 1 - Ls.index(n))})')
    def mm(n, l):
        ks = order[n]
        p, b = stg.dest(4 + (ks >> 1), ks & 1, l >> 1) if ks < 16 else ('v', WB[Ls.index(n) % 4] + 4 * (l >> 1))
        a(f'{MFMA} {vr(ACC[l],16)}, {vr(b,4,p)}, {vr(BUF[n % NB][l & 1],4)}, {vr(ACC[l],16) if (n or l == 0) else 0}')
    KT = 28 - opt('etail', 3)
    for n in range(KT):
        lwait(n)
        a.vmwait(f'h{n}')
        items = []
        for _ in range(2 if n < opt('egrow', 0) else 1):
            if st['nxt'] < 28 and st['nxt'] - NB < n: items += ld_items()
        rd = lread() if (n in Ls and lst['rd'] < len(Ls)) else []
        for l in range(4):
            mm(n, l)
            if rd: a(rd.pop(0))
            if items and (len(items) > 2 or l & 1 == 0 or l == 3):
                for x in items.pop(0): a.emit(x)
        assert not items
        if n == opt('ebar', 20):
            assert all(m <= n for m in Ls if order[m] < 22)
            a('s_barrier')
    assert st['nxt'] == 28 and lst['rd'] == len(Ls)
    a('s_waitcnt lgkmcnt(0)')
    for l in (1, 2, 3, 0):
        for n in range(KT, 28):
            if l == 1: a.vmwait(f'h{n}')
            mm(n, l)
        if l in (2, 3): red_write(a, ACC, t, l - 1)
    a.stamp('E_mfma')
    red_write(a, ACC, t, 3)
    srd(a, SRD_A, P_OUT, X_BYTES)
    a(f'''
    v_and_b32 v{vf}, 31, v{V_LANE}
    v_lshrrev_b32 v{vp}, 5, v{V_LANE}
    v_mul_u32_u24 v{vf}, 896, v{vf}
    v_lshl_add_u32 v{vf}, v{vp}, 4, v{vf}
    s_mul_i32 s{T0}, s{STT}, {32*896}
    s_lshl_b32 s{T2}, s{SCT}, 6
    s_add_u32 s{T0}, s{T0}, s{T2}
    ''')
    red_read(a, ACC, t)
    if opt('bias', 0):
        for r in range(16): a(f"v_add_f32 v{ACC[0]+r}, {fx(opt('bias', 0) * 1e-3)}, v{ACC[0]+r}")
    PKR = ACC[1]
    for j in range(8): a(f'v_cvt_pk_bf16_f32 v{PKR+j}, v{ACC[0]+2*j}, v{ACC[0]+2*j+1}')
    for g in (0, 4):
        a(f'v_permlane32_swap_b32 v{PKR+g}, v{PKR+g+2}\nv_permlane32_swap_b32 v{PKR+g+1}, v{PKR+g+3}')
    fl_ = ['', ' sc1', ' nt', ' sc0 sc1'][opt('outst', 0)]
    a(f'buffer_store_dwordx4 {vr(PKR,4)}, v{vf}, {sr4(SRD_A)}, s{T0} offen{fl_}')
    a(f'buffer_store_dwordx4 {vr(PKR+4,4)}, v{vf}, {sr4(SRD_A)}, s{T0} offen offset:32{fl_}')
    a.stamp('E_st')

def gen():
    a = K()
    a.stamp('rt0', True); a.stamp('t0')
    HB = opt('hb', 3)
    if int(os.environ.get('TFIX', '0')): a('s_memrealtime s[60:61]')
    a(f'''
    s_cmp_ge_u32 s2, 256
    s_cbranch_scc1 Lend
    s_load_dwordx16 s[32:47], s[0:1], 0
    s_load_dwordx2 s[50:51], s[0:1], 72
    v_lshrrev_b32 v2, 6, v0
    v_and_b32 v{V_LANE}, 63, v0
    v_readfirstlane_b32 s{S_W}, v2
    v_lshlrev_b32 v{V_OFF}, 4, v{V_LANE}
    v_lshlrev_b32 v{V_FL}, 7, v{V_LANE}
    s_and_b32 s{T0}, s2, 7
    s_lshr_b32 s{S_J}, s2, 3
    s_and_b32 s{S_H}, s{T0}, {(16 >> HB) - 1}
    s_lshl_b32 s{S_H}, s{S_H}, {HB}
    s_and_b32 s{T1}, s{S_J}, {(1 << HB) - 1}
    s_add_u32 s{S_H}, s{S_H}, s{T1}
    s_lshr_b32 s{S_TB}, s{T0}, {4 - HB}
    s_lshl_b32 s{S_TB}, s{S_TB}, {5 - HB}
    s_lshr_b32 s{T1}, s{S_J}, {HB}
    s_add_u32 s{S_TB}, s{S_TB}, s{T1}
    s_mul_i32 s{T1}, s{S_J}, 9363
    s_lshr_b32 s{T1}, s{T1}, 16
    s_mul_i32 s{T2}, s{T1}, 7
    s_sub_u32 s{S_CB}, s{S_J}, s{T2}
    s_lshl_b32 s{S_RB}, s{T0}, 2
    s_add_u32 s{S_RB}, s{S_RB}, s{T1}
    s_and_b32 s{S_TD}, s{T0}, 1
    s_lshl_b32 s{S_TD}, s{S_TD}, 3
    s_and_b32 s{T1}, s{S_J}, 7
    s_add_u32 s{S_TD}, s{S_TD}, s{T1}
    s_lshr_b32 s{S_FS}, s{T0}, 1
    s_lshl_b32 s{S_FS}, s{S_FS}, 2
    s_lshr_b32 s{T1}, s{S_J}, 3
    s_add_u32 s{S_FS}, s{S_FS}, s{T1}
    ''')
    if opt('cpre', 1):
        a('s_getpc_b64 s[54:55]')
        a.label('Lpc')
        a(f'''
        s_lshl_b32 s{T0}, s{S_J}, 2
        s_add_u32 s{T0}, s{T0}, s{S_W}
        s_mul_i32 s{T0}, s{T0}, 3
        v_add_u32 v4, s{T0}, v{V_LANE}
        v_lshlrev_b32 v4, 7, v4
        v_min_u32 v4, Lcode_end-Lpc-4, v4
        v_mov_b32 v5, s55
        v_add_co_u32 v4, vcc, s54, v4
        v_addc_co_u32 v5, vcc, 0, v5, vcc
        s_mov_b64 exec, 7
        ''')
        a.vmem('global_load_dword a4, v[4:5], off', 'code')
        a('s_mov_b64 exec, -1')
    R = alloc_b()
    phase_a(a, R)
    a(f'''
    s_and_b32 s{T0}, s{S_FS}, 3
    s_cmp_eq_u32 s{T0}, 2
    s_cselect_b32 s{S_E0}, 2, 0
    s_cselect_b32 s{S_L0}, 0, 5
    s_and_b32 s{T0}, s{S_J}, 7
    s_lshr_b32 s{T1}, s{S_J}, 3
    s_mul_i32 s{T1}, s{T1}, {opt('r14b', 4)}
    s_mul_i32 s{T0}, s{T0}, {opt('r14a', 2)}
    s_add_u32 s{T0}, s{T0}, s{T1}
    s_sub_u32 s{T1}, s{T0}, 14
    s_min_u32 s{S_R14}, s{T0}, s{T1}
    s_sub_u32 s{T1}, s{S_R14}, 14
    s_min_u32 s{S_R14}, s{S_R14}, s{T1}
    ''')
    stg = Stager(a)
    phase_b(a, R, stg)
    a(f's_cmp_ge_u32 s{S_J}, 28\ns_cbranch_scc1 LnoC')
    phase_c(a, R, stg)
    a('s_branch LD')
    vm_c = list(a.vm)
    a.label('LnoC')
    a.vmall()
    flag_store(a, T5, 4)
    a('s_barrier')
    put5(a, 5)
    a.label('LD')
    a.vm = vm_c
    phase_d(a, R, stg)
    a(f's_cmp_ge_u32 s{S_J}, 28\ns_cbranch_scc0 LE')
    vm_d = list(a.vm)
    a('s_waitcnt vmcnt(0)')
    flag_store(a, R['SF'], 4)
    a('s_branch Lfin')
    a.label('LE')
    a.vm = vm_d
    phase_e(a, R, stg)
    a.label('Lfin')
    if int(os.environ.get('TFIX', '0')):
        a.label('Lfix')
        a(f's_memrealtime s[62:63]\ns_waitcnt lgkmcnt(0)\ns_sub_u32 s62, s62, s60\ns_cmp_lt_u32 s62, {int(os.environ["TFIX"])}\ns_cbranch_scc1 Lfix')
    if STAMP:
        a('s_waitcnt vmcnt(0)')
        a.stamp('end'); a.stamp('rt1', True)
        a(f's_waitcnt lgkmcnt(0)\ns_lshl_b32 s{T0}, s2, 2\ns_add_u32 s{T0}, s{T0}, s{S_W}\ns_lshl_b32 s{T0}, s{T0}, 7\ns_add_u32 s{T0}, s{T0}, {WS_DBG}\nv_mov_b32 v4, 0')
        for i in range(a.nst):
            a(f'v_mov_b32 v5, s{60+2*i}\nbuffer_store_dword v5, v4, {sr4(SRD_WS)}, s{T0} offen offset:{4*i}')
    if STAMP and int(os.environ.get('DBGOUT', '0')):
        n = a.nst
        a(f'''
        s_load_dwordx2 s[{SRD_A}:{SRD_A+1}], s[0:1], 64
        s_mov_b32 s{SRD_A+2}, 256
        s_mov_b32 s{SRD_A+3}, 0x20000
        s_not_b32 s{T1}, s60
        v_mov_b32 v6, s{T1}
        v_mov_b32 v7, s{60+2*(n-1)}
        v_mov_b32 v8, s60
        s_mov_b64 exec, 1
        s_waitcnt lgkmcnt(0)
        buffer_atomic_umax v6, v4, {sr4(SRD_A)}, 0 offen
        buffer_atomic_umax v7, v4, {sr4(SRD_A)}, 0 offen offset:4
        buffer_atomic_umax v8, v4, {sr4(SRD_A)}, 0 offen offset:8
        s_or_b32 s{T0}, s2, s{S_W}
        s_cmp_lg_u32 s{T0}, {int(os.environ.get('DBGWG', '0'))}
        s_cbranch_scc1 Lend
        ''')
        for i in range(2, min(n - 1, 15)):
            a(f's_sub_u32 s{T0}, s{60+2*i}, s62\nv_mov_b32 v5, s{T0}\nbuffer_store_dword v5, v4, {sr4(SRD_A)}, 0 offen offset:{4*(i+1)}')
    a.label('Lend')
    a('s_endpgm')
    fallback(a, R)
    a.label('Lcode_end')
    a.finalize()
    head = open('sequential_preLN__mha_block__glu_gated_swiglu__prompt.s.ref').read().split('; Override')[0]
    pre = f'.amdgcn_target "amdgcn-amd-amdhsa--gfx950"\n.text\n.p2align 12\n.fill {(4096 - 0x300) // 4}, 4, 0xbf800000\n.globl {NAME}\n.p2align 8\n.type {NAME},@function\n{NAME}:\n'
    if opt('visit', 1):
        import subprocess, re, tempfile
        from asmgen import Ins
        tmp = tempfile.mkdtemp()
        open(tmp + '/t.s', 'w').write(pre + a.text() + ''.join(f'Lpage{i}:\n' for i in range(1, 13)))
        subprocess.run(['clang', '-x', 'assembler', '-target', 'amdgcn-amd-amdhsa', '-mcpu=gfx950', '-c', tmp + '/t.s', '-o', tmp + '/t.o'], check=True)
        dis = subprocess.run(['llvm-objdump', '-d', '--mcpu=gfx950', tmp + '/t.o'], capture_output=True, text=True).stdout
        dis = dis[dis.index(f'<{NAME}>:'):]
        sizes = [4 * len(m.group(1).split()) for m in re.finditer(r'// [0-9A-F]{12}: ([0-9A-F ]+)$', dis, re.M)]
        out = []; off = 0; page = 1; k = 0
        for x in a.ins:
            if x.kind not in ('label', 'dir'):
                if off >= 4096 * page and page <= 12:
                    out += [Ins(f'Lpage{page}:'), Ins(f's_cbranch_execz Lvis{(page - 1) // 4}')]
                    off += 4; page += 1
                off += sizes[k]; k += 1
            out.append(x)
        assert k == len(sizes), (k, len(sizes))
        for pg in range(page, 13): out += [Ins(f'Lpage{pg}:'), Ins(f's_branch Lvis{(pg - 1) // 4}')]
        a.ins = out
    s = head + f'; @launch grid=(256,1,1) block=(256,1,1) lds={LDS_BYTES}\n' + pre + a.text()
    s += f'''.section .rodata,"a"
.p2align 6
.amdhsa_kernel {NAME}
  .amdhsa_next_free_vgpr 512
  .amdhsa_next_free_sgpr 102
  .amdhsa_accum_offset 256
  .amdhsa_group_segment_fixed_size 0
  .amdhsa_kernarg_size 80
  .amdhsa_user_sgpr_count 2
  .amdhsa_user_sgpr_kernarg_segment_ptr 1
  .amdhsa_system_sgpr_workgroup_id_x 1
.end_amdhsa_kernel
'''
    if STAMP: s = '; STAMPS ' + ' '.join(a.names) + '\n' + s
    print(f'instrs={len(a.ins)} nop_states={a.nops} stamps={a.nst}', file=sys.stderr)
    return s

if __name__ == '__main__':
    open(sys.argv[1], 'w').write(gen())
```

```python
import sys, struct, math, os
from asmgen import Asm

NAME = 'sequential_preLN__mha_block__glu_gated_swiglu__prompt_kernel'
MB = 1 << 20
WS_KV  = 0
WS_O   = 4 * MB
WS_H   = 6 * MB
WS_ST  = 8 * MB
WS_HH  = 9 * MB
WS_FLG = 16 * MB
FL_A = WS_FLG + 0x10000
FL_B = FL_A + 1024 * 128
FL_C = FL_B + 1024 * 128
FL_D1 = FL_C + 1024 * 128
FL_D2 = FL_D1 + 1024 * 128
FL_D3 = FL_D2 + 1024 * 128
FL_W = FL_D3 + 1024 * 128
WS_WB = WS_ST + 0x80000
WS_MH = WS_ST + 0x90000
FLS = 1024 * 128
WS_DBG = 17 * MB
WS_SIZE = 18 * MB

X_BYTES = 2048 * 448 * 2
WQKV_BYTES = 448 * 1344 * 2
WO_BYTES = 448 * 448 * 2
W1_BYTES = 448 * 1792 * 2
W2_BYTES = 1792 * 448 * 2
LDS_BYTES = 163840
MFMA = 'v_mfma_f32_32x32x16_bf16'
STAMP = int(os.environ.get('STAMP', '0'))
OPT = dict(kv.split('=') for kv in os.environ.get('OPT', '').split(',') if kv)
def opt(k, d): return int(OPT.get(k, d))

def f2u(x): return struct.unpack('<I', struct.pack('<f', x))[0]
def fx(x): return hex(f2u(x))
def vr(b, n=1, p='v'): return f'{p}[{b}:{b+n-1}]' if n > 1 else f'{p}{b}'
def sr4(b): return f's[{b}:{b+3}]'

class VA:
    def __init__(self, start, limit): self.n = start; self.limit = limit
    def __call__(self, cnt=1, align=None):
        if align is None: align = 1 if cnt == 1 else (2 if cnt == 2 else 4)
        self.n = (self.n + align - 1) // align * align
        b = self.n; self.n += cnt
        assert self.n <= self.limit, f'out of registers {self.n} > {self.limit}'
        return b

class K(Asm):
    def __init__(self):
        super().__init__(); self.vm = []; self.nst = 0; self.nlab = 0; self.names = []
    def vmem(self, text, tag):
        self(text); self.vm.append(tag)
    def vmwait(self, *tags, lgkm=None):
        idx = [i for i, t in enumerate(self.vm) if t in tags]
        s = ''
        if idx:
            n = len(self.vm) - 1 - max(idx)
            s += f' vmcnt({min(n, 63)})'
            self.vm = self.vm[len(self.vm) - n:] if n else []
        if lgkm is not None: s += f' lgkmcnt({lgkm})'
        if s: self('s_waitcnt' + s)
    def vmall(self):
        self('s_waitcnt vmcnt(0)'); self.vm = []
    def emit(self, x):
        if isinstance(x, tuple):
            if x[0] == 'vm': self.vmem(x[1], x[2])
            elif x[0] == 'wait': self.vmwait(*x[1:])
            elif x[0] == 'call': x[1]()
        else: self(x)
    def stamp(self, name='', real=False):
        if not STAMP: return
        if name and name[0] in 'ABCDEFGHIR' and name[0] not in os.environ.get('STAMPSET', 'AB'): return
        if name in self.names:
            i = self.names.index(name)
        else:
            i = self.nst; self.nst += 1; self.names.append(name)
        assert i < 19
        self(f's_mem{"real" if real else ""}time s[{60+2*i}:{61+2*i}]')
    def newlabel(self, p):
        self.nlab += 1; return f'L{p}{self.nlab}'

S_W = 3
SRD_X = 4; SRD_WQKV = 8; SRD_WS = 12; SRD_A = 16; SRD_B = 20
P_X, P_WQKV, P_WO, P_W1, P_W3, P_W2, P_OUT, P_WS = 32, 34, 36, 40, 42, 44, 46, 50
S_TAG = 24; S_H = 25; S_TB = 26; S_RB = 27; S_CB = 28; S_TD = 29; S_FS = 30; S_J = 31
S_E0 = 38; S_L0 = 39
S_U0 = 48; S_U1 = 49
S_ONES = 52
T0, T1, T2, T3, T4, T5, T6 = 53, 54, 55, 56, 57, 58, 59
S_SPIN = 98
S_ROT = 39
S_DUM = 100
S_RX = 99
S_WG = 32
WROW = 232
MUX = 216
S_R14 = 0; S_RG = 1
V_LANE = 1; V_OFF = 2; V_FL = 3
V_SRC = 212; V_P13 = 213; V_RD = 214
HKEEP = 216
V_SRC2 = 0
XRES = 204
WOV = 224
PAIR = 57344; SCR = 2 * PAIR; SINGLE = SCR + 16384
NHG = 12
RAW5 = 196

def xm(n):
    if n >= 64: return 's_mov_b64 exec, -1'
    if n < 31: return f's_mov_b64 exec, {hex((1 << n) - 1)}'
    lo = '-1' if n >= 32 else hex((1 << n) - 1)
    return f's_mov_b32 exec_lo, {lo}\ns_mov_b32 exec_hi, {hex((1 << max(0, n - 32)) - 1)}'

def srd(a, d, p, nbytes):
    a(f's_mov_b32 s{d}, s{p}\ns_mov_b32 s{d+1}, s{p+1}\ns_mov_b32 s{d+2}, {nbytes}\ns_mov_b32 s{d+3}, 0x20000')

def visit(a, site):
    if not opt('visit', 1): return
    a('s_mov_b64 exec, 0')
    for w in range(4):
        a(f's_cmp_eq_u32 s{S_W}, {w}\ns_cbranch_scc1 Lpage{1 + 4*site + w}')
    a.label(f'Lvis{site}')
    a('s_mov_b64 exec, -1')

def halfsum(a, x, t):
    a(f'v_mov_b32 v{t}, v{x}\nv_permlane32_swap_b32 v{x}, v{t}\nv_add_f32 v{x}, v{x}, v{t}')

def flag_store(a, sreg, vt):
    a(f'v_mov_b32 v{vt}, s{S_TAG}\ns_mov_b64 exec, 1')
    a.vmem(f'buffer_store_dword v{vt}, v{V_OFF}, {sr4(SRD_WS)}, s{sreg} offen sc1', 'flag')
    a('s_mov_b64 exec, -1')

def poll_issue(a, sreg, vaddr, nl, vt):
    a(xm(nl))
    a.vmem(f'buffer_load_dword v{vt}, v{vaddr}, {sr4(SRD_WS)}, s{sreg} offen sc1', 'poll')
    a('s_mov_b64 exec, -1')

def poll_check(a, sreg, vaddr, nl, vt):
    L = a.newlabel('poll'); D = L + 'd'
    a(xm(nl) + f'\ns_mov_b32 s{S_SPIN}, 0x40000')
    a.vmwait('poll')
    a(f'v_cmp_ne_u32 vcc, s{S_TAG}, v{vt}\ns_cbranch_vccz {D}')
    a.label(L)
    a(f'''
    {f"s_sleep {opt('sleep', 1)}" if opt('sleep', 1) else ''}
    buffer_load_dword v{vt}, v{vaddr}, {sr4(SRD_WS)}, s{sreg} offen sc1
    s_sub_u32 s{S_SPIN}, s{S_SPIN}, 1
    s_waitcnt vmcnt(0)
    s_cbranch_scc1 {D}
    v_cmp_ne_u32 vcc, s{S_TAG}, v{vt}
    s_cbranch_vccnz {L}
    ''')
    a.label(D)
    a('s_mov_b64 exec, -1')

def ssrd(a, D, lim, pa, pb, na, nb, per, u0, u1):
    a(f'''
    s_lshl_b32 s{u0}, s2, 2
    s_add_u32 s{u0}, s{u0}, s{S_W}
    s_mov_b32 s{D+2}, {na}
    s_cmp_ge_u32 s{u0}, {lim}
    s_cselect_b32 s{D}, s{pb}, s{pa}
    s_cselect_b32 s{D+1}, s{pb+1}, s{pa+1}
    s_cselect_b32 s{D+2}, {nb}, s{D+2}
    s_cselect_b32 s{u1}, {lim}, 0
    s_sub_u32 s{u0}, s{u0}, s{u1}
    s_mul_i32 s{u0}, s{u0}, {per}
    s_min_u32 s{u0}, s{u0}, s{D+2}
    s_sub_u32 s{D+2}, s{D+2}, s{u0}
    s_add_u32 s{D}, s{D}, s{u0}
    s_addc_u32 s{D+1}, s{D+1}, 0
    s_mov_b32 s{D+3}, 0x20000
    ''')

def sld(D, o): return f's_buffer_load_dwordx2 s[{S_DUM}:{S_DUM+1}], {sr4(D)}, {o + 60}'

def phase_a(a, R):
    WR = 114688
    WQ = 16384
    CSP = WR + 5 * 8192
    PRV = CSP + 1536
    QX = 49152
    assert PRV + 2048 <= LDS_BYTES
    R['QX'] = QX
    Q0 = R['Q'][0]
    va = VA(4, 256)
    ACC = [va(16), va(16)]; accQ = va(16)
    PK = va(8); assert PK == Q0, (PK, Q0)
    X = [va(4) for _ in range(28)]
    NWF = 4
    WF = [[va(4) for j in range(2)] for b in range(NWF)]
    vx = [va(), va()]; vw = [va(), va()]
    ax = [va() for _ in range(4)]; aw = [va() for _ in range(4)]; ab = [va() for _ in range(4)]
    pr = [va(2) for _ in range(6)]
    cs = [pr[0], pr[1], pr[2]]; mu = pr[3]; rs = pr[4]; rq = pr[5]
    sm = [pr[0] + 1, pr[1] + 1]; sq = [pr[2] + 1, pr[3] + 1]
    hf = pr[4] + 1; n31 = pr[5] + 1
    vq = va()
    t = [va() for _ in range(7)] + [0]
    dB = t[7]
    assert va.n <= 240, va.n
    T16 = 240; U16 = accQ
    a(f'v_lshrrev_b32 v{hf}, 5, v{V_LANE}\nv_and_b32 v{n31}, 31, v{V_LANE}')
    for i in range(2):
        a(f'''
        v_lshrrev_b32 v{t[0]}, 3, v{V_LANE}
        v_add_u32 v{t[0]}, {8*i}, v{t[0]}
        v_lshrrev_b32 v{t[1]}, 1, v{t[0]}
        v_and_b32 v{t[1]}, 7, v{t[1]}
        v_and_b32 v{t[2]}, 7, v{V_LANE}
        v_xor_b32 v{t[1]}, v{t[1]}, v{t[2]}
        v_lshlrev_b32 v{t[1]}, 4, v{t[1]}
        v_mul_u32_u24 v{t[0]}, 896, v{t[0]}
        v_add_u32 v{vx[i]}, v{t[0]}, v{t[1]}
        ''')
    a(f'''
    v_subrev_u32 v{vx[1]}, 1024, v{vx[1]}
    v_lshrrev_b32 v{t[0]}, 3, v{V_LANE}
    v_lshrrev_b32 v{t[1]}, 2, v{V_LANE}
    v_and_b32 v{t[1]}, 4, v{t[1]}
    v_xor_b32 v{t[1]}, v{t[1]}, v{t[2]}
    v_min_u32 v{t[1]}, 6, v{t[1]}
    v_mul_u32_u24 v{t[0]}, 2688, v{t[0]}
    v_lshl_add_u32 v{vw[0]}, v{t[1]}, 4, v{t[0]}
    v_add_u32 v{vw[1]}, {8*2688 - 1024}, v{vw[0]}
    s_waitcnt lgkmcnt(0)
    ''')
    srd(a, SRD_X, P_X, X_BYTES); srd(a, SRD_WQKV, P_WQKV, WQKV_BYTES)
    SX, SW, LX, LW = T3, T4, T5, T6
    a(f'''
    s_lshl_b32 s{SX}, s{S_TB}, 2
    s_add_u32 s{SX}, s{SX}, s{S_W}
    s_mul_i32 s{SX}, s{SX}, {32*896}
    s_mul_i32 s{SW}, s{S_W}, {16*2688}
    s_lshr_b32 s{T0}, s{S_H}, 1
    s_mul_i32 s{T0}, s{T0}, 112
    s_add_u32 s{SW}, s{SW}, s{T0}
    s_and_b32 s{T0}, s{S_H}, 1
    s_mul_i32 s{T0}, s{T0}, 896
    s_add_u32 s{SW}, s{SW}, s{T0}
    s_add_u32 s{SW}, s{SW}, 896
    s_mul_i32 s{LX}, s{S_W}, 28672
    s_lshl_b32 s{LW}, s{S_W}, 11
    ''')
    def w_items(c):
        lds = WR + c * 8192 if c < 5 else (c - 5) * 8192
        return [[f's_add_u32 m0, s{LW}, {lds}', f's_mul_i32 s{T0}, s{S_ROT}, {64*2688}', f's_add_u32 s{T0}, s{T0}, s{SW}',
                 ('vm', f'buffer_load_dwordx4 v{vw[0]}, {sr4(SRD_WQKV)}, s{T0} offen lds', f'w{c}')],
                [('vm', f'buffer_load_dwordx4 v{vw[1]}, {sr4(SRD_WQKV)}, s{T0} offen offset:1024 lds', f'w{c}'),
                 f's_add_u32 s{S_ROT}, s{S_ROT}, 1', f's_cmp_eq_u32 s{S_ROT}, 7', f's_cselect_b32 s{S_ROT}, 0, s{S_ROT}']]
    def x_items(c):
        out = []
        for i in range(4):
            out.append(([f's_add_u32 m0, s{LX}, {c*4096}', f's_add_u32 s{T0}, s{S_RX}, s{SX}'] if i == 0 else []) +
                       ([f's_add_u32 s{T0}, s{T0}, 12288'] if i == 2 else []) +
                       [('vm', f'buffer_load_dwordx4 v{vx[i&1]}, {sr4(SRD_X)}, s{T0} offen offset:{1024*i} lds', f'x{c}')] +
                       ([f's_add_u32 s{S_RX}, s{S_RX}, 128', f's_cmp_eq_u32 s{S_RX}, 896', f's_cselect_b32 s{S_RX}, 0, s{S_RX}'] if i == 3 else []))
        return out
    def put(items):
        for it in items:
            for x in it: a.emit(x)
    a.stamp('G_karg')
    NPRE = opt('npre', 2)
    a(f'''
    s_lshr_b32 s{S_ROT}, s{S_J}, 3
    s_mul_i32 s{S_ROT}, s{S_ROT}, {opt('rotm', 2)}
    s_and_b32 s{T0}, s{S_J}, 7
    s_add_u32 s{S_ROT}, s{S_ROT}, s{T0}
    s_mul_i32 s{T0}, s{S_ROT}, 37
    s_lshr_b32 s{T0}, s{T0}, 8
    s_mul_i32 s{T0}, s{T0}, 7
    s_sub_u32 s{S_ROT}, s{S_ROT}, s{T0}
    s_lshl_b32 s{S_DUM}, s{S_ROT}, 2
    s_lshl_b32 s{S_RX}, s{S_ROT}, 7
    ''')
    put(x_items(0))
    srd(a, SRD_B, P_WO, WO_BYTES)
    a(f'''
    s_lshl_b32 s{S_WG}, s{S_H}, 4
    s_add_u32 s{S_WG}, s{S_WG}, s{S_TB}
    s_lshl_b32 s{T1}, s{S_W}, 7
    s_add_u32 s{T1}, s{T1}, s{S_WG}
    s_cmp_lt_u32 s{T1}, 112
    s_cselect_b32 s{S_WG}, s{S_WG}, 0x100000
    s_mul_i32 s{S_WG+1}, s{S_WG}, {4*896 // 16}
    s_lshl_b32 s{S_WG+1}, s{S_WG+1}, 4
    s_min_u32 s{S_WG+1}, s{S_WG+1}, 0x40000000
    ''')
    def wrow_items():
        return [[f'v_cmp_gt_u32 vcc, 56, v{V_LANE}', f'v_mov_b32 v{t[5]}, 0x40000000', 's_nop 0', f'v_cndmask_b32 v{t[5]}, v{t[5]}, v{V_OFF}, vcc']] + \
               [[('vm', f'buffer_load_dwordx4 {vr(WROW+4*i,4,"a")}, v{t[5]}, {sr4(SRD_B)}, s{S_WG+1} offen offset:{896*i}', 'wrow')] for i in range(4)]
    put(wrow_items() + w_items(0) + w_items(1))
    for c in range(1, NPRE): put(x_items(c))
    a.stamp('G_dma0')
    assert T1 % 2 == 0 and T2 == T1 + 1
    a(f's_add_u32 s{T1}, s{P_WS}, {WS_FLG}\ns_addc_u32 s{T2}, s{P_WS+1}, 0\ns_load_dword s{S_TAG}, s[{T1}:{T2}], 0')
    srd(a, SRD_WS, P_WS, WS_SIZE)
    def touch_item():
        TA, TB, TC = T1, T2, T0
        return [f's_lshl_b32 s{TA}, s2, 2', f's_add_u32 s{TA}, s{TA}, s{S_W}', f's_mul_i32 s{TB}, s{TA}, 1338', f's_lshr_b32 s{TB}, s{TB}, 18',
                f's_mul_i32 s{TC}, s{TB}, 196', f's_sub_u32 s{TA}, s{TA}, s{TC}', f's_lshl_b32 s{TA}, s{TA}, 13',
                f's_cmp_eq_u32 s{TB}, 1', f's_cselect_b32 s{SRD_A}, s{P_W3}, s{P_W1}', f's_cselect_b32 s{SRD_A+1}, s{P_W3+1}, s{P_W1+1}',
                f's_cmp_eq_u32 s{TB}, 2', f's_cselect_b32 s{SRD_A}, s{P_W2}, s{SRD_A}', f's_cselect_b32 s{SRD_A+1}, s{P_W2+1}, s{SRD_A+1}',
                f's_mov_b32 s{SRD_A+2}, {W1_BYTES}',
                f's_cmp_eq_u32 s{TB}, 3', f's_cselect_b32 s{SRD_A}, s{P_WO}, s{SRD_A}', f's_cselect_b32 s{SRD_A+1}, s{P_WO+1}, s{SRD_A+1}',
                f's_cselect_b32 s{SRD_A+2}, {WO_BYTES}, s{SRD_A+2}',
                f's_cmp_gt_u32 s{TB}, 3', f's_cselect_b32 s{SRD_A+2}, 0, s{SRD_A+2}', f's_mov_b32 s{SRD_A+3}, 0x20000',
                ('vm', f'buffer_load_dword a0, v{V_FL}, {sr4(SRD_A)}, s{TA} offen', 'touch')]
    def prew():
        a(f'''
        v_mov_b32 v{t[7]}, s{S_TAG}
        v_add_u32 v{t[7]}, -1, v{t[7]}
        v_lshlrev_b32 v{t[5]}, 2, v{V_LANE}
        {xm(32)}
        s_lshr_b32 s{T1}, s{S_H}, 1
        s_lshl_b32 s{T1}, s{T1}, 2
        s_add_u32 s{T1}, s{T1}, s{S_W}
        s_lshl_b32 s{T1}, s{T1}, 1
        s_and_b32 s{T2}, s{S_H}, 1
        s_add_u32 s{T1}, s{T1}, s{T2}
        s_lshl_b32 s{T1}, s{T1}, 4
        s_add_u32 s{T1}, s{T1}, s{S_TB}
        s_lshl_b32 s{T1}, s{T1}, 7
        s_add_u32 s{T1}, s{T1}, {FL_A}
        ''')
        st_ = lambda: a.vmem(f'buffer_store_dword v{t[7]}, v{t[5]}, {sr4(SRD_WS)}, s{T1} offen sc1', 'prew')
        st_()
        a(f's_lshl_b32 s{T1}, s{S_TB}, 2\ns_add_u32 s{T1}, s{T1}, s{S_W}\ns_lshl_b32 s{T1}, s{T1}, 4\ns_add_u32 s{T1}, s{T1}, s{S_H}\ns_lshl_b32 s{T1}, s{T1}, 7\ns_add_u32 s{T1}, s{T1}, {FL_B}')
        st_()
        a(f's_lshl_b32 s{T1}, s{S_TD}, 2\ns_add_u32 s{T1}, s{T1}, s{S_W}\ns_lshl_b32 s{T1}, s{T1}, 4\ns_add_u32 s{T1}, s{T1}, s{S_FS}\ns_lshl_b32 s{T1}, s{T1}, 7\ns_add_u32 s{T1}, s{T1}, {FL_D1}')
        for i in range(3):
            st_(); a(f's_add_u32 s{T1}, s{T1}, {FLS}')
        a(f's_lshl_b32 s{T1}, s{S_WG}, 7\ns_add_u32 s{T1}, s{T1}, {FL_W}')
        st_()
        a(f'''
        s_lshl_b32 s{T1}, s{S_RB}, 1
        s_and_b32 s{T2}, s{S_W}, 1
        s_add_u32 s{T1}, s{T1}, s{T2}
        s_lshl_b32 s{T1}, s{T1}, 3
        s_add_u32 s{T1}, s{T1}, s{S_CB}
        s_lshl_b32 s{T1}, s{T1}, 1
        s_lshr_b32 s{T2}, s{S_W}, 1
        s_add_u32 s{T1}, s{T1}, s{T2}
        s_lshl_b32 s{T1}, s{T1}, 7
        s_add_u32 s{T1}, s{T1}, {FL_C}
        s_cmp_ge_u32 s{S_J}, 28
        s_cselect_b32 s{T1}, 0x40000000, s{T1}
        ''')
        st_()
        a('s_mov_b64 exec, -1')
    def dmaq_items():
        out = []
        for i in range(7):
            out.append([] +
                       [f's_add_u32 m0, s{S_U0}, {i*1024}', f's_mul_i32 s{T0}, s{S_U1}, {16*2688}', f's_add_u32 s{T0}, s{T0}, s{S_E0}',
                        ('vm', f'buffer_load_dwordx4 v{vq}, {sr4(SRD_WQKV)}, s{T0} offen lds', 'wq'),
                        f's_add_u32 s{S_U1}, s{S_U1}, 1', f's_cmp_eq_u32 s{S_U1}, 28', f's_cselect_b32 s{S_U1}, 0, s{S_U1}'])
        return out
    a(f'''
    s_mul_i32 s{S_U0}, s{S_W}, {7*1024}
    s_add_u32 s{S_U0}, s{S_U0}, {WQ}
    s_mul_i32 s{S_U1}, s{S_W}, 7
    s_add_u32 s{S_U1}, s{S_U1}, s{S_DUM}
    s_cmp_ge_u32 s{S_U1}, 28
    s_cselect_b32 s{T0}, 28, 0
    s_sub_u32 s{S_U1}, s{S_U1}, s{T0}
    s_mul_i32 s{S_E0}, s{S_H}, 56
    ''')
    a(f'''
    v_lshrrev_b32 v{t[0]}, 2, v{V_LANE}
    v_mul_u32_u24 v{t[0]}, 2688, v{t[0]}
    v_and_b32 v{t[3]}, 3, v{V_LANE}
    v_lshl_add_u32 v{vq}, v{t[3]}, 4, v{t[0]}
    v_lshrrev_b32 v{t[0]}, 1, v{n31}
    v_and_b32 v{t[0]}, 7, v{t[0]}
    v_lshlrev_b32 v{t[1]}, 7, v{n31}
    v_add_u32 v{t[1]}, s{LX}, v{t[1]}
    v_bfe_u32 v{t[2]}, v{V_LANE}, 4, 1
    v_lshlrev_b32 v{t[2]}, 5, v{t[2]}
    v_lshl_add_u32 v{t[2]}, v{t[3]}, 3, v{t[2]}       ; cg*32 + c4*8
    v_bfe_u32 v{t[3]}, v{V_LANE}, 2, 2                ; r
    v_lshl_add_u32 v{t[5]}, v{hf}, 3, v{t[3]}         ; 8hf + r
    v_lshl_add_u32 v{t[6]}, v{t[5]}, 6, v{t[2]}
    v_bfe_u32 v{t[3]}, v{V_LANE}, 3, 1
    v_lshlrev_b32 v{t[3]}, 6, v{t[3]}                 ; 64*bit
    v_add_u32 v{t[4]}, 56, v{t[2]}
    v_xor_b32 v{t[4]}, v{t[4]}, v{t[3]}
    v_xor_b32 v{t[2]}, v{t[2]}, v{t[3]}
    v_sub_u32 v{dB}, v{t[4]}, v{t[2]}
    v_lshl_add_u32 v{t[2]}, v{t[5]}, 7, v{t[2]}
    v_add_u32 v{t[2]}, {WR}, v{t[2]}
    ''')
    AQ = t[6]
    for n in range(4):
        a(f'''
        s_add_u32 s{T0}, s{S_W}, {n}
        s_and_b32 s{T0}, s{T0}, 3
        s_lshl_b32 s{T1}, s{T0}, 1
        v_add_u32 v{t[4]}, s{T1}, v{hf}
        v_xor_b32 v{t[4]}, v{t[4]}, v{t[0]}
        v_lshl_add_u32 v{ax[n]}, v{t[4]}, 4, v{t[1]}
        s_lshl_b32 s{T1}, s{T0}, 11
        v_add_u32 v{aw[n]}, s{T1}, v{t[2]}
        v_add_u32 v{ab[n]}, v{dB}, v{aw[n]}
        ''')
    for r in sm + sq + cs: a(f'v_mov_b32 v{r}, 0')
    a(f's_mov_b32 s{S_ONES}, 0x3f803f80')
    PA = t[0]; CA = t[1]; CR = t[2]; PB = vx[0]
    if opt('spre', 1):
        ssrd(a, SRD_A, 512, P_W1, P_W3, W1_BYTES, W1_BYTES, 3200, T1, T2)
    visit(a, 0)
    a.stamp('A_issued')
    ONE = PK; assert ONE % 2 == 0
    for i in range(4): a(f'v_mov_b32 v{ONE+i}, s{S_ONES}')
    steps = list(range(20)) + [20, 24, 21, 22, 23, 25, 26, 27]
    def reads(p_):
        s_ = steps[p_]; c, n = divmod(s_, 4); b = p_ % NWF; off = (c if c < 5 else c - 5) * 8192
        return [f'ds_read_b64_tr_b16 {vr(WF[b][0]+2*u,2)}, v{aw[n]} offset:{off + u*512}' for u in range(2)] + \
               [f'ds_read_b64_tr_b16 {vr(WF[b][1]+2*u,2)}, v{ab[n]} offset:{off + u*512}' for u in range(2)]
    hs = lambda x, tt: [f'v_mov_b32 v{tt}, v{x}', f'v_permlane32_swap_b32 v{x}, v{tt}', f'v_add_f32 v{x}, v{x}, v{tt}']
    CS = [accQ, T16]
    def dots(c, side):
        for n in range(4):
            x = X[4*c+n]
            for i in range(4):
                a(f'v_dot2c_f32_bf16 v{sm[i&1]}, s{S_ONES}, v{x+i}')
                a(f'v_dot2c_f32_bf16 v{sq[i&1]}, v{x+i}, v{x+i}')
            side()
    def xread(c):
        for n in range(4): a(f'ds_read_b128 {vr(X[4*c+n],4)}, v{ax[n]} offset:{c*4096}')
    a.vmwait('x0', lgkm=0)
    a.stamp('A_c0'); a(f's_add_u32 s{S_TAG}, s{S_TAG}, 1')
    xread(0)
    if opt('prew', 1): prew()
    a(f's_bitcmp1_b32 s{S_H}, 0\ns_cbranch_scc1 LAV')
    vm0 = list(a.vm)
    for typ in range(2):
        if typ == 1:
            a.label('LAV'); a.vm = list(vm0)
        NQE = 7
        def mf(p_, j):
            x = X[steps[p_]]; b = p_ % NWF
            A_, B_ = (WF[b][j], x) if typ == 0 else (x, WF[b][j])
            return f'{MFMA} {vr(ACC[j],16)}, {vr(A_,4)}, {vr(B_,4)}, {vr(ACC[j],16) if p_ else 0}'
        def mlist(p_):
            M = [mf(p_, 0), mf(p_, 1)]
            if steps[p_] % 4 == 0:
                M = [f'{MFMA} {vr(CS[j],16)}, {vr(ONE,4)}, {vr(WF[p_ % NWF][j],4)}, {vr(CS[j],16) if p_ else 0}' for j in range(2)] + M
            return M
        q_dma = []
        for c in range(NPRE, 5): q_dma += x_items(c)
        q_dma += w_items(2) + x_items(5) + x_items(6) + w_items(3) + w_items(4)
        def side1(k=opt('dmaper', 2)):
            for _ in range(k):
                if q_dma: put([q_dma.pop(0)])
        side1(4)
        for c in range(1, 7):
            while any(isinstance(x, tuple) and x[2] == f'x{c}' for it in q_dma for x in it): put([q_dma.pop(0)])
            a.vmwait(f'x{c}'); a.stamp(f'G_x{c}')
            xread(c)
            if c == 1:
                a('s_barrier')
                for x in reads(0) + reads(1): a(x)
                a('s_waitcnt lgkmcnt(12)')
            elif c == 6:
                put(q_dma); q_dma = []
                a('s_waitcnt lgkmcnt(0)\ns_barrier')
                a.stamp('A_x')
                for x in reads(8) + reads(9): a(x)
                put(w_items(5))
            else:
                a('s_waitcnt lgkmcnt(4)')
            dots(c - 1, side1)
            if c in (1, 2):
                for p_ in range(4 * (c - 1), 4 * c):
                    a('s_waitcnt lgkmcnt(4)' if p_ < 7 else 's_waitcnt lgkmcnt(0)')
                    rd = reads(p_ + 2) if p_ + 2 < 8 else []
                    M = mlist(p_)
                    for k_, m_ in enumerate(M):
                        a(m_)
                        if k_ >= len(M) - 2:
                            for y in (rd[:2] if k_ == len(M) - 2 else rd[2:]): a(y)
                        side1(1)
        dots(6, lambda: None)
        q2 = w_items(6) + dmaq_items()
        ex = [f'v_add_f32 v{sm[0]}, v{sm[0]}, v{sm[1]}', f'v_add_f32 v{sq[0]}, v{sq[0]}, v{sq[1]}'] + hs(sm[0], t[3]) + hs(sq[0], t[4]) + [
              f'v_mul_f32 v{mu}, {fx(1.0/448)}, v{sm[0]}', f'v_mul_f32 v{t[3]}, {fx(1.0/448)}, v{sq[0]}',
              f'v_fma_f32 v{t[3]}, -v{mu}, v{mu}, v{t[3]}', f'v_max_f32 v{t[3]}, 0, v{t[3]}', f'v_add_f32 v{t[3]}, {fx(1e-5)}, v{t[3]}',
              f'v_rsq_f32 v{rs}, v{t[3]}', f'v_lshlrev_b32 v{t[4]}, 2, v{n31}',
              f's_lshl_b32 s{T2}, s{S_W}, 9', f's_add_u32 s{T2}, s{T2}, {PRV}',
              f'v_add_u32 v{PA}, s{T2}, v{t[4]}', f'v_lshlrev_b32 v{PB}, 4, v{hf}', f'v_add_u32 v{PB}, s{T2}, v{PB}',
              f's_mul_i32 s{T2}, s{S_W}, 384', f's_add_u32 s{T2}, s{T2}, {CSP}', f'v_add_u32 v{CA}, s{T2}, v{t[4]}',
              f'v_mul_u32_u24 v{CR}, 768, v{hf}', f'v_add_u32 v{CR}, v{CR}, v{t[4]}', f'v_add_u32 v{CR}, {CSP}, v{CR}',
              f'v_mul_f32 v{rq}, {fx(28**-0.5 * math.log2(math.e))}, v{rs}']
        for p_ in range(8, 28):
            if p_ == 10:
                a.vmwait('w4', lgkm=0); a('s_barrier'); a.stamp('G_w4')
            elif p_ == 18:
                while any(isinstance(x, tuple) and x[0] == 'vm' and x[2] == 'w6' for it in q2 for x in it): put([q2.pop(0)])
                a.vmwait('w6', lgkm=0); a('s_barrier'); a.stamp('G_w6')
                for n in range(4): a(f'v_subrev_u32 v{aw[n]}, {WR}, v{aw[n]}\nv_subrev_u32 v{ab[n]}, {WR}, v{ab[n]}')
            elif p_ <= 22: a('s_waitcnt lgkmcnt(4)')
            elif p_ == 23: pass
            rd = reads(p_ + 2) if p_ + 2 < 28 and p_ < 21 else []
            if p_ == 21: rd = reads(23) + reads(24)
            M = mlist(p_)
            if p_ == 22:
                assert not ex
                ex = [f'ds_write_b32 v{CA}, v{CS[0]} offset:128', f'ds_write_b32 v{CA}, v{CS[1]} offset:256']
                if typ == 1: ex += [f'ds_write_b32 v{PA}, v{mu} offset:256', f'ds_write_b32 v{PA}, v{rs} offset:384']
                ex += reads(25) + ['s_waitcnt lgkmcnt(0)', 's_barrier'] + reads(26) + reads(27)
                for j in (1, 2): ex += [f'ds_read_b32 v{cs[j]}, v{CR} offset:{j*128}', f'ds_read_b32 v{t[3+j]}, v{CR} offset:{384 + j*128}']
                if typ == 1:
                    for q in range(4): ex += [f'ds_read_b128 {vr(T16+4*q,4)}, v{PB} offset:{256 + 32*q}', f'ds_read_b128 {vr(U16+4*q,4)}, v{PB} offset:{384 + 32*q}']
                    ex += ['s_waitcnt lgkmcnt(8)']
                else: ex += ['s_waitcnt lgkmcnt(0)']
                tail = [f'v_add_f32 v{cs[j]}, v{cs[j]}, v{t[3+j]}' for j in (1, 2)] + hs(cs[1], t[3]) + hs(cs[2], t[4])
                if typ == 0:
                    tail += [f'ds_write_b32 v{PA}, v{cs[1]}', f'ds_write_b32 v{PA}, v{cs[2]} offset:128']
                    tail += [f'ds_read_b128 {vr(T16+4*q,4)}, v{PB} offset:{32*q}' for q in range(4)]
                    tail += [f'ds_read_b128 {vr(U16+4*q,4)}, v{PB} offset:{128 + 32*q}' for q in range(4)]
                    tail += [f'v_cmp_lt_u32 vcc, 31, v{V_LANE}']
                else:
                    tail += [f'v_cmp_eq_u32 vcc, 28, v{n31}', f'v_mov_b32 v{t[7]}, s{S_ONES}', f'v_cndmask_b32 v{t[7]}, 0, v{t[7]}, vcc', f'v_cmp_lt_u32 vcc, 27, v{n31}']
                tail += [f's_lshl_b32 s{T0}, s{S_TB}, 2', f's_add_u32 s{T0}, s{T0}, s{S_W}', f's_and_b32 s{T1}, s{S_H}, 14', f's_lshl_b32 s{T1}, s{T1}, 6',
                         f's_add_u32 s{T0}, s{T0}, s{T1}', f's_lshl_b32 s{T0}, s{T0}, 12', f's_add_u32 s{T1}, s{T0}, {64*4096}']
            if p_ == 26:
                for x in ex: a(x)
                ex = tail
            for k_, m_ in enumerate(M):
                a(m_)
                if k_ >= len(M) - 2:
                    h_ = (len(rd) + 1) // 2
                    for y in (rd[:h_] if k_ == len(M) - 2 else rd[h_:]): a(y)
                if p_ < 22:
                    for x in ex[:3]: a(x)
                    ex = ex[3:]
                    if q2 and k_ == len(M) - 1 and (len(q2) > 7 or p_ >= opt('wq0', 10)): put([q2.pop(0)])
                else:
                    lim = {22: 4, 23: 4, 24: 100, 25: 100, 26: 8, 27: 8}[p_]
                    if p_ in (24, 25):
                        lim = 6
                    for x in ex[:lim]: a(x)
                    ex = ex[lim:]
        for x in ex: a(x)
        assert not q2
        a.stamp('A_kvloop')
        NEG1 = 'op_sel_hi:[1,0,1] neg_lo:[0,1,0] neg_hi:[0,1,0]'
        for j in range(2):
            A_ = ACC[j]; P_ = WF[j][0]
            if typ == 0:
                a(f's_waitcnt lgkmcnt({4*(1-j)})')
                C_ = (T16, U16)[j]
                for r in range(0, 16, 2): a(f'v_pk_fma_f32 {vr(A_+r,2)}, {vr(C_+r,2)}, {vr(mu,2)}, {vr(A_+r,2)} {NEG1}')
                for r in range(0, 16, 2): a(f'v_pk_mul_f32 {vr(A_+r,2)}, {vr(A_+r,2)}, {vr(rs,2)} op_sel_hi:[1,0]')
                for i in range(8): a(f'v_cvt_pk_bf16_f32 v{P_+i}, v{A_+2*i}, v{A_+2*i+1}')
                if j == 0: a(f'v_mov_b32 v{t[3]}, s{S_ONES}\nv_mov_b32 v{t[4]}, 0x3f80')
                a(f'v_cndmask_b32 v{P_+6}, v{P_+6}, v{t[3]}, vcc\nv_cndmask_b32 v{P_+7}, v{P_+7}, v{t[4]}, vcc')
            else:
                if j == 0: a('s_waitcnt lgkmcnt(0)')
                for r in range(0, 16, 2): a(f'v_pk_fma_f32 {vr(A_+r,2)}, {vr(T16+r,2)}, {vr(cs[1+j],2)}, {vr(A_+r,2)} {NEG1}')
                for r in range(0, 16, 2): a(f'v_pk_mul_f32 {vr(A_+r,2)}, {vr(A_+r,2)}, {vr(U16+r,2)}')
                for i in range(8): a(f'v_cvt_pk_bf16_f32 v{P_+i}, v{A_+2*i}, v{A_+2*i+1}')
                for i in range(8): a(f'v_cndmask_b32 v{P_+i}, v{P_+i}, v{t[7]}, vcc')
            for u in range(2):
                a.vmem(f'buffer_store_dwordx4 {vr(P_+4*u,4)}, v{V_OFF}, {sr4(SRD_WS)}, s{(T0, T1)[j]} offen offset:{2048*typ + 1024*u} sc1', 'stA')
        if typ == 0: a('s_branch LAQ')
    a.label('LAQ')
    (a.stamp('A_kvst'), a.stamp('R_A_kvstc'), a.stamp('R_A_kvstr', True))
    aq = aw
    for n in range(4):
        a(f'''
        s_add_u32 s{T0}, s{S_W}, {n}
        s_and_b32 s{T0}, s{T0}, 3
        s_lshl_b32 s{T0}, s{T0}, 10
        s_add_u32 s{T0}, s{T0}, {WQ}
        v_add_u32 v{aq[n]}, s{T0}, v{AQ}
        ''')
    a(f'''
    s_lshr_b32 s{T1}, s{S_H}, 1
    s_lshl_b32 s{T1}, s{T1}, 2
    s_add_u32 s{T1}, s{T1}, s{S_W}
    s_lshl_b32 s{T1}, s{T1}, 12
    s_add_u32 s{T5}, s{T1}, {FL_A}
    s_and_b32 s{T1}, s{S_H}, 1
    s_lshl_b32 s{T1}, s{T1}, 4
    s_add_u32 s{T1}, s{T1}, s{S_TB}
    s_lshl_b32 s{T1}, s{T1}, 7
    s_add_u32 s{T1}, s{T5}, s{T1}
    ''')
    def publish():
        a.vmwait('stA'); flag_store(a, T1, t[3]); a.stamp('A_flag')
    FAQ = opt('fAq', 7)
    for i, it in enumerate(dmaq_items()):
        if i >= NQE:
            for x in it: a.emit(x)
        if i == FAQ: publish()
    a.vmwait('wq'); a('s_barrier')
    a.stamp('A_wq')
    QB = [ACC[0] + 4*i for i in range(8)]
    NQ = 8
    qs = [4*c for c in range(7)] + [4*c + n for c in range(7) for n in (1, 2, 3)]
    def rdq(p_):
        c, n = divmod(qs[p_], 4)
        return [f'ds_read_b64_tr_b16 {vr(QB[p_ % NQ]+2*u,2)}, v{aq[n]} offset:{c*4096 + u*256}' for u in range(2)]
    AH = 5
    for p_ in range(AH):
        for x in rdq(p_): a(x)
    ex = []
    extra = 0
    for p_ in range(28):
        if p_ < 9 or p_ > 16:
            a(f's_waitcnt lgkmcnt({2 * (min(28, p_ + AH) - p_ - 1)})')
        else:
            a('s_waitcnt lgkmcnt(4)')
        if p_ < 7: a(f'{MFMA} {vr(T16,16)}, {vr(ONE,4)}, {vr(QB[p_ % NQ],4)}, {vr(T16,16) if p_ else 0}')
        a(f'{MFMA} {vr(accQ,16)}, {vr(QB[p_ % NQ],4)}, {vr(X[qs[p_]],4)}, {vr(accQ,16) if p_ else 0}')
        if p_ + AH < 28:
            for x in rdq(p_ + AH): a(x)
        if p_ == 9: a(f'ds_write_b32 v{CA}, v{T16}')
        if p_ == 11: a(f's_waitcnt lgkmcnt(4)\ns_barrier\nds_read_b32 v{cs[0]}, v{CR}\nds_read_b32 v{t[4]}, v{CR} offset:384')
        if p_ == 14:
            for x in [f'v_add_f32 v{cs[0]}, v{cs[0]}, v{t[4]}'] + hs(cs[0], t[4]) + [f'ds_write_b32 v{PA}, v{cs[0]}']: a(x)
        if p_ == 15:
            for q in range(4): a(f'ds_read_b128 {vr(T16+4*q,4)}, v{PB} offset:{32*q}')
        if p_ == opt('fAs', 15) and FAQ > 6: publish()
    a(f'v_cmp_lt_u32 vcc, 31, v{V_LANE}')
    if opt('pollA', 1) == 2: poll_issue(a, T5, V_FL, 32, R['t'][0])
    a('s_waitcnt lgkmcnt(0)')
    NEG1 = 'op_sel_hi:[1,0,1] neg_lo:[0,1,0] neg_hi:[0,1,0]'
    for r in range(0, 16, 2): a(f'v_pk_fma_f32 {vr(accQ+r,2)}, {vr(T16+r,2)}, {vr(mu,2)}, {vr(accQ+r,2)} {NEG1}')
    for r in range(0, 16, 2): a(f'v_pk_mul_f32 {vr(accQ+r,2)}, {vr(accQ+r,2)}, {vr(rq,2)} op_sel_hi:[1,0]')
    for i in range(8): a(f'v_cvt_pk_bf16_f32 v{Q0+i}, v{accQ+2*i}, v{accQ+2*i+1}')
    for i in (6, 7): a(f'v_cndmask_b32_e64 v{Q0+i}, v{Q0+i}, 0, vcc')
    a(f's_cmp_eq_u32 s{S_H}, 0\ns_cselect_b32 s{T0}, 1.0, 0\nv_mul_f32 v{MUX}, s{T0}, v{mu}')
    a.stamp('A_q')

def w13_setup(a, S13, L13):
    a(f'''
    s_cmp_lt_u32 s{S_W}, 2
    s_cselect_b32 s{SRD_B}, s{P_W1}, s{P_W3}
    s_cselect_b32 s{SRD_B+1}, s{P_W1+1}, s{P_W3+1}
    s_mov_b32 s{SRD_B+2}, {W1_BYTES}
    s_mov_b32 s{SRD_B+3}, 0x20000
    s_and_b32 s{T0}, s{S_W}, 1
    s_mul_i32 s{T0}, s{T0}, 7
    s_add_u32 s{T0}, s{T0}, s{S_R14}
    s_sub_u32 s{S_RG}, s{T0}, 14
    s_min_u32 s{S_RG}, s{S_RG}, s{T0}
    s_mul_i32 s{S_RG}, s{S_RG}, {32*3584}
    s_mul_i32 s{S13}, s{S_FS}, 224
    s_mul_i32 s{L13}, s{S_W}, 14336
    ''')

def rg_next():
    return [f's_add_u32 s{S_RG}, s{S_RG}, {32*3584}', f's_sub_u32 s{T0}, s{S_RG}, {14*32*3584}', f's_min_u32 s{S_RG}, s{S_RG}, s{T0}']

def pair_dma(S13, L13, slot, col, i, tag):
    return [f's_add_u32 m0, s{L13}, {slot*PAIR + i*1024}',
            f's_add_u32 s{T0}, s{S13}, s{S_RG}'] + ([f's_add_u32 s{T0}, s{T0}, {16*3584}'] if i & 1 else []) + \
           [('vm', f'buffer_load_dwordx4 v{V_P13}, {sr4(SRD_B)}, s{T0} offen lds', tag)] + (rg_next() if i & 1 else [])

def alloc_b():
    va = VA(4, 204)
    KV = [va(16) for _ in range(3)] + ([WOV] if opt('nkv', 4) == 4 else [])
    Q = [va(8) for _ in range(4)]
    O = [va(16) for _ in range(4)]
    S = [va(16), va(16)]
    P = [va(8), va(8)]
    t = [va() for _ in range(8)]
    v5 = 215 + 8
    return dict(KV=KV, Q=Q, O=O, S=S, P=P, t=t, v5=v5)

def phase_b(a, R, stg):
    KV, Q, O, S, P, t, v5 = (R[k] for k in ('KV', 'Q', 'O', 'S', 'P', 't', 'v5'))
    QX = R['QX']
    S13, L13, SKV, SB = T3, T4, T6, T2
    qa = t[4:8]
    MA = [240, 241, 242, 243]; VKV = 244; VP2 = 245; VX = 246
    a(f'''
    s_lshl_b32 s{SKV}, s{S_H}, 6
    s_add_u32 s{SKV}, s{SKV}, s{S_W}
    s_lshl_b32 s{SKV}, s{SKV}, 12
    v_add_u32 v{VKV}, s{SKV}, v{V_OFF}
    s_lshl_b32 s{SB}, s{S_TB}, 14
    ''')
    if opt('pollA', 1) == 1:
        visit(a, 1)
        W4 = R['S'][1]; RS = R['S'][1] + 4
        for i in range(4):
            for k_ in range(4): a(f'v_accvgpr_read_b32 v{W4+k_}, a{WROW+4*i+k_}')
            a(f'v_mov_b32 v{RS+i}, 0')
            for k_ in range(4): a(f'v_dot2c_f32_bf16 v{RS+i}, s{S_ONES}, v{W4+k_}')
        for m_ in ('row_shr:1', 'row_shr:2', 'row_shr:4', 'row_shr:8'):
            for i in range(4): a(f'v_add_f32_dpp v{RS+i}, v{RS+i}, v{RS+i} {m_} row_mask:0xf bank_mask:0xf bound_ctrl:1')
        for m_ in ('row_bcast:15 row_mask:0xa', 'row_bcast:31 row_mask:0xc'):
            for i in range(4): a(f'v_add_f32_dpp v{RS+i}, v{RS+i}, v{RS+i} {m_} bank_mask:0xf')
        for i in range(4): a(f'v_mul_f32 v{RS+i}, {fx(1/448)}, v{RS+i}')
        a(f's_lshl_b32 s{T0}, s{S_WG}, 4\ns_add_u32 s{T0}, s{T0}, {WS_WB - 63*16}\ns_mov_b32 exec_lo, 0\ns_brev_b32 exec_hi, 1')
        a.vmem(f'buffer_store_dwordx4 {vr(RS,4)}, v{V_OFF}, {sr4(SRD_WS)}, s{T0} offen sc1', 'stW')
        a('s_mov_b64 exec, -1')
        if opt('dlyA', 3): a(f"s_sleep {opt('dlyA', 3)}")
        poll_issue(a, T5, V_FL, 32, t[0])
    a.stamp('B_pre')
    poll_check(a, T5, V_FL, 32, t[0])
    a.stamp('B_poll')
    def kvload(buf):
        return [('vm', f'buffer_load_dwordx4 {vr(KV[buf]+4*j,4)}, v{VKV}, {sr4(SRD_WS)}, s{SB} offen offset:{1024*j} sc1', f'k{buf}' if j < 2 else f'kv{buf}') for j in range(4)] + \
               [f's_add_u32 s{SB}, s{SB}, 0x4000', f's_and_b32 s{SB}, s{SB}, 0x3c000']
    NKV = len(KV)
    NK0 = opt('nk0', 1)
    for b in range(NK0):
        for x in kvload(b): a.emit(x)
    for lq in range(4):
        a(f'''
        s_add_u32 s{T0}, s{S_W}, {lq}
        s_and_b32 s{T0}, s{T0}, 3
        s_lshl_b32 s{T0}, s{T0}, 11
        s_add_u32 s{T0}, s{T0}, {QX}
        v_add_u32 v{qa[lq]}, s{T0}, v{V_OFF}
        ''')
    a(f'ds_write_b128 v{qa[0]}, {vr(Q[0],4)}')
    stg.src_setup(t[1], t[2], t[3])
    w13_setup(a, S13, L13)
    a(f'''
    s_lshl_b32 s{T0}, s{S_E0}, 5
    s_add_u32 s{S13}, s{S13}, s{T0}
    s_and_b32 s{T0}, s{S_W}, 2
    v_and_b32 v{t[1]}, 3, v{V_LANE}
    v_xor_b32 v{t[1]}, s{T0}, v{t[1]}
    v_lshrrev_b32 v{t[2]}, 2, v{V_LANE}
    v_mul_u32_u24 v{t[2]}, 3584, v{t[2]}
    v_lshl_add_u32 v{V_P13}, v{t[1]}, 4, v{t[2]}
    s_lshl_b32 s{T0}, s{T0}, 1
    v_lshrrev_b32 v{t[1]}, 1, v{V_LANE}
    v_xor_b32 v{t[1]}, s{T0}, v{t[1]}
    v_mul_u32_u24 v{t[1]}, 3584, v{t[1]}
    v_and_b32 v{t[2]}, 1, v{V_LANE}
    v_lshl_add_u32 v{v5}, v{t[2]}, 4, v{t[1]}
    v_add_u32 v{VP2}, {16*3584 - 1024}, v{V_P13}
    s_waitcnt lgkmcnt(0)
    s_barrier
    ''')
    for lq in range(4):
        a(f'''
        s_add_u32 s{T0}, s{S_W}, {lq}
        s_and_b32 s{T0}, s{T0}, 3
        s_mul_i32 s{T0}, s{T0}, 12288
        s_add_u32 s{T0}, s{T0}, {SCR}
        v_add_u32 v{MA[lq]}, s{T0}, v{V_OFF}
        ''')
    a(f'''
    s_and_b32 s{SKV}, s{S_W}, 1
    s_lshl_b32 s{T0}, s{S_RB}, 1
    s_add_u32 s{SKV}, s{SKV}, s{T0}
    s_mul_i32 s{SKV}, s{SKV}, {32*896}
    s_lshr_b32 s{T0}, s{S_W}, 1
    s_lshl_b32 s{T0}, s{T0}, 6
    s_add_u32 s{SKV}, s{SKV}, s{T0}
    s_lshl_b32 s{T0}, s{S_CB}, 7
    s_add_u32 s{SKV}, s{SKV}, s{T0}
    v_and_b32 v{VX}, 31, v{V_LANE}
    v_lshrrev_b32 v{t[1]}, 5, v{V_LANE}
    v_mul_u32_u24 v{VX}, 896, v{VX}
    v_lshl_add_u32 v{VX}, v{t[1]}, 4, v{VX}
    ''')
    for lq in range(1, 4): a(f'ds_read_b128 {vr(Q[lq],4)}, v{qa[lq]}')
    spre = []; spre2 = []
    if opt('spre', 1):
        ssrd(a, SRD_WQKV, 784, P_W2, P_WO, W2_BYTES, WO_BYTES, 2048, S_U0, S_U1)
        spre = [[sld(SRD_A, 128*i)] for i in range(opt('spreA', 0), 25)]
        spre2 = [[sld(SRD_WQKV, 128*i)] for i in range(16)]
        if opt('spre0', 0):
            a('s_waitcnt lgkmcnt(0)')
            for _ in range(opt('spre0', 0)): a(spre.pop(0)[0])
    NK1 = opt('nk1', 2)
    for b in range(NK0, NK1):
        for x in kvload(b): a.emit(x)
    s_kv = []
    for T in range(NK1, NKV):
        s_kv += [(opt('kvS', 2) * (6 * (T - NK1) + k_), x) for k_, x in enumerate(kvload(T))]
    for T in range(NKV, 16):
        s_kv += [(16 * (T - NKV + 1) + 3 + opt('kvS', 2) * k_, x) for k_, x in enumerate(kvload(T % NKV))]
    s_w = []; wp = [opt('preP', 70)]
    for g in range(7):
        it = (rg_next() if g else []) + [f's_add_u32 s{T0}, s{S13}, s{S_RG}']
        for sl in range(2):
            it += [f's_add_u32 m0, s{L13}, {sl*PAIR + 2*g*1024 - 64*sl}',
                   ('vm', f'buffer_load_dwordx4 v{V_P13}, {sr4(SRD_B)}, s{T0} offen offset:{64*sl} lds', 'w13'),
                   ('vm', f'buffer_load_dwordx4 v{VP2}, {sr4(SRD_B)}, s{T0} offen offset:{1024 + 64*sl} lds', 'w13')]
        it += [('vm', f'buffer_load_dwordx4 {vr(RAW5+4*g,4,"a")}, v{v5}, {sr4(SRD_B)}, s{T0} offen offset:128', 'w13')]
        for x in it:
            if isinstance(x, tuple):
                s_w.append((wp[0], x)); wp[0] += opt('preS', 5)
            else: s_w.append((wp[0] - 4, x))
    s_s = [(4 + opt('sS', 4) * k_, x[0]) for k_, x in enumerate(spre + spre2)]
    s_x = [(opt('xrP', 40), ('vm', f'buffer_load_dwordx4 {vr(XRES,4)}, v{VX}, {sr4(SRD_X)}, s{SKV} offen', 'xr')),
           (opt('xrP', 40) + 6, ('vm', f'buffer_load_dwordx4 {vr(XRES+4,4)}, v{VX}, {sr4(SRD_X)}, s{SKV} offen offset:32', 'xr'))]
    if opt('noW', 0): s_w = []
    if opt('noS', 0): s_s = []
    if opt('noKV', 0): s_kv = []
    VW = 217; VWP = 218; VW2 = 219
    a(f'v_lshrrev_b32 v{VW2}, 5, v{V_LANE}\nv_lshlrev_b32 v{VW2}, 4, v{VW2}')
    def pubW():
        a(f's_lshl_b32 s{T1}, s{S_WG}, 7\ns_add_u32 s{T1}, s{T1}, {FL_W}'); a.vmwait('stW'); flag_store(a, T1, VW)
    def pollW():
        a(f's_mul_i32 s{T1}, s{S_H}, {7*128}\ns_add_u32 s{T1}, s{T1}, {FL_W}'); poll_issue(a, T1, V_FL, 7, VWP)
    WB_ = KV[1]; assert NKV == 4
    s_m = [(opt('pubW', 21), ('call', pubW)), (opt('pollW', 201), ('call', pollW)), (229, ('call', lambda: poll_check(a, T1, V_FL, 7, VWP))),
           (230, f's_mul_i32 s{T1}, s{S_H}, 112'), (231, f's_add_u32 s{T1}, s{T1}, {WS_WB}')]
    s_m += [(232 + 2*q_, ('vm', f'buffer_load_dwordx4 {vr(WB_+4*q_,4)}, v{VW2}, {sr4(SRD_WS)}, s{T1} offen offset:{32*q_} sc1', 'wb')) for q_ in range(4)]
    s_m += [(241 + k_, x) for k_, x in enumerate([f's_lshl_b32 s{T2}, s{S_TB}, 2', f's_add_u32 s{T2}, s{T2}, s{S_W}', f's_lshl_b32 s{T2}, s{T2}, 4', f's_add_u32 s{T2}, s{T2}, s{S_H}',
                                                  f's_lshl_b32 s{T5}, s{T2}, 7', f's_add_u32 s{T5}, s{T5}, {FL_B}', f's_lshl_b32 s{T2}, s{T2}, 11', f's_add_u32 s{T6}, s{T2}, {WS_O}'])]
    streams = [s_kv, s_w, s_x, s_m, s_s]
    a.vmwait('k0')
    a(f'{MFMA} {vr(S[0],16)}, {vr(KV[0],4)}, {vr(Q[0],4)}, 0')
    a(f'{MFMA} {vr(S[0],16)}, {vr(KV[0]+4,4)}, {vr(Q[0]+4,4)}, {vr(S[0],16)}')
    a(f'v_cmp_lt_u32 vcc, 31, v{V_LANE}')
    a(f'v_max3_f32 v{t[0]}, v{S[0]}, v{S[0]+1}, v{S[0]+2}\nv_max3_f32 v{t[1]}, v{S[0]+3}, v{S[0]+4}, v{S[0]+5}')
    for r in range(6, 14, 4):
        a(f'v_max3_f32 v{t[0]}, v{t[0]}, v{S[0]+r}, v{S[0]+r+1}\nv_max3_f32 v{t[1]}, v{t[1]}, v{S[0]+r+2}, v{S[0]+r+3}')
    a(f'''
    v_max3_f32 v{t[0]}, v{t[0]}, v{S[0]+14}, v{S[0]+15}
    v_max_f32 v{t[0]}, v{t[0]}, v{t[1]}
    v_mov_b32 v{t[1]}, v{t[0]}
    v_permlane32_swap_b32 v{t[0]}, v{t[1]}
    v_max_f32 v{t[0]}, v{t[0]}, v{t[1]}
    v_cvt_pk_bf16_f32 v{t[0]}, -v{t[0]}, 0
    v_cndmask_b32 v{Q[0]+6}, v{Q[0]+6}, v{t[0]}, vcc
    ds_write_b128 v{qa[0]}, {vr(Q[0]+4,4)} offset:1024
    v_lshlrev_b32 v{t[2]}, 16, v{t[0]}
    ''')
    assert t[2] % 2 == 0
    for r in range(0, 16, 2): a(f'v_pk_add_f32 {vr(S[0]+r,2)}, {vr(S[0]+r,2)}, {vr(t[2],2)} op_sel_hi:[1,0]')
    if not opt('xin', 1):
        a('s_waitcnt lgkmcnt(0)\ns_barrier')
        for lq in range(1, 4): a(f'ds_read_b128 {vr(Q[lq]+4,4)}, v{qa[lq]} offset:1024')
    if opt('stag', 0):
        Ls = a.newlabel('stag')
        for w in range(1, 4):
            a(f's_cmp_lt_u32 s{S_W}, {w}\ns_cbranch_scc1 {Ls}')
            for _ in range(opt('stag', 0)): a('s_nop 15')
        a.label(Ls)
    (a.stamp('B_first'), a.stamp('R_B_firstc'), a.stamp('R_B_firstr', True))
    def slot(T, q):
        cb = q & 1; nb = cb ^ 1
        kvn, nq = (T % NKV, q + 1) if q < 3 else ((T + 1) % NKV, 0)
        kvp, pq = (T % NKV, q - 1) if q else ((T - 1) % NKV, 3)
        no_qk = (T == 15 and q == 3); no_pv = (T == 0 and q == 0); first = (T == 0 or (T == 1 and q == 0))
        M = [None if no_qk else f'{MFMA} {vr(S[nb],16)}, {vr(KV[kvn],4)}, {vr(Q[nq],4)}, 0',
             None if no_qk else f'{MFMA} {vr(S[nb],16)}, {vr(KV[kvn]+4,4)}, {vr(Q[nq]+4,4)}, {vr(S[nb],16)}',
             None if no_pv else f'{MFMA} {vr(O[pq],16)}, {vr(KV[kvp]+8,4)}, {vr(P[nb],4)}, {0 if first else vr(O[pq],16)}',
             None if no_pv else f'{MFMA} {vr(O[pq],16)}, {vr(KV[kvp]+12,4)}, {vr(P[nb]+4,4)}, {vr(O[pq],16)}']
        e = lambda r: f'v_exp_f32 v{S[cb]+r}, v{S[cb]+r}'
        c = lambda j: f'v_cvt_pk_bf16_f32 v{P[cb]+j}, v{S[cb]+2*j}, v{S[cb]+2*j+1}'
        seq = [M[0], e(0), e(1), e(2), c(0), e(3), e(4), M[1], c(1), e(5), e(6), c(2), e(7), e(8),
               M[2], c(3), e(9), e(10), c(4), e(11), e(12), M[3], c(5), e(13), e(14), e(15), c(6), c(7)]
        if T == 0 and q == 0:
            if opt('xin', 1):
                seq = [M[0], e(0), e(1), e(2), c(0), e(3), 's_waitcnt lgkmcnt(0)', 's_barrier'] + \
                      [f'ds_read_b128 {vr(Q[lq]+4,4)}, v{qa[lq]} offset:1024' for lq in range(1, 4)] + \
                      [None, e(4), c(1), e(5), e(6), c(2), e(7), e(8), c(3), None, 's_waitcnt lgkmcnt(2)', M[1], e(9), e(10), c(4), e(11), e(12),
                       c(5), e(13), e(14), e(15), c(6), 's_waitcnt lgkmcnt(0)', c(7), 's_nop 3']
            else: seq.insert(7, 's_waitcnt lgkmcnt(0)')
        for k_, x in enumerate(seq):
            if x is not None: a(x)
            if x is None or x.startswith('v_mfma'):
                mi = pos[0] & 3
                if mi == 3 and q == 2 and T < 15: a.vmwait(f'kv{(T+1)%NKV}')
                elif mi == 3 and q == 0 and T == 0: a.vmwait('kv0')
                else:
                    for st_ in streams:
                        if st_ and st_[0][0] <= pos[0]:
                            a.emit(st_.pop(0)[1]); break
                pos[0] += 1
    pos = [0]
    for T in range(16):
        for q in range(4): slot(T, q)
    assert not any(streams), [len(x) for x in streams]
    a(f'{MFMA} {vr(O[3],16)}, {vr(KV[15 % NKV]+8,4)}, {vr(P[1],4)}, {vr(O[3],16)}')
    a(f'{MFMA} {vr(O[3],16)}, {vr(KV[15 % NKV]+12,4)}, {vr(P[1]+4,4)}, {vr(O[3],16)}')
    (a.stamp('B_loop'), a.stamp('R_B_loopc'), a.stamp('R_B_loopr', True))
    stg.queue(opt('hgM', 4))
    for lq in range(1, 4):
        for j in range(4):
            a(f'ds_write_b128 v{MA[lq]}, {vr(O[lq]+4*j,4)} offset:{(lq-1)*4096 + j*1024}'); stg.one()
    a.vmwait('wb')
    a('s_mov_b32 exec_lo, 0')
    for r in range(12, 16): a(f'v_mov_b32 v{WB_+r}, 0')
    a(f'''
    s_mov_b64 exec, -1
    v_mov_b32 v{t[4]}, {fx(2.0 ** (64 if not opt('forcefb', 0) else -60))}
    v_mov_b32 v{t[5]}, {fx(2.0 ** -64)}
    s_waitcnt lgkmcnt(0)
    s_barrier
    ''')
    for lq in range(1, 4):
        for j in range(4): a(f'ds_read_b128 {vr(O[lq]+4*j,4)}, v{MA[0]} offset:{(lq-1)*4096 + j*1024}')
    stg.flush()
    for lq in range(1, 4):
        a(f's_waitcnt lgkmcnt({4*(3-lq)})')
        for r in range(0, 16, 2): a(f'v_pk_add_f32 {vr(O[0]+r,2)}, {vr(O[0]+r,2)}, {vr(O[lq]+r,2)}')
    a(f'''
    v_mov_b32 v{t[0]}, v{O[0]+12}
    v_mov_b32 v{t[1]}, v{O[0]+12}
    v_permlane32_swap_b32 v{t[0]}, v{t[1]}
    v_med3_f32 v{t[3]}, v{t[1]}, v{t[4]}, v{t[5]}
    v_cmp_neq_f32 vcc, v{t[3]}, v{t[1]}
    v_rcp_f32 v{t[2]}, v{t[1]}
    s_cbranch_vccnz Lfb
    ''')
    a.label('Lfb_ret')
    a(f'v_cmp_lt_u32 vcc, 31, v{V_LANE}')
    for r in range(0, 16, 2): a(f'v_pk_mul_f32 {vr(O[0]+r,2)}, {vr(O[0]+r,2)}, {vr(t[2],2)} op_sel_hi:[1,0]')
    for j in range(8): a(f'v_cvt_pk_bf16_f32 v{P[0]+j}, v{O[0]+2*j}, v{O[0]+2*j+1}')
    for j in (6, 7): a(f'v_cndmask_b32_e64 v{P[0]+j}, v{P[0]+j}, 0, vcc')
    for j in range(2):
        a.vmem(f'buffer_store_dwordx4 {vr(P[0]+4*j,4)}, v{V_OFF}, {sr4(SRD_WS)}, s{T6} offen offset:{1024*j} sc1', 'stB')
    a(f'v_pk_mul_f32 {vr(t[0],2)}, {vr(O[0],2)}, {vr(WB_,2)}\nv_pk_mul_f32 {vr(t[2],2)}, {vr(O[0]+2,2)}, {vr(WB_+2,2)}')
    for r in range(4, 16, 2): a(f'v_pk_fma_f32 {vr(t[r & 2],2)}, {vr(O[0]+r,2)}, {vr(WB_+r,2)}, {vr(t[r & 2],2)}')
    a(f'v_pk_add_f32 {vr(t[0],2)}, {vr(t[0],2)}, {vr(t[2],2)}\nv_add_f32 v{t[0]}, v{t[0]}, v{t[1]}')
    halfsum(a, t[0], t[1])
    a(f'v_add_f32 v{t[0]}, v{t[0]}, v{MUX}\nv_lshlrev_b32 v{t[1]}, 2, v{V_LANE}\ns_add_u32 s{T0}, s{T5}, {WS_MH - FL_B + (1 << 32)}\n' + xm(32))
    a.vmem(f'buffer_store_dword v{t[0]}, v{t[1]}, {sr4(SRD_WS)}, s{T0} offen sc1', 'stB')
    a('s_mov_b64 exec, -1')
    a.stamp('B_st'); a.stamp('H_st')


def fallback(a, R):
    KV, Q, O, S, P, t = R['KV'][0], R['Q'][0], R['O'][0], R['S'][0], R['P'][0], R['t']
    a.label('Lfb')
    a(f"""
    v_cmp_lt_u32 vcc, 31, v{V_LANE}
    s_lshl_b32 s{T1}, s{S_H}, 18
    s_mov_b32 s{T2}, 64
    v_mov_b32 v{t[0]}, 0xff7fffff
    v_cndmask_b32_e64 v{Q+6}, v{Q+6}, 0, vcc
    v_cndmask_b32_e64 v{Q+7}, v{Q+7}, 0, vcc
    """)
    a.label('Lfb1')
    a(f"""
    buffer_load_dwordx4 {vr(KV,4)}, v{V_OFF}, {sr4(SRD_WS)}, s{T1} offen sc1
    buffer_load_dwordx4 {vr(KV+4,4)}, v{V_OFF}, {sr4(SRD_WS)}, s{T1} offen offset:1024 sc1
    s_add_u32 s{T1}, s{T1}, 4096
    s_waitcnt vmcnt(0)
    {MFMA} {vr(S,16)}, {vr(KV,4)}, {vr(Q,4)}, 0
    {MFMA} {vr(S,16)}, {vr(KV+4,4)}, {vr(Q+4,4)}, {vr(S,16)}
    """)
    for r in range(0, 16, 2): a(f'v_max3_f32 v{t[0]}, v{t[0]}, v{S+r}, v{S+r+1}')
    a(f"""
    s_sub_u32 s{T2}, s{T2}, 1
    s_cmp_lg_u32 s{T2}, 0
    s_cbranch_scc1 Lfb1
    v_mov_b32 v{t[1]}, v{t[0]}
    v_permlane32_swap_b32 v{t[0]}, v{t[1]}
    v_max_f32 v{t[0]}, v{t[0]}, v{t[1]}
    v_cvt_pk_bf16_f32 v{t[1]}, -v{t[0]}, 0
    v_lshlrev_b32 v{t[2]}, 16, v{t[1]}
    v_sub_f32 v{t[0]}, -v{t[0]}, v{t[2]}
    v_cvt_pk_bf16_f32 v{t[2]}, v{t[0]}, 0
    v_lshlrev_b32 v{t[2]}, 16, v{t[2]}
    v_sub_f32 v{t[0]}, v{t[0]}, v{t[2]}
    v_or_b32 v{t[1]}, v{t[1]}, v{t[2]}
    v_cvt_pk_bf16_f32 v{t[0]}, v{t[0]}, 0
    v_cndmask_b32 v{Q+6}, v{Q+6}, v{t[1]}, vcc
    v_cndmask_b32 v{Q+7}, v{Q+7}, v{t[0]}, vcc
    s_lshl_b32 s{T1}, s{S_H}, 18
    s_mov_b32 s{T2}, 64
    """)
    for r in range(16): a(f'v_mov_b32 v{O+r}, 0')
    a.label('Lfb2')
    for j in range(4): a(f'buffer_load_dwordx4 {vr(KV+4*j,4)}, v{V_OFF}, {sr4(SRD_WS)}, s{T1} offen offset:{1024*j} sc1')
    a(f"""
    s_add_u32 s{T1}, s{T1}, 4096
    s_waitcnt vmcnt(0)
    {MFMA} {vr(S,16)}, {vr(KV,4)}, {vr(Q,4)}, 0
    {MFMA} {vr(S,16)}, {vr(KV+4,4)}, {vr(Q+4,4)}, {vr(S,16)}
    """)
    for r in range(16): a(f'v_exp_f32 v{S+r}, v{S+r}')
    for j in range(8): a(f'v_cvt_pk_bf16_f32 v{P+j}, v{S+2*j}, v{S+2*j+1}')
    a(f"""
    {MFMA} {vr(O,16)}, {vr(KV+8,4)}, {vr(P,4)}, {vr(O,16)}
    {MFMA} {vr(O,16)}, {vr(KV+12,4)}, {vr(P+4,4)}, {vr(O,16)}
    s_sub_u32 s{T2}, s{T2}, 1
    s_cmp_lg_u32 s{T2}, 0
    s_nop 7
    s_cbranch_scc1 Lfb2
    s_nop 7
    v_mov_b32 v{t[0]}, v{O+12}
    v_mov_b32 v{t[1]}, v{O+12}
    v_permlane32_swap_b32 v{t[0]}, v{t[1]}
    v_rcp_f32 v{t[2]}, v{t[1]}
    s_branch Lfb_ret
    """)

class Stager:
    def __init__(self, a): self.a = a; self.nl = 0; self.nt = 0; self.q = []
    def src_setup(self, t0, t1, t2):
        self.a(f'''
        v_lshrrev_b32 v{t0}, 3, v{V_LANE}
        v_lshrrev_b32 v{t1}, 1, v{V_LANE}
        v_and_b32 v{t1}, 4, v{t1}
        v_and_b32 v{t2}, 7, v{V_LANE}
        v_xor_b32 v{t1}, v{t1}, v{t2}
        v_mul_u32_u24 v{t0}, 1792, v{t0}
        v_lshl_add_u32 v{V_SRC}, v{t1}, 4, v{t0}
        ''')
    def setup(self, t0, t1, t2, vw):
        a = self.a; self.vw = vw
        a(f'''
        v_lshrrev_b32 v{t0}, 5, v{V_LANE}
        v_bfe_u32 v{t1}, v{V_LANE}, 2, 2
        v_lshl_add_u32 v{t0}, v{t0}, 2, v{t1}
        v_lshlrev_b32 v{t0}, 7, v{t0}
        v_bfe_u32 v{t1}, v{V_LANE}, 4, 1
        v_lshl_add_u32 v{t0}, v{t1}, 5, v{t0}
        v_and_b32 v{t1}, 3, v{V_LANE}
        v_lshl_add_u32 v{t0}, v{t1}, 3, v{t0}
        v_bfe_u32 v{t1}, v{V_LANE}, 3, 1
        s_lshr_b32 s{T0}, s{S_W}, 1
        v_xor_b32 v{t1}, s{T0}, v{t1}
        v_lshl_add_u32 v{t0}, v{t1}, 6, v{t0}
        s_lshl_b32 s{T0}, s{S_W}, 12
        s_add_u32 s{T0}, s{T0}, {SCR}
        v_add_u32 v{V_RD}, s{T0}, v{t0}
        v_xor_b32 v{V_RD+1}, 64, v{V_RD}
        v_lshrrev_b32 v{t0}, 3, v{V_LANE}
        v_lshlrev_b32 v{t0}, 7, v{t0}
        v_add3_u32 v{vw}, s{T0}, v{V_OFF}, v{t0}
        ''')
    def target_items(self, which):
        p, nb = (P_WO, WO_BYTES) if which == 'wo' else (P_W2, W2_BYTES)
        return [f's_mov_b32 s{SRD_A}, s{p}', f's_mov_b32 s{SRD_A+1}, s{p+1}', f's_mov_b32 s{SRD_A+2}, {nb}', f's_mov_b32 s{SRD_A+3}, 0x20000',
                f's_mul_i32 s{S_U0}, s{S_W}, {(112 if which == "wo" else 448)*896}', f's_lshl_b32 s{S_U1}, s{S_CB}, 7', f's_add_u32 s{S_U0}, s{S_U0}, s{S_U1}']
    @staticmethod
    def base(g):
        if g < 2: return ('a', 224 + 16 * g)
        if g < 4: return ('v', WOV + 16 * (g - 2))
        return ('a', 16 * (g - 4))
    @staticmethod
    def dest(g, s_, lc):
        p, b = Stager.base(g); return p, b + (s_ * 2 + lc) * 4
    def load_items(self):
        g = self.nl; self.nl += 1
        pre = self.target_items('wo') if g == 0 else (self.target_items('w2') if g == 4 else [])
        row0 = 28 * g if g < 4 else 32 * (g - 4)
        p, b = self.base(g)
        out = [pre] if pre else []
        for h_ in range(2):
            out.append([f's_add_u32 s{S_U1}, s{S_U0}, {(row0 + 16*h_)*896}'] +
                       [('vm', f'buffer_load_dwordx4 {vr(b+8*h_+4*i,4,p)}, v{V_SRC}, {sr4(SRD_A)}, s{S_U1} offen offset:{896*i}', f'hg{g}') for i in range(2)])
        return out
    def load(self):
        self.flush()
        for it in self.load_items():
            for x in it: self.a.emit(x)
    def queue(self, upto):
        while self.nl < upto:
            for it in self.load_items(): self.q += it
    def one(self):
        while self.q:
            x = self.q.pop(0); self.a.emit(x)
            if isinstance(x, tuple): break
    def flush(self):
        while self.q: self.one()
    def wr(self, u):
        a = self.a; g, s_ = divmod(u, 2); p, b = self.base(g)
        for i in range(2): a(f'ds_write_b128 v{self.vw}, {vr(b+8*s_+4*i,4,p)} offset:{2048*s_ + 128*i}')
    def rd(self, u):
        a = self.a; g, s_ = divmod(u, 2); p, b = self.base(g)
        for lc in range(2):
            for uu in range(2):
                a(f'ds_read_b64_tr_b16 {vr(b+(s_*2+lc)*4+2*uu,2,p)}, v{V_RD+lc} offset:{s_*2048 + uu*1024}')
    def trans(self):
        a = self.a; g = self.nt; self.nt += 1
        a.stamp(f'{"H" if g < 11 else "I"}_pre{g}')
        a.vmwait(f'hg{g}')
        if g in (0, 6): a.stamp(f'H_got{g}')
        for u in (2*g, 2*g + 1): self.wr(u)
        for u in (2*g, 2*g + 1): self.rd(u)
    def close(self): pass

def red_addr(a, t):
    for l in range(4):
        a(f's_xor_b32 s{T0}, s{S_W}, {l}\ns_mul_i32 s{T0}, s{T0}, 12288\ns_add_u32 s{T0}, s{T0}, {SCR}\nv_add_u32 v{t[l]}, s{T0}, v{V_OFF}')
def red_write(a, ACC, t, l, side=lambda: None):
    for j in range(4):
        a(f'ds_write_b128 v{t[l]}, {vr(ACC[l]+4*j,4)} offset:{(l-1)*4096 + j*1024}'); side()
def red_read(a, ACC, t, side=lambda: None):
    a('s_waitcnt lgkmcnt(0)\ns_barrier')
    for l in range(1, 4):
        for j in range(4): a(f'ds_read_b128 {vr(ACC[l]+4*j,4)}, v{t[0]} offset:{(l-1)*4096 + j*1024}')
    side()
    for l in range(1, 4):
        a(f's_waitcnt lgkmcnt({4*(3-l)})')
        for r in range(0, 16, 2): a(f'v_pk_add_f32 {vr(ACC[0]+r,2)}, {vr(ACC[0]+r,2)}, {vr(ACC[l]+r,2)}')

def put5(a, vt):
    a(f's_mul_i32 s{T0}, s{S_W}, 7168\ns_add_u32 s{T0}, s{T0}, {SINGLE}\nv_add_u32 v{vt}, s{T0}, v{V_OFF}')
    for g in range(7): a(f'ds_write_b128 v{vt}, {vr(RAW5+4*g,4,"a")} offset:{1024*g}')

def tile_ids(a, STT, SCT):
    a(f'''
    s_and_b32 s{STT}, s{S_W}, 1
    s_lshl_b32 s{T0}, s{S_RB}, 1
    s_add_u32 s{STT}, s{STT}, s{T0}
    s_lshr_b32 s{SCT}, s{S_W}, 1
    s_lshl_b32 s{T0}, s{S_CB}, 1
    s_add_u32 s{SCT}, s{SCT}, s{T0}
    ''')
def flag8_addr(a, vf, t0, t1, sdst, base):
    a(f'''
    v_lshrrev_b32 v{t0}, 2, v{V_LANE}
    v_lshlrev_b32 v{t0}, 11, v{t0}
    v_and_b32 v{t1}, 3, v{V_LANE}
    v_lshl_add_u32 v{vf}, v{t1}, 7, v{t0}
    s_lshl_b32 s{T0}, s{S_RB}, 3
    s_add_u32 s{T0}, s{T0}, s{S_W}
    s_lshl_b32 s{sdst}, s{T0}, 9
    s_add_u32 s{sdst}, s{sdst}, {base}
    ''')

def phase_c(a, R, stg):
    va = VA(4, 200)
    ACC = [va(16) for _ in range(4)]
    OF = [[va(4) for k in range(8)] for lt in range(2)]
    t = [va() for _ in range(8)]; vf = va(); vw = va(); vp = va()
    STT, SCT = T1, T2
    NB1 = opt('hgB', 7); NF = opt('hgBf', 0)
    for g in range(NF):
        if stg.nl < NB1: stg.load()
    stg.setup(t[0], t[1], t[2], vw)
    tile_ids(a, STT, SCT)
    for l in range(2):
        a(f'''
        s_xor_b32 s{T0}, s{STT}, {l}
        s_lshl_b32 s{T0}, s{T0}, 2
        s_add_u32 s{T0}, s{T0}, s{S_W}
        s_lshl_b32 s{T0}, s{T0}, 13
        s_add_u32 s{T3+l}, s{T0}, {WS_O}
        ''')
    for g in (0, 4):
        a(f'v_permlane32_swap_b32 v{XRES+g}, v{XRES+g+2}\nv_permlane32_swap_b32 v{XRES+g+1}, v{XRES+g+3}')
    for j in range(8):
        a(f'v_lshlrev_b32 v{ACC[0]+2*j}, 16, v{XRES+j}\nv_and_b32 v{ACC[0]+2*j+1}, 0xffff0000, v{XRES+j}')
    a('s_barrier')
    for _ in range(opt('trB0', 2)): stg.trans()
    a.vmwait('stB')
    flag_store(a, T5, t[3])
    a.stamp('C_flag'); a.stamp('H_flag')
    visit(a, 2)
    flag8_addr(a, vf, t[0], t[1], T5, FL_B)
    NT1 = NB1 - opt('trB', 1)
    for _ in range(opt('hgBg', 3)):
        if stg.nl < NB1: stg.load()
    while stg.nt < NT1:
        if stg.nt == NT1 - opt('pollB', 2): poll_issue(a, T5, vf, 8, vp)
        stg.trans()
        if stg.nl < NB1: stg.load()
    a.stamp('C_pre')
    poll_check(a, T5, vf, 8, vp)
    (a.stamp('C_poll'), a.stamp('R_C_pollc'), a.stamp('R_C_pollr', True))
    def old_(k, l):
        if k == 4 and l == 0: a(f's_add_u32 s{T3}, s{T3}, 4096\ns_add_u32 s{T4}, s{T4}, 4096')
        a.vmem(f'buffer_load_dwordx4 {vr(OF[l][k],4)}, v{V_OFF}, {sr4(SRD_WS)}, s{T3+l} offen offset:{1024*(k&3)} sc1', f'o{k}')
    OLA = opt('ola', 6)
    oq = [(k, l) for k in range(8) for l in range(2)]
    for _ in range(2 * OLA): old_(*oq.pop(0))
    nfree = NHG
    while stg.nt < NB1: stg.trans()
    red_addr(a, t)
    a(f'''
    s_mul_i32 s{T6}, s{STT}, 14
    s_add_u32 s{T6}, s{T6}, s{SCT}
    s_lshl_b32 s{T5}, s{STT}, 4
    s_add_u32 s{T5}, s{T5}, s{SCT}
    s_lshl_b32 s{T5}, s{T5}, 7
    s_add_u32 s{T5}, s{T5}, {FL_C}
    s_waitcnt lgkmcnt(0)
    s_barrier
    ''')
    MH = va(8); HC = va(8)
    a(f's_lshl_b32 s{T0}, s{STT}, 11\ns_add_u32 s{S_SPIN+1}, s{T0}, {WS_MH}\nv_lshlrev_b32 v{vf}, 2, v{V_LANE}')
    mq = [('vm', f'buffer_load_dword v{MH+i}, v{vf}, {sr4(SRD_WS)}, s{S_SPIN+1} offen offset:{256*i} sc1', 'mh') for i in range(8)]
    def mm(k, l):
        p, b = stg.dest(k >> 1, k & 1, l >> 1)
        a(f'{MFMA} {vr(ACC[l],16)}, {vr(b,4,p)}, {vr(OF[l & 1][k],4)}, {vr(ACC[l],16) if (k or l == 0) else 0}')
    KT = 5
    for k in range(KT):
        a.vmwait(f'o{k}')
        for l in range(4):
            mm(k, l)
            if oq and l & 1 == 0: old_(*oq.pop(0))
            elif not oq and mq: a.emit(mq.pop(0))
    assert not oq and not mq
    stg.queue(min(nfree, NB1 + opt('hgC0', 4)))
    for l in (1, 2, 3, 0):
        for k in range(KT, 8):
            if l == 1: a.vmwait(f'o{k}')
            mm(k, l)
        if l in (2, 3): red_write(a, ACC, t, l - 1, stg.one)
    a.stamp('C_mfma')
    red_write(a, ACC, t, 3, stg.one)
    a.vmwait('mh')
    for i in range(0, 8, 4): a(f'v_pk_add_f32 {vr(MH+i,2)}, {vr(MH+i,2)}, {vr(MH+i+2,2)}')
    a(f'v_pk_add_f32 {vr(MH,2)}, {vr(MH,2)}, {vr(MH+4,2)}\nv_add_f32 v{MH}, v{MH}, v{MH+1}')
    halfsum(a, MH, MH + 1)
    red_read(a, ACC, t, stg.flush)
    for r in range(0, 16, 2): a(f'v_pk_add_f32 {vr(ACC[1]+r,2)}, {vr(ACC[0]+r,2)}, {vr(MH,2)} op_sel_hi:[1,0] neg_lo:[0,1] neg_hi:[0,1]')
    for j in range(8): a(f'v_cvt_pk_bf16_f32 v{HC+j}, v{ACC[1]+2*j}, v{ACC[1]+2*j+1}')
    a(f's_lshl_b32 s{T0}, s{T6}, 11\ns_add_u32 s{T0}, s{T0}, {WS_H}')
    for j in range(2):
        a.vmem(f'buffer_store_dwordx4 {vr(HC+4*j,4)}, v{V_OFF}, {sr4(SRD_WS)}, s{T0} offen offset:{1024*j} sc1', 'stC')
    for i in range(4): a(f'v_mov_b32 v{t[4+i]}, 0')
    for j in range(8):
        a(f'v_dot2c_f32_bf16 v{t[4+(j&1)]}, s{S_ONES}, v{HC+j}')
        a(f'v_dot2c_f32_bf16 v{t[6+(j&1)]}, v{HC+j}, v{HC+j}')
    a(f'''
    v_add_f32 v{t[4]}, v{t[4]}, v{t[5]}
    v_add_f32 v{t[6]}, v{t[6]}, v{t[7]}
    v_permlane32_swap_b32 v{t[4]}, v{t[6]}
    v_add_f32 v{t[4]}, v{t[4]}, v{t[6]}
    v_and_b32 v{t[5]}, 31, v{V_LANE}
    v_lshrrev_b32 v{t[6]}, 5, v{V_LANE}
    v_lshlrev_b32 v{t[6]}, 2, v{t[6]}
    v_lshl_add_u32 v{t[5]}, v{t[5]}, 3, v{t[6]}
    s_lshl_b32 s{T0}, s{T6}, 8
    s_add_u32 s{T0}, s{T0}, {WS_ST}
    ''')
    a.vmem(f'buffer_store_dword v{t[4]}, v{t[5]}, {sr4(SRD_WS)}, s{T0} offen sc1', 'stC')
    a.stamp('C_st')
    for j in range(8): a(f'v_cvt_pk_bf16_f32 v{HKEEP+j}, v{ACC[0]+2*j}, v{ACC[0]+2*j+1}')
    for _ in range(opt('hgCf', 0)):
        if stg.nl < nfree: stg.load()
    a('s_barrier')
    put5(a, t[0])
    for _ in range(opt('trC0', 1)): stg.trans()
    a.vmwait('stC')
    flag_store(a, T5, t[3])
    a.stamp('C_flag2')
    NTP = NHG - opt('trC', 0) - opt('pollC', 2)
    while stg.nl < NHG: stg.load()
    while stg.nt < NTP: stg.trans()

def phase_d(a, R, stg):
    va = VA(4, 212)
    X = [va(4) for _ in range(28)]
    ACC = [va(16) for _ in range(4)]
    HP = va(4)
    t = [va(2) for _ in range(4)]
    mu = va(2)
    vl = [va() for _ in range(6)]
    vp = va(); vs = va()
    W = [va(4) for _ in range(2)] + [WOV + 4*i for i in range(8)]
    NW = len(W)
    ST = ACC[3]
    E = [t[0], t[0]+1, t[1], t[1]+1, t[2], t[2]+1, t[3], t[3]+1]
    STT = T6; SH = T5; S13, L13 = T3, T4
    w13_setup(a, S13, L13)
    a(f'''
    s_lshl_b32 s{T0}, s{S_L0}, 5
    s_add_u32 s{S13}, s{S13}, s{T0}
    s_lshl_b32 s{STT}, s{S_TD}, 2
    s_add_u32 s{STT}, s{STT}, s{S_W}
    s_lshl_b32 s{T2}, s{STT}, 11
    s_add_u32 s{T2}, s{T2}, {FL_C}
    v_bfe_u32 v{t[0]}, v{V_LANE}, 4, 1                 ; cg
    v_lshrrev_b32 v{t[1]}, 5, v{V_LANE}                ; hf
    v_bfe_u32 v{t[3]}, v{V_LANE}, 2, 2                 ; r
    v_and_b32 v{mu}, 3, v{V_LANE}
    v_lshlrev_b32 v{mu}, 3, v{mu}                      ; c4*8
    v_xor_b32 v{t[2]}, v{t[0]}, v{t[1]}
    v_lshl_add_u32 v{t[2]}, v{t[2]}, 2, v{t[3]}
    v_lshl_add_u32 v{t[2]}, v{t[2]}, 5, v{mu}
    v_mul_u32_u24 v{vl[4]}, 14336, v{t[0]}
    v_add_u32 v{vl[4]}, v{vl[4]}, v{t[2]}
    v_add_u32 v{vl[4]}, {SINGLE}, v{vl[4]}
    v_lshl_add_u32 v{t[2]}, v{t[1]}, 2, v{t[3]}
    v_lshl_add_u32 v{t[2]}, v{t[2]}, 6, v{mu}
    v_mul_u32_u24 v{t[0]}, {28672 + 32}, v{t[0]}
    v_add_u32 v{vl[0]}, v{t[0]}, v{t[2]}
    v_xor_b32 v{vl[1]}, 32, v{vl[0]}
    v_add_u32 v{vl[2]}, {PAIR}, v{vl[0]}
    v_add_u32 v{vl[3]}, {PAIR}, v{vl[1]}
    v_and_b32 v{t[0]}, 31, v{V_LANE}
    v_mul_u32_u24 v{t[1]}, {7*256}, v{t[1]}
    v_lshl_add_u32 v{vs}, v{t[0]}, 3, v{t[1]}
    s_mul_i32 s{T1}, s{STT}, {14*256}
    s_add_u32 s{T1}, s{T1}, {WS_ST}
    s_mul_i32 s{SH}, s{STT}, {28*1024}
    s_add_u32 s{SH}, s{SH}, {WS_H}
    ''')
    VSD = 222; SWB = S_DUM; SLB = S_DUM + 1
    a(f'''
    v_lshrrev_b32 v{t[0]}, 3, v{V_LANE}
    v_lshrrev_b32 v{t[1]}, 2, v{V_LANE}
    v_and_b32 v{t[1]}, 4, v{t[1]}
    v_and_b32 v{t[2]}, 7, v{V_LANE}
    v_xor_b32 v{t[1]}, v{t[1]}, v{t[2]}
    v_mul_u32_u24 v{t[0]}, 896, v{t[0]}
    v_lshl_add_u32 v{V_SRC2}, v{t[1]}, 4, v{t[0]}
    s_mul_i32 s{SWB}, s{S_W}, {448*896}
    s_lshl_b32 s{T0}, s{S_CB}, 7
    s_add_u32 s{SWB}, s{SWB}, s{T0}
    ''')
    def w2_dma(hl):
        base, per = (SCR, 12288) if hl < 3 else (PAIR, 14336)
        out = []
        for i in range(4):
            out.append(([f's_mul_i32 s{SLB}, s{S_W}, {per}', f's_add_u32 m0, s{SLB}, {base + (hl % 3)*4096}'] if i == 0 else []) +
                       [f's_add_u32 s{T0}, s{SWB}, {(256 + 32*hl + 8*i)*896 - 1024*i}',
                        ('vm', f'buffer_load_dwordx4 v{V_SRC2}, {sr4(SRD_A)}, s{T0} offen offset:{1024*i} lds', 'w2l')])
        return out
    NTP = NHG - opt('trC', 0)
    poll_issue(a, T2, V_FL, 14, vp)
    Ls = a.newlabel('skip')
    a(f's_cmp_ge_u32 s{S_J}, 28\ns_cbranch_scc1 {Ls}')
    while stg.nt < NTP: stg.trans()
    a.label(Ls)
    a('s_waitcnt lgkmcnt(0)\ns_barrier')
    a.stamp('D_pre')
    rest = [x for x in a.vm if x.startswith('hg')]
    poll_check(a, T2, V_FL, 14, vp)
    (a.stamp('D_poll'), a.stamp('R_D_pollc'), a.stamp('R_D_pollr', True)); a.stamp('F_poll')
    for c in range(7):
        a.vmem(f'buffer_load_dwordx2 {vr(ST+2*c,2)}, v{vs}, {sr4(SRD_WS)}, s{T1} offen offset:{256*c} sc1', 'st')
    SX_ = S_SPIN + 1
    a(f's_lshl_b32 s{SX_}, s{S_R14}, 11\nv_add_u32 v{vl[5]}, s{SH}, v{V_OFF}')
    def ldx(k):
        if k and k % 2 == 0: a(f's_add_u32 s{SX_}, s{SX_}, 2048\ns_sub_u32 s{T0}, s{SX_}, {28*1024}\ns_min_u32 s{SX_}, s{SX_}, s{T0}')
        a.vmem(f'buffer_load_dwordx4 {vr(X[k],4)}, v{vl[5]}, {sr4(SRD_WS)}, s{SX_} offen offset:{1024*(k&1)} sc1', f'x{k}')
    XLA = opt('xla', 8)
    for k in range(XLA): ldx(k)
    a(f's_or_b32 s{T0}, s2, s{S_W}\ns_cmp_lg_u32 s{T0}, 0\ns_cselect_b32 s{T0}, 0x40000000, {WS_FLG}')
    flag_store(a, T0, t[0])
    a.stamp('F_issued')
    Ls = a.newlabel('skip')
    a(f's_cmp_ge_u32 s{S_J}, 28\ns_cbranch_scc1 {Ls}')
    while stg.nt < NHG: stg.trans()
    stg.close()
    a.label(Ls)
    SE = T5; SL = T1; SF = T2
    a(f'''
    s_mul_i32 s{SE}, s{STT}, 112
    s_mul_i32 s{T0}, s{S_FS}, 7
    s_add_u32 s{SE}, s{SE}, s{T0}
    s_add_u32 s{SL}, s{SE}, s{S_L0}
    s_add_u32 s{SE}, s{SE}, s{S_E0}
    s_lshl_b32 s{SE}, s{SE}, 10
    s_add_u32 s{SE}, s{SE}, {WS_HH}
    s_lshl_b32 s{SL}, s{SL}, 10
    s_add_u32 s{SL}, s{SL}, {WS_HH}
    s_add_u32 s{S_U1}, s{SE}, 4096
    s_lshl_b32 s{SF}, s{STT}, 4
    s_add_u32 s{SF}, s{SF}, s{S_FS}
    s_lshl_b32 s{SF}, s{SF}, 7
    s_add_u32 s{SF}, s{SF}, {FL_D1}
    ''')
    if opt('trC', 0): a('s_waitcnt lgkmcnt(0)')
    seq = [(j, k) for k in range(28) for j in (0, 1, 4)] + [(j, k) for j in (2, 3, 5, 6) for k in range(28)]
    def rdW(n):
        j, k = seq[n]
        if j == 4: return [f'ds_read_b64_tr_b16 {vr(W[n % NW]+2*u,2)}, v{vl[4]} offset:{k*512 + u*256}' for u in range(2)]
        return [f'ds_read_b64_tr_b16 {vr(W[n % NW]+2*u,2)}, v{vl[{0:0,1:1,2:2,3:3,5:0,6:1}[j]]} offset:{k*1024 + u*512}' for u in range(2)]
    AH = opt('ah', 6); assert AH + 2 <= NW and 2 * AH <= 16
    a.stamp('F_bar')
    for n in range(AH):
        for x in rdW(n): a(x)
    stat = [('wait', 'st')] + [f'v_add_f32 v{ST+2*c+b_}, v{ST+2*c+b_}, v{ST+2*c+2+b_}' for c in (0, 2, 4) for b_ in range(2)] + \
           [f'v_add_f32 v{ST+b_}, v{ST+b_}, v{ST+4+b_}' for b_ in range(2)] + [f'v_add_f32 v{ST+8+b_}, v{ST+8+b_}, v{ST+12+b_}' for b_ in range(2)] + \
           [f'v_add_f32 v{ST+b_}, v{ST+b_}, v{ST+8+b_}' for b_ in range(2)] + \
           [f'v_mov_b32 v{t[0]}, v{ST}', f'v_mov_b32 v{t[1]}, v{ST+1}', 's_nop 0', f'v_permlane32_swap_b32 v{t[0]}, v{ST}', f'v_permlane32_swap_b32 v{t[1]}, v{ST+1}',
            f'v_add_f32 v{t[0]}, v{t[0]}, v{ST}', f'v_add_f32 v{t[1]}, v{t[1]}, v{ST+1}',
            f'v_mul_f32 v{t[0]}, {fx(1/448)}, v{t[0]}', f'v_mul_f32 v{t[1]}, {fx(1/448)}, v{t[1]}',
            f'v_fma_f32 v{t[1]}, -v{t[0]}, v{t[0]}, v{t[1]}', f'v_max_f32 v{t[1]}, 0, v{t[1]}',
            f'v_add_f32 v{mu+1}, {fx(1e-5)}, v{t[1]}', f'v_rsq_f32 v{mu}, v{mu+1}', 's_nop 0', f'v_mul_f32 v{mu}, {fx(-math.log2(math.e))}, v{mu}']
    acc_of = {0: 0, 1: 1, 4: 2, 2: 3, 3: 0, 5: 1, 6: 2}
    def epi(j):
        A = ACC[acc_of[j]]
        out = []
        pk = opt('pkE', 0) if j != 6 else 2
        if pk >= 2:
            for r in range(0, 8, 2): out.append(f'v_pk_mul_f32 {vr(E[r],2)}, {vr(A+r,2)}, {vr(mu,2)} op_sel_hi:[1,0]')
        else:
            for r in range(8): out.append(f'v_mul_f32 v{E[r]}, v{mu}, v{A+r}')
        for r in range(8): out.append(f'v_exp_f32 v{E[r]}, v{E[r]}')
        if pk >= 1:
            for r in range(0, 8, 2): out.append(f'v_pk_mul_f32 {vr(A+r,2)}, {vr(A+r,2)}, {vr(A+8+r,2)}')
        else:
            for r in range(8): out.append(f'v_mul_f32 v{A+r}, v{A+r}, v{A+8+r}')
        if pk >= 2:
            for r in range(0, 8, 2): out.append(f'v_pk_fma_f32 {vr(E[r],2)}, {vr(E[r],2)}, {vr(mu,2)}, {vr(mu,2)} op_sel:[0,1,1] op_sel_hi:[1,1,1]')
        else:
            for r in range(8): out.append(f'v_fma_f32 v{E[r]}, v{E[r]}, v{mu+1}, v{mu+1}')
        for r in range(8): out.append(f'v_rcp_f32 v{E[r]}, v{E[r]}')
        if pk >= 1:
            for r in range(0, 8, 2): out.append(f'v_pk_mul_f32 {vr(A+r,2)}, {vr(A+r,2)}, {vr(E[r],2)}')
        else:
            for r in range(8): out.append(f'v_mul_f32 v{A+r}, v{A+r}, v{E[r]}')
        for i in range(4): out.append(f'v_cvt_pk_bf16_f32 v{HP+i}, v{A+2*i}, v{A+2*i+1}')
        sreg, off = (SE, 1024*j) if j < 4 else ((S_U1, 0) if j == 4 else (SL, 1024*(j-5)))
        out.append(('vm', f'buffer_store_dwordx4 {vr(HP,4)}, v{V_OFF}, {sr4(SRD_WS)}, s{sreg} offen offset:{off} sc1', f'hh{j}'))
        return out
    a.stamp('F_stats')
    a.vmwait('x0')
    a.stamp('F_x0')
    pend = []; late = []
    R['vfE'] = vs; R['vpE'] = vp
    for n, (j, k) in enumerate(seq):
        nn = n + AH
        if nn < len(seq) and seq[nn] == (5, 0):
            a.vmwait('late'); a('s_barrier')
        rd = rdW(nn) if nn < len(seq) else []
        WP = opt('wp', 2)
        if n % WP == 0:
            left = min(len(seq), n + AH) - (n + WP)
            a(f's_waitcnt lgkmcnt({max(0, 2*left)})')
        A = ACC[acc_of[j]]
        a(f'{MFMA} {vr(A,16)}, {vr(W[n % NW],4)}, {vr(X[k],4)}, {vr(A,16) if k else 0}')
        for x in rd: a(x)
        if n < 84 and j == 0 and k in (2, 4, 8, 16, 24): a.stamp(f'F_k{k}')
        if n >= 84 and k == 27: a.stamp(f'F_t{j}')
        if n < 84:
            if j == 1 and k + XLA < 28: ldx(k + XLA)
            if j == 4 and k + 1 < 28: a.vmwait(f'x{k+1}')
            if k >= 4 and stat:
                a.emit(stat.pop(0))
            if n == 83:
                a.stamp('D_st1')
                assert not stat
                a('s_barrier')
                srd(a, SRD_A, P_W2, W2_BYTES)
                late = [pair_dma(S13, L13, 0, 0, i, 'late') for i in range(14)]
                g1 = [x for hl in range(3) for x in w2_dma(hl)]; g2 = [x for hl in range(3, 6) for x in w2_dma(hl)]
        else:
            if n == 84 + 2: pend = epi(0) + epi(1) + epi(4) + epi(2) + epi(3) + epi(5); done = 0; tot = len(pend); one = tot // 6
            if n >= 84 + 2:
                want = min(tot, (n - 85) * tot // 108 + 1)
                lim = {2: 3, 3: 3 + (k >= 2), 5: 4 + (k >= 2), 6: 5 + (k >= 2)}[j] * one
                while done < min(want, lim):
                    a.emit(pend.pop(0)); done += 1
                if k == 27:
                    need = {2: 1, 3: 2, 5: 3, 6: 6}[j] * one
                    while done < need:
                        a.emit(pend.pop(0)); done += 1
            if (j, k) == (5, 0): a('s_barrier')
            if k % opt('latestep', 2) == 0:
                q_ = late if late else (g1 if g1 else (g2 if j >= 5 else []))
                if q_:
                    for x in q_.pop(0): a.emit(x)
            if j == 5 and k == opt('f1k', 6):
                a.vmwait('hh1'); flag_store(a, SF, vp)
            if j == 6 and k == opt('f2k', 14) and not opt('d2late', 1):
                a(f's_add_u32 s{SF}, s{SF}, {FLS}')
                a.vmwait('hh2'); flag_store(a, SF, vl[2])
                a(f's_add_u32 s{SF}, s{SF}, {FLS}')
            if j == 6 and k == opt('p1k', 18):
                flag8_addr(a, vs, vp, vl[4], S_SPIN + 1, FL_D1)
                poll_issue(a, S_SPIN + 1, vs, 8, vp)
    assert not late and not g1 and not g2
    a.stamp('D_loop')
    if opt('d2late', 1):
        a(f's_add_u32 s{SF}, s{SF}, {FLS}')
        a.vmwait('hh3'); flag_store(a, SF, vl[2])
        a(f's_add_u32 s{SF}, s{SF}, {FLS}')
    for x in epi(6): a.emit(x)
    (a.stamp('D_epi'), a.stamp('R_D_epic'), a.stamp('R_D_epir', True))
    R['SF'] = SF

def phase_e(a, R, stg):
    va = VA(4, 199)
    ACC = [va(16) for _ in range(4)]
    NB = 16
    BUF = [[va(4) for l in range(2)] for d in range(NB)]
    vf = R['vfE']; vp = R['vpE']
    t = [204, 205, 206, 207]; vt = 208
    assert vf >= va.n and vp >= va.n and vf < 204 and vp < 204
    STT, SCT = T1, T3
    SP = S_SPIN + 1
    tile_ids(a, STT, SCT)
    a(f's_mul_i32 s{T4}, s{S_W}, {28*1024}')
    for l in range(2):
        a(f'''
        s_xor_b32 s{T0}, s{STT}, {l}
        s_mul_i32 s{T0}, s{T0}, {112*1024}
        s_add_u32 s{T0}, s{T0}, s{T4}
        s_add_u32 s{S_U0+l}, s{T0}, {WS_HH}
        ''')
    e0 = lambda f: 2 if f == 2 else 0
    l0 = lambda f: 0 if f == 2 else 5
    order = [7*f + e0(f) + j for j in (0, 1, 4, 2, 3) for f in range(4)] + [7*f + l0(f) + j for j in range(2) for f in range(4)]
    assert sorted(order) == list(range(28))
    poll_check(a, SP, vf, 8, vp)
    a.stamp('E_poll1')
    N2 = 20 if opt('d2late', 1) else 16
    B4 = opt('b4', 0)
    st = dict(nxt=0)
    FL3 = opt('efl', 7); PI2 = opt('epi2', 3); PI3 = opt('epi3', 15)
    def ld_items():
        n = st['nxt']; st['nxt'] += 1
        pre = []
        if B4 and n == opt('efl5', 4): pre.append(('call', lambda: (a.vmwait('hh5'), flag_store(a, R['SF'], vt), a(f's_add_u32 s{R["SF"]}, s{R["SF"]}, {FLS}'))))
        if n == FL3: pre.append(('call', lambda: (a.vmwait('hh6'), flag_store(a, R['SF'], vt))))
        if n in ((8, N2, 24) if B4 else (8, N2)):
            nm = {8: 2, N2: 3, 24: 4}[n]
            pre.append(('call', lambda: (a.stamp(f'E_pre{nm}'), poll_check(a, SP, vf, 8, vp), a.stamp(f'E_poll{nm}'))))
        if n in ((PI2, PI3, opt('epi4', 21)) if B4 else (PI2, PI3)): pre.append(('call', lambda: (a(f's_add_u32 s{SP}, s{SP}, {FLS}'), poll_issue(a, SP, vf, 8, vp))))
        ks = order[n]
        out = []
        for l in range(2):
            out.append((pre if l == 0 else []) + [f's_add_u32 s{T0}, s{S_U0+l}, {(ks >> 2) * 4096}',
                       ('vm', f'buffer_load_dwordx4 {vr(BUF[n % NB][l],4)}, v{V_OFF}, {sr4(SRD_WS)}, s{T0} offen offset:{1024*(ks&3)} sc1', f'h{n}')])
        return out
    def ld():
        for it in ld_items():
            for x in it: a.emit(x)
    LA = opt('ela', 8)
    for n in range(LA): ld()
    for j in range(8):
        a(f'v_lshlrev_b32 v{ACC[0]+2*j}, 16, v{HKEEP+j}\nv_and_b32 v{ACC[0]+2*j+1}, 0xffff0000, v{HKEEP+j}')
    red_addr(a, t)
    RA = [209, 210, 211, 212]
    a(f'''
    s_lshl_b32 s{T0}, s{S_W}, 13
    v_add_u32 v{RA[0]}, s{T0}, v{V_RD}
    v_add_u32 v{RA[1]}, s{T0}, v{V_RD+1}
    s_mul_i32 s{T0}, s{S_W}, {14336 - 4096}
    s_sub_u32 s{T0}, s{T0}, {SCR - PAIR}
    v_add_u32 v{RA[2]}, s{T0}, v{V_RD}
    v_add_u32 v{RA[3]}, s{T0}, v{V_RD+1}
    ''')
    Ls = [n for n in range(28) if order[n] >= 16]
    WB = [WOV + 8*i for i in range(4)]
    lst = dict(rd=0)
    def lread():
        i = lst['rd']; lst['rd'] += 1
        hl, s_ = divmod(order[Ls[i]] - 16, 2)
        return [f'ds_read_b64_tr_b16 {vr(WB[i % 4] + 4*lc + 2*u, 2)}, v{RA[2*(hl // 3) + lc]} offset:{(hl % 3)*4096 + s_*2048 + u*1024}' for lc in range(2) for u in range(2)]
    for _ in range(3):
        for x in lread(): a(x)
    def lwait(n):
        if n in Ls: a(f's_waitcnt lgkmcnt({4 * (lst["rd"] - 1 - Ls.index(n))})')
    def mm(n, l):
        ks = order[n]
        p, b = stg.dest(4 + (ks >> 1), ks & 1, l >> 1) if ks < 16 else ('v', WB[Ls.index(n) % 4] + 4 * (l >> 1))
        a(f'{MFMA} {vr(ACC[l],16)}, {vr(b,4,p)}, {vr(BUF[n % NB][l & 1],4)}, {vr(ACC[l],16) if (n or l == 0) else 0}')
    KT = 28 - opt('etail', 3)
    for n in range(KT):
        lwait(n)
        a.vmwait(f'h{n}')
        items = []
        for _ in range(2 if n < opt('egrow', 0) else 1):
            if st['nxt'] < 28 and st['nxt'] - NB < n: items += ld_items()
        rd = lread() if (n in Ls and lst['rd'] < len(Ls)) else []
        for l in range(4):
            mm(n, l)
            if rd: a(rd.pop(0))
            if items and (len(items) > 2 or l & 1 == 0 or l == 3):
                for x in items.pop(0): a.emit(x)
        assert not items
        if n == opt('ebar', 20):
            assert all(m <= n for m in Ls if order[m] < 22)
            a('s_barrier')
    assert st['nxt'] == 28 and lst['rd'] == len(Ls)
    a('s_waitcnt lgkmcnt(0)')
    for l in (1, 2, 3, 0):
        for n in range(KT, 28):
            if l == 1: a.vmwait(f'h{n}')
            mm(n, l)
        if l in (2, 3): red_write(a, ACC, t, l - 1)
    a.stamp('E_mfma')
    red_write(a, ACC, t, 3)
    srd(a, SRD_A, P_OUT, X_BYTES)
    a(f'''
    v_and_b32 v{vf}, 31, v{V_LANE}
    v_lshrrev_b32 v{vp}, 5, v{V_LANE}
    v_mul_u32_u24 v{vf}, 896, v{vf}
    v_lshl_add_u32 v{vf}, v{vp}, 4, v{vf}
    s_mul_i32 s{T0}, s{STT}, {32*896}
    s_lshl_b32 s{T2}, s{SCT}, 6
    s_add_u32 s{T0}, s{T0}, s{T2}
    ''')
    red_read(a, ACC, t)
    if opt('bias', 0):
        for r in range(16): a(f"v_add_f32 v{ACC[0]+r}, {fx(opt('bias', 0) * 1e-3)}, v{ACC[0]+r}")
    PKR = ACC[1]
    for j in range(8): a(f'v_cvt_pk_bf16_f32 v{PKR+j}, v{ACC[0]+2*j}, v{ACC[0]+2*j+1}')
    for g in (0, 4):
        a(f'v_permlane32_swap_b32 v{PKR+g}, v{PKR+g+2}\nv_permlane32_swap_b32 v{PKR+g+1}, v{PKR+g+3}')
    fl_ = ['', ' sc1', ' nt', ' sc0 sc1'][opt('outst', 0)]
    a(f'buffer_store_dwordx4 {vr(PKR,4)}, v{vf}, {sr4(SRD_A)}, s{T0} offen{fl_}')
    a(f'buffer_store_dwordx4 {vr(PKR+4,4)}, v{vf}, {sr4(SRD_A)}, s{T0} offen offset:32{fl_}')
    a.stamp('E_st')

def gen():
    a = K()
    a.stamp('rt0', True); a.stamp('t0')
    HB = opt('hb', 3)
    if int(os.environ.get('TFIX', '0')): a('s_memrealtime s[60:61]')
    a(f'''
    s_cmp_ge_u32 s2, 256
    s_cbranch_scc1 Lend
    s_load_dwordx16 s[32:47], s[0:1], 0
    s_load_dwordx2 s[50:51], s[0:1], 72
    v_lshrrev_b32 v2, 6, v0
    v_and_b32 v{V_LANE}, 63, v0
    v_readfirstlane_b32 s{S_W}, v2
    v_lshlrev_b32 v{V_OFF}, 4, v{V_LANE}
    v_lshlrev_b32 v{V_FL}, 7, v{V_LANE}
    s_and_b32 s{T0}, s2, 7
    s_lshr_b32 s{S_J}, s2, 3
    s_and_b32 s{S_H}, s{T0}, {(16 >> HB) - 1}
    s_lshl_b32 s{S_H}, s{S_H}, {HB}
    s_and_b32 s{T1}, s{S_J}, {(1 << HB) - 1}
    s_add_u32 s{S_H}, s{S_H}, s{T1}
    s_lshr_b32 s{S_TB}, s{T0}, {4 - HB}
    s_lshl_b32 s{S_TB}, s{S_TB}, {5 - HB}
    s_lshr_b32 s{T1}, s{S_J}, {HB}
    s_add_u32 s{S_TB}, s{S_TB}, s{T1}
    s_mul_i32 s{T1}, s{S_J}, 9363
    s_lshr_b32 s{T1}, s{T1}, 16
    s_mul_i32 s{T2}, s{T1}, 7
    s_sub_u32 s{S_CB}, s{S_J}, s{T2}
    s_lshl_b32 s{S_RB}, s{T0}, 2
    s_add_u32 s{S_RB}, s{S_RB}, s{T1}
    s_and_b32 s{S_TD}, s{T0}, 1
    s_lshl_b32 s{S_TD}, s{S_TD}, 3
    s_and_b32 s{T1}, s{S_J}, 7
    s_add_u32 s{S_TD}, s{S_TD}, s{T1}
    s_lshr_b32 s{S_FS}, s{T0}, 1
    s_lshl_b32 s{S_FS}, s{S_FS}, 2
    s_lshr_b32 s{T1}, s{S_J}, 3
    s_add_u32 s{S_FS}, s{S_FS}, s{T1}
    ''')
    if opt('cpre', 1):
        a('s_getpc_b64 s[54:55]')
        a.label('Lpc')
        a(f'''
        s_lshl_b32 s{T0}, s{S_J}, 2
        s_add_u32 s{T0}, s{T0}, s{S_W}
        s_mul_i32 s{T0}, s{T0}, 3
        v_add_u32 v4, s{T0}, v{V_LANE}
        v_lshlrev_b32 v4, 7, v4
        v_min_u32 v4, Lcode_end-Lpc-4, v4
        v_mov_b32 v5, s55
        v_add_co_u32 v4, vcc, s54, v4
        v_addc_co_u32 v5, vcc, 0, v5, vcc
        s_mov_b64 exec, 7
        ''')
        a.vmem('global_load_dword a4, v[4:5], off', 'code')
        a('s_mov_b64 exec, -1')
    R = alloc_b()
    phase_a(a, R)
    a(f'''
    s_and_b32 s{T0}, s{S_FS}, 3
    s_cmp_eq_u32 s{T0}, 2
    s_cselect_b32 s{S_E0}, 2, 0
    s_cselect_b32 s{S_L0}, 0, 5
    s_and_b32 s{T0}, s{S_J}, 7
    s_lshr_b32 s{T1}, s{S_J}, 3
    s_mul_i32 s{T1}, s{T1}, {opt('r14b', 4)}
    s_mul_i32 s{T0}, s{T0}, {opt('r14a', 2)}
    s_add_u32 s{T0}, s{T0}, s{T1}
    s_sub_u32 s{T1}, s{T0}, 14
    s_min_u32 s{S_R14}, s{T0}, s{T1}
    s_sub_u32 s{T1}, s{S_R14}, 14
    s_min_u32 s{S_R14}, s{S_R14}, s{T1}
    ''')
    stg = Stager(a)
    phase_b(a, R, stg)
    a(f's_cmp_ge_u32 s{S_J}, 28\ns_cbranch_scc1 LnoC')
    phase_c(a, R, stg)
    a('s_branch LD')
    vm_c = list(a.vm)
    a.label('LnoC')
    a.vmall()
    flag_store(a, T5, 4)
    a('s_barrier')
    put5(a, 5)
    a.label('LD')
    a.vm = vm_c
    phase_d(a, R, stg)
    a(f's_cmp_ge_u32 s{S_J}, 28\ns_cbranch_scc0 LE')
    vm_d = list(a.vm)
    a('s_waitcnt vmcnt(0)')
    flag_store(a, R['SF'], 4)
    if opt('b4', 0):
        a(f's_add_u32 s{R["SF"]}, s{R["SF"]}, {FLS}'); flag_store(a, R['SF'], 4)
    a('s_branch Lfin')
    a.label('LE')
    a.vm = vm_d
    phase_e(a, R, stg)
    a.label('Lfin')
    if int(os.environ.get('TFIX', '0')):
        a.label('Lfix')
        a(f's_memrealtime s[62:63]\ns_waitcnt lgkmcnt(0)\ns_sub_u32 s62, s62, s60\ns_cmp_lt_u32 s62, {int(os.environ["TFIX"])}\ns_cbranch_scc1 Lfix')
    if STAMP:
        a('s_waitcnt vmcnt(0)')
        a.stamp('end'); a.stamp('rt1', True)
        a(f's_waitcnt lgkmcnt(0)\ns_lshl_b32 s{T0}, s2, 2\ns_add_u32 s{T0}, s{T0}, s{S_W}\ns_lshl_b32 s{T0}, s{T0}, 7\ns_add_u32 s{T0}, s{T0}, {WS_DBG}\nv_mov_b32 v4, 0')
        for i in range(a.nst):
            a(f'v_mov_b32 v5, s{60+2*i}\nbuffer_store_dword v5, v4, {sr4(SRD_WS)}, s{T0} offen offset:{4*i}')
    if STAMP and int(os.environ.get('DBGOUT', '0')):
        n = a.nst
        a(f'''
        s_load_dwordx2 s[{SRD_A}:{SRD_A+1}], s[0:1], 64
        s_mov_b32 s{SRD_A+2}, 256
        s_mov_b32 s{SRD_A+3}, 0x20000
        s_not_b32 s{T1}, s60
        v_mov_b32 v6, s{T1}
        v_mov_b32 v7, s{60+2*(n-1)}
        v_mov_b32 v8, s60
        s_mov_b64 exec, 1
        s_waitcnt lgkmcnt(0)
        buffer_atomic_umax v6, v4, {sr4(SRD_A)}, 0 offen
        buffer_atomic_umax v7, v4, {sr4(SRD_A)}, 0 offen offset:4
        buffer_atomic_umax v8, v4, {sr4(SRD_A)}, 0 offen offset:8
        s_or_b32 s{T0}, s2, s{S_W}
        s_cmp_lg_u32 s{T0}, {int(os.environ.get('DBGWG', '0'))}
        s_cbranch_scc1 Lend
        ''')
        for i in range(2, min(n - 1, 15)):
            a(f's_sub_u32 s{T0}, s{60+2*i}, s62\nv_mov_b32 v5, s{T0}\nbuffer_store_dword v5, v4, {sr4(SRD_A)}, 0 offen offset:{4*(i+1)}')
    a.label('Lend')
    a('s_endpgm')
    fallback(a, R)
    a.label('Lcode_end')
    a.finalize()
    head = open('sequential_preLN__mha_block__glu_gated_swiglu__prompt.s.ref').read().split('; Override')[0]
    pre = f'.amdgcn_target "amdgcn-amd-amdhsa--gfx950"\n.text\n.p2align 12\n.fill {(4096 - 0x300) // 4}, 4, 0xbf800000\n.globl {NAME}\n.p2align 8\n.type {NAME},@function\n{NAME}:\n'
    if opt('visit', 1):
        import subprocess, re, tempfile
        from asmgen import Ins
        tmp = tempfile.mkdtemp()
        open(tmp + '/t.s', 'w').write(pre + a.text() + ''.join(f'Lpage{i}:\n' for i in range(1, 13)))
        subprocess.run(['clang', '-x', 'assembler', '-target', 'amdgcn-amd-amdhsa', '-mcpu=gfx950', '-c', tmp + '/t.s', '-o', tmp + '/t.o'], check=True)
        dis = subprocess.run(['llvm-objdump', '-d', '--mcpu=gfx950', tmp + '/t.o'], capture_output=True, text=True).stdout
        dis = dis[dis.index(f'<{NAME}>:'):]
        sizes = [4 * len(m.group(1).split()) for m in re.finditer(r'// [0-9A-F]{12}: ([0-9A-F ]+)$', dis, re.M)]
        out = []; off = 0; page = 1; k = 0; masked = False
        for x in a.ins:
            if x.kind not in ('label', 'dir'):
                if off >= 4096 * page and page <= 12 and not masked:
                    out += [Ins(f'Lpage{page}:'), Ins(f's_cbranch_execz Lvis{(page - 1) // 4}')]
                    off += 4; page += 1
                off += sizes[k]; k += 1
                if ('exec', 0) in x.wr: masked = x.text.split(';')[0].strip() != 's_mov_b64 exec, -1'
            out.append(x)
        assert k == len(sizes), (k, len(sizes))
        for pg in range(page, 13): out += [Ins(f'Lpage{pg}:'), Ins(f's_branch Lvis{(pg - 1) // 4}')]
        a.ins = out
    s = head + f'; @launch grid=(256,1,1) block=(256,1,1) lds={LDS_BYTES}\n' + pre + a.text()
    s += f'''.section .rodata,"a"
.p2align 6
.amdhsa_kernel {NAME}
  .amdhsa_next_free_vgpr 512
  .amdhsa_next_free_sgpr 102
  .amdhsa_accum_offset 256
  .amdhsa_group_segment_fixed_size 0
  .amdhsa_kernarg_size 80
  .amdhsa_user_sgpr_count 2
  .amdhsa_user_sgpr_kernarg_segment_ptr 1
  .amdhsa_system_sgpr_workgroup_id_x 1
.end_amdhsa_kernel
'''
    if STAMP: s = '; STAMPS ' + ' '.join(a.names) + '\n' + s
    print(f'instrs={len(a.ins)} nop_states={a.nops} stamps={a.nst}', file=sys.stderr)
    return s

if __name__ == '__main__':
    open(sys.argv[1], 'w').write(gen())
```

```python
import sys, struct, math, os
from asmgen import Asm

NAME = 'sequential_preLN__mha_block__glu_gated_swiglu__prompt_kernel'
MB = 1 << 20
WS_KV  = 0
WS_O   = 4 * MB
WS_H   = 6 * MB
WS_ST  = 8 * MB
WS_HH  = 9 * MB
WS_FLG = 16 * MB
FL_A = WS_FLG + 0x10000
FL_B = FL_A + 1024 * 128
FL_C = FL_B + 1024 * 128
FL_D1 = FL_C + 1024 * 128
FL_D2 = FL_D1 + 1024 * 128
FL_D3 = FL_D2 + 1024 * 128
FL_D4 = FL_D3 + 1024 * 128
FLS = 1024 * 128
WS_DBG = 17 * MB
WS_SIZE = 18 * MB

X_BYTES = 2048 * 448 * 2
WQKV_BYTES = 448 * 1344 * 2
WO_BYTES = 448 * 448 * 2
W1_BYTES = 448 * 1792 * 2
W2_BYTES = 1792 * 448 * 2
LDS_BYTES = 163840
MFMA = 'v_mfma_f32_32x32x16_bf16'
STAMP = int(os.environ.get('STAMP', '0'))
OPT = dict(kv.split('=') for kv in os.environ.get('OPT', '').split(',') if kv)
def opt(k, d): return int(OPT.get(k, d))

def f2u(x): return struct.unpack('<I', struct.pack('<f', x))[0]
def fx(x): return hex(f2u(x))
def vr(b, n=1, p='v'): return f'{p}[{b}:{b+n-1}]' if n > 1 else f'{p}{b}'
def sr4(b): return f's[{b}:{b+3}]'

class VA:
    def __init__(self, start, limit): self.n = start; self.limit = limit
    def __call__(self, cnt=1, align=None):
        if align is None: align = 1 if cnt == 1 else (2 if cnt == 2 else 4)
        self.n = (self.n + align - 1) // align * align
        b = self.n; self.n += cnt
        assert self.n <= self.limit, f'out of registers {self.n} > {self.limit}'
        return b

class K(Asm):
    def __init__(self):
        super().__init__(); self.vm = []; self.nst = 0; self.nlab = 0; self.names = []
    def vmem(self, text, tag):
        self(text); self.vm.append(tag)
    def vmwait(self, *tags, lgkm=None):
        idx = [i for i, t in enumerate(self.vm) if t in tags]
        s = ''
        if idx:
            n = len(self.vm) - 1 - max(idx)
            s += f' vmcnt({min(n, 63)})'
            self.vm = self.vm[len(self.vm) - n:] if n else []
        if lgkm is not None: s += f' lgkmcnt({lgkm})'
        if s: self('s_waitcnt' + s)
    def vmall(self):
        self('s_waitcnt vmcnt(0)'); self.vm = []
    def emit(self, x):
        if isinstance(x, tuple):
            if x[0] == 'vm': self.vmem(x[1], x[2])
            elif x[0] == 'wait': self.vmwait(*x[1:])
            elif x[0] == 'call': x[1]()
        else: self(x)
    def stamp(self, name='', real=False):
        if not STAMP: return
        if name and name[0] in 'ABCDEFGHI' and name[0] not in os.environ.get('STAMPSET', 'AB'): return
        if name in self.names:
            i = self.names.index(name)
        else:
            i = self.nst; self.nst += 1; self.names.append(name)
        assert i < 19
        self(f's_mem{"real" if real else ""}time s[{60+2*i}:{61+2*i}]')
    def newlabel(self, p):
        self.nlab += 1; return f'L{p}{self.nlab}'

S_W = 3
SRD_X = 4; SRD_WQKV = 8; SRD_WS = 12; SRD_A = 16; SRD_B = 20
P_X, P_WQKV, P_WO, P_W1, P_W3, P_W2, P_OUT, P_WS = 32, 34, 36, 40, 42, 44, 46, 50
S_TAG = 24; S_H = 25; S_TB = 26; S_RB = 27; S_CB = 28; S_TD = 29; S_FS = 30; S_J = 31
S_E0 = 38; S_L0 = 39
S_U0 = 48; S_U1 = 49
S_ONES = 52
T0, T1, T2, T3, T4, T5, T6 = 53, 54, 55, 56, 57, 58, 59
S_SPIN = 98
S_ROT = 39
S_DUM = 100
S_RX = 99
S_R14 = 0; S_RG = 1
V_LANE = 1; V_OFF = 2; V_FL = 3
V_SRC = 212; V_P13 = 213; V_RD = 214
HKEEP = 216
V_SRC2 = 0
XRES = 204
WOV = 224
PAIR = 57344; SCR = 2 * PAIR; SINGLE = SCR + 16384
NHG = 12
RAW5 = 196

def xm(n):
    if n >= 64: return 's_mov_b64 exec, -1'
    if n < 31: return f's_mov_b64 exec, {hex((1 << n) - 1)}'
    lo = '-1' if n >= 32 else hex((1 << n) - 1)
    return f's_mov_b32 exec_lo, {lo}\ns_mov_b32 exec_hi, {hex((1 << max(0, n - 32)) - 1)}'

def srd(a, d, p, nbytes):
    a(f's_mov_b32 s{d}, s{p}\ns_mov_b32 s{d+1}, s{p+1}\ns_mov_b32 s{d+2}, {nbytes}\ns_mov_b32 s{d+3}, 0x20000')

def visit(a, site):
    if not opt('visit', 1): return
    a('s_mov_b64 exec, 0')
    for w in range(4):
        a(f's_cmp_eq_u32 s{S_W}, {w}\ns_cbranch_scc1 Lpage{1 + 4*site + w}')
    a.label(f'Lvis{site}')
    a('s_mov_b64 exec, -1')

def halfsum(a, x, t):
    a(f'v_mov_b32 v{t}, v{x}\nv_permlane32_swap_b32 v{x}, v{t}\nv_add_f32 v{x}, v{x}, v{t}')

def flag_store(a, sreg, vt):
    a(f'v_mov_b32 v{vt}, s{S_TAG}\ns_mov_b64 exec, 1')
    a.vmem(f'buffer_store_dword v{vt}, v{V_OFF}, {sr4(SRD_WS)}, s{sreg} offen sc1', 'flag')
    a('s_mov_b64 exec, -1')

def poll_issue(a, sreg, vaddr, nl, vt):
    a(xm(nl))
    a.vmem(f'buffer_load_dword v{vt}, v{vaddr}, {sr4(SRD_WS)}, s{sreg} offen sc1', 'poll')
    a('s_mov_b64 exec, -1')

def poll_check(a, sreg, vaddr, nl, vt):
    L = a.newlabel('poll'); D = L + 'd'
    a(xm(nl) + f'\ns_mov_b32 s{S_SPIN}, 0x40000')
    a.vmwait('poll')
    a(f'v_cmp_ne_u32 vcc, s{S_TAG}, v{vt}\ns_cbranch_vccz {D}')
    a.label(L)
    a(f'''
    {f"s_sleep {opt('sleep', 1)}" if opt('sleep', 1) else ''}
    buffer_load_dword v{vt}, v{vaddr}, {sr4(SRD_WS)}, s{sreg} offen sc1
    s_sub_u32 s{S_SPIN}, s{S_SPIN}, 1
    s_waitcnt vmcnt(0)
    s_cbranch_scc1 {D}
    v_cmp_ne_u32 vcc, s{S_TAG}, v{vt}
    s_cbranch_vccnz {L}
    ''')
    a.label(D)
    a('s_mov_b64 exec, -1')

def ssrd(a, D, lim, pa, pb, na, nb, per, u0, u1):
    a(f'''
    s_lshl_b32 s{u0}, s2, 2
    s_add_u32 s{u0}, s{u0}, s{S_W}
    s_mov_b32 s{D+2}, {na}
    s_cmp_ge_u32 s{u0}, {lim}
    s_cselect_b32 s{D}, s{pb}, s{pa}
    s_cselect_b32 s{D+1}, s{pb+1}, s{pa+1}
    s_cselect_b32 s{D+2}, {nb}, s{D+2}
    s_cselect_b32 s{u1}, {lim}, 0
    s_sub_u32 s{u0}, s{u0}, s{u1}
    s_mul_i32 s{u0}, s{u0}, {per}
    s_min_u32 s{u0}, s{u0}, s{D+2}
    s_sub_u32 s{D+2}, s{D+2}, s{u0}
    s_add_u32 s{D}, s{D}, s{u0}
    s_addc_u32 s{D+1}, s{D+1}, 0
    s_mov_b32 s{D+3}, 0x20000
    ''')

def sld(D, o): return f's_buffer_load_dwordx2 s[{S_DUM}:{S_DUM+1}], {sr4(D)}, {o + 60}'

def phase_a(a, R):
    WR = 114688
    WQ = 16384
    CSP = WR + 5 * 8192
    PRV = CSP + 1536
    QX = 49152
    assert PRV + 2048 <= LDS_BYTES
    R['QX'] = QX
    Q0 = R['Q'][0]
    va = VA(4, 256)
    ACC = [va(16), va(16)]; accQ = va(16)
    PK = va(8); assert PK == Q0, (PK, Q0)
    X = [va(4) for _ in range(28)]
    NWF = 4
    WF = [[va(4) for j in range(2)] for b in range(NWF)]
    vx = [va(), va()]; vw = [va(), va()]
    ax = [va() for _ in range(4)]; aw = [va() for _ in range(4)]; ab = [va() for _ in range(4)]
    pr = [va(2) for _ in range(6)]
    cs = [pr[0], pr[1], pr[2]]; mu = pr[3]; rs = pr[4]; rq = pr[5]
    sm = [pr[0] + 1, pr[1] + 1]; sq = [pr[2] + 1, pr[3] + 1]
    hf = pr[4] + 1; n31 = pr[5] + 1
    vq = va()
    t = [va() for _ in range(7)] + [0]
    dB = t[7]
    assert va.n <= 240, va.n
    T16 = 240; U16 = accQ
    a(f'v_lshrrev_b32 v{hf}, 5, v{V_LANE}\nv_and_b32 v{n31}, 31, v{V_LANE}')
    for i in range(2):
        a(f'''
        v_lshrrev_b32 v{t[0]}, 3, v{V_LANE}
        v_add_u32 v{t[0]}, {8*i}, v{t[0]}
        v_lshrrev_b32 v{t[1]}, 1, v{t[0]}
        v_and_b32 v{t[1]}, 7, v{t[1]}
        v_and_b32 v{t[2]}, 7, v{V_LANE}
        v_xor_b32 v{t[1]}, v{t[1]}, v{t[2]}
        v_lshlrev_b32 v{t[1]}, 4, v{t[1]}
        v_mul_u32_u24 v{t[0]}, 896, v{t[0]}
        v_add_u32 v{vx[i]}, v{t[0]}, v{t[1]}
        ''')
    a(f'''
    v_subrev_u32 v{vx[1]}, 1024, v{vx[1]}
    v_lshrrev_b32 v{t[0]}, 3, v{V_LANE}
    v_lshrrev_b32 v{t[1]}, 2, v{V_LANE}
    v_and_b32 v{t[1]}, 4, v{t[1]}
    v_xor_b32 v{t[1]}, v{t[1]}, v{t[2]}
    v_min_u32 v{t[1]}, 6, v{t[1]}
    v_mul_u32_u24 v{t[0]}, 2688, v{t[0]}
    v_lshl_add_u32 v{vw[0]}, v{t[1]}, 4, v{t[0]}
    v_add_u32 v{vw[1]}, {8*2688 - 1024}, v{vw[0]}
    s_waitcnt lgkmcnt(0)
    ''')
    srd(a, SRD_X, P_X, X_BYTES); srd(a, SRD_WQKV, P_WQKV, WQKV_BYTES)
    SX, SW, LX, LW = T3, T4, T5, T6
    a(f'''
    s_lshl_b32 s{SX}, s{S_TB}, 2
    s_add_u32 s{SX}, s{SX}, s{S_W}
    s_mul_i32 s{SX}, s{SX}, {32*896}
    s_mul_i32 s{SW}, s{S_W}, {16*2688}
    s_lshr_b32 s{T0}, s{S_H}, 1
    s_mul_i32 s{T0}, s{T0}, 112
    s_add_u32 s{SW}, s{SW}, s{T0}
    s_and_b32 s{T0}, s{S_H}, 1
    s_mul_i32 s{T0}, s{T0}, 896
    s_add_u32 s{SW}, s{SW}, s{T0}
    s_add_u32 s{SW}, s{SW}, 896
    s_mul_i32 s{LX}, s{S_W}, 28672
    s_lshl_b32 s{LW}, s{S_W}, 11
    ''')
    def w_items(c):
        lds = WR + c * 8192 if c < 5 else (c - 5) * 8192
        return [[f's_add_u32 m0, s{LW}, {lds}', f's_mul_i32 s{T0}, s{S_ROT}, {64*2688}', f's_add_u32 s{T0}, s{T0}, s{SW}',
                 ('vm', f'buffer_load_dwordx4 v{vw[0]}, {sr4(SRD_WQKV)}, s{T0} offen lds', f'w{c}')],
                [('vm', f'buffer_load_dwordx4 v{vw[1]}, {sr4(SRD_WQKV)}, s{T0} offen offset:1024 lds', f'w{c}'),
                 f's_add_u32 s{S_ROT}, s{S_ROT}, 1', f's_cmp_eq_u32 s{S_ROT}, 7', f's_cselect_b32 s{S_ROT}, 0, s{S_ROT}']]
    def x_items(c):
        out = []
        for i in range(4):
            out.append(([f's_add_u32 m0, s{LX}, {c*4096}', f's_add_u32 s{T0}, s{S_RX}, s{SX}'] if i == 0 else []) +
                       ([f's_add_u32 s{T0}, s{T0}, 12288'] if i == 2 else []) +
                       [('vm', f'buffer_load_dwordx4 v{vx[i&1]}, {sr4(SRD_X)}, s{T0} offen offset:{1024*i} lds', f'x{c}')] +
                       ([f's_add_u32 s{S_RX}, s{S_RX}, 128', f's_cmp_eq_u32 s{S_RX}, 896', f's_cselect_b32 s{S_RX}, 0, s{S_RX}'] if i == 3 else []))
        return out
    def put(items):
        for it in items:
            for x in it: a.emit(x)
    a.stamp('G_karg')
    NPRE = opt('npre', 2)
    a(f'''
    s_lshr_b32 s{S_ROT}, s{S_J}, 3
    s_mul_i32 s{S_ROT}, s{S_ROT}, {opt('rotm', 2)}
    s_and_b32 s{T0}, s{S_J}, 7
    s_add_u32 s{S_ROT}, s{S_ROT}, s{T0}
    s_mul_i32 s{T0}, s{S_ROT}, 37
    s_lshr_b32 s{T0}, s{T0}, 8
    s_mul_i32 s{T0}, s{T0}, 7
    s_sub_u32 s{S_ROT}, s{S_ROT}, s{T0}
    s_lshl_b32 s{S_DUM}, s{S_ROT}, 2
    s_lshl_b32 s{S_RX}, s{S_ROT}, 7
    ''')
    put(x_items(0) + w_items(0) + w_items(1))
    for c in range(1, NPRE): put(x_items(c))
    a.stamp('G_dma0')
    assert T1 % 2 == 0 and T2 == T1 + 1
    a(f's_add_u32 s{T1}, s{P_WS}, {WS_FLG}\ns_addc_u32 s{T2}, s{P_WS+1}, 0\ns_load_dword s{S_TAG}, s[{T1}:{T2}], 0')
    srd(a, SRD_WS, P_WS, WS_SIZE)
    def touch_item():
        TA, TB, TC = T1, T2, T0
        return [f's_lshl_b32 s{TA}, s2, 2', f's_add_u32 s{TA}, s{TA}, s{S_W}', f's_mul_i32 s{TB}, s{TA}, 1338', f's_lshr_b32 s{TB}, s{TB}, 18',
                f's_mul_i32 s{TC}, s{TB}, 196', f's_sub_u32 s{TA}, s{TA}, s{TC}', f's_lshl_b32 s{TA}, s{TA}, 13',
                f's_cmp_eq_u32 s{TB}, 1', f's_cselect_b32 s{SRD_A}, s{P_W3}, s{P_W1}', f's_cselect_b32 s{SRD_A+1}, s{P_W3+1}, s{P_W1+1}',
                f's_cmp_eq_u32 s{TB}, 2', f's_cselect_b32 s{SRD_A}, s{P_W2}, s{SRD_A}', f's_cselect_b32 s{SRD_A+1}, s{P_W2+1}, s{SRD_A+1}',
                f's_mov_b32 s{SRD_A+2}, {W1_BYTES}',
                f's_cmp_eq_u32 s{TB}, 3', f's_cselect_b32 s{SRD_A}, s{P_WO}, s{SRD_A}', f's_cselect_b32 s{SRD_A+1}, s{P_WO+1}, s{SRD_A+1}',
                f's_cselect_b32 s{SRD_A+2}, {WO_BYTES}, s{SRD_A+2}',
                f's_cmp_gt_u32 s{TB}, 3', f's_cselect_b32 s{SRD_A+2}, 0, s{SRD_A+2}', f's_mov_b32 s{SRD_A+3}, 0x20000',
                ('vm', f'buffer_load_dword a0, v{V_FL}, {sr4(SRD_A)}, s{TA} offen', 'touch')]
    def prew():
        a(f'''
        v_mov_b32 v{t[7]}, s{S_TAG}
        v_add_u32 v{t[7]}, -1, v{t[7]}
        v_lshlrev_b32 v{t[5]}, 2, v{V_LANE}
        {xm(32)}
        s_lshr_b32 s{T1}, s{S_H}, 1
        s_lshl_b32 s{T1}, s{T1}, 2
        s_add_u32 s{T1}, s{T1}, s{S_W}
        s_lshl_b32 s{T1}, s{T1}, 1
        s_and_b32 s{T2}, s{S_H}, 1
        s_add_u32 s{T1}, s{T1}, s{T2}
        s_lshl_b32 s{T1}, s{T1}, 4
        s_add_u32 s{T1}, s{T1}, s{S_TB}
        s_lshl_b32 s{T1}, s{T1}, 7
        s_add_u32 s{T1}, s{T1}, {FL_A}
        ''')
        st_ = lambda: a.vmem(f'buffer_store_dword v{t[7]}, v{t[5]}, {sr4(SRD_WS)}, s{T1} offen sc1', 'prew')
        st_()
        a(f's_lshl_b32 s{T1}, s{S_TB}, 2\ns_add_u32 s{T1}, s{T1}, s{S_W}\ns_lshl_b32 s{T1}, s{T1}, 4\ns_add_u32 s{T1}, s{T1}, s{S_H}\ns_lshl_b32 s{T1}, s{T1}, 7\ns_add_u32 s{T1}, s{T1}, {FL_B}')
        st_()
        a(f's_lshl_b32 s{T1}, s{S_TD}, 2\ns_add_u32 s{T1}, s{T1}, s{S_W}\ns_lshl_b32 s{T1}, s{T1}, 4\ns_add_u32 s{T1}, s{T1}, s{S_FS}\ns_lshl_b32 s{T1}, s{T1}, 7\ns_add_u32 s{T1}, s{T1}, {FL_D1}')
        for i in range(4):
            st_(); a(f's_add_u32 s{T1}, s{T1}, {FLS}')
        a(f'''
        s_lshl_b32 s{T1}, s{S_RB}, 1
        s_and_b32 s{T2}, s{S_W}, 1
        s_add_u32 s{T1}, s{T1}, s{T2}
        s_lshl_b32 s{T1}, s{T1}, 3
        s_add_u32 s{T1}, s{T1}, s{S_CB}
        s_lshl_b32 s{T1}, s{T1}, 1
        s_lshr_b32 s{T2}, s{S_W}, 1
        s_add_u32 s{T1}, s{T1}, s{T2}
        s_lshl_b32 s{T1}, s{T1}, 7
        s_add_u32 s{T1}, s{T1}, {FL_C}
        s_cmp_ge_u32 s{S_J}, 28
        s_cselect_b32 s{T1}, 0x40000000, s{T1}
        ''')
        st_()
        a('s_mov_b64 exec, -1')
    def dmaq_items():
        out = []
        for i in range(7):
            out.append([] +
                       [f's_add_u32 m0, s{S_U0}, {i*1024}', f's_mul_i32 s{T0}, s{S_U1}, {16*2688}', f's_add_u32 s{T0}, s{T0}, s{S_E0}',
                        ('vm', f'buffer_load_dwordx4 v{vq}, {sr4(SRD_WQKV)}, s{T0} offen lds', 'wq'),
                        f's_add_u32 s{S_U1}, s{S_U1}, 1', f's_cmp_eq_u32 s{S_U1}, 28', f's_cselect_b32 s{S_U1}, 0, s{S_U1}'])
        return out
    a(f'''
    s_mul_i32 s{S_U0}, s{S_W}, {7*1024}
    s_add_u32 s{S_U0}, s{S_U0}, {WQ}
    s_mul_i32 s{S_U1}, s{S_W}, 7
    s_add_u32 s{S_U1}, s{S_U1}, s{S_DUM}
    s_cmp_ge_u32 s{S_U1}, 28
    s_cselect_b32 s{T0}, 28, 0
    s_sub_u32 s{S_U1}, s{S_U1}, s{T0}
    s_mul_i32 s{S_E0}, s{S_H}, 56
    ''')
    a(f'''
    v_lshrrev_b32 v{t[0]}, 2, v{V_LANE}
    v_mul_u32_u24 v{t[0]}, 2688, v{t[0]}
    v_and_b32 v{t[3]}, 3, v{V_LANE}
    v_lshl_add_u32 v{vq}, v{t[3]}, 4, v{t[0]}
    v_lshrrev_b32 v{t[0]}, 1, v{n31}
    v_and_b32 v{t[0]}, 7, v{t[0]}
    v_lshlrev_b32 v{t[1]}, 7, v{n31}
    v_add_u32 v{t[1]}, s{LX}, v{t[1]}
    v_bfe_u32 v{t[2]}, v{V_LANE}, 4, 1
    v_lshlrev_b32 v{t[2]}, 5, v{t[2]}
    v_lshl_add_u32 v{t[2]}, v{t[3]}, 3, v{t[2]}       ; cg*32 + c4*8
    v_bfe_u32 v{t[3]}, v{V_LANE}, 2, 2                ; r
    v_lshl_add_u32 v{t[5]}, v{hf}, 3, v{t[3]}         ; 8hf + r
    v_lshl_add_u32 v{t[6]}, v{t[5]}, 6, v{t[2]}
    v_bfe_u32 v{t[3]}, v{V_LANE}, 3, 1
    v_lshlrev_b32 v{t[3]}, 6, v{t[3]}                 ; 64*bit
    v_add_u32 v{t[4]}, 56, v{t[2]}
    v_xor_b32 v{t[4]}, v{t[4]}, v{t[3]}
    v_xor_b32 v{t[2]}, v{t[2]}, v{t[3]}
    v_sub_u32 v{dB}, v{t[4]}, v{t[2]}
    v_lshl_add_u32 v{t[2]}, v{t[5]}, 7, v{t[2]}
    v_add_u32 v{t[2]}, {WR}, v{t[2]}
    ''')
    AQ = t[6]
    for n in range(4):
        a(f'''
        s_add_u32 s{T0}, s{S_W}, {n}
        s_and_b32 s{T0}, s{T0}, 3
        s_lshl_b32 s{T1}, s{T0}, 1
        v_add_u32 v{t[4]}, s{T1}, v{hf}
        v_xor_b32 v{t[4]}, v{t[4]}, v{t[0]}
        v_lshl_add_u32 v{ax[n]}, v{t[4]}, 4, v{t[1]}
        s_lshl_b32 s{T1}, s{T0}, 11
        v_add_u32 v{aw[n]}, s{T1}, v{t[2]}
        v_add_u32 v{ab[n]}, v{dB}, v{aw[n]}
        ''')
    for r in sm + sq + cs: a(f'v_mov_b32 v{r}, 0')
    a(f's_mov_b32 s{S_ONES}, 0x3f803f80')
    PA = t[0]; CA = t[1]; CR = t[2]; PB = vx[0]
    if opt('spre', 1):
        ssrd(a, SRD_A, 512, P_W1, P_W3, W1_BYTES, W1_BYTES, 3200, T1, T2)
    visit(a, 0)
    a.stamp('A_issued')
    ONE = PK; assert ONE % 2 == 0
    for i in range(4): a(f'v_mov_b32 v{ONE+i}, s{S_ONES}')
    steps = list(range(20)) + [20, 24, 21, 22, 23, 25, 26, 27]
    def reads(p_):
        s_ = steps[p_]; c, n = divmod(s_, 4); b = p_ % NWF; off = (c if c < 5 else c - 5) * 8192
        return [f'ds_read_b64_tr_b16 {vr(WF[b][0]+2*u,2)}, v{aw[n]} offset:{off + u*512}' for u in range(2)] + \
               [f'ds_read_b64_tr_b16 {vr(WF[b][1]+2*u,2)}, v{ab[n]} offset:{off + u*512}' for u in range(2)]
    hs = lambda x, tt: [f'v_mov_b32 v{tt}, v{x}', f'v_permlane32_swap_b32 v{x}, v{tt}', f'v_add_f32 v{x}, v{x}, v{tt}']
    CS = [accQ, T16]
    def dots(c, side):
        for n in range(4):
            x = X[4*c+n]
            for i in range(4):
                a(f'v_dot2c_f32_bf16 v{sm[i&1]}, s{S_ONES}, v{x+i}')
                a(f'v_dot2c_f32_bf16 v{sq[i&1]}, v{x+i}, v{x+i}')
            side()
    def xread(c):
        for n in range(4): a(f'ds_read_b128 {vr(X[4*c+n],4)}, v{ax[n]} offset:{c*4096}')
    a.vmwait('x0', lgkm=0)
    a.stamp('A_c0'); a(f's_add_u32 s{S_TAG}, s{S_TAG}, 1')
    xread(0)
    if opt('prew', 1): prew()
    a(f's_bitcmp1_b32 s{S_H}, 0\ns_cbranch_scc1 LAV')
    vm0 = list(a.vm)
    for typ in range(2):
        if typ == 1:
            a.label('LAV'); a.vm = list(vm0)
        NQE = 7
        def mf(p_, j):
            x = X[steps[p_]]; b = p_ % NWF
            A_, B_ = (WF[b][j], x) if typ == 0 else (x, WF[b][j])
            return f'{MFMA} {vr(ACC[j],16)}, {vr(A_,4)}, {vr(B_,4)}, {vr(ACC[j],16) if p_ else 0}'
        def mlist(p_):
            M = [mf(p_, 0), mf(p_, 1)]
            if steps[p_] % 4 == 0:
                M = [f'{MFMA} {vr(CS[j],16)}, {vr(ONE,4)}, {vr(WF[p_ % NWF][j],4)}, {vr(CS[j],16) if p_ else 0}' for j in range(2)] + M
            return M
        q_dma = []
        for c in range(NPRE, 5): q_dma += x_items(c)
        q_dma += w_items(2) + x_items(5) + x_items(6) + w_items(3) + w_items(4)
        def side1(k=opt('dmaper', 2)):
            for _ in range(k):
                if q_dma: put([q_dma.pop(0)])
        side1(4)
        for c in range(1, 7):
            while any(isinstance(x, tuple) and x[2] == f'x{c}' for it in q_dma for x in it): put([q_dma.pop(0)])
            a.vmwait(f'x{c}'); a.stamp(f'G_x{c}')
            xread(c)
            if c == 1:
                a('s_barrier')
                for x in reads(0) + reads(1): a(x)
                a('s_waitcnt lgkmcnt(12)')
            elif c == 6:
                put(q_dma); q_dma = []
                a('s_waitcnt lgkmcnt(0)\ns_barrier')
                a.stamp('A_x')
                for x in reads(8) + reads(9): a(x)
                put(w_items(5))
            else:
                a('s_waitcnt lgkmcnt(4)')
            dots(c - 1, side1)
            if c in (1, 2):
                for p_ in range(4 * (c - 1), 4 * c):
                    a('s_waitcnt lgkmcnt(4)' if p_ < 7 else 's_waitcnt lgkmcnt(0)')
                    rd = reads(p_ + 2) if p_ + 2 < 8 else []
                    M = mlist(p_)
                    for k_, m_ in enumerate(M):
                        a(m_)
                        if k_ >= len(M) - 2:
                            for y in (rd[:2] if k_ == len(M) - 2 else rd[2:]): a(y)
                        side1(1)
        dots(6, lambda: None)
        q2 = w_items(6) + dmaq_items()
        ex = [f'v_add_f32 v{sm[0]}, v{sm[0]}, v{sm[1]}', f'v_add_f32 v{sq[0]}, v{sq[0]}, v{sq[1]}'] + hs(sm[0], t[3]) + hs(sq[0], t[4]) + [
              f'v_mul_f32 v{mu}, {fx(1.0/448)}, v{sm[0]}', f'v_mul_f32 v{t[3]}, {fx(1.0/448)}, v{sq[0]}',
              f'v_fma_f32 v{t[3]}, -v{mu}, v{mu}, v{t[3]}', f'v_max_f32 v{t[3]}, 0, v{t[3]}', f'v_add_f32 v{t[3]}, {fx(1e-5)}, v{t[3]}',
              f'v_rsq_f32 v{rs}, v{t[3]}', f'v_lshlrev_b32 v{t[4]}, 2, v{n31}',
              f's_lshl_b32 s{T2}, s{S_W}, 9', f's_add_u32 s{T2}, s{T2}, {PRV}',
              f'v_add_u32 v{PA}, s{T2}, v{t[4]}', f'v_lshlrev_b32 v{PB}, 4, v{hf}', f'v_add_u32 v{PB}, s{T2}, v{PB}',
              f's_mul_i32 s{T2}, s{S_W}, 384', f's_add_u32 s{T2}, s{T2}, {CSP}', f'v_add_u32 v{CA}, s{T2}, v{t[4]}',
              f'v_mul_u32_u24 v{CR}, 768, v{hf}', f'v_add_u32 v{CR}, v{CR}, v{t[4]}', f'v_add_u32 v{CR}, {CSP}, v{CR}',
              f'v_mul_f32 v{rq}, {fx(28**-0.5 * math.log2(math.e))}, v{rs}']
        for p_ in range(8, 28):
            if p_ == 10:
                a.vmwait('w4', lgkm=0); a('s_barrier'); a.stamp('G_w4')
            elif p_ == 18:
                while any(isinstance(x, tuple) and x[0] == 'vm' and x[2] == 'w6' for it in q2 for x in it): put([q2.pop(0)])
                a.vmwait('w6', lgkm=0); a('s_barrier'); a.stamp('G_w6')
                for n in range(4): a(f'v_subrev_u32 v{aw[n]}, {WR}, v{aw[n]}\nv_subrev_u32 v{ab[n]}, {WR}, v{ab[n]}')
            elif p_ <= 22: a('s_waitcnt lgkmcnt(4)')
            elif p_ == 23: pass
            rd = reads(p_ + 2) if p_ + 2 < 28 and p_ < 21 else []
            if p_ == 21: rd = reads(23) + reads(24)
            M = mlist(p_)
            if p_ == 22:
                assert not ex
                ex = [f'ds_write_b32 v{CA}, v{CS[0]} offset:128', f'ds_write_b32 v{CA}, v{CS[1]} offset:256']
                if typ == 1: ex += [f'ds_write_b32 v{PA}, v{mu} offset:256', f'ds_write_b32 v{PA}, v{rs} offset:384']
                ex += reads(25) + ['s_waitcnt lgkmcnt(0)', 's_barrier'] + reads(26) + reads(27)
                for j in (1, 2): ex += [f'ds_read_b32 v{cs[j]}, v{CR} offset:{j*128}', f'ds_read_b32 v{t[3+j]}, v{CR} offset:{384 + j*128}']
                if typ == 1:
                    for q in range(4): ex += [f'ds_read_b128 {vr(T16+4*q,4)}, v{PB} offset:{256 + 32*q}', f'ds_read_b128 {vr(U16+4*q,4)}, v{PB} offset:{384 + 32*q}']
                    ex += ['s_waitcnt lgkmcnt(8)']
                else: ex += ['s_waitcnt lgkmcnt(0)']
                tail = [f'v_add_f32 v{cs[j]}, v{cs[j]}, v{t[3+j]}' for j in (1, 2)] + hs(cs[1], t[3]) + hs(cs[2], t[4])
                if typ == 0:
                    tail += [f'ds_write_b32 v{PA}, v{cs[1]}', f'ds_write_b32 v{PA}, v{cs[2]} offset:128']
                    tail += [f'ds_read_b128 {vr(T16+4*q,4)}, v{PB} offset:{32*q}' for q in range(4)]
                    tail += [f'ds_read_b128 {vr(U16+4*q,4)}, v{PB} offset:{128 + 32*q}' for q in range(4)]
                    tail += [f'v_cmp_lt_u32 vcc, 31, v{V_LANE}']
                else:
                    tail += [f'v_cmp_eq_u32 vcc, 28, v{n31}', f'v_mov_b32 v{t[7]}, s{S_ONES}', f'v_cndmask_b32 v{t[7]}, 0, v{t[7]}, vcc', f'v_cmp_lt_u32 vcc, 27, v{n31}']
                tail += [f's_lshl_b32 s{T0}, s{S_TB}, 2', f's_add_u32 s{T0}, s{T0}, s{S_W}', f's_and_b32 s{T1}, s{S_H}, 14', f's_lshl_b32 s{T1}, s{T1}, 6',
                         f's_add_u32 s{T0}, s{T0}, s{T1}', f's_lshl_b32 s{T0}, s{T0}, 12', f's_add_u32 s{T1}, s{T0}, {64*4096}']
            if p_ == 26:
                for x in ex: a(x)
                ex = tail
            for k_, m_ in enumerate(M):
                a(m_)
                if k_ >= len(M) - 2:
                    h_ = (len(rd) + 1) // 2
                    for y in (rd[:h_] if k_ == len(M) - 2 else rd[h_:]): a(y)
                if p_ < 22:
                    for x in ex[:3]: a(x)
                    ex = ex[3:]
                    if q2 and k_ == len(M) - 1 and (len(q2) > 7 or p_ >= opt('wq0', 10)): put([q2.pop(0)])
                else:
                    lim = {22: 4, 23: 4, 24: 100, 25: 100, 26: 8, 27: 8}[p_]
                    if p_ in (24, 25):
                        lim = 6
                    for x in ex[:lim]: a(x)
                    ex = ex[lim:]
        for x in ex: a(x)
        assert not q2
        a.stamp('A_kvloop')
        NEG1 = 'op_sel_hi:[1,0,1] neg_lo:[0,1,0] neg_hi:[0,1,0]'
        for j in range(2):
            A_ = ACC[j]; P_ = WF[j][0]
            if typ == 0:
                a(f's_waitcnt lgkmcnt({4*(1-j)})')
                C_ = (T16, U16)[j]
                for r in range(0, 16, 2): a(f'v_pk_fma_f32 {vr(A_+r,2)}, {vr(C_+r,2)}, {vr(mu,2)}, {vr(A_+r,2)} {NEG1}')
                for r in range(0, 16, 2): a(f'v_pk_mul_f32 {vr(A_+r,2)}, {vr(A_+r,2)}, {vr(rs,2)} op_sel_hi:[1,0]')
                for i in range(8): a(f'v_cvt_pk_bf16_f32 v{P_+i}, v{A_+2*i}, v{A_+2*i+1}')
                if j == 0: a(f'v_mov_b32 v{t[3]}, s{S_ONES}\nv_mov_b32 v{t[4]}, 0x3f80')
                a(f'v_cndmask_b32 v{P_+6}, v{P_+6}, v{t[3]}, vcc\nv_cndmask_b32 v{P_+7}, v{P_+7}, v{t[4]}, vcc')
            else:
                if j == 0: a('s_waitcnt lgkmcnt(0)')
                for r in range(0, 16, 2): a(f'v_pk_fma_f32 {vr(A_+r,2)}, {vr(T16+r,2)}, {vr(cs[1+j],2)}, {vr(A_+r,2)} {NEG1}')
                for r in range(0, 16, 2): a(f'v_pk_mul_f32 {vr(A_+r,2)}, {vr(A_+r,2)}, {vr(U16+r,2)}')
                for i in range(8): a(f'v_cvt_pk_bf16_f32 v{P_+i}, v{A_+2*i}, v{A_+2*i+1}')
                for i in range(8): a(f'v_cndmask_b32 v{P_+i}, v{P_+i}, v{t[7]}, vcc')
            for u in range(2):
                a.vmem(f'buffer_store_dwordx4 {vr(P_+4*u,4)}, v{V_OFF}, {sr4(SRD_WS)}, s{(T0, T1)[j]} offen offset:{2048*typ + 1024*u} sc1', 'stA')
        if typ == 0: a('s_branch LAQ')
    a.label('LAQ')
    a.stamp('A_kvst')
    aq = aw
    for n in range(4):
        a(f'''
        s_add_u32 s{T0}, s{S_W}, {n}
        s_and_b32 s{T0}, s{T0}, 3
        s_lshl_b32 s{T0}, s{T0}, 10
        s_add_u32 s{T0}, s{T0}, {WQ}
        v_add_u32 v{aq[n]}, s{T0}, v{AQ}
        ''')
    a(f'''
    s_lshr_b32 s{T1}, s{S_H}, 1
    s_lshl_b32 s{T1}, s{T1}, 2
    s_add_u32 s{T1}, s{T1}, s{S_W}
    s_lshl_b32 s{T1}, s{T1}, 12
    s_add_u32 s{T5}, s{T1}, {FL_A}
    s_and_b32 s{T1}, s{S_H}, 1
    s_lshl_b32 s{T1}, s{T1}, 4
    s_add_u32 s{T1}, s{T1}, s{S_TB}
    s_lshl_b32 s{T1}, s{T1}, 7
    s_add_u32 s{T1}, s{T5}, s{T1}
    ''')
    def publish():
        a.vmwait('stA'); flag_store(a, T1, t[3]); a.stamp('A_flag')
    FAQ = opt('fAq', 7)
    for i, it in enumerate(dmaq_items()):
        if i >= NQE:
            for x in it: a.emit(x)
        if i == FAQ: publish()
    a.vmwait('wq'); a('s_barrier')
    a.stamp('A_wq')
    QB = [ACC[0] + 4*i for i in range(8)]
    NQ = 8
    qs = [4*c for c in range(7)] + [4*c + n for c in range(7) for n in (1, 2, 3)]
    def rdq(p_):
        c, n = divmod(qs[p_], 4)
        return [f'ds_read_b64_tr_b16 {vr(QB[p_ % NQ]+2*u,2)}, v{aq[n]} offset:{c*4096 + u*256}' for u in range(2)]
    AH = 5
    for p_ in range(AH):
        for x in rdq(p_): a(x)
    ex = []
    extra = 0
    for p_ in range(28):
        if p_ < 9 or p_ > 16:
            a(f's_waitcnt lgkmcnt({2 * (min(28, p_ + AH) - p_ - 1)})')
        else:
            a('s_waitcnt lgkmcnt(4)')
        if p_ < 7: a(f'{MFMA} {vr(T16,16)}, {vr(ONE,4)}, {vr(QB[p_ % NQ],4)}, {vr(T16,16) if p_ else 0}')
        a(f'{MFMA} {vr(accQ,16)}, {vr(QB[p_ % NQ],4)}, {vr(X[qs[p_]],4)}, {vr(accQ,16) if p_ else 0}')
        if p_ + AH < 28:
            for x in rdq(p_ + AH): a(x)
        if p_ == 9: a(f'ds_write_b32 v{CA}, v{T16}')
        if p_ == 11: a(f's_waitcnt lgkmcnt(4)\ns_barrier\nds_read_b32 v{cs[0]}, v{CR}\nds_read_b32 v{t[4]}, v{CR} offset:384')
        if p_ == 14:
            for x in [f'v_add_f32 v{cs[0]}, v{cs[0]}, v{t[4]}'] + hs(cs[0], t[4]) + [f'ds_write_b32 v{PA}, v{cs[0]}']: a(x)
        if p_ == 15:
            for q in range(4): a(f'ds_read_b128 {vr(T16+4*q,4)}, v{PB} offset:{32*q}')
        if p_ == opt('fAs', 15) and FAQ > 6: publish()
    a(f'v_cmp_lt_u32 vcc, 31, v{V_LANE}')
    if opt('pollA', 1) == 2: poll_issue(a, T5, V_FL, 32, R['t'][0])
    a('s_waitcnt lgkmcnt(0)')
    NEG1 = 'op_sel_hi:[1,0,1] neg_lo:[0,1,0] neg_hi:[0,1,0]'
    for r in range(0, 16, 2): a(f'v_pk_fma_f32 {vr(accQ+r,2)}, {vr(T16+r,2)}, {vr(mu,2)}, {vr(accQ+r,2)} {NEG1}')
    for r in range(0, 16, 2): a(f'v_pk_mul_f32 {vr(accQ+r,2)}, {vr(accQ+r,2)}, {vr(rq,2)} op_sel_hi:[1,0]')
    for i in range(8): a(f'v_cvt_pk_bf16_f32 v{Q0+i}, v{accQ+2*i}, v{accQ+2*i+1}')
    for i in (6, 7): a(f'v_cndmask_b32_e64 v{Q0+i}, v{Q0+i}, 0, vcc')
    a.stamp('A_q')

def w13_setup(a, S13, L13):
    a(f'''
    s_cmp_lt_u32 s{S_W}, 2
    s_cselect_b32 s{SRD_B}, s{P_W1}, s{P_W3}
    s_cselect_b32 s{SRD_B+1}, s{P_W1+1}, s{P_W3+1}
    s_mov_b32 s{SRD_B+2}, {W1_BYTES}
    s_mov_b32 s{SRD_B+3}, 0x20000
    s_and_b32 s{T0}, s{S_W}, 1
    s_mul_i32 s{T0}, s{T0}, 7
    s_add_u32 s{T0}, s{T0}, s{S_R14}
    s_sub_u32 s{S_RG}, s{T0}, 14
    s_min_u32 s{S_RG}, s{S_RG}, s{T0}
    s_mul_i32 s{S_RG}, s{S_RG}, {32*3584}
    s_mul_i32 s{S13}, s{S_FS}, 224
    s_mul_i32 s{L13}, s{S_W}, 14336
    ''')

def rg_next():
    return [f's_add_u32 s{S_RG}, s{S_RG}, {32*3584}', f's_sub_u32 s{T0}, s{S_RG}, {14*32*3584}', f's_min_u32 s{S_RG}, s{S_RG}, s{T0}']

def pair_dma(S13, L13, slot, col, i, tag):
    return [f's_add_u32 m0, s{L13}, {slot*PAIR + i*1024}',
            f's_add_u32 s{T0}, s{S13}, s{S_RG}'] + ([f's_add_u32 s{T0}, s{T0}, {16*3584}'] if i & 1 else []) + \
           [('vm', f'buffer_load_dwordx4 v{V_P13}, {sr4(SRD_B)}, s{T0} offen lds', tag)] + (rg_next() if i & 1 else [])

def alloc_b():
    va = VA(4, 204)
    KV = [va(16) for _ in range(3)] + ([WOV] if opt('nkv', 4) == 4 else [])
    Q = [va(8) for _ in range(4)]
    O = [va(16) for _ in range(4)]
    S = [va(16), va(16)]
    P = [va(8), va(8)]
    t = [va() for _ in range(8)]
    v5 = 215 + 8
    return dict(KV=KV, Q=Q, O=O, S=S, P=P, t=t, v5=v5)

def phase_b(a, R, stg):
    KV, Q, O, S, P, t, v5 = (R[k] for k in ('KV', 'Q', 'O', 'S', 'P', 't', 'v5'))
    QX = R['QX']
    S13, L13, SKV, SB = T3, T4, T6, T2
    qa = t[4:8]
    MA = [240, 241, 242, 243]; VKV = 244; VP2 = 245; VX = 246
    a(f'''
    s_lshl_b32 s{SKV}, s{S_H}, 6
    s_add_u32 s{SKV}, s{SKV}, s{S_W}
    s_lshl_b32 s{SKV}, s{SKV}, 12
    v_add_u32 v{VKV}, s{SKV}, v{V_OFF}
    s_lshl_b32 s{SB}, s{S_TB}, 14
    ''')
    if opt('pollA', 1) == 1:
        visit(a, 1)
        if opt('dlyA', 3): a(f"s_sleep {opt('dlyA', 3)}")
        poll_issue(a, T5, V_FL, 32, t[0])
    a.stamp('B_pre')
    poll_check(a, T5, V_FL, 32, t[0])
    a.stamp('B_poll')
    def kvload(buf):
        return [('vm', f'buffer_load_dwordx4 {vr(KV[buf]+4*j,4)}, v{VKV}, {sr4(SRD_WS)}, s{SB} offen offset:{1024*j} sc1', f'k{buf}' if j < 2 else f'kv{buf}') for j in range(4)] + \
               [f's_add_u32 s{SB}, s{SB}, 0x4000', f's_and_b32 s{SB}, s{SB}, 0x3c000']
    NKV = len(KV)
    NK0 = opt('nk0', 1)
    for b in range(NK0):
        for x in kvload(b): a.emit(x)
    for lq in range(4):
        a(f'''
        s_add_u32 s{T0}, s{S_W}, {lq}
        s_and_b32 s{T0}, s{T0}, 3
        s_lshl_b32 s{T0}, s{T0}, 11
        s_add_u32 s{T0}, s{T0}, {QX}
        v_add_u32 v{qa[lq]}, s{T0}, v{V_OFF}
        ''')
    a(f'ds_write_b128 v{qa[0]}, {vr(Q[0],4)}')
    stg.src_setup(t[1], t[2], t[3])
    w13_setup(a, S13, L13)
    a(f'''
    s_lshl_b32 s{T0}, s{S_E0}, 5
    s_add_u32 s{S13}, s{S13}, s{T0}
    s_and_b32 s{T0}, s{S_W}, 2
    v_and_b32 v{t[1]}, 3, v{V_LANE}
    v_xor_b32 v{t[1]}, s{T0}, v{t[1]}
    v_lshrrev_b32 v{t[2]}, 2, v{V_LANE}
    v_mul_u32_u24 v{t[2]}, 3584, v{t[2]}
    v_lshl_add_u32 v{V_P13}, v{t[1]}, 4, v{t[2]}
    s_lshl_b32 s{T0}, s{T0}, 1
    v_lshrrev_b32 v{t[1]}, 1, v{V_LANE}
    v_xor_b32 v{t[1]}, s{T0}, v{t[1]}
    v_mul_u32_u24 v{t[1]}, 3584, v{t[1]}
    v_and_b32 v{t[2]}, 1, v{V_LANE}
    v_lshl_add_u32 v{v5}, v{t[2]}, 4, v{t[1]}
    v_add_u32 v{VP2}, {16*3584 - 1024}, v{V_P13}
    s_waitcnt lgkmcnt(0)
    s_barrier
    ''')
    for lq in range(4):
        a(f'''
        s_add_u32 s{T0}, s{S_W}, {lq}
        s_and_b32 s{T0}, s{T0}, 3
        s_mul_i32 s{T0}, s{T0}, 12288
        s_add_u32 s{T0}, s{T0}, {SCR}
        v_add_u32 v{MA[lq]}, s{T0}, v{V_OFF}
        ''')
    a(f'''
    s_and_b32 s{SKV}, s{S_W}, 1
    s_lshl_b32 s{T0}, s{S_RB}, 1
    s_add_u32 s{SKV}, s{SKV}, s{T0}
    s_mul_i32 s{SKV}, s{SKV}, {32*896}
    s_lshr_b32 s{T0}, s{S_W}, 1
    s_lshl_b32 s{T0}, s{T0}, 6
    s_add_u32 s{SKV}, s{SKV}, s{T0}
    s_lshl_b32 s{T0}, s{S_CB}, 7
    s_add_u32 s{SKV}, s{SKV}, s{T0}
    v_and_b32 v{VX}, 31, v{V_LANE}
    v_lshrrev_b32 v{t[1]}, 5, v{V_LANE}
    v_mul_u32_u24 v{VX}, 896, v{VX}
    v_lshl_add_u32 v{VX}, v{t[1]}, 4, v{VX}
    ''')
    for lq in range(1, 4): a(f'ds_read_b128 {vr(Q[lq],4)}, v{qa[lq]}')
    spre = []; spre2 = []
    if opt('spre', 1):
        ssrd(a, SRD_WQKV, 784, P_W2, P_WO, W2_BYTES, WO_BYTES, 2048, S_U0, S_U1)
        spre = [[sld(SRD_A, 128*i)] for i in range(opt('spreA', 0), 25)]
        spre2 = [[sld(SRD_WQKV, 128*i)] for i in range(16)]
        if opt('spre0', 0):
            a('s_waitcnt lgkmcnt(0)')
            for _ in range(opt('spre0', 0)): a(spre.pop(0)[0])
    NK1 = opt('nk1', 2)
    for b in range(NK0, NK1):
        for x in kvload(b): a.emit(x)
    s_kv = []
    for T in range(NK1, NKV):
        s_kv += [(opt('kvS', 2) * (6 * (T - NK1) + k_), x) for k_, x in enumerate(kvload(T))]
    for T in range(NKV, 16):
        s_kv += [(16 * (T - NKV + 1) + 3 + opt('kvS', 2) * k_, x) for k_, x in enumerate(kvload(T % NKV))]
    s_w = []; wp = [opt('preP', 70)]
    for g in range(7):
        it = (rg_next() if g else []) + [f's_add_u32 s{T0}, s{S13}, s{S_RG}']
        for sl in range(2):
            it += [f's_add_u32 m0, s{L13}, {sl*PAIR + 2*g*1024 - 64*sl}',
                   ('vm', f'buffer_load_dwordx4 v{V_P13}, {sr4(SRD_B)}, s{T0} offen offset:{64*sl} lds', 'w13'),
                   ('vm', f'buffer_load_dwordx4 v{VP2}, {sr4(SRD_B)}, s{T0} offen offset:{1024 + 64*sl} lds', 'w13')]
        it += [('vm', f'buffer_load_dwordx4 {vr(RAW5+4*g,4,"a")}, v{v5}, {sr4(SRD_B)}, s{T0} offen offset:128', 'w13')]
        for x in it:
            if isinstance(x, tuple):
                s_w.append((wp[0], x)); wp[0] += opt('preS', 5)
            else: s_w.append((wp[0] - 4, x))
    s_s = [(4 + opt('sS', 4) * k_, x[0]) for k_, x in enumerate(spre + spre2)]
    s_x = [(opt('xrP', 40), ('vm', f'buffer_load_dwordx4 {vr(XRES,4)}, v{VX}, {sr4(SRD_X)}, s{SKV} offen', 'xr')),
           (opt('xrP', 40) + 6, ('vm', f'buffer_load_dwordx4 {vr(XRES+4,4)}, v{VX}, {sr4(SRD_X)}, s{SKV} offen offset:32', 'xr'))]
    if opt('noW', 0): s_w = []
    if opt('noS', 0): s_s = []
    if opt('noKV', 0): s_kv = []
    streams = [s_kv, s_w, s_x, s_s]
    a.vmwait('k0')
    a(f'{MFMA} {vr(S[0],16)}, {vr(KV[0],4)}, {vr(Q[0],4)}, 0')
    a(f'{MFMA} {vr(S[0],16)}, {vr(KV[0]+4,4)}, {vr(Q[0]+4,4)}, {vr(S[0],16)}')
    a(f'v_cmp_lt_u32 vcc, 31, v{V_LANE}')
    a(f'v_max3_f32 v{t[0]}, v{S[0]}, v{S[0]+1}, v{S[0]+2}\nv_max3_f32 v{t[1]}, v{S[0]+3}, v{S[0]+4}, v{S[0]+5}')
    for r in range(6, 14, 4):
        a(f'v_max3_f32 v{t[0]}, v{t[0]}, v{S[0]+r}, v{S[0]+r+1}\nv_max3_f32 v{t[1]}, v{t[1]}, v{S[0]+r+2}, v{S[0]+r+3}')
    a(f'''
    v_max3_f32 v{t[0]}, v{t[0]}, v{S[0]+14}, v{S[0]+15}
    v_max_f32 v{t[0]}, v{t[0]}, v{t[1]}
    v_mov_b32 v{t[1]}, v{t[0]}
    v_permlane32_swap_b32 v{t[0]}, v{t[1]}
    v_max_f32 v{t[0]}, v{t[0]}, v{t[1]}
    v_cvt_pk_bf16_f32 v{t[0]}, -v{t[0]}, 0
    v_cndmask_b32 v{Q[0]+6}, v{Q[0]+6}, v{t[0]}, vcc
    ds_write_b128 v{qa[0]}, {vr(Q[0]+4,4)} offset:1024
    v_lshlrev_b32 v{t[2]}, 16, v{t[0]}
    ''')
    assert t[2] % 2 == 0
    for r in range(0, 16, 2): a(f'v_pk_add_f32 {vr(S[0]+r,2)}, {vr(S[0]+r,2)}, {vr(t[2],2)} op_sel_hi:[1,0]')
    if not opt('xin', 1):
        a('s_waitcnt lgkmcnt(0)\ns_barrier')
        for lq in range(1, 4): a(f'ds_read_b128 {vr(Q[lq]+4,4)}, v{qa[lq]} offset:1024')
    if opt('stag', 0):
        Ls = a.newlabel('stag')
        for w in range(1, 4):
            a(f's_cmp_lt_u32 s{S_W}, {w}\ns_cbranch_scc1 {Ls}')
            for _ in range(opt('stag', 0)): a('s_nop 15')
        a.label(Ls)
    a.stamp('B_first')
    def slot(T, q):
        cb = q & 1; nb = cb ^ 1
        kvn, nq = (T % NKV, q + 1) if q < 3 else ((T + 1) % NKV, 0)
        kvp, pq = (T % NKV, q - 1) if q else ((T - 1) % NKV, 3)
        no_qk = (T == 15 and q == 3); no_pv = (T == 0 and q == 0); first = (T == 0 or (T == 1 and q == 0))
        M = [None if no_qk else f'{MFMA} {vr(S[nb],16)}, {vr(KV[kvn],4)}, {vr(Q[nq],4)}, 0',
             None if no_qk else f'{MFMA} {vr(S[nb],16)}, {vr(KV[kvn]+4,4)}, {vr(Q[nq]+4,4)}, {vr(S[nb],16)}',
             None if no_pv else f'{MFMA} {vr(O[pq],16)}, {vr(KV[kvp]+8,4)}, {vr(P[nb],4)}, {0 if first else vr(O[pq],16)}',
             None if no_pv else f'{MFMA} {vr(O[pq],16)}, {vr(KV[kvp]+12,4)}, {vr(P[nb]+4,4)}, {vr(O[pq],16)}']
        e = lambda r: f'v_exp_f32 v{S[cb]+r}, v{S[cb]+r}'
        c = lambda j: f'v_cvt_pk_bf16_f32 v{P[cb]+j}, v{S[cb]+2*j}, v{S[cb]+2*j+1}'
        seq = [M[0], e(0), e(1), e(2), c(0), e(3), e(4), M[1], c(1), e(5), e(6), c(2), e(7), e(8),
               M[2], c(3), e(9), e(10), c(4), e(11), e(12), M[3], c(5), e(13), e(14), e(15), c(6), c(7)]
        if T == 0 and q == 0:
            if opt('xin', 1):
                seq = [M[0], e(0), e(1), e(2), c(0), e(3), 's_waitcnt lgkmcnt(0)', 's_barrier'] + \
                      [f'ds_read_b128 {vr(Q[lq]+4,4)}, v{qa[lq]} offset:1024' for lq in range(1, 4)] + \
                      [None, e(4), c(1), e(5), e(6), c(2), e(7), e(8), c(3), None, 's_waitcnt lgkmcnt(2)', M[1], e(9), e(10), c(4), e(11), e(12),
                       c(5), e(13), e(14), e(15), c(6), 's_waitcnt lgkmcnt(0)', c(7), 's_nop 3']
            else: seq.insert(7, 's_waitcnt lgkmcnt(0)')
        for k_, x in enumerate(seq):
            if x is not None: a(x)
            if x is None or x.startswith('v_mfma'):
                mi = pos[0] & 3
                if mi == 3 and q == 2 and T < 15: a.vmwait(f'kv{(T+1)%NKV}')
                elif mi == 3 and q == 0 and T == 0: a.vmwait('kv0')
                else:
                    for st_ in streams:
                        if st_ and st_[0][0] <= pos[0]:
                            a.emit(st_.pop(0)[1]); break
                pos[0] += 1
    pos = [0]
    for T in range(16):
        for q in range(4): slot(T, q)
    assert not any(streams), [len(x) for x in streams]
    a(f'{MFMA} {vr(O[3],16)}, {vr(KV[15 % NKV]+8,4)}, {vr(P[1],4)}, {vr(O[3],16)}')
    a(f'{MFMA} {vr(O[3],16)}, {vr(KV[15 % NKV]+12,4)}, {vr(P[1]+4,4)}, {vr(O[3],16)}')
    a.stamp('B_loop')
    stg.queue(opt('hgM', 4))
    for lq in range(1, 4):
        for j in range(4):
            a(f'ds_write_b128 v{MA[lq]}, {vr(O[lq]+4*j,4)} offset:{(lq-1)*4096 + j*1024}'); stg.one()
    a(f'''
    s_lshl_b32 s{T0}, s{S_TB}, 2
    s_add_u32 s{T0}, s{T0}, s{S_W}
    s_lshl_b32 s{T0}, s{T0}, 4
    s_add_u32 s{T0}, s{T0}, s{S_H}
    s_lshl_b32 s{T5}, s{T0}, 7
    s_add_u32 s{T5}, s{T5}, {FL_B}
    s_lshl_b32 s{T0}, s{T0}, 11
    s_add_u32 s{T0}, s{T0}, {WS_O}
    v_mov_b32 v{t[4]}, {fx(2.0 ** (64 if not opt('forcefb', 0) else -60))}
    v_mov_b32 v{t[5]}, {fx(2.0 ** -64)}
    s_waitcnt lgkmcnt(0)
    s_barrier
    ''')
    for lq in range(1, 4):
        for j in range(4): a(f'ds_read_b128 {vr(O[lq]+4*j,4)}, v{MA[0]} offset:{(lq-1)*4096 + j*1024}')
    stg.flush()
    for lq in range(1, 4):
        a(f's_waitcnt lgkmcnt({4*(3-lq)})')
        for r in range(0, 16, 2): a(f'v_pk_add_f32 {vr(O[0]+r,2)}, {vr(O[0]+r,2)}, {vr(O[lq]+r,2)}')
    a(f'''
    v_mov_b32 v{t[0]}, v{O[0]+12}
    v_mov_b32 v{t[1]}, v{O[0]+12}
    v_permlane32_swap_b32 v{t[0]}, v{t[1]}
    v_med3_f32 v{t[3]}, v{t[1]}, v{t[4]}, v{t[5]}
    v_cmp_neq_f32 vcc, v{t[3]}, v{t[1]}
    v_rcp_f32 v{t[2]}, v{t[1]}
    s_cbranch_vccnz Lfb
    ''')
    a.label('Lfb_ret')
    a(f'v_cmp_lt_u32 vcc, 31, v{V_LANE}')
    for r in range(0, 16, 2): a(f'v_pk_mul_f32 {vr(O[0]+r,2)}, {vr(O[0]+r,2)}, {vr(t[2],2)} op_sel_hi:[1,0]')
    for j in range(8): a(f'v_cvt_pk_bf16_f32 v{P[0]+j}, v{O[0]+2*j}, v{O[0]+2*j+1}')
    for j in (6, 7): a(f'v_cndmask_b32_e64 v{P[0]+j}, v{P[0]+j}, 0, vcc')
    for j in range(2):
        a.vmem(f'buffer_store_dwordx4 {vr(P[0]+4*j,4)}, v{V_OFF}, {sr4(SRD_WS)}, s{T0} offen offset:{1024*j} sc1', 'stB')
    a.stamp('B_st'); a.stamp('H_st')


def fallback(a, R):
    KV, Q, O, S, P, t = R['KV'][0], R['Q'][0], R['O'][0], R['S'][0], R['P'][0], R['t']
    a.label('Lfb')
    a(f"""
    v_cmp_lt_u32 vcc, 31, v{V_LANE}
    s_lshl_b32 s{T1}, s{S_H}, 18
    s_mov_b32 s{T2}, 64
    v_mov_b32 v{t[0]}, 0xff7fffff
    v_cndmask_b32_e64 v{Q+6}, v{Q+6}, 0, vcc
    v_cndmask_b32_e64 v{Q+7}, v{Q+7}, 0, vcc
    """)
    a.label('Lfb1')
    a(f"""
    buffer_load_dwordx4 {vr(KV,4)}, v{V_OFF}, {sr4(SRD_WS)}, s{T1} offen sc1
    buffer_load_dwordx4 {vr(KV+4,4)}, v{V_OFF}, {sr4(SRD_WS)}, s{T1} offen offset:1024 sc1
    s_add_u32 s{T1}, s{T1}, 4096
    s_waitcnt vmcnt(0)
    {MFMA} {vr(S,16)}, {vr(KV,4)}, {vr(Q,4)}, 0
    {MFMA} {vr(S,16)}, {vr(KV+4,4)}, {vr(Q+4,4)}, {vr(S,16)}
    """)
    for r in range(0, 16, 2): a(f'v_max3_f32 v{t[0]}, v{t[0]}, v{S+r}, v{S+r+1}')
    a(f"""
    s_sub_u32 s{T2}, s{T2}, 1
    s_cmp_lg_u32 s{T2}, 0
    s_cbranch_scc1 Lfb1
    v_mov_b32 v{t[1]}, v{t[0]}
    v_permlane32_swap_b32 v{t[0]}, v{t[1]}
    v_max_f32 v{t[0]}, v{t[0]}, v{t[1]}
    v_cvt_pk_bf16_f32 v{t[1]}, -v{t[0]}, 0
    v_lshlrev_b32 v{t[2]}, 16, v{t[1]}
    v_sub_f32 v{t[0]}, -v{t[0]}, v{t[2]}
    v_cvt_pk_bf16_f32 v{t[2]}, v{t[0]}, 0
    v_lshlrev_b32 v{t[2]}, 16, v{t[2]}
    v_sub_f32 v{t[0]}, v{t[0]}, v{t[2]}
    v_or_b32 v{t[1]}, v{t[1]}, v{t[2]}
    v_cvt_pk_bf16_f32 v{t[0]}, v{t[0]}, 0
    v_cndmask_b32 v{Q+6}, v{Q+6}, v{t[1]}, vcc
    v_cndmask_b32 v{Q+7}, v{Q+7}, v{t[0]}, vcc
    s_lshl_b32 s{T1}, s{S_H}, 18
    s_mov_b32 s{T2}, 64
    """)
    for r in range(16): a(f'v_mov_b32 v{O+r}, 0')
    a.label('Lfb2')
    for j in range(4): a(f'buffer_load_dwordx4 {vr(KV+4*j,4)}, v{V_OFF}, {sr4(SRD_WS)}, s{T1} offen offset:{1024*j} sc1')
    a(f"""
    s_add_u32 s{T1}, s{T1}, 4096
    s_waitcnt vmcnt(0)
    {MFMA} {vr(S,16)}, {vr(KV,4)}, {vr(Q,4)}, 0
    {MFMA} {vr(S,16)}, {vr(KV+4,4)}, {vr(Q+4,4)}, {vr(S,16)}
    """)
    for r in range(16): a(f'v_exp_f32 v{S+r}, v{S+r}')
    for j in range(8): a(f'v_cvt_pk_bf16_f32 v{P+j}, v{S+2*j}, v{S+2*j+1}')
    a(f"""
    {MFMA} {vr(O,16)}, {vr(KV+8,4)}, {vr(P,4)}, {vr(O,16)}
    {MFMA} {vr(O,16)}, {vr(KV+12,4)}, {vr(P+4,4)}, {vr(O,16)}
    s_sub_u32 s{T2}, s{T2}, 1
    s_cmp_lg_u32 s{T2}, 0
    s_nop 7
    s_cbranch_scc1 Lfb2
    s_nop 7
    v_mov_b32 v{t[0]}, v{O+12}
    v_mov_b32 v{t[1]}, v{O+12}
    v_permlane32_swap_b32 v{t[0]}, v{t[1]}
    v_rcp_f32 v{t[2]}, v{t[1]}
    s_branch Lfb_ret
    """)

class Stager:
    def __init__(self, a): self.a = a; self.nl = 0; self.nt = 0; self.q = []
    def src_setup(self, t0, t1, t2):
        self.a(f'''
        v_lshrrev_b32 v{t0}, 3, v{V_LANE}
        v_lshrrev_b32 v{t1}, 1, v{V_LANE}
        v_and_b32 v{t1}, 4, v{t1}
        v_and_b32 v{t2}, 7, v{V_LANE}
        v_xor_b32 v{t1}, v{t1}, v{t2}
        v_mul_u32_u24 v{t0}, 1792, v{t0}
        v_lshl_add_u32 v{V_SRC}, v{t1}, 4, v{t0}
        ''')
    def setup(self, t0, t1, t2, vw):
        a = self.a; self.vw = vw
        a(f'''
        v_lshrrev_b32 v{t0}, 5, v{V_LANE}
        v_bfe_u32 v{t1}, v{V_LANE}, 2, 2
        v_lshl_add_u32 v{t0}, v{t0}, 2, v{t1}
        v_lshlrev_b32 v{t0}, 7, v{t0}
        v_bfe_u32 v{t1}, v{V_LANE}, 4, 1
        v_lshl_add_u32 v{t0}, v{t1}, 5, v{t0}
        v_and_b32 v{t1}, 3, v{V_LANE}
        v_lshl_add_u32 v{t0}, v{t1}, 3, v{t0}
        v_bfe_u32 v{t1}, v{V_LANE}, 3, 1
        s_lshr_b32 s{T0}, s{S_W}, 1
        v_xor_b32 v{t1}, s{T0}, v{t1}
        v_lshl_add_u32 v{t0}, v{t1}, 6, v{t0}
        s_lshl_b32 s{T0}, s{S_W}, 12
        s_add_u32 s{T0}, s{T0}, {SCR}
        v_add_u32 v{V_RD}, s{T0}, v{t0}
        v_xor_b32 v{V_RD+1}, 64, v{V_RD}
        v_lshrrev_b32 v{t0}, 3, v{V_LANE}
        v_lshlrev_b32 v{t0}, 7, v{t0}
        v_add3_u32 v{vw}, s{T0}, v{V_OFF}, v{t0}
        ''')
    def target_items(self, which):
        p, nb = (P_WO, WO_BYTES) if which == 'wo' else (P_W2, W2_BYTES)
        return [f's_mov_b32 s{SRD_A}, s{p}', f's_mov_b32 s{SRD_A+1}, s{p+1}', f's_mov_b32 s{SRD_A+2}, {nb}', f's_mov_b32 s{SRD_A+3}, 0x20000',
                f's_mul_i32 s{S_U0}, s{S_W}, {(112 if which == "wo" else 448)*896}', f's_lshl_b32 s{S_U1}, s{S_CB}, 7', f's_add_u32 s{S_U0}, s{S_U0}, s{S_U1}']
    @staticmethod
    def base(g):
        if g < 2: return ('a', 224 + 16 * g)
        if g < 4: return ('v', WOV + 16 * (g - 2))
        return ('a', 16 * (g - 4))
    @staticmethod
    def dest(g, s_, lc):
        p, b = Stager.base(g); return p, b + (s_ * 2 + lc) * 4
    def load_items(self):
        g = self.nl; self.nl += 1
        pre = self.target_items('wo') if g == 0 else (self.target_items('w2') if g == 4 else [])
        row0 = 28 * g if g < 4 else 32 * (g - 4)
        p, b = self.base(g)
        out = [pre] if pre else []
        for h_ in range(2):
            out.append([f's_add_u32 s{S_U1}, s{S_U0}, {(row0 + 16*h_)*896}'] +
                       [('vm', f'buffer_load_dwordx4 {vr(b+8*h_+4*i,4,p)}, v{V_SRC}, {sr4(SRD_A)}, s{S_U1} offen offset:{896*i}', f'hg{g}') for i in range(2)])
        return out
    def load(self):
        self.flush()
        for it in self.load_items():
            for x in it: self.a.emit(x)
    def queue(self, upto):
        while self.nl < upto:
            for it in self.load_items(): self.q += it
    def one(self):
        while self.q:
            x = self.q.pop(0); self.a.emit(x)
            if isinstance(x, tuple): break
    def flush(self):
        while self.q: self.one()
    def wr(self, u):
        a = self.a; g, s_ = divmod(u, 2); p, b = self.base(g)
        for i in range(2): a(f'ds_write_b128 v{self.vw}, {vr(b+8*s_+4*i,4,p)} offset:{2048*s_ + 128*i}')
    def rd(self, u):
        a = self.a; g, s_ = divmod(u, 2); p, b = self.base(g)
        for lc in range(2):
            for uu in range(2):
                a(f'ds_read_b64_tr_b16 {vr(b+(s_*2+lc)*4+2*uu,2,p)}, v{V_RD+lc} offset:{s_*2048 + uu*1024}')
    def trans(self):
        a = self.a; g = self.nt; self.nt += 1
        a.stamp(f'{"H" if g < 11 else "I"}_pre{g}')
        a.vmwait(f'hg{g}')
        if g in (0, 6): a.stamp(f'H_got{g}')
        for u in (2*g, 2*g + 1): self.wr(u)
        for u in (2*g, 2*g + 1): self.rd(u)
    def close(self): pass

def red_addr(a, t):
    for l in range(4):
        a(f's_xor_b32 s{T0}, s{S_W}, {l}\ns_mul_i32 s{T0}, s{T0}, 12288\ns_add_u32 s{T0}, s{T0}, {SCR}\nv_add_u32 v{t[l]}, s{T0}, v{V_OFF}')
def red_write(a, ACC, t, l, side=lambda: None):
    for j in range(4):
        a(f'ds_write_b128 v{t[l]}, {vr(ACC[l]+4*j,4)} offset:{(l-1)*4096 + j*1024}'); side()
def red_read(a, ACC, t, side=lambda: None):
    a('s_waitcnt lgkmcnt(0)\ns_barrier')
    for l in range(1, 4):
        for j in range(4): a(f'ds_read_b128 {vr(ACC[l]+4*j,4)}, v{t[0]} offset:{(l-1)*4096 + j*1024}')
    side()
    for l in range(1, 4):
        a(f's_waitcnt lgkmcnt({4*(3-l)})')
        for r in range(0, 16, 2): a(f'v_pk_add_f32 {vr(ACC[0]+r,2)}, {vr(ACC[0]+r,2)}, {vr(ACC[l]+r,2)}')

def put5(a, vt):
    a(f's_mul_i32 s{T0}, s{S_W}, 7168\ns_add_u32 s{T0}, s{T0}, {SINGLE}\nv_add_u32 v{vt}, s{T0}, v{V_OFF}')
    for g in range(7): a(f'ds_write_b128 v{vt}, {vr(RAW5+4*g,4,"a")} offset:{1024*g}')

def tile_ids(a, STT, SCT):
    a(f'''
    s_and_b32 s{STT}, s{S_W}, 1
    s_lshl_b32 s{T0}, s{S_RB}, 1
    s_add_u32 s{STT}, s{STT}, s{T0}
    s_lshr_b32 s{SCT}, s{S_W}, 1
    s_lshl_b32 s{T0}, s{S_CB}, 1
    s_add_u32 s{SCT}, s{SCT}, s{T0}
    ''')
def flag8_addr(a, vf, t0, t1, sdst, base):
    a(f'''
    v_lshrrev_b32 v{t0}, 2, v{V_LANE}
    v_lshlrev_b32 v{t0}, 11, v{t0}
    v_and_b32 v{t1}, 3, v{V_LANE}
    v_lshl_add_u32 v{vf}, v{t1}, 7, v{t0}
    s_lshl_b32 s{T0}, s{S_RB}, 3
    s_add_u32 s{T0}, s{T0}, s{S_W}
    s_lshl_b32 s{sdst}, s{T0}, 9
    s_add_u32 s{sdst}, s{sdst}, {base}
    ''')

def phase_c(a, R, stg):
    va = VA(4, 200)
    ACC = [va(16) for _ in range(4)]
    OF = [[va(4) for k in range(8)] for lt in range(2)]
    t = [va() for _ in range(8)]; vf = va(); vw = va(); vp = va()
    STT, SCT = T1, T2
    NB1 = opt('hgB', 7); NF = opt('hgBf', 0)
    for g in range(NF):
        if stg.nl < NB1: stg.load()
    stg.setup(t[0], t[1], t[2], vw)
    tile_ids(a, STT, SCT)
    for l in range(2):
        a(f'''
        s_xor_b32 s{T0}, s{STT}, {l}
        s_lshl_b32 s{T0}, s{T0}, 2
        s_add_u32 s{T0}, s{T0}, s{S_W}
        s_lshl_b32 s{T0}, s{T0}, 13
        s_add_u32 s{T3+l}, s{T0}, {WS_O}
        ''')
    for g in (0, 4):
        a(f'v_permlane32_swap_b32 v{XRES+g}, v{XRES+g+2}\nv_permlane32_swap_b32 v{XRES+g+1}, v{XRES+g+3}')
    for j in range(8):
        a(f'v_lshlrev_b32 v{ACC[0]+2*j}, 16, v{XRES+j}\nv_and_b32 v{ACC[0]+2*j+1}, 0xffff0000, v{XRES+j}')
    a('s_barrier')
    for _ in range(opt('trB0', 2)): stg.trans()
    a.vmwait('stB')
    flag_store(a, T5, t[3])
    a.stamp('C_flag'); a.stamp('H_flag')
    visit(a, 2)
    flag8_addr(a, vf, t[0], t[1], T5, FL_B)
    NT1 = NB1 - opt('trB', 1)
    for _ in range(opt('hgBg', 3)):
        if stg.nl < NB1: stg.load()
    while stg.nt < NT1:
        if stg.nt == NT1 - opt('pollB', 2): poll_issue(a, T5, vf, 8, vp)
        stg.trans()
        if stg.nl < NB1: stg.load()
    a.stamp('C_pre')
    poll_check(a, T5, vf, 8, vp)
    a.stamp('C_poll')
    def old_(k, l):
        if k == 4 and l == 0: a(f's_add_u32 s{T3}, s{T3}, 4096\ns_add_u32 s{T4}, s{T4}, 4096')
        a.vmem(f'buffer_load_dwordx4 {vr(OF[l][k],4)}, v{V_OFF}, {sr4(SRD_WS)}, s{T3+l} offen offset:{1024*(k&3)} sc1', f'o{k}')
    OLA = opt('ola', 6)
    oq = [(k, l) for k in range(8) for l in range(2)]
    for _ in range(2 * OLA): old_(*oq.pop(0))
    nfree = NHG
    while stg.nt < NB1: stg.trans()
    red_addr(a, t)
    a(f'''
    s_mul_i32 s{T6}, s{STT}, 14
    s_add_u32 s{T6}, s{T6}, s{SCT}
    s_lshl_b32 s{T5}, s{STT}, 4
    s_add_u32 s{T5}, s{T5}, s{SCT}
    s_lshl_b32 s{T5}, s{T5}, 7
    s_add_u32 s{T5}, s{T5}, {FL_C}
    s_waitcnt lgkmcnt(0)
    s_barrier
    ''')
    def mm(k, l):
        p, b = stg.dest(k >> 1, k & 1, l >> 1)
        a(f'{MFMA} {vr(ACC[l],16)}, {vr(b,4,p)}, {vr(OF[l & 1][k],4)}, {vr(ACC[l],16) if (k or l == 0) else 0}')
    KT = 5
    for k in range(KT):
        a.vmwait(f'o{k}')
        for l in range(4):
            mm(k, l)
            if oq and l & 1 == 0: old_(*oq.pop(0))
    assert not oq
    stg.queue(min(nfree, NB1 + opt('hgC0', 4)))
    for l in (1, 2, 3, 0):
        for k in range(KT, 8):
            if l == 1: a.vmwait(f'o{k}')
            mm(k, l)
        if l in (2, 3): red_write(a, ACC, t, l - 1, stg.one)
    a.stamp('C_mfma')
    red_write(a, ACC, t, 3, stg.one)
    red_read(a, ACC, t, stg.flush)
    for j in range(8): a(f'v_cvt_pk_bf16_f32 v{HKEEP+j}, v{ACC[0]+2*j}, v{ACC[0]+2*j+1}')
    a(f's_lshl_b32 s{T0}, s{T6}, 11\ns_add_u32 s{T0}, s{T0}, {WS_H}')
    for j in range(2):
        a.vmem(f'buffer_store_dwordx4 {vr(HKEEP+4*j,4)}, v{V_OFF}, {sr4(SRD_WS)}, s{T0} offen offset:{1024*j} sc1', 'stC')
    for i in range(4): a(f'v_mov_b32 v{t[4+i]}, 0')
    for j in range(8):
        a(f'v_dot2c_f32_bf16 v{t[4+(j&1)]}, s{S_ONES}, v{HKEEP+j}')
        a(f'v_dot2c_f32_bf16 v{t[6+(j&1)]}, v{HKEEP+j}, v{HKEEP+j}')
    a(f'''
    v_add_f32 v{t[4]}, v{t[4]}, v{t[5]}
    v_add_f32 v{t[6]}, v{t[6]}, v{t[7]}
    v_permlane32_swap_b32 v{t[4]}, v{t[6]}
    v_add_f32 v{t[4]}, v{t[4]}, v{t[6]}
    v_and_b32 v{t[5]}, 31, v{V_LANE}
    v_lshrrev_b32 v{t[6]}, 5, v{V_LANE}
    v_lshlrev_b32 v{t[6]}, 2, v{t[6]}
    v_lshl_add_u32 v{t[5]}, v{t[5]}, 3, v{t[6]}
    s_lshl_b32 s{T0}, s{T6}, 8
    s_add_u32 s{T0}, s{T0}, {WS_ST}
    ''')
    a.vmem(f'buffer_store_dword v{t[4]}, v{t[5]}, {sr4(SRD_WS)}, s{T0} offen sc1', 'stC')
    a.stamp('C_st')
    for _ in range(opt('hgCf', 0)):
        if stg.nl < nfree: stg.load()
    a('s_barrier')
    put5(a, t[0])
    for _ in range(opt('trC0', 1)): stg.trans()
    a.vmwait('stC')
    flag_store(a, T5, t[3])
    a.stamp('C_flag2')
    NTP = NHG - opt('trC', 0) - opt('pollC', 2)
    while stg.nl < NHG: stg.load()
    while stg.nt < NTP: stg.trans()

def phase_d(a, R, stg):
    va = VA(4, 212)
    X = [va(4) for _ in range(28)]
    ACC = [va(16) for _ in range(4)]
    HP = va(4)
    t = [va(2) for _ in range(4)]
    mu = va(2)
    vl = [va() for _ in range(6)]
    vp = va(); vs = va()
    W = [va(4) for _ in range(2)] + [WOV + 4*i for i in range(8)]
    NW = len(W)
    ST = ACC[3]
    E = [t[0], t[0]+1, t[1], t[1]+1, t[2], t[2]+1, t[3], t[3]+1]
    STT = T6; SH = T5; S13, L13 = T3, T4
    w13_setup(a, S13, L13)
    a(f'''
    s_lshl_b32 s{T0}, s{S_L0}, 5
    s_add_u32 s{S13}, s{S13}, s{T0}
    s_lshl_b32 s{STT}, s{S_TD}, 2
    s_add_u32 s{STT}, s{STT}, s{S_W}
    s_lshl_b32 s{T2}, s{STT}, 11
    s_add_u32 s{T2}, s{T2}, {FL_C}
    v_bfe_u32 v{t[0]}, v{V_LANE}, 4, 1                 ; cg
    v_lshrrev_b32 v{t[1]}, 5, v{V_LANE}                ; hf
    v_bfe_u32 v{t[3]}, v{V_LANE}, 2, 2                 ; r
    v_and_b32 v{mu}, 3, v{V_LANE}
    v_lshlrev_b32 v{mu}, 3, v{mu}                      ; c4*8
    v_xor_b32 v{t[2]}, v{t[0]}, v{t[1]}
    v_lshl_add_u32 v{t[2]}, v{t[2]}, 2, v{t[3]}
    v_lshl_add_u32 v{t[2]}, v{t[2]}, 5, v{mu}
    v_mul_u32_u24 v{vl[4]}, 14336, v{t[0]}
    v_add_u32 v{vl[4]}, v{vl[4]}, v{t[2]}
    v_add_u32 v{vl[4]}, {SINGLE}, v{vl[4]}
    v_lshl_add_u32 v{t[2]}, v{t[1]}, 2, v{t[3]}
    v_lshl_add_u32 v{t[2]}, v{t[2]}, 6, v{mu}
    v_mul_u32_u24 v{t[0]}, {28672 + 32}, v{t[0]}
    v_add_u32 v{vl[0]}, v{t[0]}, v{t[2]}
    v_xor_b32 v{vl[1]}, 32, v{vl[0]}
    v_add_u32 v{vl[2]}, {PAIR}, v{vl[0]}
    v_add_u32 v{vl[3]}, {PAIR}, v{vl[1]}
    v_and_b32 v{t[0]}, 31, v{V_LANE}
    v_mul_u32_u24 v{t[1]}, {7*256}, v{t[1]}
    v_lshl_add_u32 v{vs}, v{t[0]}, 3, v{t[1]}
    s_mul_i32 s{T1}, s{STT}, {14*256}
    s_add_u32 s{T1}, s{T1}, {WS_ST}
    s_mul_i32 s{SH}, s{STT}, {28*1024}
    s_add_u32 s{SH}, s{SH}, {WS_H}
    ''')
    VSD = 222; SWB = S_DUM; SLB = S_DUM + 1
    a(f'''
    v_lshrrev_b32 v{t[0]}, 3, v{V_LANE}
    v_lshrrev_b32 v{t[1]}, 2, v{V_LANE}
    v_and_b32 v{t[1]}, 4, v{t[1]}
    v_and_b32 v{t[2]}, 7, v{V_LANE}
    v_xor_b32 v{t[1]}, v{t[1]}, v{t[2]}
    v_mul_u32_u24 v{t[0]}, 896, v{t[0]}
    v_lshl_add_u32 v{V_SRC2}, v{t[1]}, 4, v{t[0]}
    s_mul_i32 s{SWB}, s{S_W}, {448*896}
    s_lshl_b32 s{T0}, s{S_CB}, 7
    s_add_u32 s{SWB}, s{SWB}, s{T0}
    ''')
    def w2_dma(hl):
        base, per = (SCR, 12288) if hl < 3 else (PAIR, 14336)
        out = []
        for i in range(4):
            out.append(([f's_mul_i32 s{SLB}, s{S_W}, {per}', f's_add_u32 m0, s{SLB}, {base + (hl % 3)*4096}'] if i == 0 else []) +
                       [f's_add_u32 s{T0}, s{SWB}, {(256 + 32*hl + 8*i)*896 - 1024*i}',
                        ('vm', f'buffer_load_dwordx4 v{V_SRC2}, {sr4(SRD_A)}, s{T0} offen offset:{1024*i} lds', 'w2l')])
        return out
    NTP = NHG - opt('trC', 0)
    poll_issue(a, T2, V_FL, 14, vp)
    Ls = a.newlabel('skip')
    a(f's_cmp_ge_u32 s{S_J}, 28\ns_cbranch_scc1 {Ls}')
    while stg.nt < NTP: stg.trans()
    a.label(Ls)
    a('s_waitcnt lgkmcnt(0)\ns_barrier')
    a.stamp('D_pre')
    rest = [x for x in a.vm if x.startswith('hg')]
    poll_check(a, T2, V_FL, 14, vp)
    a.stamp('D_poll'); a.stamp('F_poll')
    for c in range(7):
        a.vmem(f'buffer_load_dwordx2 {vr(ST+2*c,2)}, v{vs}, {sr4(SRD_WS)}, s{T1} offen offset:{256*c} sc1', 'st')
    SX_ = S_SPIN + 1
    a(f's_lshl_b32 s{SX_}, s{S_R14}, 11\nv_add_u32 v{vl[5]}, s{SH}, v{V_OFF}')
    def ldx(k):
        if k and k % 2 == 0: a(f's_add_u32 s{SX_}, s{SX_}, 2048\ns_sub_u32 s{T0}, s{SX_}, {28*1024}\ns_min_u32 s{SX_}, s{SX_}, s{T0}')
        a.vmem(f'buffer_load_dwordx4 {vr(X[k],4)}, v{vl[5]}, {sr4(SRD_WS)}, s{SX_} offen offset:{1024*(k&1)} sc1', f'x{k}')
    XLA = opt('xla', 8)
    for k in range(XLA): ldx(k)
    a(f's_or_b32 s{T0}, s2, s{S_W}\ns_cmp_lg_u32 s{T0}, 0\ns_cselect_b32 s{T0}, 0x40000000, {WS_FLG}')
    flag_store(a, T0, t[0])
    a.stamp('F_issued')
    Ls = a.newlabel('skip')
    a(f's_cmp_ge_u32 s{S_J}, 28\ns_cbranch_scc1 {Ls}')
    while stg.nt < NHG: stg.trans()
    stg.close()
    a.label(Ls)
    SE = T5; SL = T1; SF = T2
    a(f'''
    s_mul_i32 s{SE}, s{STT}, 112
    s_mul_i32 s{T0}, s{S_FS}, 7
    s_add_u32 s{SE}, s{SE}, s{T0}
    s_add_u32 s{SL}, s{SE}, s{S_L0}
    s_add_u32 s{SE}, s{SE}, s{S_E0}
    s_lshl_b32 s{SE}, s{SE}, 10
    s_add_u32 s{SE}, s{SE}, {WS_HH}
    s_lshl_b32 s{SL}, s{SL}, 10
    s_add_u32 s{SL}, s{SL}, {WS_HH}
    s_add_u32 s{S_U1}, s{SE}, 4096
    s_lshl_b32 s{SF}, s{STT}, 4
    s_add_u32 s{SF}, s{SF}, s{S_FS}
    s_lshl_b32 s{SF}, s{SF}, 7
    s_add_u32 s{SF}, s{SF}, {FL_D1}
    ''')
    if opt('trC', 0): a('s_waitcnt lgkmcnt(0)')
    seq = [(j, k) for k in range(28) for j in (0, 1, 4)] + [(j, k) for j in (2, 3, 5, 6) for k in range(28)]
    def rdW(n):
        j, k = seq[n]
        if j == 4: return [f'ds_read_b64_tr_b16 {vr(W[n % NW]+2*u,2)}, v{vl[4]} offset:{k*512 + u*256}' for u in range(2)]
        return [f'ds_read_b64_tr_b16 {vr(W[n % NW]+2*u,2)}, v{vl[{0:0,1:1,2:2,3:3,5:0,6:1}[j]]} offset:{k*1024 + u*512}' for u in range(2)]
    AH = opt('ah', 6); assert AH + 2 <= NW and 2 * AH <= 16
    a.stamp('F_bar')
    for n in range(AH):
        for x in rdW(n): a(x)
    a.vmwait('st')
    for c in range(3): a(f'v_pk_add_f32 {vr(ST+4*c,2)}, {vr(ST+4*c,2)}, {vr(ST+4*c+2,2)}')
    a(f'v_pk_add_f32 {vr(ST,2)}, {vr(ST,2)}, {vr(ST+4,2)}\nv_pk_add_f32 {vr(ST+8,2)}, {vr(ST+8,2)}, {vr(ST+12,2)}\nv_pk_add_f32 {vr(ST,2)}, {vr(ST,2)}, {vr(ST+8,2)}')
    a(f'v_mov_b32 v{t[0]}, v{ST}\nv_mov_b32 v{t[1]}, v{ST+1}\nv_permlane32_swap_b32 v{t[0]}, v{ST}\nv_permlane32_swap_b32 v{t[1]}, v{ST+1}')
    a(f'v_add_f32 v{t[0]}, v{t[0]}, v{ST}\nv_add_f32 v{t[1]}, v{t[1]}, v{ST+1}')
    a(f'''
    v_mul_f32 v{t[0]}, {fx(1/448)}, v{t[0]}
    v_mul_f32 v{t[1]}, {fx(1/448)}, v{t[1]}
    v_fma_f32 v{t[1]}, -v{t[0]}, v{t[0]}, v{t[1]}
    v_max_f32 v{t[1]}, 0, v{t[1]}
    v_add_f32 v{t[1]}, {fx(1e-5)}, v{t[1]}
    v_rsq_f32 v{mu}, v{t[1]}
    s_mov_b32 s{S_U0}, 0xffff0000
    v_mul_f32 v{mu+1}, v{t[0]}, v{mu}
    v_sub_f32 v{mu+1}, 0, v{mu+1}
    ''')
    def norm(k):
        out = []
        for i in range(4): out += [f'v_lshlrev_b32 v{t[i]}, 16, v{X[k]+i}', f'v_and_b32 v{t[i]+1}, s{S_U0}, v{X[k]+i}']
        if opt('pkN', 1):
            for i in range(4): out += [f'v_pk_fma_f32 {vr(t[i],2)}, {vr(t[i],2)}, {vr(mu,2)}, {vr(mu,2)} op_sel:[0,0,1] op_sel_hi:[1,0,1]']
        else:
            for i in range(4): out += [f'v_fma_f32 v{t[i]}, v{t[i]}, v{mu}, v{mu+1}', f'v_fma_f32 v{t[i]+1}, v{t[i]+1}, v{mu}, v{mu+1}']
        for i in range(4): out += [f'v_cvt_pk_bf16_f32 v{X[k]+i}, v{t[i]}, v{t[i]+1}']
        return out
    acc_of = {0: 0, 1: 1, 4: 2, 2: 3, 3: 0, 5: 1, 6: 2}
    def epi(j):
        A = ACC[acc_of[j]]
        out = []
        pk = opt('pkE', 0) if j != 6 else 2
        if pk >= 2:
            for r in range(0, 8, 2): out.append(f'v_pk_mul_f32 {vr(E[r],2)}, {vr(A+r,2)}, {vr(mu,2)} op_sel_hi:[1,0]')
        else:
            for r in range(8): out.append(f'v_mul_f32 v{E[r]}, v{mu}, v{A+r}')
        for r in range(8): out.append(f'v_exp_f32 v{E[r]}, v{E[r]}')
        if pk >= 1:
            for r in range(0, 8, 2): out.append(f'v_pk_mul_f32 {vr(A+r,2)}, {vr(A+r,2)}, {vr(A+8+r,2)}')
        else:
            for r in range(8): out.append(f'v_mul_f32 v{A+r}, v{A+r}, v{A+8+r}')
        if pk >= 2:
            for r in range(0, 8, 2): out.append(f'v_pk_add_f32 {vr(E[r],2)}, {vr(E[r],2)}, {vr(mu,2)} op_sel:[0,1] op_sel_hi:[1,1]')
        else:
            for r in range(8): out.append(f'v_add_f32 v{E[r]}, 1.0, v{E[r]}')
        for r in range(8): out.append(f'v_rcp_f32 v{E[r]}, v{E[r]}')
        if pk >= 1:
            for r in range(0, 8, 2): out.append(f'v_pk_mul_f32 {vr(A+r,2)}, {vr(A+r,2)}, {vr(E[r],2)}')
        else:
            for r in range(8): out.append(f'v_mul_f32 v{A+r}, v{A+r}, v{E[r]}')
        for i in range(4): out.append(f'v_cvt_pk_bf16_f32 v{HP+i}, v{A+2*i}, v{A+2*i+1}')
        sreg, off = (SE, 1024*j) if j < 4 else ((S_U1, 0) if j == 4 else (SL, 1024*(j-5)))
        out.append(('vm', f'buffer_store_dwordx4 {vr(HP,4)}, v{V_OFF}, {sr4(SRD_WS)}, s{sreg} offen offset:{off} sc1', f'hh{j}'))
        return out
    a.stamp('F_stats')
    a.vmwait('x0')
    a.stamp('F_x0')
    for x in norm(0): a(x)
    pend = []; late = []
    R['vfE'] = vs; R['vpE'] = vp
    for n, (j, k) in enumerate(seq):
        nn = n + AH
        if nn < len(seq) and seq[nn] == (5, 0):
            a.vmwait('late'); a('s_barrier')
        rd = rdW(nn) if nn < len(seq) else []
        WP = opt('wp', 2)
        if n % WP == 0:
            left = min(len(seq), n + AH) - (n + WP)
            a(f's_waitcnt lgkmcnt({max(0, 2*left)})')
        A = ACC[acc_of[j]]
        a(f'{MFMA} {vr(A,16)}, {vr(W[n % NW],4)}, {vr(X[k],4)}, {vr(A,16) if k else 0}')
        for x in rd: a(x)
        if n < 84 and j == 0 and k in (2, 4, 8, 16, 24): a.stamp(f'F_k{k}')
        if n >= 84 and k == 27: a.stamp(f'F_t{j}')
        if n < 84:
            if j == 0 and k + 1 < 28:
                a.vmwait(f'x{k+1}'); pend = norm(k + 1)
            if j == 1 and k + XLA < 28: ldx(k + XLA)
            take = (6 if j < 2 else 4) if opt('pkN', 1) else (7 if j < 2 else 6)
            for x in pend[:take]: a(x)
            pend = pend[take:]
            if n == 83:
                a.stamp('D_st1')
                a(f'v_mov_b32 v{mu}, {fx(-math.log2(math.e))}\nv_mov_b32 v{mu+1}, 1.0\ns_barrier')
                srd(a, SRD_A, P_W2, W2_BYTES)
                late = [pair_dma(S13, L13, 0, 0, i, 'late') for i in range(14)]
                g1 = [x for hl in range(3) for x in w2_dma(hl)]; g2 = [x for hl in range(3, 6) for x in w2_dma(hl)]
        else:
            if n == 84 + 2: pend = epi(0) + epi(1) + epi(4) + epi(2) + epi(3) + epi(5); done = 0; tot = len(pend); one = tot // 6
            if n >= 84 + 2:
                want = min(tot, (n - 85) * tot // 108 + 1)
                lim = {2: 3, 3: 3 + (k >= 2), 5: 4 + (k >= 2), 6: 5 + (k >= 2)}[j] * one
                while done < min(want, lim):
                    a.emit(pend.pop(0)); done += 1
                if k == 27:
                    need = {2: 1, 3: 2, 5: 3, 6: 6}[j] * one
                    while done < need:
                        a.emit(pend.pop(0)); done += 1
            if (j, k) == (5, 0): a('s_barrier')
            if k % opt('latestep', 2) == 0:
                q_ = late if late else (g1 if g1 else (g2 if j >= 5 else []))
                if q_:
                    for x in q_.pop(0): a.emit(x)
            if j == 5 and k == opt('f1k', 6):
                a.vmwait('hh1'); flag_store(a, SF, vp)
            if j == 6 and k == opt('f2k', 14) and not opt('d2late', 1):
                a(f's_add_u32 s{SF}, s{SF}, {FLS}')
                a.vmwait('hh2'); flag_store(a, SF, vl[2])
                a(f's_add_u32 s{SF}, s{SF}, {FLS}')
            if j == 6 and k == opt('p1k', 18):
                flag8_addr(a, vs, vp, vl[4], S_SPIN + 1, FL_D1)
                poll_issue(a, S_SPIN + 1, vs, 8, vp)
    assert not late and not g1 and not g2
    a.stamp('D_loop')
    if opt('d2late', 1):
        a(f's_add_u32 s{SF}, s{SF}, {FLS}')
        a.vmwait('hh3'); flag_store(a, SF, vl[2])
        a(f's_add_u32 s{SF}, s{SF}, {FLS}')
    for x in epi(6): a.emit(x)
    a.stamp('D_epi')
    R['SF'] = SF

def phase_e(a, R, stg):
    va = VA(4, 199)
    ACC = [va(16) for _ in range(4)]
    NB = 16
    BUF = [[va(4) for l in range(2)] for d in range(NB)]
    vf = R['vfE']; vp = R['vpE']
    t = [204, 205, 206, 207]; vt = 208
    assert vf >= va.n and vp >= va.n and vf < 204 and vp < 204
    STT, SCT = T1, T3
    SP = S_SPIN + 1
    tile_ids(a, STT, SCT)
    a(f's_mul_i32 s{T4}, s{S_W}, {28*1024}')
    for l in range(2):
        a(f'''
        s_xor_b32 s{T0}, s{STT}, {l}
        s_mul_i32 s{T0}, s{T0}, {112*1024}
        s_add_u32 s{T0}, s{T0}, s{T4}
        s_add_u32 s{S_U0+l}, s{T0}, {WS_HH}
        ''')
    e0 = lambda f: 2 if f == 2 else 0
    l0 = lambda f: 0 if f == 2 else 5
    order = [7*f + e0(f) + j for j in (0, 1, 4, 2, 3) for f in range(4)] + [7*f + l0(f) + j for j in range(2) for f in range(4)]
    assert sorted(order) == list(range(28))
    poll_check(a, SP, vf, 8, vp)
    a.stamp('E_poll1')
    N2 = 20 if opt('d2late', 1) else 16
    B4 = opt('b4', 0)
    st = dict(nxt=0)
    FL3 = opt('efl', 7); PI2 = opt('epi2', 3); PI3 = opt('epi3', 15)
    def ld_items():
        n = st['nxt']; st['nxt'] += 1
        pre = []
        if B4 and n == opt('efl5', 4): pre.append(('call', lambda: (a.vmwait('hh5'), flag_store(a, R['SF'], vt), a(f's_add_u32 s{R["SF"]}, s{R["SF"]}, {FLS}'))))
        if n == FL3: pre.append(('call', lambda: (a.vmwait('hh6'), flag_store(a, R['SF'], vt))))
        if n in ((8, N2, 24) if B4 else (8, N2)):
            nm = {8: 2, N2: 3, 24: 4}[n]
            pre.append(('call', lambda: (a.stamp(f'E_pre{nm}'), poll_check(a, SP, vf, 8, vp), a.stamp(f'E_poll{nm}'))))
        if n in ((PI2, PI3, opt('epi4', 21)) if B4 else (PI2, PI3)): pre.append(('call', lambda: (a(f's_add_u32 s{SP}, s{SP}, {FLS}'), poll_issue(a, SP, vf, 8, vp))))
        ks = order[n]
        out = []
        for l in range(2):
            out.append((pre if l == 0 else []) + [f's_add_u32 s{T0}, s{S_U0+l}, {(ks >> 2) * 4096}',
                       ('vm', f'buffer_load_dwordx4 {vr(BUF[n % NB][l],4)}, v{V_OFF}, {sr4(SRD_WS)}, s{T0} offen offset:{1024*(ks&3)} sc1', f'h{n}')])
        return out
    def ld():
        for it in ld_items():
            for x in it: a.emit(x)
    LA = opt('ela', 8)
    for n in range(LA): ld()
    for j in range(8):
        a(f'v_lshlrev_b32 v{ACC[0]+2*j}, 16, v{HKEEP+j}\nv_and_b32 v{ACC[0]+2*j+1}, 0xffff0000, v{HKEEP+j}')
    red_addr(a, t)
    RA = [209, 210, 211, 212]
    a(f'''
    s_lshl_b32 s{T0}, s{S_W}, 13
    v_add_u32 v{RA[0]}, s{T0}, v{V_RD}
    v_add_u32 v{RA[1]}, s{T0}, v{V_RD+1}
    s_mul_i32 s{T0}, s{S_W}, {14336 - 4096}
    s_sub_u32 s{T0}, s{T0}, {SCR - PAIR}
    v_add_u32 v{RA[2]}, s{T0}, v{V_RD}
    v_add_u32 v{RA[3]}, s{T0}, v{V_RD+1}
    ''')
    Ls = [n for n in range(28) if order[n] >= 16]
    WB = [WOV + 8*i for i in range(4)]
    lst = dict(rd=0)
    def lread():
        i = lst['rd']; lst['rd'] += 1
        hl, s_ = divmod(order[Ls[i]] - 16, 2)
        return [f'ds_read_b64_tr_b16 {vr(WB[i % 4] + 4*lc + 2*u, 2)}, v{RA[2*(hl // 3) + lc]} offset:{(hl % 3)*4096 + s_*2048 + u*1024}' for lc in range(2) for u in range(2)]
    for _ in range(3):
        for x in lread(): a(x)
    def lwait(n):
        if n in Ls: a(f's_waitcnt lgkmcnt({4 * (lst["rd"] - 1 - Ls.index(n))})')
    def mm(n, l):
        ks = order[n]
        p, b = stg.dest(4 + (ks >> 1), ks & 1, l >> 1) if ks < 16 else ('v', WB[Ls.index(n) % 4] + 4 * (l >> 1))
        a(f'{MFMA} {vr(ACC[l],16)}, {vr(b,4,p)}, {vr(BUF[n % NB][l & 1],4)}, {vr(ACC[l],16) if (n or l == 0) else 0}')
    KT = 28 - opt('etail', 3)
    for n in range(KT):
        lwait(n)
        a.vmwait(f'h{n}')
        items = []
        for _ in range(2 if n < opt('egrow', 0) else 1):
            if st['nxt'] < 28 and st['nxt'] - NB < n: items += ld_items()
        rd = lread() if (n in Ls and lst['rd'] < len(Ls)) else []
        for l in range(4):
            mm(n, l)
            if rd: a(rd.pop(0))
            if items and (len(items) > 2 or l & 1 == 0 or l == 3):
                for x in items.pop(0): a.emit(x)
        assert not items
        if n == opt('ebar', 20):
            assert all(m <= n for m in Ls if order[m] < 22)
            a('s_barrier')
    assert st['nxt'] == 28 and lst['rd'] == len(Ls)
    a('s_waitcnt lgkmcnt(0)')
    for l in (1, 2, 3, 0):
        for n in range(KT, 28):
            if l == 1: a.vmwait(f'h{n}')
            mm(n, l)
        if l in (2, 3): red_write(a, ACC, t, l - 1)
    a.stamp('E_mfma')
    red_write(a, ACC, t, 3)
    srd(a, SRD_A, P_OUT, X_BYTES)
    a(f'''
    v_and_b32 v{vf}, 31, v{V_LANE}
    v_lshrrev_b32 v{vp}, 5, v{V_LANE}
    v_mul_u32_u24 v{vf}, 896, v{vf}
    v_lshl_add_u32 v{vf}, v{vp}, 4, v{vf}
    s_mul_i32 s{T0}, s{STT}, {32*896}
    s_lshl_b32 s{T2}, s{SCT}, 6
    s_add_u32 s{T0}, s{T0}, s{T2}
    ''')
    red_read(a, ACC, t)
    if opt('bias', 0):
        for r in range(16): a(f"v_add_f32 v{ACC[0]+r}, {fx(opt('bias', 0) * 1e-3)}, v{ACC[0]+r}")
    PKR = ACC[1]
    for j in range(8): a(f'v_cvt_pk_bf16_f32 v{PKR+j}, v{ACC[0]+2*j}, v{ACC[0]+2*j+1}')
    for g in (0, 4):
        a(f'v_permlane32_swap_b32 v{PKR+g}, v{PKR+g+2}\nv_permlane32_swap_b32 v{PKR+g+1}, v{PKR+g+3}')
    fl_ = ['', ' sc1', ' nt', ' sc0 sc1'][opt('outst', 0)]
    a(f'buffer_store_dwordx4 {vr(PKR,4)}, v{vf}, {sr4(SRD_A)}, s{T0} offen{fl_}')
    a(f'buffer_store_dwordx4 {vr(PKR+4,4)}, v{vf}, {sr4(SRD_A)}, s{T0} offen offset:32{fl_}')
    a.stamp('E_st')

def gen():
    a = K()
    a.stamp('rt0', True); a.stamp('t0')
    HB = opt('hb', 3)
    if int(os.environ.get('TFIX', '0')): a('s_memrealtime s[60:61]')
    a(f'''
    s_cmp_ge_u32 s2, 256
    s_cbranch_scc1 Lend
    s_load_dwordx16 s[32:47], s[0:1], 0
    s_load_dwordx2 s[50:51], s[0:1], 72
    v_lshrrev_b32 v2, 6, v0
    v_and_b32 v{V_LANE}, 63, v0
    v_readfirstlane_b32 s{S_W}, v2
    v_lshlrev_b32 v{V_OFF}, 4, v{V_LANE}
    v_lshlrev_b32 v{V_FL}, 7, v{V_LANE}
    s_and_b32 s{T0}, s2, 7
    s_lshr_b32 s{S_J}, s2, 3
    s_and_b32 s{S_H}, s{T0}, {(16 >> HB) - 1}
    s_lshl_b32 s{S_H}, s{S_H}, {HB}
    s_and_b32 s{T1}, s{S_J}, {(1 << HB) - 1}
    s_add_u32 s{S_H}, s{S_H}, s{T1}
    s_lshr_b32 s{S_TB}, s{T0}, {4 - HB}
    s_lshl_b32 s{S_TB}, s{S_TB}, {5 - HB}
    s_lshr_b32 s{T1}, s{S_J}, {HB}
    s_add_u32 s{S_TB}, s{S_TB}, s{T1}
    s_mul_i32 s{T1}, s{S_J}, 9363
    s_lshr_b32 s{T1}, s{T1}, 16
    s_mul_i32 s{T2}, s{T1}, 7
    s_sub_u32 s{S_CB}, s{S_J}, s{T2}
    s_lshl_b32 s{S_RB}, s{T0}, 2
    s_add_u32 s{S_RB}, s{S_RB}, s{T1}
    s_and_b32 s{S_TD}, s{T0}, 1
    s_lshl_b32 s{S_TD}, s{S_TD}, 3
    s_and_b32 s{T1}, s{S_J}, 7
    s_add_u32 s{S_TD}, s{S_TD}, s{T1}
    s_lshr_b32 s{S_FS}, s{T0}, 1
    s_lshl_b32 s{S_FS}, s{S_FS}, 2
    s_lshr_b32 s{T1}, s{S_J}, 3
    s_add_u32 s{S_FS}, s{S_FS}, s{T1}
    ''')
    if opt('cpre', 1):
        a('s_getpc_b64 s[54:55]')
        a.label('Lpc')
        a(f'''
        s_lshl_b32 s{T0}, s{S_J}, 2
        s_add_u32 s{T0}, s{T0}, s{S_W}
        s_mul_i32 s{T0}, s{T0}, 3
        v_add_u32 v4, s{T0}, v{V_LANE}
        v_lshlrev_b32 v4, 7, v4
        v_min_u32 v4, Lcode_end-Lpc-4, v4
        v_mov_b32 v5, s55
        v_add_co_u32 v4, vcc, s54, v4
        v_addc_co_u32 v5, vcc, 0, v5, vcc
        s_mov_b64 exec, 7
        ''')
        a.vmem('global_load_dword a4, v[4:5], off', 'code')
        a('s_mov_b64 exec, -1')
    R = alloc_b()
    phase_a(a, R)
    a(f'''
    s_and_b32 s{T0}, s{S_FS}, 3
    s_cmp_eq_u32 s{T0}, 2
    s_cselect_b32 s{S_E0}, 2, 0
    s_cselect_b32 s{S_L0}, 0, 5
    s_and_b32 s{T0}, s{S_J}, 7
    s_lshr_b32 s{T1}, s{S_J}, 3
    s_mul_i32 s{T1}, s{T1}, {opt('r14b', 4)}
    s_mul_i32 s{T0}, s{T0}, {opt('r14a', 2)}
    s_add_u32 s{T0}, s{T0}, s{T1}
    s_sub_u32 s{T1}, s{T0}, 14
    s_min_u32 s{S_R14}, s{T0}, s{T1}
    s_sub_u32 s{T1}, s{S_R14}, 14
    s_min_u32 s{S_R14}, s{S_R14}, s{T1}
    ''')
    stg = Stager(a)
    phase_b(a, R, stg)
    a(f's_cmp_ge_u32 s{S_J}, 28\ns_cbranch_scc1 LnoC')
    phase_c(a, R, stg)
    a('s_branch LD')
    vm_c = list(a.vm)
    a.label('LnoC')
    a.vmall()
    flag_store(a, T5, 4)
    a('s_barrier')
    put5(a, 5)
    a.label('LD')
    a.vm = vm_c
    phase_d(a, R, stg)
    a(f's_cmp_ge_u32 s{S_J}, 28\ns_cbranch_scc0 LE')
    vm_d = list(a.vm)
    a('s_waitcnt vmcnt(0)')
    flag_store(a, R['SF'], 4)
    if opt('b4', 0):
        a(f's_add_u32 s{R["SF"]}, s{R["SF"]}, {FLS}'); flag_store(a, R['SF'], 4)
    a('s_branch Lfin')
    a.label('LE')
    a.vm = vm_d
    phase_e(a, R, stg)
    a.label('Lfin')
    if int(os.environ.get('TFIX', '0')):
        a.label('Lfix')
        a(f's_memrealtime s[62:63]\ns_waitcnt lgkmcnt(0)\ns_sub_u32 s62, s62, s60\ns_cmp_lt_u32 s62, {int(os.environ["TFIX"])}\ns_cbranch_scc1 Lfix')
    if STAMP:
        a('s_waitcnt vmcnt(0)')
        a.stamp('end'); a.stamp('rt1', True)
        a(f's_waitcnt lgkmcnt(0)\ns_lshl_b32 s{T0}, s2, 2\ns_add_u32 s{T0}, s{T0}, s{S_W}\ns_lshl_b32 s{T0}, s{T0}, 7\ns_add_u32 s{T0}, s{T0}, {WS_DBG}\nv_mov_b32 v4, 0')
        for i in range(a.nst):
            a(f'v_mov_b32 v5, s{60+2*i}\nbuffer_store_dword v5, v4, {sr4(SRD_WS)}, s{T0} offen offset:{4*i}')
    if STAMP and int(os.environ.get('DBGOUT', '0')):
        n = a.nst
        a(f'''
        s_load_dwordx2 s[{SRD_A}:{SRD_A+1}], s[0:1], 64
        s_mov_b32 s{SRD_A+2}, 256
        s_mov_b32 s{SRD_A+3}, 0x20000
        s_not_b32 s{T1}, s60
        v_mov_b32 v6, s{T1}
        v_mov_b32 v7, s{60+2*(n-1)}
        v_mov_b32 v8, s60
        s_mov_b64 exec, 1
        s_waitcnt lgkmcnt(0)
        buffer_atomic_umax v6, v4, {sr4(SRD_A)}, 0 offen
        buffer_atomic_umax v7, v4, {sr4(SRD_A)}, 0 offen offset:4
        buffer_atomic_umax v8, v4, {sr4(SRD_A)}, 0 offen offset:8
        s_or_b32 s{T0}, s2, s{S_W}
        s_cmp_lg_u32 s{T0}, {int(os.environ.get('DBGWG', '0'))}
        s_cbranch_scc1 Lend
        ''')
        for i in range(2, min(n - 1, 15)):
            a(f's_sub_u32 s{T0}, s{60+2*i}, s62\nv_mov_b32 v5, s{T0}\nbuffer_store_dword v5, v4, {sr4(SRD_A)}, 0 offen offset:{4*(i+1)}')
    a.label('Lend')
    a('s_endpgm')
    fallback(a, R)
    a.label('Lcode_end')
    a.finalize()
    head = open('sequential_preLN__mha_block__glu_gated_swiglu__prompt.s.ref').read().split('; Override')[0]
    pre = f'.amdgcn_target "amdgcn-amd-amdhsa--gfx950"\n.text\n.p2align 12\n.fill {(4096 - 0x300) // 4}, 4, 0xbf800000\n.globl {NAME}\n.p2align 8\n.type {NAME},@function\n{NAME}:\n'
    if opt('visit', 1):
        import subprocess, re, tempfile
        from asmgen import Ins
        tmp = tempfile.mkdtemp()
        open(tmp + '/t.s', 'w').write(pre + a.text() + ''.join(f'Lpage{i}:\n' for i in range(1, 13)))
        subprocess.run(['clang', '-x', 'assembler', '-target', 'amdgcn-amd-amdhsa', '-mcpu=gfx950', '-c', tmp + '/t.s', '-o', tmp + '/t.o'], check=True)
        dis = subprocess.run(['llvm-objdump', '-d', '--mcpu=gfx950', tmp + '/t.o'], capture_output=True, text=True).stdout
        dis = dis[dis.index(f'<{NAME}>:'):]
        sizes = [4 * len(m.group(1).split()) for m in re.finditer(r'// [0-9A-F]{12}: ([0-9A-F ]+)$', dis, re.M)]
        out = []; off = 0; page = 1; k = 0
        for x in a.ins:
            if x.kind not in ('label', 'dir'):
                if off >= 4096 * page and page <= 12:
                    out += [Ins(f'Lpage{page}:'), Ins(f's_cbranch_execz Lvis{(page - 1) // 4}')]
                    off += 4; page += 1
                off += sizes[k]; k += 1
            out.append(x)
        assert k == len(sizes), (k, len(sizes))
        for pg in range(page, 13): out += [Ins(f'Lpage{pg}:'), Ins(f's_branch Lvis{(pg - 1) // 4}')]
        a.ins = out
    s = head + f'; @launch grid=(256,1,1) block=(256,1,1) lds={LDS_BYTES}\n' + pre + a.text()
    s += f'''.section .rodata,"a"
.p2align 6
.amdhsa_kernel {NAME}
  .amdhsa_next_free_vgpr 512
  .amdhsa_next_free_sgpr 102
  .amdhsa_accum_offset 256
  .amdhsa_group_segment_fixed_size 0
  .amdhsa_kernarg_size 80
  .amdhsa_user_sgpr_count 2
  .amdhsa_user_sgpr_kernarg_segment_ptr 1
  .amdhsa_system_sgpr_workgroup_id_x 1
.end_amdhsa_kernel
'''
    if STAMP: s = '; STAMPS ' + ' '.join(a.names) + '\n' + s
    print(f'instrs={len(a.ins)} nop_states={a.nops} stamps={a.nst}', file=sys.stderr)
    return s

if __name__ == '__main__':
    open(sys.argv[1], 'w').write(gen())
```

```python
import sys, struct, math, os
from asmgen import Asm

NAME = 'sequential_preLN__mha_block__glu_gated_swiglu__prompt_kernel'
MB = 1 << 20
WS_KV  = 0
WS_O   = 4 * MB
WS_H   = 6 * MB
WS_ST  = 8 * MB
WS_HH  = 9 * MB
WS_FLG = 16 * MB
FL_A = WS_FLG + 0x10000
FL_B = FL_A + 1024 * 128
FL_C = FL_B + 1024 * 128
FL_D1 = FL_C + 1024 * 128
FL_D2 = FL_D1 + 1024 * 128
FL_D3 = FL_D2 + 1024 * 128
FL_W = FL_D3 + 1024 * 128
WS_WB = WS_ST + 0x80000
WS_MH = WS_ST + 0x90000
FLS = 1024 * 128
WS_DBG = 17 * MB
WS_SIZE = 18 * MB

X_BYTES = 2048 * 448 * 2
WQKV_BYTES = 448 * 1344 * 2
WO_BYTES = 448 * 448 * 2
W1_BYTES = 448 * 1792 * 2
W2_BYTES = 1792 * 448 * 2
LDS_BYTES = 163840
MFMA = 'v_mfma_f32_32x32x16_bf16'
STAMP = int(os.environ.get('STAMP', '0'))
OPT = dict(kv.split('=') for kv in os.environ.get('OPT', '').split(',') if kv)
def opt(k, d): return int(OPT.get(k, d))

def f2u(x): return struct.unpack('<I', struct.pack('<f', x))[0]
def fx(x): return hex(f2u(x))
def vr(b, n=1, p='v'): return f'{p}[{b}:{b+n-1}]' if n > 1 else f'{p}{b}'
def sr4(b): return f's[{b}:{b+3}]'

class VA:
    def __init__(self, start, limit): self.n = start; self.limit = limit
    def __call__(self, cnt=1, align=None):
        if align is None: align = 1 if cnt == 1 else (2 if cnt == 2 else 4)
        self.n = (self.n + align - 1) // align * align
        b = self.n; self.n += cnt
        assert self.n <= self.limit, f'out of registers {self.n} > {self.limit}'
        return b

class K(Asm):
    def __init__(self):
        super().__init__(); self.vm = []; self.nst = 0; self.nlab = 0; self.names = []
    def vmem(self, text, tag):
        self(text); self.vm.append(tag)
    def vmwait(self, *tags, lgkm=None):
        idx = [i for i, t in enumerate(self.vm) if t in tags]
        s = ''
        if idx:
            n = len(self.vm) - 1 - max(idx)
            s += f' vmcnt({min(n, 63)})'
            self.vm = self.vm[len(self.vm) - n:] if n else []
        if lgkm is not None: s += f' lgkmcnt({lgkm})'
        if s: self('s_waitcnt' + s)
    def vmall(self):
        self('s_waitcnt vmcnt(0)'); self.vm = []
    def emit(self, x):
        if isinstance(x, tuple):
            if x[0] == 'vm': self.vmem(x[1], x[2])
            elif x[0] == 'wait': self.vmwait(*x[1:])
            elif x[0] == 'call': x[1]()
        else: self(x)
    def stamp(self, name='', real=False):
        if not STAMP: return
        if name and name[0] in 'ABCDEFGHIR' and name[0] not in os.environ.get('STAMPSET', 'AB'): return
        if name in self.names:
            i = self.names.index(name)
        else:
            i = self.nst; self.nst += 1; self.names.append(name)
        assert i < 19
        self(f's_mem{"real" if real else ""}time s[{60+2*i}:{61+2*i}]')
    def newlabel(self, p):
        self.nlab += 1; return f'L{p}{self.nlab}'

S_W = 3
SRD_X = 4; SRD_WQKV = 8; SRD_WS = 12; SRD_A = 16; SRD_B = 20
P_X, P_WQKV, P_WO, P_W1, P_W3, P_W2, P_OUT, P_WS = 32, 34, 36, 40, 42, 44, 46, 50
S_TAG = 24; S_H = 25; S_TB = 26; S_RB = 27; S_CB = 28; S_TD = 29; S_FS = 30; S_J = 31
S_E0 = 38; S_L0 = 39
S_U0 = 48; S_U1 = 49
S_ONES = 52
T0, T1, T2, T3, T4, T5, T6 = 53, 54, 55, 56, 57, 58, 59
S_SPIN = 98
S_ROT = 39
S_DUM = 100
S_RX = 99
S_WG = 32
WROW = 232
MUX = 216
S_R14 = 0; S_RG = 1
V_LANE = 1; V_OFF = 2; V_FL = 3
V_SRC = 212; V_P13 = 213; V_RD = 214
HKEEP = 216
V_SRC2 = 0
XRES = 204
WOV = 224
PAIR = 57344; SCR = 2 * PAIR; SINGLE = SCR + 16384
NHG = 12
RAW5 = 196

def xm(n):
    if n >= 64: return 's_mov_b64 exec, -1'
    if n < 31: return f's_mov_b64 exec, {hex((1 << n) - 1)}'
    lo = '-1' if n >= 32 else hex((1 << n) - 1)
    return f's_mov_b32 exec_lo, {lo}\ns_mov_b32 exec_hi, {hex((1 << max(0, n - 32)) - 1)}'

def srd(a, d, p, nbytes):
    a(f's_mov_b32 s{d}, s{p}\ns_mov_b32 s{d+1}, s{p+1}\ns_mov_b32 s{d+2}, {nbytes}\ns_mov_b32 s{d+3}, 0x20000')

def visit(a, site):
    if not opt('visit', 1): return
    a('s_mov_b64 exec, 0')
    for w in range(4):
        a(f's_cmp_eq_u32 s{S_W}, {w}\ns_cbranch_scc1 Lpage{1 + 4*site + w}')
    a.label(f'Lvis{site}')
    a('s_mov_b64 exec, -1')

def halfsum(a, x, t):
    a(f'v_mov_b32 v{t}, v{x}\nv_permlane32_swap_b32 v{x}, v{t}\nv_add_f32 v{x}, v{x}, v{t}')

def flag_store(a, sreg, vt):
    a(f'v_mov_b32 v{vt}, s{S_TAG}\ns_mov_b64 exec, 1')
    a.vmem(f'buffer_store_dword v{vt}, v{V_OFF}, {sr4(SRD_WS)}, s{sreg} offen sc1', 'flag')
    a('s_mov_b64 exec, -1')

def poll_issue(a, sreg, vaddr, nl, vt):
    a(xm(nl))
    a.vmem(f'buffer_load_dword v{vt}, v{vaddr}, {sr4(SRD_WS)}, s{sreg} offen sc1', 'poll')
    a('s_mov_b64 exec, -1')

def poll_check(a, sreg, vaddr, nl, vt):
    L = a.newlabel('poll'); D = L + 'd'
    a(xm(nl) + f'\ns_mov_b32 s{S_SPIN}, 0x40000')
    a.vmwait('poll')
    a(f'v_cmp_ne_u32 vcc, s{S_TAG}, v{vt}\ns_cbranch_vccz {D}')
    a.label(L)
    a(f'''
    {f"s_sleep {opt('sleep', 0)}" if opt('sleep', 0) else ''}
    buffer_load_dword v{vt}, v{vaddr}, {sr4(SRD_WS)}, s{sreg} offen sc1
    s_sub_u32 s{S_SPIN}, s{S_SPIN}, 1
    s_waitcnt vmcnt(0)
    s_cbranch_scc1 {D}
    v_cmp_ne_u32 vcc, s{S_TAG}, v{vt}
    s_cbranch_vccnz {L}
    ''')
    a.label(D)
    a('s_mov_b64 exec, -1')

def ssrd(a, D, lim, pa, pb, na, nb, per, u0, u1):
    a(f'''
    s_lshl_b32 s{u0}, s2, 2
    s_add_u32 s{u0}, s{u0}, s{S_W}
    s_mov_b32 s{D+2}, {na}
    s_cmp_ge_u32 s{u0}, {lim}
    s_cselect_b32 s{D}, s{pb}, s{pa}
    s_cselect_b32 s{D+1}, s{pb+1}, s{pa+1}
    s_cselect_b32 s{D+2}, {nb}, s{D+2}
    s_cselect_b32 s{u1}, {lim}, 0
    s_sub_u32 s{u0}, s{u0}, s{u1}
    s_mul_i32 s{u0}, s{u0}, {per}
    s_min_u32 s{u0}, s{u0}, s{D+2}
    s_sub_u32 s{D+2}, s{D+2}, s{u0}
    s_add_u32 s{D}, s{D}, s{u0}
    s_addc_u32 s{D+1}, s{D+1}, 0
    s_mov_b32 s{D+3}, 0x20000
    ''')

def sld(D, o): return f's_buffer_load_dwordx2 s[{S_DUM}:{S_DUM+1}], {sr4(D)}, {o + 60}'

def phase_a(a, R):
    WR = 114688
    WQ = 16384
    CSP = WR + 5 * 8192
    PRV = CSP + 1536
    QX = 49152
    assert PRV + 2048 <= LDS_BYTES
    R['QX'] = QX
    Q0 = R['Q'][0]
    va = VA(4, 256)
    ACC = [va(16), va(16)]; accQ = va(16)
    PK = va(8); assert PK == Q0, (PK, Q0)
    X = [va(4) for _ in range(28)]
    NWF = 4
    WF = [[va(4) for j in range(2)] for b in range(NWF)]
    vx = [va(), va()]; vw = [va(), va()]
    ax = [va() for _ in range(4)]; aw = [va() for _ in range(4)]; ab = [va() for _ in range(4)]
    pr = [va(2) for _ in range(6)]
    cs = [pr[0], pr[1], pr[2]]; mu = pr[3]; rs = pr[4]; rq = pr[5]
    sm = [pr[0] + 1, pr[1] + 1]; sq = [pr[2] + 1, pr[3] + 1]
    hf = pr[4] + 1; n31 = pr[5] + 1
    vq = va()
    t = [va() for _ in range(7)] + [0]
    dB = t[7]
    assert va.n <= 240, va.n
    T16 = 240; U16 = accQ
    a(f'v_lshrrev_b32 v{hf}, 5, v{V_LANE}\nv_and_b32 v{n31}, 31, v{V_LANE}')
    for i in range(2):
        a(f'''
        v_lshrrev_b32 v{t[0]}, 3, v{V_LANE}
        v_add_u32 v{t[0]}, {8*i}, v{t[0]}
        v_lshrrev_b32 v{t[1]}, 1, v{t[0]}
        v_and_b32 v{t[1]}, 7, v{t[1]}
        v_and_b32 v{t[2]}, 7, v{V_LANE}
        v_xor_b32 v{t[1]}, v{t[1]}, v{t[2]}
        v_lshlrev_b32 v{t[1]}, 4, v{t[1]}
        v_mul_u32_u24 v{t[0]}, 896, v{t[0]}
        v_add_u32 v{vx[i]}, v{t[0]}, v{t[1]}
        ''')
    a(f'''
    v_subrev_u32 v{vx[1]}, 1024, v{vx[1]}
    v_lshrrev_b32 v{t[0]}, 3, v{V_LANE}
    v_lshrrev_b32 v{t[1]}, 2, v{V_LANE}
    v_and_b32 v{t[1]}, 4, v{t[1]}
    v_xor_b32 v{t[1]}, v{t[1]}, v{t[2]}
    v_min_u32 v{t[1]}, 6, v{t[1]}
    v_mul_u32_u24 v{t[0]}, 2688, v{t[0]}
    v_lshl_add_u32 v{vw[0]}, v{t[1]}, 4, v{t[0]}
    v_add_u32 v{vw[1]}, {8*2688 - 1024}, v{vw[0]}
    s_waitcnt lgkmcnt(0)
    ''')
    srd(a, SRD_X, P_X, X_BYTES); srd(a, SRD_WQKV, P_WQKV, WQKV_BYTES)
    SX, SW, LX, LW = T3, T4, T5, T6
    a(f'''
    s_lshl_b32 s{SX}, s{S_TB}, 2
    s_add_u32 s{SX}, s{SX}, s{S_W}
    s_mul_i32 s{SX}, s{SX}, {32*896}
    s_mul_i32 s{SW}, s{S_W}, {16*2688}
    s_lshr_b32 s{T0}, s{S_H}, 1
    s_mul_i32 s{T0}, s{T0}, 112
    s_add_u32 s{SW}, s{SW}, s{T0}
    s_and_b32 s{T0}, s{S_H}, 1
    s_mul_i32 s{T0}, s{T0}, 896
    s_add_u32 s{SW}, s{SW}, s{T0}
    s_add_u32 s{SW}, s{SW}, 896
    s_mul_i32 s{LX}, s{S_W}, 28672
    s_lshl_b32 s{LW}, s{S_W}, 11
    ''')
    def w_items(c):
        lds = WR + c * 8192 if c < 5 else (c - 5) * 8192
        return [[f's_add_u32 m0, s{LW}, {lds}', f's_mul_i32 s{T0}, s{S_ROT}, {64*2688}', f's_add_u32 s{T0}, s{T0}, s{SW}',
                 ('vm', f'buffer_load_dwordx4 v{vw[0]}, {sr4(SRD_WQKV)}, s{T0} offen lds', f'w{c}')],
                [('vm', f'buffer_load_dwordx4 v{vw[1]}, {sr4(SRD_WQKV)}, s{T0} offen offset:1024 lds', f'w{c}'),
                 f's_add_u32 s{S_ROT}, s{S_ROT}, 1', f's_cmp_eq_u32 s{S_ROT}, 7', f's_cselect_b32 s{S_ROT}, 0, s{S_ROT}']]
    def x_items(c):
        out = []
        for i in range(4):
            out.append(([f's_add_u32 m0, s{LX}, {c*4096}', f's_add_u32 s{T0}, s{S_RX}, s{SX}'] if i == 0 else []) +
                       ([f's_add_u32 s{T0}, s{T0}, 12288'] if i == 2 else []) +
                       [('vm', f'buffer_load_dwordx4 v{vx[i&1]}, {sr4(SRD_X)}, s{T0} offen offset:{1024*i} lds', f'x{c}')] +
                       ([f's_add_u32 s{S_RX}, s{S_RX}, 128', f's_cmp_eq_u32 s{S_RX}, 896', f's_cselect_b32 s{S_RX}, 0, s{S_RX}'] if i == 3 else []))
        return out
    def put(items):
        for it in items:
            for x in it: a.emit(x)
    a.stamp('G_karg')
    NPRE = opt('npre', 2)
    a(f'''
    s_lshr_b32 s{S_ROT}, s{S_J}, 3
    s_mul_i32 s{S_ROT}, s{S_ROT}, {opt('rotm', 2)}
    s_and_b32 s{T0}, s{S_J}, 7
    s_add_u32 s{S_ROT}, s{S_ROT}, s{T0}
    s_mul_i32 s{T0}, s{S_ROT}, 37
    s_lshr_b32 s{T0}, s{T0}, 8
    s_mul_i32 s{T0}, s{T0}, 7
    s_sub_u32 s{S_ROT}, s{S_ROT}, s{T0}
    s_lshl_b32 s{S_DUM}, s{S_ROT}, 2
    s_lshl_b32 s{S_RX}, s{S_ROT}, 7
    ''')
    put(x_items(0))
    srd(a, SRD_B, P_WO, WO_BYTES)
    a(f'''
    s_lshl_b32 s{S_WG}, s{S_H}, 4
    s_add_u32 s{S_WG}, s{S_WG}, s{S_TB}
    s_lshl_b32 s{T1}, s{S_W}, 7
    s_add_u32 s{T1}, s{T1}, s{S_WG}
    s_cmp_lt_u32 s{T1}, 112
    s_cselect_b32 s{S_WG}, s{S_WG}, 0x100000
    s_mul_i32 s{S_WG+1}, s{S_WG}, {4*896 // 16}
    s_lshl_b32 s{S_WG+1}, s{S_WG+1}, 4
    s_min_u32 s{S_WG+1}, s{S_WG+1}, 0x40000000
    ''')
    def wrow_items():
        return [[f'v_cmp_gt_u32 vcc, 56, v{V_LANE}', f'v_mov_b32 v{t[5]}, 0x40000000', 's_nop 0', f'v_cndmask_b32 v{t[5]}, v{t[5]}, v{V_OFF}, vcc']] + \
               [[('vm', f'buffer_load_dwordx4 {vr(WROW+4*i,4,"a")}, v{t[5]}, {sr4(SRD_B)}, s{S_WG+1} offen offset:{896*i}', 'wrow')] for i in range(4)]
    put(wrow_items() + w_items(0) + w_items(1))
    for c in range(1, NPRE): put(x_items(c))
    a.stamp('G_dma0')
    assert T1 % 2 == 0 and T2 == T1 + 1
    a(f's_add_u32 s{T1}, s{P_WS}, {WS_FLG}\ns_addc_u32 s{T2}, s{P_WS+1}, 0\ns_load_dword s{S_TAG}, s[{T1}:{T2}], 0')
    srd(a, SRD_WS, P_WS, WS_SIZE)
    def touch_item():
        TA, TB, TC = T1, T2, T0
        return [f's_lshl_b32 s{TA}, s2, 2', f's_add_u32 s{TA}, s{TA}, s{S_W}', f's_mul_i32 s{TB}, s{TA}, 1338', f's_lshr_b32 s{TB}, s{TB}, 18',
                f's_mul_i32 s{TC}, s{TB}, 196', f's_sub_u32 s{TA}, s{TA}, s{TC}', f's_lshl_b32 s{TA}, s{TA}, 13',
                f's_cmp_eq_u32 s{TB}, 1', f's_cselect_b32 s{SRD_A}, s{P_W3}, s{P_W1}', f's_cselect_b32 s{SRD_A+1}, s{P_W3+1}, s{P_W1+1}',
                f's_cmp_eq_u32 s{TB}, 2', f's_cselect_b32 s{SRD_A}, s{P_W2}, s{SRD_A}', f's_cselect_b32 s{SRD_A+1}, s{P_W2+1}, s{SRD_A+1}',
                f's_mov_b32 s{SRD_A+2}, {W1_BYTES}',
                f's_cmp_eq_u32 s{TB}, 3', f's_cselect_b32 s{SRD_A}, s{P_WO}, s{SRD_A}', f's_cselect_b32 s{SRD_A+1}, s{P_WO+1}, s{SRD_A+1}',
                f's_cselect_b32 s{SRD_A+2}, {WO_BYTES}, s{SRD_A+2}',
                f's_cmp_gt_u32 s{TB}, 3', f's_cselect_b32 s{SRD_A+2}, 0, s{SRD_A+2}', f's_mov_b32 s{SRD_A+3}, 0x20000',
                ('vm', f'buffer_load_dword a0, v{V_FL}, {sr4(SRD_A)}, s{TA} offen', 'touch')]
    def prew():
        a(f'''
        v_mov_b32 v{t[7]}, s{S_TAG}
        v_add_u32 v{t[7]}, -1, v{t[7]}
        v_lshlrev_b32 v{t[5]}, 2, v{V_LANE}
        {xm(32)}
        s_lshr_b32 s{T1}, s{S_H}, 1
        s_lshl_b32 s{T1}, s{T1}, 2
        s_add_u32 s{T1}, s{T1}, s{S_W}
        s_lshl_b32 s{T1}, s{T1}, 1
        s_and_b32 s{T2}, s{S_H}, 1
        s_add_u32 s{T1}, s{T1}, s{T2}
        s_lshl_b32 s{T1}, s{T1}, 4
        s_add_u32 s{T1}, s{T1}, s{S_TB}
        s_lshl_b32 s{T1}, s{T1}, 7
        s_add_u32 s{T1}, s{T1}, {FL_A}
        ''')
        st_ = lambda: a.vmem(f'buffer_store_dword v{t[7]}, v{t[5]}, {sr4(SRD_WS)}, s{T1} offen sc1', 'prew')
        st_()
        a(f's_lshl_b32 s{T1}, s{S_TB}, 2\ns_add_u32 s{T1}, s{T1}, s{S_W}\ns_lshl_b32 s{T1}, s{T1}, 4\ns_add_u32 s{T1}, s{T1}, s{S_H}\ns_lshl_b32 s{T1}, s{T1}, 7\ns_add_u32 s{T1}, s{T1}, {FL_B}')
        st_()
        a(f's_lshl_b32 s{T1}, s{S_TD}, 2\ns_add_u32 s{T1}, s{T1}, s{S_W}\ns_lshl_b32 s{T1}, s{T1}, 4\ns_add_u32 s{T1}, s{T1}, s{S_FS}\ns_lshl_b32 s{T1}, s{T1}, 7\ns_add_u32 s{T1}, s{T1}, {FL_D1}')
        for i in range(3):
            st_(); a(f's_add_u32 s{T1}, s{T1}, {FLS}')
        a(f's_lshl_b32 s{T1}, s{S_WG}, 7\ns_add_u32 s{T1}, s{T1}, {FL_W}')
        st_()
        a(f'''
        s_lshl_b32 s{T1}, s{S_RB}, 1
        s_and_b32 s{T2}, s{S_W}, 1
        s_add_u32 s{T1}, s{T1}, s{T2}
        s_lshl_b32 s{T1}, s{T1}, 3
        s_add_u32 s{T1}, s{T1}, s{S_CB}
        s_lshl_b32 s{T1}, s{T1}, 1
        s_lshr_b32 s{T2}, s{S_W}, 1
        s_add_u32 s{T1}, s{T1}, s{T2}
        s_lshl_b32 s{T1}, s{T1}, 7
        s_add_u32 s{T1}, s{T1}, {FL_C}
        s_cmp_ge_u32 s{S_J}, 28
        s_cselect_b32 s{T1}, 0x40000000, s{T1}
        ''')
        st_()
        a('s_mov_b64 exec, -1')
        if opt('tlb', 0):
            st = opt('tlb', 0) * 1024
            a(f'v_mul_u32_u24 v{t[5]}, {st // 64}, v{V_LANE}\nv_lshlrev_b32 v{t[5]}, 6, v{t[5]}\ns_mov_b32 s{T1}, {opt("tlbo", 0)}')
            a.vmem(f'buffer_load_dword a5, v{t[5]}, {sr4(SRD_WS)}, s{T1} offen', 'tlb')
            if opt('tlbout', 0):
                srd(a, SRD_B, P_OUT, X_BYTES)
                a.vmem(f'buffer_load_dword a6, v{t[5]}, {sr4(SRD_B)}, 0 offen', 'tlb')
    def dmaq_items():
        out = []
        for i in range(7):
            out.append([] +
                       [f's_add_u32 m0, s{S_U0}, {i*1024}', f's_mul_i32 s{T0}, s{S_U1}, {16*2688}', f's_add_u32 s{T0}, s{T0}, s{S_E0}',
                        ('vm', f'buffer_load_dwordx4 v{vq}, {sr4(SRD_WQKV)}, s{T0} offen lds', 'wq'),
                        f's_add_u32 s{S_U1}, s{S_U1}, 1', f's_cmp_eq_u32 s{S_U1}, 28', f's_cselect_b32 s{S_U1}, 0, s{S_U1}'])
        return out
    a(f'''
    s_mul_i32 s{S_U0}, s{S_W}, {7*1024}
    s_add_u32 s{S_U0}, s{S_U0}, {WQ}
    s_mul_i32 s{S_U1}, s{S_W}, 7
    s_add_u32 s{S_U1}, s{S_U1}, s{S_DUM}
    s_cmp_ge_u32 s{S_U1}, 28
    s_cselect_b32 s{T0}, 28, 0
    s_sub_u32 s{S_U1}, s{S_U1}, s{T0}
    s_mul_i32 s{S_E0}, s{S_H}, 56
    ''')
    a(f'''
    v_lshrrev_b32 v{t[0]}, 2, v{V_LANE}
    v_mul_u32_u24 v{t[0]}, 2688, v{t[0]}
    v_and_b32 v{t[3]}, 3, v{V_LANE}
    v_lshl_add_u32 v{vq}, v{t[3]}, 4, v{t[0]}
    v_lshrrev_b32 v{t[0]}, 1, v{n31}
    v_and_b32 v{t[0]}, 7, v{t[0]}
    v_lshlrev_b32 v{t[1]}, 7, v{n31}
    v_add_u32 v{t[1]}, s{LX}, v{t[1]}
    v_bfe_u32 v{t[2]}, v{V_LANE}, 4, 1
    v_lshlrev_b32 v{t[2]}, 5, v{t[2]}
    v_lshl_add_u32 v{t[2]}, v{t[3]}, 3, v{t[2]}       ; cg*32 + c4*8
    v_bfe_u32 v{t[3]}, v{V_LANE}, 2, 2                ; r
    v_lshl_add_u32 v{t[5]}, v{hf}, 3, v{t[3]}         ; 8hf + r
    v_lshl_add_u32 v{t[6]}, v{t[5]}, 6, v{t[2]}
    v_bfe_u32 v{t[3]}, v{V_LANE}, 3, 1
    v_lshlrev_b32 v{t[3]}, 6, v{t[3]}                 ; 64*bit
    v_add_u32 v{t[4]}, 56, v{t[2]}
    v_xor_b32 v{t[4]}, v{t[4]}, v{t[3]}
    v_xor_b32 v{t[2]}, v{t[2]}, v{t[3]}
    v_sub_u32 v{dB}, v{t[4]}, v{t[2]}
    v_lshl_add_u32 v{t[2]}, v{t[5]}, 7, v{t[2]}
    v_add_u32 v{t[2]}, {WR}, v{t[2]}
    ''')
    AQ = t[6]
    for n in range(4):
        a(f'''
        s_add_u32 s{T0}, s{S_W}, {n}
        s_and_b32 s{T0}, s{T0}, 3
        s_lshl_b32 s{T1}, s{T0}, 1
        v_add_u32 v{t[4]}, s{T1}, v{hf}
        v_xor_b32 v{t[4]}, v{t[4]}, v{t[0]}
        v_lshl_add_u32 v{ax[n]}, v{t[4]}, 4, v{t[1]}
        s_lshl_b32 s{T1}, s{T0}, 11
        v_add_u32 v{aw[n]}, s{T1}, v{t[2]}
        v_add_u32 v{ab[n]}, v{dB}, v{aw[n]}
        ''')
    for r in sm + sq + cs: a(f'v_mov_b32 v{r}, 0')
    a(f's_mov_b32 s{S_ONES}, 0x3f803f80')
    PA = t[0]; CA = t[1]; CR = t[2]; PB = vx[0]
    if opt('spre', 1):
        ssrd(a, SRD_A, 512, P_W1, P_W3, W1_BYTES, W1_BYTES, 3200, T1, T2)
    if opt('wqt', 0):
        a(f'''
        s_lshr_b32 s{T1}, s{S_J}, 3
        s_lshl_b32 s{T1}, s{T1}, 2
        s_add_u32 s{T1}, s{T1}, s{S_W}
        s_mul_i32 s{T1}, s{T1}, {28*2688}
        s_add_u32 s{T1}, s{T1}, s{S_E0}
        v_lshrrev_b32 v{t[5]}, 1, v{V_LANE}
        v_mul_u32_u24 v{t[5]}, 2688, v{t[5]}
        v_and_b32 v{t[4]}, 1, v{V_LANE}
        v_mul_u32_u24 v{t[4]}, 60, v{t[4]}
        v_add_u32 v{t[5]}, v{t[5]}, v{t[4]}
        {xm(56)}
        ''')
        a.vmem(f'buffer_load_dword a5, v{t[5]}, {sr4(SRD_WQKV)}, s{T1} offen', 'wqt')
        a('s_mov_b64 exec, -1')
    visit(a, 0)
    a.stamp('A_issued')
    ONE = PK; assert ONE % 2 == 0
    for i in range(4): a(f'v_mov_b32 v{ONE+i}, s{S_ONES}')
    steps = list(range(20)) + [20, 24, 21, 22, 23, 25, 26, 27]
    def reads(p_):
        s_ = steps[p_]; c, n = divmod(s_, 4); b = p_ % NWF; off = (c if c < 5 else c - 5) * 8192
        return [f'ds_read_b64_tr_b16 {vr(WF[b][0]+2*u,2)}, v{aw[n]} offset:{off + u*512}' for u in range(2)] + \
               [f'ds_read_b64_tr_b16 {vr(WF[b][1]+2*u,2)}, v{ab[n]} offset:{off + u*512}' for u in range(2)]
    hs = lambda x, tt: [f'v_mov_b32 v{tt}, v{x}', f'v_permlane32_swap_b32 v{x}, v{tt}', f'v_add_f32 v{x}, v{x}, v{tt}']
    CS = [accQ, T16]
    def dots(c, side):
        for n in range(4):
            x = X[4*c+n]
            for i in range(4):
                a(f'v_dot2c_f32_bf16 v{sm[i&1]}, s{S_ONES}, v{x+i}')
                a(f'v_dot2c_f32_bf16 v{sq[i&1]}, v{x+i}, v{x+i}')
            side()
    def xread(c):
        for n in range(4): a(f'ds_read_b128 {vr(X[4*c+n],4)}, v{ax[n]} offset:{c*4096}')
    a.vmwait('x0', lgkm=0)
    a.stamp('A_c0'); a(f's_add_u32 s{S_TAG}, s{S_TAG}, 1')
    xread(0)
    if opt('prew', 1): prew()
    a(f's_bitcmp1_b32 s{S_H}, 0\ns_cbranch_scc1 LAV')
    vm0 = list(a.vm)
    for typ in range(2):
        if typ == 1:
            a.label('LAV'); a.vm = list(vm0)
        NQE = 7
        def mf(p_, j):
            x = X[steps[p_]]; b = p_ % NWF
            A_, B_ = (WF[b][j], x) if typ == 0 else (x, WF[b][j])
            return f'{MFMA} {vr(ACC[j],16)}, {vr(A_,4)}, {vr(B_,4)}, {vr(ACC[j],16) if p_ else 0}'
        def mlist(p_):
            M = [mf(p_, 0), mf(p_, 1)]
            if steps[p_] % 4 == 0:
                M = [f'{MFMA} {vr(CS[j],16)}, {vr(ONE,4)}, {vr(WF[p_ % NWF][j],4)}, {vr(CS[j],16) if p_ else 0}' for j in range(2)] + M
            return M
        q_dma = []
        for c in range(NPRE, 5): q_dma += x_items(c)
        q_dma += w_items(2) + x_items(5) + x_items(6) + w_items(3) + w_items(4)
        def side1(k=opt('dmaper', 2)):
            for _ in range(k):
                if q_dma: put([q_dma.pop(0)])
        side1(4)
        for c in range(1, 7):
            while any(isinstance(x, tuple) and x[2] == f'x{c}' for it in q_dma for x in it): put([q_dma.pop(0)])
            a.vmwait(f'x{c}'); a.stamp(f'G_x{c}')
            xread(c)
            if c == 1:
                a('s_barrier')
                for x in reads(0) + reads(1): a(x)
                a('s_waitcnt lgkmcnt(12)')
            elif c == 6:
                put(q_dma); q_dma = []
                a('s_waitcnt lgkmcnt(0)\ns_barrier')
                a.stamp('A_x')
                for x in reads(8) + reads(9): a(x)
                put(w_items(5))
            else:
                a('s_waitcnt lgkmcnt(4)')
            dots(c - 1, side1)
            if c in (1, 2):
                for p_ in range(4 * (c - 1), 4 * c):
                    a('s_waitcnt lgkmcnt(4)' if p_ < 7 else 's_waitcnt lgkmcnt(0)')
                    rd = reads(p_ + 2) if p_ + 2 < 8 else []
                    M = mlist(p_)
                    for k_, m_ in enumerate(M):
                        a(m_)
                        if k_ >= len(M) - 2:
                            for y in (rd[:2] if k_ == len(M) - 2 else rd[2:]): a(y)
                        side1(1)
        dots(6, lambda: None)
        q2 = w_items(6) + dmaq_items()
        ex = [f'v_add_f32 v{sm[0]}, v{sm[0]}, v{sm[1]}', f'v_add_f32 v{sq[0]}, v{sq[0]}, v{sq[1]}'] + hs(sm[0], t[3]) + hs(sq[0], t[4]) + [
              f'v_mul_f32 v{mu}, {fx(1.0/448)}, v{sm[0]}', f'v_mul_f32 v{t[3]}, {fx(1.0/448)}, v{sq[0]}',
              f'v_fma_f32 v{t[3]}, -v{mu}, v{mu}, v{t[3]}', f'v_max_f32 v{t[3]}, 0, v{t[3]}', f'v_add_f32 v{t[3]}, {fx(1e-5)}, v{t[3]}',
              f'v_rsq_f32 v{rs}, v{t[3]}', f'v_lshlrev_b32 v{t[4]}, 2, v{n31}',
              f's_lshl_b32 s{T2}, s{S_W}, 9', f's_add_u32 s{T2}, s{T2}, {PRV}',
              f'v_add_u32 v{PA}, s{T2}, v{t[4]}', f'v_lshlrev_b32 v{PB}, 4, v{hf}', f'v_add_u32 v{PB}, s{T2}, v{PB}',
              f's_mul_i32 s{T2}, s{S_W}, 384', f's_add_u32 s{T2}, s{T2}, {CSP}', f'v_add_u32 v{CA}, s{T2}, v{t[4]}',
              f'v_mul_u32_u24 v{CR}, 768, v{hf}', f'v_add_u32 v{CR}, v{CR}, v{t[4]}', f'v_add_u32 v{CR}, {CSP}, v{CR}',
              f'v_mul_f32 v{rq}, {fx(28**-0.5 * math.log2(math.e))}, v{rs}']
        for p_ in range(8, 28):
            if p_ == 10:
                a.vmwait('w4', lgkm=0); a('s_barrier'); a.stamp('G_w4')
            elif p_ == 18:
                while any(isinstance(x, tuple) and x[0] == 'vm' and x[2] == 'w6' for it in q2 for x in it): put([q2.pop(0)])
                a.vmwait('w6', lgkm=0); a('s_barrier'); a.stamp('G_w6')
                for n in range(4): a(f'v_subrev_u32 v{aw[n]}, {WR}, v{aw[n]}\nv_subrev_u32 v{ab[n]}, {WR}, v{ab[n]}')
            elif p_ <= 22: a('s_waitcnt lgkmcnt(4)')
            elif p_ == 23: pass
            rd = reads(p_ + 2) if p_ + 2 < 28 and p_ < 21 else []
            if p_ == 21: rd = reads(23) + reads(24)
            M = mlist(p_)
            if p_ == 22:
                assert not ex
                ex = [f'ds_write_b32 v{CA}, v{CS[0]} offset:128', f'ds_write_b32 v{CA}, v{CS[1]} offset:256']
                if typ == 1: ex += [f'ds_write_b32 v{PA}, v{mu} offset:256', f'ds_write_b32 v{PA}, v{rs} offset:384']
                ex += reads(25) + ['s_waitcnt lgkmcnt(0)', 's_barrier'] + reads(26) + reads(27)
                for j in (1, 2): ex += [f'ds_read_b32 v{cs[j]}, v{CR} offset:{j*128}', f'ds_read_b32 v{t[3+j]}, v{CR} offset:{384 + j*128}']
                if typ == 1:
                    for q in range(4): ex += [f'ds_read_b128 {vr(T16+4*q,4)}, v{PB} offset:{256 + 32*q}', f'ds_read_b128 {vr(U16+4*q,4)}, v{PB} offset:{384 + 32*q}']
                    ex += ['s_waitcnt lgkmcnt(8)']
                else: ex += ['s_waitcnt lgkmcnt(0)']
                tail = [f'v_add_f32 v{cs[j]}, v{cs[j]}, v{t[3+j]}' for j in (1, 2)] + hs(cs[1], t[3]) + hs(cs[2], t[4])
                if typ == 0:
                    tail += [f'ds_write_b32 v{PA}, v{cs[1]}', f'ds_write_b32 v{PA}, v{cs[2]} offset:128']
                    tail += [f'ds_read_b128 {vr(T16+4*q,4)}, v{PB} offset:{32*q}' for q in range(4)]
                    tail += [f'ds_read_b128 {vr(U16+4*q,4)}, v{PB} offset:{128 + 32*q}' for q in range(4)]
                    tail += [f'v_cmp_lt_u32 vcc, 31, v{V_LANE}']
                else:
                    tail += [f'v_cmp_eq_u32 vcc, 28, v{n31}', f'v_mov_b32 v{t[7]}, s{S_ONES}', f'v_cndmask_b32 v{t[7]}, 0, v{t[7]}, vcc', f'v_cmp_lt_u32 vcc, 27, v{n31}']
                tail += [f's_lshl_b32 s{T0}, s{S_TB}, 2', f's_add_u32 s{T0}, s{T0}, s{S_W}', f's_and_b32 s{T1}, s{S_H}, 14', f's_lshl_b32 s{T1}, s{T1}, 6',
                         f's_add_u32 s{T0}, s{T0}, s{T1}', f's_lshl_b32 s{T0}, s{T0}, 12', f's_add_u32 s{T1}, s{T0}, {64*4096}']
            if p_ == 26:
                for x in ex: a(x)
                ex = tail
            for k_, m_ in enumerate(M):
                a(m_)
                if k_ >= len(M) - 2:
                    h_ = (len(rd) + 1) // 2
                    for y in (rd[:h_] if k_ == len(M) - 2 else rd[h_:]): a(y)
                if p_ < 22:
                    for x in ex[:3]: a(x)
                    ex = ex[3:]
                    if q2 and k_ == len(M) - 1 and (len(q2) > 7 or p_ >= opt('wq0', 10)): put([q2.pop(0)])
                else:
                    lim = {22: 4, 23: 4, 24: 100, 25: 100, 26: 8, 27: 8}[p_]
                    if p_ in (24, 25):
                        lim = 6
                    for x in ex[:lim]: a(x)
                    ex = ex[lim:]
        for x in ex: a(x)
        assert not q2
        a.stamp('A_kvloop')
        NEG1 = 'op_sel_hi:[1,0,1] neg_lo:[0,1,0] neg_hi:[0,1,0]'
        for j in range(2):
            A_ = ACC[j]; P_ = WF[j][0]
            if typ == 0:
                a(f's_waitcnt lgkmcnt({4*(1-j)})')
                C_ = (T16, U16)[j]
                for r in range(0, 16, 2): a(f'v_pk_fma_f32 {vr(A_+r,2)}, {vr(C_+r,2)}, {vr(mu,2)}, {vr(A_+r,2)} {NEG1}')
                for r in range(0, 16, 2): a(f'v_pk_mul_f32 {vr(A_+r,2)}, {vr(A_+r,2)}, {vr(rs,2)} op_sel_hi:[1,0]')
                for i in range(8): a(f'v_cvt_pk_bf16_f32 v{P_+i}, v{A_+2*i}, v{A_+2*i+1}')
                if j == 0: a(f'v_mov_b32 v{t[3]}, s{S_ONES}\nv_mov_b32 v{t[4]}, 0x3f80')
                a(f'v_cndmask_b32 v{P_+6}, v{P_+6}, v{t[3]}, vcc\nv_cndmask_b32 v{P_+7}, v{P_+7}, v{t[4]}, vcc')
            else:
                if j == 0: a('s_waitcnt lgkmcnt(0)')
                for r in range(0, 16, 2): a(f'v_pk_fma_f32 {vr(A_+r,2)}, {vr(T16+r,2)}, {vr(cs[1+j],2)}, {vr(A_+r,2)} {NEG1}')
                for r in range(0, 16, 2): a(f'v_pk_mul_f32 {vr(A_+r,2)}, {vr(A_+r,2)}, {vr(U16+r,2)}')
                for i in range(8): a(f'v_cvt_pk_bf16_f32 v{P_+i}, v{A_+2*i}, v{A_+2*i+1}')
                for i in range(8): a(f'v_cndmask_b32 v{P_+i}, v{P_+i}, v{t[7]}, vcc')
            for u in range(2):
                a.vmem(f'buffer_store_dwordx4 {vr(P_+4*u,4)}, v{V_OFF}, {sr4(SRD_WS)}, s{(T0, T1)[j]} offen offset:{2048*typ + 1024*u} sc1', 'stA')
        if typ == 0: a('s_branch LAQ')
    a.label('LAQ')
    (a.stamp('A_kvst'), a.stamp('R_A_kvstc'), a.stamp('R_A_kvstr', True))
    aq = aw
    for n in range(4):
        a(f'''
        s_add_u32 s{T0}, s{S_W}, {n}
        s_and_b32 s{T0}, s{T0}, 3
        s_lshl_b32 s{T0}, s{T0}, 10
        s_add_u32 s{T0}, s{T0}, {WQ}
        v_add_u32 v{aq[n]}, s{T0}, v{AQ}
        ''')
    a(f'''
    s_lshr_b32 s{T1}, s{S_H}, 1
    s_lshl_b32 s{T1}, s{T1}, 2
    s_add_u32 s{T1}, s{T1}, s{S_W}
    s_lshl_b32 s{T1}, s{T1}, 12
    s_add_u32 s{T5}, s{T1}, {FL_A}
    s_and_b32 s{T1}, s{S_H}, 1
    s_lshl_b32 s{T1}, s{T1}, 4
    s_add_u32 s{T1}, s{T1}, s{S_TB}
    s_lshl_b32 s{T1}, s{T1}, 7
    s_add_u32 s{T1}, s{T5}, s{T1}
    ''')
    def publish():
        a.vmwait('stA'); flag_store(a, T1, t[3]); a.stamp('A_flag')
    FAQ = opt('fAq', 7)
    for i, it in enumerate(dmaq_items()):
        if i >= NQE:
            for x in it: a.emit(x)
        if i == FAQ: publish()
    a.vmwait('wq'); a('s_barrier')
    a.stamp('A_wq')
    QB = [ACC[0] + 4*i for i in range(8)]
    NQ = 8
    qs = [4*c for c in range(7)] + [4*c + n for c in range(7) for n in (1, 2, 3)]
    def rdq(p_):
        c, n = divmod(qs[p_], 4)
        return [f'ds_read_b64_tr_b16 {vr(QB[p_ % NQ]+2*u,2)}, v{aq[n]} offset:{c*4096 + u*256}' for u in range(2)]
    AH = 5
    for p_ in range(AH):
        for x in rdq(p_): a(x)
    ex = []
    extra = 0
    for p_ in range(28):
        if p_ < 9 or p_ > 16:
            a(f's_waitcnt lgkmcnt({2 * (min(28, p_ + AH) - p_ - 1)})')
        else:
            a('s_waitcnt lgkmcnt(4)')
        if p_ < 7: a(f'{MFMA} {vr(T16,16)}, {vr(ONE,4)}, {vr(QB[p_ % NQ],4)}, {vr(T16,16) if p_ else 0}')
        a(f'{MFMA} {vr(accQ,16)}, {vr(QB[p_ % NQ],4)}, {vr(X[qs[p_]],4)}, {vr(accQ,16) if p_ else 0}')
        if p_ + AH < 28:
            for x in rdq(p_ + AH): a(x)
        if p_ == 9: a(f'ds_write_b32 v{CA}, v{T16}')
        if p_ == 11: a(f's_waitcnt lgkmcnt(4)\ns_barrier\nds_read_b32 v{cs[0]}, v{CR}\nds_read_b32 v{t[4]}, v{CR} offset:384')
        if p_ == 14:
            for x in [f'v_add_f32 v{cs[0]}, v{cs[0]}, v{t[4]}'] + hs(cs[0], t[4]) + [f'ds_write_b32 v{PA}, v{cs[0]}']: a(x)
        if p_ == 15:
            for q in range(4): a(f'ds_read_b128 {vr(T16+4*q,4)}, v{PB} offset:{32*q}')
        if p_ == opt('fAs', 15) and FAQ > 6: publish()
    a(f'v_cmp_lt_u32 vcc, 31, v{V_LANE}')
    if opt('pollA', 1) == 2: poll_issue(a, T5, V_FL, 32, R['t'][0])
    a('s_waitcnt lgkmcnt(0)')
    NEG1 = 'op_sel_hi:[1,0,1] neg_lo:[0,1,0] neg_hi:[0,1,0]'
    for r in range(0, 16, 2): a(f'v_pk_fma_f32 {vr(accQ+r,2)}, {vr(T16+r,2)}, {vr(mu,2)}, {vr(accQ+r,2)} {NEG1}')
    for r in range(0, 16, 2): a(f'v_pk_mul_f32 {vr(accQ+r,2)}, {vr(accQ+r,2)}, {vr(rq,2)} op_sel_hi:[1,0]')
    for i in range(8): a(f'v_cvt_pk_bf16_f32 v{Q0+i}, v{accQ+2*i}, v{accQ+2*i+1}')
    for i in (6, 7): a(f'v_cndmask_b32_e64 v{Q0+i}, v{Q0+i}, 0, vcc')
    a(f's_cmp_eq_u32 s{S_H}, 0\ns_cselect_b32 s{T0}, 1.0, 0\nv_mul_f32 v{MUX}, s{T0}, v{mu}')
    a.stamp('A_q')

def w13_setup(a, S13, L13):
    a(f'''
    s_cmp_lt_u32 s{S_W}, 2
    s_cselect_b32 s{SRD_B}, s{P_W1}, s{P_W3}
    s_cselect_b32 s{SRD_B+1}, s{P_W1+1}, s{P_W3+1}
    s_mov_b32 s{SRD_B+2}, {W1_BYTES}
    s_mov_b32 s{SRD_B+3}, 0x20000
    s_and_b32 s{T0}, s{S_W}, 1
    s_mul_i32 s{T0}, s{T0}, 7
    s_add_u32 s{T0}, s{T0}, s{S_R14}
    s_sub_u32 s{S_RG}, s{T0}, 14
    s_min_u32 s{S_RG}, s{S_RG}, s{T0}
    s_mul_i32 s{S_RG}, s{S_RG}, {32*3584}
    s_mul_i32 s{S13}, s{S_FS}, 224
    s_mul_i32 s{L13}, s{S_W}, 14336
    ''')

def rg_next():
    return [f's_add_u32 s{S_RG}, s{S_RG}, {32*3584}', f's_sub_u32 s{T0}, s{S_RG}, {14*32*3584}', f's_min_u32 s{S_RG}, s{S_RG}, s{T0}']

def pair_dma(S13, L13, slot, col, i, tag):
    return [f's_add_u32 m0, s{L13}, {slot*PAIR + i*1024}',
            f's_add_u32 s{T0}, s{S13}, s{S_RG}'] + ([f's_add_u32 s{T0}, s{T0}, {16*3584}'] if i & 1 else []) + \
           [('vm', f'buffer_load_dwordx4 v{V_P13}, {sr4(SRD_B)}, s{T0} offen lds', tag)] + (rg_next() if i & 1 else [])

def alloc_b():
    va = VA(4, 204)
    KV = [va(16) for _ in range(3)] + ([WOV] if opt('nkv', 4) == 4 else [])
    Q = [va(8) for _ in range(4)]
    O = [va(16) for _ in range(4)]
    S = [va(16), va(16)]
    P = [va(8), va(8)]
    t = [va() for _ in range(8)]
    v5 = 215 + 8
    return dict(KV=KV, Q=Q, O=O, S=S, P=P, t=t, v5=v5)

def phase_b(a, R, stg):
    KV, Q, O, S, P, t, v5 = (R[k] for k in ('KV', 'Q', 'O', 'S', 'P', 't', 'v5'))
    QX = R['QX']
    S13, L13, SKV, SB = T3, T4, T6, T2
    qa = t[4:8]
    MA = [240, 241, 242, 243]; VKV = 244; VP2 = 245; VX = 246
    a(f'''
    s_lshl_b32 s{SKV}, s{S_H}, 6
    s_add_u32 s{SKV}, s{SKV}, s{S_W}
    s_lshl_b32 s{SKV}, s{SKV}, 12
    v_add_u32 v{VKV}, s{SKV}, v{V_OFF}
    s_lshl_b32 s{SB}, s{S_TB}, 14
    ''')
    if opt('pollA', 1) == 1:
        visit(a, 1)
        W4 = R['S'][1]; RS = R['S'][1] + 4
        for i in range(4):
            for k_ in range(4): a(f'v_accvgpr_read_b32 v{W4+k_}, a{WROW+4*i+k_}')
            a(f'v_mov_b32 v{RS+i}, 0')
            for k_ in range(4): a(f'v_dot2c_f32_bf16 v{RS+i}, s{S_ONES}, v{W4+k_}')
        for m_ in ('row_shr:1', 'row_shr:2', 'row_shr:4', 'row_shr:8'):
            for i in range(4): a(f'v_add_f32_dpp v{RS+i}, v{RS+i}, v{RS+i} {m_} row_mask:0xf bank_mask:0xf bound_ctrl:1')
        for m_ in ('row_bcast:15 row_mask:0xa', 'row_bcast:31 row_mask:0xc'):
            for i in range(4): a(f'v_add_f32_dpp v{RS+i}, v{RS+i}, v{RS+i} {m_} bank_mask:0xf')
        for i in range(4): a(f'v_mul_f32 v{RS+i}, {fx(1/448)}, v{RS+i}')
        a(f's_lshl_b32 s{T0}, s{S_WG}, 4\ns_add_u32 s{T0}, s{T0}, {WS_WB - 63*16}\ns_mov_b32 exec_lo, 0\ns_brev_b32 exec_hi, 1')
        a.vmem(f'buffer_store_dwordx4 {vr(RS,4)}, v{V_OFF}, {sr4(SRD_WS)}, s{T0} offen sc1', 'stW')
        a('s_mov_b64 exec, -1')
        if opt('dlyA', 0): a(f"s_sleep {opt('dlyA', 0)}")
        poll_issue(a, T5, V_FL, 32, t[0])
    a.stamp('B_pre')
    poll_check(a, T5, V_FL, 32, t[0])
    a.stamp('B_poll')
    def kvload(buf):
        return [('vm', f'buffer_load_dwordx4 {vr(KV[buf]+4*j,4)}, v{VKV}, {sr4(SRD_WS)}, s{SB} offen offset:{1024*j} sc1', f'k{buf}' if j < 2 else f'kv{buf}') for j in range(4)] + \
               [f's_add_u32 s{SB}, s{SB}, 0x4000', f's_and_b32 s{SB}, s{SB}, 0x3c000']
    NKV = len(KV)
    NK0 = opt('nk0', 1)
    for b in range(NK0):
        for x in kvload(b): a.emit(x)
    for lq in range(4):
        a(f'''
        s_add_u32 s{T0}, s{S_W}, {lq}
        s_and_b32 s{T0}, s{T0}, 3
        s_lshl_b32 s{T0}, s{T0}, 11
        s_add_u32 s{T0}, s{T0}, {QX}
        v_add_u32 v{qa[lq]}, s{T0}, v{V_OFF}
        ''')
    a(f'ds_write_b128 v{qa[0]}, {vr(Q[0],4)}')
    stg.src_setup(t[1], t[2], t[3])
    w13_setup(a, S13, L13)
    a(f'''
    s_lshl_b32 s{T0}, s{S_E0}, 5
    s_add_u32 s{S13}, s{S13}, s{T0}
    s_and_b32 s{T0}, s{S_W}, 2
    v_and_b32 v{t[1]}, 3, v{V_LANE}
    v_xor_b32 v{t[1]}, s{T0}, v{t[1]}
    v_lshrrev_b32 v{t[2]}, 2, v{V_LANE}
    v_mul_u32_u24 v{t[2]}, 3584, v{t[2]}
    v_lshl_add_u32 v{V_P13}, v{t[1]}, 4, v{t[2]}
    s_lshl_b32 s{T0}, s{T0}, 1
    v_lshrrev_b32 v{t[1]}, 1, v{V_LANE}
    v_xor_b32 v{t[1]}, s{T0}, v{t[1]}
    v_mul_u32_u24 v{t[1]}, 3584, v{t[1]}
    v_and_b32 v{t[2]}, 1, v{V_LANE}
    v_lshl_add_u32 v{v5}, v{t[2]}, 4, v{t[1]}
    v_add_u32 v{VP2}, {16*3584 - 1024}, v{V_P13}
    s_waitcnt lgkmcnt(0)
    s_barrier
    ''')
    for lq in range(4):
        a(f'''
        s_add_u32 s{T0}, s{S_W}, {lq}
        s_and_b32 s{T0}, s{T0}, 3
        s_mul_i32 s{T0}, s{T0}, 12288
        s_add_u32 s{T0}, s{T0}, {SCR}
        v_add_u32 v{MA[lq]}, s{T0}, v{V_OFF}
        ''')
    a(f'''
    s_and_b32 s{SKV}, s{S_W}, 1
    s_lshl_b32 s{T0}, s{S_RB}, 1
    s_add_u32 s{SKV}, s{SKV}, s{T0}
    s_mul_i32 s{SKV}, s{SKV}, {32*896}
    s_lshr_b32 s{T0}, s{S_W}, 1
    s_lshl_b32 s{T0}, s{T0}, 6
    s_add_u32 s{SKV}, s{SKV}, s{T0}
    s_lshl_b32 s{T0}, s{S_CB}, 7
    s_add_u32 s{SKV}, s{SKV}, s{T0}
    v_and_b32 v{VX}, 31, v{V_LANE}
    v_lshrrev_b32 v{t[1]}, 5, v{V_LANE}
    v_mul_u32_u24 v{VX}, 896, v{VX}
    v_lshl_add_u32 v{VX}, v{t[1]}, 4, v{VX}
    ''')
    for lq in range(1, 4): a(f'ds_read_b128 {vr(Q[lq],4)}, v{qa[lq]}')
    spre = []; spre2 = []
    if opt('spre', 1):
        ssrd(a, SRD_WQKV, 784, P_W2, P_WO, W2_BYTES, WO_BYTES, 2048, S_U0, S_U1)
        spre = [[sld(SRD_A, 128*i)] for i in range(opt('spreA', 0), 25)]
        spre2 = [[sld(SRD_WQKV, 128*i)] for i in range(16)]
        if opt('spre0', 0):
            a('s_waitcnt lgkmcnt(0)')
            for _ in range(opt('spre0', 0)): a(spre.pop(0)[0])
    NK1 = opt('nk1', 3)
    for b in range(NK0, NK1):
        for x in kvload(b): a.emit(x)
    s_kv = []
    for T in range(NK1, NKV):
        s_kv += [(opt('kvS', 2) * (6 * (T - NK1) + k_), x) for k_, x in enumerate(kvload(T))]
    for T in range(NKV, 16):
        s_kv += [(16 * (T - NKV + 1) + 3 + opt('kvS', 2) * k_, x) for k_, x in enumerate(kvload(T % NKV))]
    s_w = []; wp = [opt('preP', 76)]
    for g in range(7):
        it = (rg_next() if g else []) + [f's_add_u32 s{T0}, s{S13}, s{S_RG}']
        for sl in range(2):
            it += [f's_add_u32 m0, s{L13}, {sl*PAIR + 2*g*1024 - 64*sl}',
                   ('vm', f'buffer_load_dwordx4 v{V_P13}, {sr4(SRD_B)}, s{T0} offen offset:{64*sl} lds', 'w13'),
                   ('vm', f'buffer_load_dwordx4 v{VP2}, {sr4(SRD_B)}, s{T0} offen offset:{1024 + 64*sl} lds', 'w13')]
        it += [('vm', f'buffer_load_dwordx4 {vr(RAW5+4*g,4,"a")}, v{v5}, {sr4(SRD_B)}, s{T0} offen offset:128', 'w13')]
        for x in it:
            if isinstance(x, tuple):
                s_w.append((wp[0], x)); wp[0] += opt('preS', 5)
            else: s_w.append((wp[0] - 4, x))
    s_s = [(4 + opt('sS', 4) * k_, x[0]) for k_, x in enumerate(spre + spre2)]
    s_x = [(opt('xrP', 40), ('vm', f'buffer_load_dwordx4 {vr(XRES,4)}, v{VX}, {sr4(SRD_X)}, s{SKV} offen', 'xr')),
           (opt('xrP', 40) + 6, ('vm', f'buffer_load_dwordx4 {vr(XRES+4,4)}, v{VX}, {sr4(SRD_X)}, s{SKV} offen offset:32', 'xr'))]
    if opt('vpre', 1):
        def vt(D, n, reg):
            a(xm(n)); a.vmem(f'buffer_load_dword a{reg}, v{V_FL}, {sr4(D)}, 0 offen', 'vt'); a('s_mov_b64 exec, -1')
        s_s = [(opt('vpre', 1), ('call', lambda: vt(SRD_A, 25, 7))), (opt('vpre2', 40), ('call', lambda: vt(SRD_WQKV, 16, 8)))]
    if opt('l2w', 0):
        def l2(i):
            if i == 0:
                srd(a, SRD_A, P_W2, W2_BYTES)
                a(f's_lshl_b32 s{S_U0}, s{S_J}, 2\ns_add_u32 s{S_U0}, s{S_U0}, s{S_W}\ns_lshl_b32 s{S_U0}, s{S_U0}, 13')
            if i == 1: a(f's_add_u32 s{S_U0}, s{S_U0}, {128*8192}')
            if i == 2:
                srd(a, SRD_A, P_WO, WO_BYTES)
                a(f's_lshl_b32 s{S_U0}, s{S_J}, 2\ns_add_u32 s{S_U0}, s{S_U0}, s{S_W}\ns_xor_b32 s{S_U0}, s{S_U0}, 127\ns_lshl_b32 s{S_U0}, s{S_U0}, 13')
            a.vmem(f'buffer_load_dword a{9+i}, v{V_FL}, {sr4(SRD_A)}, s{S_U0} offen', 'vt')
        s_s += [(opt('l2w', 0) + opt('l2s', 16) * i, ('call', (lambda i=i: l2(i)))) for i in range(3)]
    if opt('noW', 0): s_w = []
    if opt('noS', 0): s_s = []
    if opt('noKV', 0): s_kv = []
    VW = 217; VWP = 218; VW2 = 219
    a(f'v_lshrrev_b32 v{VW2}, 5, v{V_LANE}\nv_lshlrev_b32 v{VW2}, 4, v{VW2}')
    def pubW():
        a(f's_lshl_b32 s{T1}, s{S_WG}, 7\ns_add_u32 s{T1}, s{T1}, {FL_W}'); a.vmwait('stW'); flag_store(a, T1, VW)
    def pollW():
        a(f's_mul_i32 s{T1}, s{S_H}, {7*128}\ns_add_u32 s{T1}, s{T1}, {FL_W}'); poll_issue(a, T1, V_FL, 7, VWP)
    WB_ = KV[1]; assert NKV == 4
    s_m = [(opt('pubW', 21), ('call', pubW)), (opt('pollW', 201), ('call', pollW)), (229, ('call', lambda: poll_check(a, T1, V_FL, 7, VWP))),
           (230, f's_mul_i32 s{T1}, s{S_H}, 112'), (231, f's_add_u32 s{T1}, s{T1}, {WS_WB}')]
    s_m += [(232 + 2*q_, ('vm', f'buffer_load_dwordx4 {vr(WB_+4*q_,4)}, v{VW2}, {sr4(SRD_WS)}, s{T1} offen offset:{32*q_} sc1', 'wb')) for q_ in range(4)]
    s_m += [(241 + k_, x) for k_, x in enumerate([f's_lshl_b32 s{T2}, s{S_TB}, 2', f's_add_u32 s{T2}, s{T2}, s{S_W}', f's_lshl_b32 s{T2}, s{T2}, 4', f's_add_u32 s{T2}, s{T2}, s{S_H}',
                                                  f's_lshl_b32 s{T5}, s{T2}, 7', f's_add_u32 s{T5}, s{T5}, {FL_B}', f's_lshl_b32 s{T2}, s{T2}, 11', f's_add_u32 s{T6}, s{T2}, {WS_O}'])]
    s_p = []
    if opt('prew2', 0):
        def pw():
            a(f'''
            s_lshl_b32 s{S_SPIN}, s{S_TB}, 2
            s_add_u32 s{S_SPIN}, s{S_SPIN}, s{S_W}
            s_lshl_b32 s{S_SPIN}, s{S_SPIN}, 4
            s_add_u32 s{S_SPIN}, s{S_SPIN}, s{S_H}
            s_lshl_b32 s{S_SPIN}, s{S_SPIN}, 11
            s_add_u32 s{S_SPIN}, s{S_SPIN}, {WS_O}
            s_lshl_b32 s{S_SPIN+1}, s{S_RB}, 1
            s_and_b32 s{S_U1}, s{S_W}, 1
            s_add_u32 s{S_SPIN+1}, s{S_SPIN+1}, s{S_U1}
            s_mul_i32 s{S_SPIN+1}, s{S_SPIN+1}, 7
            s_add_u32 s{S_SPIN+1}, s{S_SPIN+1}, s{S_CB}
            s_lshl_b32 s{S_SPIN+1}, s{S_SPIN+1}, 1
            s_lshr_b32 s{S_U1}, s{S_W}, 1
            s_add_u32 s{S_SPIN+1}, s{S_SPIN+1}, s{S_U1}
            s_lshl_b32 s{S_SPIN+1}, s{S_SPIN+1}, 11
            s_add_u32 s{S_SPIN+1}, s{S_SPIN+1}, {WS_H}
            s_cmp_ge_u32 s{S_J}, 28
            s_cselect_b32 s{S_SPIN+1}, 0x40000000, s{S_SPIN+1}
            ''')
        P0 = opt('prew2', 0)
        s_p = [(P0, ('call', pw))] + [(P0 + 3 + 5*i, ('vm', f'buffer_store_dwordx4 {vr(Q[0],4)}, v{V_OFF}, {sr4(SRD_WS)}, s{S_SPIN + (i >> 1)} offen offset:{1024*(i&1)} sc1', 'pw')) for i in range(4)]
    streams = [s_kv, s_w, s_x, s_m, s_p, s_s]
    a.vmwait('k0')
    a(f'{MFMA} {vr(S[0],16)}, {vr(KV[0],4)}, {vr(Q[0],4)}, 0')
    a(f'{MFMA} {vr(S[0],16)}, {vr(KV[0]+4,4)}, {vr(Q[0]+4,4)}, {vr(S[0],16)}')
    a(f'v_cmp_lt_u32 vcc, 31, v{V_LANE}')
    a(f'v_max3_f32 v{t[0]}, v{S[0]}, v{S[0]+1}, v{S[0]+2}\nv_max3_f32 v{t[1]}, v{S[0]+3}, v{S[0]+4}, v{S[0]+5}')
    for r in range(6, 14, 4):
        a(f'v_max3_f32 v{t[0]}, v{t[0]}, v{S[0]+r}, v{S[0]+r+1}\nv_max3_f32 v{t[1]}, v{t[1]}, v{S[0]+r+2}, v{S[0]+r+3}')
    a(f'''
    v_max3_f32 v{t[0]}, v{t[0]}, v{S[0]+14}, v{S[0]+15}
    v_max_f32 v{t[0]}, v{t[0]}, v{t[1]}
    v_mov_b32 v{t[1]}, v{t[0]}
    v_permlane32_swap_b32 v{t[0]}, v{t[1]}
    v_max_f32 v{t[0]}, v{t[0]}, v{t[1]}
    v_cvt_pk_bf16_f32 v{t[0]}, -v{t[0]}, 0
    v_cndmask_b32 v{Q[0]+6}, v{Q[0]+6}, v{t[0]}, vcc
    ds_write_b128 v{qa[0]}, {vr(Q[0]+4,4)} offset:1024
    v_lshlrev_b32 v{t[2]}, 16, v{t[0]}
    ''')
    assert t[2] % 2 == 0
    for r in range(0, 16, 2): a(f'v_pk_add_f32 {vr(S[0]+r,2)}, {vr(S[0]+r,2)}, {vr(t[2],2)} op_sel_hi:[1,0]')
    if not opt('xin', 1):
        a('s_waitcnt lgkmcnt(0)\ns_barrier')
        for lq in range(1, 4): a(f'ds_read_b128 {vr(Q[lq]+4,4)}, v{qa[lq]} offset:1024')
    if opt('stag', 0):
        Ls = a.newlabel('stag')
        for w in range(1, 4):
            a(f's_cmp_lt_u32 s{S_W}, {w}\ns_cbranch_scc1 {Ls}')
            for _ in range(opt('stag', 0)): a('s_nop 15')
        a.label(Ls)
    (a.stamp('B_first'), a.stamp('R_B_firstc'), a.stamp('R_B_firstr', True))
    def slot(T, q):
        cb = q & 1; nb = cb ^ 1
        kvn, nq = (T % NKV, q + 1) if q < 3 else ((T + 1) % NKV, 0)
        kvp, pq = (T % NKV, q - 1) if q else ((T - 1) % NKV, 3)
        no_qk = (T == 15 and q == 3); no_pv = (T == 0 and q == 0); first = (T == 0 or (T == 1 and q == 0))
        M = [None if no_qk else f'{MFMA} {vr(S[nb],16)}, {vr(KV[kvn],4)}, {vr(Q[nq],4)}, 0',
             None if no_qk else f'{MFMA} {vr(S[nb],16)}, {vr(KV[kvn]+4,4)}, {vr(Q[nq]+4,4)}, {vr(S[nb],16)}',
             None if no_pv else f'{MFMA} {vr(O[pq],16)}, {vr(KV[kvp]+8,4)}, {vr(P[nb],4)}, {0 if first else vr(O[pq],16)}',
             None if no_pv else f'{MFMA} {vr(O[pq],16)}, {vr(KV[kvp]+12,4)}, {vr(P[nb]+4,4)}, {vr(O[pq],16)}']
        e = lambda r: (f'v_exp_f32 v{S[cb]+r}, v{S[cb]+r}' if not opt('noexp', 0) else f'v_mov_b32 v{S[cb]+r}, v{S[cb]+r}')
        if opt('nopv', 0): M[2] = M[3] = None
        c = lambda j: f'v_cvt_pk_bf16_f32 v{P[cb]+j}, v{S[cb]+2*j}, v{S[cb]+2*j+1}'
        seq = [M[0], e(0), e(1), e(2), c(0), e(3), e(4), M[1], c(1), e(5), e(6), c(2), e(7), e(8),
               M[2], c(3), e(9), e(10), c(4), e(11), e(12), M[3], c(5), e(13), e(14), e(15), c(6), c(7)]
        if T == 0 and q == 0:
            if opt('xin', 1):
                seq = [M[0], e(0), e(1), e(2), c(0), e(3), 's_waitcnt lgkmcnt(0)', 's_barrier'] + \
                      [f'ds_read_b128 {vr(Q[lq]+4,4)}, v{qa[lq]} offset:1024' for lq in range(1, 4)] + \
                      [None, e(4), c(1), e(5), e(6), c(2), e(7), e(8), c(3), None, 's_waitcnt lgkmcnt(2)', M[1], e(9), e(10), c(4), e(11), e(12),
                       c(5), e(13), e(14), e(15), c(6), 's_waitcnt lgkmcnt(0)', c(7), 's_nop 3']
            else: seq.insert(7, 's_waitcnt lgkmcnt(0)')
        for k_, x in enumerate(seq):
            if x is not None: a(x)
            if x is None or x.startswith('v_mfma'):
                mi = pos[0] & 3
                if mi == 3 and q == 2 and T < 15: a.vmwait(f'kv{(T+1)%NKV}')
                elif mi == 3 and q == 0 and T == 0: a.vmwait('kv0')
                else:
                    for st_ in streams:
                        if st_ and st_[0][0] <= pos[0]:
                            a.emit(st_.pop(0)[1]); break
                pos[0] += 1
    pos = [0]
    for T in range(16):
        for q in range(4): slot(T, q)
    assert not any(streams), [len(x) for x in streams]
    a(f'{MFMA} {vr(O[3],16)}, {vr(KV[15 % NKV]+8,4)}, {vr(P[1],4)}, {vr(O[3],16)}')
    a(f'{MFMA} {vr(O[3],16)}, {vr(KV[15 % NKV]+12,4)}, {vr(P[1]+4,4)}, {vr(O[3],16)}')
    (a.stamp('B_loop'), a.stamp('R_B_loopc'), a.stamp('R_B_loopr', True))
    stg.queue(opt('hgM', 4))
    for lq in range(1, 4):
        for j in range(4):
            a(f'ds_write_b128 v{MA[lq]}, {vr(O[lq]+4*j,4)} offset:{(lq-1)*4096 + j*1024}'); stg.one()
    a.vmwait('wb')
    a('s_mov_b32 exec_lo, 0')
    for r in range(12, 16): a(f'v_mov_b32 v{WB_+r}, 0')
    a(f'''
    s_mov_b64 exec, -1
    v_mov_b32 v{t[4]}, {fx(2.0 ** (64 if not opt('forcefb', 0) else -60))}
    v_mov_b32 v{t[5]}, {fx(2.0 ** -64)}
    s_waitcnt lgkmcnt(0)
    s_barrier
    ''')
    for lq in range(1, 4):
        for j in range(4): a(f'ds_read_b128 {vr(O[lq]+4*j,4)}, v{MA[0]} offset:{(lq-1)*4096 + j*1024}')
    stg.flush()
    for lq in range(1, 4):
        a(f's_waitcnt lgkmcnt({4*(3-lq)})')
        for r in range(0, 16, 2): a(f'v_pk_add_f32 {vr(O[0]+r,2)}, {vr(O[0]+r,2)}, {vr(O[lq]+r,2)}')
    a(f'''
    v_mov_b32 v{t[0]}, v{O[0]+12}
    v_mov_b32 v{t[1]}, v{O[0]+12}
    v_permlane32_swap_b32 v{t[0]}, v{t[1]}
    v_med3_f32 v{t[3]}, v{t[1]}, v{t[4]}, v{t[5]}
    v_cmp_neq_f32 vcc, v{t[3]}, v{t[1]}
    v_rcp_f32 v{t[2]}, v{t[1]}
    s_cbranch_vccnz Lfb
    ''')
    a.label('Lfb_ret')
    a(f'v_cmp_lt_u32 vcc, 31, v{V_LANE}')
    for r in range(0, 16, 2): a(f'v_pk_mul_f32 {vr(O[0]+r,2)}, {vr(O[0]+r,2)}, {vr(t[2],2)} op_sel_hi:[1,0]')
    for j in range(8): a(f'v_cvt_pk_bf16_f32 v{P[0]+j}, v{O[0]+2*j}, v{O[0]+2*j+1}')
    for j in (6, 7): a(f'v_cndmask_b32_e64 v{P[0]+j}, v{P[0]+j}, 0, vcc')
    for j in range(2):
        a.vmem(f'buffer_store_dwordx4 {vr(P[0]+4*j,4)}, v{V_OFF}, {sr4(SRD_WS)}, s{T6} offen offset:{1024*j} sc1', 'stB')
    a(f'v_pk_mul_f32 {vr(t[0],2)}, {vr(O[0],2)}, {vr(WB_,2)}\nv_pk_mul_f32 {vr(t[2],2)}, {vr(O[0]+2,2)}, {vr(WB_+2,2)}')
    for r in range(4, 16, 2): a(f'v_pk_fma_f32 {vr(t[r & 2],2)}, {vr(O[0]+r,2)}, {vr(WB_+r,2)}, {vr(t[r & 2],2)}')
    a(f'v_pk_add_f32 {vr(t[0],2)}, {vr(t[0],2)}, {vr(t[2],2)}\nv_add_f32 v{t[0]}, v{t[0]}, v{t[1]}')
    halfsum(a, t[0], t[1])
    a(f'v_add_f32 v{t[0]}, v{t[0]}, v{MUX}\nv_lshlrev_b32 v{t[1]}, 2, v{V_LANE}\ns_add_u32 s{T0}, s{T5}, {WS_MH - FL_B + (1 << 32)}\n' + xm(32))
    a.vmem(f'buffer_store_dword v{t[0]}, v{t[1]}, {sr4(SRD_WS)}, s{T0} offen sc1', 'stB')
    a('s_mov_b64 exec, -1')
    a.stamp('B_st'); a.stamp('H_st')


def fallback(a, R):
    KV, Q, O, S, P, t = R['KV'][0], R['Q'][0], R['O'][0], R['S'][0], R['P'][0], R['t']
    a.label('Lfb')
    a(f"""
    v_cmp_lt_u32 vcc, 31, v{V_LANE}
    s_lshl_b32 s{T1}, s{S_H}, 18
    s_mov_b32 s{T2}, 64
    v_mov_b32 v{t[0]}, 0xff7fffff
    v_cndmask_b32_e64 v{Q+6}, v{Q+6}, 0, vcc
    v_cndmask_b32_e64 v{Q+7}, v{Q+7}, 0, vcc
    """)
    a.label('Lfb1')
    a(f"""
    buffer_load_dwordx4 {vr(KV,4)}, v{V_OFF}, {sr4(SRD_WS)}, s{T1} offen sc1
    buffer_load_dwordx4 {vr(KV+4,4)}, v{V_OFF}, {sr4(SRD_WS)}, s{T1} offen offset:1024 sc1
    s_add_u32 s{T1}, s{T1}, 4096
    s_waitcnt vmcnt(0)
    {MFMA} {vr(S,16)}, {vr(KV,4)}, {vr(Q,4)}, 0
    {MFMA} {vr(S,16)}, {vr(KV+4,4)}, {vr(Q+4,4)}, {vr(S,16)}
    """)
    for r in range(0, 16, 2): a(f'v_max3_f32 v{t[0]}, v{t[0]}, v{S+r}, v{S+r+1}')
    a(f"""
    s_sub_u32 s{T2}, s{T2}, 1
    s_cmp_lg_u32 s{T2}, 0
    s_cbranch_scc1 Lfb1
    v_mov_b32 v{t[1]}, v{t[0]}
    v_permlane32_swap_b32 v{t[0]}, v{t[1]}
    v_max_f32 v{t[0]}, v{t[0]}, v{t[1]}
    v_cvt_pk_bf16_f32 v{t[1]}, -v{t[0]}, 0
    v_lshlrev_b32 v{t[2]}, 16, v{t[1]}
    v_sub_f32 v{t[0]}, -v{t[0]}, v{t[2]}
    v_cvt_pk_bf16_f32 v{t[2]}, v{t[0]}, 0
    v_lshlrev_b32 v{t[2]}, 16, v{t[2]}
    v_sub_f32 v{t[0]}, v{t[0]}, v{t[2]}
    v_or_b32 v{t[1]}, v{t[1]}, v{t[2]}
    v_cvt_pk_bf16_f32 v{t[0]}, v{t[0]}, 0
    v_cndmask_b32 v{Q+6}, v{Q+6}, v{t[1]}, vcc
    v_cndmask_b32 v{Q+7}, v{Q+7}, v{t[0]}, vcc
    s_lshl_b32 s{T1}, s{S_H}, 18
    s_mov_b32 s{T2}, 64
    """)
    for r in range(16): a(f'v_mov_b32 v{O+r}, 0')
    a.label('Lfb2')
    for j in range(4): a(f'buffer_load_dwordx4 {vr(KV+4*j,4)}, v{V_OFF}, {sr4(SRD_WS)}, s{T1} offen offset:{1024*j} sc1')
    a(f"""
    s_add_u32 s{T1}, s{T1}, 4096
    s_waitcnt vmcnt(0)
    {MFMA} {vr(S,16)}, {vr(KV,4)}, {vr(Q,4)}, 0
    {MFMA} {vr(S,16)}, {vr(KV+4,4)}, {vr(Q+4,4)}, {vr(S,16)}
    """)
    for r in range(16): a(f'v_exp_f32 v{S+r}, v{S+r}')
    for j in range(8): a(f'v_cvt_pk_bf16_f32 v{P+j}, v{S+2*j}, v{S+2*j+1}')
    a(f"""
    {MFMA} {vr(O,16)}, {vr(KV+8,4)}, {vr(P,4)}, {vr(O,16)}
    {MFMA} {vr(O,16)}, {vr(KV+12,4)}, {vr(P+4,4)}, {vr(O,16)}
    s_sub_u32 s{T2}, s{T2}, 1
    s_cmp_lg_u32 s{T2}, 0
    s_nop 7
    s_cbranch_scc1 Lfb2
    s_nop 7
    v_mov_b32 v{t[0]}, v{O+12}
    v_mov_b32 v{t[1]}, v{O+12}
    v_permlane32_swap_b32 v{t[0]}, v{t[1]}
    v_rcp_f32 v{t[2]}, v{t[1]}
    s_branch Lfb_ret
    """)

class Stager:
    def __init__(self, a): self.a = a; self.nl = 0; self.nt = 0; self.q = []
    def src_setup(self, t0, t1, t2):
        self.a(f'''
        v_lshrrev_b32 v{t0}, 3, v{V_LANE}
        v_lshrrev_b32 v{t1}, 1, v{V_LANE}
        v_and_b32 v{t1}, 4, v{t1}
        v_and_b32 v{t2}, 7, v{V_LANE}
        v_xor_b32 v{t1}, v{t1}, v{t2}
        v_mul_u32_u24 v{t0}, 1792, v{t0}
        v_lshl_add_u32 v{V_SRC}, v{t1}, 4, v{t0}
        ''')
    def setup(self, t0, t1, t2, vw):
        a = self.a; self.vw = vw
        a(f'''
        v_lshrrev_b32 v{t0}, 5, v{V_LANE}
        v_bfe_u32 v{t1}, v{V_LANE}, 2, 2
        v_lshl_add_u32 v{t0}, v{t0}, 2, v{t1}
        v_lshlrev_b32 v{t0}, 7, v{t0}
        v_bfe_u32 v{t1}, v{V_LANE}, 4, 1
        v_lshl_add_u32 v{t0}, v{t1}, 5, v{t0}
        v_and_b32 v{t1}, 3, v{V_LANE}
        v_lshl_add_u32 v{t0}, v{t1}, 3, v{t0}
        v_bfe_u32 v{t1}, v{V_LANE}, 3, 1
        s_lshr_b32 s{T0}, s{S_W}, 1
        v_xor_b32 v{t1}, s{T0}, v{t1}
        v_lshl_add_u32 v{t0}, v{t1}, 6, v{t0}
        s_lshl_b32 s{T0}, s{S_W}, 12
        s_add_u32 s{T0}, s{T0}, {SCR}
        v_add_u32 v{V_RD}, s{T0}, v{t0}
        v_xor_b32 v{V_RD+1}, 64, v{V_RD}
        v_lshrrev_b32 v{t0}, 3, v{V_LANE}
        v_lshlrev_b32 v{t0}, 7, v{t0}
        v_add3_u32 v{vw}, s{T0}, v{V_OFF}, v{t0}
        ''')
    def target_items(self, which):
        p, nb = (P_WO, WO_BYTES) if which == 'wo' else (P_W2, W2_BYTES)
        return [f's_mov_b32 s{SRD_A}, s{p}', f's_mov_b32 s{SRD_A+1}, s{p+1}', f's_mov_b32 s{SRD_A+2}, {nb}', f's_mov_b32 s{SRD_A+3}, 0x20000',
                f's_mul_i32 s{S_U0}, s{S_W}, {(112 if which == "wo" else 448)*896}', f's_lshl_b32 s{S_U1}, s{S_CB}, 7', f's_add_u32 s{S_U0}, s{S_U0}, s{S_U1}']
    @staticmethod
    def base(g):
        if g < 2: return ('a', 224 + 16 * g)
        if g < 4: return ('v', WOV + 16 * (g - 2))
        return ('a', 16 * (g - 4))
    @staticmethod
    def dest(g, s_, lc):
        p, b = Stager.base(g); return p, b + (s_ * 2 + lc) * 4
    def load_items(self):
        g = self.nl; self.nl += 1
        pre = self.target_items('wo') if g == 0 else (self.target_items('w2') if g == 4 else [])
        row0 = 28 * g if g < 4 else 32 * (g - 4)
        p, b = self.base(g)
        out = [pre] if pre else []
        for h_ in range(2):
            out.append([f's_add_u32 s{S_U1}, s{S_U0}, {(row0 + 16*h_)*896}'] +
                       [('vm', f'buffer_load_dwordx4 {vr(b+8*h_+4*i,4,p)}, v{V_SRC}, {sr4(SRD_A)}, s{S_U1} offen offset:{896*i}', f'hg{g}') for i in range(2)])
        return out
    def load(self):
        self.flush()
        for it in self.load_items():
            for x in it: self.a.emit(x)
    def queue(self, upto):
        while self.nl < upto:
            for it in self.load_items(): self.q += it
    def one(self):
        while self.q:
            x = self.q.pop(0); self.a.emit(x)
            if isinstance(x, tuple): break
    def flush(self):
        while self.q: self.one()
    def wr(self, u):
        a = self.a; g, s_ = divmod(u, 2); p, b = self.base(g)
        for i in range(2): a(f'ds_write_b128 v{self.vw}, {vr(b+8*s_+4*i,4,p)} offset:{2048*s_ + 128*i}')
    def rd(self, u):
        a = self.a; g, s_ = divmod(u, 2); p, b = self.base(g)
        for lc in range(2):
            for uu in range(2):
                a(f'ds_read_b64_tr_b16 {vr(b+(s_*2+lc)*4+2*uu,2,p)}, v{V_RD+lc} offset:{s_*2048 + uu*1024}')
    def trans(self):
        a = self.a; g = self.nt; self.nt += 1
        a.stamp(f'{"H" if g < 11 else "I"}_pre{g}')
        a.vmwait(f'hg{g}')
        if g in (0, 6): a.stamp(f'H_got{g}')
        for u in (2*g, 2*g + 1): self.wr(u)
        for u in (2*g, 2*g + 1): self.rd(u)
    def close(self): pass

def red_addr(a, t):
    for l in range(4):
        a(f's_xor_b32 s{T0}, s{S_W}, {l}\ns_mul_i32 s{T0}, s{T0}, 12288\ns_add_u32 s{T0}, s{T0}, {SCR}\nv_add_u32 v{t[l]}, s{T0}, v{V_OFF}')
def red_write(a, ACC, t, l, side=lambda: None):
    for j in range(4):
        a(f'ds_write_b128 v{t[l]}, {vr(ACC[l]+4*j,4)} offset:{(l-1)*4096 + j*1024}'); side()
def red_read(a, ACC, t, side=lambda: None):
    a('s_waitcnt lgkmcnt(0)\ns_barrier')
    for l in range(1, 4):
        for j in range(4): a(f'ds_read_b128 {vr(ACC[l]+4*j,4)}, v{t[0]} offset:{(l-1)*4096 + j*1024}')
    side()
    for l in range(1, 4):
        a(f's_waitcnt lgkmcnt({4*(3-l)})')
        for r in range(0, 16, 2): a(f'v_pk_add_f32 {vr(ACC[0]+r,2)}, {vr(ACC[0]+r,2)}, {vr(ACC[l]+r,2)}')

def put5(a, vt):
    a(f's_mul_i32 s{T0}, s{S_W}, 7168\ns_add_u32 s{T0}, s{T0}, {SINGLE}\nv_add_u32 v{vt}, s{T0}, v{V_OFF}')
    for g in range(7): a(f'ds_write_b128 v{vt}, {vr(RAW5+4*g,4,"a")} offset:{1024*g}')

def tile_ids(a, STT, SCT):
    a(f'''
    s_and_b32 s{STT}, s{S_W}, 1
    s_lshl_b32 s{T0}, s{S_RB}, 1
    s_add_u32 s{STT}, s{STT}, s{T0}
    s_lshr_b32 s{SCT}, s{S_W}, 1
    s_lshl_b32 s{T0}, s{S_CB}, 1
    s_add_u32 s{SCT}, s{SCT}, s{T0}
    ''')
def flag8_addr(a, vf, t0, t1, sdst, base):
    a(f'''
    v_lshrrev_b32 v{t0}, 2, v{V_LANE}
    v_lshlrev_b32 v{t0}, 11, v{t0}
    v_and_b32 v{t1}, 3, v{V_LANE}
    v_lshl_add_u32 v{vf}, v{t1}, 7, v{t0}
    s_lshl_b32 s{T0}, s{S_RB}, 3
    s_add_u32 s{T0}, s{T0}, s{S_W}
    s_lshl_b32 s{sdst}, s{T0}, 9
    s_add_u32 s{sdst}, s{sdst}, {base}
    ''')

def phase_c(a, R, stg):
    va = VA(4, 200)
    ACC = [va(16) for _ in range(4)]
    OF = [[va(4) for k in range(8)] for lt in range(2)]
    t = [va() for _ in range(8)]; vf = va(); vw = va(); vp = va()
    STT, SCT = T1, T2
    NB1 = opt('hgB', 7); NF = opt('hgBf', 0)
    for g in range(NF):
        if stg.nl < NB1: stg.load()
    stg.setup(t[0], t[1], t[2], vw)
    tile_ids(a, STT, SCT)
    for l in range(2):
        a(f'''
        s_xor_b32 s{T0}, s{STT}, {l}
        s_lshl_b32 s{T0}, s{T0}, 2
        s_add_u32 s{T0}, s{T0}, s{S_W}
        s_lshl_b32 s{T0}, s{T0}, 13
        s_add_u32 s{T3+l}, s{T0}, {WS_O}
        ''')
    for g in (0, 4):
        a(f'v_permlane32_swap_b32 v{XRES+g}, v{XRES+g+2}\nv_permlane32_swap_b32 v{XRES+g+1}, v{XRES+g+3}')
    for j in range(8):
        a(f'v_lshlrev_b32 v{ACC[0]+2*j}, 16, v{XRES+j}\nv_and_b32 v{ACC[0]+2*j+1}, 0xffff0000, v{XRES+j}')
    a('s_barrier')
    for _ in range(opt('trB0', 1)): stg.trans()
    a.vmwait('stB')
    flag_store(a, T5, t[3])
    a.stamp('C_flag'); a.stamp('H_flag')
    visit(a, 2)
    flag8_addr(a, vf, t[0], t[1], T5, FL_B)
    NT1 = NB1 - opt('trB', 1)
    for _ in range(opt('hgBg', 3)):
        if stg.nl < NB1: stg.load()
    while stg.nt < NT1:
        if stg.nt == NT1 - opt('pollB', 2): poll_issue(a, T5, vf, 8, vp)
        stg.trans()
        if stg.nl < NB1: stg.load()
    a.stamp('C_pre')
    poll_check(a, T5, vf, 8, vp)
    (a.stamp('C_poll'), a.stamp('R_C_pollc'), a.stamp('R_C_pollr', True))
    def old_(k, l):
        if k == 4 and l == 0: a(f's_add_u32 s{T3}, s{T3}, 4096\ns_add_u32 s{T4}, s{T4}, 4096')
        a.vmem(f'buffer_load_dwordx4 {vr(OF[l][k],4)}, v{V_OFF}, {sr4(SRD_WS)}, s{T3+l} offen offset:{1024*(k&3)} sc1', f'o{k}')
    OLA = opt('ola', 6)
    oq = [(k, l) for k in range(8) for l in range(2)]
    for _ in range(2 * OLA): old_(*oq.pop(0))
    nfree = NHG
    while stg.nt < NB1: stg.trans()
    red_addr(a, t)
    a(f'''
    s_mul_i32 s{T6}, s{STT}, 14
    s_add_u32 s{T6}, s{T6}, s{SCT}
    s_lshl_b32 s{T5}, s{STT}, 4
    s_add_u32 s{T5}, s{T5}, s{SCT}
    s_lshl_b32 s{T5}, s{T5}, 7
    s_add_u32 s{T5}, s{T5}, {FL_C}
    s_waitcnt lgkmcnt(0)
    s_barrier
    ''')
    MH = va(8); HC = va(8)
    a(f's_lshl_b32 s{T0}, s{STT}, 11\ns_add_u32 s{S_SPIN+1}, s{T0}, {WS_MH}\nv_lshlrev_b32 v{vf}, 2, v{V_LANE}')
    mq = [('vm', f'buffer_load_dword v{MH+i}, v{vf}, {sr4(SRD_WS)}, s{S_SPIN+1} offen offset:{256*i} sc1', 'mh') for i in range(8)]
    def mm(k, l):
        p, b = stg.dest(k >> 1, k & 1, l >> 1)
        a(f'{MFMA} {vr(ACC[l],16)}, {vr(b,4,p)}, {vr(OF[l & 1][k],4)}, {vr(ACC[l],16) if (k or l == 0) else 0}')
    KT = 5
    for k in range(KT):
        a.vmwait(f'o{k}')
        for l in range(4):
            mm(k, l)
            if oq and l & 1 == 0: old_(*oq.pop(0))
            elif not oq and mq: a.emit(mq.pop(0))
    assert not oq and not mq
    stg.queue(min(nfree, NB1 + opt('hgC0', 4)))
    for l in (1, 2, 3, 0):
        for k in range(KT, 8):
            if l == 1: a.vmwait(f'o{k}')
            mm(k, l)
        if l in (2, 3): red_write(a, ACC, t, l - 1, stg.one)
    a.stamp('C_mfma')
    red_write(a, ACC, t, 3, stg.one)
    a.vmwait('mh')
    for i in range(0, 8, 4): a(f'v_pk_add_f32 {vr(MH+i,2)}, {vr(MH+i,2)}, {vr(MH+i+2,2)}')
    a(f'v_pk_add_f32 {vr(MH,2)}, {vr(MH,2)}, {vr(MH+4,2)}\nv_add_f32 v{MH}, v{MH}, v{MH+1}')
    halfsum(a, MH, MH + 1)
    red_read(a, ACC, t, stg.flush)
    for r in range(0, 16, 2): a(f'v_pk_add_f32 {vr(ACC[1]+r,2)}, {vr(ACC[0]+r,2)}, {vr(MH,2)} op_sel_hi:[1,0] neg_lo:[0,1] neg_hi:[0,1]')
    for j in range(8): a(f'v_cvt_pk_bf16_f32 v{HC+j}, v{ACC[1]+2*j}, v{ACC[1]+2*j+1}')
    a(f's_lshl_b32 s{T0}, s{T6}, 11\ns_add_u32 s{T0}, s{T0}, {WS_H}')
    for j in range(2):
        a.vmem(f'buffer_store_dwordx4 {vr(HC+4*j,4)}, v{V_OFF}, {sr4(SRD_WS)}, s{T0} offen offset:{1024*j} sc1', 'stC')
    for i in range(4): a(f'v_mov_b32 v{t[4+i]}, 0')
    for j in range(8):
        a(f'v_dot2c_f32_bf16 v{t[4+(j&1)]}, s{S_ONES}, v{HC+j}')
        a(f'v_dot2c_f32_bf16 v{t[6+(j&1)]}, v{HC+j}, v{HC+j}')
    a(f'''
    v_add_f32 v{t[4]}, v{t[4]}, v{t[5]}
    v_add_f32 v{t[6]}, v{t[6]}, v{t[7]}
    v_permlane32_swap_b32 v{t[4]}, v{t[6]}
    v_add_f32 v{t[4]}, v{t[4]}, v{t[6]}
    v_and_b32 v{t[5]}, 31, v{V_LANE}
    v_lshrrev_b32 v{t[6]}, 5, v{V_LANE}
    v_lshlrev_b32 v{t[6]}, 2, v{t[6]}
    v_lshl_add_u32 v{t[5]}, v{t[5]}, 3, v{t[6]}
    s_lshl_b32 s{T0}, s{T6}, 8
    s_add_u32 s{T0}, s{T0}, {WS_ST}
    ''')
    a.vmem(f'buffer_store_dword v{t[4]}, v{t[5]}, {sr4(SRD_WS)}, s{T0} offen sc1', 'stC')
    a.stamp('C_st')
    for j in range(8): a(f'v_cvt_pk_bf16_f32 v{HKEEP+j}, v{ACC[0]+2*j}, v{ACC[0]+2*j+1}')
    for _ in range(opt('hgCf', 0)):
        if stg.nl < nfree: stg.load()
    a('s_barrier')
    put5(a, t[0])
    for _ in range(opt('trC0', 0)): stg.trans()
    a.vmwait('stC')
    flag_store(a, T5, t[3])
    a.stamp('C_flag2')
    NTP = NHG - opt('trE', 0) - opt('trC', 0) - opt('pollC', 2)
    while stg.nl < NHG: stg.load()
    while stg.nt < NTP: stg.trans()

def phase_d(a, R, stg):
    va = VA(4, 212)
    X = [va(4) for _ in range(28)]
    ACC = [va(16) for _ in range(4)]
    HP = va(4)
    t = [va(2) for _ in range(4)]
    mu = va(2)
    vl = [va() for _ in range(6)]
    vp = va(); vs = va()
    W = [va(4) for _ in range(2)] + [WOV + 4*i for i in range(8)]
    NW = len(W)
    ST = ACC[3]
    E = [t[0], t[0]+1, t[1], t[1]+1, t[2], t[2]+1, t[3], t[3]+1]
    STT = T6; SH = T5; S13, L13 = T3, T4
    w13_setup(a, S13, L13)
    a(f'''
    s_lshl_b32 s{T0}, s{S_L0}, 5
    s_add_u32 s{S13}, s{S13}, s{T0}
    s_lshl_b32 s{STT}, s{S_TD}, 2
    s_add_u32 s{STT}, s{STT}, s{S_W}
    s_lshl_b32 s{T2}, s{STT}, 11
    s_add_u32 s{T2}, s{T2}, {FL_C}
    v_bfe_u32 v{t[0]}, v{V_LANE}, 4, 1                 ; cg
    v_lshrrev_b32 v{t[1]}, 5, v{V_LANE}                ; hf
    v_bfe_u32 v{t[3]}, v{V_LANE}, 2, 2                 ; r
    v_and_b32 v{mu}, 3, v{V_LANE}
    v_lshlrev_b32 v{mu}, 3, v{mu}                      ; c4*8
    v_xor_b32 v{t[2]}, v{t[0]}, v{t[1]}
    v_lshl_add_u32 v{t[2]}, v{t[2]}, 2, v{t[3]}
    v_lshl_add_u32 v{t[2]}, v{t[2]}, 5, v{mu}
    v_mul_u32_u24 v{vl[4]}, 14336, v{t[0]}
    v_add_u32 v{vl[4]}, v{vl[4]}, v{t[2]}
    v_add_u32 v{vl[4]}, {SINGLE}, v{vl[4]}
    v_lshl_add_u32 v{t[2]}, v{t[1]}, 2, v{t[3]}
    v_lshl_add_u32 v{t[2]}, v{t[2]}, 6, v{mu}
    v_mul_u32_u24 v{t[0]}, {28672 + 32}, v{t[0]}
    v_add_u32 v{vl[0]}, v{t[0]}, v{t[2]}
    v_xor_b32 v{vl[1]}, 32, v{vl[0]}
    v_add_u32 v{vl[2]}, {PAIR}, v{vl[0]}
    v_add_u32 v{vl[3]}, {PAIR}, v{vl[1]}
    v_and_b32 v{t[0]}, 31, v{V_LANE}
    v_mul_u32_u24 v{t[1]}, {7*256}, v{t[1]}
    v_lshl_add_u32 v{vs}, v{t[0]}, 3, v{t[1]}
    s_mul_i32 s{T1}, s{STT}, {14*256}
    s_add_u32 s{T1}, s{T1}, {WS_ST}
    s_mul_i32 s{SH}, s{STT}, {28*1024}
    s_add_u32 s{SH}, s{SH}, {WS_H}
    ''')
    VSD = 222; SWB = S_DUM; SLB = S_DUM + 1
    a(f'''
    v_lshrrev_b32 v{t[0]}, 3, v{V_LANE}
    v_lshrrev_b32 v{t[1]}, 2, v{V_LANE}
    v_and_b32 v{t[1]}, 4, v{t[1]}
    v_and_b32 v{t[2]}, 7, v{V_LANE}
    v_xor_b32 v{t[1]}, v{t[1]}, v{t[2]}
    v_mul_u32_u24 v{t[0]}, 896, v{t[0]}
    v_lshl_add_u32 v{V_SRC2}, v{t[1]}, 4, v{t[0]}
    s_mul_i32 s{SWB}, s{S_W}, {448*896}
    s_lshl_b32 s{T0}, s{S_CB}, 7
    s_add_u32 s{SWB}, s{SWB}, s{T0}
    ''')
    def w2_dma(hl):
        base, per = (SCR, 12288) if hl < 3 else (PAIR, 14336)
        out = []
        for i in range(4):
            out.append(([f's_mul_i32 s{SLB}, s{S_W}, {per}', f's_add_u32 m0, s{SLB}, {base + (hl % 3)*4096}'] if i == 0 else []) +
                       [f's_add_u32 s{T0}, s{SWB}, {(256 + 32*hl + 8*i)*896 - 1024*i}',
                        ('vm', f'buffer_load_dwordx4 v{V_SRC2}, {sr4(SRD_A)}, s{T0} offen offset:{1024*i} lds', 'w2l')])
        return out
    NTP = NHG - opt('trE', 0) - opt('trC', 0)
    poll_issue(a, T2, V_FL, 14, vp)
    Ls = a.newlabel('skip')
    a(f's_cmp_ge_u32 s{S_J}, 28\ns_cbranch_scc1 {Ls}')
    while stg.nt < NTP: stg.trans()
    a.label(Ls)
    a('s_waitcnt lgkmcnt(0)\ns_barrier')
    a.stamp('D_pre')
    rest = [x for x in a.vm if x.startswith('hg')]
    poll_check(a, T2, V_FL, 14, vp)
    (a.stamp('D_poll'), a.stamp('R_D_pollc'), a.stamp('R_D_pollr', True)); a.stamp('F_poll')
    for c in range(7):
        a.vmem(f'buffer_load_dwordx2 {vr(ST+2*c,2)}, v{vs}, {sr4(SRD_WS)}, s{T1} offen offset:{256*c} sc1', 'st')
    SX_ = S_SPIN + 1
    a(f's_lshl_b32 s{SX_}, s{S_R14}, 11\nv_add_u32 v{vl[5]}, s{SH}, v{V_OFF}')
    def ldx(k):
        if k and k % 2 == 0: a(f's_add_u32 s{SX_}, s{SX_}, 2048\ns_sub_u32 s{T0}, s{SX_}, {28*1024}\ns_min_u32 s{SX_}, s{SX_}, s{T0}')
        a.vmem(f'buffer_load_dwordx4 {vr(X[k],4)}, v{vl[5]}, {sr4(SRD_WS)}, s{SX_} offen offset:{1024*(k&1)} sc1', f'x{k}')
    XLA = opt('xla', 10)
    for k in range(XLA): ldx(k)
    a(f's_or_b32 s{T0}, s2, s{S_W}\ns_cmp_lg_u32 s{T0}, 0\ns_cselect_b32 s{T0}, 0x40000000, {WS_FLG}')
    flag_store(a, T0, t[0])
    a.stamp('F_issued')
    Ls = a.newlabel('skip')
    a(f's_cmp_ge_u32 s{S_J}, 28\ns_cbranch_scc1 {Ls}')
    while stg.nt < NHG - opt('trE', 0): stg.trans()
    stg.close()
    a.label(Ls)
    SE = T5; SL = T1; SF = T2
    a(f'''
    s_mul_i32 s{SE}, s{STT}, 112
    s_mul_i32 s{T0}, s{S_FS}, 7
    s_add_u32 s{SE}, s{SE}, s{T0}
    s_add_u32 s{SL}, s{SE}, s{S_L0}
    s_add_u32 s{SE}, s{SE}, s{S_E0}
    s_lshl_b32 s{SE}, s{SE}, 10
    s_add_u32 s{SE}, s{SE}, {WS_HH}
    s_lshl_b32 s{SL}, s{SL}, 10
    s_add_u32 s{SL}, s{SL}, {WS_HH}
    s_add_u32 s{S_U1}, s{SE}, 4096
    s_lshl_b32 s{SF}, s{STT}, 4
    s_add_u32 s{SF}, s{SF}, s{S_FS}
    s_lshl_b32 s{SF}, s{SF}, 7
    s_add_u32 s{SF}, s{SF}, {FL_D1}
    ''')
    if opt('trC', 0): a('s_waitcnt lgkmcnt(0)')
    seq = [(j, k) for k in range(28) for j in (0, 1, 4)] + [(j, k) for j in (2, 3, 5, 6) for k in range(28)]
    def rdW(n):
        j, k = seq[n]
        if j == 4: return [f'ds_read_b64_tr_b16 {vr(W[n % NW]+2*u,2)}, v{vl[4]} offset:{k*512 + u*256}' for u in range(2)]
        return [f'ds_read_b64_tr_b16 {vr(W[n % NW]+2*u,2)}, v{vl[{0:0,1:1,2:2,3:3,5:0,6:1}[j]]} offset:{k*1024 + u*512}' for u in range(2)]
    AH = opt('ah', 7); assert AH + 2 <= NW and 2 * AH <= 16
    a.stamp('F_bar')
    for n in range(AH):
        for x in rdW(n): a(x)
    stat = [('wait', 'st')] + [f'v_add_f32 v{ST+2*c+b_}, v{ST+2*c+b_}, v{ST+2*c+2+b_}' for c in (0, 2, 4) for b_ in range(2)] + \
           [f'v_add_f32 v{ST+b_}, v{ST+b_}, v{ST+4+b_}' for b_ in range(2)] + [f'v_add_f32 v{ST+8+b_}, v{ST+8+b_}, v{ST+12+b_}' for b_ in range(2)] + \
           [f'v_add_f32 v{ST+b_}, v{ST+b_}, v{ST+8+b_}' for b_ in range(2)] + \
           [f'v_mov_b32 v{t[0]}, v{ST}', f'v_mov_b32 v{t[1]}, v{ST+1}', 's_nop 0', f'v_permlane32_swap_b32 v{t[0]}, v{ST}', f'v_permlane32_swap_b32 v{t[1]}, v{ST+1}',
            f'v_add_f32 v{t[0]}, v{t[0]}, v{ST}', f'v_add_f32 v{t[1]}, v{t[1]}, v{ST+1}',
            f'v_mul_f32 v{t[0]}, {fx(1/448)}, v{t[0]}', f'v_mul_f32 v{t[1]}, {fx(1/448)}, v{t[1]}',
            f'v_fma_f32 v{t[1]}, -v{t[0]}, v{t[0]}, v{t[1]}', f'v_max_f32 v{t[1]}, 0, v{t[1]}',
            f'v_add_f32 v{mu+1}, {fx(1e-5)}, v{t[1]}', f'v_rsq_f32 v{mu}, v{mu+1}', 's_nop 0', f'v_mul_f32 v{mu}, {fx(-math.log2(math.e))}, v{mu}']
    acc_of = {0: 0, 1: 1, 4: 2, 2: 3, 3: 0, 5: 1, 6: 2}
    def epi(j):
        A = ACC[acc_of[j]]
        out = []
        pk = opt('pkE', 0) if j != 6 else 2
        if pk >= 2:
            for r in range(0, 8, 2): out.append(f'v_pk_mul_f32 {vr(E[r],2)}, {vr(A+r,2)}, {vr(mu,2)} op_sel_hi:[1,0]')
        else:
            for r in range(8): out.append(f'v_mul_f32 v{E[r]}, v{mu}, v{A+r}')
        for r in range(8): out.append(f'v_exp_f32 v{E[r]}, v{E[r]}')
        if pk >= 1:
            for r in range(0, 8, 2): out.append(f'v_pk_mul_f32 {vr(A+r,2)}, {vr(A+r,2)}, {vr(A+8+r,2)}')
        else:
            for r in range(8): out.append(f'v_mul_f32 v{A+r}, v{A+r}, v{A+8+r}')
        if pk >= 2:
            for r in range(0, 8, 2): out.append(f'v_pk_fma_f32 {vr(E[r],2)}, {vr(E[r],2)}, {vr(mu,2)}, {vr(mu,2)} op_sel:[0,1,1] op_sel_hi:[1,1,1]')
        else:
            for r in range(8): out.append(f'v_fma_f32 v{E[r]}, v{E[r]}, v{mu+1}, v{mu+1}')
        for r in range(8): out.append(f'v_rcp_f32 v{E[r]}, v{E[r]}')
        if pk >= 1:
            for r in range(0, 8, 2): out.append(f'v_pk_mul_f32 {vr(A+r,2)}, {vr(A+r,2)}, {vr(E[r],2)}')
        else:
            for r in range(8): out.append(f'v_mul_f32 v{A+r}, v{A+r}, v{E[r]}')
        for i in range(4): out.append(f'v_cvt_pk_bf16_f32 v{HP+i}, v{A+2*i}, v{A+2*i+1}')
        sreg, off = (SE, 1024*j) if j < 4 else ((S_U1, 0) if j == 4 else (SL, 1024*(j-5)))
        out.append(('vm', f'buffer_store_dwordx4 {vr(HP,4)}, v{V_OFF}, {sr4(SRD_WS)}, s{sreg} offen offset:{off} sc1', f'hh{j}'))
        return out
    a.stamp('F_stats')
    a.vmwait('x0')
    a.stamp('F_x0')
    pend = []; late = []
    R['vfE'] = vs; R['vpE'] = vp
    for n, (j, k) in enumerate(seq):
        nn = n + AH
        if nn < len(seq) and seq[nn] == (5, 0):
            a.vmwait('late'); a('s_barrier')
        rd = rdW(nn) if nn < len(seq) else []
        WP = opt('wp', 4)
        if n % WP == 0:
            left = min(len(seq), n + AH) - (n + WP)
            a(f's_waitcnt lgkmcnt({max(0, 2*left)})')
        A = ACC[acc_of[j]]
        a(f'{MFMA} {vr(A,16)}, {vr(W[n % NW],4)}, {vr(X[k],4)}, {vr(A,16) if k else 0}')
        for x in rd: a(x)
        if n < 84 and j == 0 and k in (2, 4, 8, 16, 24): a.stamp(f'F_k{k}')
        if n >= 84 and k == 27: a.stamp(f'F_t{j}')
        if n < 84:
            if j == 1 and k + XLA < 28: ldx(k + XLA)
            if j == 4 and k + 1 < 28: a.vmwait(f'x{k+1}')
            if k >= 4 and stat:
                a.emit(stat.pop(0))
            if n == 83:
                a.stamp('D_st1')
                assert not stat
                a('s_barrier')
                srd(a, SRD_A, P_W2, W2_BYTES)
                late = [pair_dma(S13, L13, 0, 0, i, 'late') for i in range(14)]
                g1 = [x for hl in range(3) for x in w2_dma(hl)]; g2 = [x for hl in range(3, 6) for x in w2_dma(hl)]
        else:
            if n == 84 + 2: pend = epi(0) + epi(1) + epi(4) + epi(2) + epi(3) + epi(5); done = 0; tot = len(pend); one = tot // 6
            if n >= 84 + 2:
                want = min(tot, (n - 85) * tot // 108 + 1)
                lim = {2: 3, 3: 3 + (k >= 2), 5: 4 + (k >= 2), 6: 5 + (k >= 2)}[j] * one
                while done < min(want, lim):
                    a.emit(pend.pop(0)); done += 1
                if k == 27:
                    need = {2: 1, 3: 2, 5: 3, 6: 6}[j] * one
                    while done < need:
                        a.emit(pend.pop(0)); done += 1
            if (j, k) == (5, 0): a('s_barrier')
            if k % opt('latestep', 2) == 0:
                q_ = late if late else (g1 if g1 else (g2 if j >= 5 else []))
                if q_:
                    for x in q_.pop(0): a.emit(x)
            if j == 5 and k == opt('f1k', 6):
                a.vmwait('hh1'); flag_store(a, SF, vp)
            if j == 6 and k == opt('f2k', 14) and not opt('d2late', 1):
                a(f's_add_u32 s{SF}, s{SF}, {FLS}')
                a.vmwait('hh2'); flag_store(a, SF, vl[2])
                a(f's_add_u32 s{SF}, s{SF}, {FLS}')
            if j == 6 and k == opt('p1k', 18):
                flag8_addr(a, vs, vp, vl[4], S_SPIN + 1, FL_D1)
                poll_issue(a, S_SPIN + 1, vs, 8, vp)
    assert not late and not g1 and not g2
    a.stamp('D_loop')
    if opt('d2late', 1):
        a(f's_add_u32 s{SF}, s{SF}, {FLS}')
        a.vmwait('hh3'); flag_store(a, SF, vl[2])
        a(f's_add_u32 s{SF}, s{SF}, {FLS}')
    for x in epi(6): a.emit(x)
    (a.stamp('D_epi'), a.stamp('R_D_epic'), a.stamp('R_D_epir', True))
    R['SF'] = SF

def phase_e(a, R, stg):
    va = VA(4, 199)
    ACC = [va(16) for _ in range(4)]
    NB = 16
    BUF = [[va(4) for l in range(2)] for d in range(NB)]
    vf = R['vfE']; vp = R['vpE']
    t = [204, 205, 206, 207]; vt = 208
    assert vf >= va.n and vp >= va.n and vf < 204 and vp < 204
    STT, SCT = T1, T3
    SP = S_SPIN + 1
    tile_ids(a, STT, SCT)
    a(f's_mul_i32 s{T4}, s{S_W}, {28*1024}')
    for l in range(2):
        a(f'''
        s_xor_b32 s{T0}, s{STT}, {l}
        s_mul_i32 s{T0}, s{T0}, {112*1024}
        s_add_u32 s{T0}, s{T0}, s{T4}
        s_add_u32 s{S_U0+l}, s{T0}, {WS_HH}
        ''')
    e0 = lambda f: 2 if f == 2 else 0
    l0 = lambda f: 0 if f == 2 else 5
    order = [7*f + e0(f) + j for j in (0, 1, 4, 2, 3) for f in range(4)] + [7*f + l0(f) + j for j in range(2) for f in range(4)]
    assert sorted(order) == list(range(28))
    if opt('erot', 0):
        for f_ in range(4):
            a(f's_add_u32 s{T0}, s{S_CB}, {f_}\ns_and_b32 s{T0}, s{T0}, 3\ns_mul_i32 s{T0}, s{T0}, 7168')
            for l in range(2): a(f's_add_u32 s{70 + 4*l + f_}, s{T0}, s{S_U0 + (l ^ 0)}')
        if opt('erot', 0) == 2:
            a(f's_lshr_b32 s{T0}, s{S_CB}, 2\ns_cmp_lg_u32 s{T0}, 0')
            for f_ in range(4):
                a(f's_mov_b32 s{T0}, s{70+f_}\ns_cselect_b32 s{70+f_}, s{74+f_}, s{70+f_}\ns_cselect_b32 s{74+f_}, s{T0}, s{74+f_}')
    poll_check(a, SP, vf, 8, vp)
    a.stamp('E_poll1')
    N2 = 20 if opt('d2late', 1) else 16
    B4 = opt('b4', 0)
    st = dict(nxt=0)
    FL3 = opt('efl', 7); PI2 = opt('epi2', 3); PI3 = opt('epi3', 15)
    def ld_items():
        n = st['nxt']; st['nxt'] += 1
        pre = []
        if B4 and n == opt('efl5', 4): pre.append(('call', lambda: (a.vmwait('hh5'), flag_store(a, R['SF'], vt), a(f's_add_u32 s{R["SF"]}, s{R["SF"]}, {FLS}'))))
        if n == FL3: pre.append(('call', lambda: (a.vmwait('hh6'), flag_store(a, R['SF'], vt))))
        if n in ((8, N2, 24) if B4 else (8, N2)):
            nm = {8: 2, N2: 3, 24: 4}[n]
            pre.append(('call', lambda: (a.stamp(f'E_pre{nm}'), poll_check(a, SP, vf, 8, vp), a.stamp(f'E_poll{nm}'))))
        if n in ((PI2, PI3, opt('epi4', 21)) if B4 else (PI2, PI3)): pre.append(('call', lambda: (a(f's_add_u32 s{SP}, s{SP}, {FLS}'), poll_issue(a, SP, vf, 8, vp))))
        ks = order[n]
        out = []
        for l in range(2):
            if opt('erot', 0):
                f_, o_ = divmod(ks, 7)
                out.append((pre if l == 0 else []) + [f's_add_u32 s{T0}, s{70 + 4*l + f_}, {o_ * 1024}',
                           ('vm', f'buffer_load_dwordx4 {vr(BUF[n % NB][l],4)}, v{V_OFF}, {sr4(SRD_WS)}, s{T0} offen sc1', f'h{n}')])
                continue
            out.append((pre if l == 0 else []) + [f's_add_u32 s{T0}, s{S_U0+l}, {(ks >> 2) * 4096}',
                       ('vm', f'buffer_load_dwordx4 {vr(BUF[n % NB][l],4)}, v{V_OFF}, {sr4(SRD_WS)}, s{T0} offen offset:{1024*(ks&3)} sc1', f'h{n}')])
        return out
    def ld():
        for it in ld_items():
            for x in it: a.emit(x)
    LA = opt('ela', 8)
    for n in range(LA): ld()
    for j in range(8):
        a(f'v_lshlrev_b32 v{ACC[0]+2*j}, 16, v{HKEEP+j}\nv_and_b32 v{ACC[0]+2*j+1}, 0xffff0000, v{HKEEP+j}')
    red_addr(a, t)
    RA = [209, 210, 211, 212]
    a(f'''
    s_lshl_b32 s{T0}, s{S_W}, 13
    v_add_u32 v{RA[0]}, s{T0}, v{V_RD}
    v_add_u32 v{RA[1]}, s{T0}, v{V_RD+1}
    s_mul_i32 s{T0}, s{S_W}, {14336 - 4096}
    s_sub_u32 s{T0}, s{T0}, {SCR - PAIR}
    v_add_u32 v{RA[2]}, s{T0}, v{V_RD}
    v_add_u32 v{RA[3]}, s{T0}, v{V_RD+1}
    ''')
    if opt('trE', 0):
        a('s_barrier')
        a(f'''
        v_subrev_u32 v{V_RD}, {SCR}, v{V_RD}
        v_subrev_u32 v{V_RD+1}, {SCR}, v{V_RD+1}
        v_lshrrev_b32 v{V_P13}, 3, v{V_LANE}
        v_lshlrev_b32 v{V_P13}, 7, v{V_P13}
        s_lshl_b32 s{T0}, s{S_W}, 12
        v_add3_u32 v{V_P13}, s{T0}, v{V_OFF}, v{V_P13}
        ''')
        stg.vw = V_P13
        while stg.nt < NHG: stg.trans()
        a('s_waitcnt lgkmcnt(0)')
    Ls = [n for n in range(28) if order[n] >= 16]
    WB = [WOV + 8*i for i in range(4)]
    lst = dict(rd=0)
    def lread():
        i = lst['rd']; lst['rd'] += 1
        hl, s_ = divmod(order[Ls[i]] - 16, 2)
        return [f'ds_read_b64_tr_b16 {vr(WB[i % 4] + 4*lc + 2*u, 2)}, v{RA[2*(hl // 3) + lc]} offset:{(hl % 3)*4096 + s_*2048 + u*1024}' for lc in range(2) for u in range(2)]
    for _ in range(3):
        for x in lread(): a(x)
    def lwait(n):
        if n in Ls: a(f's_waitcnt lgkmcnt({4 * (lst["rd"] - 1 - Ls.index(n))})')
    def mm(n, l):
        ks = order[n]
        p, b = stg.dest(4 + (ks >> 1), ks & 1, l >> 1) if ks < 16 else ('v', WB[Ls.index(n) % 4] + 4 * (l >> 1))
        a(f'{MFMA} {vr(ACC[l],16)}, {vr(b,4,p)}, {vr(BUF[n % NB][l & 1],4)}, {vr(ACC[l],16) if (n or l == 0) else 0}')
    KT = 28 - opt('etail', 3)
    for n in range(KT):
        lwait(n)
        a.vmwait(f'h{n}')
        items = []
        for _ in range(2 if n < opt('egrow', 0) else 1):
            if st['nxt'] < 28 and st['nxt'] - NB < n: items += ld_items()
        rd = lread() if (n in Ls and lst['rd'] < len(Ls)) else []
        for l in range(4):
            mm(n, l)
            if rd: a(rd.pop(0))
            if items and (len(items) > 2 or l & 1 == 0 or l == 3):
                for x in items.pop(0): a.emit(x)
        assert not items
        if n == opt('ebar', 20):
            assert all(m <= n for m in Ls if order[m] < 22)
            a('s_barrier')
    assert st['nxt'] == 28 and lst['rd'] == len(Ls)
    a('s_waitcnt lgkmcnt(0)')
    for l in (1, 2, 3, 0):
        for n in range(KT, 28):
            if l == 1: a.vmwait(f'h{n}')
            mm(n, l)
        if l in (2, 3): red_write(a, ACC, t, l - 1)
    a.stamp('E_mfma')
    red_write(a, ACC, t, 3)
    srd(a, SRD_A, P_OUT, X_BYTES)
    a(f'''
    v_and_b32 v{vf}, 31, v{V_LANE}
    v_lshrrev_b32 v{vp}, 5, v{V_LANE}
    v_mul_u32_u24 v{vf}, 896, v{vf}
    v_lshl_add_u32 v{vf}, v{vp}, 4, v{vf}
    s_mul_i32 s{T0}, s{STT}, {32*896}
    s_lshl_b32 s{T2}, s{SCT}, 6
    s_add_u32 s{T0}, s{T0}, s{T2}
    ''')
    red_read(a, ACC, t)
    if opt('bias', 0):
        for r in range(16): a(f"v_add_f32 v{ACC[0]+r}, {fx(opt('bias', 0) * 1e-3)}, v{ACC[0]+r}")
    PKR = ACC[1]
    for j in range(8): a(f'v_cvt_pk_bf16_f32 v{PKR+j}, v{ACC[0]+2*j}, v{ACC[0]+2*j+1}')
    for g in (0, 4):
        a(f'v_permlane32_swap_b32 v{PKR+g}, v{PKR+g+2}\nv_permlane32_swap_b32 v{PKR+g+1}, v{PKR+g+3}')
    fl_ = ['', ' sc1', ' nt', ' sc0 sc1'][opt('outst', 2)]
    a(f'buffer_store_dwordx4 {vr(PKR,4)}, v{vf}, {sr4(SRD_A)}, s{T0} offen{fl_}')
    a(f'buffer_store_dwordx4 {vr(PKR+4,4)}, v{vf}, {sr4(SRD_A)}, s{T0} offen offset:32{fl_}')
    a.stamp('E_st')

def gen():
    a = K()
    a.stamp('rt0', True); a.stamp('t0')
    HB = opt('hb', 3); DB = opt('db', 3)
    if int(os.environ.get('TFIX', '0')): a('s_memrealtime s[60:61]')
    a(f'''
    s_cmp_ge_u32 s2, 256
    s_cbranch_scc1 Lend
    s_load_dwordx16 s[32:47], s[0:1], 0
    s_load_dwordx2 s[50:51], s[0:1], 72
    v_lshrrev_b32 v2, 6, v0
    v_and_b32 v{V_LANE}, 63, v0
    v_readfirstlane_b32 s{S_W}, v2
    v_lshlrev_b32 v{V_OFF}, 4, v{V_LANE}
    v_lshlrev_b32 v{V_FL}, 7, v{V_LANE}
    s_and_b32 s{T0}, s2, 7
    s_lshr_b32 s{S_J}, s2, 3
    s_and_b32 s{S_H}, s{T0}, {(16 >> HB) - 1}
    s_lshl_b32 s{S_H}, s{S_H}, {HB}
    s_and_b32 s{T1}, s{S_J}, {(1 << HB) - 1}
    s_add_u32 s{S_H}, s{S_H}, s{T1}
    s_lshr_b32 s{S_TB}, s{T0}, {4 - HB}
    s_lshl_b32 s{S_TB}, s{S_TB}, {5 - HB}
    s_lshr_b32 s{T1}, s{S_J}, {HB}
    s_add_u32 s{S_TB}, s{S_TB}, s{T1}
    s_mul_i32 s{T1}, s{S_J}, 9363
    s_lshr_b32 s{T1}, s{T1}, 16
    s_mul_i32 s{T2}, s{T1}, 7
    s_sub_u32 s{S_CB}, s{S_J}, s{T2}
    s_lshl_b32 s{S_RB}, s{T0}, 2
    s_add_u32 s{S_RB}, s{S_RB}, s{T1}
    s_and_b32 s{S_TD}, s{T0}, {(16 >> DB) - 1}
    s_lshl_b32 s{S_TD}, s{S_TD}, {DB}
    s_and_b32 s{T1}, s{S_J}, {(1 << DB) - 1}
    s_add_u32 s{S_TD}, s{S_TD}, s{T1}
    s_lshr_b32 s{S_FS}, s{T0}, {4 - DB}
    s_lshl_b32 s{S_FS}, s{S_FS}, {5 - DB}
    s_lshr_b32 s{T1}, s{S_J}, {DB}
    s_add_u32 s{S_FS}, s{S_FS}, s{T1}
    ''')
    if opt('cpre', 1):
        a('s_getpc_b64 s[54:55]')
        a.label('Lpc')
        a(f'''
        s_lshl_b32 s{T0}, s{S_J}, 2
        s_add_u32 s{T0}, s{T0}, s{S_W}
        s_mul_i32 s{T0}, s{T0}, 3
        v_add_u32 v4, s{T0}, v{V_LANE}
        v_lshlrev_b32 v4, 7, v4
        v_min_u32 v4, Lcode_end-Lpc-4, v4
        v_mov_b32 v5, s55
        v_add_co_u32 v4, vcc, s54, v4
        v_addc_co_u32 v5, vcc, 0, v5, vcc
        s_mov_b64 exec, 7
        ''')
        a.vmem('global_load_dword a4, v[4:5], off', 'code')
        a('s_mov_b64 exec, -1')
    R = alloc_b()
    phase_a(a, R)
    a(f'''
    s_and_b32 s{T0}, s{S_FS}, 3
    s_cmp_eq_u32 s{T0}, 2
    s_cselect_b32 s{S_E0}, 2, 0
    s_cselect_b32 s{S_L0}, 0, 5
    s_and_b32 s{T0}, s{S_J}, {(1 << DB) - 1}
    s_lshr_b32 s{T1}, s{S_J}, {DB}
    s_mul_i32 s{T1}, s{T1}, {opt('r14b', 7)}
    s_mul_i32 s{T0}, s{T0}, {opt('r14a', 1)}
    s_add_u32 s{T0}, s{T0}, s{T1}
    s_mul_i32 s{T1}, s{T0}, 4682
    s_lshr_b32 s{T1}, s{T1}, 16
    s_mul_i32 s{T1}, s{T1}, 14
    s_sub_u32 s{S_R14}, s{T0}, s{T1}
    ''')
    stg = Stager(a)
    phase_b(a, R, stg)
    a(f's_cmp_ge_u32 s{S_J}, 28\ns_cbranch_scc1 LnoC')
    phase_c(a, R, stg)
    a('s_branch LD')
    vm_c = list(a.vm)
    a.label('LnoC')
    a.vmall()
    flag_store(a, T5, 4)
    a('s_barrier')
    put5(a, 5)
    a.label('LD')
    a.vm = vm_c
    phase_d(a, R, stg)
    a(f's_cmp_ge_u32 s{S_J}, 28\ns_cbranch_scc0 LE')
    vm_d = list(a.vm)
    a('s_waitcnt vmcnt(0)')
    flag_store(a, R['SF'], 4)
    if opt('b4', 0):
        a(f's_add_u32 s{R["SF"]}, s{R["SF"]}, {FLS}'); flag_store(a, R['SF'], 4)
    a('s_branch Lfin')
    a.label('LE')
    a.vm = vm_d
    phase_e(a, R, stg)
    a.label('Lfin')
    if int(os.environ.get('TFIX', '0')):
        a.label('Lfix')
        a(f's_memrealtime s[62:63]\ns_waitcnt lgkmcnt(0)\ns_sub_u32 s62, s62, s60\ns_cmp_lt_u32 s62, {int(os.environ["TFIX"])}\ns_cbranch_scc1 Lfix')
    if STAMP:
        a('s_waitcnt vmcnt(0)')
        a.stamp('end'); a.stamp('rt1', True)
        a(f's_waitcnt lgkmcnt(0)\ns_lshl_b32 s{T0}, s2, 2\ns_add_u32 s{T0}, s{T0}, s{S_W}\ns_lshl_b32 s{T0}, s{T0}, 7\ns_add_u32 s{T0}, s{T0}, {WS_DBG}\nv_mov_b32 v4, 0')
        for i in range(a.nst):
            a(f'v_mov_b32 v5, s{60+2*i}\nbuffer_store_dword v5, v4, {sr4(SRD_WS)}, s{T0} offen offset:{4*i}')
    if STAMP and int(os.environ.get('DBGOUT', '0')):
        n = a.nst
        a(f'''
        s_load_dwordx2 s[{SRD_A}:{SRD_A+1}], s[0:1], 64
        s_mov_b32 s{SRD_A+2}, 256
        s_mov_b32 s{SRD_A+3}, 0x20000
        s_not_b32 s{T1}, s60
        v_mov_b32 v6, s{T1}
        v_mov_b32 v7, s{60+2*(n-1)}
        v_mov_b32 v8, s60
        s_mov_b64 exec, 1
        s_waitcnt lgkmcnt(0)
        buffer_atomic_umax v6, v4, {sr4(SRD_A)}, 0 offen
        buffer_atomic_umax v7, v4, {sr4(SRD_A)}, 0 offen offset:4
        buffer_atomic_umax v8, v4, {sr4(SRD_A)}, 0 offen offset:8
        s_or_b32 s{T0}, s2, s{S_W}
        s_cmp_lg_u32 s{T0}, {int(os.environ.get('DBGWG', '0'))}
        s_cbranch_scc1 Lend
        ''')
        for i in range(2, min(n - 1, 15)):
            a(f's_sub_u32 s{T0}, s{60+2*i}, s62\nv_mov_b32 v5, s{T0}\nbuffer_store_dword v5, v4, {sr4(SRD_A)}, 0 offen offset:{4*(i+1)}')
    a.label('Lend')
    a('s_endpgm')
    fallback(a, R)
    a.label('Lcode_end')
    a.finalize()
    head = open('sequential_preLN__mha_block__glu_gated_swiglu__prompt.s.ref').read().split('; Override')[0]
    pre = f'.amdgcn_target "amdgcn-amd-amdhsa--gfx950"\n.text\n.p2align 12\n.fill {(4096 - 0x300) // 4}, 4, 0xbf800000\n.globl {NAME}\n.p2align 8\n.type {NAME},@function\n{NAME}:\n'
    if opt('visit', 1):
        import subprocess, re, tempfile
        from asmgen import Ins
        tmp = tempfile.mkdtemp()
        open(tmp + '/t.s', 'w').write(pre + a.text() + ''.join(f'Lpage{i}:\n' for i in range(1, 13)))
        subprocess.run(['clang', '-x', 'assembler', '-target', 'amdgcn-amd-amdhsa', '-mcpu=gfx950', '-c', tmp + '/t.s', '-o', tmp + '/t.o'], check=True)
        dis = subprocess.run(['llvm-objdump', '-d', '--mcpu=gfx950', tmp + '/t.o'], capture_output=True, text=True).stdout
        dis = dis[dis.index(f'<{NAME}>:'):]
        sizes = [4 * len(m.group(1).split()) for m in re.finditer(r'// [0-9A-F]{12}: ([0-9A-F ]+)$', dis, re.M)]
        out = []; off = 0; page = 1; k = 0; masked = False
        for x in a.ins:
            if x.kind not in ('label', 'dir'):
                if off >= 4096 * page and page <= 12 and not masked:
                    out += [Ins(f'Lpage{page}:'), Ins(f's_cbranch_execz Lvis{(page - 1) // 4}')]
                    off += 4; page += 1
                off += sizes[k]; k += 1
                if ('exec', 0) in x.wr: masked = x.text.split(';')[0].strip() != 's_mov_b64 exec, -1'
            out.append(x)
        assert k == len(sizes), (k, len(sizes))
        for pg in range(page, 13): out += [Ins(f'Lpage{pg}:'), Ins(f's_branch Lvis{(pg - 1) // 4}')]
        a.ins = out
    s = head + f'; @launch grid=(256,1,1) block=(256,1,1) lds={LDS_BYTES}\n' + pre + a.text()
    s += f'''.section .rodata,"a"
.p2align 6
.amdhsa_kernel {NAME}
  .amdhsa_next_free_vgpr 512
  .amdhsa_next_free_sgpr 102
  .amdhsa_accum_offset 256
  .amdhsa_group_segment_fixed_size 0
  .amdhsa_kernarg_size 80
  .amdhsa_user_sgpr_count 2
  .amdhsa_user_sgpr_kernarg_segment_ptr 1
  .amdhsa_system_sgpr_workgroup_id_x 1
.end_amdhsa_kernel
'''
    if STAMP: s = '; STAMPS ' + ' '.join(a.names) + '\n' + s
    print(f'instrs={len(a.ins)} nop_states={a.nops} stamps={a.nst}', file=sys.stderr)
    return s

if __name__ == '__main__':
    open(sys.argv[1], 'w').write(gen())
```

```python
import sys, struct, math, os
from asmgen import Asm

NAME = 'sequential_preLN__mha_block__glu_gated_swiglu__prompt_kernel'
MB = 1 << 20
WS_KV  = 0
WS_O   = 4 * MB
WS_H   = 6 * MB
WS_ST  = 8 * MB
WS_HH  = 9 * MB
WS_FLG = 16 * MB
FL_A = WS_FLG + 0x10000
FL_B = FL_A + 1024 * 128
FL_C = FL_B + 1024 * 128
FL_D1 = FL_C + 1024 * 128
FL_D2 = FL_D1 + 1024 * 128
FL_D3 = FL_D2 + 1024 * 128
FL_W = FL_D3 + 1024 * 128
WS_WB = WS_ST + 0x80000
WS_MH = WS_ST + 0x90000
FLS = 1024 * 128
WS_DBG = 17 * MB
WS_SIZE = 18 * MB

X_BYTES = 2048 * 448 * 2
WQKV_BYTES = 448 * 1344 * 2
WO_BYTES = 448 * 448 * 2
W1_BYTES = 448 * 1792 * 2
W2_BYTES = 1792 * 448 * 2
LDS_BYTES = 163840
MFMA = 'v_mfma_f32_32x32x16_bf16'
STAMP = int(os.environ.get('STAMP', '0'))
OPT = dict(kv.split('=') for kv in os.environ.get('OPT', '').split(',') if kv)
def opt(k, d): return int(OPT.get(k, d))

def f2u(x): return struct.unpack('<I', struct.pack('<f', x))[0]
def fx(x): return hex(f2u(x))
def vr(b, n=1, p='v'): return f'{p}[{b}:{b+n-1}]' if n > 1 else f'{p}{b}'
def sr4(b): return f's[{b}:{b+3}]'

class VA:
    def __init__(self, start, limit): self.n = start; self.limit = limit
    def __call__(self, cnt=1, align=None):
        if align is None: align = 1 if cnt == 1 else (2 if cnt == 2 else 4)
        self.n = (self.n + align - 1) // align * align
        b = self.n; self.n += cnt
        assert self.n <= self.limit, f'out of registers {self.n} > {self.limit}'
        return b

class K(Asm):
    def __init__(self):
        super().__init__(); self.vm = []; self.nst = 0; self.nlab = 0; self.names = []
    def vmem(self, text, tag):
        self(text); self.vm.append(tag)
    def vmwait(self, *tags, lgkm=None):
        idx = [i for i, t in enumerate(self.vm) if t in tags]
        s = ''
        if idx:
            n = len(self.vm) - 1 - max(idx)
            s += f' vmcnt({min(n, 63)})'
            self.vm = self.vm[len(self.vm) - n:] if n else []
        if lgkm is not None: s += f' lgkmcnt({lgkm})'
        if s: self('s_waitcnt' + s)
    def vmall(self):
        self('s_waitcnt vmcnt(0)'); self.vm = []
    def emit(self, x):
        if isinstance(x, tuple):
            if x[0] == 'vm': self.vmem(x[1], x[2])
            elif x[0] == 'wait': self.vmwait(*x[1:])
            elif x[0] == 'call': x[1]()
        else: self(x)
    def stamp(self, name='', real=False):
        if not STAMP: return
        if name and name[0] in 'ABCDEFGHIR' and name[0] not in os.environ.get('STAMPSET', 'AB'): return
        if name in self.names:
            i = self.names.index(name)
        else:
            i = self.nst; self.nst += 1; self.names.append(name)
        assert i < 19
        self(f's_mem{"real" if real else ""}time s[{60+2*i}:{61+2*i}]')
    def newlabel(self, p):
        self.nlab += 1; return f'L{p}{self.nlab}'

S_W = 3
SRD_X = 4; SRD_WQKV = 8; SRD_WS = 12; SRD_A = 16; SRD_B = 20
P_X, P_WQKV, P_WO, P_W1, P_W3, P_W2, P_OUT, P_WS = 32, 34, 36, 40, 42, 44, 46, 50
S_TAG = 24; S_H = 25; S_TB = 26; S_RB = 27; S_CB = 28; S_TD = 29; S_FS = 30; S_J = 31
S_E0 = 38; S_L0 = 39
S_U0 = 48; S_U1 = 49
S_ONES = 52
T0, T1, T2, T3, T4, T5, T6 = 53, 54, 55, 56, 57, 58, 59
S_SPIN = 98
S_ROT = 39
S_DUM = 100
S_RX = 99
S_WG = 32
WROW = 232
MUX = 216
S_R14 = 0; S_RG = 1
V_LANE = 1; V_OFF = 2; V_FL = 3
V_SRC = 212; V_P13 = 213; V_RD = 214
HKEEP = 216
V_SRC2 = 0
XRES = 204
WOV = 224
PAIR = 57344; SCR = 2 * PAIR; SINGLE = SCR + 16384
NHG = 12
RAW5 = 196

def xm(n):
    if n >= 64: return 's_mov_b64 exec, -1'
    if n < 31: return f's_mov_b64 exec, {hex((1 << n) - 1)}'
    lo = '-1' if n >= 32 else hex((1 << n) - 1)
    return f's_mov_b32 exec_lo, {lo}\ns_mov_b32 exec_hi, {hex((1 << max(0, n - 32)) - 1)}'

def srd(a, d, p, nbytes):
    a(f's_mov_b32 s{d}, s{p}\ns_mov_b32 s{d+1}, s{p+1}\ns_mov_b32 s{d+2}, {nbytes}\ns_mov_b32 s{d+3}, 0x20000')

def visit(a, site):
    if not opt('visit', 1): return
    a('s_mov_b64 exec, 0')
    for w in range(4):
        a(f's_cmp_eq_u32 s{S_W}, {w}\ns_cbranch_scc1 Lpage{1 + 4*site + w}')
    a.label(f'Lvis{site}')
    a('s_mov_b64 exec, -1')

def halfsum(a, x, t):
    a(f'v_mov_b32 v{t}, v{x}\nv_permlane32_swap_b32 v{x}, v{t}\nv_add_f32 v{x}, v{x}, v{t}')

def flag_store(a, sreg, vt):
    a(f'v_mov_b32 v{vt}, s{S_TAG}\ns_mov_b64 exec, 1')
    a.vmem(f'buffer_store_dword v{vt}, v{V_OFF}, {sr4(SRD_WS)}, s{sreg} offen sc1', 'flag')
    a('s_mov_b64 exec, -1')

def poll_issue(a, sreg, vaddr, nl, vt):
    a(xm(nl))
    a.vmem(f'buffer_load_dword v{vt}, v{vaddr}, {sr4(SRD_WS)}, s{sreg} offen sc1', 'poll')
    a('s_mov_b64 exec, -1')

def poll_check(a, sreg, vaddr, nl, vt, extra=None):
    L = a.newlabel('poll'); D = L + 'd'
    a(xm(nl) + f'\ns_mov_b32 s{S_SPIN}, 0x40000')
    a.vmwait('poll')
    a(f'v_cmp_ne_u32 vcc, s{S_TAG}, v{vt}\ns_cbranch_vccz {D}')
    NP = opt('npoll', 1) if extra else 1
    if NP == 1:
        a.label(L)
        a(f'''
        {f"s_sleep {opt('sleep', 0)}" if opt('sleep', 0) else ''}
        buffer_load_dword v{vt}, v{vaddr}, {sr4(SRD_WS)}, s{sreg} offen sc1
        s_sub_u32 s{S_SPIN}, s{S_SPIN}, 1
        s_waitcnt vmcnt(0)
        s_cbranch_scc1 {D}
        v_cmp_ne_u32 vcc, s{S_TAG}, v{vt}
        s_cbranch_vccnz {L}
        ''')
    else:
        regs = [vt] + list(extra[:NP - 1])
        ldp = lambda r: f'buffer_load_dword v{r}, v{vaddr}, {sr4(SRD_WS)}, s{sreg} offen sc1'
        for r in regs:
            a(ldp(r)); a(f"s_nop {opt('pgap', 15)}\n" * opt('pgapn', 2))
        a.label(L)
        for r in regs:
            a(f's_waitcnt vmcnt({NP - 1})\nv_cmp_ne_u32 vcc, s{S_TAG}, v{r}\ns_cbranch_vccz {D}x\n' + ldp(r))
        a(f's_sub_u32 s{S_SPIN}, s{S_SPIN}, 1\ns_cbranch_scc0 {L}')
        a.label(D + 'x')
        a('s_waitcnt vmcnt(0)' if opt('pdrain', 0) else '')
    a.label(D)
    a('s_mov_b64 exec, -1')

def ssrd(a, D, lim, pa, pb, na, nb, per, u0, u1):
    a(f'''
    s_lshl_b32 s{u0}, s2, 2
    s_add_u32 s{u0}, s{u0}, s{S_W}
    s_mov_b32 s{D+2}, {na}
    s_cmp_ge_u32 s{u0}, {lim}
    s_cselect_b32 s{D}, s{pb}, s{pa}
    s_cselect_b32 s{D+1}, s{pb+1}, s{pa+1}
    s_cselect_b32 s{D+2}, {nb}, s{D+2}
    s_cselect_b32 s{u1}, {lim}, 0
    s_sub_u32 s{u0}, s{u0}, s{u1}
    s_mul_i32 s{u0}, s{u0}, {per}
    s_min_u32 s{u0}, s{u0}, s{D+2}
    s_sub_u32 s{D+2}, s{D+2}, s{u0}
    s_add_u32 s{D}, s{D}, s{u0}
    s_addc_u32 s{D+1}, s{D+1}, 0
    s_mov_b32 s{D+3}, 0x20000
    ''')

def sld(D, o): return f's_buffer_load_dwordx2 s[{S_DUM}:{S_DUM+1}], {sr4(D)}, {o + 60}'

def phase_a(a, R):
    WR = 114688
    WQ = 16384
    CSP = WR + 5 * 8192
    PRV = CSP + 1536
    QX = 49152
    assert PRV + 2048 <= LDS_BYTES
    R['QX'] = QX
    Q0 = R['Q'][0]
    va = VA(4, 256)
    ACC = [va(16), va(16)]; accQ = va(16)
    PK = va(8); assert PK == Q0, (PK, Q0)
    X = [va(4) for _ in range(28)]
    NWF = 4
    WF = [[va(4) for j in range(2)] for b in range(NWF)]
    vx = [va(), va()]; vw = [va(), va()]
    ax = [va() for _ in range(4)]; aw = [va() for _ in range(4)]; ab = [va() for _ in range(4)]
    pr = [va(2) for _ in range(6)]
    cs = [pr[0], pr[1], pr[2]]; mu = pr[3]; rs = pr[4]; rq = pr[5]
    sm = [pr[0] + 1, pr[1] + 1]; sq = [pr[2] + 1, pr[3] + 1]
    hf = pr[4] + 1; n31 = pr[5] + 1
    vq = va()
    t = [va() for _ in range(7)] + [0]
    dB = t[7]
    assert va.n <= 240, va.n
    T16 = 240; U16 = accQ
    a(f'v_lshrrev_b32 v{hf}, 5, v{V_LANE}\nv_and_b32 v{n31}, 31, v{V_LANE}')
    for i in range(2):
        a(f'''
        v_lshrrev_b32 v{t[0]}, 3, v{V_LANE}
        v_add_u32 v{t[0]}, {8*i}, v{t[0]}
        v_lshrrev_b32 v{t[1]}, 1, v{t[0]}
        v_and_b32 v{t[1]}, 7, v{t[1]}
        v_and_b32 v{t[2]}, 7, v{V_LANE}
        v_xor_b32 v{t[1]}, v{t[1]}, v{t[2]}
        v_lshlrev_b32 v{t[1]}, 4, v{t[1]}
        v_mul_u32_u24 v{t[0]}, 896, v{t[0]}
        v_add_u32 v{vx[i]}, v{t[0]}, v{t[1]}
        ''')
    a(f'''
    v_subrev_u32 v{vx[1]}, 1024, v{vx[1]}
    v_lshrrev_b32 v{t[0]}, 3, v{V_LANE}
    v_lshrrev_b32 v{t[1]}, 2, v{V_LANE}
    v_and_b32 v{t[1]}, 4, v{t[1]}
    v_xor_b32 v{t[1]}, v{t[1]}, v{t[2]}
    v_min_u32 v{t[1]}, 6, v{t[1]}
    v_mul_u32_u24 v{t[0]}, 2688, v{t[0]}
    v_lshl_add_u32 v{vw[0]}, v{t[1]}, 4, v{t[0]}
    v_add_u32 v{vw[1]}, {8*2688 - 1024}, v{vw[0]}
    s_waitcnt lgkmcnt(0)
    ''')
    srd(a, SRD_X, P_X, X_BYTES); srd(a, SRD_WQKV, P_WQKV, WQKV_BYTES)
    SX, SW, LX, LW = T3, T4, T5, T6
    a(f'''
    s_lshl_b32 s{SX}, s{S_TB}, 2
    s_add_u32 s{SX}, s{SX}, s{S_W}
    s_mul_i32 s{SX}, s{SX}, {32*896}
    s_mul_i32 s{SW}, s{S_W}, {16*2688}
    s_lshr_b32 s{T0}, s{S_H}, 1
    s_mul_i32 s{T0}, s{T0}, 112
    s_add_u32 s{SW}, s{SW}, s{T0}
    s_and_b32 s{T0}, s{S_H}, 1
    s_mul_i32 s{T0}, s{T0}, 896
    s_add_u32 s{SW}, s{SW}, s{T0}
    s_add_u32 s{SW}, s{SW}, 896
    s_mul_i32 s{LX}, s{S_W}, 28672
    s_lshl_b32 s{LW}, s{S_W}, 11
    ''')
    def w_items(c):
        lds = WR + c * 8192 if c < 5 else (c - 5) * 8192
        return [[f's_add_u32 m0, s{LW}, {lds}', f's_mul_i32 s{T0}, s{S_ROT}, {64*2688}', f's_add_u32 s{T0}, s{T0}, s{SW}',
                 ('vm', f'buffer_load_dwordx4 v{vw[0]}, {sr4(SRD_WQKV)}, s{T0} offen lds', f'w{c}')],
                [('vm', f'buffer_load_dwordx4 v{vw[1]}, {sr4(SRD_WQKV)}, s{T0} offen offset:1024 lds', f'w{c}'),
                 f's_add_u32 s{S_ROT}, s{S_ROT}, 1', f's_cmp_eq_u32 s{S_ROT}, 7', f's_cselect_b32 s{S_ROT}, 0, s{S_ROT}']]
    def x_items(c):
        out = []
        for i in range(4):
            out.append(([f's_add_u32 m0, s{LX}, {c*4096}', f's_add_u32 s{T0}, s{S_RX}, s{SX}'] if i == 0 else []) +
                       ([f's_add_u32 s{T0}, s{T0}, 12288'] if i == 2 else []) +
                       [('vm', f'buffer_load_dwordx4 v{vx[i&1]}, {sr4(SRD_X)}, s{T0} offen offset:{1024*i} lds', f'x{c}')] +
                       ([f's_add_u32 s{S_RX}, s{S_RX}, 128', f's_cmp_eq_u32 s{S_RX}, 896', f's_cselect_b32 s{S_RX}, 0, s{S_RX}'] if i == 3 else []))
        return out
    def put(items):
        for it in items:
            for x in it: a.emit(x)
    a.stamp('G_karg')
    NPRE = opt('npre', 2)
    a(f'''
    s_lshr_b32 s{S_ROT}, s{S_J}, 3
    s_mul_i32 s{S_ROT}, s{S_ROT}, {opt('rotm', 2)}
    s_and_b32 s{T0}, s{S_J}, 7
    s_add_u32 s{S_ROT}, s{S_ROT}, s{T0}
    s_mul_i32 s{T0}, s{S_ROT}, 37
    s_lshr_b32 s{T0}, s{T0}, 8
    s_mul_i32 s{T0}, s{T0}, 7
    s_sub_u32 s{S_ROT}, s{S_ROT}, s{T0}
    s_lshl_b32 s{S_DUM}, s{S_ROT}, 2
    s_lshl_b32 s{S_RX}, s{S_ROT}, 7
    ''')
    put(x_items(0))
    srd(a, SRD_B, P_WO, WO_BYTES)
    a(f'''
    s_lshl_b32 s{S_WG}, s{S_H}, 4
    s_add_u32 s{S_WG}, s{S_WG}, s{S_TB}
    s_lshl_b32 s{T1}, s{S_W}, 7
    s_add_u32 s{T1}, s{T1}, s{S_WG}
    s_cmp_lt_u32 s{T1}, 112
    s_cselect_b32 s{S_WG}, s{S_WG}, 0x100000
    s_mul_i32 s{S_WG+1}, s{S_WG}, {4*896 // 16}
    s_lshl_b32 s{S_WG+1}, s{S_WG+1}, 4
    s_min_u32 s{S_WG+1}, s{S_WG+1}, 0x40000000
    ''')
    def wrow_items():
        return [[f'v_cmp_gt_u32 vcc, 56, v{V_LANE}', f'v_mov_b32 v{t[5]}, 0x40000000', 's_nop 0', f'v_cndmask_b32 v{t[5]}, v{t[5]}, v{V_OFF}, vcc']] + \
               [[('vm', f'buffer_load_dwordx4 {vr(WROW+4*i,4,"a")}, v{t[5]}, {sr4(SRD_B)}, s{S_WG+1} offen offset:{896*i}', 'wrow')] for i in range(4)]
    put(wrow_items() + w_items(0) + w_items(1))
    for c in range(1, NPRE): put(x_items(c))
    a.stamp('G_dma0')
    assert T1 % 2 == 0 and T2 == T1 + 1
    a(f's_add_u32 s{T1}, s{P_WS}, {WS_FLG}\ns_addc_u32 s{T2}, s{P_WS+1}, 0\ns_load_dword s{S_TAG}, s[{T1}:{T2}], 0')
    srd(a, SRD_WS, P_WS, WS_SIZE)
    def touch_item():
        TA, TB, TC = T1, T2, T0
        return [f's_lshl_b32 s{TA}, s2, 2', f's_add_u32 s{TA}, s{TA}, s{S_W}', f's_mul_i32 s{TB}, s{TA}, 1338', f's_lshr_b32 s{TB}, s{TB}, 18',
                f's_mul_i32 s{TC}, s{TB}, 196', f's_sub_u32 s{TA}, s{TA}, s{TC}', f's_lshl_b32 s{TA}, s{TA}, 13',
                f's_cmp_eq_u32 s{TB}, 1', f's_cselect_b32 s{SRD_A}, s{P_W3}, s{P_W1}', f's_cselect_b32 s{SRD_A+1}, s{P_W3+1}, s{P_W1+1}',
                f's_cmp_eq_u32 s{TB}, 2', f's_cselect_b32 s{SRD_A}, s{P_W2}, s{SRD_A}', f's_cselect_b32 s{SRD_A+1}, s{P_W2+1}, s{SRD_A+1}',
                f's_mov_b32 s{SRD_A+2}, {W1_BYTES}',
                f's_cmp_eq_u32 s{TB}, 3', f's_cselect_b32 s{SRD_A}, s{P_WO}, s{SRD_A}', f's_cselect_b32 s{SRD_A+1}, s{P_WO+1}, s{SRD_A+1}',
                f's_cselect_b32 s{SRD_A+2}, {WO_BYTES}, s{SRD_A+2}',
                f's_cmp_gt_u32 s{TB}, 3', f's_cselect_b32 s{SRD_A+2}, 0, s{SRD_A+2}', f's_mov_b32 s{SRD_A+3}, 0x20000',
                ('vm', f'buffer_load_dword a0, v{V_FL}, {sr4(SRD_A)}, s{TA} offen', 'touch')]
    def prew():
        a(f'''
        v_mov_b32 v{t[7]}, s{S_TAG}
        v_add_u32 v{t[7]}, -1, v{t[7]}
        v_lshlrev_b32 v{t[5]}, 2, v{V_LANE}
        {xm(32)}
        s_lshr_b32 s{T1}, s{S_H}, 1
        s_lshl_b32 s{T1}, s{T1}, 2
        s_add_u32 s{T1}, s{T1}, s{S_W}
        s_lshl_b32 s{T1}, s{T1}, 1
        s_and_b32 s{T2}, s{S_H}, 1
        s_add_u32 s{T1}, s{T1}, s{T2}
        s_lshl_b32 s{T1}, s{T1}, 4
        s_add_u32 s{T1}, s{T1}, s{S_TB}
        s_lshl_b32 s{T1}, s{T1}, 7
        s_add_u32 s{T1}, s{T1}, {FL_A}
        ''')
        st_ = lambda: a.vmem(f'buffer_store_dword v{t[7]}, v{t[5]}, {sr4(SRD_WS)}, s{T1} offen sc1', 'prew')
        st_()
        a(f's_lshl_b32 s{T1}, s{S_TB}, 2\ns_add_u32 s{T1}, s{T1}, s{S_W}\ns_lshl_b32 s{T1}, s{T1}, 4\ns_add_u32 s{T1}, s{T1}, s{S_H}\ns_lshl_b32 s{T1}, s{T1}, 7\ns_add_u32 s{T1}, s{T1}, {FL_B}')
        st_()
        a(f's_lshl_b32 s{T1}, s{S_TD}, 2\ns_add_u32 s{T1}, s{T1}, s{S_W}\ns_lshl_b32 s{T1}, s{T1}, 4\ns_add_u32 s{T1}, s{T1}, s{S_FS}\ns_lshl_b32 s{T1}, s{T1}, 7\ns_add_u32 s{T1}, s{T1}, {FL_D1}')
        for i in range(3):
            st_(); a(f's_add_u32 s{T1}, s{T1}, {FLS}')
        a(f's_lshl_b32 s{T1}, s{S_WG}, 7\ns_add_u32 s{T1}, s{T1}, {FL_W}')
        st_()
        a(f'''
        s_lshl_b32 s{T1}, s{S_RB}, 1
        s_and_b32 s{T2}, s{S_W}, 1
        s_add_u32 s{T1}, s{T1}, s{T2}
        s_lshl_b32 s{T1}, s{T1}, 3
        s_add_u32 s{T1}, s{T1}, s{S_CB}
        s_lshl_b32 s{T1}, s{T1}, 1
        s_lshr_b32 s{T2}, s{S_W}, 1
        s_add_u32 s{T1}, s{T1}, s{T2}
        s_lshl_b32 s{T1}, s{T1}, 7
        s_add_u32 s{T1}, s{T1}, {FL_C}
        s_cmp_ge_u32 s{S_J}, 28
        s_cselect_b32 s{T1}, 0x40000000, s{T1}
        ''')
        st_()
        a('s_mov_b64 exec, -1')
        if opt('tlb', 0):
            st = opt('tlb', 0) * 1024
            a(f'v_mul_u32_u24 v{t[5]}, {st // 64}, v{V_LANE}\nv_lshlrev_b32 v{t[5]}, 6, v{t[5]}\ns_mov_b32 s{T1}, {opt("tlbo", 0)}')
            a.vmem(f'buffer_load_dword a5, v{t[5]}, {sr4(SRD_WS)}, s{T1} offen', 'tlb')
            if opt('tlbout', 0):
                srd(a, SRD_B, P_OUT, X_BYTES)
                a.vmem(f'buffer_load_dword a6, v{t[5]}, {sr4(SRD_B)}, 0 offen', 'tlb')
    def dmaq_items():
        out = []
        for i in range(7):
            out.append([] +
                       [f's_add_u32 m0, s{S_U0}, {i*1024}', f's_mul_i32 s{T0}, s{S_U1}, {16*2688}', f's_add_u32 s{T0}, s{T0}, s{S_E0}',
                        ('vm', f'buffer_load_dwordx4 v{vq}, {sr4(SRD_WQKV)}, s{T0} offen lds', 'wq'),
                        f's_add_u32 s{S_U1}, s{S_U1}, 1', f's_cmp_eq_u32 s{S_U1}, 28', f's_cselect_b32 s{S_U1}, 0, s{S_U1}'])
        return out
    a(f'''
    s_mul_i32 s{S_U0}, s{S_W}, {7*1024}
    s_add_u32 s{S_U0}, s{S_U0}, {WQ}
    s_mul_i32 s{S_U1}, s{S_W}, 7
    s_add_u32 s{S_U1}, s{S_U1}, s{S_DUM}
    s_cmp_ge_u32 s{S_U1}, 28
    s_cselect_b32 s{T0}, 28, 0
    s_sub_u32 s{S_U1}, s{S_U1}, s{T0}
    s_mul_i32 s{S_E0}, s{S_H}, 56
    ''')
    a(f'''
    v_lshrrev_b32 v{t[0]}, 2, v{V_LANE}
    v_mul_u32_u24 v{t[0]}, 2688, v{t[0]}
    v_and_b32 v{t[3]}, 3, v{V_LANE}
    v_lshl_add_u32 v{vq}, v{t[3]}, 4, v{t[0]}
    v_lshrrev_b32 v{t[0]}, 1, v{n31}
    v_and_b32 v{t[0]}, 7, v{t[0]}
    v_lshlrev_b32 v{t[1]}, 7, v{n31}
    v_add_u32 v{t[1]}, s{LX}, v{t[1]}
    v_bfe_u32 v{t[2]}, v{V_LANE}, 4, 1
    v_lshlrev_b32 v{t[2]}, 5, v{t[2]}
    v_lshl_add_u32 v{t[2]}, v{t[3]}, 3, v{t[2]}       ; cg*32 + c4*8
    v_bfe_u32 v{t[3]}, v{V_LANE}, 2, 2                ; r
    v_lshl_add_u32 v{t[5]}, v{hf}, 3, v{t[3]}         ; 8hf + r
    v_lshl_add_u32 v{t[6]}, v{t[5]}, 6, v{t[2]}
    v_bfe_u32 v{t[3]}, v{V_LANE}, 3, 1
    v_lshlrev_b32 v{t[3]}, 6, v{t[3]}                 ; 64*bit
    v_add_u32 v{t[4]}, 56, v{t[2]}
    v_xor_b32 v{t[4]}, v{t[4]}, v{t[3]}
    v_xor_b32 v{t[2]}, v{t[2]}, v{t[3]}
    v_sub_u32 v{dB}, v{t[4]}, v{t[2]}
    v_lshl_add_u32 v{t[2]}, v{t[5]}, 7, v{t[2]}
    v_add_u32 v{t[2]}, {WR}, v{t[2]}
    ''')
    AQ = t[6]
    for n in range(4):
        a(f'''
        s_add_u32 s{T0}, s{S_W}, {n}
        s_and_b32 s{T0}, s{T0}, 3
        s_lshl_b32 s{T1}, s{T0}, 1
        v_add_u32 v{t[4]}, s{T1}, v{hf}
        v_xor_b32 v{t[4]}, v{t[4]}, v{t[0]}
        v_lshl_add_u32 v{ax[n]}, v{t[4]}, 4, v{t[1]}
        s_lshl_b32 s{T1}, s{T0}, 11
        v_add_u32 v{aw[n]}, s{T1}, v{t[2]}
        v_add_u32 v{ab[n]}, v{dB}, v{aw[n]}
        ''')
    for r in sm + sq + cs: a(f'v_mov_b32 v{r}, 0')
    a(f's_mov_b32 s{S_ONES}, 0x3f803f80')
    PA = t[0]; CA = t[1]; CR = t[2]; PB = vx[0]
    if opt('spre', 1):
        ssrd(a, SRD_A, 512, P_W1, P_W3, W1_BYTES, W1_BYTES, 3200, T1, T2)
    if opt('wqt', 0):
        a(f'''
        s_lshr_b32 s{T1}, s{S_J}, 3
        s_lshl_b32 s{T1}, s{T1}, 2
        s_add_u32 s{T1}, s{T1}, s{S_W}
        s_mul_i32 s{T1}, s{T1}, {28*2688}
        s_add_u32 s{T1}, s{T1}, s{S_E0}
        v_lshrrev_b32 v{t[5]}, 1, v{V_LANE}
        v_mul_u32_u24 v{t[5]}, 2688, v{t[5]}
        v_and_b32 v{t[4]}, 1, v{V_LANE}
        v_mul_u32_u24 v{t[4]}, 60, v{t[4]}
        v_add_u32 v{t[5]}, v{t[5]}, v{t[4]}
        {xm(56)}
        ''')
        a.vmem(f'buffer_load_dword a5, v{t[5]}, {sr4(SRD_WQKV)}, s{T1} offen', 'wqt')
        a('s_mov_b64 exec, -1')
    visit(a, 0)
    a.stamp('A_issued')
    ONE = PK; assert ONE % 2 == 0
    for i in range(4): a(f'v_mov_b32 v{ONE+i}, s{S_ONES}')
    steps = list(range(20)) + [20, 24, 21, 22, 23, 25, 26, 27]
    def reads(p_):
        s_ = steps[p_]; c, n = divmod(s_, 4); b = p_ % NWF; off = (c if c < 5 else c - 5) * 8192
        return [f'ds_read_b64_tr_b16 {vr(WF[b][0]+2*u,2)}, v{aw[n]} offset:{off + u*512}' for u in range(2)] + \
               [f'ds_read_b64_tr_b16 {vr(WF[b][1]+2*u,2)}, v{ab[n]} offset:{off + u*512}' for u in range(2)]
    hs = lambda x, tt: [f'v_mov_b32 v{tt}, v{x}', f'v_permlane32_swap_b32 v{x}, v{tt}', f'v_add_f32 v{x}, v{x}, v{tt}']
    CS = [accQ, T16]
    def dots(c, side):
        for n in range(4):
            x = X[4*c+n]
            for i in range(4):
                a(f'v_dot2c_f32_bf16 v{sm[i&1]}, s{S_ONES}, v{x+i}')
                a(f'v_dot2c_f32_bf16 v{sq[i&1]}, v{x+i}, v{x+i}')
            side()
    def xread(c):
        for n in range(4): a(f'ds_read_b128 {vr(X[4*c+n],4)}, v{ax[n]} offset:{c*4096}')
    a.vmwait('x0', lgkm=0)
    a.stamp('A_c0'); a(f's_add_u32 s{S_TAG}, s{S_TAG}, 1')
    xread(0)
    if opt('prew', 1): prew()
    a(f's_bitcmp1_b32 s{S_H}, 0\ns_cbranch_scc1 LAV')
    vm0 = list(a.vm)
    for typ in range(2):
        if typ == 1:
            a.label('LAV'); a.vm = list(vm0)
        NQE = 7
        def mf(p_, j):
            x = X[steps[p_]]; b = p_ % NWF
            A_, B_ = (WF[b][j], x) if typ == 0 else (x, WF[b][j])
            return f'{MFMA} {vr(ACC[j],16)}, {vr(A_,4)}, {vr(B_,4)}, {vr(ACC[j],16) if p_ else 0}'
        def mlist(p_):
            M = [mf(p_, 0), mf(p_, 1)]
            if steps[p_] % 4 == 0:
                M = [f'{MFMA} {vr(CS[j],16)}, {vr(ONE,4)}, {vr(WF[p_ % NWF][j],4)}, {vr(CS[j],16) if p_ else 0}' for j in range(2)] + M
            return M
        q_dma = []
        for c in range(NPRE, 5): q_dma += x_items(c)
        q_dma += w_items(2) + x_items(5) + x_items(6) + w_items(3) + w_items(4)
        def side1(k=opt('dmaper', 2)):
            for _ in range(k):
                if q_dma: put([q_dma.pop(0)])
        side1(4)
        for c in range(1, 7):
            while any(isinstance(x, tuple) and x[2] == f'x{c}' for it in q_dma for x in it): put([q_dma.pop(0)])
            a.vmwait(f'x{c}'); a.stamp(f'G_x{c}')
            xread(c)
            if c == 1:
                a('s_barrier')
                for x in reads(0) + reads(1): a(x)
                a('s_waitcnt lgkmcnt(12)')
            elif c == 6:
                put(q_dma); q_dma = []
                a('s_waitcnt lgkmcnt(0)\ns_barrier')
                a.stamp('A_x')
                for x in reads(8) + reads(9): a(x)
                put(w_items(5))
            else:
                a('s_waitcnt lgkmcnt(4)')
            dots(c - 1, side1)
            if c in (1, 2):
                for p_ in range(4 * (c - 1), 4 * c):
                    a('s_waitcnt lgkmcnt(4)' if p_ < 7 else 's_waitcnt lgkmcnt(0)')
                    rd = reads(p_ + 2) if p_ + 2 < 8 else []
                    M = mlist(p_)
                    for k_, m_ in enumerate(M):
                        a(m_)
                        if k_ >= len(M) - 2:
                            for y in (rd[:2] if k_ == len(M) - 2 else rd[2:]): a(y)
                        side1(1)
        dots(6, lambda: None)
        q2 = w_items(6) + dmaq_items()
        ex = [f'v_add_f32 v{sm[0]}, v{sm[0]}, v{sm[1]}', f'v_add_f32 v{sq[0]}, v{sq[0]}, v{sq[1]}'] + hs(sm[0], t[3]) + hs(sq[0], t[4]) + [
              f'v_mul_f32 v{mu}, {fx(1.0/448)}, v{sm[0]}', f'v_mul_f32 v{t[3]}, {fx(1.0/448)}, v{sq[0]}',
              f'v_fma_f32 v{t[3]}, -v{mu}, v{mu}, v{t[3]}', f'v_max_f32 v{t[3]}, 0, v{t[3]}', f'v_add_f32 v{t[3]}, {fx(1e-5)}, v{t[3]}',
              f'v_rsq_f32 v{rs}, v{t[3]}', f'v_lshlrev_b32 v{t[4]}, 2, v{n31}',
              f's_lshl_b32 s{T2}, s{S_W}, 9', f's_add_u32 s{T2}, s{T2}, {PRV}',
              f'v_add_u32 v{PA}, s{T2}, v{t[4]}', f'v_lshlrev_b32 v{PB}, 4, v{hf}', f'v_add_u32 v{PB}, s{T2}, v{PB}',
              f's_mul_i32 s{T2}, s{S_W}, 384', f's_add_u32 s{T2}, s{T2}, {CSP}', f'v_add_u32 v{CA}, s{T2}, v{t[4]}',
              f'v_mul_u32_u24 v{CR}, 768, v{hf}', f'v_add_u32 v{CR}, v{CR}, v{t[4]}', f'v_add_u32 v{CR}, {CSP}, v{CR}',
              f'v_mul_f32 v{rq}, {fx(28**-0.5 * math.log2(math.e))}, v{rs}']
        for p_ in range(8, 28):
            if p_ == 10:
                a.vmwait('w4', lgkm=0); a('s_barrier'); a.stamp('G_w4')
            elif p_ == 18:
                while any(isinstance(x, tuple) and x[0] == 'vm' and x[2] == 'w6' for it in q2 for x in it): put([q2.pop(0)])
                a.vmwait('w6', lgkm=0); a('s_barrier'); a.stamp('G_w6')
                for n in range(4): a(f'v_subrev_u32 v{aw[n]}, {WR}, v{aw[n]}\nv_subrev_u32 v{ab[n]}, {WR}, v{ab[n]}')
            elif p_ <= 22: a('s_waitcnt lgkmcnt(4)')
            elif p_ == 23: pass
            rd = reads(p_ + 2) if p_ + 2 < 28 and p_ < 21 else []
            if p_ == 21: rd = reads(23) + reads(24)
            M = mlist(p_)
            if p_ == 22:
                assert not ex
                ex = [f'ds_write_b32 v{CA}, v{CS[0]} offset:128', f'ds_write_b32 v{CA}, v{CS[1]} offset:256']
                if typ == 1: ex += [f'ds_write_b32 v{PA}, v{mu} offset:256', f'ds_write_b32 v{PA}, v{rs} offset:384']
                ex += reads(25) + ['s_waitcnt lgkmcnt(0)', 's_barrier'] + reads(26) + reads(27)
                for j in (1, 2): ex += [f'ds_read_b32 v{cs[j]}, v{CR} offset:{j*128}', f'ds_read_b32 v{t[3+j]}, v{CR} offset:{384 + j*128}']
                if typ == 1:
                    for q in range(4): ex += [f'ds_read_b128 {vr(T16+4*q,4)}, v{PB} offset:{256 + 32*q}', f'ds_read_b128 {vr(U16+4*q,4)}, v{PB} offset:{384 + 32*q}']
                    ex += ['s_waitcnt lgkmcnt(8)']
                else: ex += ['s_waitcnt lgkmcnt(0)']
                tail = [f'v_add_f32 v{cs[j]}, v{cs[j]}, v{t[3+j]}' for j in (1, 2)] + hs(cs[1], t[3]) + hs(cs[2], t[4])
                if typ == 0:
                    tail += [f'ds_write_b32 v{PA}, v{cs[1]}', f'ds_write_b32 v{PA}, v{cs[2]} offset:128']
                    tail += [f'ds_read_b128 {vr(T16+4*q,4)}, v{PB} offset:{32*q}' for q in range(4)]
                    tail += [f'ds_read_b128 {vr(U16+4*q,4)}, v{PB} offset:{128 + 32*q}' for q in range(4)]
                    tail += [f'v_cmp_lt_u32 vcc, 31, v{V_LANE}']
                else:
                    tail += [f'v_cmp_eq_u32 vcc, 28, v{n31}', f'v_mov_b32 v{t[7]}, s{S_ONES}', f'v_cndmask_b32 v{t[7]}, 0, v{t[7]}, vcc', f'v_cmp_lt_u32 vcc, 27, v{n31}']
                tail += [f's_lshl_b32 s{T0}, s{S_TB}, 2', f's_add_u32 s{T0}, s{T0}, s{S_W}', f's_and_b32 s{T1}, s{S_H}, 14', f's_lshl_b32 s{T1}, s{T1}, 6',
                         f's_add_u32 s{T0}, s{T0}, s{T1}', f's_lshl_b32 s{T0}, s{T0}, 12', f's_add_u32 s{T1}, s{T0}, {64*4096}']
            if p_ == 26:
                for x in ex: a(x)
                ex = tail
            for k_, m_ in enumerate(M):
                a(m_)
                if k_ >= len(M) - 2:
                    h_ = (len(rd) + 1) // 2
                    for y in (rd[:h_] if k_ == len(M) - 2 else rd[h_:]): a(y)
                if p_ < 22:
                    for x in ex[:3]: a(x)
                    ex = ex[3:]
                    if q2 and k_ == len(M) - 1 and (len(q2) > 7 or p_ >= opt('wq0', 10)): put([q2.pop(0)])
                else:
                    lim = {22: 4, 23: 4, 24: 100, 25: 100, 26: 8, 27: 8}[p_]
                    if p_ in (24, 25):
                        lim = 6
                    for x in ex[:lim]: a(x)
                    ex = ex[lim:]
        for x in ex: a(x)
        assert not q2
        a.stamp('A_kvloop')
        NEG1 = 'op_sel_hi:[1,0,1] neg_lo:[0,1,0] neg_hi:[0,1,0]'
        for j in range(2):
            A_ = ACC[j]; P_ = WF[j][0]
            if typ == 0:
                a(f's_waitcnt lgkmcnt({4*(1-j)})')
                C_ = (T16, U16)[j]
                for r in range(0, 16, 2): a(f'v_pk_fma_f32 {vr(A_+r,2)}, {vr(C_+r,2)}, {vr(mu,2)}, {vr(A_+r,2)} {NEG1}')
                for r in range(0, 16, 2): a(f'v_pk_mul_f32 {vr(A_+r,2)}, {vr(A_+r,2)}, {vr(rs,2)} op_sel_hi:[1,0]')
                for i in range(8): a(f'v_cvt_pk_bf16_f32 v{P_+i}, v{A_+2*i}, v{A_+2*i+1}')
                if j == 0: a(f'v_mov_b32 v{t[3]}, s{S_ONES}\nv_mov_b32 v{t[4]}, 0x3f80')
                a(f'v_cndmask_b32 v{P_+6}, v{P_+6}, v{t[3]}, vcc\nv_cndmask_b32 v{P_+7}, v{P_+7}, v{t[4]}, vcc')
            else:
                if j == 0: a('s_waitcnt lgkmcnt(0)')
                for r in range(0, 16, 2): a(f'v_pk_fma_f32 {vr(A_+r,2)}, {vr(T16+r,2)}, {vr(cs[1+j],2)}, {vr(A_+r,2)} {NEG1}')
                for r in range(0, 16, 2): a(f'v_pk_mul_f32 {vr(A_+r,2)}, {vr(A_+r,2)}, {vr(U16+r,2)}')
                for i in range(8): a(f'v_cvt_pk_bf16_f32 v{P_+i}, v{A_+2*i}, v{A_+2*i+1}')
                for i in range(8): a(f'v_cndmask_b32 v{P_+i}, v{P_+i}, v{t[7]}, vcc')
            for u in range(2):
                a.vmem(f'buffer_store_dwordx4 {vr(P_+4*u,4)}, v{V_OFF}, {sr4(SRD_WS)}, s{(T0, T1)[j]} offen offset:{2048*typ + 1024*u} sc1', 'stA')
        if typ == 0: a('s_branch LAQ')
    a.label('LAQ')
    (a.stamp('A_kvst'), a.stamp('R_A_kvstc'), a.stamp('R_A_kvstr', True))
    aq = aw
    for n in range(4):
        a(f'''
        s_add_u32 s{T0}, s{S_W}, {n}
        s_and_b32 s{T0}, s{T0}, 3
        s_lshl_b32 s{T0}, s{T0}, 10
        s_add_u32 s{T0}, s{T0}, {WQ}
        v_add_u32 v{aq[n]}, s{T0}, v{AQ}
        ''')
    a(f'''
    s_lshr_b32 s{T1}, s{S_H}, 1
    s_lshl_b32 s{T1}, s{T1}, 2
    s_add_u32 s{T1}, s{T1}, s{S_W}
    s_lshl_b32 s{T1}, s{T1}, 12
    s_add_u32 s{T5}, s{T1}, {FL_A}
    s_and_b32 s{T1}, s{S_H}, 1
    s_lshl_b32 s{T1}, s{T1}, 4
    s_add_u32 s{T1}, s{T1}, s{S_TB}
    s_lshl_b32 s{T1}, s{T1}, 7
    s_add_u32 s{T1}, s{T5}, s{T1}
    ''')
    def publish():
        a.vmwait('stA'); flag_store(a, T1, t[3]); a.stamp('A_flag')
    FAQ = opt('fAq', 7)
    for i, it in enumerate(dmaq_items()):
        if i >= NQE:
            for x in it: a.emit(x)
        if i == FAQ: publish()
    a.vmwait('wq'); a('s_barrier')
    a.stamp('A_wq')
    QB = [ACC[0] + 4*i for i in range(8)]
    NQ = 8
    qs = [4*c for c in range(7)] + [4*c + n for c in range(7) for n in (1, 2, 3)]
    def rdq(p_):
        c, n = divmod(qs[p_], 4)
        return [f'ds_read_b64_tr_b16 {vr(QB[p_ % NQ]+2*u,2)}, v{aq[n]} offset:{c*4096 + u*256}' for u in range(2)]
    AH = 5
    for p_ in range(AH):
        for x in rdq(p_): a(x)
    ex = []
    extra = 0
    for p_ in range(28):
        if p_ < 9 or p_ > 16:
            a(f's_waitcnt lgkmcnt({2 * (min(28, p_ + AH) - p_ - 1)})')
        else:
            a('s_waitcnt lgkmcnt(4)')
        if p_ < 7: a(f'{MFMA} {vr(T16,16)}, {vr(ONE,4)}, {vr(QB[p_ % NQ],4)}, {vr(T16,16) if p_ else 0}')
        a(f'{MFMA} {vr(accQ,16)}, {vr(QB[p_ % NQ],4)}, {vr(X[qs[p_]],4)}, {vr(accQ,16) if p_ else 0}')
        if p_ + AH < 28:
            for x in rdq(p_ + AH): a(x)
        if p_ == 9: a(f'ds_write_b32 v{CA}, v{T16}')
        if p_ == 11: a(f's_waitcnt lgkmcnt(4)\ns_barrier\nds_read_b32 v{cs[0]}, v{CR}\nds_read_b32 v{t[4]}, v{CR} offset:384')
        if p_ == 14:
            for x in [f'v_add_f32 v{cs[0]}, v{cs[0]}, v{t[4]}'] + hs(cs[0], t[4]) + [f'ds_write_b32 v{PA}, v{cs[0]}']: a(x)
        if p_ == 15:
            for q in range(4): a(f'ds_read_b128 {vr(T16+4*q,4)}, v{PB} offset:{32*q}')
        if p_ == opt('fAs', 15) and FAQ > 6: publish()
    a(f'v_cmp_lt_u32 vcc, 31, v{V_LANE}')
    if opt('pollA', 1) == 2: poll_issue(a, T5, V_FL, 32, R['t'][0])
    a('s_waitcnt lgkmcnt(0)')
    NEG1 = 'op_sel_hi:[1,0,1] neg_lo:[0,1,0] neg_hi:[0,1,0]'
    for r in range(0, 16, 2): a(f'v_pk_fma_f32 {vr(accQ+r,2)}, {vr(T16+r,2)}, {vr(mu,2)}, {vr(accQ+r,2)} {NEG1}')
    for r in range(0, 16, 2): a(f'v_pk_mul_f32 {vr(accQ+r,2)}, {vr(accQ+r,2)}, {vr(rq,2)} op_sel_hi:[1,0]')
    for i in range(8): a(f'v_cvt_pk_bf16_f32 v{Q0+i}, v{accQ+2*i}, v{accQ+2*i+1}')
    for i in (6, 7): a(f'v_cndmask_b32_e64 v{Q0+i}, v{Q0+i}, 0, vcc')
    a(f's_cmp_eq_u32 s{S_H}, 0\ns_cselect_b32 s{T0}, 1.0, 0\nv_mul_f32 v{MUX}, s{T0}, v{mu}')
    a.stamp('A_q')

def w13_setup(a, S13, L13):
    a(f'''
    s_cmp_lt_u32 s{S_W}, 2
    s_cselect_b32 s{SRD_B}, s{P_W1}, s{P_W3}
    s_cselect_b32 s{SRD_B+1}, s{P_W1+1}, s{P_W3+1}
    s_mov_b32 s{SRD_B+2}, {W1_BYTES}
    s_mov_b32 s{SRD_B+3}, 0x20000
    s_and_b32 s{T0}, s{S_W}, 1
    s_mul_i32 s{T0}, s{T0}, 7
    s_add_u32 s{T0}, s{T0}, s{S_R14}
    s_sub_u32 s{S_RG}, s{T0}, 14
    s_min_u32 s{S_RG}, s{S_RG}, s{T0}
    s_mul_i32 s{S_RG}, s{S_RG}, {32*3584}
    s_mul_i32 s{S13}, s{S_FS}, 224
    s_mul_i32 s{L13}, s{S_W}, 14336
    ''')

def rg_next():
    return [f's_add_u32 s{S_RG}, s{S_RG}, {32*3584}', f's_sub_u32 s{T0}, s{S_RG}, {14*32*3584}', f's_min_u32 s{S_RG}, s{S_RG}, s{T0}']

def pair_dma(S13, L13, slot, col, i, tag):
    return [f's_add_u32 m0, s{L13}, {slot*PAIR + i*1024}',
            f's_add_u32 s{T0}, s{S13}, s{S_RG}'] + ([f's_add_u32 s{T0}, s{T0}, {16*3584}'] if i & 1 else []) + \
           [('vm', f'buffer_load_dwordx4 v{V_P13}, {sr4(SRD_B)}, s{T0} offen lds', tag)] + (rg_next() if i & 1 else [])

def alloc_b():
    va = VA(4, 204)
    KV = [va(16) for _ in range(3)] + ([WOV] if opt('nkv', 4) == 4 else [])
    Q = [va(8) for _ in range(4)]
    O = [va(16) for _ in range(4)]
    S = [va(16), va(16)]
    P = [va(8), va(8)]
    t = [va() for _ in range(8)]
    v5 = 215 + 8
    return dict(KV=KV, Q=Q, O=O, S=S, P=P, t=t, v5=v5)

def phase_b(a, R, stg):
    KV, Q, O, S, P, t, v5 = (R[k] for k in ('KV', 'Q', 'O', 'S', 'P', 't', 'v5'))
    QX = R['QX']
    S13, L13, SKV, SB = T3, T4, T6, T2
    qa = t[4:8]
    MA = [240, 241, 242, 243]; VKV = 244; VP2 = 245; VX = 246
    a(f'''
    s_lshl_b32 s{SKV}, s{S_H}, 6
    s_add_u32 s{SKV}, s{SKV}, s{S_W}
    s_lshl_b32 s{SKV}, s{SKV}, 12
    v_add_u32 v{VKV}, s{SKV}, v{V_OFF}
    s_lshl_b32 s{SB}, s{S_TB}, 14
    ''')
    if opt('pollA', 1) == 1:
        visit(a, 1)
        W4 = R['S'][1]; RS = R['S'][1] + 4
        for i in range(4):
            for k_ in range(4): a(f'v_accvgpr_read_b32 v{W4+k_}, a{WROW+4*i+k_}')
            a(f'v_mov_b32 v{RS+i}, 0')
            for k_ in range(4): a(f'v_dot2c_f32_bf16 v{RS+i}, s{S_ONES}, v{W4+k_}')
        for m_ in ('row_shr:1', 'row_shr:2', 'row_shr:4', 'row_shr:8'):
            for i in range(4): a(f'v_add_f32_dpp v{RS+i}, v{RS+i}, v{RS+i} {m_} row_mask:0xf bank_mask:0xf bound_ctrl:1')
        for m_ in ('row_bcast:15 row_mask:0xa', 'row_bcast:31 row_mask:0xc'):
            for i in range(4): a(f'v_add_f32_dpp v{RS+i}, v{RS+i}, v{RS+i} {m_} bank_mask:0xf')
        for i in range(4): a(f'v_mul_f32 v{RS+i}, {fx(1/448)}, v{RS+i}')
        a(f's_lshl_b32 s{T0}, s{S_WG}, 4\ns_add_u32 s{T0}, s{T0}, {WS_WB - 63*16}\ns_mov_b32 exec_lo, 0\ns_brev_b32 exec_hi, 1')
        a.vmem(f'buffer_store_dwordx4 {vr(RS,4)}, v{V_OFF}, {sr4(SRD_WS)}, s{T0} offen sc1', 'stW')
        a('s_mov_b64 exec, -1')
        if opt('dlyA', 0): a(f"s_sleep {opt('dlyA', 0)}")
        poll_issue(a, T5, V_FL, 32, t[0])
    a.stamp('B_pre')
    poll_check(a, T5, V_FL, 32, t[0], extra=[220, 221, 222])
    a.stamp('B_poll')
    def kvload(buf):
        return [('vm', f'buffer_load_dwordx4 {vr(KV[buf]+4*j,4)}, v{VKV}, {sr4(SRD_WS)}, s{SB} offen offset:{1024*j} sc1', f'k{buf}' if j < 2 else f'kv{buf}') for j in range(4)] + \
               [f's_add_u32 s{SB}, s{SB}, 0x4000', f's_and_b32 s{SB}, s{SB}, 0x3c000']
    NKV = len(KV)
    NK0 = opt('nk0', 1)
    for b in range(NK0):
        for x in kvload(b): a.emit(x)
    for lq in range(4):
        a(f'''
        s_add_u32 s{T0}, s{S_W}, {lq}
        s_and_b32 s{T0}, s{T0}, 3
        s_lshl_b32 s{T0}, s{T0}, 11
        s_add_u32 s{T0}, s{T0}, {QX}
        v_add_u32 v{qa[lq]}, s{T0}, v{V_OFF}
        ''')
    a(f'ds_write_b128 v{qa[0]}, {vr(Q[0],4)}')
    stg.src_setup(t[1], t[2], t[3])
    w13_setup(a, S13, L13)
    a(f'''
    s_lshl_b32 s{T0}, s{S_E0}, 5
    s_add_u32 s{S13}, s{S13}, s{T0}
    s_and_b32 s{T0}, s{S_W}, 2
    v_and_b32 v{t[1]}, 3, v{V_LANE}
    v_xor_b32 v{t[1]}, s{T0}, v{t[1]}
    v_lshrrev_b32 v{t[2]}, 2, v{V_LANE}
    v_mul_u32_u24 v{t[2]}, 3584, v{t[2]}
    v_lshl_add_u32 v{V_P13}, v{t[1]}, 4, v{t[2]}
    s_lshl_b32 s{T0}, s{T0}, 1
    v_lshrrev_b32 v{t[1]}, 1, v{V_LANE}
    v_xor_b32 v{t[1]}, s{T0}, v{t[1]}
    v_mul_u32_u24 v{t[1]}, 3584, v{t[1]}
    v_and_b32 v{t[2]}, 1, v{V_LANE}
    v_lshl_add_u32 v{v5}, v{t[2]}, 4, v{t[1]}
    v_add_u32 v{VP2}, {16*3584 - 1024}, v{V_P13}
    s_waitcnt lgkmcnt(0)
    s_barrier
    ''')
    for lq in range(4):
        a(f'''
        s_add_u32 s{T0}, s{S_W}, {lq}
        s_and_b32 s{T0}, s{T0}, 3
        s_mul_i32 s{T0}, s{T0}, 12288
        s_add_u32 s{T0}, s{T0}, {SCR}
        v_add_u32 v{MA[lq]}, s{T0}, v{V_OFF}
        ''')
    a(f'''
    s_and_b32 s{SKV}, s{S_W}, 1
    s_lshl_b32 s{T0}, s{S_RB}, 1
    s_add_u32 s{SKV}, s{SKV}, s{T0}
    s_mul_i32 s{SKV}, s{SKV}, {32*896}
    s_lshr_b32 s{T0}, s{S_W}, 1
    s_lshl_b32 s{T0}, s{T0}, 6
    s_add_u32 s{SKV}, s{SKV}, s{T0}
    s_lshl_b32 s{T0}, s{S_CB}, 7
    s_add_u32 s{SKV}, s{SKV}, s{T0}
    v_and_b32 v{VX}, 31, v{V_LANE}
    v_lshrrev_b32 v{t[1]}, 5, v{V_LANE}
    v_mul_u32_u24 v{VX}, 896, v{VX}
    v_lshl_add_u32 v{VX}, v{t[1]}, 4, v{VX}
    ''')
    for lq in range(1, 4): a(f'ds_read_b128 {vr(Q[lq],4)}, v{qa[lq]}')
    spre = []; spre2 = []
    if opt('spre', 1):
        ssrd(a, SRD_WQKV, 784, P_W2, P_WO, W2_BYTES, WO_BYTES, 2048, S_U0, S_U1)
        spre = [[sld(SRD_A, 128*i)] for i in range(opt('spreA', 0), 25)]
        spre2 = [[sld(SRD_WQKV, 128*i)] for i in range(16)]
        if opt('spre0', 0):
            a('s_waitcnt lgkmcnt(0)')
            for _ in range(opt('spre0', 0)): a(spre.pop(0)[0])
    NK1 = opt('nk1', 3)
    for b in range(NK0, NK1):
        for x in kvload(b): a.emit(x)
    s_kv = []
    for T in range(NK1, NKV):
        s_kv += [(opt('kvS', 2) * (6 * (T - NK1) + k_), x) for k_, x in enumerate(kvload(T))]
    for T in range(NKV, 16):
        s_kv += [(16 * (T - NKV + 1) + 3 + opt('kvS', 2) * k_, x) for k_, x in enumerate(kvload(T % NKV))]
    s_w = []; wp = [opt('preP', 76)]
    for g in range(7):
        it = (rg_next() if g else []) + [f's_add_u32 s{T0}, s{S13}, s{S_RG}']
        for sl in range(2):
            it += [f's_add_u32 m0, s{L13}, {sl*PAIR + 2*g*1024 - 64*sl}',
                   ('vm', f'buffer_load_dwordx4 v{V_P13}, {sr4(SRD_B)}, s{T0} offen offset:{64*sl} lds', 'w13'),
                   ('vm', f'buffer_load_dwordx4 v{VP2}, {sr4(SRD_B)}, s{T0} offen offset:{1024 + 64*sl} lds', 'w13')]
        it += [('vm', f'buffer_load_dwordx4 {vr(RAW5+4*g,4,"a")}, v{v5}, {sr4(SRD_B)}, s{T0} offen offset:128', 'w13')]
        for x in it:
            if isinstance(x, tuple):
                s_w.append((wp[0], x)); wp[0] += opt('preS', 5)
            else: s_w.append((wp[0] - 4, x))
    s_s = [(4 + opt('sS', 4) * k_, x[0]) for k_, x in enumerate(spre + spre2)]
    s_x = [(opt('xrP', 40), ('vm', f'buffer_load_dwordx4 {vr(XRES,4)}, v{VX}, {sr4(SRD_X)}, s{SKV} offen', 'xr')),
           (opt('xrP', 40) + 6, ('vm', f'buffer_load_dwordx4 {vr(XRES+4,4)}, v{VX}, {sr4(SRD_X)}, s{SKV} offen offset:32', 'xr'))]
    if opt('vpre', 1):
        def vt(D, n, reg):
            a(xm(n)); a.vmem(f'buffer_load_dword a{reg}, v{V_FL}, {sr4(D)}, 0 offen', 'vt'); a('s_mov_b64 exec, -1')
        s_s = [(opt('vpre', 1), ('call', lambda: vt(SRD_A, 25, 7))), (opt('vpre2', 40), ('call', lambda: vt(SRD_WQKV, 16, 8)))]
    if opt('l2w', 0):
        def l2(i):
            if i == 0:
                srd(a, SRD_A, P_W2, W2_BYTES)
                a(f's_lshl_b32 s{S_U0}, s{S_J}, 2\ns_add_u32 s{S_U0}, s{S_U0}, s{S_W}\ns_lshl_b32 s{S_U0}, s{S_U0}, 13')
            if i == 1: a(f's_add_u32 s{S_U0}, s{S_U0}, {128*8192}')
            if i == 2:
                srd(a, SRD_A, P_WO, WO_BYTES)
                a(f's_lshl_b32 s{S_U0}, s{S_J}, 2\ns_add_u32 s{S_U0}, s{S_U0}, s{S_W}\ns_xor_b32 s{S_U0}, s{S_U0}, 127\ns_lshl_b32 s{S_U0}, s{S_U0}, 13')
            a.vmem(f'buffer_load_dword a{9+i}, v{V_FL}, {sr4(SRD_A)}, s{S_U0} offen', 'vt')
        s_s += [(opt('l2w', 0) + opt('l2s', 16) * i, ('call', (lambda i=i: l2(i)))) for i in range(3)]
    if opt('noW', 0): s_w = []
    if opt('noS', 0): s_s = []
    if opt('noKV', 0): s_kv = []
    VW = 217; VWP = 218; VW2 = 219
    a(f'v_lshrrev_b32 v{VW2}, 5, v{V_LANE}\nv_lshlrev_b32 v{VW2}, 4, v{VW2}')
    def pubW():
        a(f's_lshl_b32 s{T1}, s{S_WG}, 7\ns_add_u32 s{T1}, s{T1}, {FL_W}'); a.vmwait('stW'); flag_store(a, T1, VW)
    def pollW():
        a(f's_mul_i32 s{T1}, s{S_H}, {7*128}\ns_add_u32 s{T1}, s{T1}, {FL_W}'); poll_issue(a, T1, V_FL, 7, VWP)
    WB_ = KV[1]; assert NKV == 4
    s_m = [(opt('pubW', 21), ('call', pubW)), (opt('pollW', 201), ('call', pollW)), (229, ('call', lambda: poll_check(a, T1, V_FL, 7, VWP))),
           (230, f's_mul_i32 s{T1}, s{S_H}, 112'), (231, f's_add_u32 s{T1}, s{T1}, {WS_WB}')]
    s_m += [(232 + 2*q_, ('vm', f'buffer_load_dwordx4 {vr(WB_+4*q_,4)}, v{VW2}, {sr4(SRD_WS)}, s{T1} offen offset:{32*q_} sc1', 'wb')) for q_ in range(4)]
    s_m += [(241 + k_, x) for k_, x in enumerate([f's_lshl_b32 s{T2}, s{S_TB}, 2', f's_add_u32 s{T2}, s{T2}, s{S_W}', f's_lshl_b32 s{T2}, s{T2}, 4', f's_add_u32 s{T2}, s{T2}, s{S_H}',
                                                  f's_lshl_b32 s{T5}, s{T2}, 7', f's_add_u32 s{T5}, s{T5}, {FL_B}', f's_lshl_b32 s{T2}, s{T2}, 11', f's_add_u32 s{T6}, s{T2}, {WS_O}'])]
    s_p = []
    if opt('prew2', 0):
        def pw():
            a(f'''
            s_lshl_b32 s{S_SPIN}, s{S_TB}, 2
            s_add_u32 s{S_SPIN}, s{S_SPIN}, s{S_W}
            s_lshl_b32 s{S_SPIN}, s{S_SPIN}, 4
            s_add_u32 s{S_SPIN}, s{S_SPIN}, s{S_H}
            s_lshl_b32 s{S_SPIN}, s{S_SPIN}, 11
            s_add_u32 s{S_SPIN}, s{S_SPIN}, {WS_O}
            s_lshl_b32 s{S_SPIN+1}, s{S_RB}, 1
            s_and_b32 s{S_U1}, s{S_W}, 1
            s_add_u32 s{S_SPIN+1}, s{S_SPIN+1}, s{S_U1}
            s_mul_i32 s{S_SPIN+1}, s{S_SPIN+1}, 7
            s_add_u32 s{S_SPIN+1}, s{S_SPIN+1}, s{S_CB}
            s_lshl_b32 s{S_SPIN+1}, s{S_SPIN+1}, 1
            s_lshr_b32 s{S_U1}, s{S_W}, 1
            s_add_u32 s{S_SPIN+1}, s{S_SPIN+1}, s{S_U1}
            s_lshl_b32 s{S_SPIN+1}, s{S_SPIN+1}, 11
            s_add_u32 s{S_SPIN+1}, s{S_SPIN+1}, {WS_H}
            s_cmp_ge_u32 s{S_J}, 28
            s_cselect_b32 s{S_SPIN+1}, 0x40000000, s{S_SPIN+1}
            ''')
        P0 = opt('prew2', 0)
        s_p = [(P0, ('call', pw))] + [(P0 + 3 + 5*i, ('vm', f'buffer_store_dwordx4 {vr(Q[0],4)}, v{V_OFF}, {sr4(SRD_WS)}, s{S_SPIN + (i >> 1)} offen offset:{1024*(i&1)} sc1', 'pw')) for i in range(4)]
    streams = [s_kv, s_w, s_x, s_m, s_p, s_s]
    a.vmwait('k0')
    a(f'{MFMA} {vr(S[0],16)}, {vr(KV[0],4)}, {vr(Q[0],4)}, 0')
    a(f'{MFMA} {vr(S[0],16)}, {vr(KV[0]+4,4)}, {vr(Q[0]+4,4)}, {vr(S[0],16)}')
    a(f'v_cmp_lt_u32 vcc, 31, v{V_LANE}')
    a(f'v_max3_f32 v{t[0]}, v{S[0]}, v{S[0]+1}, v{S[0]+2}\nv_max3_f32 v{t[1]}, v{S[0]+3}, v{S[0]+4}, v{S[0]+5}')
    for r in range(6, 14, 4):
        a(f'v_max3_f32 v{t[0]}, v{t[0]}, v{S[0]+r}, v{S[0]+r+1}\nv_max3_f32 v{t[1]}, v{t[1]}, v{S[0]+r+2}, v{S[0]+r+3}')
    a(f'''
    v_max3_f32 v{t[0]}, v{t[0]}, v{S[0]+14}, v{S[0]+15}
    v_max_f32 v{t[0]}, v{t[0]}, v{t[1]}
    v_mov_b32 v{t[1]}, v{t[0]}
    v_permlane32_swap_b32 v{t[0]}, v{t[1]}
    v_max_f32 v{t[0]}, v{t[0]}, v{t[1]}
    v_cvt_pk_bf16_f32 v{t[0]}, -v{t[0]}, 0
    v_cndmask_b32 v{Q[0]+6}, v{Q[0]+6}, v{t[0]}, vcc
    ds_write_b128 v{qa[0]}, {vr(Q[0]+4,4)} offset:1024
    v_lshlrev_b32 v{t[2]}, 16, v{t[0]}
    ''')
    assert t[2] % 2 == 0
    for r in range(0, 16, 2): a(f'v_pk_add_f32 {vr(S[0]+r,2)}, {vr(S[0]+r,2)}, {vr(t[2],2)} op_sel_hi:[1,0]')
    if not opt('xin', 1):
        a('s_waitcnt lgkmcnt(0)\ns_barrier')
        for lq in range(1, 4): a(f'ds_read_b128 {vr(Q[lq]+4,4)}, v{qa[lq]} offset:1024')
    if opt('stag', 0):
        Ls = a.newlabel('stag')
        for w in range(1, 4):
            a(f's_cmp_lt_u32 s{S_W}, {w}\ns_cbranch_scc1 {Ls}')
            for _ in range(opt('stag', 0)): a('s_nop 15')
        a.label(Ls)
    (a.stamp('B_first'), a.stamp('R_B_firstc'), a.stamp('R_B_firstr', True))
    def slot(T, q):
        cb = q & 1; nb = cb ^ 1
        kvn, nq = (T % NKV, q + 1) if q < 3 else ((T + 1) % NKV, 0)
        kvp, pq = (T % NKV, q - 1) if q else ((T - 1) % NKV, 3)
        no_qk = (T == 15 and q == 3); no_pv = (T == 0 and q == 0); first = (T == 0 or (T == 1 and q == 0))
        M = [None if no_qk else f'{MFMA} {vr(S[nb],16)}, {vr(KV[kvn],4)}, {vr(Q[nq],4)}, 0',
             None if no_qk else f'{MFMA} {vr(S[nb],16)}, {vr(KV[kvn]+4,4)}, {vr(Q[nq]+4,4)}, {vr(S[nb],16)}',
             None if no_pv else f'{MFMA} {vr(O[pq],16)}, {vr(KV[kvp]+8,4)}, {vr(P[nb],4)}, {0 if first else vr(O[pq],16)}',
             None if no_pv else f'{MFMA} {vr(O[pq],16)}, {vr(KV[kvp]+12,4)}, {vr(P[nb]+4,4)}, {vr(O[pq],16)}']
        e = lambda r: (f'v_exp_f32 v{S[cb]+r}, v{S[cb]+r}' if not opt('noexp', 0) else f'v_mov_b32 v{S[cb]+r}, v{S[cb]+r}')
        if opt('nopv', 0): M[2] = M[3] = None
        c = lambda j: f'v_cvt_pk_bf16_f32 v{P[cb]+j}, v{S[cb]+2*j}, v{S[cb]+2*j+1}'
        seq = [M[0], e(0), e(1), e(2), c(0), e(3), e(4), M[1], c(1), e(5), e(6), c(2), e(7), e(8),
               M[2], c(3), e(9), e(10), c(4), e(11), e(12), M[3], c(5), e(13), e(14), e(15), c(6), c(7)]
        if T == 0 and q == 0:
            if opt('xin', 1):
                seq = [M[0], e(0), e(1), e(2), c(0), e(3), 's_waitcnt lgkmcnt(0)', 's_barrier'] + \
                      [f'ds_read_b128 {vr(Q[lq]+4,4)}, v{qa[lq]} offset:1024' for lq in range(1, 4)] + \
                      [None, e(4), c(1), e(5), e(6), c(2), e(7), e(8), c(3), None, 's_waitcnt lgkmcnt(2)', M[1], e(9), e(10), c(4), e(11), e(12),
                       c(5), e(13), e(14), e(15), c(6), 's_waitcnt lgkmcnt(0)', c(7), 's_nop 3']
            else: seq.insert(7, 's_waitcnt lgkmcnt(0)')
        for k_, x in enumerate(seq):
            if x is not None: a(x)
            if x is None or x.startswith('v_mfma'):
                mi = pos[0] & 3
                if mi == 3 and q == 2 and T < 15: a.vmwait(f'kv{(T+1)%NKV}')
                elif mi == 3 and q == 0 and T == 0: a.vmwait('kv0')
                else:
                    for st_ in streams:
                        if st_ and st_[0][0] <= pos[0]:
                            a.emit(st_.pop(0)[1]); break
                pos[0] += 1
    pos = [0]
    for T in range(16):
        for q in range(4): slot(T, q)
    assert not any(streams), [len(x) for x in streams]
    a(f'{MFMA} {vr(O[3],16)}, {vr(KV[15 % NKV]+8,4)}, {vr(P[1],4)}, {vr(O[3],16)}')
    a(f'{MFMA} {vr(O[3],16)}, {vr(KV[15 % NKV]+12,4)}, {vr(P[1]+4,4)}, {vr(O[3],16)}')
    (a.stamp('B_loop'), a.stamp('R_B_loopc'), a.stamp('R_B_loopr', True))
    stg.queue(opt('hgM', 4))
    for lq in range(1, 4):
        for j in range(4):
            a(f'ds_write_b128 v{MA[lq]}, {vr(O[lq]+4*j,4)} offset:{(lq-1)*4096 + j*1024}'); stg.one()
    a.vmwait('wb')
    a('s_mov_b32 exec_lo, 0')
    for r in range(12, 16): a(f'v_mov_b32 v{WB_+r}, 0')
    a(f'''
    s_mov_b64 exec, -1
    v_mov_b32 v{t[4]}, {fx(2.0 ** (64 if not opt('forcefb', 0) else -60))}
    v_mov_b32 v{t[5]}, {fx(2.0 ** -64)}
    s_waitcnt lgkmcnt(0)
    s_barrier
    ''')
    for lq in range(1, 4):
        for j in range(4): a(f'ds_read_b128 {vr(O[lq]+4*j,4)}, v{MA[0]} offset:{(lq-1)*4096 + j*1024}')
    stg.flush()
    for lq in range(1, 4):
        a(f's_waitcnt lgkmcnt({4*(3-lq)})')
        for r in range(0, 16, 2): a(f'v_pk_add_f32 {vr(O[0]+r,2)}, {vr(O[0]+r,2)}, {vr(O[lq]+r,2)}')
    a(f'''
    v_mov_b32 v{t[0]}, v{O[0]+12}
    v_mov_b32 v{t[1]}, v{O[0]+12}
    v_permlane32_swap_b32 v{t[0]}, v{t[1]}
    v_med3_f32 v{t[3]}, v{t[1]}, v{t[4]}, v{t[5]}
    v_cmp_neq_f32 vcc, v{t[3]}, v{t[1]}
    v_rcp_f32 v{t[2]}, v{t[1]}
    s_cbranch_vccnz Lfb
    ''')
    a.label('Lfb_ret')
    a(f'v_cmp_lt_u32 vcc, 31, v{V_LANE}')
    for r in range(0, 16, 2): a(f'v_pk_mul_f32 {vr(O[0]+r,2)}, {vr(O[0]+r,2)}, {vr(t[2],2)} op_sel_hi:[1,0]')
    for j in range(8): a(f'v_cvt_pk_bf16_f32 v{P[0]+j}, v{O[0]+2*j}, v{O[0]+2*j+1}')
    for j in (6, 7): a(f'v_cndmask_b32_e64 v{P[0]+j}, v{P[0]+j}, 0, vcc')
    for j in range(2):
        a.vmem(f'buffer_store_dwordx4 {vr(P[0]+4*j,4)}, v{V_OFF}, {sr4(SRD_WS)}, s{T6} offen offset:{1024*j} sc1', 'stB')
    a(f'v_pk_mul_f32 {vr(t[0],2)}, {vr(O[0],2)}, {vr(WB_,2)}\nv_pk_mul_f32 {vr(t[2],2)}, {vr(O[0]+2,2)}, {vr(WB_+2,2)}')
    for r in range(4, 16, 2): a(f'v_pk_fma_f32 {vr(t[r & 2],2)}, {vr(O[0]+r,2)}, {vr(WB_+r,2)}, {vr(t[r & 2],2)}')
    a(f'v_pk_add_f32 {vr(t[0],2)}, {vr(t[0],2)}, {vr(t[2],2)}\nv_add_f32 v{t[0]}, v{t[0]}, v{t[1]}')
    halfsum(a, t[0], t[1])
    a(f'v_add_f32 v{t[0]}, v{t[0]}, v{MUX}\nv_lshlrev_b32 v{t[1]}, 2, v{V_LANE}\ns_add_u32 s{T0}, s{T5}, {WS_MH - FL_B + (1 << 32)}\n' + xm(32))
    a.vmem(f'buffer_store_dword v{t[0]}, v{t[1]}, {sr4(SRD_WS)}, s{T0} offen sc1', 'stB')
    a('s_mov_b64 exec, -1')
    a.stamp('B_st'); a.stamp('H_st')


def fallback(a, R):
    KV, Q, O, S, P, t = R['KV'][0], R['Q'][0], R['O'][0], R['S'][0], R['P'][0], R['t']
    a.label('Lfb')
    a(f"""
    v_cmp_lt_u32 vcc, 31, v{V_LANE}
    s_lshl_b32 s{T1}, s{S_H}, 18
    s_mov_b32 s{T2}, 64
    v_mov_b32 v{t[0]}, 0xff7fffff
    v_cndmask_b32_e64 v{Q+6}, v{Q+6}, 0, vcc
    v_cndmask_b32_e64 v{Q+7}, v{Q+7}, 0, vcc
    """)
    a.label('Lfb1')
    a(f"""
    buffer_load_dwordx4 {vr(KV,4)}, v{V_OFF}, {sr4(SRD_WS)}, s{T1} offen sc1
    buffer_load_dwordx4 {vr(KV+4,4)}, v{V_OFF}, {sr4(SRD_WS)}, s{T1} offen offset:1024 sc1
    s_add_u32 s{T1}, s{T1}, 4096
    s_waitcnt vmcnt(0)
    {MFMA} {vr(S,16)}, {vr(KV,4)}, {vr(Q,4)}, 0
    {MFMA} {vr(S,16)}, {vr(KV+4,4)}, {vr(Q+4,4)}, {vr(S,16)}
    """)
    for r in range(0, 16, 2): a(f'v_max3_f32 v{t[0]}, v{t[0]}, v{S+r}, v{S+r+1}')
    a(f"""
    s_sub_u32 s{T2}, s{T2}, 1
    s_cmp_lg_u32 s{T2}, 0
    s_cbranch_scc1 Lfb1
    v_mov_b32 v{t[1]}, v{t[0]}
    v_permlane32_swap_b32 v{t[0]}, v{t[1]}
    v_max_f32 v{t[0]}, v{t[0]}, v{t[1]}
    v_cvt_pk_bf16_f32 v{t[1]}, -v{t[0]}, 0
    v_lshlrev_b32 v{t[2]}, 16, v{t[1]}
    v_sub_f32 v{t[0]}, -v{t[0]}, v{t[2]}
    v_cvt_pk_bf16_f32 v{t[2]}, v{t[0]}, 0
    v_lshlrev_b32 v{t[2]}, 16, v{t[2]}
    v_sub_f32 v{t[0]}, v{t[0]}, v{t[2]}
    v_or_b32 v{t[1]}, v{t[1]}, v{t[2]}
    v_cvt_pk_bf16_f32 v{t[0]}, v{t[0]}, 0
    v_cndmask_b32 v{Q+6}, v{Q+6}, v{t[1]}, vcc
    v_cndmask_b32 v{Q+7}, v{Q+7}, v{t[0]}, vcc
    s_lshl_b32 s{T1}, s{S_H}, 18
    s_mov_b32 s{T2}, 64
    """)
    for r in range(16): a(f'v_mov_b32 v{O+r}, 0')
    a.label('Lfb2')
    for j in range(4): a(f'buffer_load_dwordx4 {vr(KV+4*j,4)}, v{V_OFF}, {sr4(SRD_WS)}, s{T1} offen offset:{1024*j} sc1')
    a(f"""
    s_add_u32 s{T1}, s{T1}, 4096
    s_waitcnt vmcnt(0)
    {MFMA} {vr(S,16)}, {vr(KV,4)}, {vr(Q,4)}, 0
    {MFMA} {vr(S,16)}, {vr(KV+4,4)}, {vr(Q+4,4)}, {vr(S,16)}
    """)
    for r in range(16): a(f'v_exp_f32 v{S+r}, v{S+r}')
    for j in range(8): a(f'v_cvt_pk_bf16_f32 v{P+j}, v{S+2*j}, v{S+2*j+1}')
    a(f"""
    {MFMA} {vr(O,16)}, {vr(KV+8,4)}, {vr(P,4)}, {vr(O,16)}
    {MFMA} {vr(O,16)}, {vr(KV+12,4)}, {vr(P+4,4)}, {vr(O,16)}
    s_sub_u32 s{T2}, s{T2}, 1
    s_cmp_lg_u32 s{T2}, 0
    s_nop 7
    s_cbranch_scc1 Lfb2
    s_nop 7
    v_mov_b32 v{t[0]}, v{O+12}
    v_mov_b32 v{t[1]}, v{O+12}
    v_permlane32_swap_b32 v{t[0]}, v{t[1]}
    v_rcp_f32 v{t[2]}, v{t[1]}
    s_branch Lfb_ret
    """)

class Stager:
    def __init__(self, a): self.a = a; self.nl = 0; self.nt = 0; self.q = []
    def src_setup(self, t0, t1, t2):
        self.a(f'''
        v_lshrrev_b32 v{t0}, 3, v{V_LANE}
        v_lshrrev_b32 v{t1}, 1, v{V_LANE}
        v_and_b32 v{t1}, 4, v{t1}
        v_and_b32 v{t2}, 7, v{V_LANE}
        v_xor_b32 v{t1}, v{t1}, v{t2}
        v_mul_u32_u24 v{t0}, 1792, v{t0}
        v_lshl_add_u32 v{V_SRC}, v{t1}, 4, v{t0}
        ''')
    def setup(self, t0, t1, t2, vw):
        a = self.a; self.vw = vw
        a(f'''
        v_lshrrev_b32 v{t0}, 5, v{V_LANE}
        v_bfe_u32 v{t1}, v{V_LANE}, 2, 2
        v_lshl_add_u32 v{t0}, v{t0}, 2, v{t1}
        v_lshlrev_b32 v{t0}, 7, v{t0}
        v_bfe_u32 v{t1}, v{V_LANE}, 4, 1
        v_lshl_add_u32 v{t0}, v{t1}, 5, v{t0}
        v_and_b32 v{t1}, 3, v{V_LANE}
        v_lshl_add_u32 v{t0}, v{t1}, 3, v{t0}
        v_bfe_u32 v{t1}, v{V_LANE}, 3, 1
        s_lshr_b32 s{T0}, s{S_W}, 1
        v_xor_b32 v{t1}, s{T0}, v{t1}
        v_lshl_add_u32 v{t0}, v{t1}, 6, v{t0}
        s_lshl_b32 s{T0}, s{S_W}, 12
        s_add_u32 s{T0}, s{T0}, {SCR}
        v_add_u32 v{V_RD}, s{T0}, v{t0}
        v_xor_b32 v{V_RD+1}, 64, v{V_RD}
        v_lshrrev_b32 v{t0}, 3, v{V_LANE}
        v_lshlrev_b32 v{t0}, 7, v{t0}
        v_add3_u32 v{vw}, s{T0}, v{V_OFF}, v{t0}
        ''')
    def target_items(self, which):
        p, nb = (P_WO, WO_BYTES) if which == 'wo' else (P_W2, W2_BYTES)
        return [f's_mov_b32 s{SRD_A}, s{p}', f's_mov_b32 s{SRD_A+1}, s{p+1}', f's_mov_b32 s{SRD_A+2}, {nb}', f's_mov_b32 s{SRD_A+3}, 0x20000',
                f's_mul_i32 s{S_U0}, s{S_W}, {(112 if which == "wo" else 448)*896}', f's_lshl_b32 s{S_U1}, s{S_CB}, 7', f's_add_u32 s{S_U0}, s{S_U0}, s{S_U1}']
    @staticmethod
    def base(g):
        if g < 2: return ('a', 224 + 16 * g)
        if g < 4: return ('v', WOV + 16 * (g - 2))
        return ('a', 16 * (g - 4))
    @staticmethod
    def dest(g, s_, lc):
        p, b = Stager.base(g); return p, b + (s_ * 2 + lc) * 4
    def load_items(self):
        g = self.nl; self.nl += 1
        pre = self.target_items('wo') if g == 0 else (self.target_items('w2') if g == 4 else [])
        row0 = 28 * g if g < 4 else 32 * (g - 4)
        p, b = self.base(g)
        out = [pre] if pre else []
        for h_ in range(2):
            out.append([f's_add_u32 s{S_U1}, s{S_U0}, {(row0 + 16*h_)*896}'] +
                       [('vm', f'buffer_load_dwordx4 {vr(b+8*h_+4*i,4,p)}, v{V_SRC}, {sr4(SRD_A)}, s{S_U1} offen offset:{896*i}', f'hg{g}') for i in range(2)])
        return out
    def load(self):
        self.flush()
        for it in self.load_items():
            for x in it: self.a.emit(x)
    def queue(self, upto):
        while self.nl < upto:
            for it in self.load_items(): self.q += it
    def one(self):
        while self.q:
            x = self.q.pop(0); self.a.emit(x)
            if isinstance(x, tuple): break
    def flush(self):
        while self.q: self.one()
    def wr(self, u):
        a = self.a; g, s_ = divmod(u, 2); p, b = self.base(g)
        for i in range(2): a(f'ds_write_b128 v{self.vw}, {vr(b+8*s_+4*i,4,p)} offset:{2048*s_ + 128*i}')
    def rd(self, u):
        a = self.a; g, s_ = divmod(u, 2); p, b = self.base(g)
        for lc in range(2):
            for uu in range(2):
                a(f'ds_read_b64_tr_b16 {vr(b+(s_*2+lc)*4+2*uu,2,p)}, v{V_RD+lc} offset:{s_*2048 + uu*1024}')
    def trans(self):
        a = self.a; g = self.nt; self.nt += 1
        a.stamp(f'{"H" if g < 11 else "I"}_pre{g}')
        a.vmwait(f'hg{g}')
        if g in (0, 6): a.stamp(f'H_got{g}')
        for u in (2*g, 2*g + 1): self.wr(u)
        for u in (2*g, 2*g + 1): self.rd(u)
    def close(self): pass

def red_addr(a, t):
    for l in range(4):
        a(f's_xor_b32 s{T0}, s{S_W}, {l}\ns_mul_i32 s{T0}, s{T0}, 12288\ns_add_u32 s{T0}, s{T0}, {SCR}\nv_add_u32 v{t[l]}, s{T0}, v{V_OFF}')
def red_write(a, ACC, t, l, side=lambda: None):
    for j in range(4):
        a(f'ds_write_b128 v{t[l]}, {vr(ACC[l]+4*j,4)} offset:{(l-1)*4096 + j*1024}'); side()
def red_read(a, ACC, t, side=lambda: None):
    a('s_waitcnt lgkmcnt(0)\ns_barrier')
    for l in range(1, 4):
        for j in range(4): a(f'ds_read_b128 {vr(ACC[l]+4*j,4)}, v{t[0]} offset:{(l-1)*4096 + j*1024}')
    side()
    for l in range(1, 4):
        a(f's_waitcnt lgkmcnt({4*(3-l)})')
        for r in range(0, 16, 2): a(f'v_pk_add_f32 {vr(ACC[0]+r,2)}, {vr(ACC[0]+r,2)}, {vr(ACC[l]+r,2)}')

def put5(a, vt):
    a(f's_mul_i32 s{T0}, s{S_W}, 7168\ns_add_u32 s{T0}, s{T0}, {SINGLE}\nv_add_u32 v{vt}, s{T0}, v{V_OFF}')
    for g in range(7): a(f'ds_write_b128 v{vt}, {vr(RAW5+4*g,4,"a")} offset:{1024*g}')

def tile_ids(a, STT, SCT):
    a(f'''
    s_and_b32 s{STT}, s{S_W}, 1
    s_lshl_b32 s{T0}, s{S_RB}, 1
    s_add_u32 s{STT}, s{STT}, s{T0}
    s_lshr_b32 s{SCT}, s{S_W}, 1
    s_lshl_b32 s{T0}, s{S_CB}, 1
    s_add_u32 s{SCT}, s{SCT}, s{T0}
    ''')
def flag8_addr(a, vf, t0, t1, sdst, base):
    a(f'''
    v_lshrrev_b32 v{t0}, 2, v{V_LANE}
    v_lshlrev_b32 v{t0}, 11, v{t0}
    v_and_b32 v{t1}, 3, v{V_LANE}
    v_lshl_add_u32 v{vf}, v{t1}, 7, v{t0}
    s_lshl_b32 s{T0}, s{S_RB}, 3
    s_add_u32 s{T0}, s{T0}, s{S_W}
    s_lshl_b32 s{sdst}, s{T0}, 9
    s_add_u32 s{sdst}, s{sdst}, {base}
    ''')

def phase_c(a, R, stg):
    va = VA(4, 200)
    ACC = [va(16) for _ in range(4)]
    OF = [[va(4) for k in range(8)] for lt in range(2)]
    t = [va() for _ in range(8)]; vf = va(); vw = va(); vp = va()
    STT, SCT = T1, T2
    NB1 = opt('hgB', 7); NF = opt('hgBf', 0)
    for g in range(NF):
        if stg.nl < NB1: stg.load()
    stg.setup(t[0], t[1], t[2], vw)
    tile_ids(a, STT, SCT)
    for l in range(2):
        a(f'''
        s_xor_b32 s{T0}, s{STT}, {l}
        s_lshl_b32 s{T0}, s{T0}, 2
        s_add_u32 s{T0}, s{T0}, s{S_W}
        s_lshl_b32 s{T0}, s{T0}, 13
        s_add_u32 s{T3+l}, s{T0}, {WS_O}
        ''')
    for g in (0, 4):
        a(f'v_permlane32_swap_b32 v{XRES+g}, v{XRES+g+2}\nv_permlane32_swap_b32 v{XRES+g+1}, v{XRES+g+3}')
    for j in range(8):
        a(f'v_lshlrev_b32 v{ACC[0]+2*j}, 16, v{XRES+j}\nv_and_b32 v{ACC[0]+2*j+1}, 0xffff0000, v{XRES+j}')
    a('s_barrier')
    for _ in range(opt('trB0', 1)): stg.trans()
    a.vmwait('stB')
    flag_store(a, T5, t[3])
    a.stamp('C_flag'); a.stamp('H_flag')
    visit(a, 2)
    flag8_addr(a, vf, t[0], t[1], T5, FL_B)
    NT1 = NB1 - opt('trB', 1)
    for _ in range(opt('hgBg', 3)):
        if stg.nl < NB1: stg.load()
    while stg.nt < NT1:
        if stg.nt == NT1 - opt('pollB', 2): poll_issue(a, T5, vf, 8, vp)
        stg.trans()
        if stg.nl < NB1: stg.load()
    a.stamp('C_pre')
    poll_check(a, T5, vf, 8, vp, extra=[196, 197, 198])
    (a.stamp('C_poll'), a.stamp('R_C_pollc'), a.stamp('R_C_pollr', True))
    def old_(k, l):
        if k == 4 and l == 0: a(f's_add_u32 s{T3}, s{T3}, 4096\ns_add_u32 s{T4}, s{T4}, 4096')
        a.vmem(f'buffer_load_dwordx4 {vr(OF[l][k],4)}, v{V_OFF}, {sr4(SRD_WS)}, s{T3+l} offen offset:{1024*(k&3)} sc1', f'o{k}')
    OLA = opt('ola', 6)
    oq = [(k, l) for k in range(8) for l in range(2)]
    for _ in range(2 * OLA): old_(*oq.pop(0))
    nfree = NHG
    while stg.nt < NB1: stg.trans()
    red_addr(a, t)
    a(f'''
    s_mul_i32 s{T6}, s{STT}, 14
    s_add_u32 s{T6}, s{T6}, s{SCT}
    s_lshl_b32 s{T5}, s{STT}, 4
    s_add_u32 s{T5}, s{T5}, s{SCT}
    s_lshl_b32 s{T5}, s{T5}, 7
    s_add_u32 s{T5}, s{T5}, {FL_C}
    s_waitcnt lgkmcnt(0)
    s_barrier
    ''')
    MH = va(8); HC = va(8)
    a(f's_lshl_b32 s{T0}, s{STT}, 11\ns_add_u32 s{S_SPIN+1}, s{T0}, {WS_MH}\nv_lshlrev_b32 v{vf}, 2, v{V_LANE}')
    mq = [('vm', f'buffer_load_dword v{MH+i}, v{vf}, {sr4(SRD_WS)}, s{S_SPIN+1} offen offset:{256*i} sc1', 'mh') for i in range(8)]
    def mm(k, l):
        p, b = stg.dest(k >> 1, k & 1, l >> 1)
        a(f'{MFMA} {vr(ACC[l],16)}, {vr(b,4,p)}, {vr(OF[l & 1][k],4)}, {vr(ACC[l],16) if (k or l == 0) else 0}')
    KT = 5
    for k in range(KT):
        a.vmwait(f'o{k}')
        for l in range(4):
            mm(k, l)
            if oq and l & 1 == 0: old_(*oq.pop(0))
            elif not oq and mq: a.emit(mq.pop(0))
    assert not oq and not mq
    stg.queue(min(nfree, NB1 + opt('hgC0', 4)))
    for l in (1, 2, 3, 0):
        for k in range(KT, 8):
            if l == 1: a.vmwait(f'o{k}')
            mm(k, l)
        if l in (2, 3): red_write(a, ACC, t, l - 1, stg.one)
    a.stamp('C_mfma')
    red_write(a, ACC, t, 3, stg.one)
    a.vmwait('mh')
    for i in range(0, 8, 4): a(f'v_pk_add_f32 {vr(MH+i,2)}, {vr(MH+i,2)}, {vr(MH+i+2,2)}')
    a(f'v_pk_add_f32 {vr(MH,2)}, {vr(MH,2)}, {vr(MH+4,2)}\nv_add_f32 v{MH}, v{MH}, v{MH+1}')
    halfsum(a, MH, MH + 1)
    red_read(a, ACC, t, stg.flush)
    for r in range(0, 16, 2): a(f'v_pk_add_f32 {vr(ACC[1]+r,2)}, {vr(ACC[0]+r,2)}, {vr(MH,2)} op_sel_hi:[1,0] neg_lo:[0,1] neg_hi:[0,1]')
    for j in range(8): a(f'v_cvt_pk_bf16_f32 v{HC+j}, v{ACC[1]+2*j}, v{ACC[1]+2*j+1}')
    a(f's_lshl_b32 s{T0}, s{T6}, 11\ns_add_u32 s{T0}, s{T0}, {WS_H}')
    for j in range(2):
        a.vmem(f'buffer_store_dwordx4 {vr(HC+4*j,4)}, v{V_OFF}, {sr4(SRD_WS)}, s{T0} offen offset:{1024*j} sc1', 'stC')
    for i in range(4): a(f'v_mov_b32 v{t[4+i]}, 0')
    for j in range(8):
        a(f'v_dot2c_f32_bf16 v{t[4+(j&1)]}, s{S_ONES}, v{HC+j}')
        a(f'v_dot2c_f32_bf16 v{t[6+(j&1)]}, v{HC+j}, v{HC+j}')
    a(f'''
    v_add_f32 v{t[4]}, v{t[4]}, v{t[5]}
    v_add_f32 v{t[6]}, v{t[6]}, v{t[7]}
    v_permlane32_swap_b32 v{t[4]}, v{t[6]}
    v_add_f32 v{t[4]}, v{t[4]}, v{t[6]}
    v_and_b32 v{t[5]}, 31, v{V_LANE}
    v_lshrrev_b32 v{t[6]}, 5, v{V_LANE}
    v_lshlrev_b32 v{t[6]}, 2, v{t[6]}
    v_lshl_add_u32 v{t[5]}, v{t[5]}, 3, v{t[6]}
    s_lshl_b32 s{T0}, s{T6}, 8
    s_add_u32 s{T0}, s{T0}, {WS_ST}
    ''')
    a.vmem(f'buffer_store_dword v{t[4]}, v{t[5]}, {sr4(SRD_WS)}, s{T0} offen sc1', 'stC')
    a.stamp('C_st')
    for j in range(8): a(f'v_cvt_pk_bf16_f32 v{HKEEP+j}, v{ACC[0]+2*j}, v{ACC[0]+2*j+1}')
    for _ in range(opt('hgCf', 0)):
        if stg.nl < nfree: stg.load()
    a('s_barrier')
    put5(a, t[0])
    for _ in range(opt('trC0', 0)): stg.trans()
    a.vmwait('stC')
    flag_store(a, T5, t[3])
    a.stamp('C_flag2')
    NTP = NHG - opt('trE', 0) - opt('trC', 0) - opt('pollC', 2)
    while stg.nl < NHG: stg.load()
    while stg.nt < NTP: stg.trans()

def phase_d(a, R, stg):
    va = VA(4, 212)
    X = [va(4) for _ in range(28)]
    ACC = [va(16) for _ in range(4)]
    HP = va(4)
    t = [va(2) for _ in range(4)]
    mu = va(2)
    vl = [va() for _ in range(6)]
    vp = va(); vs = va()
    W = [va(4) for _ in range(2)] + [WOV + 4*i for i in range(8)]
    NW = len(W)
    ST = ACC[3]
    E = [t[0], t[0]+1, t[1], t[1]+1, t[2], t[2]+1, t[3], t[3]+1]
    STT = T6; SH = T5; S13, L13 = T3, T4
    w13_setup(a, S13, L13)
    a(f'''
    s_lshl_b32 s{T0}, s{S_L0}, 5
    s_add_u32 s{S13}, s{S13}, s{T0}
    s_lshl_b32 s{STT}, s{S_TD}, 2
    s_add_u32 s{STT}, s{STT}, s{S_W}
    s_lshl_b32 s{T2}, s{STT}, 11
    s_add_u32 s{T2}, s{T2}, {FL_C}
    v_bfe_u32 v{t[0]}, v{V_LANE}, 4, 1                 ; cg
    v_lshrrev_b32 v{t[1]}, 5, v{V_LANE}                ; hf
    v_bfe_u32 v{t[3]}, v{V_LANE}, 2, 2                 ; r
    v_and_b32 v{mu}, 3, v{V_LANE}
    v_lshlrev_b32 v{mu}, 3, v{mu}                      ; c4*8
    v_xor_b32 v{t[2]}, v{t[0]}, v{t[1]}
    v_lshl_add_u32 v{t[2]}, v{t[2]}, 2, v{t[3]}
    v_lshl_add_u32 v{t[2]}, v{t[2]}, 5, v{mu}
    v_mul_u32_u24 v{vl[4]}, 14336, v{t[0]}
    v_add_u32 v{vl[4]}, v{vl[4]}, v{t[2]}
    v_add_u32 v{vl[4]}, {SINGLE}, v{vl[4]}
    v_lshl_add_u32 v{t[2]}, v{t[1]}, 2, v{t[3]}
    v_lshl_add_u32 v{t[2]}, v{t[2]}, 6, v{mu}
    v_mul_u32_u24 v{t[0]}, {28672 + 32}, v{t[0]}
    v_add_u32 v{vl[0]}, v{t[0]}, v{t[2]}
    v_xor_b32 v{vl[1]}, 32, v{vl[0]}
    v_add_u32 v{vl[2]}, {PAIR}, v{vl[0]}
    v_add_u32 v{vl[3]}, {PAIR}, v{vl[1]}
    v_and_b32 v{t[0]}, 31, v{V_LANE}
    v_mul_u32_u24 v{t[1]}, {7*256}, v{t[1]}
    v_lshl_add_u32 v{vs}, v{t[0]}, 3, v{t[1]}
    s_mul_i32 s{T1}, s{STT}, {14*256}
    s_add_u32 s{T1}, s{T1}, {WS_ST}
    s_mul_i32 s{SH}, s{STT}, {28*1024}
    s_add_u32 s{SH}, s{SH}, {WS_H}
    ''')
    VSD = 222; SWB = S_DUM; SLB = S_DUM + 1
    a(f'''
    v_lshrrev_b32 v{t[0]}, 3, v{V_LANE}
    v_lshrrev_b32 v{t[1]}, 2, v{V_LANE}
    v_and_b32 v{t[1]}, 4, v{t[1]}
    v_and_b32 v{t[2]}, 7, v{V_LANE}
    v_xor_b32 v{t[1]}, v{t[1]}, v{t[2]}
    v_mul_u32_u24 v{t[0]}, 896, v{t[0]}
    v_lshl_add_u32 v{V_SRC2}, v{t[1]}, 4, v{t[0]}
    s_mul_i32 s{SWB}, s{S_W}, {448*896}
    s_lshl_b32 s{T0}, s{S_CB}, 7
    s_add_u32 s{SWB}, s{SWB}, s{T0}
    ''')
    def w2_dma(hl):
        base, per = (SCR, 12288) if hl < 3 else (PAIR, 14336)
        out = []
        for i in range(4):
            out.append(([f's_mul_i32 s{SLB}, s{S_W}, {per}', f's_add_u32 m0, s{SLB}, {base + (hl % 3)*4096}'] if i == 0 else []) +
                       [f's_add_u32 s{T0}, s{SWB}, {(256 + 32*hl + 8*i)*896 - 1024*i}',
                        ('vm', f'buffer_load_dwordx4 v{V_SRC2}, {sr4(SRD_A)}, s{T0} offen offset:{1024*i} lds', 'w2l')])
        return out
    NTP = NHG - opt('trE', 0) - opt('trC', 0)
    poll_issue(a, T2, V_FL, 14, vp)
    Ls = a.newlabel('skip')
    a(f's_cmp_ge_u32 s{S_J}, 28\ns_cbranch_scc1 {Ls}')
    while stg.nt < NTP: stg.trans()
    a.label(Ls)
    a('s_waitcnt lgkmcnt(0)\ns_barrier')
    a.stamp('D_pre')
    rest = [x for x in a.vm if x.startswith('hg')]
    SX_ = S_SPIN + 1
    a(f's_lshl_b32 s{SX_}, s{S_R14}, 11\nv_add_u32 v{vl[5]}, s{SH}, v{V_OFF}\nv_add_u32 v{vs}, s{T1}, v{vs}')
    poll_check(a, T2, V_FL, 14, vp, extra=[HP, HP + 1, HP + 2])
    (a.stamp('D_poll'), a.stamp('R_D_pollc'), a.stamp('R_D_pollr', True)); a.stamp('F_poll')
    def ldx(k):
        if k and k % 2 == 0: a(f's_add_u32 s{SX_}, s{SX_}, 2048\ns_sub_u32 s{T0}, s{SX_}, {28*1024}\ns_min_u32 s{SX_}, s{SX_}, s{T0}')
        a.vmem(f'buffer_load_dwordx4 {vr(X[k],4)}, v{vl[5]}, {sr4(SRD_WS)}, s{SX_} offen offset:{1024*(k&1)} sc1', f'x{k}')
    XLA = opt('xla', 10)
    for k in range(XLA): ldx(k)
    late_vm = [('vm', f'buffer_load_dwordx2 {vr(ST+2*c,2)}, v{vs}, {sr4(SRD_WS)}, 0 offen offset:{256*c} sc1', 'st') for c in range(7)]
    def epoch():
        a(f's_or_b32 s{T0}, s2, s{S_W}\ns_cmp_lg_u32 s{T0}, 0\ns_cselect_b32 s{T0}, 0x40000000, {WS_FLG}')
        flag_store(a, T0, HP + 3)
    late_vm.append(('call', epoch))
    a.stamp('F_issued')
    Ls = a.newlabel('skip')
    a(f's_cmp_ge_u32 s{S_J}, 28\ns_cbranch_scc1 {Ls}')
    while stg.nt < NHG - opt('trE', 0): stg.trans()
    stg.close()
    a.label(Ls)
    SE = T5; SL = T1; SF = T2
    a(f'''
    s_mul_i32 s{SE}, s{STT}, 112
    s_mul_i32 s{T0}, s{S_FS}, 7
    s_add_u32 s{SE}, s{SE}, s{T0}
    s_add_u32 s{SL}, s{SE}, s{S_L0}
    s_add_u32 s{SE}, s{SE}, s{S_E0}
    s_lshl_b32 s{SE}, s{SE}, 10
    s_add_u32 s{SE}, s{SE}, {WS_HH}
    s_lshl_b32 s{SL}, s{SL}, 10
    s_add_u32 s{SL}, s{SL}, {WS_HH}
    s_add_u32 s{S_U1}, s{SE}, 4096
    s_lshl_b32 s{SF}, s{STT}, 4
    s_add_u32 s{SF}, s{SF}, s{S_FS}
    s_lshl_b32 s{SF}, s{SF}, 7
    s_add_u32 s{SF}, s{SF}, {FL_D1}
    ''')
    if opt('trC', 0): a('s_waitcnt lgkmcnt(0)')
    seq = [(j, k) for k in range(28) for j in (0, 1, 4)] + [(j, k) for j in (2, 3, 5, 6) for k in range(28)]
    def rdW(n):
        j, k = seq[n]
        if j == 4: return [f'ds_read_b64_tr_b16 {vr(W[n % NW]+2*u,2)}, v{vl[4]} offset:{k*512 + u*256}' for u in range(2)]
        return [f'ds_read_b64_tr_b16 {vr(W[n % NW]+2*u,2)}, v{vl[{0:0,1:1,2:2,3:3,5:0,6:1}[j]]} offset:{k*1024 + u*512}' for u in range(2)]
    AH = opt('ah', 7); assert AH + 2 <= NW and 2 * AH <= 16
    a.stamp('F_bar')
    for n in range(AH):
        for x in rdW(n): a(x)
    stat = [('wait', 'st')] + [f'v_add_f32 v{ST+2*c+b_}, v{ST+2*c+b_}, v{ST+2*c+2+b_}' for c in (0, 2, 4) for b_ in range(2)] + \
           [f'v_add_f32 v{ST+b_}, v{ST+b_}, v{ST+4+b_}' for b_ in range(2)] + [f'v_add_f32 v{ST+8+b_}, v{ST+8+b_}, v{ST+12+b_}' for b_ in range(2)] + \
           [f'v_add_f32 v{ST+b_}, v{ST+b_}, v{ST+8+b_}' for b_ in range(2)] + \
           [f'v_mov_b32 v{t[0]}, v{ST}', f'v_mov_b32 v{t[1]}, v{ST+1}', 's_nop 0', f'v_permlane32_swap_b32 v{t[0]}, v{ST}', f'v_permlane32_swap_b32 v{t[1]}, v{ST+1}',
            f'v_add_f32 v{t[0]}, v{t[0]}, v{ST}', f'v_add_f32 v{t[1]}, v{t[1]}, v{ST+1}',
            f'v_mul_f32 v{t[0]}, {fx(1/448)}, v{t[0]}', f'v_mul_f32 v{t[1]}, {fx(1/448)}, v{t[1]}',
            f'v_fma_f32 v{t[1]}, -v{t[0]}, v{t[0]}, v{t[1]}', f'v_max_f32 v{t[1]}, 0, v{t[1]}',
            f'v_add_f32 v{mu+1}, {fx(1e-5)}, v{t[1]}', f'v_rsq_f32 v{mu}, v{mu+1}', 's_nop 0', f'v_mul_f32 v{mu}, {fx(-math.log2(math.e))}, v{mu}']
    acc_of = {0: 0, 1: 1, 4: 2, 2: 3, 3: 0, 5: 1, 6: 2}
    def epi(j):
        A = ACC[acc_of[j]]
        out = []
        pk = opt('pkE', 0) if j != 6 else 2
        if pk >= 2:
            for r in range(0, 8, 2): out.append(f'v_pk_mul_f32 {vr(E[r],2)}, {vr(A+r,2)}, {vr(mu,2)} op_sel_hi:[1,0]')
        else:
            for r in range(8): out.append(f'v_mul_f32 v{E[r]}, v{mu}, v{A+r}')
        for r in range(8): out.append(f'v_exp_f32 v{E[r]}, v{E[r]}')
        if pk >= 1:
            for r in range(0, 8, 2): out.append(f'v_pk_mul_f32 {vr(A+r,2)}, {vr(A+r,2)}, {vr(A+8+r,2)}')
        else:
            for r in range(8): out.append(f'v_mul_f32 v{A+r}, v{A+r}, v{A+8+r}')
        if pk >= 2:
            for r in range(0, 8, 2): out.append(f'v_pk_fma_f32 {vr(E[r],2)}, {vr(E[r],2)}, {vr(mu,2)}, {vr(mu,2)} op_sel:[0,1,1] op_sel_hi:[1,1,1]')
        else:
            for r in range(8): out.append(f'v_fma_f32 v{E[r]}, v{E[r]}, v{mu+1}, v{mu+1}')
        for r in range(8): out.append(f'v_rcp_f32 v{E[r]}, v{E[r]}')
        if pk >= 1:
            for r in range(0, 8, 2): out.append(f'v_pk_mul_f32 {vr(A+r,2)}, {vr(A+r,2)}, {vr(E[r],2)}')
        else:
            for r in range(8): out.append(f'v_mul_f32 v{A+r}, v{A+r}, v{E[r]}')
        for i in range(4): out.append(f'v_cvt_pk_bf16_f32 v{HP+i}, v{A+2*i}, v{A+2*i+1}')
        sreg, off = (SE, 1024*j) if j < 4 else ((S_U1, 0) if j == 4 else (SL, 1024*(j-5)))
        out.append(('vm', f'buffer_store_dwordx4 {vr(HP,4)}, v{V_OFF}, {sr4(SRD_WS)}, s{sreg} offen offset:{off} sc1', f'hh{j}'))
        return out
    a.stamp('F_stats')
    a.vmwait('x0')
    a.stamp('F_x0')
    pend = []; late = []
    R['vfE'] = vs; R['vpE'] = vp
    for n, (j, k) in enumerate(seq):
        nn = n + AH
        if nn < len(seq) and seq[nn] == (5, 0):
            a.vmwait('late'); a('s_barrier')
        rd = rdW(nn) if nn < len(seq) else []
        WP = opt('wp', 4)
        if n % WP == 0:
            left = min(len(seq), n + AH) - (n + WP)
            a(f's_waitcnt lgkmcnt({max(0, 2*left)})')
        A = ACC[acc_of[j]]
        a(f'{MFMA} {vr(A,16)}, {vr(W[n % NW],4)}, {vr(X[k],4)}, {vr(A,16) if k else 0}')
        for x in rd: a(x)
        if n < 84 and j == 0 and k in (2, 4, 8, 16, 24): a.stamp(f'F_k{k}')
        if n >= 84 and k == 27: a.stamp(f'F_t{j}')
        if n < 84:
            if j == 1 and k + XLA < 28: ldx(k + XLA)
            if j == 4 and k + 1 < 28: a.vmwait(f'x{k+1}')
            if j == 0 and k >= opt('stk', 11) and late_vm: a.emit(late_vm.pop(0))
            if k * 3 + (0, 1, 0, 0, 2)[j] >= 84 - 30 and stat:
                a.emit(stat.pop(0))
            if n == 83:
                a.stamp('D_st1')
                assert not stat
                a('s_barrier')
                srd(a, SRD_A, P_W2, W2_BYTES)
                late = [pair_dma(S13, L13, 0, 0, i, 'late') for i in range(14)]
                g1 = [x for hl in range(3) for x in w2_dma(hl)]; g2 = [x for hl in range(3, 6) for x in w2_dma(hl)]
        else:
            if n == 84 + 2: pend = epi(0) + epi(1) + epi(4) + epi(2) + epi(3) + epi(5); done = 0; tot = len(pend); one = tot // 6
            if n >= 84 + 2:
                want = min(tot, (n - 85) * tot // 108 + 1)
                lim = {2: 3, 3: 3 + (k >= 2), 5: 4 + (k >= 2), 6: 5 + (k >= 2)}[j] * one
                while done < min(want, lim):
                    a.emit(pend.pop(0)); done += 1
                if k == 27:
                    need = {2: 1, 3: 2, 5: 3, 6: 6}[j] * one
                    while done < need:
                        a.emit(pend.pop(0)); done += 1
            if (j, k) == (5, 0): a('s_barrier')
            if k % opt('latestep', 2) == 0:
                q_ = late if late else (g1 if g1 else (g2 if j >= 5 else []))
                if q_:
                    for x in q_.pop(0): a.emit(x)
            if j == 5 and k == opt('f1k', 6):
                a.vmwait('hh1'); flag_store(a, SF, vp)
            if j == 6 and k == opt('f2k', 14) and not opt('d2late', 1):
                a(f's_add_u32 s{SF}, s{SF}, {FLS}')
                a.vmwait('hh2'); flag_store(a, SF, vl[2])
                a(f's_add_u32 s{SF}, s{SF}, {FLS}')
            if j == 6 and k == opt('p1k', 18):
                flag8_addr(a, vs, vp, vl[4], S_SPIN + 1, FL_D1)
                poll_issue(a, S_SPIN + 1, vs, 8, vp)
    assert not late and not g1 and not g2
    a.stamp('D_loop')
    if opt('d2late', 1):
        a(f's_add_u32 s{SF}, s{SF}, {FLS}')
        a.vmwait('hh3'); flag_store(a, SF, vl[2])
        a(f's_add_u32 s{SF}, s{SF}, {FLS}')
    for x in epi(6): a.emit(x)
    (a.stamp('D_epi'), a.stamp('R_D_epic'), a.stamp('R_D_epir', True))
    R['SF'] = SF

def phase_e(a, R, stg):
    va = VA(4, 199)
    ACC = [va(16) for _ in range(4)]
    NB = 16
    BUF = [[va(4) for l in range(2)] for d in range(NB)]
    vf = R['vfE']; vp = R['vpE']
    t = [204, 205, 206, 207]; vt = 208
    assert vf >= va.n and vp >= va.n and vf < 204 and vp < 204
    STT, SCT = T1, T3
    SP = S_SPIN + 1
    tile_ids(a, STT, SCT)
    a(f's_mul_i32 s{T4}, s{S_W}, {28*1024}')
    for l in range(2):
        a(f'''
        s_xor_b32 s{T0}, s{STT}, {l}
        s_mul_i32 s{T0}, s{T0}, {112*1024}
        s_add_u32 s{T0}, s{T0}, s{T4}
        s_add_u32 s{S_U0+l}, s{T0}, {WS_HH}
        ''')
    e0 = lambda f: 2 if f == 2 else 0
    l0 = lambda f: 0 if f == 2 else 5
    order = [7*f + e0(f) + j for j in (0, 1, 4, 2, 3) for f in range(4)] + [7*f + l0(f) + j for j in range(2) for f in range(4)]
    assert sorted(order) == list(range(28))
    if opt('erot', 0):
        for f_ in range(4):
            a(f's_add_u32 s{T0}, s{S_CB}, {f_}\ns_and_b32 s{T0}, s{T0}, 3\ns_mul_i32 s{T0}, s{T0}, 7168')
            for l in range(2): a(f's_add_u32 s{70 + 4*l + f_}, s{T0}, s{S_U0 + (l ^ 0)}')
        if opt('erot', 0) == 2:
            a(f's_lshr_b32 s{T0}, s{S_CB}, 2\ns_cmp_lg_u32 s{T0}, 0')
            for f_ in range(4):
                a(f's_mov_b32 s{T0}, s{70+f_}\ns_cselect_b32 s{70+f_}, s{74+f_}, s{70+f_}\ns_cselect_b32 s{74+f_}, s{T0}, s{74+f_}')
    poll_check(a, SP, vf, 8, vp)
    a.stamp('E_poll1')
    N2 = 20 if opt('d2late', 1) else 16
    B4 = opt('b4', 0)
    st = dict(nxt=0)
    FL3 = opt('efl', 7); PI2 = opt('epi2', 3); PI3 = opt('epi3', 15)
    def ld_items():
        n = st['nxt']; st['nxt'] += 1
        pre = []
        if B4 and n == opt('efl5', 4): pre.append(('call', lambda: (a.vmwait('hh5'), flag_store(a, R['SF'], vt), a(f's_add_u32 s{R["SF"]}, s{R["SF"]}, {FLS}'))))
        if n == FL3: pre.append(('call', lambda: (a.vmwait('hh6'), flag_store(a, R['SF'], vt))))
        if n in ((8, N2, 24) if B4 else (8, N2)):
            nm = {8: 2, N2: 3, 24: 4}[n]
            pre.append(('call', lambda: (a.stamp(f'E_pre{nm}'), poll_check(a, SP, vf, 8, vp), a.stamp(f'E_poll{nm}'))))
        if n in ((PI2, PI3, opt('epi4', 21)) if B4 else (PI2, PI3)): pre.append(('call', lambda: (a(f's_add_u32 s{SP}, s{SP}, {FLS}'), poll_issue(a, SP, vf, 8, vp))))
        ks = order[n]
        out = []
        for l in range(2):
            if opt('erot', 0):
                f_, o_ = divmod(ks, 7)
                out.append((pre if l == 0 else []) + [f's_add_u32 s{T0}, s{70 + 4*l + f_}, {o_ * 1024}',
                           ('vm', f'buffer_load_dwordx4 {vr(BUF[n % NB][l],4)}, v{V_OFF}, {sr4(SRD_WS)}, s{T0} offen sc1', f'h{n}')])
                continue
            out.append((pre if l == 0 else []) + [f's_add_u32 s{T0}, s{S_U0+l}, {(ks >> 2) * 4096}',
                       ('vm', f'buffer_load_dwordx4 {vr(BUF[n % NB][l],4)}, v{V_OFF}, {sr4(SRD_WS)}, s{T0} offen offset:{1024*(ks&3)} sc1', f'h{n}')])
        return out
    def ld():
        for it in ld_items():
            for x in it: a.emit(x)
    LA = opt('ela', 8)
    for n in range(LA): ld()
    for j in range(8):
        a(f'v_lshlrev_b32 v{ACC[0]+2*j}, 16, v{HKEEP+j}\nv_and_b32 v{ACC[0]+2*j+1}, 0xffff0000, v{HKEEP+j}')
    red_addr(a, t)
    RA = [209, 210, 211, 212]
    a(f'''
    s_lshl_b32 s{T0}, s{S_W}, 13
    v_add_u32 v{RA[0]}, s{T0}, v{V_RD}
    v_add_u32 v{RA[1]}, s{T0}, v{V_RD+1}
    s_mul_i32 s{T0}, s{S_W}, {14336 - 4096}
    s_sub_u32 s{T0}, s{T0}, {SCR - PAIR}
    v_add_u32 v{RA[2]}, s{T0}, v{V_RD}
    v_add_u32 v{RA[3]}, s{T0}, v{V_RD+1}
    ''')
    if opt('trE', 0):
        a('s_barrier')
        a(f'''
        v_subrev_u32 v{V_RD}, {SCR}, v{V_RD}
        v_subrev_u32 v{V_RD+1}, {SCR}, v{V_RD+1}
        v_lshrrev_b32 v{V_P13}, 3, v{V_LANE}
        v_lshlrev_b32 v{V_P13}, 7, v{V_P13}
        s_lshl_b32 s{T0}, s{S_W}, 12
        v_add3_u32 v{V_P13}, s{T0}, v{V_OFF}, v{V_P13}
        ''')
        stg.vw = V_P13
        while stg.nt < NHG: stg.trans()
        a('s_waitcnt lgkmcnt(0)')
    Ls = [n for n in range(28) if order[n] >= 16]
    WB = [WOV + 8*i for i in range(4)]
    lst = dict(rd=0)
    def lread():
        i = lst['rd']; lst['rd'] += 1
        hl, s_ = divmod(order[Ls[i]] - 16, 2)
        return [f'ds_read_b64_tr_b16 {vr(WB[i % 4] + 4*lc + 2*u, 2)}, v{RA[2*(hl // 3) + lc]} offset:{(hl % 3)*4096 + s_*2048 + u*1024}' for lc in range(2) for u in range(2)]
    for _ in range(3):
        for x in lread(): a(x)
    def lwait(n):
        if n in Ls: a(f's_waitcnt lgkmcnt({4 * (lst["rd"] - 1 - Ls.index(n))})')
    def mm(n, l):
        ks = order[n]
        p, b = stg.dest(4 + (ks >> 1), ks & 1, l >> 1) if ks < 16 else ('v', WB[Ls.index(n) % 4] + 4 * (l >> 1))
        a(f'{MFMA} {vr(ACC[l],16)}, {vr(b,4,p)}, {vr(BUF[n % NB][l & 1],4)}, {vr(ACC[l],16) if (n or l == 0) else 0}')
    KT = 28 - opt('etail', 3)
    for n in range(KT):
        lwait(n)
        a.vmwait(f'h{n}')
        items = []
        for _ in range(2 if n < opt('egrow', 0) else 1):
            if st['nxt'] < 28 and st['nxt'] - NB < n: items += ld_items()
        rd = lread() if (n in Ls and lst['rd'] < len(Ls)) else []
        for l in range(4):
            mm(n, l)
            if rd: a(rd.pop(0))
            if items and (len(items) > 2 or l & 1 == 0 or l == 3):
                for x in items.pop(0): a.emit(x)
        assert not items
        if n == opt('ebar', 20):
            assert all(m <= n for m in Ls if order[m] < 22)
            a('s_barrier')
    assert st['nxt'] == 28 and lst['rd'] == len(Ls)
    a('s_waitcnt lgkmcnt(0)')
    for l in (1, 2, 3, 0):
        for n in range(KT, 28):
            if l == 1: a.vmwait(f'h{n}')
            mm(n, l)
        if l in (2, 3): red_write(a, ACC, t, l - 1)
    a.stamp('E_mfma')
    red_write(a, ACC, t, 3)
    srd(a, SRD_A, P_OUT, X_BYTES)
    a(f'''
    v_and_b32 v{vf}, 31, v{V_LANE}
    v_lshrrev_b32 v{vp}, 5, v{V_LANE}
    v_mul_u32_u24 v{vf}, 896, v{vf}
    v_lshl_add_u32 v{vf}, v{vp}, 4, v{vf}
    s_mul_i32 s{T0}, s{STT}, {32*896}
    s_lshl_b32 s{T2}, s{SCT}, 6
    s_add_u32 s{T0}, s{T0}, s{T2}
    ''')
    red_read(a, ACC, t)
    if opt('bias', 0):
        for r in range(16): a(f"v_add_f32 v{ACC[0]+r}, {fx(opt('bias', 0) * 1e-3)}, v{ACC[0]+r}")
    PKR = ACC[1]
    for j in range(8): a(f'v_cvt_pk_bf16_f32 v{PKR+j}, v{ACC[0]+2*j}, v{ACC[0]+2*j+1}')
    for g in (0, 4):
        a(f'v_permlane32_swap_b32 v{PKR+g}, v{PKR+g+2}\nv_permlane32_swap_b32 v{PKR+g+1}, v{PKR+g+3}')
    fl_ = ['', ' sc1', ' nt', ' sc0 sc1'][opt('outst', 2)]
    a(f'buffer_store_dwordx4 {vr(PKR,4)}, v{vf}, {sr4(SRD_A)}, s{T0} offen{fl_}')
    a(f'buffer_store_dwordx4 {vr(PKR+4,4)}, v{vf}, {sr4(SRD_A)}, s{T0} offen offset:32{fl_}')
    a.stamp('E_st')

def gen():
    a = K()
    a.stamp('rt0', True); a.stamp('t0')
    HB = opt('hb', 3); DB = opt('db', 3)
    if int(os.environ.get('TFIX', '0')): a('s_memrealtime s[60:61]')
    a(f'''
    s_cmp_ge_u32 s2, 256
    s_cbranch_scc1 Lend
    s_load_dwordx16 s[32:47], s[0:1], 0
    s_load_dwordx2 s[50:51], s[0:1], 72
    v_lshrrev_b32 v2, 6, v0
    v_and_b32 v{V_LANE}, 63, v0
    v_readfirstlane_b32 s{S_W}, v2
    v_lshlrev_b32 v{V_OFF}, 4, v{V_LANE}
    v_lshlrev_b32 v{V_FL}, 7, v{V_LANE}
    s_and_b32 s{T0}, s2, 7
    s_lshr_b32 s{S_J}, s2, 3
    s_and_b32 s{S_H}, s{T0}, {(16 >> HB) - 1}
    s_lshl_b32 s{S_H}, s{S_H}, {HB}
    s_and_b32 s{T1}, s{S_J}, {(1 << HB) - 1}
    s_add_u32 s{S_H}, s{S_H}, s{T1}
    s_lshr_b32 s{S_TB}, s{T0}, {4 - HB}
    s_lshl_b32 s{S_TB}, s{S_TB}, {5 - HB}
    s_lshr_b32 s{T1}, s{S_J}, {HB}
    s_add_u32 s{S_TB}, s{S_TB}, s{T1}
    s_mul_i32 s{T1}, s{S_J}, 9363
    s_lshr_b32 s{T1}, s{T1}, 16
    s_mul_i32 s{T2}, s{T1}, 7
    s_sub_u32 s{S_CB}, s{S_J}, s{T2}
    s_lshl_b32 s{S_RB}, s{T0}, 2
    s_add_u32 s{S_RB}, s{S_RB}, s{T1}
    s_and_b32 s{S_TD}, s{T0}, {(16 >> DB) - 1}
    s_lshl_b32 s{S_TD}, s{S_TD}, {DB}
    s_and_b32 s{T1}, s{S_J}, {(1 << DB) - 1}
    s_add_u32 s{S_TD}, s{S_TD}, s{T1}
    s_lshr_b32 s{S_FS}, s{T0}, {4 - DB}
    s_lshl_b32 s{S_FS}, s{S_FS}, {5 - DB}
    s_lshr_b32 s{T1}, s{S_J}, {DB}
    s_add_u32 s{S_FS}, s{S_FS}, s{T1}
    ''')
    if opt('cpre', 1):
        a('s_getpc_b64 s[54:55]')
        a.label('Lpc')
        a(f'''
        s_lshl_b32 s{T0}, s{S_J}, 2
        s_add_u32 s{T0}, s{T0}, s{S_W}
        s_mul_i32 s{T0}, s{T0}, 3
        v_add_u32 v4, s{T0}, v{V_LANE}
        v_lshlrev_b32 v4, 7, v4
        v_min_u32 v4, Lcode_end-Lpc-4, v4
        v_mov_b32 v5, s55
        v_add_co_u32 v4, vcc, s54, v4
        v_addc_co_u32 v5, vcc, 0, v5, vcc
        s_mov_b64 exec, 7
        ''')
        a.vmem('global_load_dword a4, v[4:5], off', 'code')
        a('s_mov_b64 exec, -1')
    R = alloc_b()
    phase_a(a, R)
    a(f'''
    s_and_b32 s{T0}, s{S_FS}, 3
    s_cmp_eq_u32 s{T0}, 2
    s_cselect_b32 s{S_E0}, 2, 0
    s_cselect_b32 s{S_L0}, 0, 5
    s_and_b32 s{T0}, s{S_J}, {(1 << DB) - 1}
    s_lshr_b32 s{T1}, s{S_J}, {DB}
    s_mul_i32 s{T1}, s{T1}, {opt('r14b', 7)}
    s_mul_i32 s{T0}, s{T0}, {opt('r14a', 1)}
    s_add_u32 s{T0}, s{T0}, s{T1}
    s_mul_i32 s{T1}, s{T0}, 4682
    s_lshr_b32 s{T1}, s{T1}, 16
    s_mul_i32 s{T1}, s{T1}, 14
    s_sub_u32 s{S_R14}, s{T0}, s{T1}
    ''')
    stg = Stager(a)
    phase_b(a, R, stg)
    a(f's_cmp_ge_u32 s{S_J}, 28\ns_cbranch_scc1 LnoC')
    phase_c(a, R, stg)
    a('s_branch LD')
    vm_c = list(a.vm)
    a.label('LnoC')
    a.vmall()
    flag_store(a, T5, 4)
    a('s_barrier')
    put5(a, 5)
    a.label('LD')
    a.vm = vm_c
    phase_d(a, R, stg)
    a(f's_cmp_ge_u32 s{S_J}, 28\ns_cbranch_scc0 LE')
    vm_d = list(a.vm)
    a('s_waitcnt vmcnt(0)')
    flag_store(a, R['SF'], 4)
    if opt('b4', 0):
        a(f's_add_u32 s{R["SF"]}, s{R["SF"]}, {FLS}'); flag_store(a, R['SF'], 4)
    a('s_branch Lfin')
    a.label('LE')
    a.vm = vm_d
    phase_e(a, R, stg)
    a.label('Lfin')
    if int(os.environ.get('TFIX', '0')):
        a.label('Lfix')
        a(f's_memrealtime s[62:63]\ns_waitcnt lgkmcnt(0)\ns_sub_u32 s62, s62, s60\ns_cmp_lt_u32 s62, {int(os.environ["TFIX"])}\ns_cbranch_scc1 Lfix')
    if STAMP:
        a('s_waitcnt vmcnt(0)')
        a.stamp('end'); a.stamp('rt1', True)
        a(f's_waitcnt lgkmcnt(0)\ns_lshl_b32 s{T0}, s2, 2\ns_add_u32 s{T0}, s{T0}, s{S_W}\ns_lshl_b32 s{T0}, s{T0}, 7\ns_add_u32 s{T0}, s{T0}, {WS_DBG}\nv_mov_b32 v4, 0')
        for i in range(a.nst):
            a(f'v_mov_b32 v5, s{60+2*i}\nbuffer_store_dword v5, v4, {sr4(SRD_WS)}, s{T0} offen offset:{4*i}')
    if STAMP and int(os.environ.get('DBGOUT', '0')):
        n = a.nst
        a(f'''
        s_load_dwordx2 s[{SRD_A}:{SRD_A+1}], s[0:1], 64
        s_mov_b32 s{SRD_A+2}, 256
        s_mov_b32 s{SRD_A+3}, 0x20000
        s_not_b32 s{T1}, s60
        v_mov_b32 v6, s{T1}
        v_mov_b32 v7, s{60+2*(n-1)}
        v_mov_b32 v8, s60
        s_mov_b64 exec, 1
        s_waitcnt lgkmcnt(0)
        buffer_atomic_umax v6, v4, {sr4(SRD_A)}, 0 offen
        buffer_atomic_umax v7, v4, {sr4(SRD_A)}, 0 offen offset:4
        buffer_atomic_umax v8, v4, {sr4(SRD_A)}, 0 offen offset:8
        s_or_b32 s{T0}, s2, s{S_W}
        s_cmp_lg_u32 s{T0}, {int(os.environ.get('DBGWG', '0'))}
        s_cbranch_scc1 Lend
        ''')
        for i in range(2, min(n - 1, 15)):
            a(f's_sub_u32 s{T0}, s{60+2*i}, s62\nv_mov_b32 v5, s{T0}\nbuffer_store_dword v5, v4, {sr4(SRD_A)}, 0 offen offset:{4*(i+1)}')
    a.label('Lend')
    a('s_endpgm')
    fallback(a, R)
    a.label('Lcode_end')
    a.finalize()
    head = open('sequential_preLN__mha_block__glu_gated_swiglu__prompt.s.ref').read().split('; Override')[0]
    pre = f'.amdgcn_target "amdgcn-amd-amdhsa--gfx950"\n.text\n.p2align 12\n.fill {(4096 - 0x300) // 4}, 4, 0xbf800000\n.globl {NAME}\n.p2align 8\n.type {NAME},@function\n{NAME}:\n'
    if opt('visit', 1):
        import subprocess, re, tempfile
        from asmgen import Ins
        tmp = tempfile.mkdtemp()
        open(tmp + '/t.s', 'w').write(pre + a.text() + ''.join(f'Lpage{i}:\n' for i in range(1, 13)))
        subprocess.run(['clang', '-x', 'assembler', '-target', 'amdgcn-amd-amdhsa', '-mcpu=gfx950', '-c', tmp + '/t.s', '-o', tmp + '/t.o'], check=True)
        dis = subprocess.run(['llvm-objdump', '-d', '--mcpu=gfx950', tmp + '/t.o'], capture_output=True, text=True).stdout
        dis = dis[dis.index(f'<{NAME}>:'):]
        sizes = [4 * len(m.group(1).split()) for m in re.finditer(r'// [0-9A-F]{12}: ([0-9A-F ]+)$', dis, re.M)]
        out = []; off = 0; page = 1; k = 0; masked = False
        for x in a.ins:
            if x.kind not in ('label', 'dir'):
                if off >= 4096 * page and page <= 12 and not masked:
                    out += [Ins(f'Lpage{page}:'), Ins(f's_cbranch_execz Lvis{(page - 1) // 4}')]
                    off += 4; page += 1
                off += sizes[k]; k += 1
                if ('exec', 0) in x.wr: masked = x.text.split(';')[0].strip() != 's_mov_b64 exec, -1'
            out.append(x)
        assert k == len(sizes), (k, len(sizes))
        for pg in range(page, 13): out += [Ins(f'Lpage{pg}:'), Ins(f's_branch Lvis{(pg - 1) // 4}')]
        a.ins = out
    s = head + f'; @launch grid=(256,1,1) block=(256,1,1) lds={LDS_BYTES}\n' + pre + a.text()
    s += f'''.section .rodata,"a"
.p2align 6
.amdhsa_kernel {NAME}
  .amdhsa_next_free_vgpr 512
  .amdhsa_next_free_sgpr 102
  .amdhsa_accum_offset 256
  .amdhsa_group_segment_fixed_size 0
  .amdhsa_kernarg_size 80
  .amdhsa_user_sgpr_count 2
  .amdhsa_user_sgpr_kernarg_segment_ptr 1
  .amdhsa_system_sgpr_workgroup_id_x 1
.end_amdhsa_kernel
'''
    if STAMP: s = '; STAMPS ' + ' '.join(a.names) + '\n' + s
    print(f'instrs={len(a.ins)} nop_states={a.nops} stamps={a.nst}', file=sys.stderr)
    return s

if __name__ == '__main__':
    open(sys.argv[1], 'w').write(gen())
```

```python
import sys, struct, math, os
from asmgen import Asm

DOC = '''
One persistent launch, 256 workgroups (one per CU, 4 waves of 512 registers, all 160 KB of LDS), five phases.
Workgroups hand data to each other through d_ws with write-through (sc1) stores, a drained per-wave flag and sc1 loads.
Flags carry a launch tag = (epoch word found in d_ws) + 1; workgroup 0 advances the epoch once everybody has read it.
 A  LN1 + QKV: K or V of a head pair for 128 tokens, then Q of the own head. LayerNorm is applied after the GEMM:
    rstd * (x W - mean * colsum(W)); Q is pre-scaled by log2(e)/sqrt(28).
 B  attention of (head, 128 queries); the four waves split the keys. exp2(s - m) with m = maximum over the wave's first
    32-key tile (rides in a padded k slot of Q against a column of ones in K); the row sum is a column of ones in V.
    The row sum is checked at run time: outside [2^-64, 2^64] (or NaN) the query tile is redone with the true row maximum (Lfb).
 C  h = x + o wo on 64x64 tiles, split-K over waves; publishes h - rowmean(h) and partial sums for the variance.
 D  gate/up GEMM on the centred rows, rstd folded into silu(gate) * up.
 E  out = h + hh w2 on 64x64 tiles.
Weights are fetched ahead of their phase into LDS / spare registers and transposed by ds_read_b64_tr_b16.
'''
NAME = 'sequential_preLN__mha_block__glu_gated_swiglu__prompt_kernel'
MB = 1 << 20
WS_KV  = 0
WS_O   = 4 * MB
WS_H   = 6 * MB
WS_ST  = 8 * MB
WS_HH  = 9 * MB
WS_FLG = 16 * MB
FL_A = WS_FLG + 0x10000
FL_B = FL_A + 1024 * 128
FL_C = FL_B + 1024 * 128
FL_D1 = FL_C + 1024 * 128
FL_D2 = FL_D1 + 1024 * 128
FL_D3 = FL_D2 + 1024 * 128
FL_W = FL_D3 + 1024 * 128
WS_WB = WS_ST + 0x80000
WS_MH = WS_ST + 0x90000
FLS = 1024 * 128
WS_DBG = 17 * MB
WS_SIZE = 18 * MB

X_BYTES = 2048 * 448 * 2
WQKV_BYTES = 448 * 1344 * 2
WO_BYTES = 448 * 448 * 2
W1_BYTES = 448 * 1792 * 2
W2_BYTES = 1792 * 448 * 2
LDS_BYTES = 163840
MFMA = 'v_mfma_f32_32x32x16_bf16'
STAMP = int(os.environ.get('STAMP', '0'))
OPT = dict(kv.split('=') for kv in os.environ.get('OPT', '').split(',') if kv)
def opt(k, d): return int(OPT.get(k, d))

def f2u(x): return struct.unpack('<I', struct.pack('<f', x))[0]
def fx(x): return hex(f2u(x))
def vr(b, n=1, p='v'): return f'{p}[{b}:{b+n-1}]' if n > 1 else f'{p}{b}'
def sr4(b): return f's[{b}:{b+3}]'

class VA:
    def __init__(self, start, limit): self.n = start; self.limit = limit
    def __call__(self, cnt=1, align=None):
        if align is None: align = 1 if cnt == 1 else (2 if cnt == 2 else 4)
        self.n = (self.n + align - 1) // align * align
        b = self.n; self.n += cnt
        assert self.n <= self.limit, f'out of registers {self.n} > {self.limit}'
        return b

class K(Asm):
    def __init__(self):
        super().__init__(); self.vm = []; self.nst = 0; self.nlab = 0; self.names = []
    def vmem(self, text, tag):
        self(text); self.vm.append(tag)
    def vmwait(self, *tags, lgkm=None):
        idx = [i for i, t in enumerate(self.vm) if t in tags]
        s = ''
        if idx:
            n = len(self.vm) - 1 - max(idx)
            s += f' vmcnt({min(n, 63)})'
            self.vm = self.vm[len(self.vm) - n:] if n else []
        if lgkm is not None: s += f' lgkmcnt({lgkm})'
        if s: self('s_waitcnt' + s)
    def vmall(self):
        self('s_waitcnt vmcnt(0)'); self.vm = []
    def emit(self, x):
        if isinstance(x, tuple):
            if x[0] == 'vm': self.vmem(x[1], x[2])
            elif x[0] == 'wait': self.vmwait(*x[1:])
            elif x[0] == 'call': x[1]()
        else: self(x)
    def stamp(self, name='', real=False):
        if not STAMP: return
        if name and name[0] in 'ABCDEFGHIR' and name[0] not in os.environ.get('STAMPSET', 'AB'): return
        if name in self.names:
            i = self.names.index(name)
        else:
            i = self.nst; self.nst += 1; self.names.append(name)
        assert i < 19
        self(f's_mem{"real" if real else ""}time s[{60+2*i}:{61+2*i}]')
    def newlabel(self, p):
        self.nlab += 1; return f'L{p}{self.nlab}'

S_W = 3
SRD_X = 4; SRD_WQKV = 8; SRD_WS = 12; SRD_A = 16; SRD_B = 20
P_X, P_WQKV, P_WO, P_W1, P_W3, P_W2, P_OUT, P_WS = 32, 34, 36, 40, 42, 44, 46, 50
S_TAG = 24; S_H = 25; S_TB = 26; S_RB = 27; S_CB = 28; S_TD = 29; S_FS = 30; S_J = 31
S_E0 = 38; S_L0 = 39
S_U0 = 48; S_U1 = 49
S_ONES = 52
T0, T1, T2, T3, T4, T5, T6 = 53, 54, 55, 56, 57, 58, 59
S_SPIN = 98
S_ROT = 39
S_DUM = 100
S_RX = 99
S_WG = 32
WROW = 232
MUX = 216
S_R14 = 0; S_RG = 1
V_LANE = 1; V_OFF = 2; V_FL = 3
V_SRC = 212; V_P13 = 213; V_RD = 214
HKEEP = 216
V_SRC2 = 0
XRES = 204
WOV = 224
PAIR = 57344; SCR = 2 * PAIR; SINGLE = SCR + 16384
NHG = 12
RAW5 = 196

def xm(n):
    if n >= 64: return 's_mov_b64 exec, -1'
    if n < 31: return f's_mov_b64 exec, {hex((1 << n) - 1)}'
    lo = '-1' if n >= 32 else hex((1 << n) - 1)
    return f's_mov_b32 exec_lo, {lo}\ns_mov_b32 exec_hi, {hex((1 << max(0, n - 32)) - 1)}'

def srd(a, d, p, nbytes):
    a(f's_mov_b32 s{d}, s{p}\ns_mov_b32 s{d+1}, s{p+1}\ns_mov_b32 s{d+2}, {nbytes}\ns_mov_b32 s{d+3}, 0x20000')

def visit(a, site):
    if not opt('visit', 1): return
    a('s_mov_b64 exec, 0')
    for w in range(4):
        a(f's_cmp_eq_u32 s{S_W}, {w}\ns_cbranch_scc1 Lpage{1 + 4*site + w}')
    a.label(f'Lvis{site}')
    a('s_mov_b64 exec, -1')

def halfsum(a, x, t):
    a(f'v_mov_b32 v{t}, v{x}\nv_permlane32_swap_b32 v{x}, v{t}\nv_add_f32 v{x}, v{x}, v{t}')

def flag_store(a, sreg, vt):
    a(f'v_mov_b32 v{vt}, s{S_TAG}\ns_mov_b64 exec, 1')
    a.vmem(f'buffer_store_dword v{vt}, v{V_OFF}, {sr4(SRD_WS)}, s{sreg} offen sc1', 'flag')
    a('s_mov_b64 exec, -1')

def poll_issue(a, sreg, vaddr, nl, vt):
    a(xm(nl))
    a.vmem(f'buffer_load_dword v{vt}, v{vaddr}, {sr4(SRD_WS)}, s{sreg} offen sc1', 'poll')
    a('s_mov_b64 exec, -1')

def poll_check(a, sreg, vaddr, nl, vt):
    L = a.newlabel('poll'); D = L + 'd'
    a(xm(nl) + f'\ns_mov_b32 s{S_SPIN}, 0x40000')
    a.vmwait('poll')
    a(f'v_cmp_ne_u32 vcc, s{S_TAG}, v{vt}\ns_cbranch_vccz {D}')
    a.label(L)
    a(f'''
    {f"s_sleep {opt('sleep', 0)}" if opt('sleep', 0) else ''}
    buffer_load_dword v{vt}, v{vaddr}, {sr4(SRD_WS)}, s{sreg} offen sc1
    s_sub_u32 s{S_SPIN}, s{S_SPIN}, 1
    s_waitcnt vmcnt(0)
    s_cbranch_scc1 {D}
    v_cmp_ne_u32 vcc, s{S_TAG}, v{vt}
    s_cbranch_vccnz {L}
    ''')
    a.label(D)
    a('s_mov_b64 exec, -1')

def ssrd(a, D, lim, pa, pb, na, nb, per, u0, u1):
    a(f'''
    s_lshl_b32 s{u0}, s2, 2
    s_add_u32 s{u0}, s{u0}, s{S_W}
    s_mov_b32 s{D+2}, {na}
    s_cmp_ge_u32 s{u0}, {lim}
    s_cselect_b32 s{D}, s{pb}, s{pa}
    s_cselect_b32 s{D+1}, s{pb+1}, s{pa+1}
    s_cselect_b32 s{D+2}, {nb}, s{D+2}
    s_cselect_b32 s{u1}, {lim}, 0
    s_sub_u32 s{u0}, s{u0}, s{u1}
    s_mul_i32 s{u0}, s{u0}, {per}
    s_min_u32 s{u0}, s{u0}, s{D+2}
    s_sub_u32 s{D+2}, s{D+2}, s{u0}
    s_add_u32 s{D}, s{D}, s{u0}
    s_addc_u32 s{D+1}, s{D+1}, 0
    s_mov_b32 s{D+3}, 0x20000
    ''')

def sld(D, o): return f's_buffer_load_dwordx2 s[{S_DUM}:{S_DUM+1}], {sr4(D)}, {o + 60}'

def phase_a(a, R):
    WR = 114688
    WQ = 16384
    CSP = WR + 5 * 8192
    PRV = CSP + 1536
    QX = 49152
    assert PRV + 2048 <= LDS_BYTES
    R['QX'] = QX
    Q0 = R['Q'][0]
    va = VA(4, 256)
    ACC = [va(16), va(16)]; accQ = va(16)
    PK = va(8); assert PK == Q0, (PK, Q0)
    X = [va(4) for _ in range(28)]
    NWF = 4
    WF = [[va(4) for j in range(2)] for b in range(NWF)]
    vx = [va(), va()]; vw = [va(), va()]
    ax = [va() for _ in range(4)]; aw = [va() for _ in range(4)]; ab = [va() for _ in range(4)]
    pr = [va(2) for _ in range(6)]
    cs = [pr[0], pr[1], pr[2]]; mu = pr[3]; rs = pr[4]; rq = pr[5]
    sm = [pr[0] + 1, pr[1] + 1]; sq = [pr[2] + 1, pr[3] + 1]
    hf = pr[4] + 1; n31 = pr[5] + 1
    vq = va()
    t = [va() for _ in range(7)] + [0]
    dB = t[7]
    assert va.n <= 240, va.n
    T16 = 240; U16 = accQ
    a(f'v_lshrrev_b32 v{hf}, 5, v{V_LANE}\nv_and_b32 v{n31}, 31, v{V_LANE}')
    for i in range(2):
        a(f'''
        v_lshrrev_b32 v{t[0]}, 3, v{V_LANE}
        v_add_u32 v{t[0]}, {8*i}, v{t[0]}
        v_lshrrev_b32 v{t[1]}, 1, v{t[0]}
        v_and_b32 v{t[1]}, 7, v{t[1]}
        v_and_b32 v{t[2]}, 7, v{V_LANE}
        v_xor_b32 v{t[1]}, v{t[1]}, v{t[2]}
        v_lshlrev_b32 v{t[1]}, 4, v{t[1]}
        v_mul_u32_u24 v{t[0]}, 896, v{t[0]}
        v_add_u32 v{vx[i]}, v{t[0]}, v{t[1]}
        ''')
    a(f'''
    v_subrev_u32 v{vx[1]}, 1024, v{vx[1]}
    v_lshrrev_b32 v{t[0]}, 3, v{V_LANE}
    v_lshrrev_b32 v{t[1]}, 2, v{V_LANE}
    v_and_b32 v{t[1]}, 4, v{t[1]}
    v_xor_b32 v{t[1]}, v{t[1]}, v{t[2]}
    v_min_u32 v{t[1]}, 6, v{t[1]}
    v_mul_u32_u24 v{t[0]}, 2688, v{t[0]}
    v_lshl_add_u32 v{vw[0]}, v{t[1]}, 4, v{t[0]}
    v_add_u32 v{vw[1]}, {8*2688 - 1024}, v{vw[0]}
    ''')
    SX, SW, LX, LW = T3, T4, T5, T6
    a(f'''
    s_lshl_b32 s{SX}, s{S_TB}, 2
    s_add_u32 s{SX}, s{SX}, s{S_W}
    s_mul_i32 s{SX}, s{SX}, {32*896}
    s_mul_i32 s{SW}, s{S_W}, {16*2688}
    s_lshr_b32 s{T0}, s{S_H}, 1
    s_mul_i32 s{T0}, s{T0}, 112
    s_add_u32 s{SW}, s{SW}, s{T0}
    s_and_b32 s{T0}, s{S_H}, 1
    s_mul_i32 s{T0}, s{T0}, 896
    s_add_u32 s{SW}, s{SW}, s{T0}
    s_add_u32 s{SW}, s{SW}, 896
    s_mul_i32 s{LX}, s{S_W}, 28672
    s_lshl_b32 s{LW}, s{S_W}, 11
    ''')
    def w_items(c):
        lds = WR + c * 8192 if c < 5 else (c - 5) * 8192
        return [[f's_add_u32 m0, s{LW}, {lds}', f's_mul_i32 s{T0}, s{S_ROT}, {64*2688}', f's_add_u32 s{T0}, s{T0}, s{SW}',
                 ('vm', f'buffer_load_dwordx4 v{vw[0]}, {sr4(SRD_WQKV)}, s{T0} offen lds', f'w{c}')],
                [('vm', f'buffer_load_dwordx4 v{vw[1]}, {sr4(SRD_WQKV)}, s{T0} offen offset:1024 lds', f'w{c}'),
                 f's_add_u32 s{S_ROT}, s{S_ROT}, 1', f's_cmp_eq_u32 s{S_ROT}, 7', f's_cselect_b32 s{S_ROT}, 0, s{S_ROT}']]
    def x_items(c):
        out = []
        for i in range(4):
            out.append(([f's_add_u32 m0, s{LX}, {c*4096}', f's_add_u32 s{T0}, s{S_RX}, s{SX}'] if i == 0 else []) +
                       ([f's_add_u32 s{T0}, s{T0}, 12288'] if i == 2 else []) +
                       [('vm', f'buffer_load_dwordx4 v{vx[i&1]}, {sr4(SRD_X)}, s{T0} offen offset:{1024*i} lds', f'x{c}')] +
                       ([f's_add_u32 s{S_RX}, s{S_RX}, 128', f's_cmp_eq_u32 s{S_RX}, 896', f's_cselect_b32 s{S_RX}, 0, s{S_RX}'] if i == 3 else []))
        return out
    def put(items):
        for it in items:
            for x in it: a.emit(x)
    a.stamp('G_karg')
    NPRE = opt('npre', 2)
    a(f'''
    s_lshr_b32 s{T2}, s{S_J}, 3
    s_mul_i32 s{T2}, s{T2}, {opt('rotm', 2)}
    s_and_b32 s{T0}, s{S_J}, 7
    s_add_u32 s{T2}, s{T2}, s{T0}
    s_mul_i32 s{T0}, s{T2}, 37
    s_lshr_b32 s{T0}, s{T0}, 8
    s_mul_i32 s{T0}, s{T0}, 7
    s_sub_u32 s{T2}, s{T2}, s{T0}
    s_lshl_b32 s{S_DUM}, s{T2}, 2
    s_lshl_b32 s{S_RX}, s{T2}, 7
    s_mov_b32 s{SRD_X+2}, {X_BYTES}
    s_mov_b32 s{SRD_X+3}, 0x20000
    s_waitcnt lgkmcnt(0)
    s_mov_b32 s{SRD_X}, s{P_X}
    s_mov_b32 s{SRD_X+1}, s{P_X+1}
    s_mov_b32 s{S_ROT}, s{T2}
    ''')
    put(x_items(0))
    srd(a, SRD_WQKV, P_WQKV, WQKV_BYTES)
    srd(a, SRD_B, P_WO, WO_BYTES)
    a(f'''
    s_lshl_b32 s{S_WG}, s{S_H}, 4
    s_add_u32 s{S_WG}, s{S_WG}, s{S_TB}
    s_lshl_b32 s{T1}, s{S_W}, 7
    s_add_u32 s{T1}, s{T1}, s{S_WG}
    s_cmp_lt_u32 s{T1}, 112
    s_cselect_b32 s{S_WG}, s{S_WG}, 0x100000
    s_mul_i32 s{S_WG+1}, s{S_WG}, {4*896 // 16}
    s_lshl_b32 s{S_WG+1}, s{S_WG+1}, 4
    s_min_u32 s{S_WG+1}, s{S_WG+1}, 0x40000000
    ''')
    def wrow_items():
        return [[f'v_cmp_gt_u32 vcc, 56, v{V_LANE}', f'v_mov_b32 v{t[5]}, 0x40000000', 's_nop 0', f'v_cndmask_b32 v{t[5]}, v{t[5]}, v{V_OFF}, vcc']] + \
               [[('vm', f'buffer_load_dwordx4 {vr(WROW+4*i,4,"a")}, v{t[5]}, {sr4(SRD_B)}, s{S_WG+1} offen offset:{896*i}', 'wrow')] for i in range(4)]
    put(wrow_items() + w_items(0) + w_items(1))
    for c in range(1, NPRE): put(x_items(c))
    a.stamp('G_dma0')
    assert T1 % 2 == 0 and T2 == T1 + 1
    a(f's_add_u32 s{T1}, s{P_WS}, {WS_FLG}\ns_addc_u32 s{T2}, s{P_WS+1}, 0\ns_load_dword s{S_TAG}, s[{T1}:{T2}], 0')
    srd(a, SRD_WS, P_WS, WS_SIZE)
    def touch_item():
        TA, TB, TC = T1, T2, T0
        return [f's_lshl_b32 s{TA}, s2, 2', f's_add_u32 s{TA}, s{TA}, s{S_W}', f's_mul_i32 s{TB}, s{TA}, 1338', f's_lshr_b32 s{TB}, s{TB}, 18',
                f's_mul_i32 s{TC}, s{TB}, 196', f's_sub_u32 s{TA}, s{TA}, s{TC}', f's_lshl_b32 s{TA}, s{TA}, 13',
                f's_cmp_eq_u32 s{TB}, 1', f's_cselect_b32 s{SRD_A}, s{P_W3}, s{P_W1}', f's_cselect_b32 s{SRD_A+1}, s{P_W3+1}, s{P_W1+1}',
                f's_cmp_eq_u32 s{TB}, 2', f's_cselect_b32 s{SRD_A}, s{P_W2}, s{SRD_A}', f's_cselect_b32 s{SRD_A+1}, s{P_W2+1}, s{SRD_A+1}',
                f's_mov_b32 s{SRD_A+2}, {W1_BYTES}',
                f's_cmp_eq_u32 s{TB}, 3', f's_cselect_b32 s{SRD_A}, s{P_WO}, s{SRD_A}', f's_cselect_b32 s{SRD_A+1}, s{P_WO+1}, s{SRD_A+1}',
                f's_cselect_b32 s{SRD_A+2}, {WO_BYTES}, s{SRD_A+2}',
                f's_cmp_gt_u32 s{TB}, 3', f's_cselect_b32 s{SRD_A+2}, 0, s{SRD_A+2}', f's_mov_b32 s{SRD_A+3}, 0x20000',
                ('vm', f'buffer_load_dword a0, v{V_FL}, {sr4(SRD_A)}, s{TA} offen', 'touch')]
    def prew():
        a(f'''
        v_mov_b32 v{t[7]}, s{S_TAG}
        v_add_u32 v{t[7]}, -1, v{t[7]}
        v_lshlrev_b32 v{t[5]}, 2, v{V_LANE}
        {xm(32)}
        s_lshr_b32 s{T1}, s{S_H}, 1
        s_lshl_b32 s{T1}, s{T1}, 2
        s_add_u32 s{T1}, s{T1}, s{S_W}
        s_lshl_b32 s{T1}, s{T1}, 1
        s_and_b32 s{T2}, s{S_H}, 1
        s_add_u32 s{T1}, s{T1}, s{T2}
        s_lshl_b32 s{T1}, s{T1}, 4
        s_add_u32 s{T1}, s{T1}, s{S_TB}
        s_lshl_b32 s{T1}, s{T1}, 7
        s_add_u32 s{T1}, s{T1}, {FL_A}
        ''')
        st_ = lambda: a.vmem(f'buffer_store_dword v{t[7]}, v{t[5]}, {sr4(SRD_WS)}, s{T1} offen sc1', 'prew')
        st_()
        a(f's_lshl_b32 s{T1}, s{S_TB}, 2\ns_add_u32 s{T1}, s{T1}, s{S_W}\ns_lshl_b32 s{T1}, s{T1}, 4\ns_add_u32 s{T1}, s{T1}, s{S_H}\ns_lshl_b32 s{T1}, s{T1}, 7\ns_add_u32 s{T1}, s{T1}, {FL_B}')
        st_()
        a(f's_lshl_b32 s{T1}, s{S_TD}, 2\ns_add_u32 s{T1}, s{T1}, s{S_W}\ns_lshl_b32 s{T1}, s{T1}, 4\ns_add_u32 s{T1}, s{T1}, s{S_FS}\ns_lshl_b32 s{T1}, s{T1}, 7\ns_add_u32 s{T1}, s{T1}, {FL_D1}')
        for i in range(3):
            st_(); a(f's_add_u32 s{T1}, s{T1}, {FLS}')
        a(f's_lshl_b32 s{T1}, s{S_WG}, 7\ns_add_u32 s{T1}, s{T1}, {FL_W}')
        st_()
        a(f'''
        s_lshl_b32 s{T1}, s{S_RB}, 1
        s_and_b32 s{T2}, s{S_W}, 1
        s_add_u32 s{T1}, s{T1}, s{T2}
        s_lshl_b32 s{T1}, s{T1}, 3
        s_add_u32 s{T1}, s{T1}, s{S_CB}
        s_lshl_b32 s{T1}, s{T1}, 1
        s_lshr_b32 s{T2}, s{S_W}, 1
        s_add_u32 s{T1}, s{T1}, s{T2}
        s_lshl_b32 s{T1}, s{T1}, 7
        s_add_u32 s{T1}, s{T1}, {FL_C}
        s_cmp_ge_u32 s{S_J}, 28
        s_cselect_b32 s{T1}, 0x40000000, s{T1}
        ''')
        st_()
        a('s_mov_b64 exec, -1')
        if opt('tlb', 0):
            st = opt('tlb', 0) * 1024
            a(f'v_mul_u32_u24 v{t[5]}, {st // 64}, v{V_LANE}\nv_lshlrev_b32 v{t[5]}, 6, v{t[5]}\ns_mov_b32 s{T1}, {opt("tlbo", 0)}')
            a.vmem(f'buffer_load_dword a5, v{t[5]}, {sr4(SRD_WS)}, s{T1} offen', 'tlb')
            if opt('tlbout', 0):
                srd(a, SRD_B, P_OUT, X_BYTES)
                a.vmem(f'buffer_load_dword a6, v{t[5]}, {sr4(SRD_B)}, 0 offen', 'tlb')
    def dmaq_items():
        out = []
        for i in range(7):
            out.append([] +
                       [f's_add_u32 m0, s{S_U0}, {i*1024}', f's_mul_i32 s{T0}, s{S_U1}, {16*2688}', f's_add_u32 s{T0}, s{T0}, s{S_E0}',
                        ('vm', f'buffer_load_dwordx4 v{vq}, {sr4(SRD_WQKV)}, s{T0} offen lds', 'wq'),
                        f's_add_u32 s{S_U1}, s{S_U1}, 1', f's_cmp_eq_u32 s{S_U1}, 28', f's_cselect_b32 s{S_U1}, 0, s{S_U1}'])
        return out
    a(f'''
    s_mul_i32 s{S_U0}, s{S_W}, {7*1024}
    s_add_u32 s{S_U0}, s{S_U0}, {WQ}
    s_mul_i32 s{S_U1}, s{S_W}, 7
    s_add_u32 s{S_U1}, s{S_U1}, s{S_DUM}
    s_cmp_ge_u32 s{S_U1}, 28
    s_cselect_b32 s{T0}, 28, 0
    s_sub_u32 s{S_U1}, s{S_U1}, s{T0}
    s_mul_i32 s{S_E0}, s{S_H}, 56
    ''')
    a(f'''
    v_lshrrev_b32 v{t[0]}, 2, v{V_LANE}
    v_mul_u32_u24 v{t[0]}, 2688, v{t[0]}
    v_and_b32 v{t[3]}, 3, v{V_LANE}
    v_lshl_add_u32 v{vq}, v{t[3]}, 4, v{t[0]}
    v_lshrrev_b32 v{t[0]}, 1, v{n31}
    v_and_b32 v{t[0]}, 7, v{t[0]}
    v_lshlrev_b32 v{t[1]}, 7, v{n31}
    v_add_u32 v{t[1]}, s{LX}, v{t[1]}
    v_bfe_u32 v{t[2]}, v{V_LANE}, 4, 1
    v_lshlrev_b32 v{t[2]}, 5, v{t[2]}
    v_lshl_add_u32 v{t[2]}, v{t[3]}, 3, v{t[2]}       ; cg*32 + c4*8
    v_bfe_u32 v{t[3]}, v{V_LANE}, 2, 2                ; r
    v_lshl_add_u32 v{t[5]}, v{hf}, 3, v{t[3]}         ; 8hf + r
    v_lshl_add_u32 v{t[6]}, v{t[5]}, 6, v{t[2]}
    v_bfe_u32 v{t[3]}, v{V_LANE}, 3, 1
    v_lshlrev_b32 v{t[3]}, 6, v{t[3]}                 ; 64*bit
    v_add_u32 v{t[4]}, 56, v{t[2]}
    v_xor_b32 v{t[4]}, v{t[4]}, v{t[3]}
    v_xor_b32 v{t[2]}, v{t[2]}, v{t[3]}
    v_sub_u32 v{dB}, v{t[4]}, v{t[2]}
    v_lshl_add_u32 v{t[2]}, v{t[5]}, 7, v{t[2]}
    v_add_u32 v{t[2]}, {WR}, v{t[2]}
    ''')
    AQ = t[6]
    for n in range(4):
        a(f'''
        s_add_u32 s{T0}, s{S_W}, {n}
        s_and_b32 s{T0}, s{T0}, 3
        s_lshl_b32 s{T1}, s{T0}, 1
        v_add_u32 v{t[4]}, s{T1}, v{hf}
        v_xor_b32 v{t[4]}, v{t[4]}, v{t[0]}
        v_lshl_add_u32 v{ax[n]}, v{t[4]}, 4, v{t[1]}
        s_lshl_b32 s{T1}, s{T0}, 11
        v_add_u32 v{aw[n]}, s{T1}, v{t[2]}
        v_add_u32 v{ab[n]}, v{dB}, v{aw[n]}
        ''')
    for r in sm + sq + cs: a(f'v_mov_b32 v{r}, 0')
    a(f's_mov_b32 s{S_ONES}, 0x3f803f80')
    PA = t[0]; CA = t[1]; CR = t[2]; PB = vx[0]
    if opt('spre', 1):
        ssrd(a, SRD_A, 512, P_W1, P_W3, W1_BYTES, W1_BYTES, 3200, T1, T2)
    if opt('wqt', 0):
        a(f'''
        s_lshr_b32 s{T1}, s{S_J}, 3
        s_lshl_b32 s{T1}, s{T1}, 2
        s_add_u32 s{T1}, s{T1}, s{S_W}
        s_mul_i32 s{T1}, s{T1}, {28*2688}
        s_add_u32 s{T1}, s{T1}, s{S_E0}
        v_lshrrev_b32 v{t[5]}, 1, v{V_LANE}
        v_mul_u32_u24 v{t[5]}, 2688, v{t[5]}
        v_and_b32 v{t[4]}, 1, v{V_LANE}
        v_mul_u32_u24 v{t[4]}, 60, v{t[4]}
        v_add_u32 v{t[5]}, v{t[5]}, v{t[4]}
        {xm(56)}
        ''')
        a.vmem(f'buffer_load_dword a5, v{t[5]}, {sr4(SRD_WQKV)}, s{T1} offen', 'wqt')
        a('s_mov_b64 exec, -1')
    visit(a, 0)
    a.stamp('A_issued')
    ONE = PK; assert ONE % 2 == 0
    for i in range(4): a(f'v_mov_b32 v{ONE+i}, s{S_ONES}')
    steps = list(range(20)) + [20, 24, 21, 22, 23, 25, 26, 27]
    def reads(p_):
        s_ = steps[p_]; c, n = divmod(s_, 4); b = p_ % NWF; off = (c if c < 5 else c - 5) * 8192
        return [f'ds_read_b64_tr_b16 {vr(WF[b][0]+2*u,2)}, v{aw[n]} offset:{off + u*512}' for u in range(2)] + \
               [f'ds_read_b64_tr_b16 {vr(WF[b][1]+2*u,2)}, v{ab[n]} offset:{off + u*512}' for u in range(2)]
    hs = lambda x, tt: [f'v_mov_b32 v{tt}, v{x}', f'v_permlane32_swap_b32 v{x}, v{tt}', f'v_add_f32 v{x}, v{x}, v{tt}']
    CS = [accQ, T16]
    def dots(c, side):
        for n in range(4):
            x = X[4*c+n]
            for i in range(4):
                a(f'v_dot2c_f32_bf16 v{sm[i&1]}, s{S_ONES}, v{x+i}')
                a(f'v_dot2c_f32_bf16 v{sq[i&1]}, v{x+i}, v{x+i}')
            side()
    def xread(c):
        for n in range(4): a(f'ds_read_b128 {vr(X[4*c+n],4)}, v{ax[n]} offset:{c*4096}')
    a.vmwait('x0', lgkm=0)
    a.stamp('A_c0'); a(f's_add_u32 s{S_TAG}, s{S_TAG}, 1')
    xread(0)
    if opt('prew', 1): prew()
    a(f's_bitcmp1_b32 s{S_H}, 0\ns_cbranch_scc1 LAV')
    vm0 = list(a.vm)
    for typ in range(2):
        if typ == 1:
            a.label('LAV'); a.vm = list(vm0)
        NQE = 7
        def mf(p_, j):
            x = X[steps[p_]]; b = p_ % NWF
            A_, B_ = (WF[b][j], x) if typ == 0 else (x, WF[b][j])
            return f'{MFMA} {vr(ACC[j],16)}, {vr(A_,4)}, {vr(B_,4)}, {vr(ACC[j],16) if p_ else 0}'
        def mlist(p_):
            M = [mf(p_, 0), mf(p_, 1)]
            if steps[p_] % 4 == 0:
                M = [f'{MFMA} {vr(CS[j],16)}, {vr(ONE,4)}, {vr(WF[p_ % NWF][j],4)}, {vr(CS[j],16) if p_ else 0}' for j in range(2)] + M
            return M
        q_dma = []
        for c in range(NPRE, 5): q_dma += x_items(c)
        q_dma += w_items(2) + x_items(5) + x_items(6) + w_items(3) + w_items(4)
        def side1(k=opt('dmaper', 2)):
            for _ in range(k):
                if q_dma: put([q_dma.pop(0)])
        side1(4)
        for c in range(1, 7):
            while any(isinstance(x, tuple) and x[2] == f'x{c}' for it in q_dma for x in it): put([q_dma.pop(0)])
            a.vmwait(f'x{c}'); a.stamp(f'G_x{c}')
            xread(c)
            if c == 1:
                a('s_barrier')
                for x in reads(0) + reads(1): a(x)
                a('s_waitcnt lgkmcnt(12)')
            elif c == 6:
                put(q_dma); q_dma = []
                a('s_waitcnt lgkmcnt(0)\ns_barrier')
                a.stamp('A_x')
                for x in reads(8) + reads(9): a(x)
                put(w_items(5))
            else:
                a('s_waitcnt lgkmcnt(4)')
            dots(c - 1, side1)
            if c in (1, 2):
                for p_ in range(4 * (c - 1), 4 * c):
                    a('s_waitcnt lgkmcnt(4)' if p_ < 7 else 's_waitcnt lgkmcnt(0)')
                    rd = reads(p_ + 2) if p_ + 2 < 8 else []
                    M = mlist(p_)
                    for k_, m_ in enumerate(M):
                        a(m_)
                        if k_ >= len(M) - 2:
                            for y in (rd[:2] if k_ == len(M) - 2 else rd[2:]): a(y)
                        side1(1)
        dots(6, lambda: None)
        q2 = w_items(6) + dmaq_items()
        ex = [f'v_add_f32 v{sm[0]}, v{sm[0]}, v{sm[1]}', f'v_add_f32 v{sq[0]}, v{sq[0]}, v{sq[1]}'] + hs(sm[0], t[3]) + hs(sq[0], t[4]) + [
              f'v_mul_f32 v{mu}, {fx(1.0/448)}, v{sm[0]}', f'v_mul_f32 v{t[3]}, {fx(1.0/448)}, v{sq[0]}',
              f'v_fma_f32 v{t[3]}, -v{mu}, v{mu}, v{t[3]}', f'v_max_f32 v{t[3]}, 0, v{t[3]}', f'v_add_f32 v{t[3]}, {fx(1e-5)}, v{t[3]}',
              f'v_rsq_f32 v{rs}, v{t[3]}', f'v_lshlrev_b32 v{t[4]}, 2, v{n31}',
              f's_lshl_b32 s{T2}, s{S_W}, 9', f's_add_u32 s{T2}, s{T2}, {PRV}',
              f'v_add_u32 v{PA}, s{T2}, v{t[4]}', f'v_lshlrev_b32 v{PB}, 4, v{hf}', f'v_add_u32 v{PB}, s{T2}, v{PB}',
              f's_mul_i32 s{T2}, s{S_W}, 384', f's_add_u32 s{T2}, s{T2}, {CSP}', f'v_add_u32 v{CA}, s{T2}, v{t[4]}',
              f'v_mul_u32_u24 v{CR}, 768, v{hf}', f'v_add_u32 v{CR}, v{CR}, v{t[4]}', f'v_add_u32 v{CR}, {CSP}, v{CR}',
              f'v_mul_f32 v{rq}, {fx(28**-0.5 * math.log2(math.e))}, v{rs}']
        for p_ in range(8, 28):
            if p_ == 10:
                a.vmwait('w4', lgkm=0); a('s_barrier'); a.stamp('G_w4')
            elif p_ == 18:
                while any(isinstance(x, tuple) and x[0] == 'vm' and x[2] == 'w6' for it in q2 for x in it): put([q2.pop(0)])
                a.vmwait('w6', lgkm=0); a('s_barrier'); a.stamp('G_w6')
                for n in range(4): a(f'v_subrev_u32 v{aw[n]}, {WR}, v{aw[n]}\nv_subrev_u32 v{ab[n]}, {WR}, v{ab[n]}')
            elif p_ <= 22: a('s_waitcnt lgkmcnt(4)')
            elif p_ == 23: pass
            rd = reads(p_ + 2) if p_ + 2 < 28 and p_ < 21 else []
            if p_ == 21: rd = reads(23) + reads(24)
            M = mlist(p_)
            if p_ == 22:
                assert not ex
                ex = [f'ds_write_b32 v{CA}, v{CS[0]} offset:128', f'ds_write_b32 v{CA}, v{CS[1]} offset:256']
                if typ == 1: ex += [f'ds_write_b32 v{PA}, v{mu} offset:256', f'ds_write_b32 v{PA}, v{rs} offset:384']
                ex += reads(25) + ['s_waitcnt lgkmcnt(0)', 's_barrier'] + reads(26) + reads(27)
                for j in (1, 2): ex += [f'ds_read_b32 v{cs[j]}, v{CR} offset:{j*128}', f'ds_read_b32 v{t[3+j]}, v{CR} offset:{384 + j*128}']
                if typ == 1:
                    for q in range(4): ex += [f'ds_read_b128 {vr(T16+4*q,4)}, v{PB} offset:{256 + 32*q}', f'ds_read_b128 {vr(U16+4*q,4)}, v{PB} offset:{384 + 32*q}']
                    ex += ['s_waitcnt lgkmcnt(8)']
                else: ex += ['s_waitcnt lgkmcnt(0)']
                tail = [f'v_add_f32 v{cs[j]}, v{cs[j]}, v{t[3+j]}' for j in (1, 2)] + hs(cs[1], t[3]) + hs(cs[2], t[4])
                if typ == 0:
                    tail += [f'ds_write_b32 v{PA}, v{cs[1]}', f'ds_write_b32 v{PA}, v{cs[2]} offset:128']
                    tail += [f'ds_read_b128 {vr(T16+4*q,4)}, v{PB} offset:{32*q}' for q in range(4)]
                    tail += [f'ds_read_b128 {vr(U16+4*q,4)}, v{PB} offset:{128 + 32*q}' for q in range(4)]
                    tail += [f'v_cmp_lt_u32 vcc, 31, v{V_LANE}']
                else:
                    tail += [f'v_cmp_eq_u32 vcc, 28, v{n31}', f'v_mov_b32 v{t[7]}, s{S_ONES}', f'v_cndmask_b32 v{t[7]}, 0, v{t[7]}, vcc', f'v_cmp_lt_u32 vcc, 27, v{n31}']
                tail += [f's_lshl_b32 s{T0}, s{S_TB}, 2', f's_add_u32 s{T0}, s{T0}, s{S_W}', f's_and_b32 s{T1}, s{S_H}, 14', f's_lshl_b32 s{T1}, s{T1}, 6',
                         f's_add_u32 s{T0}, s{T0}, s{T1}', f's_lshl_b32 s{T0}, s{T0}, 12', f's_add_u32 s{T1}, s{T0}, {64*4096}']
            if p_ == 26:
                for x in ex: a(x)
                ex = tail
            for k_, m_ in enumerate(M):
                a(m_)
                if k_ >= len(M) - 2:
                    h_ = (len(rd) + 1) // 2
                    for y in (rd[:h_] if k_ == len(M) - 2 else rd[h_:]): a(y)
                if p_ < 22:
                    for x in ex[:3]: a(x)
                    ex = ex[3:]
                    if q2 and k_ == len(M) - 1 and (len(q2) > 7 or p_ >= opt('wq0', 10)): put([q2.pop(0)])
                else:
                    lim = {22: 4, 23: 4, 24: 100, 25: 100, 26: 8, 27: 8}[p_]
                    if p_ in (24, 25):
                        lim = 6
                    for x in ex[:lim]: a(x)
                    ex = ex[lim:]
        for x in ex: a(x)
        assert not q2
        a.stamp('A_kvloop')
        NEG1 = 'op_sel_hi:[1,0,1] neg_lo:[0,1,0] neg_hi:[0,1,0]'
        for j in range(2):
            A_ = ACC[j]; P_ = WF[j][0]
            if typ == 0:
                a(f's_waitcnt lgkmcnt({4*(1-j)})')
                C_ = (T16, U16)[j]
                for r in range(0, 16, 2): a(f'v_pk_fma_f32 {vr(A_+r,2)}, {vr(C_+r,2)}, {vr(mu,2)}, {vr(A_+r,2)} {NEG1}')
                for r in range(0, 16, 2): a(f'v_pk_mul_f32 {vr(A_+r,2)}, {vr(A_+r,2)}, {vr(rs,2)} op_sel_hi:[1,0]')
                for i in range(8): a(f'v_cvt_pk_bf16_f32 v{P_+i}, v{A_+2*i}, v{A_+2*i+1}')
                if j == 0: a(f'v_mov_b32 v{t[3]}, s{S_ONES}\nv_mov_b32 v{t[4]}, 0x3f80')
                a(f'v_cndmask_b32 v{P_+6}, v{P_+6}, v{t[3]}, vcc\nv_cndmask_b32 v{P_+7}, v{P_+7}, v{t[4]}, vcc')
            else:
                if j == 0: a('s_waitcnt lgkmcnt(0)')
                for r in range(0, 16, 2): a(f'v_pk_fma_f32 {vr(A_+r,2)}, {vr(T16+r,2)}, {vr(cs[1+j],2)}, {vr(A_+r,2)} {NEG1}')
                for r in range(0, 16, 2): a(f'v_pk_mul_f32 {vr(A_+r,2)}, {vr(A_+r,2)}, {vr(U16+r,2)}')
                for i in range(8): a(f'v_cvt_pk_bf16_f32 v{P_+i}, v{A_+2*i}, v{A_+2*i+1}')
                for i in range(8): a(f'v_cndmask_b32 v{P_+i}, v{P_+i}, v{t[7]}, vcc')
            for u in range(2):
                a.vmem(f'buffer_store_dwordx4 {vr(P_+4*u,4)}, v{V_OFF}, {sr4(SRD_WS)}, s{(T0, T1)[j]} offen offset:{2048*typ + 1024*u} sc1', 'stA')
        if typ == 0: a('s_branch LAQ')
    a.label('LAQ')
    (a.stamp('A_kvst'), a.stamp('R_A_kvstc'), a.stamp('R_A_kvstr', True))
    aq = aw
    for n in range(4):
        a(f'''
        s_add_u32 s{T0}, s{S_W}, {n}
        s_and_b32 s{T0}, s{T0}, 3
        s_lshl_b32 s{T0}, s{T0}, 10
        s_add_u32 s{T0}, s{T0}, {WQ}
        v_add_u32 v{aq[n]}, s{T0}, v{AQ}
        ''')
    a(f'''
    s_lshr_b32 s{T1}, s{S_H}, 1
    s_lshl_b32 s{T1}, s{T1}, 2
    s_add_u32 s{T1}, s{T1}, s{S_W}
    s_lshl_b32 s{T1}, s{T1}, 12
    s_add_u32 s{T5}, s{T1}, {FL_A}
    s_and_b32 s{T1}, s{S_H}, 1
    s_lshl_b32 s{T1}, s{T1}, 4
    s_add_u32 s{T1}, s{T1}, s{S_TB}
    s_lshl_b32 s{T1}, s{T1}, 7
    s_add_u32 s{T1}, s{T5}, s{T1}
    ''')
    def publish():
        a.vmwait('stA'); flag_store(a, T1, t[3]); a.stamp('A_flag')
    FAQ = opt('fAq', 7)
    for i, it in enumerate(dmaq_items()):
        if i >= NQE:
            for x in it: a.emit(x)
        if i == FAQ: publish()
    a.vmwait('wq'); a('s_barrier')
    a.stamp('A_wq')
    QB = [ACC[0] + 4*i for i in range(8)]
    NQ = 8
    qs = [4*c for c in range(7)] + [4*c + n for c in range(7) for n in (1, 2, 3)]
    def rdq(p_):
        c, n = divmod(qs[p_], 4)
        return [f'ds_read_b64_tr_b16 {vr(QB[p_ % NQ]+2*u,2)}, v{aq[n]} offset:{c*4096 + u*256}' for u in range(2)]
    AH = 5
    for p_ in range(AH):
        for x in rdq(p_): a(x)
    ex = []
    extra = 0
    for p_ in range(28):
        if p_ < 9 or p_ > 16:
            a(f's_waitcnt lgkmcnt({2 * (min(28, p_ + AH) - p_ - 1)})')
        else:
            a('s_waitcnt lgkmcnt(4)')
        if p_ < 7: a(f'{MFMA} {vr(T16,16)}, {vr(ONE,4)}, {vr(QB[p_ % NQ],4)}, {vr(T16,16) if p_ else 0}')
        a(f'{MFMA} {vr(accQ,16)}, {vr(QB[p_ % NQ],4)}, {vr(X[qs[p_]],4)}, {vr(accQ,16) if p_ else 0}')
        if p_ + AH < 28:
            for x in rdq(p_ + AH): a(x)
        if p_ == 9: a(f'ds_write_b32 v{CA}, v{T16}')
        if p_ == 11: a(f's_waitcnt lgkmcnt(4)\ns_barrier\nds_read_b32 v{cs[0]}, v{CR}\nds_read_b32 v{t[4]}, v{CR} offset:384')
        if p_ == 14:
            for x in [f'v_add_f32 v{cs[0]}, v{cs[0]}, v{t[4]}'] + hs(cs[0], t[4]) + [f'ds_write_b32 v{PA}, v{cs[0]}']: a(x)
        if p_ == 15:
            for q in range(4): a(f'ds_read_b128 {vr(T16+4*q,4)}, v{PB} offset:{32*q}')
        if p_ == opt('fAs', 15) and FAQ > 6: publish()
    a(f'v_cmp_lt_u32 vcc, 31, v{V_LANE}')
    if opt('pollA', 1) == 2: poll_issue(a, T5, V_FL, 32, R['t'][0])
    a('s_waitcnt lgkmcnt(0)')
    NEG1 = 'op_sel_hi:[1,0,1] neg_lo:[0,1,0] neg_hi:[0,1,0]'
    for r in range(0, 16, 2): a(f'v_pk_fma_f32 {vr(accQ+r,2)}, {vr(T16+r,2)}, {vr(mu,2)}, {vr(accQ+r,2)} {NEG1}')
    for r in range(0, 16, 2): a(f'v_pk_mul_f32 {vr(accQ+r,2)}, {vr(accQ+r,2)}, {vr(rq,2)} op_sel_hi:[1,0]')
    for i in range(8): a(f'v_cvt_pk_bf16_f32 v{Q0+i}, v{accQ+2*i}, v{accQ+2*i+1}')
    for i in (6, 7): a(f'v_cndmask_b32_e64 v{Q0+i}, v{Q0+i}, 0, vcc')
    a(f's_cmp_eq_u32 s{S_H}, 0\ns_cselect_b32 s{T0}, 1.0, 0\nv_mul_f32 v{MUX}, s{T0}, v{mu}')
    a.stamp('A_q')

def w13_setup(a, S13, L13):
    a(f'''
    s_cmp_lt_u32 s{S_W}, 2
    s_cselect_b32 s{SRD_B}, s{P_W1}, s{P_W3}
    s_cselect_b32 s{SRD_B+1}, s{P_W1+1}, s{P_W3+1}
    s_mov_b32 s{SRD_B+2}, {W1_BYTES}
    s_mov_b32 s{SRD_B+3}, 0x20000
    s_and_b32 s{T0}, s{S_W}, 1
    s_mul_i32 s{T0}, s{T0}, 7
    s_add_u32 s{T0}, s{T0}, s{S_R14}
    s_sub_u32 s{S_RG}, s{T0}, 14
    s_min_u32 s{S_RG}, s{S_RG}, s{T0}
    s_mul_i32 s{S_RG}, s{S_RG}, {32*3584}
    s_mul_i32 s{S13}, s{S_FS}, 224
    s_mul_i32 s{L13}, s{S_W}, 14336
    ''')

def rg_next():
    return [f's_add_u32 s{S_RG}, s{S_RG}, {32*3584}', f's_sub_u32 s{T0}, s{S_RG}, {14*32*3584}', f's_min_u32 s{S_RG}, s{S_RG}, s{T0}']

def pair_dma(S13, L13, slot, col, i, tag):
    return [f's_add_u32 m0, s{L13}, {slot*PAIR + i*1024}',
            f's_add_u32 s{T0}, s{S13}, s{S_RG}'] + ([f's_add_u32 s{T0}, s{T0}, {16*3584}'] if i & 1 else []) + \
           [('vm', f'buffer_load_dwordx4 v{V_P13}, {sr4(SRD_B)}, s{T0} offen lds', tag)] + (rg_next() if i & 1 else [])

def alloc_b():
    va = VA(4, 204)
    KV = [va(16) for _ in range(3)] + ([WOV] if opt('nkv', 4) == 4 else [])
    Q = [va(8) for _ in range(4)]
    O = [va(16) for _ in range(4)]
    S = [va(16), va(16)]
    P = [va(8), va(8)]
    t = [va() for _ in range(8)]
    v5 = 215 + 8
    return dict(KV=KV, Q=Q, O=O, S=S, P=P, t=t, v5=v5)

def phase_b(a, R, stg):
    KV, Q, O, S, P, t, v5 = (R[k] for k in ('KV', 'Q', 'O', 'S', 'P', 't', 'v5'))
    QX = R['QX']
    S13, L13, SKV, SB = T3, T4, T6, T2
    qa = t[4:8]
    MA = [240, 241, 242, 243]; VKV = 244; VP2 = 245; VX = 246
    a(f'''
    s_lshl_b32 s{SKV}, s{S_H}, 6
    s_add_u32 s{SKV}, s{SKV}, s{S_W}
    s_lshl_b32 s{SKV}, s{SKV}, 12
    v_add_u32 v{VKV}, s{SKV}, v{V_OFF}
    s_lshl_b32 s{SB}, s{S_TB}, 14
    ''')
    if opt('pollA', 1) == 1:
        visit(a, 1)
        W4 = R['S'][1]; RS = R['S'][1] + 4
        for i in range(4):
            for k_ in range(4): a(f'v_accvgpr_read_b32 v{W4+k_}, a{WROW+4*i+k_}')
            a(f'v_mov_b32 v{RS+i}, 0')
            for k_ in range(4): a(f'v_dot2c_f32_bf16 v{RS+i}, s{S_ONES}, v{W4+k_}')
        for m_ in ('row_shr:1', 'row_shr:2', 'row_shr:4', 'row_shr:8'):
            for i in range(4): a(f'v_add_f32_dpp v{RS+i}, v{RS+i}, v{RS+i} {m_} row_mask:0xf bank_mask:0xf bound_ctrl:1')
        for m_ in ('row_bcast:15 row_mask:0xa', 'row_bcast:31 row_mask:0xc'):
            for i in range(4): a(f'v_add_f32_dpp v{RS+i}, v{RS+i}, v{RS+i} {m_} bank_mask:0xf')
        for i in range(4): a(f'v_mul_f32 v{RS+i}, {fx(1/448)}, v{RS+i}')
        a(f's_lshl_b32 s{T0}, s{S_WG}, 4\ns_add_u32 s{T0}, s{T0}, {WS_WB - 63*16}\ns_mov_b32 exec_lo, 0\ns_brev_b32 exec_hi, 1')
        a.vmem(f'buffer_store_dwordx4 {vr(RS,4)}, v{V_OFF}, {sr4(SRD_WS)}, s{T0} offen sc1', 'stW')
        a('s_mov_b64 exec, -1')
        if opt('dlyA', 0): a(f"s_sleep {opt('dlyA', 0)}")
        poll_issue(a, T5, V_FL, 32, t[0])
    a.stamp('B_pre')
    poll_check(a, T5, V_FL, 32, t[0])
    a.stamp('B_poll')
    def kvload(buf):
        return [('vm', f'buffer_load_dwordx4 {vr(KV[buf]+4*j,4)}, v{VKV}, {sr4(SRD_WS)}, s{SB} offen offset:{1024*j} sc1', f'k{buf}' if j < 2 else f'kv{buf}') for j in range(4)] + \
               [f's_add_u32 s{SB}, s{SB}, 0x4000', f's_and_b32 s{SB}, s{SB}, 0x3c000']
    NKV = len(KV)
    NK0 = opt('nk0', 1)
    for b in range(NK0):
        for x in kvload(b): a.emit(x)
    for lq in range(4):
        a(f'''
        s_add_u32 s{T0}, s{S_W}, {lq}
        s_and_b32 s{T0}, s{T0}, 3
        s_lshl_b32 s{T0}, s{T0}, 11
        s_add_u32 s{T0}, s{T0}, {QX}
        v_add_u32 v{qa[lq]}, s{T0}, v{V_OFF}
        ''')
    a(f'ds_write_b128 v{qa[0]}, {vr(Q[0],4)}')
    stg.src_setup(t[1], t[2], t[3])
    w13_setup(a, S13, L13)
    a(f'''
    s_lshl_b32 s{T0}, s{S_E0}, 5
    s_add_u32 s{S13}, s{S13}, s{T0}
    s_and_b32 s{T0}, s{S_W}, 2
    v_and_b32 v{t[1]}, 3, v{V_LANE}
    v_xor_b32 v{t[1]}, s{T0}, v{t[1]}
    v_lshrrev_b32 v{t[2]}, 2, v{V_LANE}
    v_mul_u32_u24 v{t[2]}, 3584, v{t[2]}
    v_lshl_add_u32 v{V_P13}, v{t[1]}, 4, v{t[2]}
    s_lshl_b32 s{T0}, s{T0}, 1
    v_lshrrev_b32 v{t[1]}, 1, v{V_LANE}
    v_xor_b32 v{t[1]}, s{T0}, v{t[1]}
    v_mul_u32_u24 v{t[1]}, 3584, v{t[1]}
    v_and_b32 v{t[2]}, 1, v{V_LANE}
    v_lshl_add_u32 v{v5}, v{t[2]}, 4, v{t[1]}
    v_add_u32 v{VP2}, {16*3584 - 1024}, v{V_P13}
    s_waitcnt lgkmcnt(0)
    s_barrier
    ''')
    for lq in range(4):
        a(f'''
        s_add_u32 s{T0}, s{S_W}, {lq}
        s_and_b32 s{T0}, s{T0}, 3
        s_mul_i32 s{T0}, s{T0}, 12288
        s_add_u32 s{T0}, s{T0}, {SCR}
        v_add_u32 v{MA[lq]}, s{T0}, v{V_OFF}
        ''')
    a(f'''
    s_and_b32 s{SKV}, s{S_W}, 1
    s_lshl_b32 s{T0}, s{S_RB}, 1
    s_add_u32 s{SKV}, s{SKV}, s{T0}
    s_mul_i32 s{SKV}, s{SKV}, {32*896}
    s_lshr_b32 s{T0}, s{S_W}, 1
    s_lshl_b32 s{T0}, s{T0}, 6
    s_add_u32 s{SKV}, s{SKV}, s{T0}
    s_lshl_b32 s{T0}, s{S_CB}, 7
    s_add_u32 s{SKV}, s{SKV}, s{T0}
    v_and_b32 v{VX}, 31, v{V_LANE}
    v_lshrrev_b32 v{t[1]}, 5, v{V_LANE}
    v_mul_u32_u24 v{VX}, 896, v{VX}
    v_lshl_add_u32 v{VX}, v{t[1]}, 4, v{VX}
    ''')
    for lq in range(1, 4): a(f'ds_read_b128 {vr(Q[lq],4)}, v{qa[lq]}')
    spre = []; spre2 = []
    if opt('spre', 1):
        ssrd(a, SRD_WQKV, 784, P_W2, P_WO, W2_BYTES, WO_BYTES, 2048, S_U0, S_U1)
        spre = [[sld(SRD_A, 128*i)] for i in range(opt('spreA', 0), 25)]
        spre2 = [[sld(SRD_WQKV, 128*i)] for i in range(16)]
        if opt('spre0', 0):
            a('s_waitcnt lgkmcnt(0)')
            for _ in range(opt('spre0', 0)): a(spre.pop(0)[0])
    NK1 = opt('nk1', 3)
    for b in range(NK0, NK1):
        for x in kvload(b): a.emit(x)
    s_kv = []
    for T in range(NK1, NKV):
        s_kv += [(opt('kvS', 2) * (6 * (T - NK1) + k_), x) for k_, x in enumerate(kvload(T))]
    for T in range(NKV, 16):
        s_kv += [(16 * (T - NKV + 1) + 3 + opt('kvS', 2) * k_, x) for k_, x in enumerate(kvload(T % NKV))]
    s_w = []; wp = [opt('preP', 76)]
    for g in range(7):
        it = (rg_next() if g else []) + [f's_add_u32 s{T0}, s{S13}, s{S_RG}']
        for sl in range(2):
            it += [f's_add_u32 m0, s{L13}, {sl*PAIR + 2*g*1024 - 64*sl}',
                   ('vm', f'buffer_load_dwordx4 v{V_P13}, {sr4(SRD_B)}, s{T0} offen offset:{64*sl} lds', 'w13'),
                   ('vm', f'buffer_load_dwordx4 v{VP2}, {sr4(SRD_B)}, s{T0} offen offset:{1024 + 64*sl} lds', 'w13')]
        it += [('vm', f'buffer_load_dwordx4 {vr(RAW5+4*g,4,"a")}, v{v5}, {sr4(SRD_B)}, s{T0} offen offset:128', 'w13')]
        for x in it:
            if isinstance(x, tuple):
                s_w.append((wp[0], x)); wp[0] += opt('preS', 5)
            else: s_w.append((wp[0] - 4, x))
    s_s = [(4 + opt('sS', 4) * k_, x[0]) for k_, x in enumerate(spre + spre2)]
    s_x = [(opt('xrP', 40), ('vm', f'buffer_load_dwordx4 {vr(XRES,4)}, v{VX}, {sr4(SRD_X)}, s{SKV} offen', 'xr')),
           (opt('xrP', 40) + 6, ('vm', f'buffer_load_dwordx4 {vr(XRES+4,4)}, v{VX}, {sr4(SRD_X)}, s{SKV} offen offset:32', 'xr'))]
    if opt('vpre', 1):
        def vt(D, n, reg):
            a(xm(n)); a.vmem(f'buffer_load_dword a{reg}, v{V_FL}, {sr4(D)}, 0 offen', 'vt'); a('s_mov_b64 exec, -1')
        s_s = [(opt('vpre', 1), ('call', lambda: vt(SRD_A, 25, 7))), (opt('vpre2', 40), ('call', lambda: vt(SRD_WQKV, 16, 8)))]
    if opt('l2w', 0):
        def l2(i):
            if i == 0:
                srd(a, SRD_A, P_W2, W2_BYTES)
                a(f's_lshl_b32 s{S_U0}, s{S_J}, 2\ns_add_u32 s{S_U0}, s{S_U0}, s{S_W}\ns_lshl_b32 s{S_U0}, s{S_U0}, 13')
            if i == 1: a(f's_add_u32 s{S_U0}, s{S_U0}, {128*8192}')
            if i == 2:
                srd(a, SRD_A, P_WO, WO_BYTES)
                a(f's_lshl_b32 s{S_U0}, s{S_J}, 2\ns_add_u32 s{S_U0}, s{S_U0}, s{S_W}\ns_xor_b32 s{S_U0}, s{S_U0}, 127\ns_lshl_b32 s{S_U0}, s{S_U0}, 13')
            a.vmem(f'buffer_load_dword a{9+i}, v{V_FL}, {sr4(SRD_A)}, s{S_U0} offen', 'vt')
        s_s += [(opt('l2w', 0) + opt('l2s', 16) * i, ('call', (lambda i=i: l2(i)))) for i in range(3)]
    if opt('noW', 0): s_w = []
    if opt('noS', 0): s_s = []
    if opt('noKV', 0): s_kv = []
    VW = 217; VWP = 218; VW2 = 219
    a(f'v_lshrrev_b32 v{VW2}, 5, v{V_LANE}\nv_lshlrev_b32 v{VW2}, 4, v{VW2}')
    def pubW():
        a(f's_lshl_b32 s{T1}, s{S_WG}, 7\ns_add_u32 s{T1}, s{T1}, {FL_W}'); a.vmwait('stW'); flag_store(a, T1, VW)
    def pollW():
        a(f's_mul_i32 s{T1}, s{S_H}, {7*128}\ns_add_u32 s{T1}, s{T1}, {FL_W}'); poll_issue(a, T1, V_FL, 7, VWP)
    WB_ = KV[1]; assert NKV == 4
    s_m = [(opt('pubW', 21), ('call', pubW)), (opt('pollW', 201), ('call', pollW)), (229, ('call', lambda: poll_check(a, T1, V_FL, 7, VWP))),
           (230, f's_mul_i32 s{T1}, s{S_H}, 112'), (231, f's_add_u32 s{T1}, s{T1}, {WS_WB}')]
    s_m += [(232 + 2*q_, ('vm', f'buffer_load_dwordx4 {vr(WB_+4*q_,4)}, v{VW2}, {sr4(SRD_WS)}, s{T1} offen offset:{32*q_} sc1', 'wb')) for q_ in range(4)]
    s_m += [(241 + k_, x) for k_, x in enumerate([f's_lshl_b32 s{T2}, s{S_TB}, 2', f's_add_u32 s{T2}, s{T2}, s{S_W}', f's_lshl_b32 s{T2}, s{T2}, 4', f's_add_u32 s{T2}, s{T2}, s{S_H}',
                                                  f's_lshl_b32 s{T5}, s{T2}, 7', f's_add_u32 s{T5}, s{T5}, {FL_B}', f's_lshl_b32 s{T2}, s{T2}, 11', f's_add_u32 s{T6}, s{T2}, {WS_O}'])]
    s_p = []
    if opt('prew2', 0):
        def pw():
            a(f'''
            s_lshl_b32 s{S_SPIN}, s{S_TB}, 2
            s_add_u32 s{S_SPIN}, s{S_SPIN}, s{S_W}
            s_lshl_b32 s{S_SPIN}, s{S_SPIN}, 4
            s_add_u32 s{S_SPIN}, s{S_SPIN}, s{S_H}
            s_lshl_b32 s{S_SPIN}, s{S_SPIN}, 11
            s_add_u32 s{S_SPIN}, s{S_SPIN}, {WS_O}
            s_lshl_b32 s{S_SPIN+1}, s{S_RB}, 1
            s_and_b32 s{S_U1}, s{S_W}, 1
            s_add_u32 s{S_SPIN+1}, s{S_SPIN+1}, s{S_U1}
            s_mul_i32 s{S_SPIN+1}, s{S_SPIN+1}, 7
            s_add_u32 s{S_SPIN+1}, s{S_SPIN+1}, s{S_CB}
            s_lshl_b32 s{S_SPIN+1}, s{S_SPIN+1}, 1
            s_lshr_b32 s{S_U1}, s{S_W}, 1
            s_add_u32 s{S_SPIN+1}, s{S_SPIN+1}, s{S_U1}
            s_lshl_b32 s{S_SPIN+1}, s{S_SPIN+1}, 11
            s_add_u32 s{S_SPIN+1}, s{S_SPIN+1}, {WS_H}
            s_cmp_ge_u32 s{S_J}, 28
            s_cselect_b32 s{S_SPIN+1}, 0x40000000, s{S_SPIN+1}
            ''')
        P0 = opt('prew2', 0)
        s_p = [(P0, ('call', pw))] + [(P0 + 3 + 5*i, ('vm', f'buffer_store_dwordx4 {vr(Q[0],4)}, v{V_OFF}, {sr4(SRD_WS)}, s{S_SPIN + (i >> 1)} offen offset:{1024*(i&1)} sc1', 'pw')) for i in range(4)]
    streams = [s_kv, s_w, s_x, s_m, s_p, s_s]
    a.vmwait('k0')
    a(f'{MFMA} {vr(S[0],16)}, {vr(KV[0],4)}, {vr(Q[0],4)}, 0')
    a(f'{MFMA} {vr(S[0],16)}, {vr(KV[0]+4,4)}, {vr(Q[0]+4,4)}, {vr(S[0],16)}')
    a(f'v_cmp_lt_u32 vcc, 31, v{V_LANE}')
    a(f'v_max3_f32 v{t[0]}, v{S[0]}, v{S[0]+1}, v{S[0]+2}\nv_max3_f32 v{t[1]}, v{S[0]+3}, v{S[0]+4}, v{S[0]+5}')
    for r in range(6, 14, 4):
        a(f'v_max3_f32 v{t[0]}, v{t[0]}, v{S[0]+r}, v{S[0]+r+1}\nv_max3_f32 v{t[1]}, v{t[1]}, v{S[0]+r+2}, v{S[0]+r+3}')
    a(f'''
    v_max3_f32 v{t[0]}, v{t[0]}, v{S[0]+14}, v{S[0]+15}
    v_max_f32 v{t[0]}, v{t[0]}, v{t[1]}
    v_mov_b32 v{t[1]}, v{t[0]}
    v_permlane32_swap_b32 v{t[0]}, v{t[1]}
    v_max_f32 v{t[0]}, v{t[0]}, v{t[1]}
    v_cvt_pk_bf16_f32 v{t[0]}, -v{t[0]}, 0
    v_cndmask_b32 v{Q[0]+6}, v{Q[0]+6}, v{t[0]}, vcc
    ds_write_b128 v{qa[0]}, {vr(Q[0]+4,4)} offset:1024
    v_lshlrev_b32 v{t[2]}, 16, v{t[0]}
    ''')
    assert t[2] % 2 == 0
    for r in range(0, 16, 2): a(f'v_pk_add_f32 {vr(S[0]+r,2)}, {vr(S[0]+r,2)}, {vr(t[2],2)} op_sel_hi:[1,0]')
    if not opt('xin', 1):
        a('s_waitcnt lgkmcnt(0)\ns_barrier')
        for lq in range(1, 4): a(f'ds_read_b128 {vr(Q[lq]+4,4)}, v{qa[lq]} offset:1024')
    if opt('stag', 0):
        Ls = a.newlabel('stag')
        for w in range(1, 4):
            a(f's_cmp_lt_u32 s{S_W}, {w}\ns_cbranch_scc1 {Ls}')
            for _ in range(opt('stag', 0)): a('s_nop 15')
        a.label(Ls)
    (a.stamp('B_first'), a.stamp('R_B_firstc'), a.stamp('R_B_firstr', True))
    def slot(T, q):
        cb = q & 1; nb = cb ^ 1
        kvn, nq = (T % NKV, q + 1) if q < 3 else ((T + 1) % NKV, 0)
        kvp, pq = (T % NKV, q - 1) if q else ((T - 1) % NKV, 3)
        no_qk = (T == 15 and q == 3); no_pv = (T == 0 and q == 0); first = (T == 0 or (T == 1 and q == 0))
        M = [None if no_qk else f'{MFMA} {vr(S[nb],16)}, {vr(KV[kvn],4)}, {vr(Q[nq],4)}, 0',
             None if no_qk else f'{MFMA} {vr(S[nb],16)}, {vr(KV[kvn]+4,4)}, {vr(Q[nq]+4,4)}, {vr(S[nb],16)}',
             None if no_pv else f'{MFMA} {vr(O[pq],16)}, {vr(KV[kvp]+8,4)}, {vr(P[nb],4)}, {0 if first else vr(O[pq],16)}',
             None if no_pv else f'{MFMA} {vr(O[pq],16)}, {vr(KV[kvp]+12,4)}, {vr(P[nb]+4,4)}, {vr(O[pq],16)}']
        e = lambda r: (f'v_exp_f32 v{S[cb]+r}, v{S[cb]+r}' if not opt('noexp', 0) else f'v_mov_b32 v{S[cb]+r}, v{S[cb]+r}')
        if opt('nopv', 0): M[2] = M[3] = None
        c = lambda j: f'v_cvt_pk_bf16_f32 v{P[cb]+j}, v{S[cb]+2*j}, v{S[cb]+2*j+1}'
        seq = [M[0], e(0), e(1), e(2), c(0), e(3), e(4), M[1], c(1), e(5), e(6), c(2), e(7), e(8),
               M[2], c(3), e(9), e(10), c(4), e(11), e(12), M[3], c(5), e(13), e(14), e(15), c(6), c(7)]
        if T == 0 and q == 0:
            if opt('xin', 1):
                seq = [M[0], e(0), e(1), e(2), c(0), e(3), 's_waitcnt lgkmcnt(0)', 's_barrier'] + \
                      [f'ds_read_b128 {vr(Q[lq]+4,4)}, v{qa[lq]} offset:1024' for lq in range(1, 4)] + \
                      [None, e(4), c(1), e(5), e(6), c(2), e(7), e(8), c(3), None, 's_waitcnt lgkmcnt(2)', M[1], e(9), e(10), c(4), e(11), e(12),
                       c(5), e(13), e(14), e(15), c(6), 's_waitcnt lgkmcnt(0)', c(7), 's_nop 3']
            else: seq.insert(7, 's_waitcnt lgkmcnt(0)')
        for k_, x in enumerate(seq):
            if x is not None: a(x)
            if x is None or x.startswith('v_mfma'):
                mi = pos[0] & 3
                if mi == 3 and q == 2 and T < 15: a.vmwait(f'kv{(T+1)%NKV}')
                elif mi == 3 and q == 0 and T == 0: a.vmwait('kv0')
                else:
                    for st_ in streams:
                        if st_ and st_[0][0] <= pos[0]:
                            a.emit(st_.pop(0)[1]); break
                pos[0] += 1
    pos = [0]
    for T in range(16):
        for q in range(4): slot(T, q)
    assert not any(streams), [len(x) for x in streams]
    a(f'{MFMA} {vr(O[3],16)}, {vr(KV[15 % NKV]+8,4)}, {vr(P[1],4)}, {vr(O[3],16)}')
    a(f'{MFMA} {vr(O[3],16)}, {vr(KV[15 % NKV]+12,4)}, {vr(P[1]+4,4)}, {vr(O[3],16)}')
    (a.stamp('B_loop'), a.stamp('R_B_loopc'), a.stamp('R_B_loopr', True))
    stg.queue(opt('hgM', 4))
    for lq in range(1, 4):
        for j in range(4):
            a(f'ds_write_b128 v{MA[lq]}, {vr(O[lq]+4*j,4)} offset:{(lq-1)*4096 + j*1024}'); stg.one()
    a.vmwait('wb')
    a('s_mov_b32 exec_lo, 0')
    for r in range(12, 16): a(f'v_mov_b32 v{WB_+r}, 0')
    a(f'''
    s_mov_b64 exec, -1
    v_mov_b32 v{t[4]}, {fx(2.0 ** (64 if not opt('forcefb', 0) else -60))}
    v_mov_b32 v{t[5]}, {fx(2.0 ** -64)}
    s_waitcnt lgkmcnt(0)
    s_barrier
    ''')
    for lq in range(1, 4):
        for j in range(4): a(f'ds_read_b128 {vr(O[lq]+4*j,4)}, v{MA[0]} offset:{(lq-1)*4096 + j*1024}')
    stg.flush()
    for lq in range(1, 4):
        a(f's_waitcnt lgkmcnt({4*(3-lq)})')
        for r in range(0, 16, 2): a(f'v_pk_add_f32 {vr(O[0]+r,2)}, {vr(O[0]+r,2)}, {vr(O[lq]+r,2)}')
    a(f'''
    v_mov_b32 v{t[0]}, v{O[0]+12}
    v_mov_b32 v{t[1]}, v{O[0]+12}
    v_permlane32_swap_b32 v{t[0]}, v{t[1]}
    ''')
    a(f'''
    v_med3_f32 v{t[3]}, v{t[1]}, v{t[4]}, v{t[5]}
    v_cmp_neq_f32 vcc, v{t[3]}, v{t[1]}
    v_rcp_f32 v{t[2]}, v{t[1]}
    s_cbranch_vccnz Lfb
    ''')
    a.label('Lfb_ret')
    a(f'v_cmp_lt_u32 vcc, 31, v{V_LANE}')
    for r in range(0, 16, 2): a(f'v_pk_mul_f32 {vr(O[0]+r,2)}, {vr(O[0]+r,2)}, {vr(t[2],2)} op_sel_hi:[1,0]')
    for j in range(8): a(f'v_cvt_pk_bf16_f32 v{P[0]+j}, v{O[0]+2*j}, v{O[0]+2*j+1}')
    for j in (6, 7): a(f'v_cndmask_b32_e64 v{P[0]+j}, v{P[0]+j}, 0, vcc')
    for j in range(2):
        a.vmem(f'buffer_store_dwordx4 {vr(P[0]+4*j,4)}, v{V_OFF}, {sr4(SRD_WS)}, s{T6} offen offset:{1024*j} sc1', 'stB')
    a(f'v_pk_mul_f32 {vr(t[0],2)}, {vr(O[0],2)}, {vr(WB_,2)}\nv_pk_mul_f32 {vr(t[2],2)}, {vr(O[0]+2,2)}, {vr(WB_+2,2)}')
    for r in range(4, 16, 2): a(f'v_pk_fma_f32 {vr(t[r & 2],2)}, {vr(O[0]+r,2)}, {vr(WB_+r,2)}, {vr(t[r & 2],2)}')
    a(f'v_pk_add_f32 {vr(t[0],2)}, {vr(t[0],2)}, {vr(t[2],2)}\nv_add_f32 v{t[0]}, v{t[0]}, v{t[1]}')
    halfsum(a, t[0], t[1])
    a(f'v_add_f32 v{t[0]}, v{t[0]}, v{MUX}\nv_lshlrev_b32 v{t[1]}, 2, v{V_LANE}\ns_add_u32 s{T0}, s{T5}, {WS_MH - FL_B + (1 << 32)}\n' + xm(32))
    a.vmem(f'buffer_store_dword v{t[0]}, v{t[1]}, {sr4(SRD_WS)}, s{T0} offen sc1', 'stB')
    a('s_mov_b64 exec, -1')
    a.stamp('B_st'); a.stamp('H_st')


def fallback(a, R):
    KV, Q, O, S, P, t = R['KV'][0], R['Q'][0], R['O'][0], R['S'][0], R['P'][0], R['t']
    a.label('Lfb')
    a(f"""
    v_cmp_lt_u32 vcc, 31, v{V_LANE}
    s_lshl_b32 s{T1}, s{S_H}, 18
    s_mov_b32 s{T2}, 64
    v_mov_b32 v{t[0]}, 0xff7fffff
    v_cndmask_b32_e64 v{Q+6}, v{Q+6}, 0, vcc
    v_cndmask_b32_e64 v{Q+7}, v{Q+7}, 0, vcc
    """)
    a.label('Lfb1')
    a(f"""
    buffer_load_dwordx4 {vr(KV,4)}, v{V_OFF}, {sr4(SRD_WS)}, s{T1} offen sc1
    buffer_load_dwordx4 {vr(KV+4,4)}, v{V_OFF}, {sr4(SRD_WS)}, s{T1} offen offset:1024 sc1
    s_add_u32 s{T1}, s{T1}, 4096
    s_waitcnt vmcnt(0)
    {MFMA} {vr(S,16)}, {vr(KV,4)}, {vr(Q,4)}, 0
    {MFMA} {vr(S,16)}, {vr(KV+4,4)}, {vr(Q+4,4)}, {vr(S,16)}
    """)
    for r in range(0, 16, 2): a(f'v_max3_f32 v{t[0]}, v{t[0]}, v{S+r}, v{S+r+1}')
    a(f"""
    s_sub_u32 s{T2}, s{T2}, 1
    s_cmp_lg_u32 s{T2}, 0
    s_cbranch_scc1 Lfb1
    v_mov_b32 v{t[1]}, v{t[0]}
    v_permlane32_swap_b32 v{t[0]}, v{t[1]}
    v_max_f32 v{t[0]}, v{t[0]}, v{t[1]}
    v_cvt_pk_bf16_f32 v{t[1]}, -v{t[0]}, 0
    v_lshlrev_b32 v{t[2]}, 16, v{t[1]}
    v_sub_f32 v{t[0]}, -v{t[0]}, v{t[2]}
    v_cvt_pk_bf16_f32 v{t[2]}, v{t[0]}, 0
    v_lshlrev_b32 v{t[2]}, 16, v{t[2]}
    v_sub_f32 v{t[0]}, v{t[0]}, v{t[2]}
    v_or_b32 v{t[1]}, v{t[1]}, v{t[2]}
    v_cvt_pk_bf16_f32 v{t[0]}, v{t[0]}, 0
    v_cndmask_b32 v{Q+6}, v{Q+6}, v{t[1]}, vcc
    v_cndmask_b32 v{Q+7}, v{Q+7}, v{t[0]}, vcc
    s_lshl_b32 s{T1}, s{S_H}, 18
    s_mov_b32 s{T2}, 64
    """)
    for r in range(16): a(f'v_mov_b32 v{O+r}, 0')
    a.label('Lfb2')
    for j in range(4): a(f'buffer_load_dwordx4 {vr(KV+4*j,4)}, v{V_OFF}, {sr4(SRD_WS)}, s{T1} offen offset:{1024*j} sc1')
    a(f"""
    s_add_u32 s{T1}, s{T1}, 4096
    s_waitcnt vmcnt(0)
    {MFMA} {vr(S,16)}, {vr(KV,4)}, {vr(Q,4)}, 0
    {MFMA} {vr(S,16)}, {vr(KV+4,4)}, {vr(Q+4,4)}, {vr(S,16)}
    """)
    for r in range(16): a(f'v_exp_f32 v{S+r}, v{S+r}')
    for j in range(8): a(f'v_cvt_pk_bf16_f32 v{P+j}, v{S+2*j}, v{S+2*j+1}')
    a(f"""
    {MFMA} {vr(O,16)}, {vr(KV+8,4)}, {vr(P,4)}, {vr(O,16)}
    {MFMA} {vr(O,16)}, {vr(KV+12,4)}, {vr(P+4,4)}, {vr(O,16)}
    s_sub_u32 s{T2}, s{T2}, 1
    s_cmp_lg_u32 s{T2}, 0
    s_nop 7
    s_cbranch_scc1 Lfb2
    s_nop 7
    v_mov_b32 v{t[0]}, v{O+12}
    v_mov_b32 v{t[1]}, v{O+12}
    v_permlane32_swap_b32 v{t[0]}, v{t[1]}
    v_rcp_f32 v{t[2]}, v{t[1]}
    s_branch Lfb_ret
    """)

class Stager:
    def __init__(self, a): self.a = a; self.nl = 0; self.nt = 0; self.q = []
    def src_setup(self, t0, t1, t2):
        self.a(f'''
        v_lshrrev_b32 v{t0}, 3, v{V_LANE}
        v_lshrrev_b32 v{t1}, 1, v{V_LANE}
        v_and_b32 v{t1}, 4, v{t1}
        v_and_b32 v{t2}, 7, v{V_LANE}
        v_xor_b32 v{t1}, v{t1}, v{t2}
        v_mul_u32_u24 v{t0}, 1792, v{t0}
        v_lshl_add_u32 v{V_SRC}, v{t1}, 4, v{t0}
        ''')
    def setup(self, t0, t1, t2, vw):
        a = self.a; self.vw = vw
        a(f'''
        v_lshrrev_b32 v{t0}, 5, v{V_LANE}
        v_bfe_u32 v{t1}, v{V_LANE}, 2, 2
        v_lshl_add_u32 v{t0}, v{t0}, 2, v{t1}
        v_lshlrev_b32 v{t0}, 7, v{t0}
        v_bfe_u32 v{t1}, v{V_LANE}, 4, 1
        v_lshl_add_u32 v{t0}, v{t1}, 5, v{t0}
        v_and_b32 v{t1}, 3, v{V_LANE}
        v_lshl_add_u32 v{t0}, v{t1}, 3, v{t0}
        v_bfe_u32 v{t1}, v{V_LANE}, 3, 1
        s_lshr_b32 s{T0}, s{S_W}, 1
        v_xor_b32 v{t1}, s{T0}, v{t1}
        v_lshl_add_u32 v{t0}, v{t1}, 6, v{t0}
        s_lshl_b32 s{T0}, s{S_W}, 12
        s_add_u32 s{T0}, s{T0}, {SCR}
        v_add_u32 v{V_RD}, s{T0}, v{t0}
        v_xor_b32 v{V_RD+1}, 64, v{V_RD}
        v_lshrrev_b32 v{t0}, 3, v{V_LANE}
        v_lshlrev_b32 v{t0}, 7, v{t0}
        v_add3_u32 v{vw}, s{T0}, v{V_OFF}, v{t0}
        ''')
    def target_items(self, which):
        p, nb = (P_WO, WO_BYTES) if which == 'wo' else (P_W2, W2_BYTES)
        return [f's_mov_b32 s{SRD_A}, s{p}', f's_mov_b32 s{SRD_A+1}, s{p+1}', f's_mov_b32 s{SRD_A+2}, {nb}', f's_mov_b32 s{SRD_A+3}, 0x20000',
                f's_mul_i32 s{S_U0}, s{S_W}, {(112 if which == "wo" else 448)*896}', f's_lshl_b32 s{S_U1}, s{S_CB}, 7', f's_add_u32 s{S_U0}, s{S_U0}, s{S_U1}']
    @staticmethod
    def base(g):
        if g < 2: return ('a', 224 + 16 * g)
        if g < 4: return ('v', WOV + 16 * (g - 2))
        return ('a', 16 * (g - 4))
    @staticmethod
    def dest(g, s_, lc):
        p, b = Stager.base(g); return p, b + (s_ * 2 + lc) * 4
    def load_items(self):
        g = self.nl; self.nl += 1
        pre = self.target_items('wo') if g == 0 else (self.target_items('w2') if g == 4 else [])
        row0 = 28 * g if g < 4 else 32 * (g - 4)
        p, b = self.base(g)
        out = [pre] if pre else []
        for h_ in range(2):
            out.append([f's_add_u32 s{S_U1}, s{S_U0}, {(row0 + 16*h_)*896}'] +
                       [('vm', f'buffer_load_dwordx4 {vr(b+8*h_+4*i,4,p)}, v{V_SRC}, {sr4(SRD_A)}, s{S_U1} offen offset:{896*i}', f'hg{g}') for i in range(2)])
        return out
    def load(self):
        self.flush()
        for it in self.load_items():
            for x in it: self.a.emit(x)
    def queue(self, upto):
        while self.nl < upto:
            for it in self.load_items(): self.q += it
    def one(self):
        while self.q:
            x = self.q.pop(0); self.a.emit(x)
            if isinstance(x, tuple): break
    def flush(self):
        while self.q: self.one()
    def wr(self, u):
        a = self.a; g, s_ = divmod(u, 2); p, b = self.base(g)
        for i in range(2): a(f'ds_write_b128 v{self.vw}, {vr(b+8*s_+4*i,4,p)} offset:{2048*s_ + 128*i}')
    def rd(self, u):
        a = self.a; g, s_ = divmod(u, 2); p, b = self.base(g)
        for lc in range(2):
            for uu in range(2):
                a(f'ds_read_b64_tr_b16 {vr(b+(s_*2+lc)*4+2*uu,2,p)}, v{V_RD+lc} offset:{s_*2048 + uu*1024}')
    def trans(self):
        a = self.a; g = self.nt; self.nt += 1
        a.stamp(f'{"H" if g < 11 else "I"}_pre{g}')
        a.vmwait(f'hg{g}')
        if g in (0, 6): a.stamp(f'H_got{g}')
        for u in (2*g, 2*g + 1): self.wr(u)
        for u in (2*g, 2*g + 1): self.rd(u)
    def close(self): pass

def red_addr(a, t):
    for l in range(4):
        a(f's_xor_b32 s{T0}, s{S_W}, {l}\ns_mul_i32 s{T0}, s{T0}, 12288\ns_add_u32 s{T0}, s{T0}, {SCR}\nv_add_u32 v{t[l]}, s{T0}, v{V_OFF}')
def red_write(a, ACC, t, l, side=lambda: None):
    for j in range(4):
        a(f'ds_write_b128 v{t[l]}, {vr(ACC[l]+4*j,4)} offset:{(l-1)*4096 + j*1024}'); side()
def red_read(a, ACC, t, side=lambda: None):
    a('s_waitcnt lgkmcnt(0)\ns_barrier')
    for l in range(1, 4):
        for j in range(4): a(f'ds_read_b128 {vr(ACC[l]+4*j,4)}, v{t[0]} offset:{(l-1)*4096 + j*1024}')
    side()
    for l in range(1, 4):
        a(f's_waitcnt lgkmcnt({4*(3-l)})')
        for r in range(0, 16, 2): a(f'v_pk_add_f32 {vr(ACC[0]+r,2)}, {vr(ACC[0]+r,2)}, {vr(ACC[l]+r,2)}')

def put5(a, vt):
    a(f's_mul_i32 s{T0}, s{S_W}, 7168\ns_add_u32 s{T0}, s{T0}, {SINGLE}\nv_add_u32 v{vt}, s{T0}, v{V_OFF}')
    for g in range(7): a(f'ds_write_b128 v{vt}, {vr(RAW5+4*g,4,"a")} offset:{1024*g}')

def tile_ids(a, STT, SCT):
    a(f'''
    s_and_b32 s{STT}, s{S_W}, 1
    s_lshl_b32 s{T0}, s{S_RB}, 1
    s_add_u32 s{STT}, s{STT}, s{T0}
    s_lshr_b32 s{SCT}, s{S_W}, 1
    s_lshl_b32 s{T0}, s{S_CB}, 1
    s_add_u32 s{SCT}, s{SCT}, s{T0}
    ''')
def flag8_addr(a, vf, t0, t1, sdst, base):
    a(f'''
    v_lshrrev_b32 v{t0}, 2, v{V_LANE}
    v_lshlrev_b32 v{t0}, 11, v{t0}
    v_and_b32 v{t1}, 3, v{V_LANE}
    v_lshl_add_u32 v{vf}, v{t1}, 7, v{t0}
    s_lshl_b32 s{T0}, s{S_RB}, 3
    s_add_u32 s{T0}, s{T0}, s{S_W}
    s_lshl_b32 s{sdst}, s{T0}, 9
    s_add_u32 s{sdst}, s{sdst}, {base}
    ''')

def phase_c(a, R, stg):
    va = VA(4, 200)
    ACC = [va(16) for _ in range(4)]
    OF = [[va(4) for k in range(8)] for lt in range(2)]
    t = [va() for _ in range(8)]; vf = va(); vw = va(); vp = va()
    STT, SCT = T1, T2
    NB1 = opt('hgB', 7); NF = opt('hgBf', 0)
    for g in range(NF):
        if stg.nl < NB1: stg.load()
    stg.setup(t[0], t[1], t[2], vw)
    tile_ids(a, STT, SCT)
    for l in range(2):
        a(f'''
        s_xor_b32 s{T0}, s{STT}, {l}
        s_lshl_b32 s{T0}, s{T0}, 2
        s_add_u32 s{T0}, s{T0}, s{S_W}
        s_lshl_b32 s{T0}, s{T0}, 13
        s_add_u32 s{T3+l}, s{T0}, {WS_O}
        ''')
    for g in (0, 4):
        a(f'v_permlane32_swap_b32 v{XRES+g}, v{XRES+g+2}\nv_permlane32_swap_b32 v{XRES+g+1}, v{XRES+g+3}')
    for j in range(8):
        a(f'v_lshlrev_b32 v{ACC[0]+2*j}, 16, v{XRES+j}\nv_and_b32 v{ACC[0]+2*j+1}, 0xffff0000, v{XRES+j}')
    a('s_barrier')
    for _ in range(opt('trB0', 1)): stg.trans()
    a.vmwait('stB')
    flag_store(a, T5, t[3])
    a.stamp('C_flag'); a.stamp('H_flag')
    visit(a, 2)
    flag8_addr(a, vf, t[0], t[1], T5, FL_B)
    NT1 = NB1 - opt('trB', 1)
    for _ in range(opt('hgBg', 3)):
        if stg.nl < NB1: stg.load()
    while stg.nt < NT1:
        if stg.nt == NT1 - opt('pollB', 2): poll_issue(a, T5, vf, 8, vp)
        stg.trans()
        if stg.nl < NB1: stg.load()
    a.stamp('C_pre')
    poll_check(a, T5, vf, 8, vp)
    (a.stamp('C_poll'), a.stamp('R_C_pollc'), a.stamp('R_C_pollr', True))
    def old_(k, l):
        if k == 4 and l == 0: a(f's_add_u32 s{T3}, s{T3}, 4096\ns_add_u32 s{T4}, s{T4}, 4096')
        a.vmem(f'buffer_load_dwordx4 {vr(OF[l][k],4)}, v{V_OFF}, {sr4(SRD_WS)}, s{T3+l} offen offset:{1024*(k&3)} sc1', f'o{k}')
    OLA = opt('ola', 6)
    oq = [(k, l) for k in range(8) for l in range(2)]
    for _ in range(2 * OLA): old_(*oq.pop(0))
    nfree = NHG
    while stg.nt < NB1: stg.trans()
    red_addr(a, t)
    a(f'''
    s_mul_i32 s{T6}, s{STT}, 14
    s_add_u32 s{T6}, s{T6}, s{SCT}
    s_lshl_b32 s{T5}, s{STT}, 4
    s_add_u32 s{T5}, s{T5}, s{SCT}
    s_lshl_b32 s{T5}, s{T5}, 7
    s_add_u32 s{T5}, s{T5}, {FL_C}
    s_waitcnt lgkmcnt(0)
    s_barrier
    ''')
    MH = va(8); HC = va(8)
    a(f's_lshl_b32 s{T0}, s{STT}, 11\ns_add_u32 s{S_SPIN+1}, s{T0}, {WS_MH}\nv_lshlrev_b32 v{vf}, 2, v{V_LANE}')
    mq = [('vm', f'buffer_load_dword v{MH+i}, v{vf}, {sr4(SRD_WS)}, s{S_SPIN+1} offen offset:{256*i} sc1', 'mh') for i in range(8)]
    def mm(k, l):
        p, b = stg.dest(k >> 1, k & 1, l >> 1)
        a(f'{MFMA} {vr(ACC[l],16)}, {vr(b,4,p)}, {vr(OF[l & 1][k],4)}, {vr(ACC[l],16) if (k or l == 0) else 0}')
    KT = 5
    for k in range(KT):
        a.vmwait(f'o{k}')
        for l in range(4):
            mm(k, l)
            if oq and l & 1 == 0: old_(*oq.pop(0))
            elif not oq and mq: a.emit(mq.pop(0))
    assert not oq and not mq
    stg.queue(min(nfree, NB1 + opt('hgC0', 4)))
    for l in (1, 2, 3, 0):
        for k in range(KT, 8):
            if l == 1: a.vmwait(f'o{k}')
            mm(k, l)
        if l in (2, 3): red_write(a, ACC, t, l - 1, stg.one)
    a.stamp('C_mfma')
    red_write(a, ACC, t, 3, stg.one)
    a.vmwait('mh')
    for i in range(0, 8, 4): a(f'v_pk_add_f32 {vr(MH+i,2)}, {vr(MH+i,2)}, {vr(MH+i+2,2)}')
    a(f'v_pk_add_f32 {vr(MH,2)}, {vr(MH,2)}, {vr(MH+4,2)}\nv_add_f32 v{MH}, v{MH}, v{MH+1}')
    halfsum(a, MH, MH + 1)
    red_read(a, ACC, t, stg.flush)
    for r in range(0, 16, 2): a(f'v_pk_add_f32 {vr(ACC[1]+r,2)}, {vr(ACC[0]+r,2)}, {vr(MH,2)} op_sel_hi:[1,0] neg_lo:[0,1] neg_hi:[0,1]')
    for j in range(8): a(f'v_cvt_pk_bf16_f32 v{HC+j}, v{ACC[1]+2*j}, v{ACC[1]+2*j+1}')
    a(f's_lshl_b32 s{T0}, s{T6}, 11\ns_add_u32 s{T0}, s{T0}, {WS_H}')
    for j in range(2):
        a.vmem(f'buffer_store_dwordx4 {vr(HC+4*j,4)}, v{V_OFF}, {sr4(SRD_WS)}, s{T0} offen offset:{1024*j} sc1', 'stC')
    for i in range(4): a(f'v_mov_b32 v{t[4+i]}, 0')
    for j in range(8):
        a(f'v_dot2c_f32_bf16 v{t[4+(j&1)]}, s{S_ONES}, v{HC+j}')
        a(f'v_dot2c_f32_bf16 v{t[6+(j&1)]}, v{HC+j}, v{HC+j}')
    a(f'''
    v_add_f32 v{t[4]}, v{t[4]}, v{t[5]}
    v_add_f32 v{t[6]}, v{t[6]}, v{t[7]}
    v_permlane32_swap_b32 v{t[4]}, v{t[6]}
    v_add_f32 v{t[4]}, v{t[4]}, v{t[6]}
    v_and_b32 v{t[5]}, 31, v{V_LANE}
    v_lshrrev_b32 v{t[6]}, 5, v{V_LANE}
    v_lshlrev_b32 v{t[6]}, 2, v{t[6]}
    v_lshl_add_u32 v{t[5]}, v{t[5]}, 3, v{t[6]}
    s_lshl_b32 s{T0}, s{T6}, 8
    s_add_u32 s{T0}, s{T0}, {WS_ST}
    ''')
    a.vmem(f'buffer_store_dword v{t[4]}, v{t[5]}, {sr4(SRD_WS)}, s{T0} offen sc1', 'stC')
    a.stamp('C_st')
    for j in range(8): a(f'v_cvt_pk_bf16_f32 v{HKEEP+j}, v{ACC[0]+2*j}, v{ACC[0]+2*j+1}')
    for _ in range(opt('hgCf', 0)):
        if stg.nl < nfree: stg.load()
    a('s_barrier')
    put5(a, t[0])
    for _ in range(opt('trC0', 0)): stg.trans()
    a.vmwait('stC')
    flag_store(a, T5, t[3])
    a.stamp('C_flag2')
    NTP = NHG - opt('trE', 0) - opt('trC', 0) - opt('pollC', 2)
    while stg.nl < NHG: stg.load()
    while stg.nt < NTP: stg.trans()

def phase_d(a, R, stg):
    va = VA(4, 212)
    X = [va(4) for _ in range(28)]
    ACC = [va(16) for _ in range(4)]
    HP = va(4)
    t = [va(2) for _ in range(4)]
    mu = va(2)
    vl = [va() for _ in range(6)]
    vp = va(); vs = va()
    W = [va(4) for _ in range(2)] + [WOV + 4*i for i in range(8)]
    NW = len(W)
    ST = ACC[3]
    E = [t[0], t[0]+1, t[1], t[1]+1, t[2], t[2]+1, t[3], t[3]+1]
    STT = T6; SH = T5; S13, L13 = T3, T4
    w13_setup(a, S13, L13)
    a(f'''
    s_lshl_b32 s{T0}, s{S_L0}, 5
    s_add_u32 s{S13}, s{S13}, s{T0}
    s_lshl_b32 s{STT}, s{S_TD}, 2
    s_add_u32 s{STT}, s{STT}, s{S_W}
    s_lshl_b32 s{T2}, s{STT}, 11
    s_add_u32 s{T2}, s{T2}, {FL_C}
    v_bfe_u32 v{t[0]}, v{V_LANE}, 4, 1                 ; cg
    v_lshrrev_b32 v{t[1]}, 5, v{V_LANE}                ; hf
    v_bfe_u32 v{t[3]}, v{V_LANE}, 2, 2                 ; r
    v_and_b32 v{mu}, 3, v{V_LANE}
    v_lshlrev_b32 v{mu}, 3, v{mu}                      ; c4*8
    v_xor_b32 v{t[2]}, v{t[0]}, v{t[1]}
    v_lshl_add_u32 v{t[2]}, v{t[2]}, 2, v{t[3]}
    v_lshl_add_u32 v{t[2]}, v{t[2]}, 5, v{mu}
    v_mul_u32_u24 v{vl[4]}, 14336, v{t[0]}
    v_add_u32 v{vl[4]}, v{vl[4]}, v{t[2]}
    v_add_u32 v{vl[4]}, {SINGLE}, v{vl[4]}
    v_lshl_add_u32 v{t[2]}, v{t[1]}, 2, v{t[3]}
    v_lshl_add_u32 v{t[2]}, v{t[2]}, 6, v{mu}
    v_mul_u32_u24 v{t[0]}, {28672 + 32}, v{t[0]}
    v_add_u32 v{vl[0]}, v{t[0]}, v{t[2]}
    v_xor_b32 v{vl[1]}, 32, v{vl[0]}
    v_add_u32 v{vl[2]}, {PAIR}, v{vl[0]}
    v_add_u32 v{vl[3]}, {PAIR}, v{vl[1]}
    v_and_b32 v{t[0]}, 31, v{V_LANE}
    v_mul_u32_u24 v{t[1]}, {7*256}, v{t[1]}
    v_lshl_add_u32 v{vs}, v{t[0]}, 3, v{t[1]}
    s_mul_i32 s{T1}, s{STT}, {14*256}
    s_add_u32 s{T1}, s{T1}, {WS_ST}
    s_mul_i32 s{SH}, s{STT}, {28*1024}
    s_add_u32 s{SH}, s{SH}, {WS_H}
    ''')
    VSD = 222; SWB = S_DUM; SLB = S_DUM + 1
    a(f'''
    v_lshrrev_b32 v{t[0]}, 3, v{V_LANE}
    v_lshrrev_b32 v{t[1]}, 2, v{V_LANE}
    v_and_b32 v{t[1]}, 4, v{t[1]}
    v_and_b32 v{t[2]}, 7, v{V_LANE}
    v_xor_b32 v{t[1]}, v{t[1]}, v{t[2]}
    v_mul_u32_u24 v{t[0]}, 896, v{t[0]}
    v_lshl_add_u32 v{V_SRC2}, v{t[1]}, 4, v{t[0]}
    s_mul_i32 s{SWB}, s{S_W}, {448*896}
    s_lshl_b32 s{T0}, s{S_CB}, 7
    s_add_u32 s{SWB}, s{SWB}, s{T0}
    ''')
    def w2_dma(hl):
        base, per = (SCR, 12288) if hl < 3 else (PAIR, 14336)
        out = []
        for i in range(4):
            out.append(([f's_mul_i32 s{SLB}, s{S_W}, {per}', f's_add_u32 m0, s{SLB}, {base + (hl % 3)*4096}'] if i == 0 else []) +
                       [f's_add_u32 s{T0}, s{SWB}, {(256 + 32*hl + 8*i)*896 - 1024*i}',
                        ('vm', f'buffer_load_dwordx4 v{V_SRC2}, {sr4(SRD_A)}, s{T0} offen offset:{1024*i} lds', 'w2l')])
        return out
    NTP = NHG - opt('trE', 0) - opt('trC', 0)
    poll_issue(a, T2, V_FL, 14, vp)
    Ls = a.newlabel('skip')
    a(f's_cmp_ge_u32 s{S_J}, 28\ns_cbranch_scc1 {Ls}')
    while stg.nt < NTP: stg.trans()
    a.label(Ls)
    a('s_waitcnt lgkmcnt(0)\ns_barrier')
    a.stamp('D_pre')
    rest = [x for x in a.vm if x.startswith('hg')]
    poll_check(a, T2, V_FL, 14, vp)
    (a.stamp('D_poll'), a.stamp('R_D_pollc'), a.stamp('R_D_pollr', True)); a.stamp('F_poll')
    for c in range(7):
        a.vmem(f'buffer_load_dwordx2 {vr(ST+2*c,2)}, v{vs}, {sr4(SRD_WS)}, s{T1} offen offset:{256*c} sc1', 'st')
    SX_ = S_SPIN + 1
    a(f's_lshl_b32 s{SX_}, s{S_R14}, 11\nv_add_u32 v{vl[5]}, s{SH}, v{V_OFF}')
    def ldx(k):
        if k and k % 2 == 0: a(f's_add_u32 s{SX_}, s{SX_}, 2048\ns_sub_u32 s{T0}, s{SX_}, {28*1024}\ns_min_u32 s{SX_}, s{SX_}, s{T0}')
        a.vmem(f'buffer_load_dwordx4 {vr(X[k],4)}, v{vl[5]}, {sr4(SRD_WS)}, s{SX_} offen offset:{1024*(k&1)} sc1', f'x{k}')
    XLA = opt('xla', 10)
    for k in range(XLA): ldx(k)
    a(f's_or_b32 s{T0}, s2, s{S_W}\ns_cmp_lg_u32 s{T0}, 0\ns_cselect_b32 s{T0}, 0x40000000, {WS_FLG}')
    flag_store(a, T0, t[0])
    a.stamp('F_issued')
    Ls = a.newlabel('skip')
    a(f's_cmp_ge_u32 s{S_J}, 28\ns_cbranch_scc1 {Ls}')
    while stg.nt < NHG - opt('trE', 0): stg.trans()
    stg.close()
    a.label(Ls)
    SE = T5; SL = T1; SF = T2
    a(f'''
    s_mul_i32 s{SE}, s{STT}, 112
    s_mul_i32 s{T0}, s{S_FS}, 7
    s_add_u32 s{SE}, s{SE}, s{T0}
    s_add_u32 s{SL}, s{SE}, s{S_L0}
    s_add_u32 s{SE}, s{SE}, s{S_E0}
    s_lshl_b32 s{SE}, s{SE}, 10
    s_add_u32 s{SE}, s{SE}, {WS_HH}
    s_lshl_b32 s{SL}, s{SL}, 10
    s_add_u32 s{SL}, s{SL}, {WS_HH}
    s_add_u32 s{S_U1}, s{SE}, 4096
    s_lshl_b32 s{SF}, s{STT}, 4
    s_add_u32 s{SF}, s{SF}, s{S_FS}
    s_lshl_b32 s{SF}, s{SF}, 7
    s_add_u32 s{SF}, s{SF}, {FL_D1}
    ''')
    if opt('trC', 0): a('s_waitcnt lgkmcnt(0)')
    seq = [(j, k) for k in range(28) for j in (0, 1, 4)] + [(j, k) for j in (2, 3, 5, 6) for k in range(28)]
    def rdW(n):
        j, k = seq[n]
        if j == 4: return [f'ds_read_b64_tr_b16 {vr(W[n % NW]+2*u,2)}, v{vl[4]} offset:{k*512 + u*256}' for u in range(2)]
        return [f'ds_read_b64_tr_b16 {vr(W[n % NW]+2*u,2)}, v{vl[{0:0,1:1,2:2,3:3,5:0,6:1}[j]]} offset:{k*1024 + u*512}' for u in range(2)]
    AH = opt('ah', 7); assert AH + 2 <= NW and 2 * AH <= 16
    a.stamp('F_bar')
    for n in range(AH):
        for x in rdW(n): a(x)
    stat = [('wait', 'st')] + [f'v_add_f32 v{ST+2*c+b_}, v{ST+2*c+b_}, v{ST+2*c+2+b_}' for c in (0, 2, 4) for b_ in range(2)] + \
           [f'v_add_f32 v{ST+b_}, v{ST+b_}, v{ST+4+b_}' for b_ in range(2)] + [f'v_add_f32 v{ST+8+b_}, v{ST+8+b_}, v{ST+12+b_}' for b_ in range(2)] + \
           [f'v_add_f32 v{ST+b_}, v{ST+b_}, v{ST+8+b_}' for b_ in range(2)] + \
           [f'v_mov_b32 v{t[0]}, v{ST}', f'v_mov_b32 v{t[1]}, v{ST+1}', 's_nop 0', f'v_permlane32_swap_b32 v{t[0]}, v{ST}', f'v_permlane32_swap_b32 v{t[1]}, v{ST+1}',
            f'v_add_f32 v{t[0]}, v{t[0]}, v{ST}', f'v_add_f32 v{t[1]}, v{t[1]}, v{ST+1}',
            f'v_mul_f32 v{t[0]}, {fx(1/448)}, v{t[0]}', f'v_mul_f32 v{t[1]}, {fx(1/448)}, v{t[1]}',
            f'v_fma_f32 v{t[1]}, -v{t[0]}, v{t[0]}, v{t[1]}', f'v_max_f32 v{t[1]}, 0, v{t[1]}',
            f'v_add_f32 v{mu+1}, {fx(1e-5)}, v{t[1]}', f'v_rsq_f32 v{mu}, v{mu+1}', 's_nop 0', f'v_mul_f32 v{mu}, {fx(-math.log2(math.e))}, v{mu}']
    acc_of = {0: 0, 1: 1, 4: 2, 2: 3, 3: 0, 5: 1, 6: 2}
    def epi(j):
        A = ACC[acc_of[j]]
        out = []
        pk = opt('pkE', 0) if j != 6 else 2
        if pk >= 2:
            for r in range(0, 8, 2): out.append(f'v_pk_mul_f32 {vr(E[r],2)}, {vr(A+r,2)}, {vr(mu,2)} op_sel_hi:[1,0]')
        else:
            for r in range(8): out.append(f'v_mul_f32 v{E[r]}, v{mu}, v{A+r}')
        for r in range(8): out.append(f'v_exp_f32 v{E[r]}, v{E[r]}')
        if pk >= 1:
            for r in range(0, 8, 2): out.append(f'v_pk_mul_f32 {vr(A+r,2)}, {vr(A+r,2)}, {vr(A+8+r,2)}')
        else:
            for r in range(8): out.append(f'v_mul_f32 v{A+r}, v{A+r}, v{A+8+r}')
        if pk >= 2:
            for r in range(0, 8, 2): out.append(f'v_pk_fma_f32 {vr(E[r],2)}, {vr(E[r],2)}, {vr(mu,2)}, {vr(mu,2)} op_sel:[0,1,1] op_sel_hi:[1,1,1]')
        else:
            for r in range(8): out.append(f'v_fma_f32 v{E[r]}, v{E[r]}, v{mu+1}, v{mu+1}')
        for r in range(8): out.append(f'v_rcp_f32 v{E[r]}, v{E[r]}')
        if pk >= 1:
            for r in range(0, 8, 2): out.append(f'v_pk_mul_f32 {vr(A+r,2)}, {vr(A+r,2)}, {vr(E[r],2)}')
        else:
            for r in range(8): out.append(f'v_mul_f32 v{A+r}, v{A+r}, v{E[r]}')
        for i in range(4): out.append(f'v_cvt_pk_bf16_f32 v{HP+i}, v{A+2*i}, v{A+2*i+1}')
        sreg, off = (SE, 1024*j) if j < 4 else ((S_U1, 0) if j == 4 else (SL, 1024*(j-5)))
        out.append(('vm', f'buffer_store_dwordx4 {vr(HP,4)}, v{V_OFF}, {sr4(SRD_WS)}, s{sreg} offen offset:{off} sc1', f'hh{j}'))
        return out
    a.stamp('F_stats')
    a.vmwait('x0')
    a.stamp('F_x0')
    pend = []; late = []
    R['vfE'] = vs; R['vpE'] = vp
    for n, (j, k) in enumerate(seq):
        nn = n + AH
        if nn < len(seq) and seq[nn] == (5, 0):
            a.vmwait('late'); a('s_barrier')
        rd = rdW(nn) if nn < len(seq) else []
        WP = opt('wp', 4)
        if n % WP == 0:
            left = min(len(seq), n + AH) - (n + WP)
            a(f's_waitcnt lgkmcnt({max(0, 2*left)})')
        A = ACC[acc_of[j]]
        a(f'{MFMA} {vr(A,16)}, {vr(W[n % NW],4)}, {vr(X[k],4)}, {vr(A,16) if k else 0}')
        for x in rd: a(x)
        if n < 84 and j == 0 and k in (2, 4, 8, 16, 24): a.stamp(f'F_k{k}')
        if n >= 84 and k == 27: a.stamp(f'F_t{j}')
        if n < 84:
            if j == 1 and k + XLA < 28: ldx(k + XLA)
            if j == 4 and k + 1 < 28: a.vmwait(f'x{k+1}')
            if k >= 4 and stat:
                a.emit(stat.pop(0))
            if n == 83:
                a.stamp('D_st1')
                assert not stat
                a('s_barrier')
                srd(a, SRD_A, P_W2, W2_BYTES)
                late = [pair_dma(S13, L13, 0, 0, i, 'late') for i in range(14)]
                g1 = [x for hl in range(3) for x in w2_dma(hl)]; g2 = [x for hl in range(3, 6) for x in w2_dma(hl)]
        else:
            if n == 84 + 2: pend = epi(0) + epi(1) + epi(4) + epi(2) + epi(3) + epi(5); done = 0; tot = len(pend); one = tot // 6
            if n >= 84 + 2:
                want = min(tot, (n - 85) * tot // 108 + 1)
                lim = {2: 3, 3: 3 + (k >= 2), 5: 4 + (k >= 2), 6: 5 + (k >= 2)}[j] * one
                while done < min(want, lim):
                    a.emit(pend.pop(0)); done += 1
                if k == 27:
                    need = {2: 1, 3: 2, 5: 3, 6: 6}[j] * one
                    while done < need:
                        a.emit(pend.pop(0)); done += 1
            if (j, k) == (5, 0): a('s_barrier')
            if k % opt('latestep', 2) == 0:
                q_ = late if late else (g1 if g1 else (g2 if j >= 5 else []))
                if q_:
                    for x in q_.pop(0): a.emit(x)
            if j == 5 and k == opt('f1k', 6):
                a.vmwait('hh1'); flag_store(a, SF, vp)
            if j == 6 and k == opt('f2k', 14) and not opt('d2late', 1):
                a(f's_add_u32 s{SF}, s{SF}, {FLS}')
                a.vmwait('hh2'); flag_store(a, SF, vl[2])
                a(f's_add_u32 s{SF}, s{SF}, {FLS}')
            if j == 6 and k == opt('p1k', 18):
                flag8_addr(a, vs, vp, vl[4], S_SPIN + 1, FL_D1)
                poll_issue(a, S_SPIN + 1, vs, 8, vp)
    assert not late and not g1 and not g2
    a.stamp('D_loop')
    if opt('d2late', 1):
        a(f's_add_u32 s{SF}, s{SF}, {FLS}')
        a.vmwait('hh3'); flag_store(a, SF, vl[2])
        a(f's_add_u32 s{SF}, s{SF}, {FLS}')
    for x in epi(6): a.emit(x)
    (a.stamp('D_epi'), a.stamp('R_D_epic'), a.stamp('R_D_epir', True))
    R['SF'] = SF

def phase_e(a, R, stg):
    va = VA(4, 199)
    ACC = [va(16) for _ in range(4)]
    NB = 16
    BUF = [[va(4) for l in range(2)] for d in range(NB)]
    vf = R['vfE']; vp = R['vpE']
    t = [204, 205, 206, 207]; vt = 208
    assert vf >= va.n and vp >= va.n and vf < 204 and vp < 204
    STT, SCT = T1, T3
    SP = S_SPIN + 1
    tile_ids(a, STT, SCT)
    a(f's_mul_i32 s{T4}, s{S_W}, {28*1024}')
    for l in range(2):
        a(f'''
        s_xor_b32 s{T0}, s{STT}, {l}
        s_mul_i32 s{T0}, s{T0}, {112*1024}
        s_add_u32 s{T0}, s{T0}, s{T4}
        s_add_u32 s{S_U0+l}, s{T0}, {WS_HH}
        ''')
    e0 = lambda f: 2 if f == 2 else 0
    l0 = lambda f: 0 if f == 2 else 5
    order = [7*f + e0(f) + j for j in (0, 1, 4, 2, 3) for f in range(4)] + [7*f + l0(f) + j for j in range(2) for f in range(4)]
    assert sorted(order) == list(range(28))
    if opt('erot', 0):
        for f_ in range(4):
            a(f's_add_u32 s{T0}, s{S_CB}, {f_}\ns_and_b32 s{T0}, s{T0}, 3\ns_mul_i32 s{T0}, s{T0}, 7168')
            for l in range(2): a(f's_add_u32 s{70 + 4*l + f_}, s{T0}, s{S_U0 + (l ^ 0)}')
        if opt('erot', 0) == 2:
            a(f's_lshr_b32 s{T0}, s{S_CB}, 2\ns_cmp_lg_u32 s{T0}, 0')
            for f_ in range(4):
                a(f's_mov_b32 s{T0}, s{70+f_}\ns_cselect_b32 s{70+f_}, s{74+f_}, s{70+f_}\ns_cselect_b32 s{74+f_}, s{T0}, s{74+f_}')
    poll_check(a, SP, vf, 8, vp)
    a.stamp('E_poll1')
    N2 = 20 if opt('d2late', 1) else 16
    B4 = opt('b4', 0)
    st = dict(nxt=0)
    FL3 = opt('efl', 7); PI2 = opt('epi2', 3); PI3 = opt('epi3', 15)
    def ld_items():
        n = st['nxt']; st['nxt'] += 1
        pre = []
        if B4 and n == opt('efl5', 4): pre.append(('call', lambda: (a.vmwait('hh5'), flag_store(a, R['SF'], vt), a(f's_add_u32 s{R["SF"]}, s{R["SF"]}, {FLS}'))))
        if n == FL3: pre.append(('call', lambda: (a.vmwait('hh6'), flag_store(a, R['SF'], vt))))
        if n in ((8, N2, 24) if B4 else (8, N2)):
            nm = {8: 2, N2: 3, 24: 4}[n]
            pre.append(('call', lambda: (a.stamp(f'E_pre{nm}'), poll_check(a, SP, vf, 8, vp), a.stamp(f'E_poll{nm}'))))
        if n in ((PI2, PI3, opt('epi4', 21)) if B4 else (PI2, PI3)): pre.append(('call', lambda: (a(f's_add_u32 s{SP}, s{SP}, {FLS}'), poll_issue(a, SP, vf, 8, vp))))
        ks = order[n]
        out = []
        for l in range(2):
            if opt('erot', 0):
                f_, o_ = divmod(ks, 7)
                out.append((pre if l == 0 else []) + [f's_add_u32 s{T0}, s{70 + 4*l + f_}, {o_ * 1024}',
                           ('vm', f'buffer_load_dwordx4 {vr(BUF[n % NB][l],4)}, v{V_OFF}, {sr4(SRD_WS)}, s{T0} offen sc1', f'h{n}')])
                continue
            out.append((pre if l == 0 else []) + [f's_add_u32 s{T0}, s{S_U0+l}, {(ks >> 2) * 4096}',
                       ('vm', f'buffer_load_dwordx4 {vr(BUF[n % NB][l],4)}, v{V_OFF}, {sr4(SRD_WS)}, s{T0} offen offset:{1024*(ks&3)} sc1', f'h{n}')])
        return out
    def ld():
        for it in ld_items():
            for x in it: a.emit(x)
    LA = opt('ela', 8)
    for n in range(LA): ld()
    for j in range(8):
        a(f'v_lshlrev_b32 v{ACC[0]+2*j}, 16, v{HKEEP+j}\nv_and_b32 v{ACC[0]+2*j+1}, 0xffff0000, v{HKEEP+j}')
    red_addr(a, t)
    RA = [209, 210, 211, 212]
    a(f'''
    s_lshl_b32 s{T0}, s{S_W}, 13
    v_add_u32 v{RA[0]}, s{T0}, v{V_RD}
    v_add_u32 v{RA[1]}, s{T0}, v{V_RD+1}
    s_mul_i32 s{T0}, s{S_W}, {14336 - 4096}
    s_sub_u32 s{T0}, s{T0}, {SCR - PAIR}
    v_add_u32 v{RA[2]}, s{T0}, v{V_RD}
    v_add_u32 v{RA[3]}, s{T0}, v{V_RD+1}
    ''')
    if opt('trE', 0):
        a('s_barrier')
        a(f'''
        v_subrev_u32 v{V_RD}, {SCR}, v{V_RD}
        v_subrev_u32 v{V_RD+1}, {SCR}, v{V_RD+1}
        v_lshrrev_b32 v{V_P13}, 3, v{V_LANE}
        v_lshlrev_b32 v{V_P13}, 7, v{V_P13}
        s_lshl_b32 s{T0}, s{S_W}, 12
        v_add3_u32 v{V_P13}, s{T0}, v{V_OFF}, v{V_P13}
        ''')
        stg.vw = V_P13
        while stg.nt < NHG: stg.trans()
        a('s_waitcnt lgkmcnt(0)')
    Ls = [n for n in range(28) if order[n] >= 16]
    WB = [WOV + 8*i for i in range(4)]
    lst = dict(rd=0)
    def lread():
        i = lst['rd']; lst['rd'] += 1
        hl, s_ = divmod(order[Ls[i]] - 16, 2)
        return [f'ds_read_b64_tr_b16 {vr(WB[i % 4] + 4*lc + 2*u, 2)}, v{RA[2*(hl // 3) + lc]} offset:{(hl % 3)*4096 + s_*2048 + u*1024}' for lc in range(2) for u in range(2)]
    for _ in range(3):
        for x in lread(): a(x)
    def lwait(n):
        if n in Ls: a(f's_waitcnt lgkmcnt({4 * (lst["rd"] - 1 - Ls.index(n))})')
    def mm(n, l):
        ks = order[n]
        p, b = stg.dest(4 + (ks >> 1), ks & 1, l >> 1) if ks < 16 else ('v', WB[Ls.index(n) % 4] + 4 * (l >> 1))
        a(f'{MFMA} {vr(ACC[l],16)}, {vr(b,4,p)}, {vr(BUF[n % NB][l & 1],4)}, {vr(ACC[l],16) if (n or l == 0) else 0}')
    KT = 28 - opt('etail', 3)
    for n in range(KT):
        lwait(n)
        a.vmwait(f'h{n}')
        items = []
        for _ in range(2 if n < opt('egrow', 0) else 1):
            if st['nxt'] < 28 and st['nxt'] - NB < n: items += ld_items()
        rd = lread() if (n in Ls and lst['rd'] < len(Ls)) else []
        for l in range(4):
            mm(n, l)
            if rd: a(rd.pop(0))
            if items and (len(items) > 2 or l & 1 == 0 or l == 3):
                for x in items.pop(0): a.emit(x)
        assert not items
        if n == opt('ebar', 20):
            assert all(m <= n for m in Ls if order[m] < 22)
            a('s_barrier')
    assert st['nxt'] == 28 and lst['rd'] == len(Ls)
    a('s_waitcnt lgkmcnt(0)')
    for l in (1, 2, 3, 0):
        for n in range(KT, 28):
            if l == 1: a.vmwait(f'h{n}')
            mm(n, l)
        if l in (2, 3): red_write(a, ACC, t, l - 1)
    a.stamp('E_mfma')
    red_write(a, ACC, t, 3)
    srd(a, SRD_A, P_OUT, X_BYTES)
    a(f'''
    v_and_b32 v{vf}, 31, v{V_LANE}
    v_lshrrev_b32 v{vp}, 5, v{V_LANE}
    v_mul_u32_u24 v{vf}, 896, v{vf}
    v_lshl_add_u32 v{vf}, v{vp}, 4, v{vf}
    s_mul_i32 s{T0}, s{STT}, {32*896}
    s_lshl_b32 s{T2}, s{SCT}, 6
    s_add_u32 s{T0}, s{T0}, s{T2}
    ''')
    red_read(a, ACC, t)
    if opt('bias', 0):
        for r in range(16): a(f"v_add_f32 v{ACC[0]+r}, {fx(opt('bias', 0) * 1e-3)}, v{ACC[0]+r}")
    PKR = ACC[1]
    for j in range(8): a(f'v_cvt_pk_bf16_f32 v{PKR+j}, v{ACC[0]+2*j}, v{ACC[0]+2*j+1}')
    for g in (0, 4):
        a(f'v_permlane32_swap_b32 v{PKR+g}, v{PKR+g+2}\nv_permlane32_swap_b32 v{PKR+g+1}, v{PKR+g+3}')
    fl_ = ['', ' sc1', ' nt', ' sc0 sc1'][opt('outst', 2)]
    a(f'buffer_store_dwordx4 {vr(PKR,4)}, v{vf}, {sr4(SRD_A)}, s{T0} offen{fl_}')
    a(f'buffer_store_dwordx4 {vr(PKR+4,4)}, v{vf}, {sr4(SRD_A)}, s{T0} offen offset:32{fl_}')
    a.stamp('E_st')

def gen():
    a = K()
    a.stamp('rt0', True); a.stamp('t0')
    HB = opt('hb', 3); DB = opt('db', 3)
    if int(os.environ.get('TFIX', '0')): a('s_memrealtime s[60:61]')
    a(f'''
    s_cmp_ge_u32 s2, 256
    s_cbranch_scc1 Lend
    s_load_dwordx16 s[32:47], s[0:1], 0
    s_load_dwordx2 s[50:51], s[0:1], 72
    v_lshrrev_b32 v2, 6, v0
    v_and_b32 v{V_LANE}, 63, v0
    v_readfirstlane_b32 s{S_W}, v2
    v_lshlrev_b32 v{V_OFF}, 4, v{V_LANE}
    v_lshlrev_b32 v{V_FL}, 7, v{V_LANE}
    s_and_b32 s{T0}, s2, 7
    s_lshr_b32 s{S_J}, s2, 3
    s_and_b32 s{S_H}, s{T0}, {(16 >> HB) - 1}
    s_lshl_b32 s{S_H}, s{S_H}, {HB}
    s_and_b32 s{T1}, s{S_J}, {(1 << HB) - 1}
    s_add_u32 s{S_H}, s{S_H}, s{T1}
    s_lshr_b32 s{S_TB}, s{T0}, {4 - HB}
    s_lshl_b32 s{S_TB}, s{S_TB}, {5 - HB}
    s_lshr_b32 s{T1}, s{S_J}, {HB}
    s_add_u32 s{S_TB}, s{S_TB}, s{T1}
    s_mul_i32 s{T1}, s{S_J}, 9363
    s_lshr_b32 s{T1}, s{T1}, 16
    s_mul_i32 s{T2}, s{T1}, 7
    s_sub_u32 s{S_CB}, s{S_J}, s{T2}
    s_lshl_b32 s{S_RB}, s{T0}, 2
    s_add_u32 s{S_RB}, s{S_RB}, s{T1}
    s_and_b32 s{S_TD}, s{T0}, {(16 >> DB) - 1}
    s_lshl_b32 s{S_TD}, s{S_TD}, {DB}
    s_and_b32 s{T1}, s{S_J}, {(1 << DB) - 1}
    s_add_u32 s{S_TD}, s{S_TD}, s{T1}
    s_lshr_b32 s{S_FS}, s{T0}, {4 - DB}
    s_lshl_b32 s{S_FS}, s{S_FS}, {5 - DB}
    s_lshr_b32 s{T1}, s{S_J}, {DB}
    s_add_u32 s{S_FS}, s{S_FS}, s{T1}
    ''')
    if opt('cpre', 1):
        a('s_getpc_b64 s[54:55]')
        a.label('Lpc')
        a(f'''
        s_lshl_b32 s{T0}, s{S_J}, 2
        s_add_u32 s{T0}, s{T0}, s{S_W}
        s_mul_i32 s{T0}, s{T0}, 3
        v_add_u32 v4, s{T0}, v{V_LANE}
        v_lshlrev_b32 v4, 7, v4
        v_min_u32 v4, Lcode_end-Lpc-4, v4
        v_mov_b32 v5, s55
        v_add_co_u32 v4, vcc, s54, v4
        v_addc_co_u32 v5, vcc, 0, v5, vcc
        s_mov_b64 exec, 7
        ''')
        a.vmem('global_load_dword a4, v[4:5], off', 'code')
        a('s_mov_b64 exec, -1')
    R = alloc_b()
    phase_a(a, R)
    a(f'''
    s_and_b32 s{T0}, s{S_FS}, 3
    s_cmp_eq_u32 s{T0}, 2
    s_cselect_b32 s{S_E0}, 2, 0
    s_cselect_b32 s{S_L0}, 0, 5
    s_and_b32 s{T0}, s{S_J}, {(1 << DB) - 1}
    s_lshr_b32 s{T1}, s{S_J}, {DB}
    s_mul_i32 s{T1}, s{T1}, {opt('r14b', 7)}
    s_mul_i32 s{T0}, s{T0}, {opt('r14a', 1)}
    s_add_u32 s{T0}, s{T0}, s{T1}
    s_mul_i32 s{T1}, s{T0}, 4682
    s_lshr_b32 s{T1}, s{T1}, 16
    s_mul_i32 s{T1}, s{T1}, 14
    s_sub_u32 s{S_R14}, s{T0}, s{T1}
    ''')
    stg = Stager(a)
    phase_b(a, R, stg)
    a(f's_cmp_ge_u32 s{S_J}, 28\ns_cbranch_scc1 LnoC')
    phase_c(a, R, stg)
    a('s_branch LD')
    vm_c = list(a.vm)
    a.label('LnoC')
    a.vmall()
    flag_store(a, T5, 4)
    a('s_barrier')
    put5(a, 5)
    if opt('idle', 0):
        srd(a, SRD_A, P_W2, W2_BYTES)
        a(f'''
        s_sub_u32 s{T1}, s{S_J}, 28
        s_mul_i32 s{T0}, s{T1}, {448*896}
        s_mul_i32 s{T2}, s{S_W}, {336*128}
        s_add_u32 s{T0}, s{T0}, s{T2}
        s_add_u32 s{T0}, s{T0}, {256*896}
        ''')
        for i in range(6):
            if i == 5: a(xm(16))
            a(f'buffer_load_dword a{10+i}, v{V_FL}, {sr4(SRD_A)}, s{T0} offen\ns_add_u32 s{T0}, s{T0}, 8192')
        a(f'''
        s_mov_b64 exec, -1
        s_cmp_eq_u32 s{T1}, 2
        s_cselect_b32 s{T2}, 0, 160
        s_and_b32 s{T0}, s{S_FS}, 12
        s_add_u32 s{T0}, s{T0}, s{T1}
        s_mul_i32 s{T0}, s{T0}, 224
        s_add_u32 s{T0}, s{T0}, s{T2}
        s_and_b32 s{T2}, s{S_W}, 1
        s_mul_i32 s{T2}, s{T2}, {224*3584}
        s_add_u32 s{T0}, s{T0}, s{T2}
        v_mul_u32_u24 v4, 3584, v{V_LANE}
        ''')
        for i in range(4):
            if i == 3: a(xm(32))
            a(f'buffer_load_dword a{16+i}, v4, {sr4(SRD_B)}, s{T0} offen\ns_add_u32 s{T0}, s{T0}, {64*3584}')
        a('s_mov_b64 exec, -1')
    a.label('LD')
    a.vm = vm_c
    phase_d(a, R, stg)
    a(f's_cmp_ge_u32 s{S_J}, 28\ns_cbranch_scc0 LE')
    vm_d = list(a.vm)
    a('s_waitcnt vmcnt(0)')
    flag_store(a, R['SF'], 4)
    if opt('b4', 0):
        a(f's_add_u32 s{R["SF"]}, s{R["SF"]}, {FLS}'); flag_store(a, R['SF'], 4)
    a('s_branch Lfin')
    a.label('LE')
    a.vm = vm_d
    phase_e(a, R, stg)
    a.label('Lfin')
    if int(os.environ.get('TFIX', '0')):
        a.label('Lfix')
        a(f's_memrealtime s[62:63]\ns_waitcnt lgkmcnt(0)\ns_sub_u32 s62, s62, s60\ns_cmp_lt_u32 s62, {int(os.environ["TFIX"])}\ns_cbranch_scc1 Lfix')
    if STAMP:
        a('s_waitcnt vmcnt(0)')
        a.stamp('end'); a.stamp('rt1', True)
        a(f's_waitcnt lgkmcnt(0)\ns_lshl_b32 s{T0}, s2, 2\ns_add_u32 s{T0}, s{T0}, s{S_W}\ns_lshl_b32 s{T0}, s{T0}, 7\ns_add_u32 s{T0}, s{T0}, {WS_DBG}\nv_mov_b32 v4, 0')
        for i in range(a.nst):
            a(f'v_mov_b32 v5, s{60+2*i}\nbuffer_store_dword v5, v4, {sr4(SRD_WS)}, s{T0} offen offset:{4*i}')
    if STAMP and int(os.environ.get('DBGOUT', '0')):
        n = a.nst
        a(f'''
        s_load_dwordx2 s[{SRD_A}:{SRD_A+1}], s[0:1], 64
        s_mov_b32 s{SRD_A+2}, 256
        s_mov_b32 s{SRD_A+3}, 0x20000
        s_not_b32 s{T1}, s60
        v_mov_b32 v6, s{T1}
        v_mov_b32 v7, s{60+2*(n-1)}
        v_mov_b32 v8, s60
        s_mov_b64 exec, 1
        s_waitcnt lgkmcnt(0)
        buffer_atomic_umax v6, v4, {sr4(SRD_A)}, 0 offen
        buffer_atomic_umax v7, v4, {sr4(SRD_A)}, 0 offen offset:4
        buffer_atomic_umax v8, v4, {sr4(SRD_A)}, 0 offen offset:8
        s_or_b32 s{T0}, s2, s{S_W}
        s_cmp_lg_u32 s{T0}, {int(os.environ.get('DBGWG', '0'))}
        s_cbranch_scc1 Lend
        ''')
        for i in range(2, min(n - 1, 15)):
            a(f's_sub_u32 s{T0}, s{60+2*i}, s62\nv_mov_b32 v5, s{T0}\nbuffer_store_dword v5, v4, {sr4(SRD_A)}, 0 offen offset:{4*(i+1)}')
    a.label('Lend')
    a('s_endpgm')
    fallback(a, R)
    a.label('Lcode_end')
    a.finalize()
    head = open('sequential_preLN__mha_block__glu_gated_swiglu__prompt.s.ref').read().split('; Override')[0]
    pre = f'.amdgcn_target "amdgcn-amd-amdhsa--gfx950"\n.text\n.p2align 12\n.fill {(4096 - 0x300) // 4}, 4, 0xbf800000\n.globl {NAME}\n.p2align 8\n.type {NAME},@function\n{NAME}:\n'
    if opt('visit', 1):
        import subprocess, re, tempfile
        from asmgen import Ins
        tmp = tempfile.mkdtemp()
        open(tmp + '/t.s', 'w').write(pre + a.text() + ''.join(f'Lpage{i}:\n' for i in range(1, 13)))
        subprocess.run(['clang', '-x', 'assembler', '-target', 'amdgcn-amd-amdhsa', '-mcpu=gfx950', '-c', tmp + '/t.s', '-o', tmp + '/t.o'], check=True)
        dis = subprocess.run(['llvm-objdump', '-d', '--mcpu=gfx950', tmp + '/t.o'], capture_output=True, text=True).stdout
        dis = dis[dis.index(f'<{NAME}>:'):]
        sizes = [4 * len(m.group(1).split()) for m in re.finditer(r'// [0-9A-F]{12}: ([0-9A-F ]+)$', dis, re.M)]
        out = []; off = 0; page = 1; k = 0; masked = False
        for x in a.ins:
            if x.kind not in ('label', 'dir'):
                if off >= 4096 * page and page <= 12 and not masked:
                    out += [Ins(f'Lpage{page}:'), Ins(f's_cbranch_execz Lvis{(page - 1) // 4}')]
                    off += 4; page += 1
                off += sizes[k]; k += 1
                if ('exec', 0) in x.wr: masked = x.text.split(';')[0].strip() != 's_mov_b64 exec, -1'
            out.append(x)
        assert k == len(sizes), (k, len(sizes))
        for pg in range(page, 13): out += [Ins(f'Lpage{pg}:'), Ins(f's_branch Lvis{(pg - 1) // 4}')]
        a.ins = out
    s = head + f'; @launch grid=(256,1,1) block=(256,1,1) lds={LDS_BYTES}\n' + ''.join('; ' + l + '\n' for l in DOC.strip().split('\n')) + pre + a.text()
    s += f'''.section .rodata,"a"
.p2align 6
.amdhsa_kernel {NAME}
  .amdhsa_next_free_vgpr 512
  .amdhsa_next_free_sgpr 102
  .amdhsa_accum_offset 256
  .amdhsa_group_segment_fixed_size 0
  .amdhsa_kernarg_size 80
  .amdhsa_user_sgpr_count 2
  .amdhsa_user_sgpr_kernarg_segment_ptr 1
  .amdhsa_system_sgpr_workgroup_id_x 1
.end_amdhsa_kernel
'''
    if STAMP: s = '; STAMPS ' + ' '.join(a.names) + '\n' + s
    print(f'instrs={len(a.ins)} nop_states={a.nops} stamps={a.nst}', file=sys.stderr)
    return s

if __name__ == '__main__':
    open(sys.argv[1], 'w').write(gen())
```

```python
import sys, struct, math, os
from asmgen import Asm

DOC = '''
One persistent launch, 256 workgroups (one per CU, 4 waves of 512 registers, all 160 KB of LDS), five phases.
Workgroups hand data to each other through d_ws with write-through (sc1) stores, a drained per-wave flag and sc1 loads.
Flags carry a launch tag = (epoch word found in d_ws) + 1; workgroup 0 advances the epoch once everybody has read it.
 A  LN1 + QKV: K or V of a head pair for 128 tokens, then Q of the own head. LayerNorm is applied after the GEMM:
    rstd * (x W - mean * colsum(W)); Q is pre-scaled by log2(e)/sqrt(28).
 B  attention of (head, 128 queries); the four waves split the keys. exp2(s - m) with m = maximum over the wave's first
    32-key tile (rides in a padded k slot of Q against a column of ones in K); the row sum is a column of ones in V.
    The row sum is checked at run time: outside [2^-64, 2^64] (or NaN) the query tile is redone with the true row maximum (Lfb).
 C  h = x + o wo on 64x64 tiles, split-K over waves; publishes h - rowmean(h) and partial sums for the variance.
 D  gate/up GEMM on the centred rows, rstd folded into silu(gate) * up.
 E  out = h + hh w2 on 64x64 tiles.
Weights are fetched ahead of their phase into LDS / spare registers and transposed by ds_read_b64_tr_b16.
'''
NAME = 'sequential_preLN__mha_block__glu_gated_swiglu__prompt_kernel'
MB = 1 << 20
WS_KV  = 0
WS_O   = 4 * MB
WS_H   = 6 * MB
WS_ST  = 8 * MB
WS_HH  = 9 * MB
WS_FLG = 16 * MB
FL_A = WS_FLG + 0x10000
FL_B = FL_A + 1024 * 128
FL_C = FL_B + 1024 * 128
FL_D1 = FL_C + 1024 * 128
FL_D2 = FL_D1 + 1024 * 128
FL_D3 = FL_D2 + 1024 * 128
FL_W = FL_D3 + 1024 * 128
WS_WB = WS_ST + 0x80000
WS_MH = WS_ST + 0x90000
FLS = 1024 * 128
WS_DBG = 17 * MB
WS_SIZE = 18 * MB

X_BYTES = 2048 * 448 * 2
WQKV_BYTES = 448 * 1344 * 2
WO_BYTES = 448 * 448 * 2
W1_BYTES = 448 * 1792 * 2
W2_BYTES = 1792 * 448 * 2
LDS_BYTES = 163840
MFMA = 'v_mfma_f32_32x32x16_bf16'
STAMP = int(os.environ.get('STAMP', '0'))
OPT = dict(kv.split('=') for kv in os.environ.get('OPT', '').split(',') if kv)
def opt(k, d): return int(OPT.get(k, d))

def f2u(x): return struct.unpack('<I', struct.pack('<f', x))[0]
def fx(x): return hex(f2u(x))
def vr(b, n=1, p='v'): return f'{p}[{b}:{b+n-1}]' if n > 1 else f'{p}{b}'
def sr4(b): return f's[{b}:{b+3}]'

class VA:
    def __init__(self, start, limit): self.n = start; self.limit = limit
    def __call__(self, cnt=1, align=None):
        if align is None: align = 1 if cnt == 1 else (2 if cnt == 2 else 4)
        self.n = (self.n + align - 1) // align * align
        b = self.n; self.n += cnt
        assert self.n <= self.limit, f'out of registers {self.n} > {self.limit}'
        return b

class K(Asm):
    def __init__(self):
        super().__init__(); self.vm = []; self.nst = 0; self.nlab = 0; self.names = []
    def vmem(self, text, tag):
        self(text); self.vm.append(tag)
    def vmwait(self, *tags, lgkm=None):
        idx = [i for i, t in enumerate(self.vm) if t in tags]
        s = ''
        if idx:
            n = len(self.vm) - 1 - max(idx)
            s += f' vmcnt({min(n, 63)})'
            self.vm = self.vm[len(self.vm) - n:] if n else []
        if lgkm is not None: s += f' lgkmcnt({lgkm})'
        if s: self('s_waitcnt' + s)
    def vmall(self):
        self('s_waitcnt vmcnt(0)'); self.vm = []
    def emit(self, x):
        if isinstance(x, tuple):
            if x[0] == 'vm': self.vmem(x[1], x[2])
            elif x[0] == 'wait': self.vmwait(*x[1:])
            elif x[0] == 'call': x[1]()
        else: self(x)
    def stamp(self, name='', real=False):
        if not STAMP: return
        if name and name[0] in 'ABCDEFGHIR' and name[0] not in os.environ.get('STAMPSET', 'AB'): return
        if name in self.names:
            i = self.names.index(name)
        else:
            i = self.nst; self.nst += 1; self.names.append(name)
        assert i < 19
        self(f's_mem{"real" if real else ""}time s[{60+2*i}:{61+2*i}]')
    def newlabel(self, p):
        self.nlab += 1; return f'L{p}{self.nlab}'

S_W = 3
SRD_X = 4; SRD_WQKV = 8; SRD_WS = 12; SRD_A = 16; SRD_B = 20
P_X, P_WQKV, P_WO, P_W1, P_W3, P_W2, P_OUT, P_WS = 32, 34, 36, 40, 42, 44, 46, 50
S_TAG = 24; S_H = 25; S_TB = 26; S_RB = 27; S_CB = 28; S_TD = 29; S_FS = 30; S_J = 31
S_E0 = 38; S_L0 = 39
S_U0 = 48; S_U1 = 49
S_ONES = 52
T0, T1, T2, T3, T4, T5, T6 = 53, 54, 55, 56, 57, 58, 59
S_SPIN = 98
S_ROT = 39
S_DUM = 100
S_RX = 99
S_WG = 32
WROW = 232
MUX = 216
S_R14 = 0; S_RG = 1
V_LANE = 1; V_OFF = 2; V_FL = 3
V_SRC = 212; V_P13 = 213; V_RD = 214
HKEEP = 216
V_SRC2 = 0
XRES = 204
WOV = 224
PAIR = 57344; SCR = 2 * PAIR; SINGLE = SCR + 16384
NHG = 12
RAW5 = 196

def xm(n):
    if n >= 64: return 's_mov_b64 exec, -1'
    if n < 31: return f's_mov_b64 exec, {hex((1 << n) - 1)}'
    lo = '-1' if n >= 32 else hex((1 << n) - 1)
    return f's_mov_b32 exec_lo, {lo}\ns_mov_b32 exec_hi, {hex((1 << max(0, n - 32)) - 1)}'

def srd(a, d, p, nbytes):
    a(f's_mov_b32 s{d}, s{p}\ns_mov_b32 s{d+1}, s{p+1}\ns_mov_b32 s{d+2}, {nbytes}\ns_mov_b32 s{d+3}, 0x20000')

def visit(a, site):
    if not opt('visit', 1): return
    a('s_mov_b64 exec, 0')
    for w in range(4):
        a(f's_cmp_eq_u32 s{S_W}, {w}\ns_cbranch_scc1 Lpage{1 + 4*site + w}')
    a.label(f'Lvis{site}')
    a('s_mov_b64 exec, -1')

def halfsum(a, x, t):
    a(f'v_mov_b32 v{t}, v{x}\nv_permlane32_swap_b32 v{x}, v{t}\nv_add_f32 v{x}, v{x}, v{t}')

def flag_store(a, sreg, vt):
    a(f'v_mov_b32 v{vt}, s{S_TAG}\ns_mov_b64 exec, 1')
    a.vmem(f'buffer_store_dword v{vt}, v{V_OFF}, {sr4(SRD_WS)}, s{sreg} offen sc1', 'flag')
    a('s_mov_b64 exec, -1')

def poll_issue(a, sreg, vaddr, nl, vt):
    a(xm(nl))
    a.vmem(f'buffer_load_dword v{vt}, v{vaddr}, {sr4(SRD_WS)}, s{sreg} offen sc1', 'poll')
    a('s_mov_b64 exec, -1')

def poll_check(a, sreg, vaddr, nl, vt):
    L = a.newlabel('poll'); D = L + 'd'
    a(xm(nl) + f'\ns_mov_b32 s{S_SPIN}, 0x200000')
    a.vmwait('poll')
    a(f'v_cmp_ne_u32 vcc, s{S_TAG}, v{vt}\ns_cbranch_vccz {D}')
    a.label(L)
    a(f'''
    {f"s_sleep {opt('sleep', 0)}" if opt('sleep', 0) else ''}
    buffer_load_dword v{vt}, v{vaddr}, {sr4(SRD_WS)}, s{sreg} offen sc1
    s_sub_u32 s{S_SPIN}, s{S_SPIN}, 1
    s_waitcnt vmcnt(0)
    s_cbranch_scc1 {D}
    v_cmp_ne_u32 vcc, s{S_TAG}, v{vt}
    s_cbranch_vccnz {L}
    ''')
    a.label(D)
    a('s_mov_b64 exec, -1')

def ssrd(a, D, lim, pa, pb, na, nb, per, u0, u1):
    a(f'''
    s_lshl_b32 s{u0}, s2, 2
    s_add_u32 s{u0}, s{u0}, s{S_W}
    s_mov_b32 s{D+2}, {na}
    s_cmp_ge_u32 s{u0}, {lim}
    s_cselect_b32 s{D}, s{pb}, s{pa}
    s_cselect_b32 s{D+1}, s{pb+1}, s{pa+1}
    s_cselect_b32 s{D+2}, {nb}, s{D+2}
    s_cselect_b32 s{u1}, {lim}, 0
    s_sub_u32 s{u0}, s{u0}, s{u1}
    s_mul_i32 s{u0}, s{u0}, {per}
    s_min_u32 s{u0}, s{u0}, s{D+2}
    s_sub_u32 s{D+2}, s{D+2}, s{u0}
    s_add_u32 s{D}, s{D}, s{u0}
    s_addc_u32 s{D+1}, s{D+1}, 0
    s_mov_b32 s{D+3}, 0x20000
    ''')

def sld(D, o): return f's_buffer_load_dwordx2 s[{S_DUM}:{S_DUM+1}], {sr4(D)}, {o + 60}'

def phase_a(a, R):
    WR = 114688
    WQ = 16384
    CSP = WR + 5 * 8192
    PRV = CSP + 1536
    QX = 49152
    assert PRV + 2048 <= LDS_BYTES
    R['QX'] = QX
    Q0 = R['Q'][0]
    va = VA(4, 256)
    ACC = [va(16), va(16)]; accQ = va(16)
    PK = va(8); assert PK == Q0, (PK, Q0)
    X = [va(4) for _ in range(28)]
    NWF = 4
    WF = [[va(4) for j in range(2)] for b in range(NWF)]
    vx = [va(), va()]; vw = [va(), va()]
    ax = [va() for _ in range(4)]; aw = [va() for _ in range(4)]; ab = [va() for _ in range(4)]
    pr = [va(2) for _ in range(6)]
    cs = [pr[0], pr[1], pr[2]]; mu = pr[3]; rs = pr[4]; rq = pr[5]
    sm = [pr[0] + 1, pr[1] + 1]; sq = [pr[2] + 1, pr[3] + 1]
    hf = pr[4] + 1; n31 = pr[5] + 1
    vq = va()
    t = [va() for _ in range(7)] + [0]
    dB = t[7]
    assert va.n <= 240, va.n
    T16 = 240; U16 = accQ
    a(f'v_lshrrev_b32 v{hf}, 5, v{V_LANE}\nv_and_b32 v{n31}, 31, v{V_LANE}')
    for i in range(2):
        a(f'''
        v_lshrrev_b32 v{t[0]}, 3, v{V_LANE}
        v_add_u32 v{t[0]}, {8*i}, v{t[0]}
        v_lshrrev_b32 v{t[1]}, 1, v{t[0]}
        v_and_b32 v{t[1]}, 7, v{t[1]}
        v_and_b32 v{t[2]}, 7, v{V_LANE}
        v_xor_b32 v{t[1]}, v{t[1]}, v{t[2]}
        v_lshlrev_b32 v{t[1]}, 4, v{t[1]}
        v_mul_u32_u24 v{t[0]}, 896, v{t[0]}
        v_add_u32 v{vx[i]}, v{t[0]}, v{t[1]}
        ''')
    a(f'''
    v_subrev_u32 v{vx[1]}, 1024, v{vx[1]}
    v_lshrrev_b32 v{t[0]}, 3, v{V_LANE}
    v_lshrrev_b32 v{t[1]}, 2, v{V_LANE}
    v_and_b32 v{t[1]}, 4, v{t[1]}
    v_xor_b32 v{t[1]}, v{t[1]}, v{t[2]}
    v_min_u32 v{t[1]}, 6, v{t[1]}
    v_mul_u32_u24 v{t[0]}, 2688, v{t[0]}
    v_lshl_add_u32 v{vw[0]}, v{t[1]}, 4, v{t[0]}
    v_add_u32 v{vw[1]}, {8*2688 - 1024}, v{vw[0]}
    ''')
    SX, SW, LX, LW = T3, T4, T5, T6
    a(f'''
    s_lshl_b32 s{SX}, s{S_TB}, 2
    s_add_u32 s{SX}, s{SX}, s{S_W}
    s_mul_i32 s{SX}, s{SX}, {32*896}
    s_mul_i32 s{SW}, s{S_W}, {16*2688}
    s_lshr_b32 s{T0}, s{S_H}, 1
    s_mul_i32 s{T0}, s{T0}, 112
    s_add_u32 s{SW}, s{SW}, s{T0}
    s_and_b32 s{T0}, s{S_H}, 1
    s_mul_i32 s{T0}, s{T0}, 896
    s_add_u32 s{SW}, s{SW}, s{T0}
    s_add_u32 s{SW}, s{SW}, 896
    s_mul_i32 s{LX}, s{S_W}, 28672
    s_lshl_b32 s{LW}, s{S_W}, 11
    ''')
    def w_items(c):
        lds = WR + c * 8192 if c < 5 else (c - 5) * 8192
        return [[f's_add_u32 m0, s{LW}, {lds}', f's_mul_i32 s{T0}, s{S_ROT}, {64*2688}', f's_add_u32 s{T0}, s{T0}, s{SW}',
                 ('vm', f'buffer_load_dwordx4 v{vw[0]}, {sr4(SRD_WQKV)}, s{T0} offen lds', f'w{c}')],
                [('vm', f'buffer_load_dwordx4 v{vw[1]}, {sr4(SRD_WQKV)}, s{T0} offen offset:1024 lds', f'w{c}'),
                 f's_add_u32 s{S_ROT}, s{S_ROT}, 1', f's_cmp_eq_u32 s{S_ROT}, 7', f's_cselect_b32 s{S_ROT}, 0, s{S_ROT}']]
    def x_items(c):
        out = []
        for i in range(4):
            out.append(([f's_add_u32 m0, s{LX}, {c*4096}', f's_add_u32 s{T0}, s{S_RX}, s{SX}'] if i == 0 else []) +
                       ([f's_add_u32 s{T0}, s{T0}, 12288'] if i == 2 else []) +
                       [('vm', f'buffer_load_dwordx4 v{vx[i&1]}, {sr4(SRD_X)}, s{T0} offen offset:{1024*i} lds', f'x{c}')] +
                       ([f's_add_u32 s{S_RX}, s{S_RX}, 128', f's_cmp_eq_u32 s{S_RX}, 896', f's_cselect_b32 s{S_RX}, 0, s{S_RX}'] if i == 3 else []))
        return out
    def put(items):
        for it in items:
            for x in it: a.emit(x)
    a.stamp('G_karg')
    NPRE = opt('npre', 2)
    a(f'''
    s_lshr_b32 s{T2}, s{S_J}, 3
    s_mul_i32 s{T2}, s{T2}, {opt('rotm', 2)}
    s_and_b32 s{T0}, s{S_J}, 7
    s_add_u32 s{T2}, s{T2}, s{T0}
    s_mul_i32 s{T0}, s{T2}, 37
    s_lshr_b32 s{T0}, s{T0}, 8
    s_mul_i32 s{T0}, s{T0}, 7
    s_sub_u32 s{T2}, s{T2}, s{T0}
    s_lshl_b32 s{S_DUM}, s{T2}, 2
    s_lshl_b32 s{S_RX}, s{T2}, 7
    s_mov_b32 s{SRD_X+2}, {X_BYTES}
    s_mov_b32 s{SRD_X+3}, 0x20000
    s_waitcnt lgkmcnt(0)
    s_mov_b32 s{SRD_X}, s{P_X}
    s_mov_b32 s{SRD_X+1}, s{P_X+1}
    s_mov_b32 s{S_ROT}, s{T2}
    ''')
    put(x_items(0))
    srd(a, SRD_WQKV, P_WQKV, WQKV_BYTES)
    srd(a, SRD_B, P_WO, WO_BYTES)
    a(f'''
    s_lshl_b32 s{S_WG}, s{S_H}, 4
    s_add_u32 s{S_WG}, s{S_WG}, s{S_TB}
    s_lshl_b32 s{T1}, s{S_W}, 7
    s_add_u32 s{T1}, s{T1}, s{S_WG}
    s_cmp_lt_u32 s{T1}, 112
    s_cselect_b32 s{S_WG}, s{S_WG}, 0x100000
    s_mul_i32 s{S_WG+1}, s{S_WG}, {4*896 // 16}
    s_lshl_b32 s{S_WG+1}, s{S_WG+1}, 4
    s_min_u32 s{S_WG+1}, s{S_WG+1}, 0x40000000
    ''')
    def wrow_items():
        return [[f'v_cmp_gt_u32 vcc, 56, v{V_LANE}', f'v_mov_b32 v{t[5]}, 0x40000000', 's_nop 0', f'v_cndmask_b32 v{t[5]}, v{t[5]}, v{V_OFF}, vcc']] + \
               [[('vm', f'buffer_load_dwordx4 {vr(WROW+4*i,4,"a")}, v{t[5]}, {sr4(SRD_B)}, s{S_WG+1} offen offset:{896*i}', 'wrow')] for i in range(4)]
    put(wrow_items() + w_items(0) + w_items(1))
    for c in range(1, NPRE): put(x_items(c))
    a.stamp('G_dma0')
    assert T1 % 2 == 0 and T2 == T1 + 1
    a(f's_add_u32 s{T1}, s{P_WS}, {WS_FLG}\ns_addc_u32 s{T2}, s{P_WS+1}, 0\ns_load_dword s{S_TAG}, s[{T1}:{T2}], 0')
    srd(a, SRD_WS, P_WS, WS_SIZE)
    def touch_item():
        TA, TB, TC = T1, T2, T0
        return [f's_lshl_b32 s{TA}, s2, 2', f's_add_u32 s{TA}, s{TA}, s{S_W}', f's_mul_i32 s{TB}, s{TA}, 1338', f's_lshr_b32 s{TB}, s{TB}, 18',
                f's_mul_i32 s{TC}, s{TB}, 196', f's_sub_u32 s{TA}, s{TA}, s{TC}', f's_lshl_b32 s{TA}, s{TA}, 13',
                f's_cmp_eq_u32 s{TB}, 1', f's_cselect_b32 s{SRD_A}, s{P_W3}, s{P_W1}', f's_cselect_b32 s{SRD_A+1}, s{P_W3+1}, s{P_W1+1}',
                f's_cmp_eq_u32 s{TB}, 2', f's_cselect_b32 s{SRD_A}, s{P_W2}, s{SRD_A}', f's_cselect_b32 s{SRD_A+1}, s{P_W2+1}, s{SRD_A+1}',
                f's_mov_b32 s{SRD_A+2}, {W1_BYTES}',
                f's_cmp_eq_u32 s{TB}, 3', f's_cselect_b32 s{SRD_A}, s{P_WO}, s{SRD_A}', f's_cselect_b32 s{SRD_A+1}, s{P_WO+1}, s{SRD_A+1}',
                f's_cselect_b32 s{SRD_A+2}, {WO_BYTES}, s{SRD_A+2}',
                f's_cmp_gt_u32 s{TB}, 3', f's_cselect_b32 s{SRD_A+2}, 0, s{SRD_A+2}', f's_mov_b32 s{SRD_A+3}, 0x20000',
                ('vm', f'buffer_load_dword a0, v{V_FL}, {sr4(SRD_A)}, s{TA} offen', 'touch')]
    def prew():
        a(f'''
        v_mov_b32 v{t[7]}, s{S_TAG}
        v_add_u32 v{t[7]}, -1, v{t[7]}
        v_lshlrev_b32 v{t[5]}, 2, v{V_LANE}
        {xm(32)}
        s_lshr_b32 s{T1}, s{S_H}, 1
        s_lshl_b32 s{T1}, s{T1}, 2
        s_add_u32 s{T1}, s{T1}, s{S_W}
        s_lshl_b32 s{T1}, s{T1}, 1
        s_and_b32 s{T2}, s{S_H}, 1
        s_add_u32 s{T1}, s{T1}, s{T2}
        s_lshl_b32 s{T1}, s{T1}, 4
        s_add_u32 s{T1}, s{T1}, s{S_TB}
        s_lshl_b32 s{T1}, s{T1}, 7
        s_add_u32 s{T1}, s{T1}, {FL_A}
        ''')
        st_ = lambda: a.vmem(f'buffer_store_dword v{t[7]}, v{t[5]}, {sr4(SRD_WS)}, s{T1} offen sc1', 'prew')
        st_()
        a(f's_lshl_b32 s{T1}, s{S_TB}, 2\ns_add_u32 s{T1}, s{T1}, s{S_W}\ns_lshl_b32 s{T1}, s{T1}, 4\ns_add_u32 s{T1}, s{T1}, s{S_H}\ns_lshl_b32 s{T1}, s{T1}, 7\ns_add_u32 s{T1}, s{T1}, {FL_B}')
        st_()
        a(f's_lshl_b32 s{T1}, s{S_TD}, 2\ns_add_u32 s{T1}, s{T1}, s{S_W}\ns_lshl_b32 s{T1}, s{T1}, 4\ns_add_u32 s{T1}, s{T1}, s{S_FS}\ns_lshl_b32 s{T1}, s{T1}, 7\ns_add_u32 s{T1}, s{T1}, {FL_D1}')
        for i in range(3):
            st_(); a(f's_add_u32 s{T1}, s{T1}, {FLS}')
        a(f's_lshl_b32 s{T1}, s{S_WG}, 7\ns_add_u32 s{T1}, s{T1}, {FL_W}')
        st_()
        a(f'''
        s_lshl_b32 s{T1}, s{S_RB}, 1
        s_and_b32 s{T2}, s{S_W}, 1
        s_add_u32 s{T1}, s{T1}, s{T2}
        s_lshl_b32 s{T1}, s{T1}, 3
        s_add_u32 s{T1}, s{T1}, s{S_CB}
        s_lshl_b32 s{T1}, s{T1}, 1
        s_lshr_b32 s{T2}, s{S_W}, 1
        s_add_u32 s{T1}, s{T1}, s{T2}
        s_lshl_b32 s{T1}, s{T1}, 7
        s_add_u32 s{T1}, s{T1}, {FL_C}
        s_cmp_ge_u32 s{S_J}, 28
        s_cselect_b32 s{T1}, 0x40000000, s{T1}
        ''')
        st_()
        a('s_mov_b64 exec, -1')
        if opt('tlb', 0):
            st = opt('tlb', 0) * 1024
            a(f'v_mul_u32_u24 v{t[5]}, {st // 64}, v{V_LANE}\nv_lshlrev_b32 v{t[5]}, 6, v{t[5]}\ns_mov_b32 s{T1}, {opt("tlbo", 0)}')
            a.vmem(f'buffer_load_dword a5, v{t[5]}, {sr4(SRD_WS)}, s{T1} offen', 'tlb')
            if opt('tlbout', 0):
                srd(a, SRD_B, P_OUT, X_BYTES)
                a.vmem(f'buffer_load_dword a6, v{t[5]}, {sr4(SRD_B)}, 0 offen', 'tlb')
    def dmaq_items():
        out = []
        for i in range(7):
            out.append([] +
                       [f's_add_u32 m0, s{S_U0}, {i*1024}', f's_mul_i32 s{T0}, s{S_U1}, {16*2688}', f's_add_u32 s{T0}, s{T0}, s{S_E0}',
                        ('vm', f'buffer_load_dwordx4 v{vq}, {sr4(SRD_WQKV)}, s{T0} offen lds', 'wq'),
                        f's_add_u32 s{S_U1}, s{S_U1}, 1', f's_cmp_eq_u32 s{S_U1}, 28', f's_cselect_b32 s{S_U1}, 0, s{S_U1}'])
        return out
    a(f'''
    s_mul_i32 s{S_U0}, s{S_W}, {7*1024}
    s_add_u32 s{S_U0}, s{S_U0}, {WQ}
    s_mul_i32 s{S_U1}, s{S_W}, 7
    s_add_u32 s{S_U1}, s{S_U1}, s{S_DUM}
    s_cmp_ge_u32 s{S_U1}, 28
    s_cselect_b32 s{T0}, 28, 0
    s_sub_u32 s{S_U1}, s{S_U1}, s{T0}
    s_mul_i32 s{S_E0}, s{S_H}, 56
    ''')
    a(f'''
    v_lshrrev_b32 v{t[0]}, 2, v{V_LANE}
    v_mul_u32_u24 v{t[0]}, 2688, v{t[0]}
    v_and_b32 v{t[3]}, 3, v{V_LANE}
    v_lshl_add_u32 v{vq}, v{t[3]}, 4, v{t[0]}
    v_lshrrev_b32 v{t[0]}, 1, v{n31}
    v_and_b32 v{t[0]}, 7, v{t[0]}
    v_lshlrev_b32 v{t[1]}, 7, v{n31}
    v_add_u32 v{t[1]}, s{LX}, v{t[1]}
    v_bfe_u32 v{t[2]}, v{V_LANE}, 4, 1
    v_lshlrev_b32 v{t[2]}, 5, v{t[2]}
    v_lshl_add_u32 v{t[2]}, v{t[3]}, 3, v{t[2]}       ; cg*32 + c4*8
    v_bfe_u32 v{t[3]}, v{V_LANE}, 2, 2                ; r
    v_lshl_add_u32 v{t[5]}, v{hf}, 3, v{t[3]}         ; 8hf + r
    v_lshl_add_u32 v{t[6]}, v{t[5]}, 6, v{t[2]}
    v_bfe_u32 v{t[3]}, v{V_LANE}, 3, 1
    v_lshlrev_b32 v{t[3]}, 6, v{t[3]}                 ; 64*bit
    v_add_u32 v{t[4]}, 56, v{t[2]}
    v_xor_b32 v{t[4]}, v{t[4]}, v{t[3]}
    v_xor_b32 v{t[2]}, v{t[2]}, v{t[3]}
    v_sub_u32 v{dB}, v{t[4]}, v{t[2]}
    v_lshl_add_u32 v{t[2]}, v{t[5]}, 7, v{t[2]}
    v_add_u32 v{t[2]}, {WR}, v{t[2]}
    ''')
    AQ = t[6]
    for n in range(4):
        a(f'''
        s_add_u32 s{T0}, s{S_W}, {n}
        s_and_b32 s{T0}, s{T0}, 3
        s_lshl_b32 s{T1}, s{T0}, 1
        v_add_u32 v{t[4]}, s{T1}, v{hf}
        v_xor_b32 v{t[4]}, v{t[4]}, v{t[0]}
        v_lshl_add_u32 v{ax[n]}, v{t[4]}, 4, v{t[1]}
        s_lshl_b32 s{T1}, s{T0}, 11
        v_add_u32 v{aw[n]}, s{T1}, v{t[2]}
        v_add_u32 v{ab[n]}, v{dB}, v{aw[n]}
        ''')
    for r in sm + sq + cs: a(f'v_mov_b32 v{r}, 0')
    a(f's_mov_b32 s{S_ONES}, 0x3f803f80')
    PA = t[0]; CA = t[1]; CR = t[2]; PB = vx[0]
    if opt('spre', 1):
        ssrd(a, SRD_A, 512, P_W1, P_W3, W1_BYTES, W1_BYTES, 3200, T1, T2)
    if opt('wqt', 0):
        a(f'''
        s_lshr_b32 s{T1}, s{S_J}, 3
        s_lshl_b32 s{T1}, s{T1}, 2
        s_add_u32 s{T1}, s{T1}, s{S_W}
        s_mul_i32 s{T1}, s{T1}, {28*2688}
        s_add_u32 s{T1}, s{T1}, s{S_E0}
        v_lshrrev_b32 v{t[5]}, 1, v{V_LANE}
        v_mul_u32_u24 v{t[5]}, 2688, v{t[5]}
        v_and_b32 v{t[4]}, 1, v{V_LANE}
        v_mul_u32_u24 v{t[4]}, 60, v{t[4]}
        v_add_u32 v{t[5]}, v{t[5]}, v{t[4]}
        {xm(56)}
        ''')
        a.vmem(f'buffer_load_dword a5, v{t[5]}, {sr4(SRD_WQKV)}, s{T1} offen', 'wqt')
        a('s_mov_b64 exec, -1')
    visit(a, 0)
    a.stamp('A_issued')
    ONE = PK; assert ONE % 2 == 0
    for i in range(4): a(f'v_mov_b32 v{ONE+i}, s{S_ONES}')
    steps = list(range(20)) + [20, 24, 21, 22, 23, 25, 26, 27]
    def reads(p_):
        s_ = steps[p_]; c, n = divmod(s_, 4); b = p_ % NWF; off = (c if c < 5 else c - 5) * 8192
        return [f'ds_read_b64_tr_b16 {vr(WF[b][0]+2*u,2)}, v{aw[n]} offset:{off + u*512}' for u in range(2)] + \
               [f'ds_read_b64_tr_b16 {vr(WF[b][1]+2*u,2)}, v{ab[n]} offset:{off + u*512}' for u in range(2)]
    hs = lambda x, tt: [f'v_mov_b32 v{tt}, v{x}', f'v_permlane32_swap_b32 v{x}, v{tt}', f'v_add_f32 v{x}, v{x}, v{tt}']
    CS = [accQ, T16]
    def dots(c, side):
        for n in range(4):
            x = X[4*c+n]
            for i in range(4):
                a(f'v_dot2c_f32_bf16 v{sm[i&1]}, s{S_ONES}, v{x+i}')
                a(f'v_dot2c_f32_bf16 v{sq[i&1]}, v{x+i}, v{x+i}')
            side()
    def xread(c):
        for n in range(4): a(f'ds_read_b128 {vr(X[4*c+n],4)}, v{ax[n]} offset:{c*4096}')
    a.vmwait('x0', lgkm=0)
    a.stamp('A_c0'); a(f's_add_u32 s{S_TAG}, s{S_TAG}, 1')
    xread(0)
    if opt('prew', 1): prew()
    a(f's_bitcmp1_b32 s{S_H}, 0\ns_cbranch_scc1 LAV')
    vm0 = list(a.vm)
    for typ in range(2):
        if typ == 1:
            a.label('LAV'); a.vm = list(vm0)
        NQE = 7
        def mf(p_, j):
            x = X[steps[p_]]; b = p_ % NWF
            A_, B_ = (WF[b][j], x) if typ == 0 else (x, WF[b][j])
            return f'{MFMA} {vr(ACC[j],16)}, {vr(A_,4)}, {vr(B_,4)}, {vr(ACC[j],16) if p_ else 0}'
        def mlist(p_):
            M = [mf(p_, 0), mf(p_, 1)]
            if steps[p_] % 4 == 0:
                M = [f'{MFMA} {vr(CS[j],16)}, {vr(ONE,4)}, {vr(WF[p_ % NWF][j],4)}, {vr(CS[j],16) if p_ else 0}' for j in range(2)] + M
            return M
        q_dma = []
        for c in range(NPRE, 5): q_dma += x_items(c)
        q_dma += w_items(2) + x_items(5) + x_items(6) + w_items(3) + w_items(4)
        def side1(k=opt('dmaper', 2)):
            for _ in range(k):
                if q_dma: put([q_dma.pop(0)])
        side1(4)
        for c in range(1, 7):
            while any(isinstance(x, tuple) and x[2] == f'x{c}' for it in q_dma for x in it): put([q_dma.pop(0)])
            a.vmwait(f'x{c}'); a.stamp(f'G_x{c}')
            xread(c)
            if c == 1:
                a('s_barrier')
                for x in reads(0) + reads(1): a(x)
                a('s_waitcnt lgkmcnt(12)')
            elif c == 6:
                put(q_dma); q_dma = []
                a('s_waitcnt lgkmcnt(0)\ns_barrier')
                a.stamp('A_x')
                for x in reads(8) + reads(9): a(x)
                put(w_items(5))
            else:
                a('s_waitcnt lgkmcnt(4)')
            dots(c - 1, side1)
            if c in (1, 2):
                for p_ in range(4 * (c - 1), 4 * c):
                    a('s_waitcnt lgkmcnt(4)' if p_ < 7 else 's_waitcnt lgkmcnt(0)')
                    rd = reads(p_ + 2) if p_ + 2 < 8 else []
                    M = mlist(p_)
                    for k_, m_ in enumerate(M):
                        a(m_)
                        if k_ >= len(M) - 2:
                            for y in (rd[:2] if k_ == len(M) - 2 else rd[2:]): a(y)
                        side1(1)
        dots(6, lambda: None)
        q2 = w_items(6) + dmaq_items()
        ex = [f'v_add_f32 v{sm[0]}, v{sm[0]}, v{sm[1]}', f'v_add_f32 v{sq[0]}, v{sq[0]}, v{sq[1]}'] + hs(sm[0], t[3]) + hs(sq[0], t[4]) + [
              f'v_mul_f32 v{mu}, {fx(1.0/448)}, v{sm[0]}', f'v_mul_f32 v{t[3]}, {fx(1.0/448)}, v{sq[0]}',
              f'v_fma_f32 v{t[3]}, -v{mu}, v{mu}, v{t[3]}', f'v_max_f32 v{t[3]}, 0, v{t[3]}', f'v_add_f32 v{t[3]}, {fx(1e-5)}, v{t[3]}',
              f'v_rsq_f32 v{rs}, v{t[3]}', f'v_lshlrev_b32 v{t[4]}, 2, v{n31}',
              f's_lshl_b32 s{T2}, s{S_W}, 9', f's_add_u32 s{T2}, s{T2}, {PRV}',
              f'v_add_u32 v{PA}, s{T2}, v{t[4]}', f'v_lshlrev_b32 v{PB}, 4, v{hf}', f'v_add_u32 v{PB}, s{T2}, v{PB}',
              f's_mul_i32 s{T2}, s{S_W}, 384', f's_add_u32 s{T2}, s{T2}, {CSP}', f'v_add_u32 v{CA}, s{T2}, v{t[4]}',
              f'v_mul_u32_u24 v{CR}, 768, v{hf}', f'v_add_u32 v{CR}, v{CR}, v{t[4]}', f'v_add_u32 v{CR}, {CSP}, v{CR}',
              f'v_mul_f32 v{rq}, {fx(28**-0.5 * math.log2(math.e))}, v{rs}']
        for p_ in range(8, 28):
            if p_ == 10:
                a.vmwait('w4', lgkm=0); a('s_barrier'); a.stamp('G_w4')
            elif p_ == 18:
                while any(isinstance(x, tuple) and x[0] == 'vm' and x[2] == 'w6' for it in q2 for x in it): put([q2.pop(0)])
                a.vmwait('w6', lgkm=0); a('s_barrier'); a.stamp('G_w6')
                for n in range(4): a(f'v_subrev_u32 v{aw[n]}, {WR}, v{aw[n]}\nv_subrev_u32 v{ab[n]}, {WR}, v{ab[n]}')
            elif p_ <= 22: a('s_waitcnt lgkmcnt(4)')
            elif p_ == 23: pass
            rd = reads(p_ + 2) if p_ + 2 < 28 and p_ < 21 else []
            if p_ == 21: rd = reads(23) + reads(24)
            M = mlist(p_)
            if p_ == 22:
                assert not ex
                ex = [f'ds_write_b32 v{CA}, v{CS[0]} offset:128', f'ds_write_b32 v{CA}, v{CS[1]} offset:256']
                if typ == 1: ex += [f'ds_write_b32 v{PA}, v{mu} offset:256', f'ds_write_b32 v{PA}, v{rs} offset:384']
                ex += reads(25) + ['s_waitcnt lgkmcnt(0)', 's_barrier'] + reads(26) + reads(27)
                for j in (1, 2): ex += [f'ds_read_b32 v{cs[j]}, v{CR} offset:{j*128}', f'ds_read_b32 v{t[3+j]}, v{CR} offset:{384 + j*128}']
                if typ == 1:
                    for q in range(4): ex += [f'ds_read_b128 {vr(T16+4*q,4)}, v{PB} offset:{256 + 32*q}', f'ds_read_b128 {vr(U16+4*q,4)}, v{PB} offset:{384 + 32*q}']
                    ex += ['s_waitcnt lgkmcnt(8)']
                else: ex += ['s_waitcnt lgkmcnt(0)']
                tail = [f'v_add_f32 v{cs[j]}, v{cs[j]}, v{t[3+j]}' for j in (1, 2)] + hs(cs[1], t[3]) + hs(cs[2], t[4])
                if typ == 0:
                    tail += [f'ds_write_b32 v{PA}, v{cs[1]}', f'ds_write_b32 v{PA}, v{cs[2]} offset:128']
                    tail += [f'ds_read_b128 {vr(T16+4*q,4)}, v{PB} offset:{32*q}' for q in range(4)]
                    tail += [f'ds_read_b128 {vr(U16+4*q,4)}, v{PB} offset:{128 + 32*q}' for q in range(4)]
                    tail += [f'v_cmp_lt_u32 vcc, 31, v{V_LANE}']
                else:
                    tail += [f'v_cmp_eq_u32 vcc, 28, v{n31}', f'v_mov_b32 v{t[7]}, s{S_ONES}', f'v_cndmask_b32 v{t[7]}, 0, v{t[7]}, vcc', f'v_cmp_lt_u32 vcc, 27, v{n31}']
                tail += [f's_lshl_b32 s{T0}, s{S_TB}, 2', f's_add_u32 s{T0}, s{T0}, s{S_W}', f's_and_b32 s{T1}, s{S_H}, 14', f's_lshl_b32 s{T1}, s{T1}, 6',
                         f's_add_u32 s{T0}, s{T0}, s{T1}', f's_lshl_b32 s{T0}, s{T0}, 12', f's_add_u32 s{T1}, s{T0}, {64*4096}']
            if p_ == 26:
                for x in ex: a(x)
                ex = tail
            for k_, m_ in enumerate(M):
                a(m_)
                if k_ >= len(M) - 2:
                    h_ = (len(rd) + 1) // 2
                    for y in (rd[:h_] if k_ == len(M) - 2 else rd[h_:]): a(y)
                if p_ < 22:
                    for x in ex[:3]: a(x)
                    ex = ex[3:]
                    if q2 and k_ == len(M) - 1 and (len(q2) > 7 or p_ >= opt('wq0', 10)): put([q2.pop(0)])
                else:
                    lim = {22: 4, 23: 4, 24: 100, 25: 100, 26: 8, 27: 8}[p_]
                    if p_ in (24, 25):
                        lim = 6
                    for x in ex[:lim]: a(x)
                    ex = ex[lim:]
        for x in ex: a(x)
        assert not q2
        a.stamp('A_kvloop')
        NEG1 = 'op_sel_hi:[1,0,1] neg_lo:[0,1,0] neg_hi:[0,1,0]'
        for j in range(2):
            A_ = ACC[j]; P_ = WF[j][0]
            if typ == 0:
                a(f's_waitcnt lgkmcnt({4*(1-j)})')
                C_ = (T16, U16)[j]
                for r in range(0, 16, 2): a(f'v_pk_fma_f32 {vr(A_+r,2)}, {vr(C_+r,2)}, {vr(mu,2)}, {vr(A_+r,2)} {NEG1}')
                for r in range(0, 16, 2): a(f'v_pk_mul_f32 {vr(A_+r,2)}, {vr(A_+r,2)}, {vr(rs,2)} op_sel_hi:[1,0]')
                for i in range(8): a(f'v_cvt_pk_bf16_f32 v{P_+i}, v{A_+2*i}, v{A_+2*i+1}')
                if j == 0: a(f'v_mov_b32 v{t[3]}, s{S_ONES}\nv_mov_b32 v{t[4]}, 0x3f80')
                a(f'v_cndmask_b32 v{P_+6}, v{P_+6}, v{t[3]}, vcc\nv_cndmask_b32 v{P_+7}, v{P_+7}, v{t[4]}, vcc')
            else:
                if j == 0: a('s_waitcnt lgkmcnt(0)')
                for r in range(0, 16, 2): a(f'v_pk_fma_f32 {vr(A_+r,2)}, {vr(T16+r,2)}, {vr(cs[1+j],2)}, {vr(A_+r,2)} {NEG1}')
                for r in range(0, 16, 2): a(f'v_pk_mul_f32 {vr(A_+r,2)}, {vr(A_+r,2)}, {vr(U16+r,2)}')
                for i in range(8): a(f'v_cvt_pk_bf16_f32 v{P_+i}, v{A_+2*i}, v{A_+2*i+1}')
                for i in range(8): a(f'v_cndmask_b32 v{P_+i}, v{P_+i}, v{t[7]}, vcc')
            for u in range(2):
                a.vmem(f'buffer_store_dwordx4 {vr(P_+4*u,4)}, v{V_OFF}, {sr4(SRD_WS)}, s{(T0, T1)[j]} offen offset:{2048*typ + 1024*u} sc1', 'stA')
        if typ == 0: a('s_branch LAQ')
    a.label('LAQ')
    (a.stamp('A_kvst'), a.stamp('R_A_kvstc'), a.stamp('R_A_kvstr', True))
    aq = aw
    for n in range(4):
        a(f'''
        s_add_u32 s{T0}, s{S_W}, {n}
        s_and_b32 s{T0}, s{T0}, 3
        s_lshl_b32 s{T0}, s{T0}, 10
        s_add_u32 s{T0}, s{T0}, {WQ}
        v_add_u32 v{aq[n]}, s{T0}, v{AQ}
        ''')
    a(f'''
    s_lshr_b32 s{T1}, s{S_H}, 1
    s_lshl_b32 s{T1}, s{T1}, 2
    s_add_u32 s{T1}, s{T1}, s{S_W}
    s_lshl_b32 s{T1}, s{T1}, 12
    s_add_u32 s{T5}, s{T1}, {FL_A}
    s_and_b32 s{T1}, s{S_H}, 1
    s_lshl_b32 s{T1}, s{T1}, 4
    s_add_u32 s{T1}, s{T1}, s{S_TB}
    s_lshl_b32 s{T1}, s{T1}, 7
    s_add_u32 s{T1}, s{T5}, s{T1}
    ''')
    def publish():
        a.vmwait('stA'); flag_store(a, T1, t[3]); a.stamp('A_flag')
    FAQ = opt('fAq', 7)
    for i, it in enumerate(dmaq_items()):
        if i >= NQE:
            for x in it: a.emit(x)
        if i == FAQ: publish()
    a.vmwait('wq'); a('s_barrier')
    a.stamp('A_wq')
    QB = [ACC[0] + 4*i for i in range(8)]
    NQ = 8
    qs = [4*c for c in range(7)] + [4*c + n for c in range(7) for n in (1, 2, 3)]
    def rdq(p_):
        c, n = divmod(qs[p_], 4)
        return [f'ds_read_b64_tr_b16 {vr(QB[p_ % NQ]+2*u,2)}, v{aq[n]} offset:{c*4096 + u*256}' for u in range(2)]
    AH = 5
    for p_ in range(AH):
        for x in rdq(p_): a(x)
    ex = []
    extra = 0
    for p_ in range(28):
        if p_ < 9 or p_ > 16:
            a(f's_waitcnt lgkmcnt({2 * (min(28, p_ + AH) - p_ - 1)})')
        else:
            a('s_waitcnt lgkmcnt(4)')
        if p_ < 7: a(f'{MFMA} {vr(T16,16)}, {vr(ONE,4)}, {vr(QB[p_ % NQ],4)}, {vr(T16,16) if p_ else 0}')
        a(f'{MFMA} {vr(accQ,16)}, {vr(QB[p_ % NQ],4)}, {vr(X[qs[p_]],4)}, {vr(accQ,16) if p_ else 0}')
        if p_ + AH < 28:
            for x in rdq(p_ + AH): a(x)
        if p_ == 9: a(f'ds_write_b32 v{CA}, v{T16}')
        if p_ == 11: a(f's_waitcnt lgkmcnt(4)\ns_barrier\nds_read_b32 v{cs[0]}, v{CR}\nds_read_b32 v{t[4]}, v{CR} offset:384')
        if p_ == 14:
            for x in [f'v_add_f32 v{cs[0]}, v{cs[0]}, v{t[4]}'] + hs(cs[0], t[4]) + [f'ds_write_b32 v{PA}, v{cs[0]}']: a(x)
        if p_ == 15:
            for q in range(4): a(f'ds_read_b128 {vr(T16+4*q,4)}, v{PB} offset:{32*q}')
        if p_ == opt('fAs', 15) and FAQ > 6: publish()
    a(f'v_cmp_lt_u32 vcc, 31, v{V_LANE}')
    if opt('pollA', 1) == 2: poll_issue(a, T5, V_FL, 32, R['t'][0])
    a('s_waitcnt lgkmcnt(0)')
    NEG1 = 'op_sel_hi:[1,0,1] neg_lo:[0,1,0] neg_hi:[0,1,0]'
    for r in range(0, 16, 2): a(f'v_pk_fma_f32 {vr(accQ+r,2)}, {vr(T16+r,2)}, {vr(mu,2)}, {vr(accQ+r,2)} {NEG1}')
    for r in range(0, 16, 2): a(f'v_pk_mul_f32 {vr(accQ+r,2)}, {vr(accQ+r,2)}, {vr(rq,2)} op_sel_hi:[1,0]')
    for i in range(8): a(f'v_cvt_pk_bf16_f32 v{Q0+i}, v{accQ+2*i}, v{accQ+2*i+1}')
    for i in (6, 7): a(f'v_cndmask_b32_e64 v{Q0+i}, v{Q0+i}, 0, vcc')
    a(f's_cmp_eq_u32 s{S_H}, 0\ns_cselect_b32 s{T0}, 1.0, 0\nv_mul_f32 v{MUX}, s{T0}, v{mu}')
    a.stamp('A_q')

def w13_setup(a, S13, L13):
    a(f'''
    s_cmp_lt_u32 s{S_W}, 2
    s_cselect_b32 s{SRD_B}, s{P_W1}, s{P_W3}
    s_cselect_b32 s{SRD_B+1}, s{P_W1+1}, s{P_W3+1}
    s_mov_b32 s{SRD_B+2}, {W1_BYTES}
    s_mov_b32 s{SRD_B+3}, 0x20000
    s_and_b32 s{T0}, s{S_W}, 1
    s_mul_i32 s{T0}, s{T0}, 7
    s_add_u32 s{T0}, s{T0}, s{S_R14}
    s_sub_u32 s{S_RG}, s{T0}, 14
    s_min_u32 s{S_RG}, s{S_RG}, s{T0}
    s_mul_i32 s{S_RG}, s{S_RG}, {32*3584}
    s_mul_i32 s{S13}, s{S_FS}, 224
    s_mul_i32 s{L13}, s{S_W}, 14336
    ''')

def rg_next():
    return [f's_add_u32 s{S_RG}, s{S_RG}, {32*3584}', f's_sub_u32 s{T0}, s{S_RG}, {14*32*3584}', f's_min_u32 s{S_RG}, s{S_RG}, s{T0}']

def pair_dma(S13, L13, slot, col, i, tag):
    return [f's_add_u32 m0, s{L13}, {slot*PAIR + i*1024}',
            f's_add_u32 s{T0}, s{S13}, s{S_RG}'] + ([f's_add_u32 s{T0}, s{T0}, {16*3584}'] if i & 1 else []) + \
           [('vm', f'buffer_load_dwordx4 v{V_P13}, {sr4(SRD_B)}, s{T0} offen lds', tag)] + (rg_next() if i & 1 else [])

def alloc_b():
    va = VA(4, 204)
    KV = [va(16) for _ in range(3)] + ([WOV] if opt('nkv', 4) == 4 else [])
    Q = [va(8) for _ in range(4)]
    O = [va(16) for _ in range(4)]
    S = [va(16), va(16)]
    P = [va(8), va(8)]
    t = [va() for _ in range(8)]
    v5 = 215 + 8
    return dict(KV=KV, Q=Q, O=O, S=S, P=P, t=t, v5=v5)

def phase_b(a, R, stg):
    KV, Q, O, S, P, t, v5 = (R[k] for k in ('KV', 'Q', 'O', 'S', 'P', 't', 'v5'))
    QX = R['QX']
    S13, L13, SKV, SB = T3, T4, T6, T2
    qa = t[4:8]
    MA = [240, 241, 242, 243]; VKV = 244; VP2 = 245; VX = 246
    a(f'''
    s_lshl_b32 s{SKV}, s{S_H}, 6
    s_add_u32 s{SKV}, s{SKV}, s{S_W}
    s_lshl_b32 s{SKV}, s{SKV}, 12
    v_add_u32 v{VKV}, s{SKV}, v{V_OFF}
    s_lshl_b32 s{SB}, s{S_TB}, 14
    ''')
    if opt('pollA', 1) == 1:
        visit(a, 1)
        W4 = R['S'][1]; RS = R['S'][1] + 4
        for i in range(4):
            for k_ in range(4): a(f'v_accvgpr_read_b32 v{W4+k_}, a{WROW+4*i+k_}')
            a(f'v_mov_b32 v{RS+i}, 0')
            for k_ in range(4): a(f'v_dot2c_f32_bf16 v{RS+i}, s{S_ONES}, v{W4+k_}')
        for m_ in ('row_shr:1', 'row_shr:2', 'row_shr:4', 'row_shr:8'):
            for i in range(4): a(f'v_add_f32_dpp v{RS+i}, v{RS+i}, v{RS+i} {m_} row_mask:0xf bank_mask:0xf bound_ctrl:1')
        for m_ in ('row_bcast:15 row_mask:0xa', 'row_bcast:31 row_mask:0xc'):
            for i in range(4): a(f'v_add_f32_dpp v{RS+i}, v{RS+i}, v{RS+i} {m_} bank_mask:0xf')
        for i in range(4): a(f'v_mul_f32 v{RS+i}, {fx(1/448)}, v{RS+i}')
        a(f's_lshl_b32 s{T0}, s{S_WG}, 4\ns_add_u32 s{T0}, s{T0}, {WS_WB - 63*16}\ns_mov_b32 exec_lo, 0\ns_brev_b32 exec_hi, 1')
        a.vmem(f'buffer_store_dwordx4 {vr(RS,4)}, v{V_OFF}, {sr4(SRD_WS)}, s{T0} offen sc1', 'stW')
        a('s_mov_b64 exec, -1')
        if opt('dlyA', 0): a(f"s_sleep {opt('dlyA', 0)}")
        poll_issue(a, T5, V_FL, 32, t[0])
    a.stamp('B_pre')
    poll_check(a, T5, V_FL, 32, t[0])
    a.stamp('B_poll')
    def kvload(buf):
        return [('vm', f'buffer_load_dwordx4 {vr(KV[buf]+4*j,4)}, v{VKV}, {sr4(SRD_WS)}, s{SB} offen offset:{1024*j} sc1', f'k{buf}' if j < 2 else f'kv{buf}') for j in range(4)] + \
               [f's_add_u32 s{SB}, s{SB}, 0x4000', f's_and_b32 s{SB}, s{SB}, 0x3c000']
    NKV = len(KV)
    NK0 = opt('nk0', 1)
    for b in range(NK0):
        for x in kvload(b): a.emit(x)
    for lq in range(4):
        a(f'''
        s_add_u32 s{T0}, s{S_W}, {lq}
        s_and_b32 s{T0}, s{T0}, 3
        s_lshl_b32 s{T0}, s{T0}, 11
        s_add_u32 s{T0}, s{T0}, {QX}
        v_add_u32 v{qa[lq]}, s{T0}, v{V_OFF}
        ''')
    a(f'ds_write_b128 v{qa[0]}, {vr(Q[0],4)}')
    stg.src_setup(t[1], t[2], t[3])
    w13_setup(a, S13, L13)
    a(f'''
    s_lshl_b32 s{T0}, s{S_E0}, 5
    s_add_u32 s{S13}, s{S13}, s{T0}
    s_and_b32 s{T0}, s{S_W}, 2
    v_and_b32 v{t[1]}, 3, v{V_LANE}
    v_xor_b32 v{t[1]}, s{T0}, v{t[1]}
    v_lshrrev_b32 v{t[2]}, 2, v{V_LANE}
    v_mul_u32_u24 v{t[2]}, 3584, v{t[2]}
    v_lshl_add_u32 v{V_P13}, v{t[1]}, 4, v{t[2]}
    s_lshl_b32 s{T0}, s{T0}, 1
    v_lshrrev_b32 v{t[1]}, 1, v{V_LANE}
    v_xor_b32 v{t[1]}, s{T0}, v{t[1]}
    v_mul_u32_u24 v{t[1]}, 3584, v{t[1]}
    v_and_b32 v{t[2]}, 1, v{V_LANE}
    v_lshl_add_u32 v{v5}, v{t[2]}, 4, v{t[1]}
    v_add_u32 v{VP2}, {16*3584 - 1024}, v{V_P13}
    s_waitcnt lgkmcnt(0)
    s_barrier
    ''')
    for lq in range(4):
        a(f'''
        s_add_u32 s{T0}, s{S_W}, {lq}
        s_and_b32 s{T0}, s{T0}, 3
        s_mul_i32 s{T0}, s{T0}, 12288
        s_add_u32 s{T0}, s{T0}, {SCR}
        v_add_u32 v{MA[lq]}, s{T0}, v{V_OFF}
        ''')
    a(f'''
    s_and_b32 s{SKV}, s{S_W}, 1
    s_lshl_b32 s{T0}, s{S_RB}, 1
    s_add_u32 s{SKV}, s{SKV}, s{T0}
    s_mul_i32 s{SKV}, s{SKV}, {32*896}
    s_lshr_b32 s{T0}, s{S_W}, 1
    s_lshl_b32 s{T0}, s{T0}, 6
    s_add_u32 s{SKV}, s{SKV}, s{T0}
    s_lshl_b32 s{T0}, s{S_CB}, 7
    s_add_u32 s{SKV}, s{SKV}, s{T0}
    v_and_b32 v{VX}, 31, v{V_LANE}
    v_lshrrev_b32 v{t[1]}, 5, v{V_LANE}
    v_mul_u32_u24 v{VX}, 896, v{VX}
    v_lshl_add_u32 v{VX}, v{t[1]}, 4, v{VX}
    ''')
    for lq in range(1, 4): a(f'ds_read_b128 {vr(Q[lq],4)}, v{qa[lq]}')
    spre = []; spre2 = []
    if opt('spre', 1):
        ssrd(a, SRD_WQKV, 784, P_W2, P_WO, W2_BYTES, WO_BYTES, 2048, S_U0, S_U1)
        spre = [[sld(SRD_A, 128*i)] for i in range(opt('spreA', 0), 25)]
        spre2 = [[sld(SRD_WQKV, 128*i)] for i in range(16)]
        if opt('spre0', 0):
            a('s_waitcnt lgkmcnt(0)')
            for _ in range(opt('spre0', 0)): a(spre.pop(0)[0])
    NK1 = opt('nk1', 3)
    for b in range(NK0, NK1):
        for x in kvload(b): a.emit(x)
    s_kv = []
    for T in range(NK1, NKV):
        s_kv += [(opt('kvS', 2) * (6 * (T - NK1) + k_), x) for k_, x in enumerate(kvload(T))]
    for T in range(NKV, 16):
        s_kv += [(16 * (T - NKV + 1) + 3 + opt('kvS', 2) * k_, x) for k_, x in enumerate(kvload(T % NKV))]
    s_w = []; wp = [opt('preP', 76)]
    for g in range(7):
        it = (rg_next() if g else []) + [f's_add_u32 s{T0}, s{S13}, s{S_RG}']
        for sl in range(2):
            it += [f's_add_u32 m0, s{L13}, {sl*PAIR + 2*g*1024 - 64*sl}',
                   ('vm', f'buffer_load_dwordx4 v{V_P13}, {sr4(SRD_B)}, s{T0} offen offset:{64*sl} lds', 'w13'),
                   ('vm', f'buffer_load_dwordx4 v{VP2}, {sr4(SRD_B)}, s{T0} offen offset:{1024 + 64*sl} lds', 'w13')]
        it += [('vm', f'buffer_load_dwordx4 {vr(RAW5+4*g,4,"a")}, v{v5}, {sr4(SRD_B)}, s{T0} offen offset:128', 'w13')]
        for x in it:
            if isinstance(x, tuple):
                s_w.append((wp[0], x)); wp[0] += opt('preS', 5)
            else: s_w.append((wp[0] - 4, x))
    s_s = [(4 + opt('sS', 4) * k_, x[0]) for k_, x in enumerate(spre + spre2)]
    s_x = [(opt('xrP', 40), ('vm', f'buffer_load_dwordx4 {vr(XRES,4)}, v{VX}, {sr4(SRD_X)}, s{SKV} offen', 'xr')),
           (opt('xrP', 40) + 6, ('vm', f'buffer_load_dwordx4 {vr(XRES+4,4)}, v{VX}, {sr4(SRD_X)}, s{SKV} offen offset:32', 'xr'))]
    if opt('vpre', 1):
        def vt(D, n, reg):
            a(xm(n)); a.vmem(f'buffer_load_dword a{reg}, v{V_FL}, {sr4(D)}, 0 offen', 'vt'); a('s_mov_b64 exec, -1')
        s_s = [(opt('vpre', 1), ('call', lambda: vt(SRD_A, 25, 7))), (opt('vpre2', 40), ('call', lambda: vt(SRD_WQKV, 16, 8)))]
    if opt('l2w', 0):
        def l2(i):
            if i == 0:
                srd(a, SRD_A, P_W2, W2_BYTES)
                a(f's_lshl_b32 s{S_U0}, s{S_J}, 2\ns_add_u32 s{S_U0}, s{S_U0}, s{S_W}\ns_lshl_b32 s{S_U0}, s{S_U0}, 13')
            if i == 1: a(f's_add_u32 s{S_U0}, s{S_U0}, {128*8192}')
            if i == 2:
                srd(a, SRD_A, P_WO, WO_BYTES)
                a(f's_lshl_b32 s{S_U0}, s{S_J}, 2\ns_add_u32 s{S_U0}, s{S_U0}, s{S_W}\ns_xor_b32 s{S_U0}, s{S_U0}, 127\ns_lshl_b32 s{S_U0}, s{S_U0}, 13')
            a.vmem(f'buffer_load_dword a{9+i}, v{V_FL}, {sr4(SRD_A)}, s{S_U0} offen', 'vt')
        s_s += [(opt('l2w', 0) + opt('l2s', 16) * i, ('call', (lambda i=i: l2(i)))) for i in range(3)]
    if opt('noW', 0): s_w = []
    if opt('noS', 0): s_s = []
    if opt('noKV', 0): s_kv = []
    VW = 217; VWP = 218; VW2 = 219
    a(f'v_lshrrev_b32 v{VW2}, 5, v{V_LANE}\nv_lshlrev_b32 v{VW2}, 4, v{VW2}')
    def pubW():
        a(f's_lshl_b32 s{T1}, s{S_WG}, 7\ns_add_u32 s{T1}, s{T1}, {FL_W}'); a.vmwait('stW'); flag_store(a, T1, VW)
    def pollW():
        a(f's_mul_i32 s{T1}, s{S_H}, {7*128}\ns_add_u32 s{T1}, s{T1}, {FL_W}'); poll_issue(a, T1, V_FL, 7, VWP)
    WB_ = KV[1]; assert NKV == 4
    s_m = [(opt('pubW', 21), ('call', pubW)), (opt('pollW', 201), ('call', pollW)), (229, ('call', lambda: poll_check(a, T1, V_FL, 7, VWP))),
           (230, f's_mul_i32 s{T1}, s{S_H}, 112'), (231, f's_add_u32 s{T1}, s{T1}, {WS_WB}')]
    s_m += [(232 + 2*q_, ('vm', f'buffer_load_dwordx4 {vr(WB_+4*q_,4)}, v{VW2}, {sr4(SRD_WS)}, s{T1} offen offset:{32*q_} sc1', 'wb')) for q_ in range(4)]
    s_m += [(241 + k_, x) for k_, x in enumerate([f's_lshl_b32 s{T2}, s{S_TB}, 2', f's_add_u32 s{T2}, s{T2}, s{S_W}', f's_lshl_b32 s{T2}, s{T2}, 4', f's_add_u32 s{T2}, s{T2}, s{S_H}',
                                                  f's_lshl_b32 s{T5}, s{T2}, 7', f's_add_u32 s{T5}, s{T5}, {FL_B}', f's_lshl_b32 s{T2}, s{T2}, 11', f's_add_u32 s{T6}, s{T2}, {WS_O}'])]
    s_p = []
    if opt('prew2', 0):
        def pw():
            a(f'''
            s_lshl_b32 s{S_SPIN}, s{S_TB}, 2
            s_add_u32 s{S_SPIN}, s{S_SPIN}, s{S_W}
            s_lshl_b32 s{S_SPIN}, s{S_SPIN}, 4
            s_add_u32 s{S_SPIN}, s{S_SPIN}, s{S_H}
            s_lshl_b32 s{S_SPIN}, s{S_SPIN}, 11
            s_add_u32 s{S_SPIN}, s{S_SPIN}, {WS_O}
            s_lshl_b32 s{S_SPIN+1}, s{S_RB}, 1
            s_and_b32 s{S_U1}, s{S_W}, 1
            s_add_u32 s{S_SPIN+1}, s{S_SPIN+1}, s{S_U1}
            s_mul_i32 s{S_SPIN+1}, s{S_SPIN+1}, 7
            s_add_u32 s{S_SPIN+1}, s{S_SPIN+1}, s{S_CB}
            s_lshl_b32 s{S_SPIN+1}, s{S_SPIN+1}, 1
            s_lshr_b32 s{S_U1}, s{S_W}, 1
            s_add_u32 s{S_SPIN+1}, s{S_SPIN+1}, s{S_U1}
            s_lshl_b32 s{S_SPIN+1}, s{S_SPIN+1}, 11
            s_add_u32 s{S_SPIN+1}, s{S_SPIN+1}, {WS_H}
            s_cmp_ge_u32 s{S_J}, 28
            s_cselect_b32 s{S_SPIN+1}, 0x40000000, s{S_SPIN+1}
            ''')
        P0 = opt('prew2', 0)
        s_p = [(P0, ('call', pw))] + [(P0 + 3 + 5*i, ('vm', f'buffer_store_dwordx4 {vr(Q[0],4)}, v{V_OFF}, {sr4(SRD_WS)}, s{S_SPIN + (i >> 1)} offen offset:{1024*(i&1)} sc1', 'pw')) for i in range(4)]
    streams = [s_kv, s_w, s_x, s_m, s_p, s_s]
    if opt('perm', 0): a(f's_mov_b32 s{S_DUM}, 0x07060302')
    a.vmwait('k0')
    a(f'{MFMA} {vr(S[0],16)}, {vr(KV[0],4)}, {vr(Q[0],4)}, 0')
    a(f'{MFMA} {vr(S[0],16)}, {vr(KV[0]+4,4)}, {vr(Q[0]+4,4)}, {vr(S[0],16)}')
    a(f'v_cmp_lt_u32 vcc, 31, v{V_LANE}')
    a(f'v_max3_f32 v{t[0]}, v{S[0]}, v{S[0]+1}, v{S[0]+2}\nv_max3_f32 v{t[1]}, v{S[0]+3}, v{S[0]+4}, v{S[0]+5}')
    for r in range(6, 14, 4):
        a(f'v_max3_f32 v{t[0]}, v{t[0]}, v{S[0]+r}, v{S[0]+r+1}\nv_max3_f32 v{t[1]}, v{t[1]}, v{S[0]+r+2}, v{S[0]+r+3}')
    a(f'''
    v_max3_f32 v{t[0]}, v{t[0]}, v{S[0]+14}, v{S[0]+15}
    v_max_f32 v{t[0]}, v{t[0]}, v{t[1]}
    v_mov_b32 v{t[1]}, v{t[0]}
    v_permlane32_swap_b32 v{t[0]}, v{t[1]}
    v_max_f32 v{t[0]}, v{t[0]}, v{t[1]}
    v_cvt_pk_bf16_f32 v{t[0]}, -v{t[0]}, 0
    v_cndmask_b32 v{Q[0]+6}, v{Q[0]+6}, v{t[0]}, vcc
    ds_write_b128 v{qa[0]}, {vr(Q[0]+4,4)} offset:1024
    v_lshlrev_b32 v{t[2]}, 16, v{t[0]}
    ''')
    assert t[2] % 2 == 0
    for r in range(0, 16, 2): a(f'v_pk_add_f32 {vr(S[0]+r,2)}, {vr(S[0]+r,2)}, {vr(t[2],2)} op_sel_hi:[1,0]')
    if not opt('xin', 1):
        a('s_waitcnt lgkmcnt(0)\ns_barrier')
        for lq in range(1, 4): a(f'ds_read_b128 {vr(Q[lq]+4,4)}, v{qa[lq]} offset:1024')
    if opt('stag', 0):
        Ls = a.newlabel('stag')
        for w in range(1, 4):
            a(f's_cmp_lt_u32 s{S_W}, {w}\ns_cbranch_scc1 {Ls}')
            for _ in range(opt('stag', 0)): a('s_nop 15')
        a.label(Ls)
    (a.stamp('B_first'), a.stamp('R_B_firstc'), a.stamp('R_B_firstr', True))
    def slot(T, q):
        cb = q & 1; nb = cb ^ 1
        kvn, nq = (T % NKV, q + 1) if q < 3 else ((T + 1) % NKV, 0)
        kvp, pq = (T % NKV, q - 1) if q else ((T - 1) % NKV, 3)
        no_qk = (T == 15 and q == 3); no_pv = (T == 0 and q == 0); first = (T == 0 or (T == 1 and q == 0))
        M = [None if no_qk else f'{MFMA} {vr(S[nb],16)}, {vr(KV[kvn],4)}, {vr(Q[nq],4)}, 0',
             None if no_qk else f'{MFMA} {vr(S[nb],16)}, {vr(KV[kvn]+4,4)}, {vr(Q[nq]+4,4)}, {vr(S[nb],16)}',
             None if no_pv else f'{MFMA} {vr(O[pq],16)}, {vr(KV[kvp]+8,4)}, {vr(P[nb],4)}, {0 if first else vr(O[pq],16)}',
             None if no_pv else f'{MFMA} {vr(O[pq],16)}, {vr(KV[kvp]+12,4)}, {vr(P[nb]+4,4)}, {vr(O[pq],16)}']
        e = lambda r: (f'v_exp_f32 v{S[cb]+r}, v{S[cb]+r}' if not opt('noexp', 0) else f'v_mov_b32 v{S[cb]+r}, v{S[cb]+r}')
        if opt('nopv', 0): M[2] = M[3] = None
        c = lambda j: (f'v_cvt_pk_bf16_f32 v{P[cb]+j}, v{S[cb]+2*j}, v{S[cb]+2*j+1}' if not opt('perm', 0) else f'v_perm_b32 v{P[cb]+j}, v{S[cb]+2*j+1}, v{S[cb]+2*j}, s{S_DUM}')
        seq = [M[0], e(0), e(1), e(2), c(0), e(3), e(4), M[1], c(1), e(5), e(6), c(2), e(7), e(8),
               M[2], c(3), e(9), e(10), c(4), e(11), e(12), M[3], c(5), e(13), e(14), e(15), c(6), c(7)]
        if T == 0 and q == 0:
            if opt('xin', 1):
                seq = [M[0], e(0), e(1), e(2), c(0), e(3), 's_waitcnt lgkmcnt(0)', 's_barrier'] + \
                      [f'ds_read_b128 {vr(Q[lq]+4,4)}, v{qa[lq]} offset:1024' for lq in range(1, 4)] + \
                      [None, e(4), c(1), e(5), e(6), c(2), e(7), e(8), c(3), None, 's_waitcnt lgkmcnt(2)', M[1], e(9), e(10), c(4), e(11), e(12),
                       c(5), e(13), e(14), e(15), c(6), 's_waitcnt lgkmcnt(0)', c(7), 's_nop 3']
            else: seq.insert(7, 's_waitcnt lgkmcnt(0)')
        for k_, x in enumerate(seq):
            if x is not None: a(x)
            if x is None or x.startswith('v_mfma'):
                mi = pos[0] & 3
                if mi == 3 and q == 2 and T < 15: a.vmwait(f'kv{(T+1)%NKV}')
                elif mi == 3 and q == 0 and T == 0: a.vmwait('kv0')
                else:
                    for st_ in streams:
                        if st_ and st_[0][0] <= pos[0]:
                            a.emit(st_.pop(0)[1]); break
                pos[0] += 1
    pos = [0]
    for T in range(16):
        for q in range(4): slot(T, q)
    assert not any(streams), [len(x) for x in streams]
    a(f'{MFMA} {vr(O[3],16)}, {vr(KV[15 % NKV]+8,4)}, {vr(P[1],4)}, {vr(O[3],16)}')
    a(f'{MFMA} {vr(O[3],16)}, {vr(KV[15 % NKV]+12,4)}, {vr(P[1]+4,4)}, {vr(O[3],16)}')
    (a.stamp('B_loop'), a.stamp('R_B_loopc'), a.stamp('R_B_loopr', True))
    stg.queue(opt('hgM', 4))
    for lq in range(1, 4):
        for j in range(4):
            a(f'ds_write_b128 v{MA[lq]}, {vr(O[lq]+4*j,4)} offset:{(lq-1)*4096 + j*1024}'); stg.one()
    a.vmwait('wb')
    a('s_mov_b32 exec_lo, 0')
    for r in range(12, 16): a(f'v_mov_b32 v{WB_+r}, 0')
    a(f'''
    s_mov_b64 exec, -1
    v_mov_b32 v{t[4]}, {fx(2.0 ** (64 if not opt('forcefb', 0) else -60))}
    v_mov_b32 v{t[5]}, {fx(2.0 ** -64)}
    s_waitcnt lgkmcnt(0)
    s_barrier
    ''')
    for lq in range(1, 4):
        for j in range(4): a(f'ds_read_b128 {vr(O[lq]+4*j,4)}, v{MA[0]} offset:{(lq-1)*4096 + j*1024}')
    stg.flush()
    for lq in range(1, 4):
        a(f's_waitcnt lgkmcnt({4*(3-lq)})')
        for r in range(0, 16, 2): a(f'v_pk_add_f32 {vr(O[0]+r,2)}, {vr(O[0]+r,2)}, {vr(O[lq]+r,2)}')
    a(f'''
    v_mov_b32 v{t[0]}, v{O[0]+12}
    v_mov_b32 v{t[1]}, v{O[0]+12}
    v_permlane32_swap_b32 v{t[0]}, v{t[1]}
    ''')
    a(f'''
    v_med3_f32 v{t[3]}, v{t[1]}, v{t[4]}, v{t[5]}
    v_cmp_neq_f32 vcc, v{t[3]}, v{t[1]}
    v_rcp_f32 v{t[2]}, v{t[1]}
    s_cbranch_vccnz Lfb
    ''')
    a.label('Lfb_ret')
    a(f'v_cmp_lt_u32 vcc, 31, v{V_LANE}')
    for r in range(0, 16, 2): a(f'v_pk_mul_f32 {vr(O[0]+r,2)}, {vr(O[0]+r,2)}, {vr(t[2],2)} op_sel_hi:[1,0]')
    for j in range(8): a(f'v_cvt_pk_bf16_f32 v{P[0]+j}, v{O[0]+2*j}, v{O[0]+2*j+1}')
    for j in (6, 7): a(f'v_cndmask_b32_e64 v{P[0]+j}, v{P[0]+j}, 0, vcc')
    for j in range(2):
        a.vmem(f'buffer_store_dwordx4 {vr(P[0]+4*j,4)}, v{V_OFF}, {sr4(SRD_WS)}, s{T6} offen offset:{1024*j} sc1', 'stB')
    a(f'v_pk_mul_f32 {vr(t[0],2)}, {vr(O[0],2)}, {vr(WB_,2)}\nv_pk_mul_f32 {vr(t[2],2)}, {vr(O[0]+2,2)}, {vr(WB_+2,2)}')
    for r in range(4, 16, 2): a(f'v_pk_fma_f32 {vr(t[r & 2],2)}, {vr(O[0]+r,2)}, {vr(WB_+r,2)}, {vr(t[r & 2],2)}')
    a(f'v_pk_add_f32 {vr(t[0],2)}, {vr(t[0],2)}, {vr(t[2],2)}\nv_add_f32 v{t[0]}, v{t[0]}, v{t[1]}')
    halfsum(a, t[0], t[1])
    a(f'v_add_f32 v{t[0]}, v{t[0]}, v{MUX}\nv_lshlrev_b32 v{t[1]}, 2, v{V_LANE}\ns_add_u32 s{T0}, s{T5}, {WS_MH - FL_B + (1 << 32)}\n' + xm(32))
    a.vmem(f'buffer_store_dword v{t[0]}, v{t[1]}, {sr4(SRD_WS)}, s{T0} offen sc1', 'stB')
    a('s_mov_b64 exec, -1')
    a.stamp('B_st'); a.stamp('H_st')


def fallback(a, R):
    KV, Q, O, S, P, t = R['KV'][0], R['Q'][0], R['O'][0], R['S'][0], R['P'][0], R['t']
    a.label('Lfb')
    a(f"""
    v_cmp_lt_u32 vcc, 31, v{V_LANE}
    s_lshl_b32 s{T1}, s{S_H}, 18
    s_mov_b32 s{T2}, 64
    v_mov_b32 v{t[0]}, 0xff7fffff
    v_cndmask_b32_e64 v{Q+6}, v{Q+6}, 0, vcc
    v_cndmask_b32_e64 v{Q+7}, v{Q+7}, 0, vcc
    """)
    a.label('Lfb1')
    a(f"""
    buffer_load_dwordx4 {vr(KV,4)}, v{V_OFF}, {sr4(SRD_WS)}, s{T1} offen sc1
    buffer_load_dwordx4 {vr(KV+4,4)}, v{V_OFF}, {sr4(SRD_WS)}, s{T1} offen offset:1024 sc1
    s_add_u32 s{T1}, s{T1}, 4096
    s_waitcnt vmcnt(0)
    {MFMA} {vr(S,16)}, {vr(KV,4)}, {vr(Q,4)}, 0
    {MFMA} {vr(S,16)}, {vr(KV+4,4)}, {vr(Q+4,4)}, {vr(S,16)}
    """)
    for r in range(0, 16, 2): a(f'v_max3_f32 v{t[0]}, v{t[0]}, v{S+r}, v{S+r+1}')
    a(f"""
    s_sub_u32 s{T2}, s{T2}, 1
    s_cmp_lg_u32 s{T2}, 0
    s_cbranch_scc1 Lfb1
    v_mov_b32 v{t[1]}, v{t[0]}
    v_permlane32_swap_b32 v{t[0]}, v{t[1]}
    v_max_f32 v{t[0]}, v{t[0]}, v{t[1]}
    v_cvt_pk_bf16_f32 v{t[1]}, -v{t[0]}, 0
    v_lshlrev_b32 v{t[2]}, 16, v{t[1]}
    v_sub_f32 v{t[0]}, -v{t[0]}, v{t[2]}
    v_cvt_pk_bf16_f32 v{t[2]}, v{t[0]}, 0
    v_lshlrev_b32 v{t[2]}, 16, v{t[2]}
    v_sub_f32 v{t[0]}, v{t[0]}, v{t[2]}
    v_or_b32 v{t[1]}, v{t[1]}, v{t[2]}
    v_cvt_pk_bf16_f32 v{t[0]}, v{t[0]}, 0
    v_cndmask_b32 v{Q+6}, v{Q+6}, v{t[1]}, vcc
    v_cndmask_b32 v{Q+7}, v{Q+7}, v{t[0]}, vcc
    s_lshl_b32 s{T1}, s{S_H}, 18
    s_mov_b32 s{T2}, 64
    """)
    for r in range(16): a(f'v_mov_b32 v{O+r}, 0')
    a.label('Lfb2')
    for j in range(4): a(f'buffer_load_dwordx4 {vr(KV+4*j,4)}, v{V_OFF}, {sr4(SRD_WS)}, s{T1} offen offset:{1024*j} sc1')
    a(f"""
    s_add_u32 s{T1}, s{T1}, 4096
    s_waitcnt vmcnt(0)
    {MFMA} {vr(S,16)}, {vr(KV,4)}, {vr(Q,4)}, 0
    {MFMA} {vr(S,16)}, {vr(KV+4,4)}, {vr(Q+4,4)}, {vr(S,16)}
    """)
    for r in range(16): a(f'v_exp_f32 v{S+r}, v{S+r}')
    for j in range(8): a(f'v_cvt_pk_bf16_f32 v{P+j}, v{S+2*j}, v{S+2*j+1}')
    a(f"""
    {MFMA} {vr(O,16)}, {vr(KV+8,4)}, {vr(P,4)}, {vr(O,16)}
    {MFMA} {vr(O,16)}, {vr(KV+12,4)}, {vr(P+4,4)}, {vr(O,16)}
    s_sub_u32 s{T2}, s{T2}, 1
    s_cmp_lg_u32 s{T2}, 0
    s_nop 7
    s_cbranch_scc1 Lfb2
    s_nop 7
    v_mov_b32 v{t[0]}, v{O+12}
    v_mov_b32 v{t[1]}, v{O+12}
    v_permlane32_swap_b32 v{t[0]}, v{t[1]}
    v_rcp_f32 v{t[2]}, v{t[1]}
    s_branch Lfb_ret
    """)

class Stager:
    def __init__(self, a): self.a = a; self.nl = 0; self.nt = 0; self.q = []
    def src_setup(self, t0, t1, t2):
        self.a(f'''
        v_lshrrev_b32 v{t0}, 3, v{V_LANE}
        v_lshrrev_b32 v{t1}, 1, v{V_LANE}
        v_and_b32 v{t1}, 4, v{t1}
        v_and_b32 v{t2}, 7, v{V_LANE}
        v_xor_b32 v{t1}, v{t1}, v{t2}
        v_mul_u32_u24 v{t0}, 1792, v{t0}
        v_lshl_add_u32 v{V_SRC}, v{t1}, 4, v{t0}
        ''')
    def setup(self, t0, t1, t2, vw):
        a = self.a; self.vw = vw
        a(f'''
        v_lshrrev_b32 v{t0}, 5, v{V_LANE}
        v_bfe_u32 v{t1}, v{V_LANE}, 2, 2
        v_lshl_add_u32 v{t0}, v{t0}, 2, v{t1}
        v_lshlrev_b32 v{t0}, 7, v{t0}
        v_bfe_u32 v{t1}, v{V_LANE}, 4, 1
        v_lshl_add_u32 v{t0}, v{t1}, 5, v{t0}
        v_and_b32 v{t1}, 3, v{V_LANE}
        v_lshl_add_u32 v{t0}, v{t1}, 3, v{t0}
        v_bfe_u32 v{t1}, v{V_LANE}, 3, 1
        s_lshr_b32 s{T0}, s{S_W}, 1
        v_xor_b32 v{t1}, s{T0}, v{t1}
        v_lshl_add_u32 v{t0}, v{t1}, 6, v{t0}
        s_lshl_b32 s{T0}, s{S_W}, 12
        s_add_u32 s{T0}, s{T0}, {SCR}
        v_add_u32 v{V_RD}, s{T0}, v{t0}
        v_xor_b32 v{V_RD+1}, 64, v{V_RD}
        v_lshrrev_b32 v{t0}, 3, v{V_LANE}
        v_lshlrev_b32 v{t0}, 7, v{t0}
        v_add3_u32 v{vw}, s{T0}, v{V_OFF}, v{t0}
        ''')
    def target_items(self, which):
        p, nb = (P_WO, WO_BYTES) if which == 'wo' else (P_W2, W2_BYTES)
        return [f's_mov_b32 s{SRD_A}, s{p}', f's_mov_b32 s{SRD_A+1}, s{p+1}', f's_mov_b32 s{SRD_A+2}, {nb}', f's_mov_b32 s{SRD_A+3}, 0x20000',
                f's_mul_i32 s{S_U0}, s{S_W}, {(112 if which == "wo" else 448)*896}', f's_lshl_b32 s{S_U1}, s{S_CB}, 7', f's_add_u32 s{S_U0}, s{S_U0}, s{S_U1}']
    @staticmethod
    def base(g):
        if g < 2: return ('a', 224 + 16 * g)
        if g < 4: return ('v', WOV + 16 * (g - 2))
        return ('a', 16 * (g - 4))
    @staticmethod
    def dest(g, s_, lc):
        p, b = Stager.base(g); return p, b + (s_ * 2 + lc) * 4
    def load_items(self):
        g = self.nl; self.nl += 1
        pre = self.target_items('wo') if g == 0 else (self.target_items('w2') if g == 4 else [])
        row0 = 28 * g if g < 4 else 32 * (g - 4)
        p, b = self.base(g)
        out = [pre] if pre else []
        for h_ in range(2):
            out.append([f's_add_u32 s{S_U1}, s{S_U0}, {(row0 + 16*h_)*896}'] +
                       [('vm', f'buffer_load_dwordx4 {vr(b+8*h_+4*i,4,p)}, v{V_SRC}, {sr4(SRD_A)}, s{S_U1} offen offset:{896*i}', f'hg{g}') for i in range(2)])
        return out
    def load(self):
        self.flush()
        for it in self.load_items():
            for x in it: self.a.emit(x)
    def queue(self, upto):
        while self.nl < upto:
            for it in self.load_items(): self.q += it
    def one(self):
        while self.q:
            x = self.q.pop(0); self.a.emit(x)
            if isinstance(x, tuple): break
    def flush(self):
        while self.q: self.one()
    def wr(self, u):
        a = self.a; g, s_ = divmod(u, 2); p, b = self.base(g)
        for i in range(2): a(f'ds_write_b128 v{self.vw}, {vr(b+8*s_+4*i,4,p)} offset:{2048*s_ + 128*i}')
    def rd(self, u):
        a = self.a; g, s_ = divmod(u, 2); p, b = self.base(g)
        for lc in range(2):
            for uu in range(2):
                a(f'ds_read_b64_tr_b16 {vr(b+(s_*2+lc)*4+2*uu,2,p)}, v{V_RD+lc} offset:{s_*2048 + uu*1024}')
    def trans(self):
        a = self.a; g = self.nt; self.nt += 1
        a.stamp(f'{"H" if g < 11 else "I"}_pre{g}')
        a.vmwait(f'hg{g}')
        if g in (0, 6): a.stamp(f'H_got{g}')
        for u in (2*g, 2*g + 1): self.wr(u)
        for u in (2*g, 2*g + 1): self.rd(u)
    def close(self): pass

def red_addr(a, t):
    for l in range(4):
        a(f's_xor_b32 s{T0}, s{S_W}, {l}\ns_mul_i32 s{T0}, s{T0}, 12288\ns_add_u32 s{T0}, s{T0}, {SCR}\nv_add_u32 v{t[l]}, s{T0}, v{V_OFF}')
def red_write(a, ACC, t, l, side=lambda: None):
    for j in range(4):
        a(f'ds_write_b128 v{t[l]}, {vr(ACC[l]+4*j,4)} offset:{(l-1)*4096 + j*1024}'); side()
def red_read(a, ACC, t, side=lambda: None):
    a('s_waitcnt lgkmcnt(0)\ns_barrier')
    for l in range(1, 4):
        for j in range(4): a(f'ds_read_b128 {vr(ACC[l]+4*j,4)}, v{t[0]} offset:{(l-1)*4096 + j*1024}')
    side()
    for l in range(1, 4):
        a(f's_waitcnt lgkmcnt({4*(3-l)})')
        for r in range(0, 16, 2): a(f'v_pk_add_f32 {vr(ACC[0]+r,2)}, {vr(ACC[0]+r,2)}, {vr(ACC[l]+r,2)}')

def put5(a, vt):
    a(f's_mul_i32 s{T0}, s{S_W}, 7168\ns_add_u32 s{T0}, s{T0}, {SINGLE}\nv_add_u32 v{vt}, s{T0}, v{V_OFF}')
    for g in range(7): a(f'ds_write_b128 v{vt}, {vr(RAW5+4*g,4,"a")} offset:{1024*g}')

def tile_ids(a, STT, SCT):
    a(f'''
    s_and_b32 s{STT}, s{S_W}, 1
    s_lshl_b32 s{T0}, s{S_RB}, 1
    s_add_u32 s{STT}, s{STT}, s{T0}
    s_lshr_b32 s{SCT}, s{S_W}, 1
    s_lshl_b32 s{T0}, s{S_CB}, 1
    s_add_u32 s{SCT}, s{SCT}, s{T0}
    ''')
def flag8_addr(a, vf, t0, t1, sdst, base):
    a(f'''
    v_lshrrev_b32 v{t0}, 2, v{V_LANE}
    v_lshlrev_b32 v{t0}, 11, v{t0}
    v_and_b32 v{t1}, 3, v{V_LANE}
    v_lshl_add_u32 v{vf}, v{t1}, 7, v{t0}
    s_lshl_b32 s{T0}, s{S_RB}, 3
    s_add_u32 s{T0}, s{T0}, s{S_W}
    s_lshl_b32 s{sdst}, s{T0}, 9
    s_add_u32 s{sdst}, s{sdst}, {base}
    ''')

def phase_c(a, R, stg):
    va = VA(4, 200)
    ACC = [va(16) for _ in range(4)]
    OF = [[va(4) for k in range(8)] for lt in range(2)]
    t = [va() for _ in range(8)]; vf = va(); vw = va(); vp = va()
    STT, SCT = T1, T2
    NB1 = opt('hgB', 7); NF = opt('hgBf', 0)
    for g in range(NF):
        if stg.nl < NB1: stg.load()
    stg.setup(t[0], t[1], t[2], vw)
    tile_ids(a, STT, SCT)
    for l in range(2):
        a(f'''
        s_xor_b32 s{T0}, s{STT}, {l}
        s_lshl_b32 s{T0}, s{T0}, 2
        s_add_u32 s{T0}, s{T0}, s{S_W}
        s_lshl_b32 s{T0}, s{T0}, 13
        s_add_u32 s{T3+l}, s{T0}, {WS_O}
        ''')
    for g in (0, 4):
        a(f'v_permlane32_swap_b32 v{XRES+g}, v{XRES+g+2}\nv_permlane32_swap_b32 v{XRES+g+1}, v{XRES+g+3}')
    for j in range(8):
        a(f'v_lshlrev_b32 v{ACC[0]+2*j}, 16, v{XRES+j}\nv_and_b32 v{ACC[0]+2*j+1}, 0xffff0000, v{XRES+j}')
    a('s_barrier')
    for _ in range(opt('trB0', 1)): stg.trans()
    a.vmwait('stB')
    flag_store(a, T5, t[3])
    a.stamp('C_flag'); a.stamp('H_flag')
    visit(a, 2)
    flag8_addr(a, vf, t[0], t[1], T5, FL_B)
    NT1 = NB1 - opt('trB', 1)
    for _ in range(opt('hgBg', 3)):
        if stg.nl < NB1: stg.load()
    while stg.nt < NT1:
        if stg.nt == NT1 - opt('pollB', 2): poll_issue(a, T5, vf, 8, vp)
        stg.trans()
        if stg.nl < NB1: stg.load()
    a.stamp('C_pre')
    poll_check(a, T5, vf, 8, vp)
    (a.stamp('C_poll'), a.stamp('R_C_pollc'), a.stamp('R_C_pollr', True))
    def old_(k, l):
        if k == 4 and l == 0: a(f's_add_u32 s{T3}, s{T3}, 4096\ns_add_u32 s{T4}, s{T4}, 4096')
        a.vmem(f'buffer_load_dwordx4 {vr(OF[l][k],4)}, v{V_OFF}, {sr4(SRD_WS)}, s{T3+l} offen offset:{1024*(k&3)} sc1', f'o{k}')
    OLA = opt('ola', 6)
    oq = [(k, l) for k in range(8) for l in range(2)]
    for _ in range(2 * OLA): old_(*oq.pop(0))
    nfree = NHG
    while stg.nt < NB1: stg.trans()
    red_addr(a, t)
    a(f'''
    s_mul_i32 s{T6}, s{STT}, 14
    s_add_u32 s{T6}, s{T6}, s{SCT}
    s_lshl_b32 s{T5}, s{STT}, 4
    s_add_u32 s{T5}, s{T5}, s{SCT}
    s_lshl_b32 s{T5}, s{T5}, 7
    s_add_u32 s{T5}, s{T5}, {FL_C}
    s_waitcnt lgkmcnt(0)
    s_barrier
    ''')
    MH = va(8); HC = va(8)
    a(f's_lshl_b32 s{T0}, s{STT}, 11\ns_add_u32 s{S_SPIN+1}, s{T0}, {WS_MH}\nv_lshlrev_b32 v{vf}, 2, v{V_LANE}')
    mq = [('vm', f'buffer_load_dword v{MH+i}, v{vf}, {sr4(SRD_WS)}, s{S_SPIN+1} offen offset:{256*i} sc1', 'mh') for i in range(8)]
    def mm(k, l):
        p, b = stg.dest(k >> 1, k & 1, l >> 1)
        a(f'{MFMA} {vr(ACC[l],16)}, {vr(b,4,p)}, {vr(OF[l & 1][k],4)}, {vr(ACC[l],16) if (k or l == 0) else 0}')
    KT = 5
    for k in range(KT):
        a.vmwait(f'o{k}')
        for l in range(4):
            mm(k, l)
            if oq and l & 1 == 0: old_(*oq.pop(0))
            elif not oq and mq: a.emit(mq.pop(0))
    assert not oq and not mq
    stg.queue(min(nfree, NB1 + opt('hgC0', 4)))
    for l in (1, 2, 3, 0):
        for k in range(KT, 8):
            if l == 1: a.vmwait(f'o{k}')
            mm(k, l)
        if l in (2, 3): red_write(a, ACC, t, l - 1, stg.one)
    a.stamp('C_mfma')
    red_write(a, ACC, t, 3, stg.one)
    a.vmwait('mh')
    for i in range(0, 8, 4): a(f'v_pk_add_f32 {vr(MH+i,2)}, {vr(MH+i,2)}, {vr(MH+i+2,2)}')
    a(f'v_pk_add_f32 {vr(MH,2)}, {vr(MH,2)}, {vr(MH+4,2)}\nv_add_f32 v{MH}, v{MH}, v{MH+1}')
    halfsum(a, MH, MH + 1)
    red_read(a, ACC, t, stg.flush)
    for r in range(0, 16, 2): a(f'v_pk_add_f32 {vr(ACC[1]+r,2)}, {vr(ACC[0]+r,2)}, {vr(MH,2)} op_sel_hi:[1,0] neg_lo:[0,1] neg_hi:[0,1]')
    for j in range(8): a(f'v_cvt_pk_bf16_f32 v{HC+j}, v{ACC[1]+2*j}, v{ACC[1]+2*j+1}')
    a(f's_lshl_b32 s{T0}, s{T6}, 11\ns_add_u32 s{T0}, s{T0}, {WS_H}')
    for j in range(2):
        a.vmem(f'buffer_store_dwordx4 {vr(HC+4*j,4)}, v{V_OFF}, {sr4(SRD_WS)}, s{T0} offen offset:{1024*j} sc1', 'stC')
    for i in range(4): a(f'v_mov_b32 v{t[4+i]}, 0')
    for j in range(8):
        a(f'v_dot2c_f32_bf16 v{t[4+(j&1)]}, s{S_ONES}, v{HC+j}')
        a(f'v_dot2c_f32_bf16 v{t[6+(j&1)]}, v{HC+j}, v{HC+j}')
    a(f'''
    v_add_f32 v{t[4]}, v{t[4]}, v{t[5]}
    v_add_f32 v{t[6]}, v{t[6]}, v{t[7]}
    v_permlane32_swap_b32 v{t[4]}, v{t[6]}
    v_add_f32 v{t[4]}, v{t[4]}, v{t[6]}
    v_and_b32 v{t[5]}, 31, v{V_LANE}
    v_lshrrev_b32 v{t[6]}, 5, v{V_LANE}
    v_lshlrev_b32 v{t[6]}, 2, v{t[6]}
    v_lshl_add_u32 v{t[5]}, v{t[5]}, 3, v{t[6]}
    s_lshl_b32 s{T0}, s{T6}, 8
    s_add_u32 s{T0}, s{T0}, {WS_ST}
    ''')
    a.vmem(f'buffer_store_dword v{t[4]}, v{t[5]}, {sr4(SRD_WS)}, s{T0} offen sc1', 'stC')
    a.stamp('C_st')
    for j in range(8): a(f'v_cvt_pk_bf16_f32 v{HKEEP+j}, v{ACC[0]+2*j}, v{ACC[0]+2*j+1}')
    for _ in range(opt('hgCf', 0)):
        if stg.nl < nfree: stg.load()
    a('s_barrier')
    put5(a, t[0])
    for _ in range(opt('trC0', 0)): stg.trans()
    a.vmwait('stC')
    flag_store(a, T5, t[3])
    a.stamp('C_flag2')
    NTP = NHG - opt('trE', 0) - opt('trC', 0) - opt('pollC', 2)
    while stg.nl < NHG: stg.load()
    while stg.nt < NTP: stg.trans()

def phase_d(a, R, stg):
    va = VA(4, 212)
    X = [va(4) for _ in range(28)]
    ACC = [va(16) for _ in range(4)]
    HP = va(4)
    t = [va(2) for _ in range(4)]
    mu = va(2)
    vl = [va() for _ in range(6)]
    vp = va(); vs = va()
    W = [va(4) for _ in range(2)] + [WOV + 4*i for i in range(8)]
    NW = len(W)
    ST = ACC[3]
    E = [t[0], t[0]+1, t[1], t[1]+1, t[2], t[2]+1, t[3], t[3]+1]
    STT = T6; SH = T5; S13, L13 = T3, T4
    w13_setup(a, S13, L13)
    a(f'''
    s_lshl_b32 s{T0}, s{S_L0}, 5
    s_add_u32 s{S13}, s{S13}, s{T0}
    s_lshl_b32 s{STT}, s{S_TD}, 2
    s_add_u32 s{STT}, s{STT}, s{S_W}
    s_lshl_b32 s{T2}, s{STT}, 11
    s_add_u32 s{T2}, s{T2}, {FL_C}
    v_bfe_u32 v{t[0]}, v{V_LANE}, 4, 1                 ; cg
    v_lshrrev_b32 v{t[1]}, 5, v{V_LANE}                ; hf
    v_bfe_u32 v{t[3]}, v{V_LANE}, 2, 2                 ; r
    v_and_b32 v{mu}, 3, v{V_LANE}
    v_lshlrev_b32 v{mu}, 3, v{mu}                      ; c4*8
    v_xor_b32 v{t[2]}, v{t[0]}, v{t[1]}
    v_lshl_add_u32 v{t[2]}, v{t[2]}, 2, v{t[3]}
    v_lshl_add_u32 v{t[2]}, v{t[2]}, 5, v{mu}
    v_mul_u32_u24 v{vl[4]}, 14336, v{t[0]}
    v_add_u32 v{vl[4]}, v{vl[4]}, v{t[2]}
    v_add_u32 v{vl[4]}, {SINGLE}, v{vl[4]}
    v_lshl_add_u32 v{t[2]}, v{t[1]}, 2, v{t[3]}
    v_lshl_add_u32 v{t[2]}, v{t[2]}, 6, v{mu}
    v_mul_u32_u24 v{t[0]}, {28672 + 32}, v{t[0]}
    v_add_u32 v{vl[0]}, v{t[0]}, v{t[2]}
    v_xor_b32 v{vl[1]}, 32, v{vl[0]}
    v_add_u32 v{vl[2]}, {PAIR}, v{vl[0]}
    v_add_u32 v{vl[3]}, {PAIR}, v{vl[1]}
    v_and_b32 v{t[0]}, 31, v{V_LANE}
    v_mul_u32_u24 v{t[1]}, {7*256}, v{t[1]}
    v_lshl_add_u32 v{vs}, v{t[0]}, 3, v{t[1]}
    s_mul_i32 s{T1}, s{STT}, {14*256}
    s_add_u32 s{T1}, s{T1}, {WS_ST}
    s_mul_i32 s{SH}, s{STT}, {28*1024}
    s_add_u32 s{SH}, s{SH}, {WS_H}
    ''')
    VSD = 222; SWB = S_DUM; SLB = S_DUM + 1
    a(f'''
    v_lshrrev_b32 v{t[0]}, 3, v{V_LANE}
    v_lshrrev_b32 v{t[1]}, 2, v{V_LANE}
    v_and_b32 v{t[1]}, 4, v{t[1]}
    v_and_b32 v{t[2]}, 7, v{V_LANE}
    v_xor_b32 v{t[1]}, v{t[1]}, v{t[2]}
    v_mul_u32_u24 v{t[0]}, 896, v{t[0]}
    v_lshl_add_u32 v{V_SRC2}, v{t[1]}, 4, v{t[0]}
    s_mul_i32 s{SWB}, s{S_W}, {448*896}
    s_lshl_b32 s{T0}, s{S_CB}, 7
    s_add_u32 s{SWB}, s{SWB}, s{T0}
    ''')
    def w2_dma(hl):
        base, per = (SCR, 12288) if hl < 3 else (PAIR, 14336)
        out = []
        for i in range(4):
            out.append(([f's_mul_i32 s{SLB}, s{S_W}, {per}', f's_add_u32 m0, s{SLB}, {base + (hl % 3)*4096}'] if i == 0 else []) +
                       [f's_add_u32 s{T0}, s{SWB}, {(256 + 32*hl + 8*i)*896 - 1024*i}',
                        ('vm', f'buffer_load_dwordx4 v{V_SRC2}, {sr4(SRD_A)}, s{T0} offen offset:{1024*i} lds', 'w2l')])
        return out
    NTP = NHG - opt('trE', 0) - opt('trC', 0)
    poll_issue(a, T2, V_FL, 14, vp)
    Ls = a.newlabel('skip')
    a(f's_cmp_ge_u32 s{S_J}, 28\ns_cbranch_scc1 {Ls}')
    while stg.nt < NTP: stg.trans()
    a.label(Ls)
    a('s_waitcnt lgkmcnt(0)\ns_barrier')
    a.stamp('D_pre')
    rest = [x for x in a.vm if x.startswith('hg')]
    poll_check(a, T2, V_FL, 14, vp)
    (a.stamp('D_poll'), a.stamp('R_D_pollc'), a.stamp('R_D_pollr', True)); a.stamp('F_poll')
    for c in range(7):
        a.vmem(f'buffer_load_dwordx2 {vr(ST+2*c,2)}, v{vs}, {sr4(SRD_WS)}, s{T1} offen offset:{256*c} sc1', 'st')
    SX_ = S_SPIN + 1
    a(f's_lshl_b32 s{SX_}, s{S_R14}, 11\nv_add_u32 v{vl[5]}, s{SH}, v{V_OFF}')
    def ldx(k):
        if k and k % 2 == 0: a(f's_add_u32 s{SX_}, s{SX_}, 2048\ns_sub_u32 s{T0}, s{SX_}, {28*1024}\ns_min_u32 s{SX_}, s{SX_}, s{T0}')
        a.vmem(f'buffer_load_dwordx4 {vr(X[k],4)}, v{vl[5]}, {sr4(SRD_WS)}, s{SX_} offen offset:{1024*(k&1)} sc1', f'x{k}')
    XLA = opt('xla', 10)
    for k in range(XLA): ldx(k)
    a(f's_or_b32 s{T0}, s2, s{S_W}\ns_cmp_lg_u32 s{T0}, 0\ns_cselect_b32 s{T0}, 0x40000000, {WS_FLG}')
    flag_store(a, T0, t[0])
    a.stamp('F_issued')
    Ls = a.newlabel('skip')
    a(f's_cmp_ge_u32 s{S_J}, 28\ns_cbranch_scc1 {Ls}')
    while stg.nt < NHG - opt('trE', 0): stg.trans()
    stg.close()
    a.label(Ls)
    SE = T5; SL = T1; SF = T2
    a(f'''
    s_mul_i32 s{SE}, s{STT}, 112
    s_mul_i32 s{T0}, s{S_FS}, 7
    s_add_u32 s{SE}, s{SE}, s{T0}
    s_add_u32 s{SL}, s{SE}, s{S_L0}
    s_add_u32 s{SE}, s{SE}, s{S_E0}
    s_lshl_b32 s{SE}, s{SE}, 10
    s_add_u32 s{SE}, s{SE}, {WS_HH}
    s_lshl_b32 s{SL}, s{SL}, 10
    s_add_u32 s{SL}, s{SL}, {WS_HH}
    s_add_u32 s{S_U1}, s{SE}, 4096
    s_lshl_b32 s{SF}, s{STT}, 4
    s_add_u32 s{SF}, s{SF}, s{S_FS}
    s_lshl_b32 s{SF}, s{SF}, 7
    s_add_u32 s{SF}, s{SF}, {FL_D1}
    ''')
    if opt('trC', 0): a('s_waitcnt lgkmcnt(0)')
    seq = [(j, k) for k in range(28) for j in (0, 1, 4)] + [(j, k) for j in (2, 3, 5, 6) for k in range(28)]
    def rdW(n):
        j, k = seq[n]
        if opt('pt', 0) and j in (2, 3): return [f'ds_read_b128 {vr(W[n % NW],4)}, v{vl[2]} offset:{(j - 2)*28672 + k*1024}']
        if j == 4: return [f'ds_read_b64_tr_b16 {vr(W[n % NW]+2*u,2)}, v{vl[4]} offset:{k*512 + u*256}' for u in range(2)]
        return [f'ds_read_b64_tr_b16 {vr(W[n % NW]+2*u,2)}, v{vl[{0:0,1:1,2:2,3:3,5:0,6:1}[j]]} offset:{k*1024 + u*512}' for u in range(2)]
    AH = opt('ah', 7); assert AH + 2 <= NW and 2 * AH <= 16
    PT = opt('pt', 0)
    ptq = []
    if PT:
        VT0, VT1, VTW, VBR = t[0], t[0] + 1, t[1], t[1] + 1
        a(f'''
        s_mul_i32 s{T0}, s{S_W}, 7168
        v_add_u32 v{VT0}, s{T0}, v{vl[2]}
        v_add_u32 v{VT1}, s{T0}, v{vl[3]}
        s_add_u32 s{T0}, s{T0}, {PAIR}
        v_add_u32 v{VTW}, s{T0}, v{V_OFF}
        ''')
        TB = ACC[2]
        for i in range(7):
            b = TB + 8 * (i & 1)
            it = [f'ds_read_b64_tr_b16 {vr(b + 4*lc + 2*u, 2)}, v{(VT0, VT1)[lc]} offset:{i*1024 + u*512}' for lc in range(2) for u in range(2)]
            ptq.append(it)
        for x in ptq[0]: a(x)
        for i in range(7):
            if i + 1 < 7:
                for x in ptq[i + 1]: a(x)
                a('s_waitcnt lgkmcnt(4)')
            else: a('s_waitcnt lgkmcnt(0)')
            b = TB + 8 * (i & 1)
            a(f'ds_write_b128 v{VTW}, {vr(b,4)} offset:{i*1024}\nds_write_b128 v{VTW}, {vr(b+4,4)} offset:{28672 + i*1024}')
        a(f'v_add_u32 v{vl[2]}, {PAIR}, v{V_OFF}')
    a.stamp('F_bar')
    for n in range(AH):
        for x in rdW(n): a(x)
    stat = [('wait', 'st')] + [f'v_add_f32 v{ST+2*c+b_}, v{ST+2*c+b_}, v{ST+2*c+2+b_}' for c in (0, 2, 4) for b_ in range(2)] + \
           [f'v_add_f32 v{ST+b_}, v{ST+b_}, v{ST+4+b_}' for b_ in range(2)] + [f'v_add_f32 v{ST+8+b_}, v{ST+8+b_}, v{ST+12+b_}' for b_ in range(2)] + \
           [f'v_add_f32 v{ST+b_}, v{ST+b_}, v{ST+8+b_}' for b_ in range(2)] + \
           [f'v_mov_b32 v{t[0]}, v{ST}', f'v_mov_b32 v{t[1]}, v{ST+1}', 's_nop 0', f'v_permlane32_swap_b32 v{t[0]}, v{ST}', f'v_permlane32_swap_b32 v{t[1]}, v{ST+1}',
            f'v_add_f32 v{t[0]}, v{t[0]}, v{ST}', f'v_add_f32 v{t[1]}, v{t[1]}, v{ST+1}',
            f'v_mul_f32 v{t[0]}, {fx(1/448)}, v{t[0]}', f'v_mul_f32 v{t[1]}, {fx(1/448)}, v{t[1]}',
            f'v_fma_f32 v{t[1]}, -v{t[0]}, v{t[0]}, v{t[1]}', f'v_max_f32 v{t[1]}, 0, v{t[1]}',
            f'v_add_f32 v{mu+1}, {fx(1e-5)}, v{t[1]}', f'v_rsq_f32 v{mu}, v{mu+1}', 's_nop 0', f'v_mul_f32 v{mu}, {fx(-math.log2(math.e))}, v{mu}']
    acc_of = {0: 0, 1: 1, 4: 2, 2: 3, 3: 0, 5: 1, 6: 2}
    def epi(j):
        A = ACC[acc_of[j]]
        out = []
        pk = opt('pkE', 0) if j != 6 else 2
        if pk >= 2:
            for r in range(0, 8, 2): out.append(f'v_pk_mul_f32 {vr(E[r],2)}, {vr(A+r,2)}, {vr(mu,2)} op_sel_hi:[1,0]')
        else:
            for r in range(8): out.append(f'v_mul_f32 v{E[r]}, v{mu}, v{A+r}')
        for r in range(8): out.append(f'v_exp_f32 v{E[r]}, v{E[r]}')
        if pk >= 1:
            for r in range(0, 8, 2): out.append(f'v_pk_mul_f32 {vr(A+r,2)}, {vr(A+r,2)}, {vr(A+8+r,2)}')
        else:
            for r in range(8): out.append(f'v_mul_f32 v{A+r}, v{A+r}, v{A+8+r}')
        if pk >= 2:
            for r in range(0, 8, 2): out.append(f'v_pk_fma_f32 {vr(E[r],2)}, {vr(E[r],2)}, {vr(mu,2)}, {vr(mu,2)} op_sel:[0,1,1] op_sel_hi:[1,1,1]')
        else:
            for r in range(8): out.append(f'v_fma_f32 v{E[r]}, v{E[r]}, v{mu+1}, v{mu+1}')
        for r in range(8): out.append(f'v_rcp_f32 v{E[r]}, v{E[r]}')
        if pk >= 1:
            for r in range(0, 8, 2): out.append(f'v_pk_mul_f32 {vr(A+r,2)}, {vr(A+r,2)}, {vr(E[r],2)}')
        else:
            for r in range(8): out.append(f'v_mul_f32 v{A+r}, v{A+r}, v{E[r]}')
        for i in range(4): out.append(f'v_cvt_pk_bf16_f32 v{HP+i}, v{A+2*i}, v{A+2*i+1}')
        sreg, off = (SE, 1024*j) if j < 4 else ((S_U1, 0) if j == 4 else (SL, 1024*(j-5)))
        out.append(('vm', f'buffer_store_dwordx4 {vr(HP,4)}, v{V_OFF}, {sr4(SRD_WS)}, s{sreg} offen offset:{off} sc1', f'hh{j}'))
        return out
    a.stamp('F_stats')
    a.vmwait('x0')
    a.stamp('F_x0')
    pend = []; late = []
    R['vfE'] = vs; R['vpE'] = vp
    for n, (j, k) in enumerate(seq):
        nn = n + AH
        if opt('pt', 0) and nn == 84: a('s_barrier')
        if nn < len(seq) and seq[nn] == (5, 0):
            a.vmwait('late'); a('s_barrier')
        rd = rdW(nn) if nn < len(seq) else []
        WP = opt('wp', 4)
        if n % WP == 0:
            left = sum(len(rdW(m)) for m in range(n + WP, min(len(seq), n + AH)))
            a(f's_waitcnt lgkmcnt({left})')
        A = ACC[acc_of[j]]
        a(f'{MFMA} {vr(A,16)}, {vr(W[n % NW],4)}, {vr(X[k],4)}, {vr(A,16) if k else 0}')
        for x in rd: a(x)
        if n < 84 and j == 0 and k in (2, 4, 8, 16, 24): a.stamp(f'F_k{k}')
        if n >= 84 and k == 27: a.stamp(f'F_t{j}')
        if n < 84:
            if j == 1 and k + XLA < 28: ldx(k + XLA)
            if j == 4 and k + 1 < 28: a.vmwait(f'x{k+1}')
            if k >= 4 and stat:
                a.emit(stat.pop(0))
            if n == 83:
                a.stamp('D_st1')
                assert not stat
                a('s_barrier')
                srd(a, SRD_A, P_W2, W2_BYTES)
                late = [pair_dma(S13, L13, 0, 0, i, 'late') for i in range(14)]
                g1 = [x for hl in range(3) for x in w2_dma(hl)]; g2 = [x for hl in range(3, 6) for x in w2_dma(hl)]
        else:
            if n == 84 + 2: pend = epi(0) + epi(1) + epi(4) + epi(2) + epi(3) + epi(5); done = 0; tot = len(pend); one = tot // 6
            if n >= 84 + 2:
                want = min(tot, (n - 85) * tot // 108 + 1)
                lim = {2: 3, 3: 3 + (k >= 2), 5: 4 + (k >= 2), 6: 5 + (k >= 2)}[j] * one
                while done < min(want, lim):
                    a.emit(pend.pop(0)); done += 1
                if k == 27:
                    need = {2: 1, 3: 2, 5: 3, 6: 6}[j] * one
                    while done < need:
                        a.emit(pend.pop(0)); done += 1
            if (j, k) == (5, 0): a('s_barrier')
            if k % opt('latestep', 2) == 0:
                q_ = late if late else (g1 if g1 else (g2 if j >= 5 else []))
                if q_:
                    for x in q_.pop(0): a.emit(x)
            if j == 5 and k == opt('f1k', 6):
                a.vmwait('hh1'); flag_store(a, SF, vp)
            if j == 6 and k == opt('f2k', 14) and not opt('d2late', 1):
                a(f's_add_u32 s{SF}, s{SF}, {FLS}')
                a.vmwait('hh2'); flag_store(a, SF, vl[2])
                a(f's_add_u32 s{SF}, s{SF}, {FLS}')
            if j == 6 and k == opt('p1k', 18):
                flag8_addr(a, vs, vp, vl[4], S_SPIN + 1, FL_D1)
                poll_issue(a, S_SPIN + 1, vs, 8, vp)
    assert not late and not g1 and not g2
    a.stamp('D_loop')
    if opt('d2late', 1):
        a(f's_add_u32 s{SF}, s{SF}, {FLS}')
        a.vmwait('hh3'); flag_store(a, SF, vl[2])
        a(f's_add_u32 s{SF}, s{SF}, {FLS}')
    for x in epi(6): a.emit(x)
    (a.stamp('D_epi'), a.stamp('R_D_epic'), a.stamp('R_D_epir', True))
    R['SF'] = SF

def phase_e(a, R, stg):
    va = VA(4, 199)
    ACC = [va(16) for _ in range(4)]
    NB = 16
    BUF = [[va(4) for l in range(2)] for d in range(NB)]
    vf = R['vfE']; vp = R['vpE']
    t = [204, 205, 206, 207]; vt = 208
    assert vf >= va.n and vp >= va.n and vf < 204 and vp < 204
    STT, SCT = T1, T3
    SP = S_SPIN + 1
    tile_ids(a, STT, SCT)
    a(f's_mul_i32 s{T4}, s{S_W}, {28*1024}')
    for l in range(2):
        a(f'''
        s_xor_b32 s{T0}, s{STT}, {l}
        s_mul_i32 s{T0}, s{T0}, {112*1024}
        s_add_u32 s{T0}, s{T0}, s{T4}
        s_add_u32 s{S_U0+l}, s{T0}, {WS_HH}
        ''')
    e0 = lambda f: 2 if f == 2 else 0
    l0 = lambda f: 0 if f == 2 else 5
    order = [7*f + e0(f) + j for j in (0, 1, 4, 2, 3) for f in range(4)] + [7*f + l0(f) + j for j in range(2) for f in range(4)]
    assert sorted(order) == list(range(28))
    if opt('erot', 0):
        for f_ in range(4):
            a(f's_add_u32 s{T0}, s{S_CB}, {f_}\ns_and_b32 s{T0}, s{T0}, 3\ns_mul_i32 s{T0}, s{T0}, 7168')
            for l in range(2): a(f's_add_u32 s{70 + 4*l + f_}, s{T0}, s{S_U0 + (l ^ 0)}')
        if opt('erot', 0) == 2:
            a(f's_lshr_b32 s{T0}, s{S_CB}, 2\ns_cmp_lg_u32 s{T0}, 0')
            for f_ in range(4):
                a(f's_mov_b32 s{T0}, s{70+f_}\ns_cselect_b32 s{70+f_}, s{74+f_}, s{70+f_}\ns_cselect_b32 s{74+f_}, s{T0}, s{74+f_}')
    poll_check(a, SP, vf, 8, vp)
    a.stamp('E_poll1')
    N2 = 20 if opt('d2late', 1) else 16
    B4 = opt('b4', 0)
    st = dict(nxt=0)
    FL3 = opt('efl', 7); PI2 = opt('epi2', 3); PI3 = opt('epi3', 15)
    def ld_items():
        n = st['nxt']; st['nxt'] += 1
        pre = []
        if B4 and n == opt('efl5', 4): pre.append(('call', lambda: (a.vmwait('hh5'), flag_store(a, R['SF'], vt), a(f's_add_u32 s{R["SF"]}, s{R["SF"]}, {FLS}'))))
        if n == FL3: pre.append(('call', lambda: (a.vmwait('hh6'), flag_store(a, R['SF'], vt))))
        if n in ((8, N2, 24) if B4 else (8, N2)):
            nm = {8: 2, N2: 3, 24: 4}[n]
            pre.append(('call', lambda: (a.stamp(f'E_pre{nm}'), poll_check(a, SP, vf, 8, vp), a.stamp(f'E_poll{nm}'))))
        if n in ((PI2, PI3, opt('epi4', 21)) if B4 else (PI2, PI3)): pre.append(('call', lambda: (a(f's_add_u32 s{SP}, s{SP}, {FLS}'), poll_issue(a, SP, vf, 8, vp))))
        ks = order[n]
        out = []
        for l in range(2):
            if opt('erot', 0):
                f_, o_ = divmod(ks, 7)
                out.append((pre if l == 0 else []) + [f's_add_u32 s{T0}, s{70 + 4*l + f_}, {o_ * 1024}',
                           ('vm', f'buffer_load_dwordx4 {vr(BUF[n % NB][l],4)}, v{V_OFF}, {sr4(SRD_WS)}, s{T0} offen sc1', f'h{n}')])
                continue
            out.append((pre if l == 0 else []) + [f's_add_u32 s{T0}, s{S_U0+l}, {(ks >> 2) * 4096}',
                       ('vm', f'buffer_load_dwordx4 {vr(BUF[n % NB][l],4)}, v{V_OFF}, {sr4(SRD_WS)}, s{T0} offen offset:{1024*(ks&3)} sc1', f'h{n}')])
        return out
    def ld():
        for it in ld_items():
            for x in it: a.emit(x)
    LA = opt('ela', 8)
    for n in range(LA): ld()
    for j in range(8):
        a(f'v_lshlrev_b32 v{ACC[0]+2*j}, 16, v{HKEEP+j}\nv_and_b32 v{ACC[0]+2*j+1}, 0xffff0000, v{HKEEP+j}')
    red_addr(a, t)
    RA = [209, 210, 211, 212]
    a(f'''
    s_lshl_b32 s{T0}, s{S_W}, 13
    v_add_u32 v{RA[0]}, s{T0}, v{V_RD}
    v_add_u32 v{RA[1]}, s{T0}, v{V_RD+1}
    s_mul_i32 s{T0}, s{S_W}, {14336 - 4096}
    s_sub_u32 s{T0}, s{T0}, {SCR - PAIR}
    v_add_u32 v{RA[2]}, s{T0}, v{V_RD}
    v_add_u32 v{RA[3]}, s{T0}, v{V_RD+1}
    ''')
    if opt('trE', 0):
        a('s_barrier')
        a(f'''
        v_subrev_u32 v{V_RD}, {SCR}, v{V_RD}
        v_subrev_u32 v{V_RD+1}, {SCR}, v{V_RD+1}
        v_lshrrev_b32 v{V_P13}, 3, v{V_LANE}
        v_lshlrev_b32 v{V_P13}, 7, v{V_P13}
        s_lshl_b32 s{T0}, s{S_W}, 12
        v_add3_u32 v{V_P13}, s{T0}, v{V_OFF}, v{V_P13}
        ''')
        stg.vw = V_P13
        while stg.nt < NHG: stg.trans()
        a('s_waitcnt lgkmcnt(0)')
    Ls = [n for n in range(28) if order[n] >= 16]
    WB = [WOV + 8*i for i in range(4)]
    lst = dict(rd=0)
    def lread():
        i = lst['rd']; lst['rd'] += 1
        hl, s_ = divmod(order[Ls[i]] - 16, 2)
        return [f'ds_read_b64_tr_b16 {vr(WB[i % 4] + 4*lc + 2*u, 2)}, v{RA[2*(hl // 3) + lc]} offset:{(hl % 3)*4096 + s_*2048 + u*1024}' for lc in range(2) for u in range(2)]
    for _ in range(3):
        for x in lread(): a(x)
    def lwait(n):
        if n in Ls: a(f's_waitcnt lgkmcnt({4 * (lst["rd"] - 1 - Ls.index(n))})')
    def mm(n, l):
        ks = order[n]
        p, b = stg.dest(4 + (ks >> 1), ks & 1, l >> 1) if ks < 16 else ('v', WB[Ls.index(n) % 4] + 4 * (l >> 1))
        a(f'{MFMA} {vr(ACC[l],16)}, {vr(b,4,p)}, {vr(BUF[n % NB][l & 1],4)}, {vr(ACC[l],16) if (n or l == 0) else 0}')
    KT = 28 - opt('etail', 3)
    for n in range(KT):
        lwait(n)
        a.vmwait(f'h{n}')
        items = []
        for _ in range(2 if n < opt('egrow', 0) else 1):
            if st['nxt'] < 28 and st['nxt'] - NB < n: items += ld_items()
        rd = lread() if (n in Ls and lst['rd'] < len(Ls)) else []
        for l in range(4):
            mm(n, l)
            if rd: a(rd.pop(0))
            if items and (len(items) > 2 or l & 1 == 0 or l == 3):
                for x in items.pop(0): a.emit(x)
        assert not items
        if n == opt('ebar', 20):
            assert all(m <= n for m in Ls if order[m] < 22)
            a('s_barrier')
    assert st['nxt'] == 28 and lst['rd'] == len(Ls)
    a('s_waitcnt lgkmcnt(0)')
    for l in (1, 2, 3, 0):
        for n in range(KT, 28):
            if l == 1: a.vmwait(f'h{n}')
            mm(n, l)
        if l in (2, 3): red_write(a, ACC, t, l - 1)
    a.stamp('E_mfma')
    red_write(a, ACC, t, 3)
    srd(a, SRD_A, P_OUT, X_BYTES)
    a(f'''
    v_and_b32 v{vf}, 31, v{V_LANE}
    v_lshrrev_b32 v{vp}, 5, v{V_LANE}
    v_mul_u32_u24 v{vf}, 896, v{vf}
    v_lshl_add_u32 v{vf}, v{vp}, 4, v{vf}
    s_mul_i32 s{T0}, s{STT}, {32*896}
    s_lshl_b32 s{T2}, s{SCT}, 6
    s_add_u32 s{T0}, s{T0}, s{T2}
    ''')
    red_read(a, ACC, t)
    if opt('bias', 0):
        for r in range(16): a(f"v_add_f32 v{ACC[0]+r}, {fx(opt('bias', 0) * 1e-3)}, v{ACC[0]+r}")
    PKR = ACC[1]
    for j in range(8): a(f'v_cvt_pk_bf16_f32 v{PKR+j}, v{ACC[0]+2*j}, v{ACC[0]+2*j+1}')
    for g in (0, 4):
        a(f'v_permlane32_swap_b32 v{PKR+g}, v{PKR+g+2}\nv_permlane32_swap_b32 v{PKR+g+1}, v{PKR+g+3}')
    fl_ = ['', ' sc1', ' nt', ' sc0 sc1'][opt('outst', 2)]
    a(f'buffer_store_dwordx4 {vr(PKR,4)}, v{vf}, {sr4(SRD_A)}, s{T0} offen{fl_}')
    a(f'buffer_store_dwordx4 {vr(PKR+4,4)}, v{vf}, {sr4(SRD_A)}, s{T0} offen offset:32{fl_}')
    a.stamp('E_st')

def gen():
    a = K()
    a.stamp('rt0', True); a.stamp('t0')
    HB = opt('hb', 3); DB = opt('db', 3)
    if int(os.environ.get('TFIX', '0')): a('s_memrealtime s[60:61]')
    a(f'''
    s_cmp_ge_u32 s2, 256
    s_cbranch_scc1 Lend
    s_load_dwordx16 s[32:47], s[0:1], 0
    s_load_dwordx2 s[50:51], s[0:1], 72
    v_lshrrev_b32 v2, 6, v0
    v_and_b32 v{V_LANE}, 63, v0
    v_readfirstlane_b32 s{S_W}, v2
    v_lshlrev_b32 v{V_OFF}, 4, v{V_LANE}
    v_lshlrev_b32 v{V_FL}, 7, v{V_LANE}
    s_and_b32 s{T0}, s2, 7
    s_lshr_b32 s{S_J}, s2, 3
    s_and_b32 s{S_H}, s{T0}, {(16 >> HB) - 1}
    s_lshl_b32 s{S_H}, s{S_H}, {HB}
    s_and_b32 s{T1}, s{S_J}, {(1 << HB) - 1}
    s_add_u32 s{S_H}, s{S_H}, s{T1}
    s_lshr_b32 s{S_TB}, s{T0}, {4 - HB}
    s_lshl_b32 s{S_TB}, s{S_TB}, {5 - HB}
    s_lshr_b32 s{T1}, s{S_J}, {HB}
    s_add_u32 s{S_TB}, s{S_TB}, s{T1}
    s_mul_i32 s{T1}, s{S_J}, 9363
    s_lshr_b32 s{T1}, s{T1}, 16
    s_mul_i32 s{T2}, s{T1}, 7
    s_sub_u32 s{S_CB}, s{S_J}, s{T2}
    s_lshl_b32 s{S_RB}, s{T0}, 2
    s_add_u32 s{S_RB}, s{S_RB}, s{T1}
    s_and_b32 s{S_TD}, s{T0}, {(16 >> DB) - 1}
    s_lshl_b32 s{S_TD}, s{S_TD}, {DB}
    s_and_b32 s{T1}, s{S_J}, {(1 << DB) - 1}
    s_add_u32 s{S_TD}, s{S_TD}, s{T1}
    s_lshr_b32 s{S_FS}, s{T0}, {4 - DB}
    s_lshl_b32 s{S_FS}, s{S_FS}, {5 - DB}
    s_lshr_b32 s{T1}, s{S_J}, {DB}
    s_add_u32 s{S_FS}, s{S_FS}, s{T1}
    ''')
    if opt('cpre', 1):
        a('s_getpc_b64 s[54:55]')
        a.label('Lpc')
        a(f'''
        s_lshl_b32 s{T0}, s{S_J}, 2
        s_add_u32 s{T0}, s{T0}, s{S_W}
        s_mul_i32 s{T0}, s{T0}, 3
        v_add_u32 v4, s{T0}, v{V_LANE}
        v_lshlrev_b32 v4, 7, v4
        v_min_u32 v4, Lcode_end-Lpc-4, v4
        v_mov_b32 v5, s55
        v_add_co_u32 v4, vcc, s54, v4
        v_addc_co_u32 v5, vcc, 0, v5, vcc
        s_mov_b64 exec, 7
        ''')
        a.vmem('global_load_dword a4, v[4:5], off', 'code')
        a('s_mov_b64 exec, -1')
    R = alloc_b()
    phase_a(a, R)
    a(f'''
    s_and_b32 s{T0}, s{S_FS}, 3
    s_cmp_eq_u32 s{T0}, 2
    s_cselect_b32 s{S_E0}, 2, 0
    s_cselect_b32 s{S_L0}, 0, 5
    s_and_b32 s{T0}, s{S_J}, {(1 << DB) - 1}
    s_lshr_b32 s{T1}, s{S_J}, {DB}
    s_mul_i32 s{T1}, s{T1}, {opt('r14b', 7)}
    s_mul_i32 s{T0}, s{T0}, {opt('r14a', 1)}
    s_add_u32 s{T0}, s{T0}, s{T1}
    s_mul_i32 s{T1}, s{T0}, 4682
    s_lshr_b32 s{T1}, s{T1}, 16
    s_mul_i32 s{T1}, s{T1}, 14
    s_sub_u32 s{S_R14}, s{T0}, s{T1}
    ''')
    stg = Stager(a)
    phase_b(a, R, stg)
    a(f's_cmp_ge_u32 s{S_J}, 28\ns_cbranch_scc1 LnoC')
    phase_c(a, R, stg)
    a('s_branch LD')
    vm_c = list(a.vm)
    a.label('LnoC')
    a.vmall()
    flag_store(a, T5, 4)
    a('s_barrier')
    put5(a, 5)
    if opt('idle', 0):
        srd(a, SRD_A, P_W2, W2_BYTES)
        a(f'''
        s_sub_u32 s{T1}, s{S_J}, 28
        s_mul_i32 s{T0}, s{T1}, {448*896}
        s_mul_i32 s{T2}, s{S_W}, {336*128}
        s_add_u32 s{T0}, s{T0}, s{T2}
        s_add_u32 s{T0}, s{T0}, {256*896}
        ''')
        for i in range(6):
            if i == 5: a(xm(16))
            a(f'buffer_load_dword a{10+i}, v{V_FL}, {sr4(SRD_A)}, s{T0} offen\ns_add_u32 s{T0}, s{T0}, 8192')
        a(f'''
        s_mov_b64 exec, -1
        s_cmp_eq_u32 s{T1}, 2
        s_cselect_b32 s{T2}, 0, 160
        s_and_b32 s{T0}, s{S_FS}, 12
        s_add_u32 s{T0}, s{T0}, s{T1}
        s_mul_i32 s{T0}, s{T0}, 224
        s_add_u32 s{T0}, s{T0}, s{T2}
        s_and_b32 s{T2}, s{S_W}, 1
        s_mul_i32 s{T2}, s{T2}, {224*3584}
        s_add_u32 s{T0}, s{T0}, s{T2}
        v_mul_u32_u24 v4, 3584, v{V_LANE}
        ''')
        for i in range(4):
            if i == 3: a(xm(32))
            a(f'buffer_load_dword a{16+i}, v4, {sr4(SRD_B)}, s{T0} offen\ns_add_u32 s{T0}, s{T0}, {64*3584}')
        a('s_mov_b64 exec, -1')
    a.label('LD')
    a.vm = vm_c
    phase_d(a, R, stg)
    a(f's_cmp_ge_u32 s{S_J}, 28\ns_cbranch_scc0 LE')
    vm_d = list(a.vm)
    a('s_waitcnt vmcnt(0)')
    flag_store(a, R['SF'], 4)
    if opt('b4', 0):
        a(f's_add_u32 s{R["SF"]}, s{R["SF"]}, {FLS}'); flag_store(a, R['SF'], 4)
    a('s_branch Lfin')
    a.label('LE')
    a.vm = vm_d
    phase_e(a, R, stg)
    a.label('Lfin')
    if int(os.environ.get('TFIX', '0')):
        a.label('Lfix')
        a(f's_memrealtime s[62:63]\ns_waitcnt lgkmcnt(0)\ns_sub_u32 s62, s62, s60\ns_cmp_lt_u32 s62, {int(os.environ["TFIX"])}\ns_cbranch_scc1 Lfix')
    if STAMP:
        a('s_waitcnt vmcnt(0)')
        a.stamp('end'); a.stamp('rt1', True)
        a(f's_waitcnt lgkmcnt(0)\ns_lshl_b32 s{T0}, s2, 2\ns_add_u32 s{T0}, s{T0}, s{S_W}\ns_lshl_b32 s{T0}, s{T0}, 7\ns_add_u32 s{T0}, s{T0}, {WS_DBG}\nv_mov_b32 v4, 0')
        for i in range(a.nst):
            a(f'v_mov_b32 v5, s{60+2*i}\nbuffer_store_dword v5, v4, {sr4(SRD_WS)}, s{T0} offen offset:{4*i}')
    if STAMP and int(os.environ.get('DBGOUT', '0')):
        n = a.nst
        a(f'''
        s_load_dwordx2 s[{SRD_A}:{SRD_A+1}], s[0:1], 64
        s_mov_b32 s{SRD_A+2}, 256
        s_mov_b32 s{SRD_A+3}, 0x20000
        s_not_b32 s{T1}, s60
        v_mov_b32 v6, s{T1}
        v_mov_b32 v7, s{60+2*(n-1)}
        v_mov_b32 v8, s60
        s_mov_b64 exec, 1
        s_waitcnt lgkmcnt(0)
        buffer_atomic_umax v6, v4, {sr4(SRD_A)}, 0 offen
        buffer_atomic_umax v7, v4, {sr4(SRD_A)}, 0 offen offset:4
        buffer_atomic_umax v8, v4, {sr4(SRD_A)}, 0 offen offset:8
        s_or_b32 s{T0}, s2, s{S_W}
        s_cmp_lg_u32 s{T0}, {int(os.environ.get('DBGWG', '0'))}
        s_cbranch_scc1 Lend
        ''')
        for i in range(2, min(n - 1, 15)):
            a(f's_sub_u32 s{T0}, s{60+2*i}, s62\nv_mov_b32 v5, s{T0}\nbuffer_store_dword v5, v4, {sr4(SRD_A)}, 0 offen offset:{4*(i+1)}')
    a.label('Lend')
    a('s_endpgm')
    fallback(a, R)
    a.label('Lcode_end')
    a.finalize()
    head = open('sequential_preLN__mha_block__glu_gated_swiglu__prompt.s.ref').read().split('; Override')[0]
    pre = f'.amdgcn_target "amdgcn-amd-amdhsa--gfx950"\n.text\n.p2align 12\n.fill {(4096 - 0x300) // 4}, 4, 0xbf800000\n.globl {NAME}\n.p2align 8\n.type {NAME},@function\n{NAME}:\n'
    if opt('visit', 1):
        import subprocess, re, tempfile
        from asmgen import Ins
        tmp = tempfile.mkdtemp()
        open(tmp + '/t.s', 'w').write(pre + a.text() + ''.join(f'Lpage{i}:\n' for i in range(1, 13)))
        subprocess.run(['clang', '-x', 'assembler', '-target', 'amdgcn-amd-amdhsa', '-mcpu=gfx950', '-c', tmp + '/t.s', '-o', tmp + '/t.o'], check=True)
        dis = subprocess.run(['llvm-objdump', '-d', '--mcpu=gfx950', tmp + '/t.o'], capture_output=True, text=True).stdout
        dis = dis[dis.index(f'<{NAME}>:'):]
        sizes = [4 * len(m.group(1).split()) for m in re.finditer(r'// [0-9A-F]{12}: ([0-9A-F ]+)$', dis, re.M)]
        out = []; off = 0; page = 1; k = 0; masked = False
        for x in a.ins:
            if x.kind not in ('label', 'dir'):
                if off >= 4096 * page and page <= 12 and not masked:
                    out += [Ins(f'Lpage{page}:'), Ins(f's_cbranch_execz Lvis{(page - 1) // 4}')]
                    off += 4; page += 1
                off += sizes[k]; k += 1
                if ('exec', 0) in x.wr: masked = x.text.split(';')[0].strip() != 's_mov_b64 exec, -1'
            out.append(x)
        assert k == len(sizes), (k, len(sizes))
        for pg in range(page, 13): out += [Ins(f'Lpage{pg}:'), Ins(f's_branch Lvis{(pg - 1) // 4}')]
        a.ins = out
    s = head + f'; @launch grid=(256,1,1) block=(256,1,1) lds={LDS_BYTES}\n' + ''.join('; ' + l + '\n' for l in DOC.strip().split('\n')) + pre + a.text()
    s += f'''.section .rodata,"a"
.p2align 6
.amdhsa_kernel {NAME}
  .amdhsa_next_free_vgpr 512
  .amdhsa_next_free_sgpr 102
  .amdhsa_accum_offset 256
  .amdhsa_group_segment_fixed_size 0
  .amdhsa_kernarg_size 80
  .amdhsa_user_sgpr_count 2
  .amdhsa_user_sgpr_kernarg_segment_ptr 1
  .amdhsa_system_sgpr_workgroup_id_x 1
.end_amdhsa_kernel
'''
    if STAMP: s = '; STAMPS ' + ' '.join(a.names) + '\n' + s
    print(f'instrs={len(a.ins)} nop_states={a.nops} stamps={a.nst}', file=sys.stderr)
    return s

if __name__ == '__main__':
    open(sys.argv[1], 'w').write(gen())
```
